```python
import torch

def _softmax(x, axis=-1):
    return torch.softmax(x, dim=axis)
def _gelu(x):
    return torch.nn.functional.gelu(x, approximate="tanh")
def _silu(x):
    return torch.nn.functional.silu(x)
def _sigmoid(x):
    return torch.sigmoid(x)
def _layernorm(x, axis=-1, eps=1e-5):
    m = x.mean(dim=axis, keepdim=True)
    v = x.var(dim=axis, keepdim=True, unbiased=False)
    return (x - m) / torch.sqrt(v + eps)
def _scatter_add(tgt, idx, src, axis=0):
    return tgt.clone().index_add_(axis, idx, src)
def _segment_sum(src, seg, n):
    out = torch.zeros((n,) + src.shape[1:], dtype=src.dtype)
    return out.index_add_(0, seg, src)
def _pad(x, pw):
    flat = tuple(v for pair in reversed(pw) for v in pair)
    return torch.nn.functional.pad(x, flat)

kernel_name = 'standalone__gqa_softmax__near_ridge'

def setup_inputs():

    _w = (lambda a: (lambda t: t.to(torch.bfloat16) if t.is_floating_point() else t)(torch.as_tensor(a)))
    B, Hq, Hkv, Sq, Sk, D = 16, 32, 32, 384, 384, 128
    return {
        "q": _w((lambda *s: torch.randn(*s, dtype=torch.bfloat16) * 0.8)(B, Hq, Sq, D)),
        "k": _w((lambda *s: torch.randn(*s, dtype=torch.bfloat16) * 0.8)(B, Hkv, Sk, D)),
        "v": _w((lambda *s: torch.randn(*s, dtype=torch.bfloat16) * 0.05)(B, Hkv, Sk, D)),
    }

def reference(q, k, v):
    B, Hq, Sq, D = q.shape
    Hkv = k.shape[1]
    rep = Hq // Hkv
    k = (lambda x, n, axis: torch.repeat_interleave(x, n, dim=axis))(k, rep, axis=1)
    v = (lambda x, n, axis: torch.repeat_interleave(x, n, dim=axis))(v, rep, axis=1)
    scale = D ** -0.5
    scores = torch.einsum("bhqd,bhkd->bhqk", q, k) * scale
    p = _softmax(scores, axis=-1)
    return torch.einsum("bhqk,bhkd->bhqd", p, v)
```

```python
import re
REG = re.compile(r'\b([vas])(?:\[(\d+):(\d+)\]|(\d+))')
def regs_of(tok):
    out=[]
    tok=tok.strip()
    if tok in ('vcc',): return [('s','vcc')]
    if tok=='m0': return [('s','m0')]
    if tok=='exec': return [('s','exec')]
    m=REG.fullmatch(tok.lstrip('-'))
    if not m: return out
    k=m.group(1)
    if m.group(2) is not None: return [(k,i) for i in range(int(m.group(2)),int(m.group(3))+1)]
    return [(k,int(m.group(4)))]
TRANS=('v_exp_f32','v_rcp_f32','v_log_f32','v_rsq_f32','v_sqrt_f32')
class I:
    def __init__(s, text, **meta):
        s.text=text; s.meta=meta
        t=text.split(';')[0].strip()
        s.label = t.endswith(':') or t.startswith('.') or t==''
        s.rd=[]; s.wr=[]; s.op=''; s.kind='other'
        if s.label: return
        p=t.split(None,1); s.op=p[0]
        ops=[]
        if len(p)>1:
            ops=[x.strip() for x in re.split(r',(?![^\[]*\])', p[1])]
            if ops:
                last=ops[-1].split()
                ops[-1]=last[0]; s.mods=last[1:]
        op=s.op
        R=lambda i: regs_of(ops[i]) if i<len(ops) else []
        if op.startswith('v_mfma'):
            s.kind='mfma'; s.wr=R(0); s.A=R(1); s.B=R(2); s.C=R(3); s.rd=s.A+s.B+s.C
            s.passes=4 if '16x16x32' in op else 8
        elif op.startswith('v_cmp'):
            s.kind='valu'; s.wr=R(0); s.rd=R(1)+R(2)
        elif op.startswith('v_permlane'):
            s.kind='valu'; s.wr=R(0)+R(1); s.rd=R(0)+R(1)
        elif op.startswith('v_readfirstlane') or op.startswith('v_readlane'):
            s.kind='valu'; s.wr=R(0); s.rd=R(1)+R(2)
        elif op.startswith('v_'):
            s.kind='valu'; s.wr=R(0); s.rd=sum((R(i) for i in range(1,len(ops))),[])
            if op.startswith('v_fmac') or op.startswith('v_dot2c'): s.rd+=R(0)
        elif op.startswith('ds_read'):
            s.kind='ds'; s.wr=R(0); s.rd=R(1)
        elif op.startswith('ds_write'):
            s.kind='ds'; s.rd=R(0)+R(1)
        elif op.startswith('buffer_load') or op.startswith('global_load'):
            s.kind='vmem'
            if ' lds' in t: s.rd=R(0)+R(1)+R(2)+[('s','m0')]; s.dma=True
            else: s.wr=R(0); s.rd=R(1)+R(2)+R(3)
        elif op.startswith('buffer_store') or op.startswith('global_store') or op.startswith('buffer_atomic'):
            s.kind='vmem'; s.store=True; s.rd=R(0)+R(1)+R(2)+R(3); s.data=R(0) if op.startswith('buffer') else R(1)
        elif op.startswith('s_load') or op.startswith('s_memtime') or op.startswith('s_memrealtime'):
            s.kind='smem'; s.wr=R(0); s.rd=R(1)
        elif op in ('s_waitcnt','s_barrier','s_nop','s_endpgm','s_setprio','s_sleep') or op.startswith('s_cbranch') or op=='s_branch':
            s.kind='ctl'
        elif op.startswith('s_cmp') or op.startswith('s_bitcmp'):
            s.kind='salu'; s.rd=R(0)+R(1)
        elif op.startswith('s_'):
            s.kind='salu'; s.wr=R(0); s.rd=sum((R(i) for i in range(1,len(ops))),[])
        else:
            raise ValueError("unknown instr "+text)
    def states(s):
        if s.label: return 0
        if s.op=='s_nop': return int(s.text.split()[1],0)+1
        return 1

def check_trace(tr, verbose=True):
    probs=[]
    tr=[x for x in tr if not x.label]
    pos=[]; p=0
    for x in tr:
        pos.append(p); p+=x.states()
    W=24
    for j,c in enumerate(tr):
        i=j-1
        while i>=0:
            a=tr[i]
            d=pos[j]-pos[i]-a.states()
            if d>W: break
            need=0; why=''
            aw=set(a.wr);
            def ov(x,y): return bool(set(x)&set(y))
            if a.kind=='valu':
                vw=[r for r in a.wr if r[0] in 'va']; sw=[r for r in a.wr if r[0]=='s']
                if c.kind=='mfma' and ov(vw,c.rd): need,why=2,'valu->mfma'
                if c.op.startswith('v_permlane') and ov(vw,c.rd): need,why=max(need,2),'valu->permlane'
                if (c.op.startswith('v_readfirstlane') or c.op.startswith('v_readlane')) and ov(vw,c.rd): need,why=max(need,1),'valu->readlane'
                if a.op in TRANS and c.kind=='valu' and c.op not in TRANS and ov(vw,c.rd): need,why=max(need,1),'trans->valu'
                if sw and c.kind=='vmem' and ov(sw,c.rd): need,why=max(need,5),'valu sgpr->vmem'
                if sw and c.kind=='valu' and (ov(sw,c.rd) or (('s','vcc') in sw and 'vcc' in c.text.split(',',1)[-1])): need,why=max(need,2),'valu sgpr->valu'
            if a.kind=='mfma':
                n1={4:8,8:12}[a.passes]; n2={4:6,8:10}[a.passes]; n3={4:3,8:7}[a.passes]
                if c.kind=='mfma':
                    if ov(a.wr,c.A+c.B): need,why=n1,'mfma D->A/B'
                    if ov(a.wr,c.C) and not (a.wr==c.C and a.passes==c.passes): need,why=max(need,n2),'mfma D->C overlap'
                elif c.kind=='valu':
                    if ov(a.wr,c.rd+c.wr): need,why=n1,'mfma D->valu'
                    if ov(a.C,c.wr): need,why=max(need,n3),'mfma C WAR valu'
                elif c.kind in('ds','vmem'):
                    if ov(a.wr,c.rd+c.wr): need,why=n1,'mfma D->mem'
            if a.kind=='salu' and ('s','m0') in a.wr and getattr(c,'dma',False): need,why=max(need,1),'m0->dma'
            if getattr(a,'store',False) and 'x4' in a.op and c.kind in('valu','mfma','ds','vmem') and ov(a.data,c.wr): need,why=max(need,2),'store data WAR'
            if d<need: probs.append(f"HAZARD {why}: need {need} have {d}: [{a.text}] -> [{c.text}]")
            i-=1
    lg=[]
    vm=[]
    pend={}
    landed=set();
    visible=set()
    slot_readers={}
    slot_content={}
    slot_busy={}
    for j,c in enumerate(tr):
        if c.op=='s_waitcnt':
            m=re.search(r'vmcnt\((\d+)\)',c.text)
            if m:
                n=int(m.group(1))
                if 'need' in c.meta:
                    tag=c.meta['need']
                    idx=[k for k,x in enumerate(vm) if tr[x].meta.get('tag')==tag]
                    loosest = len(vm)-1-max(idx) if idx else None
                    if verbose and loosest is not None and loosest!=n and not c.meta.get('loose_ok'): probs.append(f"NOTE wait {c.text} for {tag}: loosest N={loosest}")
                while len(vm)>n:
                    x=vm.pop(0)
                    for r in tr[x].wr:
                        if pend.get(r)==('vm',x): del pend[r]
                    tr[x].done=True
            m=re.search(r'lgkmcnt\((\d+)\)',c.text)
            if m:
                n=int(m.group(1))
                if any(tr[x].kind=='smem' for x in lg) and n!=0: probs.append("smem outstanding with counted lgkm wait: "+c.text)
                while len(lg)>n:
                    x=lg.pop(0)
                    for r in tr[x].wr:
                        if pend.get(r)==('lg',x): del pend[r]
                    tr[x].done=True
            continue
        for r in c.rd+c.wr:
            if r in pend: probs.append(f"UNWAITED {r} from [{tr[pend[r][1]].text}] used by [{c.text}]")
        if c.op=='s_barrier':
            tags={}
            for k in range(j):
                x=tr[k]
                if getattr(x,'dma',False) and 'tag' in x.meta:
                    tags.setdefault(x.meta['tag'],True)
                    if not getattr(x,'done',False): tags[x.meta['tag']]=False
            visible={t for t,ok in tags.items() if ok}
            for sl,rs in slot_readers.items():
                slot_readers[sl]=[x for x in rs if not getattr(tr[x],'done',False)]
        if c.kind=='ds' and 'src' in c.meta:
            tag=c.meta['src']; sl=c.meta['slot']
            if slot_content.get(sl)!=tag: probs.append(f"SLOT {sl} holds {slot_content.get(sl)} but read wants {tag}: {c.text}")
            if c.meta.get('private'):
                if any(getattr(tr[k],'dma',False) and tr[k].meta.get('tag')==tag and not getattr(tr[k],'done',False) for k in range(j)): probs.append(f"READ of {tag} before landed: {c.text}")
            else:
                if tag not in visible: probs.append(f"READ of {tag} not visible (no wait+barrier): {c.text}")
            slot_readers.setdefault(sl,[]).append(j)
        if getattr(c,'dma',False) and 'tag' in c.meta:
            sl=c.meta['slot']
            for x in slot_readers.get(sl,[]):
                if tr[x].meta.get('private'):
                    if not getattr(tr[x],'done',False): probs.append(f"DMA {c.meta['tag']} into slot {sl} while own read pending")
                else: probs.append(f"DMA {c.meta['tag']} into slot {sl} w/o barrier after read [{tr[x].text}]")
            slot_readers[sl]=[]
            slot_content[sl]=c.meta['tag']
        if c.kind in('ds','smem'):
            c.done=False
            lg.append(j)
            for r in c.wr: pend[r]=('lg',j)
        if c.kind=='vmem':
            c.done=False
            vm.append(j)
            if len(vm)>63: probs.append("vmcnt overflow >63 at "+c.text)
            for r in c.wr: pend[r]=('vm',j)
    return probs
```

```python
import sys, argparse
sys.path.insert(0,'work')
from asmlib import I, check_trace
NAME="standalone__gqa_softmax__near_ridge_kernel"
SLOT=16640; WREG=4160; NSLOT=9
HEADB=98304
TOTB=50331648

class Cfg:
    ld=""
    st=""
    stamps=False
    pkmul=True
    headmap="split"
    slow=True
cfg=Cfg()

def O(s,dt): return 64+32*s+4*dt
SB=[16,24]; PB=[32,36]
MN=40
vK,vV,vKl,vVl=46,47,48,49
vA,vB=50,51
vQ=52
vSt=56
vKVA,vKVB,vQA,vQB=57,58,59,60
T0,T1,T2,T3=1,2,3,4
def Qr(s,ks): return 16*s+4*ks
def Kf(par,i): return 96+32*par+4*i
def Vf(par,dt): return 160+32*par+4*dt
def Lr(s): return 224+4*s
ONES=248
sA,sB,sO,sKA,sVB,sQA,sQB=12,16,20,24,28,32,36
sOff,sInc,sCur,sC,sH,sW4,sT,sHead,sEnd,sKVw,sQw,sThr=40,41,42,43,44,45,46,47,48,49,50,51
sBad=52
sBadM,sTmp,sMask,sSt,sNC,sHn,sDbg=54,55,56,57,58,59,60
sStamp=64

def vr(a,n=4): return f"v[{a}:{a+n-1}]"
def ar(a,n=4): return f"a[{a}:{a+n-1}]"
def sr(a,n=4): return f"s[{a}:{a+n-1}]"

def dma(j, tag, slot, A=sA, B=sB, va=vA, vb=vB, off=sOff):
    srd=[A,B,A,B][j]; vo=[va,va,vb,vb][j]; imm=[0,1024,2080,3104][j]
    o=f" offset:{imm}" if imm else ""
    p=f" {cfg.ld}" if cfg.ld else ""
    return I(f"buffer_load_dwordx4 v{vo}, {sr(srd)}, s{off} offen{o}{p} lds", tag=tag, slot=slot)
def kread(par,i,tag,slot,private=False):
    kt,ks=divmod(i,4)
    return I(f"ds_read_b128 {ar(Kf(par,i))}, v{vK} offset:{kt*512+ks*64}", src=tag, slot=slot, private=private)
def vread(par,i,tag,slot,private=False):
    dt,jj=divmod(i,2)
    return I(f"ds_read_b64_tr_b16 {ar(Vf(par,dt)+2*jj,2)}, v{vV} offset:{jj*512+dt*32}", src=tag, slot=slot, private=private)
def qk_mfmas(s,kpar,sb):
    o=[]
    for i in range(8):
        kt,ks=divmod(i,4); d=SB[sb]+4*kt
        o.append(I(f"v_mfma_f32_16x16x32_bf16 {vr(d)}, {ar(Kf(kpar,i))}, {ar(Qr(s,ks))}, {'0' if ks==0 else vr(d)}"))
    return o
def pv_mfmas(s,vpar,pb,first):
    o=[]
    for dt in range(8):
        d=O(s,dt)
        o.append(I(f"v_mfma_f32_16x16x32_bf16 {vr(d)}, {ar(Vf(vpar,dt))}, {vr(PB[pb])}, {'0' if first else vr(d)}"))
    o.append(I(f"v_mfma_f32_16x16x32_bf16 {ar(Lr(s))}, {ar(ONES)}, {vr(PB[pb])}, {'0' if first else ar(Lr(s))}"))
    return o
def sm_gaps(s,sb,pb):
    S=SB[sb]; P=PB[pb]
    f=lambda e: I(f"v_fma_f32 v{S+e}, v{S+e}, s{sC}, v{MN+s}")
    x=lambda e: I(f"v_exp_f32 v{S+e}, v{S+e}")
    c=lambda e: I(f"v_cvt_pk_bf16_f32 v{P+e//2}, v{S+e}, v{S+e+1}")
    return [[f(0),f(1)],[x(0)],[x(1)],[f(2),f(3)],[x(2)],None,[x(3)],[f(4),f(5)],[x(4)],[x(5)],[f(6),f(7)],None,[x(6)],[x(7)],[c(0),c(2)],[c(4),c(6)],None]
def max_ops(s,sb):
    S=SB[sb]
    return [I(f"v_max3_f32 v{T0}, v{S}, v{S+1}, v{S+2}"), I(f"v_max3_f32 v{T1}, v{S+3}, v{S+4}, v{S+5}"),
            I(f"v_max3_f32 v{T0}, v{T0}, v{S+6}, v{S+7}"), I(f"v_max_f32 v{T0}, v{T0}, v{T1}"),
            I(f"v_mov_b32 v{T1}, v{T0}"), I("s_nop 1"), I(f"v_permlane16_swap_b32 v{T0}, v{T1}"),
            I(f"v_max_f32 v{T0}, v{T0}, v{T1}"), I(f"v_mov_b32 v{T1}, v{T0}"), I("s_nop 1"),
            I(f"v_permlane32_swap_b32 v{T0}, v{T1}"), I(f"v_max_f32 v{T0}, v{T0}, v{T1}"),
            I(f"v_mul_f32 v{MN+s}, s{sNC}, v{T0}")]

def step(u, shadow=None, free=None, do_qk=True, do_pv=True, do_sm=True, mx=False):
    shadow=shadow or {}; free=list(free or [[],[],[]])
    mf=[]
    if do_qk:
        b,s=divmod(u+1,6); mf+=qk_mfmas(s,b&1,(u+1)&1)
    else: mf+=[None]*8
    if do_pv:
        b,s=divmod(u-1,6); mf+=pv_mfmas(s,b&1,(u-1)&1,b==0)
    else: mf+=[None]*9
    g=sm_gaps(u%6,u&1,u&1) if do_sm else [([] if i not in (5,11,16) else None) for i in range(17)]
    out=[I(f"; ---- step {u}")]
    for i in range(17):
        if mf[i] is not None: out.append(mf[i])
        out+=shadow.get(i,[])
        if g[i] is None: out+=free.pop(0)
        else: out+=g[i]
    if mx: out+=max_ops((u+1)%6,(u+1)&1)
    return out

def kvslot(b): return (6+b)%9
def pair_tag(h,n):
    h+=n//18; n%=18
    return f"h{h}Q{n}" if n<6 else f"h{h}KV{n-6}"

def block(h,b,first=False,modesw=False,last=False, lbl=""):
    out=[]
    par=(b+1)&1
    tag=f"h{h}KV{b+1}"; sl=kvslot(b+1)
    rtag=pair_tag(h,15+b); rsl=kvslot(b)
    sh0={}
    if last:
        sh0[0]=[I("s_waitcnt lgkmcnt(0)")]
    elif first:
        sh0[0]=[I("s_waitcnt vmcnt(52) lgkmcnt(0)", need=tag, loose_ok=(h==0)), I(f"s_cbranch_vccnz Lskipw_b0")]
        if h==0: sh0[0].append(I("s_waitcnt vmcnt(28)", need=tag))
        else: sh0[0].append(I("s_waitcnt vmcnt(28)", skip=True))
        sh0[0].append(I("Lskipw_b0:"))
    else:
        sh0[0]=[I("s_waitcnt vmcnt(28) lgkmcnt(0)", need=tag, loose_ok=(h==1 and b==1))]
    sh0[1]=[I("s_barrier")]
    sh0[2]=[I(f"s_mov_b32 m0, s{sCur}")]
    if not last:
        sh0[3]=[I(f"s_add_u32 s{sCur}, s{sCur}, {SLOT}")]
        sh0[4]=[I(f"s_cmp_ge_u32 s{sCur}, s{sEnd}")]
        sh0[5]=[I(f"s_cselect_b32 s{sCur}, s{sW4}, s{sCur}")]
    if modesw:
        sh0[6]=[I(f"s_bitcmp1_b32 s{sMask}, s{sT}")]
        sh0[7]=[I(f"s_cbranch_scc1 Lmode")]
        if b in (3,9): sh0[7]+= [x for x in mode_handler(h,b,trace=True)]
        sh0[7].append(I("Lmode_ret:"))
    F=[]
    if not last: F.append([I(f"v_add_u32 v{vK}, s{sCur}, v{vKl}"), I(f"v_add_u32 v{vV}, s{sCur}, v{vVl}")])
    else: F.append([])
    F.append([dma(0,rtag,rsl),dma(1,rtag,rsl)])
    F.append([dma(2,rtag,rsl),dma(3,rtag,rsl)])
    if not last:
        for i in range(0,8,2): F.append([kread(par,i,tag,sl),kread(par,i+1,tag,sl)])
        for i in range(0,16,2): F.append([vread(par,i,tag,sl),vread(par,i+1,tag,sl)])
    while len(F)<18: F.append([])
    for r in range(6):
        u=6*b+1+r
        sh=dict(sh0) if r==0 else {}
        if r==1: sh[0]=[I(f"s_add_u32 s{sOff}, s{sOff}, s{sInc}")]
        if r==3 and not last: sh[16]=[]
        pre=[]
        if r==4 and not last: pre=[I("s_waitcnt lgkmcnt(10)")]
        if last and u>=72: break
        st=step(u, shadow=sh, free=F[3*r:3*r+3], mx=(first and u<=4), do_qk=(u<71))
        out+=pre+st
        if last and r>=1: out+=epilogue(r-1)
    return out

def mode_handler(h,b,trace=False):
    q=[I(f"s_mov_b32 s{sA}, s{sQA}"),I(f"s_mov_b32 s{sA+1}, s{sQA+1}"),I(f"s_mov_b32 s{sB}, s{sQB}"),I(f"s_mov_b32 s{sB+1}, s{sQB+1}"),
       I(f"s_add_u32 s{sOff}, s{sHn}, s{sQw}"), I(f"s_movk_i32 s{sInc}, 4096"),
       I(f"v_mov_b32 v{vA}, v{vQA}"), I(f"v_mov_b32 v{vB}, v{vQB}"),
       I(f"s_cmp_eq_u32 s{sHead}, 0"), I(f"s_cselect_b32 s{sA+2}, s{sA+2}, 0"), I(f"s_cselect_b32 s{sB+2}, s{sB+2}, 0"),
       I("s_branch Lmode_ret")]
    kv=[I(f"s_mov_b32 s{sA}, s{sKA}"),I(f"s_mov_b32 s{sA+1}, s{sKA+1}"),I(f"s_mov_b32 s{sB}, s{sVB}"),I(f"s_mov_b32 s{sB+1}, s{sVB+1}"),
       I(f"s_add_u32 s{sOff}, s{sHn}, s{sKVw}"), I(f"s_movk_i32 s{sInc}, 8192"),
       I(f"v_mov_b32 v{vA}, v{vKVA}"), I(f"v_mov_b32 v{vB}, v{vKVB}"),
       I("s_branch Lmode_ret")]
    hd=[I(f"s_cmp_eq_u32 s{sT}, 1"), I("s_cbranch_scc0 Lmode_kv")]
    if trace:
        r=hd+(q if b==3 else kv)
        for x in r: x.meta['dyn']=True
        return r
    return [I("Lmode:")]+hd+q+[I("Lmode_kv:")]+kv

def epilogue(s, check=True):
    o=[I(f"; ---- epilogue {s}")]
    o.append(I(f"v_accvgpr_read_b32 v{T2}, a{Lr(s)}"))
    o.append(I(f"s_add_u32 s{sSt}, s{sH}, s{sQw}"))
    o.append(I(f"v_rcp_f32 v{T1}, v{T2}"))
    if check:
        o.append(I(f"v_cmp_nge_f32 s[62:63], s{sThr}, v{T2}"))
    else: o.append(I("s_nop 0"))
    if s: o.append(I(f"s_add_u32 s{sSt}, s{sSt}, {4096*s}"))
    p=f" {cfg.st}" if cfg.st else ""
    def mul(i):
        r=[]
        for dt in (2*i,2*i+1):
            a=O(s,dt)
            if cfg.pkmul:
                r.append(I(f"v_pk_mul_f32 {vr(a,2)}, {vr(a,2)}, v[{T1}:{T1+1}] op_sel_hi:[1,0]"))
                r.append(I(f"v_pk_mul_f32 {vr(a+2,2)}, {vr(a+2,2)}, v[{T1}:{T1+1}] op_sel_hi:[1,0]"))
            else:
                for k in range(4): r.append(I(f"v_mul_f32 v{a+k}, v{a+k}, v{T1}"))
        return r
    def cvt(i):
        a=O(s,2*i)
        return [I(f"v_cvt_pk_bf16_f32 v{a+k}, v{a+2*k}, v{a+2*k+1}") for k in range(4)]
    def fin(i):
        a=O(s,2*i)
        return [I(f"v_permlane16_swap_b32 v{a}, v{a+2}"), I(f"v_permlane16_swap_b32 v{a+1}, v{a+3}"),
                I(f"buffer_store_dwordx4 {vr(a)}, v{vSt}, {sr(sO)}, s{sSt} offen offset:{64*i}{p}")]
    o+=mul(0)+cvt(0)
    if check: o.append(I(f"s_or_b64 s[{sBad}:{sBad+1}], s[{sBad}:{sBad+1}], s[62:63]"))
    for i in range(1,4):
        o+=mul(i)+fin(i-1)+cvt(i)
    o+=[I("s_nop 1")]+fin(3)
    return o

def qread(s,ks,tag,slot_imm,slot):
    off=slot_imm*SLOT
    return I(f"ds_read_b128 {ar(Qr(s,ks))}, v{vQ+ks}"+(f" offset:{off}" if off else ""), src=tag, slot=slot, private=True)

def wait2(h,n,tag,name):
    o=[I(f"s_waitcnt vmcnt({n+24})", need=tag, loose_ok=(h==0)), I(f"s_cbranch_vccnz {name}")]
    o.append(I(f"s_waitcnt vmcnt({n})", need=tag) if h==0 else I(f"s_waitcnt vmcnt({n})", skip=True))
    o.append(I(f"{name}:"))
    return o

def head_start(h):
    o=[I("; ---- head start")]
    def refill(sl):
        tag=pair_tag(h,9+sl)
        r=[I(f"s_add_u32 m0, s{sW4}, {sl*SLOT}") if sl else I(f"s_mov_b32 m0, s{sW4}"), I("s_nop 0")]
        r+=[dma(j,tag,sl) for j in range(4)]
        r.append(I(f"s_add_u32 s{sOff}, s{sOff}, s{sInc}"))
        return r
    for s in range(6):
        o+=wait2(h, 32 if s==0 else 28, f"h{h}Q{s}", f"Lskipw_q{s}")
        if s==4: o+=[I(f"v_add_u32 v{vQ+k}, {4*SLOT}, v{vQ+k}") for k in range(4)]
        o+=[qread(s,ks,f"h{h}Q{s}",s%4,s) for ks in range(4)]
        if s>=1:
            o.append(I("s_waitcnt lgkmcnt(4)"))
            o+=refill(s-1)
    o+=[I(f"v_subrev_u32 v{vQ+k}, {4*SLOT}, v{vQ+k}") for k in range(4)]
    o.append(I(f"s_add_u32 s{sCur}, s{sW4}, {6*SLOT}"))
    o+=[I(f"v_add_u32 v{vK}, s{sCur}, v{vKl}"), I(f"v_add_u32 v{vV}, s{sCur}, v{vVl}")]
    o+=wait2(h,28,f"h{h}KV0","Lskipw_kv0")
    o.append(I("s_barrier"))
    o+=[kread(0,i,f"h{h}KV0",6) for i in range(8)]
    o.append(I("s_waitcnt lgkmcnt(8)"))
    o+=refill(5)
    o.append(I("s_waitcnt lgkmcnt(0)"))
    q=qk_mfmas(0,0,0)
    for i in range(8):
        o.append(q[i]); o+=[vread(0,2*i,f"h{h}KV0",6),vread(0,2*i+1,f"h{h}KV0",6)]
    o.append(I("s_nop 5"))
    o+=max_ops(0,0)
    o+=step(0, do_pv=False, mx=False)
    o+=max_ops(1,1)
    return o

def stamp(k):
    if not cfg.stamps: return []
    return [I(f"s_memtime s[{sStamp+2*k}:{sStamp+2*k+1}]", nocheck=True)]

def prologue():
    o=[]
    A=lambda t,**k: o.append(I(t,**k))
    A("s_cmp_ge_u32 s2, 256"); A("s_cbranch_scc1 Lend")
    A("s_load_dwordx4 s[4:7], s[0:1], 0"); A("s_load_dwordx4 s[8:11], s[0:1], 16")
    if cfg.stamps:
        A(f"s_load_dwordx2 s[{sDbg}:{sDbg+1}], s[0:1], 32")
        A(f"s_memtime s[{sStamp}:{sStamp+1}]"); A(f"s_memrealtime s[{sStamp+2}:{sStamp+3}]")
    A("v_lshrrev_b32 v1, 6, v0"); A("v_and_b32 v0, 63, v0"); A("v_readfirstlane_b32 s3, v1")
    A(f"v_lshlrev_b32 v{vKVB}, 4, v0")
    A(f"v_lshrrev_b32 v2, 4, v0")
    A(f"v_lshlrev_b32 v3, 6, v2")
    A(f"v_xor_b32 v{vQB}, v{vKVB}, v3")
    A(f"v_add_u32 v{vQA}, 1056, v{vQB}")
    A(f"v_add_u32 v{vKVA}, 1056, v{vKVB}")
    A(f"s_mul_i32 s{sW4}, s3, {WREG}"); A(f"s_lshl_b32 s{sKVw}, s3, 11"); A(f"s_mul_i32 s{sQw}, s3, 24576")
    if cfg.headmap=="split":
        A(f"s_mul_i32 s{sH}, s2, {HEADB}"); A(f"s_add_u32 s{sHn}, s{sH}, {256*HEADB}")
    else:
        A(f"s_mul_i32 s{sH}, s2, {2*HEADB}"); A(f"s_add_u32 s{sHn}, s{sH}, {HEADB}")
    for r in (sA,sB,sKA,sVB,sQA,sQB):
        A(f"s_mov_b32 s{r+2}, {TOTB+4096}"); A(f"s_mov_b32 s{r+3}, 0x20000")
    A(f"s_add_u32 s{sOff}, s{sH}, s{sQw}")
    A(f"s_mov_b32 m0, s{sW4}")
    A("s_waitcnt lgkmcnt(0)")
    A(f"s_sub_u32 s{sQA}, s4, 1056"); A(f"s_subb_u32 s{sQA+1}, s5, 0")
    A(f"s_sub_u32 s{sQB}, s4, 32"); A(f"s_subb_u32 s{sQB+1}, s5, 0")
    for s in range(6):
        if s: A(f"s_add_u32 m0, s{sW4}, {s*SLOT}"); A(f"s_add_u32 s{sOff}, s{sOff}, 4096")
        o+=[dma(j,f"h0Q{s}",s,A=sQA,B=sQB,va=vQA,vb=vQB) for j in range(4)]
        if s==0:
            A(f"s_sub_u32 s{sKA}, s6, 1056"); A(f"s_subb_u32 s{sKA+1}, s7, 0")
            A(f"s_sub_u32 s{sVB}, s8, 2080"); A(f"s_subb_u32 s{sVB+1}, s9, 0")
    A(f"s_add_u32 s{sOff}, s{sH}, s{sKVw}")
    for b in range(3):
        A(f"s_add_u32 m0, s{sW4}, {(6+b)*SLOT}"); A("s_nop 0")
        o+=[dma(j,f"h0KV{b}",6+b,A=sKA,B=sVB,va=vKVA,vb=vKVB) for j in range(4)]
        A(f"s_add_u32 s{sOff}, s{sOff}, 8192")
    A(f"s_mov_b32 s{sA}, s{sKA}"); A(f"s_mov_b32 s{sA+1}, s{sKA+1}"); A(f"s_mov_b32 s{sB}, s{sVB}"); A(f"s_mov_b32 s{sB+1}, s{sVB+1}")
    A(f"s_movk_i32 s{sInc}, 8192")
    A(f"v_mov_b32 v{vA}, v{vKVA}"); A(f"v_mov_b32 v{vB}, v{vKVB}")
    A(f"s_mov_b32 s{sO}, s10"); A(f"s_mov_b32 s{sO+1}, s11"); A(f"s_mov_b32 s{sO+2}, {TOTB}"); A(f"s_mov_b32 s{sO+3}, 0x20000")
    A(f"s_mov_b32 s{sC}, 0x3e0293ee"); A(f"s_mov_b32 s{sNC}, 0xbe0293ee"); A(f"s_mov_b32 s{sThr}, 0x49800000")
    A(f"s_add_u32 s{sEnd}, s{sW4}, {NSLOT*SLOT}")
    A(f"s_mov_b32 s{sHead}, 0"); A(f"s_mov_b32 s{sMask}, 0x12"); A(f"s_mov_b32 s{sBadM}, 0")
    A("s_mov_b64 vcc, 0")
    A("v_and_b32 v3, 7, v0"); A(f"v_mul_u32_u24 v{vKl}, 2080, v3")
    A("v_bfe_u32 v3, v0, 3, 1"); A(f"v_lshl_add_u32 v{vKl}, v3, 8, v{vKl}")
    A(f"v_lshl_add_u32 v{vKl}, v2, 4, v{vKl}"); A(f"v_subrev_u32 v{vKl}, s{sW4}, v{vKl}")
    A("v_bfe_u32 v3, v0, 2, 3"); A(f"v_mul_u32_u24 v{vVl}, 2080, v3")
    A("v_lshrrev_b32 v3, 5, v0"); A(f"v_lshl_add_u32 v{vVl}, v3, 8, v{vVl}")
    A("v_and_b32 v4, 3, v0"); A(f"v_lshl_add_u32 v{vVl}, v4, 3, v{vVl}")
    A(f"v_add_u32 v{vVl}, 1024, v{vVl}"); A(f"v_subrev_u32 v{vVl}, s{sW4}, v{vVl}")
    A("v_bfe_u32 v3, v0, 2, 1"); A("v_mul_u32_u24 v5, 2080, v3")
    A("v_bfe_u32 v3, v0, 3, 1"); A("v_lshl_add_u32 v5, v3, 10, v5")
    A("v_lshl_add_u32 v5, v4, 8, v5"); A("v_lshl_add_u32 v5, v2, 4, v5"); A(f"v_add_u32 v5, s{sW4}, v5")
    for ks in range(4):
        A(f"v_xor_b32 v3, {ks}, v4"); A(f"v_lshl_add_u32 v{vQ+ks}, v3, 6, v5")
    A("v_and_b32 v3, 15, v0"); A(f"v_lshlrev_b32 v{vSt}, 8, v3")
    A("v_bfe_u32 v3, v0, 4, 1"); A(f"v_lshl_add_u32 v{vSt}, v3, 5, v{vSt}")
    A("v_lshrrev_b32 v3, 5, v0"); A(f"v_lshl_add_u32 v{vSt}, v3, 4, v{vSt}")
    A("v_mov_b32 v5, 0x3f803f80"); A("v_cmp_eq_u32 s[62:63], 0, v4"); A("s_nop 1"); A("v_cndmask_b32 v5, 0, v5, s[62:63]")
    for k in range(4): A(f"v_accvgpr_write_b32 a{ONES+k}, v5")
    return o

def tail(h):
    o=block(h,11,last=True)
    o+=step(72,do_qk=False,do_sm=False)
    o+=epilogue(4)
    o+=epilogue(5)
    return o

def slow_path():
    o=[]
    A=lambda t,**k: o.append(I(t,**k))
    sP=sCur
    A("Lslow:")
    A("s_waitcnt vmcnt(0) lgkmcnt(0)")
    A(f"s_mul_i32 s{sP}, s3, {SLOT}")
    A(f"s_add_u32 s{sTmp}, s{sP}, s{sW4}")
    A(f"v_add_u32 v{vK}, s{sTmp}, v{vKl}"); A(f"v_add_u32 v{vV}, s{sTmp}, v{vVl}")
    for k in range(4): A(f"v_add_u32 v{8+k}, s{sP}, v{vQ+k}")
    A(f"s_mov_b32 m0, s{sTmp}")
    A(f"s_add_u32 s{sOff}, s{sH}, s{sQw}")
    for s in range(6):
        o+=[dma(j,None,None,A=sQA,B=sQB,va=vQA,vb=vQB) for j in range(4)]
        A("s_waitcnt vmcnt(0)")
        for ks in range(4): A(f"ds_read_b128 {ar(Qr(s,ks))}, v{8+ks}")
        A(f"s_add_u32 s{sOff}, s{sOff}, 4096")
        A("s_waitcnt lgkmcnt(0)")
    for s in range(6): A(f"v_mov_b32 v{MN+s}, 0xff800000")
    def loadkv():
        for j in range(4):
            A(f"s_add_u32 m0, s{sP}, {j*WREG}"); A("s_nop 0")
            o.extend(dma(jj,None,None,A=sKA,B=sVB,va=vKVA,vb=vKVB) for jj in range(4))
            A(f"s_add_u32 s{sOff}, s{sOff}, 2048")
        A("s_waitcnt vmcnt(0)")
    A(f"s_mov_b32 s{sOff}, s{sH}"); A(f"s_mov_b32 s{sT}, 0")
    A("Lslow1:")
    loadkv()
    for i in range(8): o.append(I(kread(0,i,None,None).text))
    A("s_waitcnt lgkmcnt(0)")
    for s in range(6):
        o+=qk_mfmas(s,0,0)
        A("s_nop 7")
        S=SB[0]
        for e in range(0,8,2): A(f"v_max3_f32 v{MN+s}, v{MN+s}, v{S+e}, v{S+e+1}")
    A(f"s_add_u32 s{sT}, s{sT}, 1"); A(f"s_cmp_lt_u32 s{sT}, 12"); A("s_cbranch_scc1 Lslow1")
    for s in range(6):
        m=MN+s
        A(f"v_mov_b32 v{T1}, v{m}"); A("s_nop 1"); A(f"v_permlane16_swap_b32 v{m}, v{T1}"); A(f"v_max_f32 v{m}, v{m}, v{T1}")
        A(f"v_mov_b32 v{T1}, v{m}"); A("s_nop 1"); A(f"v_permlane32_swap_b32 v{m}, v{T1}"); A(f"v_max_f32 v{m}, v{m}, v{T1}")
        A(f"v_mul_f32 v{m}, s{sNC}, v{m}")
    for r in range(64,256): A(f"v_mov_b32 v{r}, 0")
    for r in range(224,248): A(f"v_accvgpr_write_b32 a{r}, 0")
    A(f"s_mov_b32 s{sOff}, s{sH}"); A(f"s_mov_b32 s{sT}, 0")
    A("Lslow2:")
    loadkv()
    for i in range(8): o.append(I(kread(0,i,None,None).text))
    A("s_waitcnt lgkmcnt(0)")
    for i in range(16):
        o.append(I(vread(0,i,None,None).text))
        if i==7: A("s_waitcnt lgkmcnt(0)")
    A("s_waitcnt lgkmcnt(0)")
    for s in range(6):
        o+=qk_mfmas(s,0,0)
        A("s_nop 7")
        for gp in sm_gaps(s,0,0):
            if gp: o+=gp
        A("s_nop 1")
        o+=pv_mfmas(s,0,0,False)
    A(f"s_add_u32 s{sT}, s{sT}, 1"); A(f"s_cmp_lt_u32 s{sT}, 12"); A("s_cbranch_scc1 Lslow2")
    A("s_nop 7")
    for s in range(6): o+=epilogue(s,check=False)
    A("s_branch Lslow_ret")
    for x in o:
        x.meta.pop('tag',None); x.meta.pop('slot',None)
    return o

def build():
    P=prologue()
    def first(h): return head_start(h)+[I(f"s_mov_b64 s[{sBad}:{sBad+1}], 0")]+block(h,0,first=True)+[I(f"s_mov_b32 s{sT}, 0")]
    def loop(h,t): return block(h,2*t+1,modesw=True)+block(h,2*t+2)+[I(f"s_add_u32 s{sT}, s{sT}, 1"),I(f"s_cmp_lt_u32 s{sT}, 5"),I("s_cbranch_scc1 Lloop")]
    def headend(h):
        return [I(f"s_cmp_lg_u64 s[{sBad}:{sBad+1}], 0"), I(f"s_cselect_b32 s{sTmp}, 1, 0"), I(f"s_lshl_b32 s{sTmp}, s{sTmp}, s{sHead}"), I(f"s_or_b32 s{sBadM}, s{sBadM}, s{sTmp}"),
                I(f"s_mov_b32 s{sTmp}, s{sH}"), I(f"s_mov_b32 s{sH}, s{sHn}"), I(f"s_mov_b32 s{sHn}, s{sTmp}"),
                I("s_mov_b64 vcc, -1"), I(f"s_add_u32 s{sHead}, s{sHead}, 1"), I(f"s_cmp_lt_u32 s{sHead}, 2"), I("s_cbranch_scc1 Lhead")]
    txt=lambda L:[x.text for x in L if not x.meta.get('dyn') and not x.text.startswith(';')]
    assert txt(first(0))==txt(first(1))
    for h in (0,1):
        for t in range(5): assert txt(loop(h,t))==txt(loop(0,0)), (h,t)
    assert txt(tail(0))==txt(tail(1))
    trace=list(P)
    for h in (0,1):
        trace+=first(h)
        for t in range(5): trace+=loop(h,t)
        trace+=tail(h)+headend(h)
    trace=[x for x in trace if not x.meta.get('skip')]
    probs=check_trace(trace)
    sp=slow_path()
    probs+=check_trace(sp+sp)
    seen=set()
    for p in probs:
        if p not in seen: print(p); seen.add(p)
    S=[]
    S+=P
    S+=[I("Lhead:")]+stamp(2)+first(0)+stamp(3)
    S+=[I(".p2align 3"),I("Lloop:")]+[x for x in loop(0,0) if not x.meta.get('dyn')]
    S+=stamp(4)+tail(0)+stamp(5)
    if cfg.stamps:
        S+=[I("s_waitcnt lgkmcnt(0)"), I(f"s_cmp_lg_u32 s{sHead}, 0"), I("s_cbranch_scc1 Lnosave")]
        S+=[I(f"s_mov_b32 s{sStamp+12+k}, s{sStamp+4+2*k}") for k in range(4)]
        S+=[I("Lnosave:")]
    S+=headend(0)
    S+=[I("s_waitcnt vmcnt(24)"), I("s_barrier")]
    if cfg.slow:
        S+=[I("Lslow_chk:"), I(f"s_cmp_eq_u32 s{sBadM}, 0"), I("s_cbranch_scc1 Lfin"),
            I(f"s_bitcmp1_b32 s{sBadM}, 0"), I("s_cbranch_scc1 Lslow"), I("Lslow_ret:"),
            I(f"s_lshr_b32 s{sBadM}, s{sBadM}, 1"), I(f"s_mov_b32 s{sH}, s{sHn}"), I("s_branch Lslow_chk")]
    S+=[I("Lfin:")]
    if cfg.stamps:
        S+=[I("s_waitcnt vmcnt(0)"), I(f"s_memtime s[{sStamp+16}:{sStamp+17}]"), I(f"s_memrealtime s[{sStamp+18}:{sStamp+19}]"), I("s_waitcnt lgkmcnt(0)")]
        vals=[f"s{sStamp+2}", f"s{sStamp+18}"]
        S+=[I(f"v_mov_b32 v8, s{sStamp+2}"), I(f"v_mov_b32 v9, s{sStamp+18}")]
        srcs=[sStamp+12,sStamp+13,sStamp+14,sStamp+15,sStamp+4,sStamp+6,sStamp+8,sStamp+10,sStamp+16]
        for k,r in enumerate(srcs):
            S+=[I(f"s_sub_u32 s{sTmp}, s{r}, s{sStamp}"), I(f"v_mov_b32 v{10+k}, s{sTmp}")]
        S+=[I("s_getreg_b32 s62, hwreg(HW_REG_XCC_ID)"), I("v_mov_b32 v19, s62")]
        S+=[I(f"s_mov_b32 s{sDbg+2}, 0x400000"), I(f"s_mov_b32 s{sDbg+3}, 0x20000"), I("s_lshl_b32 s62, s2, 8"), I("s_lshl_b32 s63, s3, 6"), ]
        S[-4:]=[]
        S+=[I(f"s_mov_b32 s24, s{sDbg}"), I(f"s_mov_b32 s25, s{sDbg+1}"), I("s_mov_b32 s26, 0x400000"), I("s_mov_b32 s27, 0x20000"),
            I("s_lshl_b32 s62, s2, 8"), I("s_lshl_b32 s63, s3, 6"), I("s_add_u32 s62, s62, s63"), I("v_mov_b32 v1, 0"),
            I("s_mov_b64 exec, 1"),
            I("buffer_store_dwordx4 v[8:11], v1, s[24:27], s62 offen"), I("buffer_store_dwordx4 v[12:15], v1, s[24:27], s62 offen offset:16"), I("buffer_store_dwordx4 v[16:19], v1, s[24:27], s62 offen offset:32")]
    S+=[I("Lend:"), I("s_endpgm")]
    S+=mode_handler(0,0)
    if cfg.slow: S+=sp
    return S, bool([p for p in probs if not p.startswith("NOTE")])

HDR="""; Kernarg layout for this problem (48 bytes, ptrs only, base s[0:1]):
;   offset   0: d_in[0] q  shape=(16, 32, 384, 128) dtype=bfloat16 strides=(3145728, 98304, 256, 2) contiguous=True
;   offset   8: d_in[1] k  shape=(16, 32, 384, 128) dtype=bfloat16 strides=(3145728, 98304, 256, 2) contiguous=True
;   offset  16: d_in[2] v  shape=(16, 32, 384, 128) dtype=bfloat16 strides=(3145728, 98304, 256, 2) contiguous=True
; @launch grid=(256,1,1) block=(256,1,1) lds=%d
.amdgcn_target "amdgcn-amd-amdhsa--gfx950"
.text
.globl %s
.p2align 8
.type %s,@function
%s:
"""
FTR=""".section .rodata,"a"
.p2align 6
.amdhsa_kernel %s
  .amdhsa_next_free_vgpr 512
  .amdhsa_next_free_sgpr 102
  .amdhsa_accum_offset 256
  .amdhsa_group_segment_fixed_size 0
  .amdhsa_kernarg_size 48
  .amdhsa_user_sgpr_count 2
  .amdhsa_user_sgpr_kernarg_segment_ptr 1
  .amdhsa_system_sgpr_workgroup_id_x 1
  .amdhsa_float_denorm_mode_32 3
.end_amdhsa_kernel
"""
def write(fn):
    S,bad=build()
    with open(fn,"w") as f:
        f.write(HDR%(NSLOT*SLOT,NAME,NAME,NAME))
        for x in S:
            t=x.text
            f.write((t if (t.endswith(':') or t.startswith('.')) else "    "+t)+"\n")
        f.write(FTR%NAME)
    return bad
if __name__=="__main__":
    ap=argparse.ArgumentParser()
    ap.add_argument("out"); ap.add_argument("opts",nargs="*")
    a=ap.parse_args()
    for kv in a.opts:
        k,v=kv.split("=",1)
        cur=getattr(cfg,k)
        setattr(cfg,k, (v in("1","True","true")) if isinstance(cur,bool) else (int(v) if isinstance(cur,int) else v.replace("+"," ")))
    bad=write(a.out)
    from mkco import build as mk
    print(mk(a.out), "PROBLEMS" if bad else "clean")
```

```python
import sys, argparse
sys.path.insert(0,'work')
from asmlib import I, check_trace
NAME="standalone__gqa_softmax__near_ridge_kernel"
SLOT=16640; WREG=4160; NSLOT=9
HEADB=98304
TOTB=50331648

class Cfg:
    ld=""
    st=""
    stamps=False
    pkmul=True
    headmap="split"
    slow=True
    dbgsz=0x400000
cfg=Cfg()

def O(s,dt): return 64+32*s+4*dt
SB=[16,24]; PB=[32,36]
MN=40
vK,vV,vKl,vVl=46,47,48,49
vA,vB=50,51
vQ=52
vSt=56
vKVA,vKVB,vQA,vQB=57,58,59,60
T0,T1,T2,T3=1,2,3,4
def Qr(s,ks): return 16*s+4*ks
def Kf(par,i): return 96+32*par+4*i
def Vf(par,dt): return 160+32*par+4*dt
def Lr(s): return 224+4*s
ONES=248
sA,sB,sO,sKA,sVB,sQA,sQB=12,16,20,24,28,32,36
sOff,sInc,sCur,sC,sH,sW4,sT,sHead,sEnd,sKVw,sQw,sThr=40,41,42,43,44,45,46,47,48,49,50,51
sBad=52
sBadM,sTmp,sMask,sSt,sNC,sHn,sDbg=54,55,56,57,58,59,60
sStamp=64

def vr(a,n=4): return f"v[{a}:{a+n-1}]"
def ar(a,n=4): return f"a[{a}:{a+n-1}]"
def sr(a,n=4): return f"s[{a}:{a+n-1}]"

def dma(j, tag, slot, A=sA, B=sB, va=vA, vb=vB, off=sOff):
    srd=[A,B,A,B][j]; vo=[va,va,vb,vb][j]; imm=[0,1024,2080,3104][j]
    o=f" offset:{imm}" if imm else ""
    p=f" {cfg.ld}" if cfg.ld else ""
    return I(f"buffer_load_dwordx4 v{vo}, {sr(srd)}, s{off} offen{o}{p} lds", tag=tag, slot=slot)
def kread(par,i,tag,slot,private=False):
    kt,ks=divmod(i,4)
    return I(f"ds_read_b128 {ar(Kf(par,i))}, v{vK} offset:{kt*512+ks*64}", src=tag, slot=slot, private=private)
def vread(par,i,tag,slot,private=False):
    dt,jj=divmod(i,2)
    return I(f"ds_read_b64_tr_b16 {ar(Vf(par,dt)+2*jj,2)}, v{vV} offset:{jj*512+dt*32}", src=tag, slot=slot, private=private)
def qk_mfmas(s,kpar,sb):
    o=[]
    for i in range(8):
        kt,ks=divmod(i,4); d=SB[sb]+4*kt
        o.append(I(f"v_mfma_f32_16x16x32_bf16 {vr(d)}, {ar(Kf(kpar,i))}, {ar(Qr(s,ks))}, {'0' if ks==0 else vr(d)}"))
    return o
def pv_mfmas(s,vpar,pb,first):
    o=[]
    for dt in range(8):
        d=O(s,dt)
        o.append(I(f"v_mfma_f32_16x16x32_bf16 {vr(d)}, {ar(Vf(vpar,dt))}, {vr(PB[pb])}, {'0' if first else vr(d)}"))
    o.append(I(f"v_mfma_f32_16x16x32_bf16 {ar(Lr(s))}, {ar(ONES)}, {vr(PB[pb])}, {'0' if first else ar(Lr(s))}"))
    return o
def sm_gaps(s,sb,pb):
    S=SB[sb]; P=PB[pb]
    f=lambda e: I(f"v_fma_f32 v{S+e}, v{S+e}, s{sC}, v{MN+s}")
    x=lambda e: I(f"v_exp_f32 v{S+e}, v{S+e}")
    c=lambda e: I(f"v_cvt_pk_bf16_f32 v{P+e//2}, v{S+e}, v{S+e+1}")
    return [[f(0),f(1)],[x(0)],[x(1)],[f(2),f(3)],[x(2)],None,[x(3)],[f(4),f(5)],[x(4)],[x(5)],[f(6),f(7)],None,[x(6)],[x(7)],[c(0),c(2)],[c(4),c(6)],None]
def max_ops(s,sb):
    S=SB[sb]
    return [I(f"v_max3_f32 v{T0}, v{S}, v{S+1}, v{S+2}"), I(f"v_max3_f32 v{T1}, v{S+3}, v{S+4}, v{S+5}"),
            I(f"v_max3_f32 v{T0}, v{T0}, v{S+6}, v{S+7}"), I(f"v_max_f32 v{T0}, v{T0}, v{T1}"),
            I(f"v_mov_b32 v{T1}, v{T0}"), I("s_nop 1"), I(f"v_permlane16_swap_b32 v{T0}, v{T1}"),
            I(f"v_max_f32 v{T0}, v{T0}, v{T1}"), I(f"v_mov_b32 v{T1}, v{T0}"), I("s_nop 1"),
            I(f"v_permlane32_swap_b32 v{T0}, v{T1}"), I(f"v_max_f32 v{T0}, v{T0}, v{T1}"),
            I(f"v_mul_f32 v{MN+s}, s{sNC}, v{T0}")]

def step(u, shadow=None, free=None, do_qk=True, do_pv=True, do_sm=True, mx=False):
    shadow=shadow or {}; free=list(free or [[],[],[]])
    mf=[]
    if do_qk:
        b,s=divmod(u+1,6); mf+=qk_mfmas(s,b&1,(u+1)&1)
    else: mf+=[None]*8
    if do_pv:
        b,s=divmod(u-1,6); mf+=pv_mfmas(s,b&1,(u-1)&1,b==0)
    else: mf+=[None]*9
    g=sm_gaps(u%6,u&1,u&1) if do_sm else [([] if i not in (5,11,16) else None) for i in range(17)]
    out=[I(f"; ---- step {u}")]
    for i in range(17):
        if mf[i] is not None: out.append(mf[i])
        out+=shadow.get(i,[])
        if g[i] is None: out+=free.pop(0)
        else: out+=g[i]
    if mx: out+=max_ops((u+1)%6,(u+1)&1)
    return out

def kvslot(b): return (6+b)%9
def pair_tag(h,n):
    h+=n//18; n%=18
    return f"h{h}Q{n}" if n<6 else f"h{h}KV{n-6}"

def block(h,b,first=False,modesw=False,last=False, lbl=""):
    out=[]
    par=(b+1)&1
    tag=f"h{h}KV{b+1}"; sl=kvslot(b+1)
    rtag=pair_tag(h,15+b); rsl=kvslot(b)
    sh0={}
    if last:
        sh0[0]=[I("s_waitcnt lgkmcnt(0)")]
    elif first:
        sh0[0]=[I("s_waitcnt vmcnt(52) lgkmcnt(0)", need=tag, loose_ok=(h==0)), I(f"s_cbranch_vccnz Lskipw_b0")]
        if h==0: sh0[0].append(I("s_waitcnt vmcnt(28)", need=tag))
        else: sh0[0].append(I("s_waitcnt vmcnt(28)", skip=True))
        sh0[0].append(I("Lskipw_b0:"))
    else:
        sh0[0]=[I("s_waitcnt vmcnt(28) lgkmcnt(0)", need=tag, loose_ok=(h==1 and b==1))]
    sh0[1]=[I("s_barrier")]
    sh0[2]=[I(f"s_mov_b32 m0, s{sCur}")]
    if not last:
        sh0[3]=[I(f"s_add_u32 s{sCur}, s{sCur}, {SLOT}")]
        sh0[4]=[I(f"s_cmp_ge_u32 s{sCur}, s{sEnd}")]
        sh0[5]=[I(f"s_cselect_b32 s{sCur}, s{sW4}, s{sCur}")]
    if modesw:
        sh0[6]=[I(f"s_bitcmp1_b32 s{sMask}, s{sT}")]
        sh0[7]=[I(f"s_cbranch_scc1 Lmode")]
        if b in (3,9): sh0[7]+= [x for x in mode_handler(h,b,trace=True)]
        sh0[7].append(I("Lmode_ret:"))
    F=[]
    if not last: F.append([I(f"v_add_u32 v{vK}, s{sCur}, v{vKl}"), I(f"v_add_u32 v{vV}, s{sCur}, v{vVl}")])
    else: F.append([])
    F.append([dma(0,rtag,rsl),dma(1,rtag,rsl)])
    F.append([dma(2,rtag,rsl),dma(3,rtag,rsl)])
    if not last:
        for i in range(0,8,2): F.append([kread(par,i,tag,sl),kread(par,i+1,tag,sl)])
        for i in range(0,16,2): F.append([vread(par,i,tag,sl),vread(par,i+1,tag,sl)])
    while len(F)<18: F.append([])
    for r in range(6):
        u=6*b+1+r
        sh=dict(sh0) if r==0 else {}
        if r==1: sh[0]=[I(f"s_add_u32 s{sOff}, s{sOff}, s{sInc}")]
        if r==3 and not last: sh[16]=[]
        pre=[]
        if r==4 and not last: pre=[I("s_waitcnt lgkmcnt(10)")]
        if last and u>=72: break
        st=step(u, shadow=sh, free=F[3*r:3*r+3], mx=(first and u<=4), do_qk=(u<71))
        out+=pre+st
        if last and r>=1: out+=epilogue(r-1)
    return out

def mode_handler(h,b,trace=False):
    q=[I(f"s_mov_b32 s{sA}, s{sQA}"),I(f"s_mov_b32 s{sA+1}, s{sQA+1}"),I(f"s_mov_b32 s{sB}, s{sQB}"),I(f"s_mov_b32 s{sB+1}, s{sQB+1}"),
       I(f"s_add_u32 s{sOff}, s{sHn}, s{sQw}"), I(f"s_movk_i32 s{sInc}, 4096"),
       I(f"v_mov_b32 v{vA}, v{vQA}"), I(f"v_mov_b32 v{vB}, v{vQB}"),
       I(f"s_cmp_eq_u32 s{sHead}, 0"), I(f"s_cselect_b32 s{sA+2}, s{sA+2}, 0"), I(f"s_cselect_b32 s{sB+2}, s{sB+2}, 0"),
       I("s_branch Lmode_ret")]
    kv=[I(f"s_mov_b32 s{sA}, s{sKA}"),I(f"s_mov_b32 s{sA+1}, s{sKA+1}"),I(f"s_mov_b32 s{sB}, s{sVB}"),I(f"s_mov_b32 s{sB+1}, s{sVB+1}"),
       I(f"s_add_u32 s{sOff}, s{sHn}, s{sKVw}"), I(f"s_movk_i32 s{sInc}, 8192"),
       I(f"v_mov_b32 v{vA}, v{vKVA}"), I(f"v_mov_b32 v{vB}, v{vKVB}"),
       I("s_branch Lmode_ret")]
    hd=[I(f"s_cmp_eq_u32 s{sT}, 1"), I("s_cbranch_scc0 Lmode_kv")]
    if trace:
        r=hd+(q if b==3 else kv)
        for x in r: x.meta['dyn']=True
        return r
    return [I("Lmode:")]+hd+q+[I("Lmode_kv:")]+kv

def epilogue(s, check=True):
    o=[I(f"; ---- epilogue {s}")]
    o.append(I(f"v_accvgpr_read_b32 v{T2}, a{Lr(s)}"))
    o.append(I(f"s_add_u32 s{sSt}, s{sH}, s{sQw}"))
    o.append(I(f"v_rcp_f32 v{T1}, v{T2}"))
    if check:
        o.append(I(f"v_cmp_nge_f32 s[62:63], s{sThr}, v{T2}"))
    else: o.append(I("s_nop 0"))
    if s: o.append(I(f"s_add_u32 s{sSt}, s{sSt}, {4096*s}"))
    p=f" {cfg.st}" if cfg.st else ""
    def mul(i):
        r=[]
        for dt in (2*i,2*i+1):
            a=O(s,dt)
            if cfg.pkmul:
                r.append(I(f"v_pk_mul_f32 {vr(a,2)}, {vr(a,2)}, v[{T1}:{T1+1}] op_sel_hi:[1,0]"))
                r.append(I(f"v_pk_mul_f32 {vr(a+2,2)}, {vr(a+2,2)}, v[{T1}:{T1+1}] op_sel_hi:[1,0]"))
            else:
                for k in range(4): r.append(I(f"v_mul_f32 v{a+k}, v{a+k}, v{T1}"))
        return r
    def cvt(i):
        a=O(s,2*i)
        return [I(f"v_cvt_pk_bf16_f32 v{a+k}, v{a+2*k}, v{a+2*k+1}") for k in range(4)]
    def fin(i):
        a=O(s,2*i)
        return [I(f"v_permlane16_swap_b32 v{a}, v{a+2}"), I(f"v_permlane16_swap_b32 v{a+1}, v{a+3}"),
                I(f"buffer_store_dwordx4 {vr(a)}, v{vSt}, {sr(sO)}, s{sSt} offen offset:{64*i}{p}")]
    o+=mul(0)+cvt(0)
    if check: o.append(I(f"s_or_b64 s[{sBad}:{sBad+1}], s[{sBad}:{sBad+1}], s[62:63]"))
    for i in range(1,4):
        o+=mul(i)+fin(i-1)+cvt(i)
    o+=[I("s_nop 1")]+fin(3)
    return o

def qread(s,ks,tag,slot_imm,slot):
    off=slot_imm*SLOT
    return I(f"ds_read_b128 {ar(Qr(s,ks))}, v{vQ+ks}"+(f" offset:{off}" if off else ""), src=tag, slot=slot, private=True)

def wait2(h,n,tag,name):
    o=[I(f"s_waitcnt vmcnt({n+24})", need=tag, loose_ok=(h==0)), I(f"s_cbranch_vccnz {name}")]
    o.append(I(f"s_waitcnt vmcnt({n})", need=tag) if h==0 else I(f"s_waitcnt vmcnt({n})", skip=True))
    o.append(I(f"{name}:"))
    return o

def head_start(h):
    o=[I("; ---- head start")]
    def refill(sl):
        tag=pair_tag(h,9+sl)
        r=[I(f"s_add_u32 m0, s{sW4}, {sl*SLOT}") if sl else I(f"s_mov_b32 m0, s{sW4}"), I("s_nop 0")]
        r+=[dma(j,tag,sl) for j in range(4)]
        r.append(I(f"s_add_u32 s{sOff}, s{sOff}, s{sInc}"))
        return r
    for s in range(6):
        o+=wait2(h, 32 if s==0 else 28, f"h{h}Q{s}", f"Lskipw_q{s}")
        if s==4: o+=[I(f"v_add_u32 v{vQ+k}, {4*SLOT}, v{vQ+k}") for k in range(4)]
        o+=[qread(s,ks,f"h{h}Q{s}",s%4,s) for ks in range(4)]
        if s>=1:
            o.append(I("s_waitcnt lgkmcnt(4)"))
            o+=refill(s-1)
    o+=[I(f"v_subrev_u32 v{vQ+k}, {4*SLOT}, v{vQ+k}") for k in range(4)]
    o.append(I(f"s_add_u32 s{sCur}, s{sW4}, {6*SLOT}"))
    o+=[I(f"v_add_u32 v{vK}, s{sCur}, v{vKl}"), I(f"v_add_u32 v{vV}, s{sCur}, v{vVl}")]
    o+=wait2(h,28,f"h{h}KV0","Lskipw_kv0")
    o.append(I("s_barrier"))
    o+=[kread(0,i,f"h{h}KV0",6) for i in range(8)]
    o.append(I("s_waitcnt lgkmcnt(8)"))
    o+=refill(5)
    o.append(I("s_waitcnt lgkmcnt(0)"))
    q=qk_mfmas(0,0,0)
    for i in range(8):
        o.append(q[i]); o+=[vread(0,2*i,f"h{h}KV0",6),vread(0,2*i+1,f"h{h}KV0",6)]
    o.append(I("s_nop 5"))
    o+=max_ops(0,0)
    o+=step(0, do_pv=False, mx=False)
    o+=max_ops(1,1)
    return o

def stamp(k):
    if not cfg.stamps: return []
    return [I(f"s_memtime s[{sStamp+2*k}:{sStamp+2*k+1}]", nocheck=True)]

def prologue():
    o=[]
    A=lambda t,**k: o.append(I(t,**k))
    A("s_cmp_ge_u32 s2, 256"); A("s_cbranch_scc1 Lend")
    A("s_load_dwordx4 s[4:7], s[0:1], 0"); A("s_load_dwordx4 s[8:11], s[0:1], 16")
    if cfg.stamps:
        A(f"s_load_dwordx2 s[{sDbg}:{sDbg+1}], s[0:1], 32")
        A(f"s_memtime s[{sStamp}:{sStamp+1}]"); A(f"s_memrealtime s[{sStamp+2}:{sStamp+3}]")
    A("v_lshrrev_b32 v1, 6, v0"); A("v_and_b32 v0, 63, v0"); A("v_readfirstlane_b32 s3, v1")
    A(f"v_lshlrev_b32 v{vKVB}, 4, v0")
    A(f"v_lshrrev_b32 v2, 4, v0")
    A(f"v_lshlrev_b32 v3, 6, v2")
    A(f"v_xor_b32 v{vQB}, v{vKVB}, v3")
    A(f"v_add_u32 v{vQA}, 1056, v{vQB}")
    A(f"v_add_u32 v{vKVA}, 1056, v{vKVB}")
    A(f"s_mul_i32 s{sW4}, s3, {WREG}"); A(f"s_lshl_b32 s{sKVw}, s3, 11"); A(f"s_mul_i32 s{sQw}, s3, 24576")
    if cfg.headmap=="split":
        A(f"s_mul_i32 s{sH}, s2, {HEADB}"); A(f"s_add_u32 s{sHn}, s{sH}, {256*HEADB}")
    else:
        A(f"s_mul_i32 s{sH}, s2, {2*HEADB}"); A(f"s_add_u32 s{sHn}, s{sH}, {HEADB}")
    for r in (sA,sB,sKA,sVB,sQA,sQB):
        A(f"s_mov_b32 s{r+2}, {TOTB+4096}"); A(f"s_mov_b32 s{r+3}, 0x20000")
    A(f"s_add_u32 s{sOff}, s{sH}, s{sQw}")
    A(f"s_mov_b32 m0, s{sW4}")
    A("s_waitcnt lgkmcnt(0)")
    A(f"s_sub_u32 s{sQA}, s4, 1056"); A(f"s_subb_u32 s{sQA+1}, s5, 0")
    A(f"s_sub_u32 s{sQB}, s4, 32"); A(f"s_subb_u32 s{sQB+1}, s5, 0")
    for s in range(6):
        if s: A(f"s_add_u32 m0, s{sW4}, {s*SLOT}"); A(f"s_add_u32 s{sOff}, s{sOff}, 4096")
        o+=[dma(j,f"h0Q{s}",s,A=sQA,B=sQB,va=vQA,vb=vQB) for j in range(4)]
        if s==0:
            A(f"s_sub_u32 s{sKA}, s6, 1056"); A(f"s_subb_u32 s{sKA+1}, s7, 0")
            A(f"s_sub_u32 s{sVB}, s8, 2080"); A(f"s_subb_u32 s{sVB+1}, s9, 0")
    A(f"s_add_u32 s{sOff}, s{sH}, s{sKVw}")
    for b in range(3):
        A(f"s_add_u32 m0, s{sW4}, {(6+b)*SLOT}"); A("s_nop 0")
        o+=[dma(j,f"h0KV{b}",6+b,A=sKA,B=sVB,va=vKVA,vb=vKVB) for j in range(4)]
        A(f"s_add_u32 s{sOff}, s{sOff}, 8192")
    A(f"s_mov_b32 s{sA}, s{sKA}"); A(f"s_mov_b32 s{sA+1}, s{sKA+1}"); A(f"s_mov_b32 s{sB}, s{sVB}"); A(f"s_mov_b32 s{sB+1}, s{sVB+1}")
    A(f"s_movk_i32 s{sInc}, 8192")
    A(f"v_mov_b32 v{vA}, v{vKVA}"); A(f"v_mov_b32 v{vB}, v{vKVB}")
    A(f"s_mov_b32 s{sO}, s10"); A(f"s_mov_b32 s{sO+1}, s11"); A(f"s_mov_b32 s{sO+2}, {TOTB}"); A(f"s_mov_b32 s{sO+3}, 0x20000")
    A(f"s_mov_b32 s{sC}, 0x3e0293ee"); A(f"s_mov_b32 s{sNC}, 0xbe0293ee"); A(f"s_mov_b32 s{sThr}, 0x49800000")
    A(f"s_add_u32 s{sEnd}, s{sW4}, {NSLOT*SLOT}")
    A(f"s_mov_b32 s{sHead}, 0"); A(f"s_mov_b32 s{sMask}, 0x12"); A(f"s_mov_b32 s{sBadM}, 0")
    A("s_mov_b64 vcc, 0")
    A("v_and_b32 v3, 7, v0"); A(f"v_mul_u32_u24 v{vKl}, 2080, v3")
    A("v_bfe_u32 v3, v0, 3, 1"); A(f"v_lshl_add_u32 v{vKl}, v3, 8, v{vKl}")
    A(f"v_lshl_add_u32 v{vKl}, v2, 4, v{vKl}"); A(f"v_subrev_u32 v{vKl}, s{sW4}, v{vKl}")
    A("v_bfe_u32 v3, v0, 2, 3"); A(f"v_mul_u32_u24 v{vVl}, 2080, v3")
    A("v_lshrrev_b32 v3, 5, v0"); A(f"v_lshl_add_u32 v{vVl}, v3, 8, v{vVl}")
    A("v_and_b32 v4, 3, v0"); A(f"v_lshl_add_u32 v{vVl}, v4, 3, v{vVl}")
    A(f"v_add_u32 v{vVl}, 1024, v{vVl}"); A(f"v_subrev_u32 v{vVl}, s{sW4}, v{vVl}")
    A("v_bfe_u32 v3, v0, 2, 1"); A("v_mul_u32_u24 v5, 2080, v3")
    A("v_bfe_u32 v3, v0, 3, 1"); A("v_lshl_add_u32 v5, v3, 10, v5")
    A("v_lshl_add_u32 v5, v4, 8, v5"); A("v_lshl_add_u32 v5, v2, 4, v5"); A(f"v_add_u32 v5, s{sW4}, v5")
    for ks in range(4):
        A(f"v_xor_b32 v3, {ks}, v4"); A(f"v_lshl_add_u32 v{vQ+ks}, v3, 6, v5")
    A("v_and_b32 v3, 15, v0"); A(f"v_lshlrev_b32 v{vSt}, 8, v3")
    A("v_bfe_u32 v3, v0, 4, 1"); A(f"v_lshl_add_u32 v{vSt}, v3, 5, v{vSt}")
    A("v_lshrrev_b32 v3, 5, v0"); A(f"v_lshl_add_u32 v{vSt}, v3, 4, v{vSt}")
    A("v_mov_b32 v5, 0x3f803f80"); A("v_cmp_eq_u32 s[62:63], 0, v4"); A("s_nop 1"); A("v_cndmask_b32 v5, 0, v5, s[62:63]")
    for k in range(4): A(f"v_accvgpr_write_b32 a{ONES+k}, v5")
    return o

def tail(h):
    o=block(h,11,last=True)
    o+=step(72,do_qk=False,do_sm=False)
    o+=epilogue(4)
    o+=epilogue(5)
    return o

def slow_path():
    o=[]
    A=lambda t,**k: o.append(I(t,**k))
    sP=sCur
    A("Lslow:")
    A("s_waitcnt vmcnt(0) lgkmcnt(0)")
    A(f"s_mul_i32 s{sP}, s3, {SLOT}")
    A(f"s_add_u32 s{sTmp}, s{sP}, s{sW4}")
    A(f"v_add_u32 v{vK}, s{sTmp}, v{vKl}"); A(f"v_add_u32 v{vV}, s{sTmp}, v{vVl}")
    for k in range(4): A(f"v_add_u32 v{8+k}, s{sP}, v{vQ+k}")
    A(f"s_mov_b32 m0, s{sTmp}")
    A(f"s_add_u32 s{sOff}, s{sH}, s{sQw}")
    for s in range(6):
        o+=[dma(j,None,None,A=sQA,B=sQB,va=vQA,vb=vQB) for j in range(4)]
        A("s_waitcnt vmcnt(0)")
        for ks in range(4): A(f"ds_read_b128 {ar(Qr(s,ks))}, v{8+ks}")
        A(f"s_add_u32 s{sOff}, s{sOff}, 4096")
        A("s_waitcnt lgkmcnt(0)")
    for s in range(6): A(f"v_mov_b32 v{MN+s}, 0xff800000")
    def loadkv():
        for j in range(4):
            A(f"s_add_u32 m0, s{sP}, {j*WREG}"); A("s_nop 0")
            o.extend(dma(jj,None,None,A=sKA,B=sVB,va=vKVA,vb=vKVB) for jj in range(4))
            A(f"s_add_u32 s{sOff}, s{sOff}, 2048")
        A("s_waitcnt vmcnt(0)")
    A(f"s_mov_b32 s{sOff}, s{sH}"); A(f"s_mov_b32 s{sT}, 0")
    A("Lslow1:")
    loadkv()
    for i in range(8): o.append(I(kread(0,i,None,None).text))
    A("s_waitcnt lgkmcnt(0)")
    for s in range(6):
        o+=qk_mfmas(s,0,0)
        A("s_nop 7")
        S=SB[0]
        for e in range(0,8,2): A(f"v_max3_f32 v{MN+s}, v{MN+s}, v{S+e}, v{S+e+1}")
    A(f"s_add_u32 s{sT}, s{sT}, 1"); A(f"s_cmp_lt_u32 s{sT}, 12"); A("s_cbranch_scc1 Lslow1")
    for s in range(6):
        m=MN+s
        A(f"v_mov_b32 v{T1}, v{m}"); A("s_nop 1"); A(f"v_permlane16_swap_b32 v{m}, v{T1}"); A(f"v_max_f32 v{m}, v{m}, v{T1}")
        A(f"v_mov_b32 v{T1}, v{m}"); A("s_nop 1"); A(f"v_permlane32_swap_b32 v{m}, v{T1}"); A(f"v_max_f32 v{m}, v{m}, v{T1}")
        A(f"v_mul_f32 v{m}, s{sNC}, v{m}")
    for r in range(64,256): A(f"v_mov_b32 v{r}, 0")
    for r in range(224,248): A(f"v_accvgpr_write_b32 a{r}, 0")
    A(f"s_mov_b32 s{sOff}, s{sH}"); A(f"s_mov_b32 s{sT}, 0")
    A("Lslow2:")
    loadkv()
    for i in range(8): o.append(I(kread(0,i,None,None).text))
    A("s_waitcnt lgkmcnt(0)")
    for i in range(16):
        o.append(I(vread(0,i,None,None).text))
        if i==7: A("s_waitcnt lgkmcnt(0)")
    A("s_waitcnt lgkmcnt(0)")
    for s in range(6):
        o+=qk_mfmas(s,0,0)
        A("s_nop 7")
        for gp in sm_gaps(s,0,0):
            if gp: o+=gp
        A("s_nop 1")
        o+=pv_mfmas(s,0,0,False)
    A(f"s_add_u32 s{sT}, s{sT}, 1"); A(f"s_cmp_lt_u32 s{sT}, 12"); A("s_cbranch_scc1 Lslow2")
    A("s_nop 7")
    for s in range(6): o+=epilogue(s,check=False)
    A("s_branch Lslow_ret")
    for x in o:
        x.meta.pop('tag',None); x.meta.pop('slot',None)
    return o

def build():
    P=prologue()
    def first(h): return head_start(h)+[I(f"s_mov_b64 s[{sBad}:{sBad+1}], 0")]+block(h,0,first=True)+[I(f"s_mov_b32 s{sT}, 0")]
    def loop(h,t): return block(h,2*t+1,modesw=True)+block(h,2*t+2)+[I(f"s_add_u32 s{sT}, s{sT}, 1"),I(f"s_cmp_lt_u32 s{sT}, 5"),I("s_cbranch_scc1 Lloop")]
    def headend(h):
        return [I(f"s_cmp_lg_u64 s[{sBad}:{sBad+1}], 0"), I(f"s_cselect_b32 s{sTmp}, 1, 0"), I(f"s_lshl_b32 s{sTmp}, s{sTmp}, s{sHead}"), I(f"s_or_b32 s{sBadM}, s{sBadM}, s{sTmp}"),
                I(f"s_mov_b32 s{sTmp}, s{sH}"), I(f"s_mov_b32 s{sH}, s{sHn}"), I(f"s_mov_b32 s{sHn}, s{sTmp}"),
                I("s_mov_b64 vcc, -1"), I(f"s_add_u32 s{sHead}, s{sHead}, 1"), I(f"s_cmp_lt_u32 s{sHead}, 2"), I("s_cbranch_scc1 Lhead")]
    txt=lambda L:[x.text for x in L if not x.meta.get('dyn') and not x.text.startswith(';')]
    assert txt(first(0))==txt(first(1))
    for h in (0,1):
        for t in range(5): assert txt(loop(h,t))==txt(loop(0,0)), (h,t)
    assert txt(tail(0))==txt(tail(1))
    trace=list(P)
    for h in (0,1):
        trace+=first(h)
        for t in range(5): trace+=loop(h,t)
        trace+=tail(h)+headend(h)
    trace=[x for x in trace if not x.meta.get('skip')]
    probs=check_trace(trace)
    sp=slow_path()
    probs+=check_trace(sp+sp)
    seen=set()
    for p in probs:
        if p not in seen: print(p); seen.add(p)
    S=[]
    S+=P
    S+=[I("Lhead:")]+stamp(2)+first(0)+stamp(3)
    S+=[I(".p2align 3"),I("Lloop:")]+[x for x in loop(0,0) if not x.meta.get('dyn')]
    S+=stamp(4)+tail(0)+stamp(5)
    if cfg.stamps:
        S+=[I("s_waitcnt lgkmcnt(0)"), I(f"s_cmp_lg_u32 s{sHead}, 0"), I("s_cbranch_scc1 Lnosave")]
        S+=[I(f"s_mov_b32 s{sStamp+12+k}, s{sStamp+4+2*k}") for k in range(4)]
        S+=[I("Lnosave:")]
    S+=headend(0)
    S+=[I("s_waitcnt vmcnt(24)"), I("s_barrier")]
    if cfg.slow:
        S+=[I("Lslow_chk:"), I(f"s_cmp_eq_u32 s{sBadM}, 0"), I("s_cbranch_scc1 Lfin"),
            I(f"s_bitcmp1_b32 s{sBadM}, 0"), I("s_cbranch_scc1 Lslow"), I("Lslow_ret:"),
            I(f"s_lshr_b32 s{sBadM}, s{sBadM}, 1"), I(f"s_mov_b32 s{sH}, s{sHn}"), I("s_branch Lslow_chk")]
    S+=[I("Lfin:")]
    if cfg.stamps:
        S+=[I("s_waitcnt vmcnt(0)"), I(f"s_memtime s[{sStamp+16}:{sStamp+17}]"), I(f"s_memrealtime s[{sStamp+18}:{sStamp+19}]"), I("s_waitcnt lgkmcnt(0)")]
        vals=[f"s{sStamp+2}", f"s{sStamp+18}"]
        S+=[I(f"v_mov_b32 v8, s{sStamp+2}"), I(f"v_mov_b32 v9, s{sStamp+18}")]
        srcs=[sStamp+12,sStamp+13,sStamp+14,sStamp+15,sStamp+4,sStamp+6,sStamp+8,sStamp+10,sStamp+16]
        for k,r in enumerate(srcs):
            S+=[I(f"s_sub_u32 s{sTmp}, s{r}, s{sStamp}"), I(f"v_mov_b32 v{10+k}, s{sTmp}")]
        S+=[I("s_getreg_b32 s62, hwreg(HW_REG_XCC_ID)"), I("v_mov_b32 v19, s62")]
        S+=[I(f"s_mov_b32 s{sDbg+2}, 0x400000"), I(f"s_mov_b32 s{sDbg+3}, 0x20000"), I("s_lshl_b32 s62, s2, 8"), I("s_lshl_b32 s63, s3, 6"), ]
        S[-4:]=[]
        S+=[I(f"s_mov_b32 s24, s{sDbg}"), I(f"s_mov_b32 s25, s{sDbg+1}"), I(f"s_mov_b32 s26, {cfg.dbgsz}"), I("s_mov_b32 s27, 0x20000"),
            I("s_lshl_b32 s62, s2, 8"), I("s_lshl_b32 s63, s3, 6"), I("s_add_u32 s62, s62, s63"), I("v_mov_b32 v1, 0"),
            I("s_mov_b64 exec, 1"),
            I("buffer_store_dwordx4 v[8:11], v1, s[24:27], s62 offen"), I("buffer_store_dwordx4 v[12:15], v1, s[24:27], s62 offen offset:16"), I("buffer_store_dwordx4 v[16:19], v1, s[24:27], s62 offen offset:32"),
            I("v_not_b32 v20, v8"), I("v_not_b32 v21, v9"),
            I("buffer_atomic_umax v9, v1, s[24:27], 0 offen offset:48"), I("buffer_atomic_umax v20, v1, s[24:27], 0 offen offset:52"),
            I("buffer_atomic_umax v8, v1, s[24:27], 0 offen offset:56"), I("buffer_atomic_umax v21, v1, s[24:27], 0 offen offset:60")]
    S+=[I("Lend:"), I("s_endpgm")]
    S+=mode_handler(0,0)
    if cfg.slow: S+=sp
    return S, bool([p for p in probs if not p.startswith("NOTE")])

HDR="""; Kernarg layout for this problem (48 bytes, ptrs only, base s[0:1]):
;   offset   0: d_in[0] q  shape=(16, 32, 384, 128) dtype=bfloat16 strides=(3145728, 98304, 256, 2) contiguous=True
;   offset   8: d_in[1] k  shape=(16, 32, 384, 128) dtype=bfloat16 strides=(3145728, 98304, 256, 2) contiguous=True
;   offset  16: d_in[2] v  shape=(16, 32, 384, 128) dtype=bfloat16 strides=(3145728, 98304, 256, 2) contiguous=True
; @launch grid=(256,1,1) block=(256,1,1) lds=%d
.amdgcn_target "amdgcn-amd-amdhsa--gfx950"
.text
.globl %s
.p2align 8
.type %s,@function
%s:
"""
FTR=""".section .rodata,"a"
.p2align 6
.amdhsa_kernel %s
  .amdhsa_next_free_vgpr 512
  .amdhsa_next_free_sgpr 102
  .amdhsa_accum_offset 256
  .amdhsa_group_segment_fixed_size 0
  .amdhsa_kernarg_size 48
  .amdhsa_user_sgpr_count 2
  .amdhsa_user_sgpr_kernarg_segment_ptr 1
  .amdhsa_system_sgpr_workgroup_id_x 1
  .amdhsa_float_denorm_mode_32 3
.end_amdhsa_kernel
"""
def write(fn):
    S,bad=build()
    with open(fn,"w") as f:
        f.write(HDR%(NSLOT*SLOT,NAME,NAME,NAME))
        for x in S:
            t=x.text
            f.write((t if (t.endswith(':') or t.startswith('.')) else "    "+t)+"\n")
        f.write(FTR%NAME)
    return bad
if __name__=="__main__":
    ap=argparse.ArgumentParser()
    ap.add_argument("out"); ap.add_argument("opts",nargs="*")
    a=ap.parse_args()
    for kv in a.opts:
        k,v=kv.split("=",1)
        cur=getattr(cfg,k)
        setattr(cfg,k, (v in("1","True","true")) if isinstance(cur,bool) else (int(v) if isinstance(cur,int) else v.replace("+"," ")))
    bad=write(a.out)
    from mkco import build as mk
    print(mk(a.out), "PROBLEMS" if bad else "clean")
```

```python
import sys, argparse
sys.path.insert(0,'work')
from asmlib import I, check_trace
NAME="standalone__gqa_softmax__near_ridge_kernel"
SLOT=16640; WREG=4160; NSLOT=9
HEADB=98304
TOTB=50331648

class Cfg:
    ld=""
    st=""
    stamps=False
    pkmul=True
    headmap="split"
    slow=True
    dbgsz=0x400000
    echo=-1
cfg=Cfg()

def O(s,dt): return 64+32*s+4*dt
SB=[16,24]; PB=[32,36]
MN=40
vK,vV,vKl,vVl=46,47,48,49
vA,vB=50,51
vQ=52
vSt=56
vKVA,vKVB,vQA,vQB=57,58,59,60
T0,T1,T2,T3=1,2,3,4
def Qr(s,ks): return 16*s+4*ks
def Kf(par,i): return 96+32*par+4*i
def Vf(par,dt): return 160+32*par+4*dt
def Lr(s): return 224+4*s
ONES=248
sA,sB,sO,sKA,sVB,sQA,sQB=12,16,20,24,28,32,36
sOff,sInc,sCur,sC,sH,sW4,sT,sHead,sEnd,sKVw,sQw,sThr=40,41,42,43,44,45,46,47,48,49,50,51
sBad=52
sBadM,sTmp,sMask,sSt,sNC,sHn,sDbg=54,55,56,57,58,59,60
sStamp=64

def vr(a,n=4): return f"v[{a}:{a+n-1}]"
def ar(a,n=4): return f"a[{a}:{a+n-1}]"
def sr(a,n=4): return f"s[{a}:{a+n-1}]"

def dma(j, tag, slot, A=sA, B=sB, va=vA, vb=vB, off=sOff):
    srd=[A,B,A,B][j]; vo=[va,va,vb,vb][j]; imm=[0,1024,2080,3104][j]
    o=f" offset:{imm}" if imm else ""
    p=f" {cfg.ld}" if cfg.ld else ""
    return I(f"buffer_load_dwordx4 v{vo}, {sr(srd)}, s{off} offen{o}{p} lds", tag=tag, slot=slot)
def kread(par,i,tag,slot,private=False):
    kt,ks=divmod(i,4)
    return I(f"ds_read_b128 {ar(Kf(par,i))}, v{vK} offset:{kt*512+ks*64}", src=tag, slot=slot, private=private)
def vread(par,i,tag,slot,private=False):
    dt,jj=divmod(i,2)
    return I(f"ds_read_b64_tr_b16 {ar(Vf(par,dt)+2*jj,2)}, v{vV} offset:{jj*512+dt*32}", src=tag, slot=slot, private=private)
def qk_mfmas(s,kpar,sb):
    o=[]
    for i in range(8):
        kt,ks=divmod(i,4); d=SB[sb]+4*kt
        o.append(I(f"v_mfma_f32_16x16x32_bf16 {vr(d)}, {ar(Kf(kpar,i))}, {ar(Qr(s,ks))}, {'0' if ks==0 else vr(d)}"))
    return o
def pv_mfmas(s,vpar,pb,first):
    o=[]
    for dt in range(8):
        d=O(s,dt)
        o.append(I(f"v_mfma_f32_16x16x32_bf16 {vr(d)}, {ar(Vf(vpar,dt))}, {vr(PB[pb])}, {'0' if first else vr(d)}"))
    o.append(I(f"v_mfma_f32_16x16x32_bf16 {ar(Lr(s))}, {ar(ONES)}, {vr(PB[pb])}, {'0' if first else ar(Lr(s))}"))
    return o
def sm_gaps(s,sb,pb):
    S=SB[sb]; P=PB[pb]
    f=lambda e: I(f"v_fma_f32 v{S+e}, v{S+e}, s{sC}, v{MN+s}")
    x=lambda e: I(f"v_exp_f32 v{S+e}, v{S+e}")
    c=lambda e: I(f"v_cvt_pk_bf16_f32 v{P+e//2}, v{S+e}, v{S+e+1}")
    return [[f(0),f(1)],[x(0)],[x(1)],[f(2),f(3)],[x(2)],None,[x(3)],[f(4),f(5)],[x(4)],[x(5)],[f(6),f(7)],None,[x(6)],[x(7)],[c(0),c(2)],[c(4),c(6)],None]
def max_ops(s,sb):
    S=SB[sb]
    return [I(f"v_max3_f32 v{T0}, v{S}, v{S+1}, v{S+2}"), I(f"v_max3_f32 v{T1}, v{S+3}, v{S+4}, v{S+5}"),
            I(f"v_max3_f32 v{T0}, v{T0}, v{S+6}, v{S+7}"), I(f"v_max_f32 v{T0}, v{T0}, v{T1}"),
            I(f"v_mov_b32 v{T1}, v{T0}"), I("s_nop 1"), I(f"v_permlane16_swap_b32 v{T0}, v{T1}"),
            I(f"v_max_f32 v{T0}, v{T0}, v{T1}"), I(f"v_mov_b32 v{T1}, v{T0}"), I("s_nop 1"),
            I(f"v_permlane32_swap_b32 v{T0}, v{T1}"), I(f"v_max_f32 v{T0}, v{T0}, v{T1}"),
            I(f"v_mul_f32 v{MN+s}, s{sNC}, v{T0}")]

def step(u, shadow=None, free=None, do_qk=True, do_pv=True, do_sm=True, mx=False):
    shadow=shadow or {}; free=list(free or [[],[],[]])
    mf=[]
    if do_qk:
        b,s=divmod(u+1,6); mf+=qk_mfmas(s,b&1,(u+1)&1)
    else: mf+=[None]*8
    if do_pv:
        b,s=divmod(u-1,6); mf+=pv_mfmas(s,b&1,(u-1)&1,b==0)
    else: mf+=[None]*9
    g=sm_gaps(u%6,u&1,u&1) if do_sm else [([] if i not in (5,11,16) else None) for i in range(17)]
    out=[I(f"; ---- step {u}")]
    for i in range(17):
        if mf[i] is not None: out.append(mf[i])
        out+=shadow.get(i,[])
        if g[i] is None: out+=free.pop(0)
        else: out+=g[i]
    if mx: out+=max_ops((u+1)%6,(u+1)&1)
    return out

def kvslot(b): return (6+b)%9
def pair_tag(h,n):
    h+=n//18; n%=18
    return f"h{h}Q{n}" if n<6 else f"h{h}KV{n-6}"

def block(h,b,first=False,modesw=False,last=False, lbl=""):
    out=[]
    par=(b+1)&1
    tag=f"h{h}KV{b+1}"; sl=kvslot(b+1)
    rtag=pair_tag(h,15+b); rsl=kvslot(b)
    sh0={}
    if last:
        sh0[0]=[I("s_waitcnt lgkmcnt(0)")]
    elif first:
        sh0[0]=[I("s_waitcnt vmcnt(52) lgkmcnt(0)", need=tag, loose_ok=(h==0)), I(f"s_cbranch_vccnz Lskipw_b0")]
        if h==0: sh0[0].append(I("s_waitcnt vmcnt(28)", need=tag))
        else: sh0[0].append(I("s_waitcnt vmcnt(28)", skip=True))
        sh0[0].append(I("Lskipw_b0:"))
    else:
        sh0[0]=[I("s_waitcnt vmcnt(28) lgkmcnt(0)", need=tag, loose_ok=(h==1 and b==1))]
    sh0[1]=[I("s_barrier")]
    sh0[2]=[I(f"s_mov_b32 m0, s{sCur}")]
    if not last:
        sh0[3]=[I(f"s_add_u32 s{sCur}, s{sCur}, {SLOT}")]
        sh0[4]=[I(f"s_cmp_ge_u32 s{sCur}, s{sEnd}")]
        sh0[5]=[I(f"s_cselect_b32 s{sCur}, s{sW4}, s{sCur}")]
    if modesw:
        sh0[6]=[I(f"s_bitcmp1_b32 s{sMask}, s{sT}")]
        sh0[7]=[I(f"s_cbranch_scc1 Lmode")]
        if b in (3,9): sh0[7]+= [x for x in mode_handler(h,b,trace=True)]
        sh0[7].append(I("Lmode_ret:"))
    F=[]
    if not last: F.append([I(f"v_add_u32 v{vK}, s{sCur}, v{vKl}"), I(f"v_add_u32 v{vV}, s{sCur}, v{vVl}")])
    else: F.append([])
    F.append([dma(0,rtag,rsl),dma(1,rtag,rsl)])
    F.append([dma(2,rtag,rsl),dma(3,rtag,rsl)])
    if not last:
        for i in range(0,8,2): F.append([kread(par,i,tag,sl),kread(par,i+1,tag,sl)])
        for i in range(0,16,2): F.append([vread(par,i,tag,sl),vread(par,i+1,tag,sl)])
    while len(F)<18: F.append([])
    for r in range(6):
        u=6*b+1+r
        sh=dict(sh0) if r==0 else {}
        if r==1: sh[0]=[I(f"s_add_u32 s{sOff}, s{sOff}, s{sInc}")]
        if r==3 and not last: sh[16]=[]
        pre=[]
        if r==4 and not last: pre=[I("s_waitcnt lgkmcnt(10)")]
        if last and u>=72: break
        st=step(u, shadow=sh, free=F[3*r:3*r+3], mx=(first and u<=4), do_qk=(u<71))
        out+=pre+st
        if last and r>=1: out+=epilogue(r-1)
    return out

def mode_handler(h,b,trace=False):
    q=[I(f"s_mov_b32 s{sA}, s{sQA}"),I(f"s_mov_b32 s{sA+1}, s{sQA+1}"),I(f"s_mov_b32 s{sB}, s{sQB}"),I(f"s_mov_b32 s{sB+1}, s{sQB+1}"),
       I(f"s_add_u32 s{sOff}, s{sHn}, s{sQw}"), I(f"s_movk_i32 s{sInc}, 4096"),
       I(f"v_mov_b32 v{vA}, v{vQA}"), I(f"v_mov_b32 v{vB}, v{vQB}"),
       I(f"s_cmp_eq_u32 s{sHead}, 0"), I(f"s_cselect_b32 s{sA+2}, s{sA+2}, 0"), I(f"s_cselect_b32 s{sB+2}, s{sB+2}, 0"),
       I("s_branch Lmode_ret")]
    kv=[I(f"s_mov_b32 s{sA}, s{sKA}"),I(f"s_mov_b32 s{sA+1}, s{sKA+1}"),I(f"s_mov_b32 s{sB}, s{sVB}"),I(f"s_mov_b32 s{sB+1}, s{sVB+1}"),
       I(f"s_add_u32 s{sOff}, s{sHn}, s{sKVw}"), I(f"s_movk_i32 s{sInc}, 8192"),
       I(f"v_mov_b32 v{vA}, v{vKVA}"), I(f"v_mov_b32 v{vB}, v{vKVB}"),
       I("s_branch Lmode_ret")]
    hd=[I(f"s_cmp_eq_u32 s{sT}, 1"), I("s_cbranch_scc0 Lmode_kv")]
    if trace:
        r=hd+(q if b==3 else kv)
        for x in r: x.meta['dyn']=True
        return r
    return [I("Lmode:")]+hd+q+[I("Lmode_kv:")]+kv

def epilogue(s, check=True):
    o=[I(f"; ---- epilogue {s}")]
    o.append(I(f"v_accvgpr_read_b32 v{T2}, a{Lr(s)}"))
    o.append(I(f"s_add_u32 s{sSt}, s{sH}, s{sQw}"))
    o.append(I(f"v_rcp_f32 v{T1}, v{T2}"))
    if check:
        o.append(I(f"v_cmp_nge_f32 s[62:63], s{sThr}, v{T2}"))
    else: o.append(I("s_nop 0"))
    if s: o.append(I(f"s_add_u32 s{sSt}, s{sSt}, {4096*s}"))
    p=f" {cfg.st}" if cfg.st else ""
    def mul(i):
        r=[]
        for dt in (2*i,2*i+1):
            a=O(s,dt)
            if cfg.pkmul:
                r.append(I(f"v_pk_mul_f32 {vr(a,2)}, {vr(a,2)}, v[{T1}:{T1+1}] op_sel_hi:[1,0]"))
                r.append(I(f"v_pk_mul_f32 {vr(a+2,2)}, {vr(a+2,2)}, v[{T1}:{T1+1}] op_sel_hi:[1,0]"))
            else:
                for k in range(4): r.append(I(f"v_mul_f32 v{a+k}, v{a+k}, v{T1}"))
        return r
    def cvt(i):
        a=O(s,2*i)
        return [I(f"v_cvt_pk_bf16_f32 v{a+k}, v{a+2*k}, v{a+2*k+1}") for k in range(4)]
    def fin(i):
        a=O(s,2*i)
        return [I(f"v_permlane16_swap_b32 v{a}, v{a+2}"), I(f"v_permlane16_swap_b32 v{a+1}, v{a+3}"),
                I(f"buffer_store_dwordx4 {vr(a)}, v{vSt}, {sr(sO)}, s{sSt} offen offset:{64*i}{p}")]
    o+=mul(0)+cvt(0)
    if check: o.append(I(f"s_or_b64 s[{sBad}:{sBad+1}], s[{sBad}:{sBad+1}], s[62:63]"))
    for i in range(1,4):
        o+=mul(i)+fin(i-1)+cvt(i)
    o+=[I("s_nop 1")]+fin(3)
    return o

def qread(s,ks,tag,slot_imm,slot):
    off=slot_imm*SLOT
    return I(f"ds_read_b128 {ar(Qr(s,ks))}, v{vQ+ks}"+(f" offset:{off}" if off else ""), src=tag, slot=slot, private=True)

def wait2(h,n,tag,name):
    o=[I(f"s_waitcnt vmcnt({n+24})", need=tag, loose_ok=(h==0)), I(f"s_cbranch_vccnz {name}")]
    o.append(I(f"s_waitcnt vmcnt({n})", need=tag) if h==0 else I(f"s_waitcnt vmcnt({n})", skip=True))
    o.append(I(f"{name}:"))
    return o

def head_start(h):
    o=[I("; ---- head start")]
    def refill(sl):
        tag=pair_tag(h,9+sl)
        r=[I(f"s_add_u32 m0, s{sW4}, {sl*SLOT}") if sl else I(f"s_mov_b32 m0, s{sW4}"), I("s_nop 0")]
        r+=[dma(j,tag,sl) for j in range(4)]
        r.append(I(f"s_add_u32 s{sOff}, s{sOff}, s{sInc}"))
        return r
    for s in range(6):
        o+=wait2(h, 32 if s==0 else 28, f"h{h}Q{s}", f"Lskipw_q{s}")
        if s==4: o+=[I(f"v_add_u32 v{vQ+k}, {4*SLOT}, v{vQ+k}") for k in range(4)]
        o+=[qread(s,ks,f"h{h}Q{s}",s%4,s) for ks in range(4)]
        if s>=1:
            o.append(I("s_waitcnt lgkmcnt(4)"))
            o+=refill(s-1)
    o+=[I(f"v_subrev_u32 v{vQ+k}, {4*SLOT}, v{vQ+k}") for k in range(4)]
    o.append(I(f"s_add_u32 s{sCur}, s{sW4}, {6*SLOT}"))
    o+=[I(f"v_add_u32 v{vK}, s{sCur}, v{vKl}"), I(f"v_add_u32 v{vV}, s{sCur}, v{vVl}")]
    o+=wait2(h,28,f"h{h}KV0","Lskipw_kv0")
    o.append(I("s_barrier"))
    o+=[kread(0,i,f"h{h}KV0",6) for i in range(8)]
    o.append(I("s_waitcnt lgkmcnt(8)"))
    o+=refill(5)
    o.append(I("s_waitcnt lgkmcnt(0)"))
    q=qk_mfmas(0,0,0)
    for i in range(8):
        o.append(q[i]); o+=[vread(0,2*i,f"h{h}KV0",6),vread(0,2*i+1,f"h{h}KV0",6)]
    o.append(I("s_nop 5"))
    o+=max_ops(0,0)
    o+=step(0, do_pv=False, mx=False)
    o+=max_ops(1,1)
    return o

def stamp(k):
    if not cfg.stamps: return []
    op="s_memrealtime" if cfg.echo>=0 else "s_memtime"
    return [I(f"{op} s[{sStamp+2*k}:{sStamp+2*k+1}]", nocheck=True)]

def prologue():
    o=[]
    A=lambda t,**k: o.append(I(t,**k))
    A("s_cmp_ge_u32 s2, 256"); A("s_cbranch_scc1 Lend")
    A("s_load_dwordx4 s[4:7], s[0:1], 0"); A("s_load_dwordx4 s[8:11], s[0:1], 16")
    if cfg.stamps:
        A(f"s_load_dwordx2 s[{sDbg}:{sDbg+1}], s[0:1], 32")
        A(f"s_memtime s[{sStamp}:{sStamp+1}]"); A(f"s_memrealtime s[{sStamp+2}:{sStamp+3}]")
    A("v_lshrrev_b32 v1, 6, v0"); A("v_and_b32 v0, 63, v0"); A("v_readfirstlane_b32 s3, v1")
    A(f"v_lshlrev_b32 v{vKVB}, 4, v0")
    A(f"v_lshrrev_b32 v2, 4, v0")
    A(f"v_lshlrev_b32 v3, 6, v2")
    A(f"v_xor_b32 v{vQB}, v{vKVB}, v3")
    A(f"v_add_u32 v{vQA}, 1056, v{vQB}")
    A(f"v_add_u32 v{vKVA}, 1056, v{vKVB}")
    A(f"s_mul_i32 s{sW4}, s3, {WREG}"); A(f"s_lshl_b32 s{sKVw}, s3, 11"); A(f"s_mul_i32 s{sQw}, s3, 24576")
    if cfg.headmap=="split":
        A(f"s_mul_i32 s{sH}, s2, {HEADB}"); A(f"s_add_u32 s{sHn}, s{sH}, {256*HEADB}")
    else:
        A(f"s_mul_i32 s{sH}, s2, {2*HEADB}"); A(f"s_add_u32 s{sHn}, s{sH}, {HEADB}")
    for r in (sA,sB,sKA,sVB,sQA,sQB):
        A(f"s_mov_b32 s{r+2}, {TOTB+4096}"); A(f"s_mov_b32 s{r+3}, 0x20000")
    A(f"s_add_u32 s{sOff}, s{sH}, s{sQw}")
    A(f"s_mov_b32 m0, s{sW4}")
    A("s_waitcnt lgkmcnt(0)")
    A(f"s_sub_u32 s{sQA}, s4, 1056"); A(f"s_subb_u32 s{sQA+1}, s5, 0")
    A(f"s_sub_u32 s{sQB}, s4, 32"); A(f"s_subb_u32 s{sQB+1}, s5, 0")
    for s in range(6):
        if s: A(f"s_add_u32 m0, s{sW4}, {s*SLOT}"); A(f"s_add_u32 s{sOff}, s{sOff}, 4096")
        o+=[dma(j,f"h0Q{s}",s,A=sQA,B=sQB,va=vQA,vb=vQB) for j in range(4)]
        if s==0:
            A(f"s_sub_u32 s{sKA}, s6, 1056"); A(f"s_subb_u32 s{sKA+1}, s7, 0")
            A(f"s_sub_u32 s{sVB}, s8, 2080"); A(f"s_subb_u32 s{sVB+1}, s9, 0")
    A(f"s_add_u32 s{sOff}, s{sH}, s{sKVw}")
    for b in range(3):
        A(f"s_add_u32 m0, s{sW4}, {(6+b)*SLOT}"); A("s_nop 0")
        o+=[dma(j,f"h0KV{b}",6+b,A=sKA,B=sVB,va=vKVA,vb=vKVB) for j in range(4)]
        A(f"s_add_u32 s{sOff}, s{sOff}, 8192")
    A(f"s_mov_b32 s{sA}, s{sKA}"); A(f"s_mov_b32 s{sA+1}, s{sKA+1}"); A(f"s_mov_b32 s{sB}, s{sVB}"); A(f"s_mov_b32 s{sB+1}, s{sVB+1}")
    A(f"s_movk_i32 s{sInc}, 8192")
    A(f"v_mov_b32 v{vA}, v{vKVA}"); A(f"v_mov_b32 v{vB}, v{vKVB}")
    A(f"s_mov_b32 s{sO}, s10"); A(f"s_mov_b32 s{sO+1}, s11"); A(f"s_mov_b32 s{sO+2}, {TOTB}"); A(f"s_mov_b32 s{sO+3}, 0x20000")
    A(f"s_mov_b32 s{sC}, 0x3e0293ee"); A(f"s_mov_b32 s{sNC}, 0xbe0293ee"); A(f"s_mov_b32 s{sThr}, 0x49800000")
    A(f"s_add_u32 s{sEnd}, s{sW4}, {NSLOT*SLOT}")
    A(f"s_mov_b32 s{sHead}, 0"); A(f"s_mov_b32 s{sMask}, 0x12"); A(f"s_mov_b32 s{sBadM}, 0")
    A("s_mov_b64 vcc, 0")
    A("v_and_b32 v3, 7, v0"); A(f"v_mul_u32_u24 v{vKl}, 2080, v3")
    A("v_bfe_u32 v3, v0, 3, 1"); A(f"v_lshl_add_u32 v{vKl}, v3, 8, v{vKl}")
    A(f"v_lshl_add_u32 v{vKl}, v2, 4, v{vKl}"); A(f"v_subrev_u32 v{vKl}, s{sW4}, v{vKl}")
    A("v_bfe_u32 v3, v0, 2, 3"); A(f"v_mul_u32_u24 v{vVl}, 2080, v3")
    A("v_lshrrev_b32 v3, 5, v0"); A(f"v_lshl_add_u32 v{vVl}, v3, 8, v{vVl}")
    A("v_and_b32 v4, 3, v0"); A(f"v_lshl_add_u32 v{vVl}, v4, 3, v{vVl}")
    A(f"v_add_u32 v{vVl}, 1024, v{vVl}"); A(f"v_subrev_u32 v{vVl}, s{sW4}, v{vVl}")
    A("v_bfe_u32 v3, v0, 2, 1"); A("v_mul_u32_u24 v5, 2080, v3")
    A("v_bfe_u32 v3, v0, 3, 1"); A("v_lshl_add_u32 v5, v3, 10, v5")
    A("v_lshl_add_u32 v5, v4, 8, v5"); A("v_lshl_add_u32 v5, v2, 4, v5"); A(f"v_add_u32 v5, s{sW4}, v5")
    for ks in range(4):
        A(f"v_xor_b32 v3, {ks}, v4"); A(f"v_lshl_add_u32 v{vQ+ks}, v3, 6, v5")
    A("v_and_b32 v3, 15, v0"); A(f"v_lshlrev_b32 v{vSt}, 8, v3")
    A("v_bfe_u32 v3, v0, 4, 1"); A(f"v_lshl_add_u32 v{vSt}, v3, 5, v{vSt}")
    A("v_lshrrev_b32 v3, 5, v0"); A(f"v_lshl_add_u32 v{vSt}, v3, 4, v{vSt}")
    A("v_mov_b32 v5, 0x3f803f80"); A("v_cmp_eq_u32 s[62:63], 0, v4"); A("s_nop 1"); A("v_cndmask_b32 v5, 0, v5, s[62:63]")
    for k in range(4): A(f"v_accvgpr_write_b32 a{ONES+k}, v5")
    return o

def tail(h):
    o=block(h,11,last=True)
    o+=step(72,do_qk=False,do_sm=False)
    o+=epilogue(4)
    o+=epilogue(5)
    return o

def slow_path():
    o=[]
    A=lambda t,**k: o.append(I(t,**k))
    sP=sCur
    A("Lslow:")
    A("s_waitcnt vmcnt(0) lgkmcnt(0)")
    A(f"s_mul_i32 s{sP}, s3, {SLOT}")
    A(f"s_add_u32 s{sTmp}, s{sP}, s{sW4}")
    A(f"v_add_u32 v{vK}, s{sTmp}, v{vKl}"); A(f"v_add_u32 v{vV}, s{sTmp}, v{vVl}")
    for k in range(4): A(f"v_add_u32 v{8+k}, s{sP}, v{vQ+k}")
    A(f"s_mov_b32 m0, s{sTmp}")
    A(f"s_add_u32 s{sOff}, s{sH}, s{sQw}")
    for s in range(6):
        o+=[dma(j,None,None,A=sQA,B=sQB,va=vQA,vb=vQB) for j in range(4)]
        A("s_waitcnt vmcnt(0)")
        for ks in range(4): A(f"ds_read_b128 {ar(Qr(s,ks))}, v{8+ks}")
        A(f"s_add_u32 s{sOff}, s{sOff}, 4096")
        A("s_waitcnt lgkmcnt(0)")
    for s in range(6): A(f"v_mov_b32 v{MN+s}, 0xff800000")
    def loadkv():
        for j in range(4):
            A(f"s_add_u32 m0, s{sP}, {j*WREG}"); A("s_nop 0")
            o.extend(dma(jj,None,None,A=sKA,B=sVB,va=vKVA,vb=vKVB) for jj in range(4))
            A(f"s_add_u32 s{sOff}, s{sOff}, 2048")
        A("s_waitcnt vmcnt(0)")
    A(f"s_mov_b32 s{sOff}, s{sH}"); A(f"s_mov_b32 s{sT}, 0")
    A("Lslow1:")
    loadkv()
    for i in range(8): o.append(I(kread(0,i,None,None).text))
    A("s_waitcnt lgkmcnt(0)")
    for s in range(6):
        o+=qk_mfmas(s,0,0)
        A("s_nop 7")
        S=SB[0]
        for e in range(0,8,2): A(f"v_max3_f32 v{MN+s}, v{MN+s}, v{S+e}, v{S+e+1}")
    A(f"s_add_u32 s{sT}, s{sT}, 1"); A(f"s_cmp_lt_u32 s{sT}, 12"); A("s_cbranch_scc1 Lslow1")
    for s in range(6):
        m=MN+s
        A(f"v_mov_b32 v{T1}, v{m}"); A("s_nop 1"); A(f"v_permlane16_swap_b32 v{m}, v{T1}"); A(f"v_max_f32 v{m}, v{m}, v{T1}")
        A(f"v_mov_b32 v{T1}, v{m}"); A("s_nop 1"); A(f"v_permlane32_swap_b32 v{m}, v{T1}"); A(f"v_max_f32 v{m}, v{m}, v{T1}")
        A(f"v_mul_f32 v{m}, s{sNC}, v{m}")
    for r in range(64,256): A(f"v_mov_b32 v{r}, 0")
    for r in range(224,248): A(f"v_accvgpr_write_b32 a{r}, 0")
    A(f"s_mov_b32 s{sOff}, s{sH}"); A(f"s_mov_b32 s{sT}, 0")
    A("Lslow2:")
    loadkv()
    for i in range(8): o.append(I(kread(0,i,None,None).text))
    A("s_waitcnt lgkmcnt(0)")
    for i in range(16):
        o.append(I(vread(0,i,None,None).text))
        if i==7: A("s_waitcnt lgkmcnt(0)")
    A("s_waitcnt lgkmcnt(0)")
    for s in range(6):
        o+=qk_mfmas(s,0,0)
        A("s_nop 7")
        for gp in sm_gaps(s,0,0):
            if gp: o+=gp
        A("s_nop 1")
        o+=pv_mfmas(s,0,0,False)
    A(f"s_add_u32 s{sT}, s{sT}, 1"); A(f"s_cmp_lt_u32 s{sT}, 12"); A("s_cbranch_scc1 Lslow2")
    A("s_nop 7")
    for s in range(6): o+=epilogue(s,check=False)
    A("s_branch Lslow_ret")
    for x in o:
        x.meta.pop('tag',None); x.meta.pop('slot',None)
    return o

def build():
    P=prologue()
    def first(h): return head_start(h)+[I(f"s_mov_b64 s[{sBad}:{sBad+1}], 0")]+block(h,0,first=True)+[I(f"s_mov_b32 s{sT}, 0")]
    def loop(h,t): return block(h,2*t+1,modesw=True)+block(h,2*t+2)+[I(f"s_add_u32 s{sT}, s{sT}, 1"),I(f"s_cmp_lt_u32 s{sT}, 5"),I("s_cbranch_scc1 Lloop")]
    def headend(h):
        return [I(f"s_cmp_lg_u64 s[{sBad}:{sBad+1}], 0"), I(f"s_cselect_b32 s{sTmp}, 1, 0"), I(f"s_lshl_b32 s{sTmp}, s{sTmp}, s{sHead}"), I(f"s_or_b32 s{sBadM}, s{sBadM}, s{sTmp}"),
                I(f"s_mov_b32 s{sTmp}, s{sH}"), I(f"s_mov_b32 s{sH}, s{sHn}"), I(f"s_mov_b32 s{sHn}, s{sTmp}"),
                I("s_mov_b64 vcc, -1"), I(f"s_add_u32 s{sHead}, s{sHead}, 1"), I(f"s_cmp_lt_u32 s{sHead}, 2"), I("s_cbranch_scc1 Lhead")]
    txt=lambda L:[x.text for x in L if not x.meta.get('dyn') and not x.text.startswith(';')]
    assert txt(first(0))==txt(first(1))
    for h in (0,1):
        for t in range(5): assert txt(loop(h,t))==txt(loop(0,0)), (h,t)
    assert txt(tail(0))==txt(tail(1))
    trace=list(P)
    for h in (0,1):
        trace+=first(h)
        for t in range(5): trace+=loop(h,t)
        trace+=tail(h)+headend(h)
    trace=[x for x in trace if not x.meta.get('skip')]
    probs=check_trace(trace)
    sp=slow_path()
    probs+=check_trace(sp+sp)
    seen=set()
    for p in probs:
        if p not in seen: print(p); seen.add(p)
    S=[]
    S+=P
    S+=[I("Lhead:")]+stamp(2)+first(0)+stamp(3)
    S+=[I(".p2align 3"),I("Lloop:")]+[x for x in loop(0,0) if not x.meta.get('dyn')]
    S+=stamp(4)+tail(0)+stamp(5)
    if cfg.stamps:
        S+=[I("s_waitcnt lgkmcnt(0)"), I(f"s_cmp_lg_u32 s{sHead}, 0"), I("s_cbranch_scc1 Lnosave")]
        S+=[I(f"s_mov_b32 s{sStamp+12+k}, s{sStamp+4+2*k}") for k in range(4)]
        S+=[I("Lnosave:")]
    S+=headend(0)
    S+=[I("s_waitcnt vmcnt(24)"), I("s_barrier")]
    if cfg.slow:
        S+=[I("Lslow_chk:"), I(f"s_cmp_eq_u32 s{sBadM}, 0"), I("s_cbranch_scc1 Lfin"),
            I(f"s_bitcmp1_b32 s{sBadM}, 0"), I("s_cbranch_scc1 Lslow"), I("Lslow_ret:"),
            I(f"s_lshr_b32 s{sBadM}, s{sBadM}, 1"), I(f"s_mov_b32 s{sH}, s{sHn}"), I("s_branch Lslow_chk")]
    S+=[I("Lfin:")]
    if cfg.stamps:
        S+=[I("s_waitcnt vmcnt(0)"), I(f"s_memtime s[{sStamp+16}:{sStamp+17}]"), I(f"s_memrealtime s[{sStamp+18}:{sStamp+19}]"), I("s_waitcnt lgkmcnt(0)")]
        if cfg.echo>=0:
            esrc=[sStamp+2,sStamp+12,sStamp+13,sStamp+14,sStamp+15,sStamp+4,sStamp+6,sStamp+8,sStamp+10,sStamp+18][cfg.echo]
            S+=[I(f"s_add_u32 s62, s{esrc}, 10000"), I("Lspin:"), I("s_sleep 2"), I("s_memrealtime s[90:91]"), I("s_waitcnt lgkmcnt(0)"),
                I("s_sub_u32 s63, s90, s62"), I("s_cmp_lt_i32 s63, 0"), I("s_cbranch_scc1 Lspin")]
        vals=[f"s{sStamp+2}", f"s{sStamp+18}"]
        S+=[I(f"v_mov_b32 v8, s{sStamp+2}"), I(f"v_mov_b32 v9, s{sStamp+18}")]
        srcs=[sStamp+12,sStamp+13,sStamp+14,sStamp+15,sStamp+4,sStamp+6,sStamp+8,sStamp+10,sStamp+16]
        for k,r in enumerate(srcs):
            S+=[I(f"s_sub_u32 s{sTmp}, s{r}, s{sStamp}"), I(f"v_mov_b32 v{10+k}, s{sTmp}")]
        S+=[I("s_getreg_b32 s62, hwreg(HW_REG_XCC_ID)"), I("v_mov_b32 v19, s62")]
        S+=[I(f"s_mov_b32 s{sDbg+2}, 0x400000"), I(f"s_mov_b32 s{sDbg+3}, 0x20000"), I("s_lshl_b32 s62, s2, 8"), I("s_lshl_b32 s63, s3, 6"), ]
        S[-4:]=[]
        S+=[I(f"s_mov_b32 s24, s{sDbg}"), I(f"s_mov_b32 s25, s{sDbg+1}"), I(f"s_mov_b32 s26, {cfg.dbgsz}"), I("s_mov_b32 s27, 0x20000"),
            I("s_lshl_b32 s62, s2, 8"), I("s_lshl_b32 s63, s3, 6"), I("s_add_u32 s62, s62, s63"), I("v_mov_b32 v1, 0"),
            I("s_mov_b64 exec, 1"),
            I("buffer_store_dwordx4 v[8:11], v1, s[24:27], s62 offen"), I("buffer_store_dwordx4 v[12:15], v1, s[24:27], s62 offen offset:16"), I("buffer_store_dwordx4 v[16:19], v1, s[24:27], s62 offen offset:32"),
            ]
    S+=[I("Lend:"), I("s_endpgm")]
    S+=mode_handler(0,0)
    if cfg.slow: S+=sp
    return S, bool([p for p in probs if not p.startswith("NOTE")])

HDR="""; Kernarg layout for this problem (48 bytes, ptrs only, base s[0:1]):
;   offset   0: d_in[0] q  shape=(16, 32, 384, 128) dtype=bfloat16 strides=(3145728, 98304, 256, 2) contiguous=True
;   offset   8: d_in[1] k  shape=(16, 32, 384, 128) dtype=bfloat16 strides=(3145728, 98304, 256, 2) contiguous=True
;   offset  16: d_in[2] v  shape=(16, 32, 384, 128) dtype=bfloat16 strides=(3145728, 98304, 256, 2) contiguous=True
; @launch grid=(256,1,1) block=(256,1,1) lds=%d
.amdgcn_target "amdgcn-amd-amdhsa--gfx950"
.text
.globl %s
.p2align 8
.type %s,@function
%s:
"""
FTR=""".section .rodata,"a"
.p2align 6
.amdhsa_kernel %s
  .amdhsa_next_free_vgpr 512
  .amdhsa_next_free_sgpr 102
  .amdhsa_accum_offset 256
  .amdhsa_group_segment_fixed_size 0
  .amdhsa_kernarg_size 48
  .amdhsa_user_sgpr_count 2
  .amdhsa_user_sgpr_kernarg_segment_ptr 1
  .amdhsa_system_sgpr_workgroup_id_x 1
  .amdhsa_float_denorm_mode_32 3
.end_amdhsa_kernel
"""
def write(fn):
    S,bad=build()
    with open(fn,"w") as f:
        f.write(HDR%(NSLOT*SLOT,NAME,NAME,NAME))
        for x in S:
            t=x.text
            f.write((t if (t.endswith(':') or t.startswith('.')) else "    "+t)+"\n")
        f.write(FTR%NAME)
    return bad
if __name__=="__main__":
    ap=argparse.ArgumentParser()
    ap.add_argument("out"); ap.add_argument("opts",nargs="*")
    a=ap.parse_args()
    for kv in a.opts:
        k,v=kv.split("=",1)
        cur=getattr(cfg,k)
        setattr(cfg,k, (v in("1","True","true")) if isinstance(cur,bool) else (int(v) if isinstance(cur,int) else v.replace("+"," ")))
    bad=write(a.out)
    from mkco import build as mk
    print(mk(a.out), "PROBLEMS" if bad else "clean")
```

```python
import re
REG = re.compile(r'\b([vas])(?:\[(\d+):(\d+)\]|(\d+))')
def regs_of(tok):
    out=[]
    tok=tok.strip()
    if tok in ('vcc',): return [('s','vcc')]
    if tok=='m0': return [('s','m0')]
    if tok=='exec': return [('s','exec')]
    m=REG.fullmatch(tok.lstrip('-'))
    if not m: return out
    k=m.group(1)
    if m.group(2) is not None: return [(k,i) for i in range(int(m.group(2)),int(m.group(3))+1)]
    return [(k,int(m.group(4)))]
TRANS=('v_exp_f32','v_rcp_f32','v_log_f32','v_rsq_f32','v_sqrt_f32')
class I:
    def __init__(s, text, **meta):
        s.text=text; s.meta=meta
        t=text.split(';')[0].strip()
        s.label = t.endswith(':') or t.startswith('.') or t==''
        s.rd=[]; s.wr=[]; s.op=''; s.kind='other'
        if s.label: return
        p=t.split(None,1); s.op=p[0]
        ops=[]
        if len(p)>1:
            ops=[x.strip() for x in re.split(r',(?![^\[]*\])', p[1])]
            if ops:
                last=ops[-1].split()
                ops[-1]=last[0]; s.mods=last[1:]
        op=s.op
        R=lambda i: regs_of(ops[i]) if i<len(ops) else []
        if op.startswith('v_mfma'):
            s.kind='mfma'; s.wr=R(0); s.A=R(1); s.B=R(2); s.C=R(3); s.rd=s.A+s.B+s.C
            s.passes=4 if '16x16x32' in op else 8
        elif op.startswith('v_cmp'):
            s.kind='valu'; s.wr=R(0); s.rd=R(1)+R(2)
        elif op.startswith('v_permlane'):
            s.kind='valu'; s.wr=R(0)+R(1); s.rd=R(0)+R(1)
        elif op.startswith('v_readfirstlane') or op.startswith('v_readlane'):
            s.kind='valu'; s.wr=R(0); s.rd=R(1)+R(2)
        elif op.startswith('v_'):
            s.kind='valu'; s.wr=R(0); s.rd=sum((R(i) for i in range(1,len(ops))),[])
            if op.startswith('v_fmac') or op.startswith('v_dot2c'): s.rd+=R(0)
        elif op.startswith('ds_read'):
            s.kind='ds'; s.wr=R(0); s.rd=R(1)
        elif op.startswith('ds_write'):
            s.kind='ds'; s.rd=R(0)+R(1)
        elif op.startswith('buffer_load') or op.startswith('global_load'):
            s.kind='vmem'
            if ' lds' in t: s.rd=R(0)+R(1)+R(2)+[('s','m0')]; s.dma=True
            else: s.wr=R(0); s.rd=R(1)+R(2)+R(3)
        elif op.startswith('buffer_store') or op.startswith('global_store') or op.startswith('buffer_atomic'):
            s.kind='vmem'; s.store=True; s.rd=R(0)+R(1)+R(2)+R(3); s.data=R(0) if op.startswith('buffer') else R(1)
        elif op.startswith('s_load') or op.startswith('s_memtime') or op.startswith('s_memrealtime'):
            s.kind='smem'; s.wr=R(0); s.rd=R(1)
        elif op in ('s_waitcnt','s_barrier','s_nop','s_endpgm','s_setprio','s_sleep') or op.startswith('s_cbranch') or op=='s_branch':
            s.kind='ctl'
        elif op.startswith('s_cmp') or op.startswith('s_bitcmp'):
            s.kind='salu'; s.rd=R(0)+R(1)
        elif op.startswith('s_'):
            s.kind='salu'; s.wr=R(0); s.rd=sum((R(i) for i in range(1,len(ops))),[])
        else:
            raise ValueError("unknown instr "+text)
    def states(s):
        if s.label: return 0
        if s.op=='s_nop': return int(s.text.split()[1],0)+1
        return 1

def check_trace(tr, verbose=True):
    probs=[]
    tr=[x for x in tr if not x.label]
    pos=[]; p=0
    for x in tr:
        pos.append(p); p+=x.states()
    W=24
    for j,c in enumerate(tr):
        i=j-1
        while i>=0:
            a=tr[i]
            d=pos[j]-pos[i]-a.states()
            if d>W: break
            need=0; why=''
            aw=set(a.wr);
            def ov(x,y): return bool(set(x)&set(y))
            if a.kind=='valu':
                vw=[r for r in a.wr if r[0] in 'va']; sw=[r for r in a.wr if r[0]=='s']
                if c.kind=='mfma' and ov(vw,c.rd): need,why=2,'valu->mfma'
                if c.op.startswith('v_permlane') and ov(vw,c.rd): need,why=max(need,2),'valu->permlane'
                if (c.op.startswith('v_readfirstlane') or c.op.startswith('v_readlane')) and ov(vw,c.rd): need,why=max(need,1),'valu->readlane'
                if a.op in TRANS and c.kind=='valu' and c.op not in TRANS and ov(vw,c.rd): need,why=max(need,1),'trans->valu'
                if sw and c.kind=='vmem' and ov(sw,c.rd): need,why=max(need,5),'valu sgpr->vmem'
                if sw and c.kind=='valu' and (ov(sw,c.rd) or (('s','vcc') in sw and 'vcc' in c.text.split(',',1)[-1])): need,why=max(need,2),'valu sgpr->valu'
            if a.kind=='mfma':
                n1={4:8,8:12}[a.passes]; n2={4:6,8:10}[a.passes]; n3={4:3,8:7}[a.passes]
                if c.kind=='mfma':
                    if ov(a.wr,c.A+c.B): need,why=n1,'mfma D->A/B'
                    if ov(a.wr,c.C) and not (a.wr==c.C and a.passes==c.passes): need,why=max(need,n2),'mfma D->C overlap'
                elif c.kind=='valu':
                    if ov(a.wr,c.rd+c.wr): need,why=n1,'mfma D->valu'
                    if ov(a.C,c.wr): need,why=max(need,n3),'mfma C WAR valu'
                elif c.kind in('ds','vmem'):
                    if ov(a.wr,c.rd+c.wr): need,why=n1,'mfma D->mem'
            if a.kind=='salu' and ('s','m0') in a.wr and getattr(c,'dma',False): need,why=max(need,1),'m0->dma'
            if getattr(a,'store',False) and 'x4' in a.op and c.kind in('valu','mfma','ds','vmem') and ov(a.data,c.wr): need,why=max(need,2),'store data WAR'
            if d<need: probs.append(f"HAZARD {why}: need {need} have {d}: [{a.text}] -> [{c.text}]")
            i-=1
    lg=[]
    vm=[]
    pend={}
    landed=set();
    visible=set()
    slot_readers={}
    slot_content={}
    slot_busy={}
    for j,c in enumerate(tr):
        if c.op=='s_waitcnt':
            m=re.search(r'vmcnt\((\d+)\)',c.text)
            if m:
                n=int(m.group(1))
                if 'need' in c.meta:
                    tag=c.meta['need']
                    idx=[k for k,x in enumerate(vm) if tr[x].meta.get('tag')==tag]
                    loosest = len(vm)-1-max(idx) if idx else None
                    if verbose and loosest is not None and loosest!=n and not c.meta.get('loose_ok'): probs.append(f"NOTE wait {c.text} for {tag}: loosest N={loosest}")
                while len(vm)>n:
                    x=vm.pop(0)
                    for r in tr[x].wr:
                        if pend.get(r)==('vm',x): del pend[r]
                    tr[x].done=True
            m=re.search(r'lgkmcnt\((\d+)\)',c.text)
            if m:
                n=int(m.group(1))
                if any(tr[x].kind=='smem' for x in lg) and n!=0: probs.append("smem outstanding with counted lgkm wait: "+c.text)
                while len(lg)>n:
                    x=lg.pop(0)
                    for r in tr[x].wr:
                        if pend.get(r)==('lg',x): del pend[r]
                    tr[x].done=True
            continue
        for r in c.rd+c.wr:
            if r in pend: probs.append(f"UNWAITED {r} from [{tr[pend[r][1]].text}] used by [{c.text}]")
        if c.op=='s_barrier':
            tags={}
            for k in range(j):
                x=tr[k]
                if getattr(x,'dma',False) and 'tag' in x.meta:
                    tags.setdefault(x.meta['tag'],True)
                    if not getattr(x,'done',False): tags[x.meta['tag']]=False
            visible={t for t,ok in tags.items() if ok}
            for sl,rs in slot_readers.items():
                slot_readers[sl]=[x for x in rs if not getattr(tr[x],'done',False)]
        if c.kind=='ds' and c.meta.get('wslot') is not None:
            sl=c.meta['wslot']
            for x in slot_readers.get(sl,[]):
                if not tr[x].meta.get('private'): probs.append(f"DSWRITE into slot {sl} w/o barrier after shared read [{tr[x].text}]")
            if any(getattr(tr[k],'dma',False) and tr[k].meta.get('slot')==sl and not getattr(tr[k],'done',False) for k in range(j)): probs.append(f"DSWRITE into slot {sl} while dma pending")
            slot_content[sl]=c.meta['wtag']
        if c.kind=='ds' and 'src' in c.meta:
            tag=c.meta['src']; sl=c.meta['slot']
            if slot_content.get(sl)!=tag: probs.append(f"SLOT {sl} holds {slot_content.get(sl)} but read wants {tag}: {c.text}")
            if c.meta.get('private'):
                if any(getattr(tr[k],'dma',False) and tr[k].meta.get('tag')==tag and not getattr(tr[k],'done',False) for k in range(j)): probs.append(f"READ of {tag} before landed: {c.text}")
            else:
                if tag not in visible: probs.append(f"READ of {tag} not visible (no wait+barrier): {c.text}")
            slot_readers.setdefault(sl,[]).append(j)
        if getattr(c,'dma',False) and 'tag' in c.meta:
            sl=c.meta['slot']
            for x in slot_readers.get(sl,[]):
                if tr[x].meta.get('private'):
                    if not getattr(tr[x],'done',False): probs.append(f"DMA {c.meta['tag']} into slot {sl} while own read pending")
                else: probs.append(f"DMA {c.meta['tag']} into slot {sl} w/o barrier after read [{tr[x].text}]")
            slot_readers[sl]=[]
            slot_content[sl]=c.meta['tag']
        if c.kind in('ds','smem'):
            c.done=False
            lg.append(j)
            for r in c.wr: pend[r]=('lg',j)
        if c.kind=='vmem':
            c.done=False
            vm.append(j)
            if len(vm)>63: probs.append("vmcnt overflow >63 at "+c.text)
            for r in c.wr: pend[r]=('vm',j)
    return probs
```

```python
import sys, argparse
sys.path.insert(0,'work')
from asmlib import I, check_trace
NAME="standalone__gqa_softmax__near_ridge_kernel"
SLOT=16640; WREG=4160; NSLOT=9
LDSB=NSLOT*SLOT
HEADB=98304
TOTB=50331648

class Cfg:
    ld="nt"; st="sc1"; st2="sc1"
    stamps=False
    pkmul=True
    headmap="split"
    slow=True
    dbgsz=0x400000
    echo=-1
    place="D"
    rt=False
    cpf=True
cfg=Cfg()

def O(s,dt): return 64+32*s+4*dt
SB=[16,24]; PB=[32,36]
MN=40
vK,vV,vKl,vVl=46,47,48,49
vA,vB=50,51
vQ=52
vDr=56
vKVA,vKVB,vQA,vQB=57,58,59,60
vDl=61
T0,T1,T2,T3=1,2,3,4
DR=[8,12]
def Qr(s,ks): return 16*s+4*ks
def Kf(par,i): return 96+32*par+4*i
def Vf(par,dt): return 160+32*par+4*dt
def Lr(s): return 224+4*s
ONES=248
sA,sB,sO,sKA,sVB,sQA,sQB=12,16,20,24,28,32,36
sOff,sInc,sCur,sC,sH,sW4,sT,sPe,sEnd,sKVw,sQw,sThr=40,41,42,43,44,45,46,47,48,49,50,51
sBad=52
sBadM,sTmp,sMask,sSt,sNC,sHn,sDbg=54,55,56,57,58,59,60
sStamp=64
sPo,sXe,sXo,sBad2=92,93,94,96

def vr(a,n=4): return f"v[{a}:{a+n-1}]"
def ar(a,n=4): return f"a[{a}:{a+n-1}]"
def sr(a,n=4): return f"s[{a}:{a+n-1}]"

def pair_tag(n):
    h=n//18; n%=18
    return f"h{h}Q{n}" if n<6 else f"h{h}KV{n-6}"
UOFF=[0,1024,2080,3104]
def dma(j, tag, slot, A=sA, B=sB, va=vA, vb=vB, off=sOff):
    srd=[A,B,A,B][j]; vo=[va,va,vb,vb][j]; imm=UOFF[j]
    o=f" offset:{imm}" if imm else ""
    p=f" {cfg.ld}" if cfg.ld else ""
    return I(f"buffer_load_dwordx4 v{vo}, {sr(srd)}, s{off} offen{o}{p} lds", tag=tag, slot=slot)
def sdma(n,j): return dma(j,pair_tag(n),n%9)
def slotA(b): return (6+b)%9
def slotB(b): return [6,7,8,0][b%4]
def bdma(b,j): return dma(j,f"h1KV{b}",slotB(b))
def adv():
    return [I(f"s_add_u32 m0, m0, {SLOT}"), I(f"s_cmp_ge_u32 m0, s{sEnd}"), I(f"s_cselect_b32 m0, s{sW4}, m0"), I(f"s_add_u32 s{sOff}, s{sOff}, s{sInc}")]
def kread(par,i,tag,slot):
    kt,ks=divmod(i,4)
    return I(f"ds_read_b128 {ar(Kf(par,i))}, v{vK} offset:{kt*512+ks*64}", src=tag, slot=slot)
def vread(par,i,tag,slot):
    dt,jj=divmod(i,2)
    return I(f"ds_read_b64_tr_b16 {ar(Vf(par,dt)+2*jj,2)}, v{vV} offset:{jj*512+dt*32}", src=tag, slot=slot)
def frag_reads(h,b):
    tag=f"h{h}KV{b}"; sl=slotA(b) if h==0 else slotB(b); par=b&1
    return [kread(par,i,tag,sl) for i in range(8)]+[vread(par,i,tag,sl) for i in range(16)]
def qk_mfmas(s,kpar,sb):
    o=[]
    for i in range(8):
        kt,ks=divmod(i,4); d=SB[sb]+4*kt
        o.append(I(f"v_mfma_f32_16x16x32_bf16 {vr(d)}, {ar(Kf(kpar,i))}, {ar(Qr(s,ks))}, {'0' if ks==0 else vr(d)}"))
    return o
def pv_mfmas(s,vpar,pb,first):
    o=[]
    for dt in range(8):
        d=O(s,dt)
        o.append(I(f"v_mfma_f32_16x16x32_bf16 {vr(d)}, {ar(Vf(vpar,dt))}, {vr(PB[pb])}, {'0' if first else vr(d)}"))
    o.append(I(f"v_mfma_f32_16x16x32_bf16 {ar(Lr(s))}, {ar(ONES)}, {vr(PB[pb])}, {'0' if first else ar(Lr(s))}"))
    return o
FREE=(5,11,16)
def sm_gaps(s,sb,pb):
    S=SB[sb]; P=PB[pb]
    f=lambda e: I(f"v_fma_f32 v{S+e}, v{S+e}, s{sC}, v{MN+s}")
    x=lambda e: I(f"v_exp_f32 v{S+e}, v{S+e}")
    c=lambda e: I(f"v_cvt_pk_bf16_f32 v{P+e//2}, v{S+e}, v{S+e+1}")
    return [[f(0),f(1)],[x(0)],[x(1)],[f(2),f(3)],[x(2)],[],[x(3)],[f(4),f(5)],[x(4)],[x(5)],[f(6),f(7)],[],[x(6)],[x(7)],[c(0),c(2)],[c(4),c(6)],[]]
def max_ops(s,sb):
    S=SB[sb]
    return [I(f"v_max3_f32 v{T0}, v{S}, v{S+1}, v{S+2}"), I(f"v_max3_f32 v{T3}, v{S+3}, v{S+4}, v{S+5}"),
            I(f"v_max3_f32 v{T0}, v{T0}, v{S+6}, v{S+7}"), I(f"v_max_f32 v{T0}, v{T0}, v{T3}"),
            I(f"v_mov_b32 v{T3}, v{T0}"), I("s_nop 1"), I(f"v_permlane16_swap_b32 v{T0}, v{T3}"),
            I(f"v_max_f32 v{T0}, v{T0}, v{T3}"), I(f"v_mov_b32 v{T3}, v{T0}"), I("s_nop 1"),
            I(f"v_permlane32_swap_b32 v{T0}, v{T3}"), I(f"v_max_f32 v{T0}, v{T0}, v{T3}"),
            I(f"v_mul_f32 v{MN+s}, s{sNC}, v{T0}")]

UNITS=[(h,b,s) for h in (0,1) for b in range(12) for s in range(6)]
def unit(i): return UNITS[i] if 0<=i<len(UNITS) else None
def step(i, ex=None):
    ex=ex or {}
    q,m,p=unit(i+1),unit(i),unit(i-1)
    mf=(qk_mfmas(q[2],q[1]&1,(i+1)&1) if q else [None]*8)+(pv_mfmas(p[2],p[1]&1,(i-1)&1,p[1]==0) if p else [None]*9)
    g=sm_gaps(m[2],i&1,i&1) if m else [[] for _ in range(17)]
    out=[I(f"; ---- step {i}")]
    out+=ex.get(-1,[])
    for k in range(17):
        if mf[k] is not None: out.append(mf[k])
        out+=ex.get(k,[])
        out+=g[k]
    if q and q[1]==0: out+=max_ops(q[2],(i+1)&1)
    out+=ex.get(17,[])
    return out
def put(ex,g,items): ex.setdefault(g,[]).extend(items)

PLACE={
 "A": dict(dma=[11,5,5,5,5,5], rd=[[11,16,16],[5,11,11,16,16],[5,11,11,16,16],[5,11,11,16,16],[5,11,11,16,16],[5]]),
 "B": dict(dma=[11,5,5,5,5,5], rd=[[8,13,16],[2,8,11,13,16],[2,8,11,13,16],[2,8,11,13,16],[2,8,11,13,16],[2]]),
 "C": dict(dma=[11,5,5,5,5,5], rd=[[9,16,16],[2,11,11,16,16],[2,11,11,16,16],[2,11,11,16,16],[2,11,11,16,16],[2]]),
 "D": dict(dma=[11,5,5,5,5,5], rd=[[8,13,16],[1,8,11,16],[1,8,11,13,16],[1,8,11,16],[1,8,11,13,16],[1,8,11]]),
}
def setrd(reg): return [I(f"v_add_u32 v{vK}, s{reg}, v{vKl}"), I(f"v_add_u32 v{vV}, s{reg}, v{vVl}")]
def two_level(nl,nt,tag,lb,tight):
    return [I(f"s_waitcnt vmcnt({nl}) lgkmcnt(0)", need=tag, loose_ok=True), I(f"s_cbranch_vccz {lb}"),
            I(f"s_waitcnt vmcnt({nt})", need=tag, skip=not tight), I(f"{lb}:")]
def free_gaps(ex,lo,n,avoid=()):
    return [x for x in range(lo,17) if x not in FREE and x not in ex and x not in avoid][:n]

def blockA(b,dm,modesw=None):
    P=PLACE[cfg.place]; reads=frag_reads(0,b+1); tag=f"h0KV{b+1}"
    out=[]; nread=0; odd=b&1
    for r in range(6):
        ex={}
        if r==0:
            nl,nt=(12,8) if odd else (14,10)
            put(ex,0,two_level(nl,nt,tag,"LwA_odd" if odd else "LwA_even",b<=2))
            put(ex,1,[I("s_barrier")])
            put(ex,2,[I(f"s_add_u32 s{sCur}, s{sCur}, {SLOT}")]); put(ex,3,[I(f"s_cmp_ge_u32 s{sCur}, s{sEnd}")])
            put(ex,4,[I(f"s_cselect_b32 s{sCur}, s{sW4}, s{sCur}")]); put(ex,5,setrd(sCur))
        n,j=dm[r]; g=P['dma'][r]
        if j==0 and modesw is not None and r>0:
            put(ex,2,[I(f"s_bitcmp1_b32 s{sMask}, s{sT}")])
            it=[I("s_cbranch_scc1 Lmode")]
            if modesw in (2,4): it+=mode_handler(modesw,trace=True)
            it.append(I("Lmode_ret:"))
            put(ex,3,it)
        put(ex,g,[sdma(n,j)])
        if j==3:
            for x,i in zip(free_gaps(ex,g+1,4,P['rd'][r]),adv()): put(ex,x,[i])
        for g in P['rd'][r]:
            put(ex,g,[reads[nread]]); nread+=1
        if r==3: put(ex,16,[I(f"s_waitcnt lgkmcnt({min(15,nread-8)})")])
        if r==5 and not odd:
            put(ex,13,[I("s_mov_b64 vcc, 0")]); put(ex,14,[I(f"s_add_u32 s{sT}, s{sT}, 1")])
            put(ex,15,[I(f"s_cmp_lt_u32 s{sT}, 5")]); put(ex,16,[I("s_cbranch_scc1 LloopA")])
        out+=step(6*b+1+r,ex)
    assert nread==24
    return out
def loopA(t):
    n=11+3*t
    d=[(n+k//4,k%4) for k in range(12)]
    return blockA(2*t+1,d[:6],modesw=t)+blockA(2*t+2,d[6:])

GOFF=[0,2048,1024,3072]
def ostore(reg,j,pol,tag=None):
    p=f" {pol}" if pol else ""
    o=f" offset:{GOFF[j]}" if GOFF[j] else ""
    return I(f"buffer_store_dwordx4 {vr(reg)}, v{vQB}, {sr(sO)}, s{sSt} offen{o}{p}")
def blockB(b,t):
    P=PLACE[cfg.place]; reads=frag_reads(1,b+1); tag=f"h1KV{b+1}"
    out=[]; nread=0; odd=b&1
    rp,wp=(sPe,sPo) if odd else (sPo,sPe)
    rx=sXe if odd else sXo
    mem=[('d',0),('d',1),('s',0),('d',2),('d',3),('s',1)]
    for r in range(6):
        ex={}
        if r==0:
            if odd: put(ex,0,[I("s_waitcnt vmcnt(12) lgkmcnt(0)", need=tag, loose_ok=True)])
            else: put(ex,0,two_level(13,10,tag,"LwB_even",b==2))
            put(ex,1,[I("s_barrier")])
            put(ex,2,[I(f"s_mov_b32 m0, s{wp}")]); put(ex,3,[I(f"s_xor_b32 s{rp}, s{rp}, s{rx}")])
            put(ex,5,setrd(rp))
            if not odd:
                put(ex,6,[I(f"s_cmp_lt_u32 s{sT}, 3")]); put(ex,7,[I(f"s_cselect_b32 s{sA+2}, s{sA+2}, 0")]); put(ex,9,[I(f"s_cselect_b32 s{sB+2}, s{sB+2}, 0")])
        kind,j=mem[r]; g=P['dma'][r]
        uj=j+(0 if odd else 2)
        if kind=='d':
            put(ex,g,[bdma(b+4,j)])
            if j==3: put(ex,free_gaps(ex,g+1,1,P['rd'][r])[0],[I(f"s_add_u32 s{sOff}, s{sOff}, s{sInc}")])
        nb=nread
        for g2 in P['rd'][r]:
            put(ex,g2,[reads[nread]]); nread+=1
        if r in (1,4):
            jj=(0 if r==1 else 1)+(0 if odd else 2)
            put(ex,13 if 13 not in P['rd'][r] else 14,[I(f"ds_read_b128 {vr(DR[jj&1])}, v{vDl}"+(f" offset:{UOFF[jj]}" if UOFF[jj] else ""), src=f"O{t+1}", slot=t+1, private=True)])
            after=len([x for x in P['rd'][r] if x>14])
        if kind=='s':
            n_after=after+len([x for x in P['rd'][r] if x<g])
            put(ex,g-1,[I(f"s_waitcnt lgkmcnt({n_after})")])
            ex[g]=[ostore(DR[uj&1],uj,cfg.st)]+ex.get(g,[])
        if r==3: put(ex,16,[I(f"s_waitcnt lgkmcnt({min(15,nread-8)})")])
        if r==5 and not odd:
            put(ex,9,[I(f"s_add_u32 s{sSt}, s{sSt}, 4096")])
            put(ex,11,[I(f"v_add_u32 v{vDl}, {SLOT}, v{vDl}")])
            put(ex,13,[I("s_mov_b64 vcc, 0")]); put(ex,14,[I(f"s_add_u32 s{sT}, s{sT}, 1")])
            put(ex,15,[I(f"s_cmp_lt_u32 s{sT}, 5")]); put(ex,16,[I("s_cbranch_scc1 LloopB")])
        out+=step(72+6*b+1+r,ex)
    assert nread==24
    return out
def loopB(t): return blockB(2*t+1,t)+blockB(2*t+2,t)

def mode_handler(t,trace=False):
    q=[I(f"s_mov_b32 s{sA}, s{sQA}"),I(f"s_mov_b32 s{sA+1}, s{sQA+1}"),I(f"s_mov_b32 s{sB}, s{sQB}"),I(f"s_mov_b32 s{sB+1}, s{sQB+1}"),
       I(f"s_add_u32 s{sOff}, s{sHn}, s{sQw}"), I(f"s_movk_i32 s{sInc}, 4096"),
       I(f"v_mov_b32 v{vA}, v{vQA}"), I(f"v_mov_b32 v{vB}, v{vQB}"), I("s_branch Lmode_ret")]
    kv=[I(f"s_mov_b32 s{sA}, s{sKA}"),I(f"s_mov_b32 s{sA+1}, s{sKA+1}"),I(f"s_mov_b32 s{sB}, s{sVB}"),I(f"s_mov_b32 s{sB+1}, s{sVB+1}"),
       I(f"s_add_u32 s{sOff}, s{sHn}, s{sKVw}"), I(f"s_movk_i32 s{sInc}, 8192"),
       I(f"v_mov_b32 v{vA}, v{vKVA}"), I(f"v_mov_b32 v{vB}, v{vKVB}"), I("s_branch Lmode_ret")]
    hd=[I(f"s_cmp_eq_u32 s{sT}, 2"), I("s_cbranch_scc0 Lmode_kv")]
    if trace:
        r=hd+(q if t==2 else kv)
        for x in r: x.meta['dyn']=True
        return r
    return [I("Lmode:")]+hd+q+[I("Lmode_kv:")]+kv

def epi(s, slot_imm, slot, bad=None, areg=vQ, tag=None):
    o=[I(f"; ---- epilogue {s}")]
    o.append(I(f"v_accvgpr_read_b32 v{T2}, a{Lr(s)}"))
    o.append(I("s_nop 0"))
    o.append(I(f"v_rcp_f32 v{T1}, v{T2}"))
    if bad is not None: o.append(I(f"v_cmp_nge_f32 s[62:63], s{sThr}, v{T2}"))
    else: o.append(I("s_nop 0"))
    def mul(i):
        r=[]
        for dt in (2*i,2*i+1):
            a=O(s,dt)
            if cfg.pkmul:
                r.append(I(f"v_pk_mul_f32 {vr(a,2)}, {vr(a,2)}, v[{T1}:{T1+1}] op_sel_hi:[1,0]"))
                r.append(I(f"v_pk_mul_f32 {vr(a+2,2)}, {vr(a+2,2)}, v[{T1}:{T1+1}] op_sel_hi:[1,0]"))
            else:
                for k in range(4): r.append(I(f"v_mul_f32 v{a+k}, v{a+k}, v{T1}"))
        return r
    def cvt(i):
        a=O(s,2*i)
        return [I(f"v_cvt_pk_bf16_f32 v{a+k}, v{a+2*k}, v{a+2*k+1}") for k in range(4)]
    def fin(i):
        a=O(s,2*i); off=slot_imm*SLOT
        return [I(f"v_permlane16_swap_b32 v{a}, v{a+2}"), I(f"v_permlane16_swap_b32 v{a+1}, v{a+3}"),
                I(f"ds_write_b128 v{areg+i}, {vr(a)}"+(f" offset:{off}" if off else ""), wslot=slot, wtag=tag)]
    o+=mul(0)+cvt(0)
    if bad is not None: o.append(I(f"s_or_b64 s[{bad}:{bad+1}], s[{bad}:{bad+1}], s[62:63]"))
    for i in range(1,4): o+=mul(i)+fin(i-1)+cvt(i)
    o+=[I("s_nop 1")]+fin(3)
    return o
def epi_rd(s, slot_imm, slot, tag=None, areg=vDr):
    o=[]
    for j in range(4):
        off=slot_imm*SLOT+UOFF[j]
        m=dict(src=tag,slot=slot,private=True) if tag else {}
        o.append(I(f"ds_read_b128 {vr(O(s,2*j+1))}, v{areg}"+(f" offset:{off}" if off else ""), **m))
    return o
def epi_st(s,pol): return [ostore(O(s,2*j+1),j,pol) for j in range(4)]

def qread(h,s,ks):
    off=(s%4)*SLOT
    return I(f"ds_read_b128 {ar(Qr(s,ks))}, v{vQ+ks}"+(f" offset:{off}" if off else ""), src=f"h{h}Q{s}", slot=s, private=True)
def qbias(up): return [I(f"{'v_add_u32' if up else 'v_subrev_u32'} v{vQ+k}, {4*SLOT}, v{vQ+k}") for k in range(4)]

def firstA():
    o=[I("; ---- head A start")]
    kv0="h0KV0"; fr=frag_reads(0,0)
    o.append(I(f"s_add_u32 s{sCur}, s{sW4}, {6*SLOT}"))
    o+=setrd(sCur)
    o.append(I("s_waitcnt vmcnt(20)", need="h0Q2"))
    o.append(I("s_barrier"))
    o+=[qread(0,0,ks) for ks in range(4)]+fr[:8]
    o.append(I(f"s_mov_b32 m0, s{sW4}"))
    o.append(I("s_waitcnt lgkmcnt(7)"))
    rest=[qread(0,1,ks) for ks in range(4)]+[qread(0,2,ks) for ks in range(4)]
    ex={}
    for i in range(8):
        put(ex,i,[rest[i]]+([I("s_waitcnt lgkmcnt(7)")] if i<7 else []))
    put(ex,7,[sdma(9,0)]+fr[8:14])
    put(ex,17,[I("s_waitcnt lgkmcnt(10)")])
    o+=step(-1,ex)
    ex={}
    for i in range(5): put(ex,i,fr[14+2*i:16+2*i])
    put(ex,5,[sdma(9,1)])
    put(ex,16,[I("s_waitcnt lgkmcnt(0)")])
    o+=step(0,ex)
    reads=frag_reads(0,1)
    dm=[(9,2),(9,3),(10,0),(10,1),(10,2),(10,3)]
    nd=2
    for r in range(6):
        u=1+r; ex={}
        if u<=3:
            s=u+2
            put(ex,6,[I(f"s_waitcnt vmcnt({(5-s)*4+8+nd})", need=f"h0Q{s}")])
            if s==4: put(ex,5,qbias(True))
            for ks in range(4): put(ex,8+ks,[qread(0,s,ks)])
            if s==5: put(ex,16,qbias(False))
            put(ex,16,[I("s_waitcnt lgkmcnt(0)")])
        if u==4:
            put(ex,0,[I(f"s_waitcnt vmcnt({4+nd})", need="h0KV1")]); put(ex,1,[I("s_barrier")])
            put(ex,2,[I(f"s_add_u32 s{sCur}, s{sCur}, {SLOT}")]); put(ex,5,setrd(sCur))
            for i in range(8): put(ex,6+i,[reads[i]])
            put(ex,16,[I("s_waitcnt lgkmcnt(0)")])
        if u in (5,6):
            gs=[1,2,5,8,11,11,13,16] if u==5 else [1,2,4,5,6,8,9,11]
            for i,g in enumerate(gs): put(ex,g,[reads[8+8*(u-5)+i]])
        n,j=dm[r]
        g=14 if u<=4 else (5 if u==5 else 11)
        put(ex,g,[sdma(n,j)]); nd+=1
        if j==3: put(ex,g+1,adv())
        o+=step(u,ex)
    return o

def trans():
    o=[]
    fr0=frag_reads(1,0); fr1=frag_reads(1,1)
    P=PLACE[cfg.place]
    qg=[2,4,6,9]
    n1=0
    for k in range(12):
        i=67+k; ex={}
        if k==0:
            put(ex,0,[I("s_waitcnt vmcnt(4) lgkmcnt(0)", need="h1KV0")]); put(ex,1,[I("s_barrier")])
            put(ex,2,[I(f"s_add_u32 s{sPe}, s{sW4}, {6*SLOT}")]); put(ex,5,setrd(sPe))
            put(ex,3,[I(f"s_add_u32 s{sPo}, s{sW4}, {7*SLOT}")])
            put(ex,4,[I(f"s_add_u32 s{sSt}, s{sH}, s{sQw}")])
        if k<6:
            gs=[8,11,13,16] if k else [8,11,13,16]
            for x,g in enumerate(gs): put(ex,g,[fr0[4*k+x]])
            if k==4: put(ex,-1,[])
            g4=qg if k else [7,9,10,12]
            for ks in range(4): put(ex,g4[ks],[qread(1,k,ks)])
        if k==3: put(ex,17,[I("s_waitcnt lgkmcnt(8)")]+qbias(True))
        if k in (4,5): put(ex,17,[I("s_waitcnt lgkmcnt(8)")])
        g=5 if k not in (0,6) else 14
        if k==4: put(ex,1,[I(f"s_mov_b32 m0, s{sW4}")])
        if k==8: put(ex,1,[I(f"s_mov_b32 m0, s{sPe}")])
        put(ex,g,[bdma(2+k//4,k%4)])
        if k%4==3: put(ex,7,[I(f"s_add_u32 s{sOff}, s{sOff}, s{sInc}")])
        if k==3:
            put(ex,0,[I("s_waitcnt lgkmcnt(12)")])
            st=epi_st(0,cfg.st)
            for x,g in enumerate((10,12,14,15)): put(ex,g,[st[x]])
        if k==6:
            put(ex,0,[I("s_waitcnt vmcnt(10) lgkmcnt(0)", need="h1KV1")]); put(ex,1,[I("s_barrier")])
            put(ex,5,setrd(sPo))
        if k>=6:
            r=k-6
            for g in P['rd'][r]:
                put(ex,g,[fr1[n1]]); n1+=1
            if r==3: put(ex,16,[I(f"s_waitcnt lgkmcnt({min(15,n1-8)})")])
        if k==11:
            put(ex,12,[I(f"s_add_u32 s{sSt}, s{sSt}, 4096")])
            put(ex,13,[I("s_mov_b64 vcc, -1")]); put(ex,14,[I(f"s_mov_b32 s{sT}, 0")])
        o+=step(i,ex)
        s=k-1
        if 0<=s<6:
            bias = k>=3
            if bias and s<4:
                raise_needed=True
            o+=epi_for_trans(s,k)
    assert n1==24
    return o

def epi_for_trans(s,k):
    if s<4: o=epi(s,s,s,bad=sBad,areg=vE,tag=f"O{s}")
    else: o=epi(s,s-4,s,bad=sBad,areg=vQ,tag=f"O{s}")
    if s==0: o+=epi_rd(0,0,0,tag="O0")
    if s==5: o+=qbias(False)
    return o
vE=8

def tailB():
    o=[]
    pend=None
    for r in range(6):
        i=139+r; ex={}
        if r==0:
            put(ex,0,[I("s_waitcnt lgkmcnt(0)")])
            put(ex,1,[I(f"s_add_u32 s{sSt}, s{sHn}, s{sQw}")])
        if pend is not None:
            g0=4 if r<4 else 8
            put(ex,g0,[I("s_waitcnt lgkmcnt(0)")])
            st=epi_st(pend,cfg.st2)
            for x in range(4): put(ex,g0+1+2*x,[st[x]])
            put(ex,g0+8,[I(f"s_add_u32 s{sSt}, s{sSt}, 4096")])
            pend=None
        o+=step(i,ex)
        if r>=1:
            s=r-1
            o+=epi(s,1,1,bad=sBad2,tag=f"P{s}")+epi_rd(s,1,1,tag=f"P{s}"); pend=s
    e5=epi(5,2,2,bad=sBad2,tag="P5")
    st=epi_st(4,cfg.st2)
    cut=14
    o+=e5[:cut]+[I("s_waitcnt lgkmcnt(0)")]+st+[I(f"s_add_u32 s{sSt}, s{sSt}, 4096")]+e5[cut:]
    o+=epi_rd(5,2,2,tag="P5")
    st=epi_st(5,cfg.st2)
    for j in range(4): o+=[I(f"s_waitcnt lgkmcnt({3-j})"), st[j]]
    return o

def stamp(k):
    if not cfg.stamps: return []
    op="s_memrealtime" if (cfg.echo>=0 or cfg.rt) else "s_memtime"
    return [I(f"{op} s[{sStamp+4+2*k}:{sStamp+5+2*k}]")]

def prologue():
    o=[]
    A=lambda t,**k: o.append(I(t,**k))
    A("s_cmp_ge_u32 s2, 256"); A("s_cbranch_scc1 Lend")
    A("s_load_dwordx4 s[4:7], s[0:1], 0"); A("s_load_dwordx4 s[8:11], s[0:1], 16")
    if cfg.stamps:
        A(f"s_load_dwordx2 s[{sDbg}:{sDbg+1}], s[0:1], 32")
        A(f"s_memtime s[{sStamp}:{sStamp+1}]"); A(f"s_memrealtime s[{sStamp+2}:{sStamp+3}]")
    if cfg.cpf:
        A("s_getpc_b64 s[62:63]"); A("s_lshr_b32 s3, s2, 3"); A("s_lshl_b32 s3, s3, 10")
        A("v_and_b32 v1, 7, v0"); A("v_lshlrev_b32 v1, 7, v1"); A("v_add_u32 v1, s3, v1")
        A("global_load_dword v63, v1, s[62:63]")
    A("v_lshrrev_b32 v1, 6, v0"); A("v_and_b32 v0, 63, v0"); A("v_readfirstlane_b32 s3, v1")
    A(f"v_lshlrev_b32 v{vKVB}, 4, v0")
    A(f"v_lshrrev_b32 v2, 4, v0")
    A(f"v_lshlrev_b32 v3, 6, v2")
    A(f"v_xor_b32 v{vQB}, v{vKVB}, v3")
    A(f"v_add_u32 v{vQA}, 1056, v{vQB}")
    A(f"v_add_u32 v{vKVA}, 1056, v{vKVB}")
    A(f"s_mul_i32 s{sW4}, s3, {WREG}"); A(f"s_lshl_b32 s{sKVw}, s3, 11"); A(f"s_mul_i32 s{sQw}, s3, 24576")
    if cfg.headmap=="split":
        A(f"s_mul_i32 s{sH}, s2, {HEADB}"); A(f"s_add_u32 s{sHn}, s{sH}, {256*HEADB}")
    else:
        A(f"s_mul_i32 s{sH}, s2, {2*HEADB}"); A(f"s_add_u32 s{sHn}, s{sH}, {HEADB}")
    for r in (sKA,sVB,sQA,sQB):
        A(f"s_mov_b32 s{r+2}, {TOTB+4096}"); A(f"s_mov_b32 s{r+3}, 0x20000")
    A(f"s_add_u32 s{sOff}, s{sH}, s{sKVw}")
    A(f"s_add_u32 s{sTmp}, s{sH}, s{sQw}")
    A(f"s_add_u32 m0, s{sW4}, {6*SLOT}")
    A("s_waitcnt lgkmcnt(0)")
    A(f"s_sub_u32 s{sKA}, s6, 1056"); A(f"s_subb_u32 s{sKA+1}, s7, 0")
    A(f"s_sub_u32 s{sVB}, s8, 2080"); A(f"s_subb_u32 s{sVB+1}, s9, 0")
    kv=lambda b: [dma(j,f"h0KV{b}",6+b,A=sKA,B=sVB,va=vKVA,vb=vKVB) for j in range(4)]
    o+=kv(0)
    A(f"s_sub_u32 s{sQA}, s4, 1056"); A(f"s_subb_u32 s{sQA+1}, s5, 0")
    A(f"s_sub_u32 s{sQB}, s4, 32"); A(f"s_subb_u32 s{sQB+1}, s5, 0")
    def qd(s):
        A(f"s_add_u32 m0, s{sW4}, {s*SLOT}" if s else f"s_mov_b32 m0, s{sW4}")
        A(f"s_add_u32 s{sTmp}, s{sTmp}, 4096" if s else "s_nop 0")
        o.extend(dma(j,f"h0Q{s}",s,A=sQA,B=sQB,va=vQA,vb=vQB,off=sTmp) for j in range(4))
    qd(0); qd(1)
    A(f"s_mov_b32 s{sA}, s{sKA}"); A(f"s_mov_b32 s{sA+1}, s{sKA+1}"); A(f"s_mov_b32 s{sB}, s{sVB}"); A(f"s_mov_b32 s{sB+1}, s{sVB+1}")
    for r in (sA,sB):
        A(f"s_mov_b32 s{r+2}, {TOTB+4096}"); A(f"s_mov_b32 s{r+3}, 0x20000")
    A(f"s_movk_i32 s{sInc}, 8192")
    A(f"v_mov_b32 v{vA}, v{vKVA}"); A(f"v_mov_b32 v{vB}, v{vKVB}")
    A(f"s_mov_b32 s{sO}, s10"); A(f"s_mov_b32 s{sO+1}, s11"); A(f"s_mov_b32 s{sO+2}, {TOTB}"); A(f"s_mov_b32 s{sO+3}, 0x20000")
    A(f"s_mov_b32 s{sC}, 0x3e0293ee"); A(f"s_mov_b32 s{sNC}, 0xbe0293ee"); A(f"s_mov_b32 s{sThr}, 0x49800000")
    A(f"s_add_u32 s{sEnd}, s{sW4}, {NSLOT*SLOT}")
    A(f"s_mov_b32 s{sMask}, 0x14"); A(f"s_mov_b32 s{sT}, 0")
    A(f"s_mov_b64 s[{sBad}:{sBad+1}], 0"); A(f"s_mov_b64 s[{sBad2}:{sBad2+1}], 0")
    A("s_mov_b64 vcc, -1")
    A(f"s_add_u32 s{sXe}, s{sW4}, {6*SLOT}"); A(f"s_add_u32 s62, s{sW4}, {8*SLOT}"); A(f"s_xor_b32 s{sXe}, s{sXe}, s62")
    A(f"s_add_u32 s{sXo}, s{sW4}, {7*SLOT}"); A(f"s_xor_b32 s{sXo}, s{sXo}, s{sW4}")
    A("v_and_b32 v3, 7, v0"); A(f"v_mul_u32_u24 v{vKl}, 2080, v3")
    A("v_bfe_u32 v3, v0, 3, 1"); A(f"v_lshl_add_u32 v{vKl}, v3, 8, v{vKl}")
    A(f"v_lshl_add_u32 v{vKl}, v2, 4, v{vKl}"); A(f"v_subrev_u32 v{vKl}, s{sW4}, v{vKl}")
    A("v_bfe_u32 v3, v0, 2, 3"); A(f"v_mul_u32_u24 v{vVl}, 2080, v3")
    A("v_lshrrev_b32 v3, 5, v0"); A(f"v_lshl_add_u32 v{vVl}, v3, 8, v{vVl}")
    A("v_and_b32 v4, 3, v0"); A(f"v_lshl_add_u32 v{vVl}, v4, 3, v{vVl}")
    A(f"v_add_u32 v{vVl}, 1024, v{vVl}"); A(f"v_subrev_u32 v{vVl}, s{sW4}, v{vVl}")
    A("v_bfe_u32 v3, v0, 2, 1"); A("v_mul_u32_u24 v5, 2080, v3")
    A("v_bfe_u32 v3, v0, 3, 1"); A("v_lshl_add_u32 v5, v3, 10, v5")
    A("v_lshl_add_u32 v5, v4, 8, v5"); A("v_lshl_add_u32 v5, v2, 4, v5"); A(f"v_add_u32 v5, s{sW4}, v5")
    for ks in range(4):
        A(f"v_xor_b32 v3, {ks}, v4"); A(f"v_lshl_add_u32 v{vQ+ks}, v3, 6, v5"); A(f"v_mov_b32 v{vE+ks}, v{vQ+ks}")
    A("v_and_b32 v3, 60, v0"); A("v_bfe_u32 v5, v0, 1, 1"); A("v_or_b32 v3, v3, v5"); A("v_and_b32 v5, 1, v0"); A("v_lshl_or_b32 v3, v5, 1, v3")
    A(f"v_lshlrev_b32 v3, 4, v3"); A(f"v_add_u32 v{vDr}, s{sW4}, v3"); A(f"v_add_u32 v{vDl}, {SLOT}, v{vDr}")
    A("v_mov_b32 v5, 0x3f803f80"); A("v_cmp_eq_u32 s[62:63], 0, v4"); A("s_nop 1"); A("v_cndmask_b32 v5, 0, v5, s[62:63]")
    for k in range(4): A(f"v_accvgpr_write_b32 a{ONES+k}, v5")
    for s in range(2,6): qd(s)
    for b in (1,2):
        A(f"s_add_u32 m0, s{sW4}, {(6+b)*SLOT}"); A(f"s_add_u32 s{sOff}, s{sOff}, 8192")
        o+=kv(b)
    A(f"s_add_u32 s{sOff}, s{sOff}, 8192")
    return o

def slow_path():
    o=[]
    A=lambda t,**k: o.append(I(t,**k))
    sP=sCur
    A("Lslow:")
    A("s_waitcnt vmcnt(0) lgkmcnt(0)")
    A(f"s_mul_i32 s{sP}, s3, {SLOT}")
    A(f"s_add_u32 s{sTmp}, s{sP}, s{sW4}")
    o+=setrd(sTmp)
    for k in range(4): A(f"v_add_u32 v{8+k}, s{sP}, v{vQ+k}")
    A(f"v_add_u32 v12, s{sP}, v{vDr}")
    A(f"s_mov_b32 m0, s{sTmp}")
    A(f"s_add_u32 s{sOff}, s{sH}, s{sQw}")
    for s in range(6):
        o+=[dma(j,None,None,A=sQA,B=sQB,va=vQA,vb=vQB) for j in range(4)]
        A("s_waitcnt vmcnt(0)")
        for ks in range(4): A(f"ds_read_b128 {ar(Qr(s,ks))}, v{8+ks}")
        A(f"s_add_u32 s{sOff}, s{sOff}, 4096")
        A("s_waitcnt lgkmcnt(0)")
    for s in range(6): A(f"v_mov_b32 v{MN+s}, 0xff800000")
    def loadkv():
        for j in range(4):
            A(f"s_add_u32 m0, s{sP}, {j*WREG}"); A("s_nop 0")
            o.extend(dma(jj,None,None,A=sKA,B=sVB,va=vKVA,vb=vKVB) for jj in range(4))
            A(f"s_add_u32 s{sOff}, s{sOff}, 2048")
        A("s_waitcnt vmcnt(0)")
    A(f"s_mov_b32 s{sOff}, s{sH}"); A(f"s_mov_b32 s{sT}, 0")
    A("Lslow1:")
    loadkv()
    for i in range(8): o.append(I(kread(0,i,None,None).text))
    A("s_waitcnt lgkmcnt(0)")
    for s in range(6):
        o+=qk_mfmas(s,0,0)
        A("s_nop 7")
        S=SB[0]
        for e in range(0,8,2): A(f"v_max3_f32 v{MN+s}, v{MN+s}, v{S+e}, v{S+e+1}")
    A(f"s_add_u32 s{sT}, s{sT}, 1"); A(f"s_cmp_lt_u32 s{sT}, 12"); A("s_cbranch_scc1 Lslow1")
    for s in range(6):
        m=MN+s
        A(f"v_mov_b32 v{T1}, v{m}"); A("s_nop 1"); A(f"v_permlane16_swap_b32 v{m}, v{T1}"); A(f"v_max_f32 v{m}, v{m}, v{T1}")
        A(f"v_mov_b32 v{T1}, v{m}"); A("s_nop 1"); A(f"v_permlane32_swap_b32 v{m}, v{T1}"); A(f"v_max_f32 v{m}, v{m}, v{T1}")
        A(f"v_mul_f32 v{m}, s{sNC}, v{m}")
    for r in range(64,256): A(f"v_mov_b32 v{r}, 0")
    for r in range(224,248): A(f"v_accvgpr_write_b32 a{r}, 0")
    A(f"s_mov_b32 s{sOff}, s{sH}"); A(f"s_mov_b32 s{sT}, 0")
    A("Lslow2:")
    loadkv()
    for i in range(8): o.append(I(kread(0,i,None,None).text))
    A("s_waitcnt lgkmcnt(0)")
    for i in range(16):
        o.append(I(vread(0,i,None,None).text))
        if i==7: A("s_waitcnt lgkmcnt(0)")
    A("s_waitcnt lgkmcnt(0)")
    for s in range(6):
        o+=qk_mfmas(s,0,0)
        A("s_nop 7")
        for gp in sm_gaps(s,0,0): o+=gp
        A("s_nop 1")
        o+=pv_mfmas(s,0,0,False)
    A(f"s_add_u32 s{sT}, s{sT}, 1"); A(f"s_cmp_lt_u32 s{sT}, 12"); A("s_cbranch_scc1 Lslow2")
    A("s_nop 7")
    A(f"s_add_u32 s{sSt}, s{sH}, s{sQw}")
    for s in range(6):
        o+=epi(s,0,None,areg=8)+epi_rd(s,0,None,areg=12)+[I("s_waitcnt lgkmcnt(0)")]+epi_st(s,"")
        A(f"s_add_u32 s{sSt}, s{sSt}, 4096")
    A("s_branch Lslow_ret")
    for x in o:
        for k in ('tag','slot','wslot','wtag'): x.meta.pop(k,None)
    return o

def build():
    P=prologue()
    txt=lambda L:[x.text for x in L if not x.meta.get('dyn') and not x.text.startswith(';')]
    for t in range(5):
        assert txt(loopA(t))==txt(loopA(0)); assert txt(loopB(t))==txt(loopB(0))
    trace=list(P)+firstA()
    for t in range(5): trace+=loopA(t)
    trace+=trans()
    for t in range(5): trace+=loopB(t)
    trace+=tailB()
    trace=[x for x in trace if not x.meta.get('skip')]
    probs=check_trace(trace)
    sp=slow_path()
    probs+=check_trace(sp+slow_path())
    seen=set()
    for p in probs:
        if p not in seen: print(p); seen.add(p)
    S=list(P)
    S+=stamp(0)+firstA()+stamp(1)
    S+=[I(".p2align 3"),I("LloopA:")]+[x for x in loopA(0) if not x.meta.get('dyn')]
    S+=stamp(2)+trans()+stamp(3)
    S+=[I(".p2align 3"),I("LloopB:")]+loopB(0)
    S+=stamp(4)+tailB()+stamp(5)
    if cfg.slow:
        S+=[I(f"s_or_b64 s[62:63], s[{sBad}:{sBad+1}], s[{sBad2}:{sBad2+1}]"),
            I("s_waitcnt vmcnt(24)"), I("s_barrier"), I("s_cbranch_scc1 Lslow_entry")]
    S+=[I("Lfin:")]
    if cfg.stamps:
        S+=[I("s_waitcnt vmcnt(0)"), I(f"s_memtime s[{sStamp+16}:{sStamp+17}]"), I(f"s_memrealtime s[{sStamp+18}:{sStamp+19}]"), I("s_waitcnt lgkmcnt(0)")]
        if cfg.echo>=0:
            esrc=[sStamp+2]+[sStamp+4+2*k for k in range(6)]+[sStamp+18]
            S+=[I(f"s_add_u32 s62, s{esrc[cfg.echo]}, 10000"), I("Lspin:"), I("s_sleep 2"), I("s_memrealtime s[90:91]"), I("s_waitcnt lgkmcnt(0)"),
                I("s_sub_u32 s63, s90, s62"), I("s_cmp_lt_i32 s63, 0"), I("s_cbranch_scc1 Lspin")]
        S+=[I(f"v_mov_b32 v8, s{sStamp+2}"), I(f"v_mov_b32 v9, s{sStamp+18}")]
        srcs=[sStamp+4+2*k for k in range(6)]+[sStamp+(18 if cfg.rt else 16)]
        for k,r in enumerate(srcs):
            S+=[I(f"s_sub_u32 s{sTmp}, s{r}, s{sStamp+(2 if cfg.rt else 0)}"), I(f"v_mov_b32 v{10+k}, s{sTmp}")]
        S+=[I("v_mov_b32 v17, 0"), I("v_mov_b32 v18, 0")]
        S+=[I("s_getreg_b32 s62, hwreg(HW_REG_XCC_ID)"), I("v_mov_b32 v19, s62")]
        S+=[I(f"s_mov_b32 s24, s{sDbg}"), I(f"s_mov_b32 s25, s{sDbg+1}"), I(f"s_mov_b32 s26, {cfg.dbgsz}"), I("s_mov_b32 s27, 0x20000"),
            I("s_lshl_b32 s62, s2, 8"), I("s_lshl_b32 s63, s3, 6"), I("s_add_u32 s62, s62, s63"), I("v_mov_b32 v1, 0"),
            I("s_mov_b64 exec, 1"),
            I("buffer_store_dwordx4 v[8:11], v1, s[24:27], s62 offen"), I("buffer_store_dwordx4 v[12:15], v1, s[24:27], s62 offen offset:16"), I("buffer_store_dwordx4 v[16:19], v1, s[24:27], s62 offen offset:32")]
    S+=[I("Lend:"), I("s_endpgm")]
    S+=mode_handler(0)
    if cfg.slow:
        S+=[I("Lslow_entry:"), I(f"s_cmp_lg_u64 s[{sBad}:{sBad+1}], 0"), I("s_cbranch_scc1 Lslow"),
            I("Lslow_ret:"), I(f"s_cmp_eq_u64 s[{sBad2}:{sBad2+1}], 0"), I("s_cbranch_scc1 Lfin"),
            I(f"s_mov_b64 s[{sBad2}:{sBad2+1}], 0"), I(f"s_mov_b32 s{sH}, s{sHn}")]
        S+=sp
    if cfg.cpf: S+=[I(".p2align 8"), I("Lpad:"), I(f".fill (33280-(Lpad-{NAME}))/4, 4, 0xbf810000")]
    return S, bool([p for p in probs if not p.startswith("NOTE")])

from gen import HDR, FTR
def write(fn):
    S,bad=build()
    with open(fn,"w") as f:
        f.write(HDR%(LDSB,NAME,NAME,NAME))
        for x in S:
            t=x.text
            f.write((t if (t.endswith(':') or t.startswith('.')) else "    "+t)+"\n")
        f.write(FTR%NAME)
    return bad
if __name__=="__main__":
    ap=argparse.ArgumentParser()
    ap.add_argument("out"); ap.add_argument("opts",nargs="*")
    a=ap.parse_args()
    for kv in a.opts:
        k,v=kv.split("=",1)
        cur=getattr(cfg,k)
        setattr(cfg,k, (v in("1","True","true")) if isinstance(cur,bool) else (int(v) if isinstance(cur,int) else v.replace("+"," ")))
    bad=write(a.out)
    from mkco import build as mk
    print(mk(a.out), "PROBLEMS" if bad else "clean")
```

```python
import re
REG = re.compile(r'\b([vas])(?:\[(\d+):(\d+)\]|(\d+))')
def regs_of(tok):
    out=[]
    tok=tok.strip()
    if tok in ('vcc',): return [('s','vcc')]
    if tok=='m0': return [('s','m0')]
    if tok=='exec': return [('s','exec')]
    m=REG.fullmatch(tok.lstrip('-'))
    if not m: return out
    k=m.group(1)
    if m.group(2) is not None: return [(k,i) for i in range(int(m.group(2)),int(m.group(3))+1)]
    return [(k,int(m.group(4)))]
TRANS=('v_exp_f32','v_rcp_f32','v_log_f32','v_rsq_f32','v_sqrt_f32')
class I:
    def __init__(s, text, **meta):
        s.text=text; s.meta=meta
        t=text.split(';')[0].strip()
        s.label = t.endswith(':') or t.startswith('.') or t==''
        s.rd=[]; s.wr=[]; s.op=''; s.kind='other'
        if s.label: return
        p=t.split(None,1); s.op=p[0]
        ops=[]
        if len(p)>1:
            ops=[x.strip() for x in re.split(r',(?![^\[]*\])', p[1])]
            if ops:
                last=ops[-1].split()
                ops[-1]=last[0]; s.mods=last[1:]
        op=s.op
        R=lambda i: regs_of(ops[i]) if i<len(ops) else []
        if op.startswith('v_mfma'):
            s.kind='mfma'; s.wr=R(0); s.A=R(1); s.B=R(2); s.C=R(3); s.rd=s.A+s.B+s.C
            s.passes=4 if '16x16x32' in op else 8
        elif op.startswith('v_cmp'):
            s.kind='valu'; s.wr=R(0); s.rd=R(1)+R(2)
        elif op.startswith('v_permlane'):
            s.kind='valu'; s.wr=R(0)+R(1); s.rd=R(0)+R(1)
        elif op.startswith('v_readfirstlane') or op.startswith('v_readlane') or op.startswith('v_writelane'):
            s.kind='valu'; s.wr=R(0); s.rd=R(1)+R(2)
        elif op.startswith('v_'):
            s.kind='valu'; s.wr=R(0); s.rd=sum((R(i) for i in range(1,len(ops))),[])
            if op.startswith('v_fmac') or op.startswith('v_dot2c'): s.rd+=R(0)
        elif op.startswith('ds_read'):
            s.kind='ds'; s.wr=R(0); s.rd=R(1)
        elif op.startswith('ds_write'):
            s.kind='ds'; s.rd=R(0)+R(1)
        elif op.startswith('buffer_load') or op.startswith('global_load'):
            s.kind='vmem'
            if ' lds' in t: s.rd=R(0)+R(1)+R(2)+[('s','m0')]; s.dma=True
            else: s.wr=R(0); s.rd=R(1)+R(2)+R(3)
        elif op.startswith('buffer_store') or op.startswith('global_store') or op.startswith('buffer_atomic'):
            s.kind='vmem'; s.store=True; s.rd=R(0)+R(1)+R(2)+R(3); s.data=R(0) if op.startswith('buffer') else R(1)
        elif op.startswith('s_load') or op.startswith('s_memtime') or op.startswith('s_memrealtime'):
            s.kind='smem'; s.wr=R(0); s.rd=R(1)
        elif op in ('s_waitcnt','s_barrier','s_nop','s_endpgm','s_setprio','s_sleep') or op.startswith('s_cbranch') or op=='s_branch':
            s.kind='ctl'
        elif op.startswith('s_cmp') or op.startswith('s_bitcmp'):
            s.kind='salu'; s.rd=R(0)+R(1)
        elif op.startswith('s_'):
            s.kind='salu'; s.wr=R(0); s.rd=sum((R(i) for i in range(1,len(ops))),[])
        else:
            raise ValueError("unknown instr "+text)
    def states(s):
        if s.label: return 0
        if s.op=='s_nop': return int(s.text.split()[1],0)+1
        return 1

def check_trace(tr, verbose=True):
    probs=[]
    tr=[x for x in tr if not x.label]
    pos=[]; p=0
    for x in tr:
        pos.append(p); p+=x.states()
    W=24
    for j,c in enumerate(tr):
        i=j-1
        while i>=0:
            a=tr[i]
            d=pos[j]-pos[i]-a.states()
            if d>W: break
            need=0; why=''
            aw=set(a.wr);
            def ov(x,y): return bool(set(x)&set(y))
            if a.kind=='valu':
                vw=[r for r in a.wr if r[0] in 'va']; sw=[r for r in a.wr if r[0]=='s']
                if c.kind=='mfma' and ov(vw,c.rd): need,why=2,'valu->mfma'
                if c.op.startswith('v_permlane') and ov(vw,c.rd): need,why=max(need,2),'valu->permlane'
                if (c.op.startswith('v_readfirstlane') or c.op.startswith('v_readlane')) and ov(vw,c.rd): need,why=max(need,1),'valu->readlane'
                if a.op in TRANS and c.kind=='valu' and c.op not in TRANS and ov(vw,c.rd): need,why=max(need,1),'trans->valu'
                if sw and c.kind=='vmem' and ov(sw,c.rd): need,why=max(need,5),'valu sgpr->vmem'
                if sw and c.kind=='valu' and (ov(sw,c.rd) or (('s','vcc') in sw and 'vcc' in c.text.split(',',1)[-1])): need,why=max(need,2),'valu sgpr->valu'
            if a.kind=='mfma':
                n1={4:8,8:12}[a.passes]; n2={4:6,8:10}[a.passes]; n3={4:3,8:7}[a.passes]
                if c.kind=='mfma':
                    if ov(a.wr,c.A+c.B): need,why=n1,'mfma D->A/B'
                    if ov(a.wr,c.C) and not (a.wr==c.C and a.passes==c.passes): need,why=max(need,n2),'mfma D->C overlap'
                elif c.kind=='valu':
                    if ov(a.wr,c.rd+c.wr): need,why=n1,'mfma D->valu'
                    if ov(a.C,c.wr): need,why=max(need,n3),'mfma C WAR valu'
                elif c.kind in('ds','vmem'):
                    if ov(a.wr,c.rd+c.wr): need,why=n1,'mfma D->mem'
            if a.kind=='salu' and ('s','m0') in a.wr and getattr(c,'dma',False): need,why=max(need,1),'m0->dma'
            if getattr(a,'store',False) and 'x4' in a.op and c.kind in('valu','mfma','ds','vmem') and ov(a.data,c.wr): need,why=max(need,2),'store data WAR'
            if d<need: probs.append(f"HAZARD {why}: need {need} have {d}: [{a.text}] -> [{c.text}]")
            i-=1
    lg=[]
    vm=[]
    pend={}
    landed=set();
    visible=set()
    slot_readers={}
    slot_content={}
    slot_busy={}
    content={}
    for j,c in enumerate(tr):
        for r,t in c.meta.get('expect',{}).items():
            if content.get(r)!=t: probs.append(f"SEMANTIC {r} holds {content.get(r)} expected {t} at [{c.text}]")
        for r,t in c.meta.get('set',{}).items(): content[r]=t
        if c.kind=='ds' and c.meta.get('src'):
            for r in c.wr: content[r]=c.meta['src']
        if c.op=='s_waitcnt':
            m=re.search(r'vmcnt\((\d+)\)',c.text)
            if m:
                n=int(m.group(1))
                if 'need' in c.meta:
                    tag=c.meta['need']
                    idx=[k for k,x in enumerate(vm) if tr[x].meta.get('tag')==tag]
                    loosest = len(vm)-1-max(idx) if idx else None
                    if verbose and loosest is not None and loosest!=n and not c.meta.get('loose_ok'): probs.append(f"NOTE wait {c.text} for {tag}: loosest N={loosest}")
                while len(vm)>n:
                    x=vm.pop(0)
                    for r in tr[x].wr:
                        if pend.get(r)==('vm',x): del pend[r]
                    tr[x].done=True
            m=re.search(r'lgkmcnt\((\d+)\)',c.text)
            if m:
                n=int(m.group(1))
                if any(tr[x].kind=='smem' for x in lg) and n!=0: probs.append("smem outstanding with counted lgkm wait: "+c.text)
                while len(lg)>n:
                    x=lg.pop(0)
                    for r in tr[x].wr:
                        if pend.get(r)==('lg',x): del pend[r]
                    tr[x].done=True
            continue
        for r in c.rd+c.wr:
            if r in pend: probs.append(f"UNWAITED {r} from [{tr[pend[r][1]].text}] used by [{c.text}]")
        if c.op=='s_barrier':
            tags={}
            for k in range(j):
                x=tr[k]
                if getattr(x,'dma',False) and 'tag' in x.meta:
                    tags.setdefault(x.meta['tag'],True)
                    if not getattr(x,'done',False): tags[x.meta['tag']]=False
            visible={t for t,ok in tags.items() if ok}
            for sl,rs in slot_readers.items():
                slot_readers[sl]=[x for x in rs if not getattr(tr[x],'done',False)]
        if c.kind=='ds' and c.meta.get('wslot') is not None:
            sl=c.meta['wslot']
            for x in slot_readers.get(sl,[]):
                if not tr[x].meta.get('private'): probs.append(f"DSWRITE into slot {sl} w/o barrier after shared read [{tr[x].text}]")
            if any(getattr(tr[k],'dma',False) and tr[k].meta.get('slot')==sl and not getattr(tr[k],'done',False) for k in range(j)): probs.append(f"DSWRITE into slot {sl} while dma pending")
            slot_content[sl]=c.meta['wtag']
        if c.kind=='ds' and 'src' in c.meta:
            tag=c.meta['src']; sl=c.meta['slot']
            if slot_content.get(sl)!=tag: probs.append(f"SLOT {sl} holds {slot_content.get(sl)} but read wants {tag}: {c.text}")
            if c.meta.get('private'):
                if any(getattr(tr[k],'dma',False) and tr[k].meta.get('tag')==tag and not getattr(tr[k],'done',False) for k in range(j)): probs.append(f"READ of {tag} before landed: {c.text}")
            else:
                if tag not in visible: probs.append(f"READ of {tag} not visible (no wait+barrier): {c.text}")
            slot_readers.setdefault(sl,[]).append(j)
        if getattr(c,'dma',False) and 'tag' in c.meta:
            sl=c.meta['slot']
            for x in slot_readers.get(sl,[]):
                if tr[x].meta.get('private'):
                    if not getattr(tr[x],'done',False): probs.append(f"DMA {c.meta['tag']} into slot {sl} while own read pending")
                else: probs.append(f"DMA {c.meta['tag']} into slot {sl} w/o barrier after read [{tr[x].text}]")
            slot_readers[sl]=[]
            slot_content[sl]=c.meta['tag']
        if c.kind in('ds','smem'):
            c.done=False
            lg.append(j)
            for r in c.wr: pend[r]=('lg',j)
        if c.kind=='vmem':
            c.done=False
            vm.append(j)
            if len(vm)>63: probs.append("vmcnt overflow >63 at "+c.text)
            for r in c.wr: pend[r]=('vm',j)
    return probs
```

```python
import sys, argparse, re
sys.path.insert(0,'work')
from asmlib import I, check_trace
NAME="standalone__gqa_softmax__near_ridge_kernel"
SLOT=16640; WREG=4160; NSLOT=9
LDSB=NSLOT*SLOT
HEADB=98304
TOTB=50331648

class Cfg:
    ld="nt"; st="sc1"; st2="nt"
    stamps=False; rt=False; tl=False; dbgsz=0x400000; echo=-1
    slow=True
    place="D"
    cpf=True
    rho=3; rho2=6
    warm=0
    diag=''
cfg=Cfg()

def O(s,dt): return 64+32*s+4*dt
SB=[16,24]; PB=[32,36]
MN=40
vK,vV,vKl,vVl=46,47,48,49
vA,vB=50,51
vQ=52
vW=[5,6,7,62]
vR=[56,63]
vD=[50,51]
vKVA,vKVB,vQA,vQB=57,58,59,60
T0,T1,T2,T3=1,2,3,4
DR=[8,12]
def Qr(s,ks): return 16*s+4*ks
def Kf(par,i): return 96+32*par+4*i
def Vf(par,dt): return 160+32*par+4*dt
def Lr(s): return 224+4*s
ONES=248
sA,sB,sO,sKA,sVB,sQA,sQB=12,16,20,24,28,32,36
sOff,sInc,sCur,sC,sH,sW4,sT,sPe,sEnd,sKVw,sQw,sThr=40,41,42,43,44,45,46,47,48,49,50,51
sBad=52
sTmp,sSt,sNC,sHn,sDbg=55,57,58,59,60
sStamp=64
sQn,sM=84,86
sPo,sXe,sXo,sBad2=92,93,94,96

def vr(a,n=4): return f"v[{a}:{a+n-1}]"
def ar(a,n=4): return f"a[{a}:{a+n-1}]"
def sr(a,n=4): return f"s[{a}:{a+n-1}]"

def slotKV(h,b):
    if b<2: return b
    if h==0: return (6+b)%9
    return [8,0,1,2][(b-2)%4]
def slotQ(s): return 2+s
def pair(n):
    if n<18: return (f"h0KV{n-6}", n%9)
    if n<20: return (f"h1KV{n-18}", n%9)
    if n<26: return (f"h1Q{n-20}", n%9)
    raise ValueError
UOFF=[0,1024,2080,3104]
def dma(j, tag, slot, A=sA, B=sB, va=vA, vb=vB, off=sOff):
    srd=[A,B,A,B][j]; vo=[va,va,vb,vb][j]; imm=UOFF[j]
    o=f" offset:{imm}" if imm else ""
    p=f" {cfg.ld}" if cfg.ld else ""
    return I(f"buffer_load_dwordx4 v{vo}, {sr(srd)}, s{off} offen{o}{p} lds", tag=tag, slot=slot)
def kvdma(h,b,j,off=sOff): return dma(j,f"h{h}KV{b}",slotKV(h,b),A=sKA,B=sVB,va=vKVA,vb=vKVB,off=off)
def qdma(h,s,j,off): return dma(j,f"h{h}Q{s}",slotQ(s),A=sQA,B=sQB,va=vQA,vb=vQB,off=off)
def setm0(slot): return I(f"s_add_u32 m0, s{sW4}, {slot*SLOT}") if slot else I(f"s_mov_b32 m0, s{sW4}")
def kread(par,i,tag,slot,base=0):
    kt,ks=divmod(i,4)
    return I(f"ds_read_b128 {ar(Kf(par,i))}, v{vK} offset:{base+kt*512+ks*64}", src=tag, slot=slot)
def vread(par,i,tag,slot,base=0):
    dt,jj=divmod(i,2)
    return I(f"ds_read_b64_tr_b16 {ar(Vf(par,dt)+2*jj,2)}, v{vV} offset:{base+jj*512+dt*32}", src=tag, slot=slot)
def frag_reads(h,b,base=0):
    tag=f"h{h}KV{b}"; sl=slotKV(h,b); par=b&1
    return [kread(par,i,tag,sl,base) for i in range(8)]+[vread(par,i,tag,sl,base) for i in range(16)]
def qaddr(s): return (vQ,(s%4)*SLOT)
def bias(regs,up): return [I(f"{'v_add_u32' if up else 'v_subrev_u32'} v{r}, {4*SLOT}, v{r}") for r in regs]
QREGS=[vQ+k for k in range(4)]
def qread(h,s,ks):
    a,off=qaddr(s)
    return I(f"ds_read_b128 {ar(Qr(s,ks))}, v{a+ks}"+(f" offset:{off}" if off else ""), src=f"h{h}Q{s}", slot=slotQ(s), private=True)
def qk_mfmas(s,kpar,sb,u=None):
    o=[]
    for i in range(8):
        kt,ks=divmod(i,4); d=SB[sb]+4*kt
        x=I(f"v_mfma_f32_16x16x32_bf16 {vr(d)}, {ar(Kf(kpar,i))}, {ar(Qr(s,ks))}, {'0' if ks==0 else vr(d)}")
        if u:
            x.meta['expect']={**{r:f"h{u[0]}KV{u[1]}" for r in x.A}, **{r:f"h{u[0]}Q{u[2]}" for r in x.B}}
            x.meta['set']={r:f"S{u}" for r in x.wr}
        o.append(x)
    return o
def pv_mfmas(s,vpar,pb,first,u=None):
    o=[]
    for dt in range(8):
        d=O(s,dt)
        o.append(I(f"v_mfma_f32_16x16x32_bf16 {vr(d)}, {ar(Vf(vpar,dt))}, {vr(PB[pb])}, {'0' if first else vr(d)}"))
    o.append(I(f"v_mfma_f32_16x16x32_bf16 {ar(Lr(s))}, {ar(ONES)}, {vr(PB[pb])}, {'0' if first else ar(Lr(s))}"))
    if u:
        cnt=sum(1 for y in UNITS[:UNITS.index(u)] if y[0]==u[0] and y[2]==u[2])
        for k,x in enumerate(o):
            e={r:f"P{u}" for r in x.B}
            if k<8: e.update({r:f"h{u[0]}KV{u[1]}" for r in x.A})
            if not first: e.update({r:f"O{u[0]}n{cnt}" for r in x.wr})
            x.meta['expect']=e; x.meta['set']={r:f"O{u[0]}n{cnt+1}" for r in x.wr}
    return o
FREE=(5,11,16)
def sm_gaps(s,sb,pb,u=None):
    S=SB[sb]; P=PB[pb]
    T=(lambda **k:k) if u else (lambda **k:{})
    f=lambda e: I(f"v_fma_f32 v{S+e}, v{S+e}, s{sC}, v{MN+s}", **T(expect={('v',S+e):f"S{u}",('v',MN+s):f"M{u and u[0]}"}))
    x=lambda e: I(f"v_exp_f32 v{S+e}, v{S+e}", **T(expect={('v',S+e):f"S{u}"}))
    c=lambda e: I(f"v_cvt_pk_bf16_f32 v{P+e//2}, v{S+e}, v{S+e+1}", **T(expect={('v',S+e):f"S{u}",('v',S+e+1):f"S{u}"}, set={('v',P+e//2):f"P{u}"}))
    return [[f(0),f(1)],[x(0)],[x(1)],[f(2),f(3)],[x(2)],[],[x(3)],[f(4),f(5)],[x(4)],[x(5)],[f(6),f(7)],[],[x(6)],[x(7)],[c(0),c(2)],[c(4),c(6)],[]]
def max_seq(s,sb,h):
    S=SB[sb]
    return [I(f"v_max3_f32 v{T0}, v{S}, v{S+1}, v{S+2}"), I(f"v_max3_f32 v{T3}, v{S+3}, v{S+4}, v{S+5}"),
            I(f"v_max3_f32 v{T0}, v{T0}, v{S+6}, v{S+7}"), I(f"v_max_f32 v{T0}, v{T0}, v{T3}"),
            I(f"v_mov_b32 v{T3}, v{T0}"), I(f"v_permlane16_swap_b32 v{T0}, v{T3}"),
            I(f"v_max_f32 v{T0}, v{T0}, v{T3}"), I(f"v_mov_b32 v{T3}, v{T0}"),
            I(f"v_permlane32_swap_b32 v{T0}, v{T3}"), I(f"v_max_f32 v{T0}, v{T0}, v{T3}"),
            I(f"v_mul_f32 v{MN+s}, s{sNC}, v{T0}", set={('v',MN+s):f"M{h}"})]
MAXG=[11,11,12,12,12,13,14,14,15,16,16]

FA=[(b,s) for s in range(6) for b in (0,1)]
LA=[(10,0),(10,1),(10,2),(11,0),(11,1),(10,3),(11,2),(10,4),(11,3),(10,5),(11,4),(11,5)]
FB=[(0,0),(0,1),(1,0),(0,2),(1,1),(0,3),(1,2),(0,4),(1,3),(0,5),(1,4),(1,5)]
LB=[(10,0),(10,1),(10,2),(11,0),(11,1),(11,2),(10,3),(11,3),(10,4),(11,4),(10,5),(11,5)]
MID=[(b,s) for b in range(2,10) for s in range(6)]
UNITS=[(0,)+u for u in FA+MID+LA]+[(1,)+u for u in FB+MID+LB]
def unit(i): return UNITS[i] if 0<=i<len(UNITS) else None
def put(ex,g,items): ex.setdefault(g,[]).extend(items)

def step(i, ex=None, post=None):
    ex=ex or {}; post={k:list(v) for k,v in (post or {}).items()}
    q,m,p=unit(i+1),unit(i),unit(i-1)
    mf=(qk_mfmas(q[2],q[1]&1,(i+1)&1,q) if q else [None]*8)+(pv_mfmas(p[2],p[1]&1,(i-1)&1,p[1]==0,p) if p else [None]*9)
    g=sm_gaps(m[2],i&1,i&1,m) if m else [[] for _ in range(17)]
    tailmax=[]
    if q and q[1]==0:
        ms=max_seq(q[2],(i+1)&1,q[0])
        if p and m:
            for gg,x in zip(MAXG,ms): g[gg]=g[gg]+[x]
        else:
            for x in ms:
                if x.op.startswith('v_permlane'): tailmax.append(I("s_nop 1"))
                tailmax.append(x)
    out=[I(f"; ---- step {i}  qk{q} sm{m} pv{p}")]
    out+=ex.get(-1,[])
    for k in range(17):
        if mf[k] is not None: out.append(mf[k])
        out+=ex.get(k,[])
        out+=g[k]
        out+=post.get(k,[])
    out+=tailmax
    out+=ex.get(17,[])
    return out


def setrd(reg): return [I(f"v_add_u32 v{vK}, s{reg}, v{vKl}"), I(f"v_add_u32 v{vV}, s{reg}, v{vVl}")]
def free_gaps(ex,lo,n,avoid=()):
    return [x for x in range(lo,17) if x not in FREE and x not in ex and x not in avoid][:n]
def spread(ex,lo,items,avoid=()):
    gs=free_gaps(ex,lo,len(items),avoid)
    assert gs
    while len(gs)<len(items): gs.append(gs[-1])
    for x,i in zip(gs,items): put(ex,x,[i])
def TL():
    if not cfg.tl: return []
    r=[I("s_mov_b64 exec, s[90:91]"), I("v_mov_b32 v0, s98"), I("v_mov_b32 v61, s100"), I("s_mov_b64 exec, -1"), I("s_lshl_b64 s[90:91], s[90:91], 1"), I("s_memtime s[98:99]"), I("s_memrealtime s[100:101]")]
    for x in r: x.meta['skip']=True
    return r
def BAR(): return [I("s_barrier")]+TL()
def WV(tag,lg0=False): return I("s_waitcnt vmcnt(AUTO)"+(" lgkmcnt(0)" if lg0 else ""), auto_vm=tag, need=tag)
def WL(x): return I("s_waitcnt lgkmcnt(AUTO)", auto_lg=x)

def kind(x):
    if x.op.startswith('ds_read'): return 'r'
    if x.op.startswith('ds_write'): return 'w'
    if getattr(x,'dma',False): return 'd'
    if getattr(x,'store',False): return 's'
    return 'a'
def gapcost(ks,free):
    if not ks: return 0
    U={'r':4,'d':6,'w':12,'s':12,'a':4}
    c=sum(U[k] for k in ks)
    if ks[0]=='a': c-=4
    if len(ks)==1 and ks[0]=='d': c=4 if not free else 8
    for p,q in zip(ks,ks[1:]):
        if p=='w' and q=='r': c+=12
    st=12*ks.count('s')
    if free: return st+max(0,c-st-8)
    return c+4*max(0,len([k for k in ks if k!='a'])-1)
def place(ex,groups,lo=0,hi=16,free=FREE):
    groups=[g if isinstance(g,list) else [g] for g in groups]
    n=len(groups)
    if not n: return
    import functools
    base={g:[kind(x) for x in ex.get(g,[]) if not x.label and not x.meta.get('skip')] for g in range(17)}
    @functools.lru_cache(None)
    def f(g,i):
        if i==n: return (0,())
        if g>hi: return (1e9,())
        best=(1e9,())
        for m in range(0,min(4,n-i)+1):
            ks=base[g]+[kind(x) for gr in groups[i:i+m] for x in gr]
            c=gapcost(ks,g in free)-gapcost(base[g],g in free)
            c+=0.01*sum(abs(g-(lo+(hi-lo)*(j+0.5)/n)) for j in range(i,i+m))
            r=f(g+1,i+m)
            if c+r[0]<best[0]: best=(c+r[0],(g,)*m+r[1])
        return best
    c,gs=f(lo,0)
    assert len(gs)==n
    for g,gr in zip(gs,groups): put(ex,g,gr)

def blockA(b,dm):
    reads=frag_reads(0,b+1); tag=f"h0KV{b+1}"
    out=[]; lead=(b%2==0)
    for r in range(6):
        ex={}; post={}
        if r==0:
            put(ex,0,[I(f"s_waitcnt vmcnt({12 if lead else 10}) lgkmcnt(0)", need=tag, loose_ok=True)])
            put(ex,1,BAR())
            put(post,4,setrd(sCur))
        n,j=dm[r]; tg,sl=pair(n)
        rg,dg=((5,16),11) if r<5 else ((5,11),16)
        if r==5 and not lead: rg,dg=(5,11),14
        put(ex,rg[0],reads[4*r:4*r+2]); put(ex,rg[1],reads[4*r+2:4*r+4])
        put(ex,dg,[dma(j,tg,sl)])
        pj=dm[r-1][1] if r>0 else (3 if lead else 1)
        if pj==3:
            a=[I(f"s_add_u32 m0, m0, {SLOT}"), I(f"s_cmp_ge_u32 m0, s{sEnd}"), I(f"s_cselect_b32 m0, s{sW4}, m0"), I(f"s_add_u32 s{sOff}, s{sOff}, s{sInc}")]
            if (not lead) and r==2:
                a+=[I(f"s_cmp_eq_u32 s{sT}, 2"), I(f"s_cselect_b32 s{sOff}, s{sQn}, s{sOff}")]
            spread(ex,0,a)
        if (not lead) and r==1:
            spread(ex,12,[I(f"s_cmp_ge_u32 s{sT}, 2"), I(f"s_cselect_b64 s[{sM}:{sM+1}], -1, 0"),
                I(f"s_cselect_b64 s[{sA}:{sA+1}], s[{sQA}:{sQA+1}], s[{sA}:{sA+1}]"), I(f"s_cselect_b64 s[{sB}:{sB+1}], s[{sQB}:{sQB+1}], s[{sB}:{sB+1}]")])
        if (not lead) and r==2:
            put(post,8,[I(f"v_cndmask_b32 v{vA}, v{vA}, v{vQA}, s[{sM}:{sM+1}]")])
            put(post,9,[I(f"v_cndmask_b32 v{vB}, v{vB}, v{vQB}, s[{sM}:{sM+1}]")])
        if (not lead) and r==3:
            spread(ex,0,[I(f"s_cmp_ge_u32 s{sT}, 2"), I(f"s_cselect_b32 s{sInc}, 4096, s{sInc}")])
        if r==3: put(ex,15,[I(f"s_waitcnt lgkmcnt(6)")])
        if r==5:
            spread(ex,0,[I(f"s_add_u32 s{sCur}, s{sCur}, {SLOT}"), I(f"s_cmp_ge_u32 s{sCur}, s{sEnd}"), I(f"s_cselect_b32 s{sCur}, s{sW4}, s{sCur}")])
        if r==5 and not lead:
            put(ex,13,[I(f"s_add_u32 s{sT}, s{sT}, 1")])
            put(ex,15,[I(f"s_cmp_lt_u32 s{sT}, 4")]); put(ex,16,[I("s_cbranch_scc1 LloopA")])
        out+=step(6*b+1+r,ex,post)
    return out
def loopA(t):
    n=12+3*t
    d=[(n+k//4,k%4) for k in range(12)]
    return blockA(2*t+2,d[:6])+blockA(2*t+3,d[6:])

def ostore(reg,j,pol):
    p=f" {pol}" if pol else ""
    o=f" offset:{1024*j}" if j else ""
    return I(f"buffer_store_dwordx4 {vr(reg)}, v{vKVB}, {sr(sO)}, s{sSt} offen{o}{p}")
def blockB(b,t):
    reads=frag_reads(1,b+1); tag=f"h1KV{b+1}"
    out=[]; lead=(b%2==0)
    rp,wp=(sPo,sPe) if lead else (sPe,sPo)
    rx=sXo if lead else sXe
    u0=0 if lead else 2
    dr=[I(f"ds_read_b128 {vr(DR[k])}, v{vD[k]}"+(f" offset:{1024*(u0+k)}" if u0+k else ""), src=f"O{t+2}", slot=slotQ(t+2), private=True) for k in range(2)]
    plan=["VRD","RRR","XDR","RRD","RRR","RRD"]
    nr=0; nd=0
    for r in range(6):
        ex={}; post={}
        if r==0:
            put(ex,0,[I(f"s_waitcnt vmcnt({12 if lead else 10}) lgkmcnt(0)", need=tag, loose_ok=True)])
            put(ex,1,BAR())
            put(ex,2,[I(f"s_mov_b32 m0, s{wp}")]); put(ex,3,[I(f"s_xor_b32 s{rp}, s{rp}, s{rx}")])
            if lead: spread(ex,6,[I(f"s_cmp_lt_u32 s{sT}, 3"), I(f"s_cselect_b32 s{sA+2}, s{sA+2}, 0"), I(f"s_cselect_b32 s{sB+2}, s{sB+2}, 0")])
        for g,c in zip(FREE,plan[r]):
            if c=='V': put(ex,g,setrd(rp))
            if c=='R': put(ex,g,reads[nr:nr+2]); nr+=2
            if c=='X': put(ex,g,dr)
            if c=='D': put(ex,g,[dma(nd,f"h1KV{b+4}",slotKV(1,b+4),va=vKVA,vb=vKVB)]); nd+=1
        if r==3:
            put(ex,2,[I("s_waitcnt lgkmcnt(2)")]); put(ex,3,[ostore(DR[0],u0,cfg.st)])
        if r==5:
            put(ex,3,[ostore(DR[1],u0+1,cfg.st)])
        if r==0: put(ex,4,[I(f"s_add_u32 s{sOff}, s{sOff}, 8192")])
        if r==5 and not lead:
            put(ex,9,[I(f"s_add_u32 s{sSt}, s{sSt}, 4096")])
            put(ex,13,[I(f"s_add_u32 s{sT}, s{sT}, 1")])
            put(ex,15,[I(f"s_cmp_lt_u32 s{sT}, 4")])
            put(post,3,[I(f"v_add_u32 v{vD[0]}, {SLOT}, v{vD[0]}"), I(f"v_add_u32 v{vD[1]}, {SLOT}, v{vD[1]}")])
            put(ex,16,[I("s_cbranch_scc1 LloopB")])
        out+=step(72+6*b+1+r,ex,post)
    assert nr==24 and nd==4
    return out
def loopB(t): return blockB(2*t+2,t)+blockB(2*t+3,t)

def tagexp(o,tag):
    if tag:
        h=0 if tag[0]=='O' else 1
        for x in o:
            x.meta['expect']={r:f"O{h}n12" for r in x.rd if (r[0]=='v' and r[1]>=64) or (r[0]=='a' and 224<=r[1]<248)}
    return o
def e_head(s,bad,tag,rc):
    o=[I(f"v_accvgpr_read_b32 v{T2}, a{Lr(s)}"), I(f"v_rcp_f32 v{rc}, v{T2}")]
    o.append(I(f"v_cmp_nge_f32 s[62:63], s{sThr}, v{T2}") if bad is not None else I("s_nop 0"))
    if bad is not None: o.append(I(f"s_or_b64 s[{bad}:{bad+1}], s[{bad}:{bad+1}], s[62:63]"))
    return tagexp(o,tag)
def e_pk(s,dt,tag,rc):
    a=O(s,dt)
    return tagexp([I(f"v_pk_mul_f32 {vr(a+k,2)}, {vr(a+k,2)}, v[{rc}:{rc+1}] op_sel_hi:[1,0]") for k in (0,2)],tag)
def e_cvt(s,dt,tag):
    a=O(s,dt)
    return tagexp([I(f"v_cvt_pk_bf16_f32 v{a}, v{a}, v{a+1}"), I(f"v_cvt_pk_bf16_f32 v{a+1}, v{a+2}, v{a+3}")],tag)
def e_wr(s,dt,off,slot,tag,regs=vW):
    of=off+(dt>>2)*128
    return tagexp([I(f"ds_write_b64 v{regs[dt&3]}, {vr(O(s,dt),2)}"+(f" offset:{of}" if of else ""), wslot=slot, wtag=tag)],tag)[0]
def epi_rd(s, off, slot, tag=None, regs=vR):
    o=[]
    for j in range(4):
        of=off+1024*j
        m=dict(src=tag,slot=slot,private=True) if tag else {}
        o.append(I(f"ds_read_b128 {vr(O(s,2*j))}, v{regs[j&1]}"+(f" offset:{of}" if of else ""), **m))
    return o
def epi_st(s,pol,tag=None):
    o=[ostore(O(s,2*j),j,pol) for j in range(4)]
    if tag:
        for x in o: x.meta['expect']={r:tag for r in x.data}
    return o
def epi(s,off,slot,bad=None,tag=None,regs=vW):
    o=e_head(s,bad,tag,T1)
    for dt in range(8): o+=e_pk(s,dt,tag,T1)
    for dt in range(8): o+=e_cvt(s,dt,tag)
    for dt in range(8): o.append(e_wr(s,dt,off,slot,tag,regs))
    return o

class Epi:
    def __init__(s): s.tiles=[]; s.cv=[]; s.wr=[]; s.rd=[]; s.st=[]; s.info={}
    def add(s,sub,avail,off,slot,bad,tag,direct,pol,pre=()):
        s.info[sub]=dict(off=off,slot=slot,bad=bad,tag=tag,direct=direct,pol=pol,pre=list(pre))
        s.tiles+=[(avail,sub,dt) for dt in range(8)]
    def mem(s,nst):
        g=[]
        for _ in range(nst):
            if s.st: g.append(s.st.pop(0))
        rd=s.rd; s.rd=[]
        for sub in rd:
            I_=s.info[sub]; r=epi_rd(sub,I_['off'],I_['slot'],I_['tag']); g+=[[x] for x in r]
            st=epi_st(sub,I_['pol'],I_['tag'])
            s.st+=[[WL(r[1]),st[0]],[st[1]],[WL(r[3]),st[2]],[st[3],I(f"s_add_u32 s{sSt}, s{sSt}, 4096")]]
        for sub,dt in s.wr:
            I_=s.info[sub]
            g.append(([I_['pre'][dt]] if (I_['pre'] and dt<4) else [])+[e_wr(sub,dt,I_['off'],I_['slot'],I_['tag'])])
            if dt==7 and I_['direct']: s.rd.append(sub)
        s.wr=[]
        return g
    def chunk(s,i,n):
        take=[]
        while s.tiles and len(take)<n and s.tiles[0][0]<=i: take.append(s.tiles.pop(0)[1:])
        o=[]
        for sub,dt in s.cv: o+=e_cvt(sub,dt,s.info[sub]['tag']); s.wr.append((sub,dt))
        s.cv=[]
        for sub,dt in take:
            I_=s.info[sub]; rc=T1 if sub%2==0 else 14
            if dt==0: o+=e_head(sub,I_['bad'],I_['tag'],rc)
            o+=e_pk(sub,dt,I_['tag'],rc)
        k=max(1,len(take)-2) if s.tiles and s.tiles[0][0]<=i+1 else len(take)
        for sub,dt in take[:k]: o+=e_cvt(sub,dt,s.info[sub]['tag']); s.wr.append((sub,dt))
        s.cv=take[k:]
        return o
    def done(s): return not(s.tiles or s.cv or s.wr or s.rd or s.st)

def startA():
    o=[I("; ---- head A start")]
    f0=frag_reads(0,0); f1=frag_reads(0,1,base=SLOT); f2=frag_reads(0,2)
    o+=setrd(sW4)
    o.append(WV("h0Q0")); o+=BAR()
    o+=[qread(0,0,ks) for ks in range(4)]+f0[:8]
    seq=[]
    for s in (3,4,5): seq+=[('q',s,j) for j in range(4)]
    for b in (2,3,4,5): seq+=[('k',b,j) for j in range(4)]
    def dm():
        k,x,j=seq.pop(0)
        it=[]
        if j==0:
            it+=[setm0(slotQ(x) if k=='q' else slotKV(0,x)), I(f"s_add_u32 s{sTmp}, s{sTmp}, 4096") if k=='q' else I(f"s_add_u32 s{sOff}, s{sOff}, 8192")]
        it.append(qdma(0,x,j,sTmp) if k=='q' else kvdma(0,x,j))
        return it
    for i in range(-1,13):
        ex={}; post={}
        if i==-1:
            put(ex,-1,[WL(f0[0])])
            for k in range(8):
                put(ex,k,f0[8+2*k:10+2*k]+([WL(f0[k+1])] if k<7 else []))
            put(ex,7,dm()+dm())
            put(ex,7,[WV("h0KV1")]+BAR()+f1[:8])
            put(ex,17,[WL(f1[7])])
        else:
            if i==0:
                for k in range(8): put(ex,k,f1[8+2*k:10+2*k])
            if i==3: put(ex,0,[I("s_waitcnt lgkmcnt(0)")]); put(ex,1,BAR())
            if i%2==0 and i<=8:
                s=i//2+1
                qs=[qread(0,s,ks) for ks in range(4)]
                put(ex,2 if i else 8,dm()); put(ex,5 if i else 8,dm())
                if s==4: put(post,9,bias(QREGS,True))
                put(ex,10,[WV(f"h0Q{s}")]); put(ex,11,qs[:2]); put(ex,12,[qs[2]]); put(ex,13,[qs[3]])
                if s==5: put(post,16,bias(QREGS,False))
                put(ex,17,[WL(qs[3])])
            elif i==10:
                put(ex,0,[WV("h0KV2",True)]); put(ex,1,BAR())
                put(ex,2,[I(f"s_add_u32 s{sCur}, s{sW4}, {8*SLOT}")]); put(post,3,setrd(sCur))
                place(ex,f2[:8],lo=4,hi=12)
                put(ex,14,dm()); put(ex,16,dm())
                put(ex,17,[WL(f2[7])])
            elif i==12:
                place(ex,f2[8:],lo=0,hi=13)
                put(ex,14,dm()); put(ex,16,dm())
                put(ex,15,[I(f"s_mov_b32 s{sCur}, s{sW4}")])
                put(ex,17,[WV("h0KV3")])
            else:
                put(ex,5,dm()); put(ex,10,dm())
        o+=step(i,ex,post)
    assert not seq
    return o

def trans():
    o=[]
    f11=frag_reads(0,11); g0=frag_reads(1,0); g1=frag_reads(1,1,base=SLOT); g2=frag_reads(1,2)
    E=Epi()
    idxA={u:k for k,u in enumerate(LA)}
    for s in range(6):
        E.add(s,60+idxA[(11,s)]+2,(s%4)*SLOT,slotQ(s),sBad,f"O{s}",s<2,cfg.st,pre=(bias(vW,True) if s==4 else ()))
    Q=lambda s:[qread(1,s,k) for k in range(4)]
    q5=Q(5)
    R={61:f11[:8], 62:f11[8:16], 63:f11[16:24], 64:Q(0), 65:Q(1), 67:Q(2), 68:Q(3), 69:g0[:4], 70:g0[4:8], 71:g0[8:16], 72:g1[:8], 73:g0[16:24],
       74:g1[8:18], 75:g1[18:24], 76:Q(4), 78:q5, 81:g2[:4], 82:g2[4:8], 83:g2[8:16], 84:g2[16:24]}
    D={}
    for (k,x),steps in zip([('q',4),('q',5),('k',2),('k',3),('k',4),('k',5)],
                           [[61,62,63,64],[65,66,66,67],[69,70,71,72],[76,77,77,78],[79,79,80,80],[81,82,83,84]]):
        for j,i in enumerate(steps): D.setdefault(i,[]).append((k,x,j))
    for i in range(61,85):
        ex={}; post={}
        rs=R.get(i,[]); lo=0; hi=16
        q=unit(i+1); mx=(q[1]==0)
        if i==61:
            put(ex,0,[WV("h0KV11",True)]); put(ex,1,BAR()); put(post,2,setrd(sCur)); lo=3; hi=12
            put(ex,17,[WL(f11[7])])
            put(ex,2,[I(f"s_add_u32 s{sSt}, s{sH}, s{sQw}")])
        if i==64: put(ex,0,[WV("h1Q3")]); put(ex,7,[WL(f11[23])]); lo=1
        if i==69:
            put(ex,0,[WV("h1KV1",True)]); put(ex,1,BAR()); put(post,2,setrd(sW4)); lo=3
            put(ex,2,[I(f"s_add_u32 s{sOff}, s{sHn}, s{sKVw}")]); put(ex,3,[I(f"s_add_u32 s{sOff}, s{sOff}, 8192")])
        if i==70: hi=12; put(ex,17,[WL(g0[7])])
        if i==72: hi=12; put(ex,17,[WL(g1[7])])
        if i==73: hi=5; put(ex,7,[WL(g0[17])]); put(ex,11,[WL(g0[23])])
        if i==75: hi=6; put(ex,7,[WL(g1[17])]); put(ex,12,[WL(g1[23])]); put(post,9,bias(QREGS,True))
        if i==76: put(ex,0,[WV("h1Q4",True)]); put(ex,1,BAR()); lo=2
        if i==77: put(ex,15,[WL(R[76][3])])
        if i==78: put(ex,0,[WV("h1Q5")]); lo=1
        if i==79: put(ex,15,[WL(q5[3])]); put(post,5,bias(QREGS,False))
        if i==81:
            put(ex,0,[WV("h1KV2",True)]); put(ex,1,BAR())
            put(ex,2,[I(f"s_add_u32 s{sPe}, s{sW4}, {8*SLOT}")]); put(post,2,setrd(sPe)); lo=4
            put(ex,3,[I(f"s_add_u32 s{sPo}, s{sW4}, {2*SLOT}")])
        if i==82: hi=12; put(ex,17,[WL(g2[7])])
        if i==84: hi=12
        ch_n=cfg.rho
        mem=E.mem(2)
        ch=E.chunk(i,ch_n)
        free=[g for g in FREE if not(g==16 and (ch or mx)) and not (g==11 and mx)]
        place(ex,rs,lo=lo,hi=hi,free=free)
        dg=[]
        for (k,x,j) in D.get(i,[]):
            pre=[]
            if j==0:
                pre=[setm0(slotQ(x) if k=='q' else slotKV(1,x)), I(f"s_add_u32 s{sOff}, s{sOff}, {4096 if k=='q' else 8192}")]
            dg.append(pre+[qdma(1,x,j,sOff) if k=='q' else kvdma(1,x,j)])
        place(ex,dg,lo=max(lo,4),hi=16,free=free)
        qlast=max([g for g,v in ex.items() if any(x.meta.get('src','').startswith('h1Q') for x in v)]+[-1])
        need_after=any(kind(gr[-1])=='w' and any(x.meta.get('slot')==gr[-1].meta['wslot'] for x in rs) for gr in mem)
        place(ex,mem,lo=(qlast+1 if need_after else (2 if i in (69,76,81) else 0)),hi=15,free=free)
        put(post,16,ch)
        if i==84:
            spread(ex,0,[I(f"s_mov_b32 s{sT}, 0"), I(f"s_mov_b64 s[{sA}:{sA+1}], s[{sKA}:{sKA+1}]"), I(f"s_mov_b64 s[{sB}:{sB+1}], s[{sVB}:{sVB+1}]")])
            put(ex,17,[WV("h1KV3")])
        if i==83:
            put(post,16,bias(vW,False)+[I(f"v_add_u32 v{vD[k]}, {2*SLOT}, v{vR[k]}") for k in range(2)])
        o+=step(i,ex,post)
    assert E.done()
    return o

def tailB():
    o=[]
    f11=frag_reads(1,11)
    E=Epi()
    idx={u:k for k,u in enumerate(LB)}
    for s in range(5):
        sl=3+(s%3)
        E.add(s,132+idx[(11,s)]+2,(sl-2)*SLOT,sl,sBad2,f"P{s}",True,cfg.st2)
    for i in range(133,145):
        ex={}; post={}
        if i==133:
            put(ex,0,[WV("h1KV11",True)]); put(ex,1,BAR())
            put(ex,2,[I(f"s_xor_b32 s{sPo}, s{sPo}, s{sXo}")]); put(post,2,setrd(sPo))
            place(ex,f11[:8],lo=3,hi=12)
            put(ex,17,[WL(f11[7])])
            put(ex,14,[I(f"s_add_u32 s{sSt}, s{sHn}, s{sQw}")])
        if i==134: place(ex,f11[8:14])
        if i==135: place(ex,f11[14:20])
        if i==136: place(ex,f11[20:24],hi=5); put(ex,7,[WL(f11[19])]+TL()); put(ex,13,[WL(f11[23])])
        mem=E.mem(4)
        ch=E.chunk(i,cfg.rho2)
        lo=0 if i<143 else 8
        free=[g for g in FREE if not(g==16 and ch)] if i<144 else list(range(8,16))
        place(ex,mem,lo=lo,hi=15,free=free)
        put(post,16,ch)
        o+=step(i,ex,post)
    assert not E.tiles and not E.cv
    tag="P5"; sl=5; off=3*SLOT
    m1=[x for g in E.mem(8) for x in g]
    o+=m1
    hd=e_head(5,sBad2,tag,T1)
    o+=[I("s_nop 3")]+hd
    for dt in range(8): o+=e_pk(5,dt,tag,T1)
    o+=[x for g in E.mem(8) for x in g]
    for dt in range(8): o+=e_cvt(5,dt,tag)+([e_wr(5,dt-1,off,sl,tag)] if dt else [])
    o.append(e_wr(5,7,off,sl,tag))
    rd=epi_rd(5,off,sl,tag); o+=rd
    o+=[x for g in E.mem(8) for x in g]
    assert E.done()
    st=epi_st(5,cfg.st2,tag)
    for j in range(4): o+=[WL(rd[j]), st[j]]
    return o

def stamp(k):
    if not cfg.stamps: return []
    op="s_memrealtime" if (cfg.echo>=0 or cfg.rt) else "s_memtime"
    return [I(f"{op} s[{sStamp+4+2*k}:{sStamp+5+2*k}]", skip=True)]

def prologue():
    o=[]
    A=lambda t,**k: o.append(I(t,**k))
    A("s_cmp_ge_u32 s2, 256"); A("s_cbranch_scc1 Lend")
    A("s_load_dwordx4 s[4:7], s[0:1], 0"); A("s_load_dwordx4 s[8:11], s[0:1], 16")
    if cfg.stamps:
        A(f"s_load_dwordx2 s[{sDbg}:{sDbg+1}], s[0:1], 32")
        A(f"s_memtime s[{sStamp}:{sStamp+1}]"); A(f"s_memrealtime s[{sStamp+2}:{sStamp+3}]")
    if cfg.tl:
        A("s_mov_b64 s[90:91], 1"); A("s_memtime s[98:99]"); A("s_memrealtime s[100:101]")
    if cfg.cpf:
        A("s_getpc_b64 s[62:63]"); A("s_lshr_b32 s3, s2, 3"); A("s_lshl_b32 s3, s3, 10")
        A("v_and_b32 v1, 7, v0"); A("v_lshlrev_b32 v1, 7, v1"); A("v_add_u32 v1, s3, v1")
        A("global_load_dword v61, v1, s[62:63]")
    A("v_lshrrev_b32 v1, 6, v0"); A("v_and_b32 v0, 63, v0"); A("v_readfirstlane_b32 s3, v1")
    A(f"v_lshlrev_b32 v{vKVB}, 4, v0")
    A(f"v_lshrrev_b32 v2, 4, v0")
    A(f"v_lshlrev_b32 v3, 6, v2")
    A(f"v_xor_b32 v{vQB}, v{vKVB}, v3")
    A(f"v_add_u32 v{vQA}, 1056, v{vQB}")
    A(f"v_add_u32 v{vKVA}, 1056, v{vKVB}")
    A(f"s_mul_i32 s{sW4}, s3, {WREG}"); A(f"s_lshl_b32 s{sKVw}, s3, 11"); A(f"s_mul_i32 s{sQw}, s3, 24576")
    if cfg.diag=='l2only': A("s_and_b32 s62, s2, 7"); A(f"s_mul_i32 s{sH}, s62, {2*HEADB}")
    else: A(f"s_mul_i32 s{sH}, s2, {2*HEADB}")
    A(f"s_add_u32 s{sHn}, s{sH}, {HEADB}")
    for r in (sKA,sVB,sQA,sQB):
        A(f"s_mov_b32 s{r+2}, {TOTB+4096}"); A(f"s_mov_b32 s{r+3}, 0x20000")
    A(f"s_add_u32 s{sOff}, s{sH}, s{sKVw}")
    A(f"s_add_u32 s{sTmp}, s{sH}, s{sQw}")
    o.append(setm0(0))
    A("s_waitcnt lgkmcnt(0)")
    A(f"s_sub_u32 s{sKA}, s6, 1056"); A(f"s_subb_u32 s{sKA+1}, s7, 0")
    A(f"s_sub_u32 s{sVB}, s8, 2080"); A(f"s_subb_u32 s{sVB+1}, s9, 0")
    o+=[kvdma(0,0,j) for j in (0,2,1,3)]
    A(f"s_sub_u32 s{sQA}, s4, 1056"); A(f"s_subb_u32 s{sQA+1}, s5, 0")
    A(f"s_sub_u32 s{sQB}, s4, 32"); A(f"s_subb_u32 s{sQB+1}, s5, 0")
    def qd(s):
        o.append(setm0(slotQ(s)))
        A(f"s_add_u32 s{sTmp}, s{sTmp}, 4096" if s else "s_nop 0")
        o.extend(qdma(0,s,j,sTmp) for j in range(4))
    qd(0)
    o.append(setm0(1)); A(f"s_add_u32 s{sOff}, s{sOff}, 8192")
    o+=[kvdma(0,1,j) for j in (0,2,1,3)]
    A(f"s_mov_b64 s[{sA}:{sA+1}], s[{sKA}:{sKA+1}]"); A(f"s_mov_b64 s[{sB}:{sB+1}], s[{sVB}:{sVB+1}]")
    for r in (sA,sB):
        A(f"s_mov_b32 s{r+2}, {TOTB+4096}"); A(f"s_mov_b32 s{r+3}, 0x20000")
    A(f"s_movk_i32 s{sInc}, 8192")
    A(f"v_mov_b32 v{vA}, v{vKVA}"); A(f"v_mov_b32 v{vB}, v{vKVB}")
    A(f"s_mov_b32 s{sO}, s10"); A(f"s_mov_b32 s{sO+1}, s11"); A(f"s_mov_b32 s{sO+2}, {0 if cfg.diag else TOTB}"); A(f"s_mov_b32 s{sO+3}, 0x20000")
    A(f"s_mov_b32 s{sC}, 0x3e0293ee"); A(f"s_mov_b32 s{sNC}, 0xbe0293ee"); A(f"s_mov_b32 s{sThr}, 0x49800000")
    A(f"s_add_u32 s{sEnd}, s{sW4}, {NSLOT*SLOT}")
    A(f"s_add_u32 s{sQn}, s{sHn}, s{sQw}")
    A(f"s_mov_b32 s{sT}, 0")
    A(f"s_mov_b64 s[{sBad}:{sBad+1}], 0"); A(f"s_mov_b64 s[{sBad2}:{sBad2+1}], 0")
    A(f"s_add_u32 s{sXe}, s{sW4}, {8*SLOT}"); A(f"s_add_u32 s62, s{sW4}, {1*SLOT}"); A(f"s_xor_b32 s{sXe}, s{sXe}, s62")
    A(f"s_add_u32 s{sXo}, s{sW4}, {2*SLOT}"); A(f"s_xor_b32 s{sXo}, s{sXo}, s{sW4}")
    A("v_and_b32 v3, 7, v0"); A(f"v_mul_u32_u24 v{vKl}, 2080, v3")
    A("v_bfe_u32 v3, v0, 3, 1"); A(f"v_lshl_add_u32 v{vKl}, v3, 8, v{vKl}")
    A(f"v_lshl_add_u32 v{vKl}, v2, 4, v{vKl}"); A(f"v_subrev_u32 v{vKl}, s{sW4}, v{vKl}")
    A("v_bfe_u32 v3, v0, 2, 3"); A(f"v_mul_u32_u24 v{vVl}, 2080, v3")
    A("v_lshrrev_b32 v3, 5, v0"); A(f"v_lshl_add_u32 v{vVl}, v3, 8, v{vVl}")
    A("v_and_b32 v4, 3, v0"); A(f"v_lshl_add_u32 v{vVl}, v4, 3, v{vVl}")
    A(f"v_add_u32 v{vVl}, 1024, v{vVl}"); A(f"v_subrev_u32 v{vVl}, s{sW4}, v{vVl}")
    A(f"s_add_u32 s62, s{sW4}, {2*SLOT}")
    A("v_bfe_u32 v3, v0, 2, 1"); A("v_mul_u32_u24 v5, 2080, v3")
    A("v_bfe_u32 v3, v0, 3, 1"); A("v_lshl_add_u32 v5, v3, 10, v5")
    A("v_lshl_add_u32 v5, v4, 8, v5"); A("v_lshl_add_u32 v5, v2, 4, v5"); A(f"v_add_u32 v5, s62, v5")
    for ks in range(4):
        A(f"v_xor_b32 v3, {ks}, v4"); A(f"v_lshl_add_u32 v{vQ+ks}, v3, 6, v5")
    A("v_and_b32 v8, 15, v0"); A("v_xor_b32 v9, v8, v2"); A("v_lshlrev_b32 v10, 8, v2"); A("v_add_u32 v10, s62, v10")
    A(f"v_lshl_add_u32 v{vR[0]}, v9, 4, v10"); A("v_xor_b32 v9, 4, v9"); A(f"v_lshl_add_u32 v{vR[1]}, v9, 4, v10")
    A("v_lshlrev_b32 v10, 8, v8"); A("v_and_b32 v9, 1, v2"); A("v_lshl_add_u32 v10, v9, 3, v10"); A("v_add_u32 v10, s62, v10")
    A("v_lshrrev_b32 v9, 1, v2"); A("v_and_b32 v8, 7, v0"); A("v_xor_b32 v9, v9, v8")
    A("v_mov_b32 v11, 0x3f803f80"); A("v_cmp_eq_u32 s[62:63], 0, v4")
    for k in range(4):
        A(f"v_xor_b32 v8, {2*k}, v9"); A(f"v_lshl_add_u32 v{vW[k]}, v8, 4, v10")
    A("v_cndmask_b32 v11, 0, v11, s[62:63]")
    for k in range(4): A(f"v_accvgpr_write_b32 a{ONES+k}, v11")
    if cfg.warm:
        A(f"s_mov_b32 s62, {cfg.warm}"); A("Lwarm:")
        for k in range(8): A(f"v_mfma_f32_16x16x32_bf16 {vr(64+4*k)}, {vr(46)}, {vr(52)}, {vr(64+4*k)}")
        A("s_sub_u32 s62, s62, 1"); A("s_cmp_lg_u32 s62, 0"); A("s_cbranch_scc1 Lwarm")
    qd(1); qd(2)
    return o

def slow_path():
    o=[]
    A=lambda t,**k: o.append(I(t,**k))
    sP=sCur
    A("Lslow:")
    A("s_waitcnt vmcnt(0) lgkmcnt(0)")
    A(f"s_mul_i32 s{sP}, s3, {SLOT}")
    A(f"s_add_u32 s{sTmp}, s{sP}, s{sW4}")
    o+=setrd(sTmp)
    A(f"s_sub_u32 s62, s{sP}, {2*SLOT}")
    for k in range(4): A(f"v_add_u32 v{8+k}, s62, v{vQ+k}")
    A(f"s_mov_b32 m0, s{sTmp}")
    A(f"s_add_u32 s{sOff}, s{sH}, s{sQw}")
    for s in range(6):
        o+=[qdma(0,s,j,sOff) for j in range(4)]
        A("s_waitcnt vmcnt(0)")
        for ks in range(4): A(f"ds_read_b128 {ar(Qr(s,ks))}, v{8+ks}")
        A(f"s_add_u32 s{sOff}, s{sOff}, 4096")
        A("s_waitcnt lgkmcnt(0)")
    for s in range(6): A(f"v_mov_b32 v{MN+s}, 0xff800000")
    def loadkv():
        for j in range(4):
            A(f"s_add_u32 m0, s{sP}, {j*WREG}"); A("s_nop 0")
            o.extend(kvdma(0,0,jj) for jj in range(4))
            A(f"s_add_u32 s{sOff}, s{sOff}, 2048")
        A("s_waitcnt vmcnt(0)")
    A(f"s_mov_b32 s{sOff}, s{sH}"); A(f"s_mov_b32 s{sT}, 0")
    A("Lslow1:")
    loadkv()
    for i in range(8): o.append(I(kread(0,i,None,None).text))
    A("s_waitcnt lgkmcnt(0)")
    for s in range(6):
        o+=qk_mfmas(s,0,0)
        A("s_nop 7")
        S=SB[0]
        for e in range(0,8,2): A(f"v_max3_f32 v{MN+s}, v{MN+s}, v{S+e}, v{S+e+1}")
    A(f"s_add_u32 s{sT}, s{sT}, 1"); A(f"s_cmp_lt_u32 s{sT}, 12"); A("s_cbranch_scc1 Lslow1")
    for s in range(6):
        m=MN+s
        A(f"v_mov_b32 v{T1}, v{m}"); A("s_nop 1"); A(f"v_permlane16_swap_b32 v{m}, v{T1}"); A(f"v_max_f32 v{m}, v{m}, v{T1}")
        A(f"v_mov_b32 v{T1}, v{m}"); A("s_nop 1"); A(f"v_permlane32_swap_b32 v{m}, v{T1}"); A(f"v_max_f32 v{m}, v{m}, v{T1}")
        A(f"v_mul_f32 v{m}, s{sNC}, v{m}")
    for r in range(64,256): A(f"v_mov_b32 v{r}, 0")
    for r in range(224,248): A(f"v_accvgpr_write_b32 a{r}, 0")
    A(f"s_mov_b32 s{sOff}, s{sH}"); A(f"s_mov_b32 s{sT}, 0")
    A("Lslow2:")
    loadkv()
    for i in range(8): o.append(I(kread(0,i,None,None).text))
    A("s_waitcnt lgkmcnt(0)")
    for i in range(16):
        o.append(I(vread(0,i,None,None).text))
        if i==7: A("s_waitcnt lgkmcnt(0)")
    A("s_waitcnt lgkmcnt(0)")
    for s in range(6):
        o+=qk_mfmas(s,0,0)
        A("s_nop 7")
        for gp in sm_gaps(s,0,0): o+=gp
        A("s_nop 1")
        o+=pv_mfmas(s,0,0,False)
    A(f"s_add_u32 s{sT}, s{sT}, 1"); A(f"s_cmp_lt_u32 s{sT}, 12"); A("s_cbranch_scc1 Lslow2")
    A("s_nop 7")
    A(f"s_add_u32 s{sSt}, s{sH}, s{sQw}")
    A(f"s_sub_u32 s62, s{sP}, {2*SLOT}")
    for k in range(4): A(f"v_add_u32 v{8+k}, s62, v{vW[k]}")
    for k in range(2): A(f"v_add_u32 v{12+k}, s62, v{vR[k]}")
    for s in range(6):
        o+=epi(s,0,None,regs=[8,9,10,11])+epi_rd(s,0,None,regs=[12,13])+[I("s_waitcnt lgkmcnt(0)")]+epi_st(s,"")
        A(f"s_add_u32 s{sSt}, s{sSt}, 4096")
    A("s_branch Lslow_ret")
    for x in o:
        for k in ('tag','slot','wslot','wtag'): x.meta.pop(k,None)
    return o

def resolve(trace):
    vm=[]; lg=[]
    for x in trace:
        if x.label or x.meta.get('skip'): continue
        if 'auto_vm' in x.meta:
            idx=[k for k,y in enumerate(vm) if y.meta.get('tag')==x.meta['auto_vm']]
            n=min(63,len(vm)-1-max(idx)); x.text=x.text.replace("vmcnt(AUTO)",f"vmcnt({n})"); x.meta['loose_ok']=True
        if 'auto_lg' in x.meta:
            k=[i for i,y in enumerate(lg) if y is x.meta['auto_lg']]
            assert k, "WL target not issued before wait: "+x.meta['auto_lg'].text
            n=min(15,len(lg)-1-k[0]); x.text=x.text.replace("lgkmcnt(AUTO)",f"lgkmcnt({n})")
        if x.kind=='vmem': vm.append(x)
        if x.kind=='ds': lg.append(x)

def build():
    P=prologue(); SA=startA(); TR=trans(); TB=tailB()
    txt=lambda L:[x.text for x in L if not x.text.startswith(';')]
    for t in range(4):
        assert txt(loopA(t))==txt(loopA(0)); assert txt(loopB(t))==txt(loopB(0))
    trace=P+SA
    for t in range(4): trace+=loopA(t)
    trace+=TR
    for t in range(4): trace+=loopB(t)
    trace+=TB
    resolve(trace)
    trace=[x for x in trace if not x.meta.get('skip')]
    probs=check_trace(trace)
    sp=slow_path()
    probs+=check_trace(sp+slow_path())
    seen=set()
    for p in probs:
        if p not in seen: print(p); seen.add(p)
    S=list(P)
    S+=stamp(0)+SA+stamp(1)
    nd=(lambda L:[x for x in L if not getattr(x,'dma',False)]) if cfg.diag=='nodma' else (lambda L:L)
    S+=[I(".p2align 3"),I("LloopA:")]+nd(loopA(0))
    S+=stamp(2)+nd(TR)+stamp(3)
    S+=[I(".p2align 3"),I("LloopB:")]+nd(loopB(0))
    S+=stamp(4)+TB+stamp(5)
    if cfg.slow:
        S+=[I(f"s_or_b64 s[62:63], s[{sBad}:{sBad+1}], s[{sBad2}:{sBad2+1}]"),
            I("s_waitcnt vmcnt(24)"), I("s_barrier"), I("s_cbranch_scc1 Lslow_entry")]
    S+=[I("Lfin:")]
    if cfg.stamps:
        S+=[I("s_waitcnt vmcnt(0)"), I(f"s_memtime s[{sStamp+16}:{sStamp+17}]"), I(f"s_memrealtime s[{sStamp+18}:{sStamp+19}]"), I("s_waitcnt lgkmcnt(0)")]
        if cfg.echo>=0:
            esrc=[sStamp+2]+[sStamp+4+2*k for k in range(6)]+[sStamp+18]
            S+=[I(f"s_add_u32 s62, s{esrc[cfg.echo]}, 10000"), I("Lspin:"), I("s_sleep 2"), I("s_memrealtime s[88:89]"), I("s_waitcnt lgkmcnt(0)"),
                I("s_sub_u32 s63, s88, s62"), I("s_cmp_lt_i32 s63, 0"), I("s_cbranch_scc1 Lspin")]
        S+=[I(f"v_mov_b32 v8, s{sStamp+2}"), I(f"v_mov_b32 v9, s{sStamp+18}")]
        srcs=[sStamp+4+2*k for k in range(6)]+[sStamp+(18 if cfg.rt else 16)]
        for k,r in enumerate(srcs):
            S+=[I(f"s_sub_u32 s{sTmp}, s{r}, s{sStamp+(2 if cfg.rt else 0)}"), I(f"v_mov_b32 v{10+k}, s{sTmp}")]
        S+=[I("v_mov_b32 v17, 0"), I("v_mov_b32 v18, 0")]
        S+=[I("s_getreg_b32 s62, hwreg(HW_REG_XCC_ID)"), I("v_mov_b32 v19, s62")]
        S+=[I(f"s_mov_b32 s24, s{sDbg}"), I(f"s_mov_b32 s25, s{sDbg+1}"), I(f"s_mov_b32 s26, {cfg.dbgsz}"), I("s_mov_b32 s27, 0x20000"),
            I("s_lshl_b32 s62, s2, 8"), I("s_lshl_b32 s63, s3, 6"), I("s_add_u32 s62, s62, s63"), I("v_mov_b32 v1, 0")]
        if cfg.tl:
            S+=TL()+[I("s_waitcnt lgkmcnt(0)")]+TL()+[I("s_lshl_b32 s61, s62, 3"), I("s_add_u32 s61, s61, 65536"), I(f"v_lshrrev_b32 v5, 2, v{vKVB}"),
                I("buffer_store_dword v0, v5, s[24:27], s61 offen"), I("buffer_store_dword v61, v5, s[24:27], s61 offen offset:256")]
        S+=[I("s_mov_b64 exec, 1"),
            I("buffer_store_dwordx4 v[8:11], v1, s[24:27], s62 offen"), I("buffer_store_dwordx4 v[12:15], v1, s[24:27], s62 offen offset:16"), I("buffer_store_dwordx4 v[16:19], v1, s[24:27], s62 offen offset:32")]
    S+=[I("Lend:"), I("s_endpgm")]
    if cfg.slow:
        S+=[I("Lslow_entry:"), I(f"s_cmp_lg_u64 s[{sBad}:{sBad+1}], 0"), I("s_cbranch_scc1 Lslow"),
            I("Lslow_ret:"), I(f"s_cmp_eq_u64 s[{sBad2}:{sBad2+1}], 0"), I("s_cbranch_scc1 Lfin"),
            I(f"s_mov_b64 s[{sBad2}:{sBad2+1}], 0"), I(f"s_mov_b32 s{sH}, s{sHn}")]
        S+=sp
    if not cfg.slow: S+=[I(".fill 2048, 4, 0xbf810000")]
    return S, bool([p for p in probs if not p.startswith("NOTE")])

from gen import HDR, FTR
def write(fn):
    S,bad=build()
    with open(fn,"w") as f:
        f.write(HDR%(LDSB,NAME,NAME,NAME))
        for x in S:
            t=x.text
            f.write((t if (t.endswith(':') or t.startswith('.')) else "    "+t)+"\n")
        f.write(FTR%NAME)
    return bad
if __name__=="__main__":
    ap=argparse.ArgumentParser()
    ap.add_argument("out"); ap.add_argument("opts",nargs="*")
    a=ap.parse_args()
    for kv in a.opts:
        k,v=kv.split("=",1)
        cur=getattr(cfg,k)
        setattr(cfg,k, (v in("1","True","true")) if isinstance(cur,bool) else (int(v) if isinstance(cur,int) else v.replace("+"," ")))
    bad=write(a.out)
    from mkco import build as mk
    print(mk(a.out), "PROBLEMS" if bad else "clean")
```

```python
import sys, argparse, re
sys.path.insert(0,'work')
from asmlib import I, check_trace
NAME="standalone__gqa_softmax__near_ridge_kernel"
SLOT=16640; WREG=4160; NSLOT=9
LDSB=NSLOT*SLOT
HEADB=98304
TOTB=50331648

class Cfg:
    ld="nt"; st="sc1"; st2="nt"
    stamps=False; rt=False; tl=False; dbgsz=0x400000; echo=-1
    slow=True
    place="D"
    cpf=True
    rho=3; rho2=6
    warm=0
    late=1
    fill=0; padA=0; padN=2; skipd=0
    lazy=4; lazyB=0; early=0
    loc=2
    diag=''
cfg=Cfg()

def O(s,dt): return 64+32*s+4*dt
SB=[16,24]; PB=[32,36]
MN=40
vK,vV,vKl,vVl=46,47,48,49
vA,vB=50,51
vQ=52
vW=[5,6,7,62]
vR=[56,63]
vD=[50,51]
vKVA,vKVB,vQA,vQB=57,58,59,60
vL=15
def QINC(): return 16384 if cfg.loc>=2 else 4096
T0,T1,T2,T3=1,2,3,4
DR=[8,12]
def Qr(s,ks): return 16*s+4*ks
def Kf(par,i): return 96+32*par+4*i
def Vf(par,dt): return 160+32*par+4*dt
def Lr(s): return 224+4*s
ONES=248
sA,sB,sO,sKA,sVB,sQA,sQB=12,16,20,24,28,32,36
sOff,sInc,sCur,sC,sH,sW4,sT,sPe,sEnd,sKVw,sQw,sThr=40,41,42,43,44,45,46,47,48,49,50,51
sBad=52
sTmp,sSt,sNC,sHn,sDbg=55,57,58,59,60
sStamp=64
sQn,sM=84,86
sPo,sXe,sXo,sBad2=92,93,94,96

def vr(a,n=4): return f"v[{a}:{a+n-1}]"
def ar(a,n=4): return f"a[{a}:{a+n-1}]"
def sr(a,n=4): return f"s[{a}:{a+n-1}]"

def slotKV(h,b):
    if b<2: return b
    if h==0: return (6+b)%9
    return [8,0,1,2][(b-2)%4]
def slotQ(s): return 2+s
def pair(n):
    if n<18: return (f"h0KV{n-6}", n%9)
    if n<20: return (f"h1KV{n-18}", n%9)
    if n<26: return (f"h1Q{n-20}", n%9)
    raise ValueError
UOFF=[0,1024,2080,3104]
def dma(j, tag, slot, A=sA, B=sB, va=vA, vb=vB, off=sOff):
    srd=[A,B,A,B][j]; vo=[va,va,vb,vb][j]; imm=UOFF[j]
    o=f" offset:{imm}" if imm else ""
    p=f" {cfg.ld}" if cfg.ld else ""
    return I(f"buffer_load_dwordx4 v{vo}, {sr(srd)}, s{off} offen{o}{p} lds", tag=tag, slot=slot)
def kvdma(h,b,j,off=sOff): return dma(j,f"h{h}KV{b}",slotKV(h,b),A=sKA,B=sVB,va=vKVA,vb=vKVB,off=off)
def qdma(h,s,j,off): return dma(j,f"h{h}Q{s}",slotQ(s),A=sQA,B=sQB,va=vQA,vb=vQB,off=off)
def setm0(slot): return I(f"s_add_u32 m0, s{sW4}, {slot*SLOT}") if slot else I(f"s_mov_b32 m0, s{sW4}")
def kread(par,i,tag,slot,base=0):
    kt,ks=divmod(i,4)
    return I(f"ds_read_b128 {ar(Kf(par,i))}, v{vK} offset:{base+kt*512+ks*64}", src=tag, slot=slot)
def vread(par,i,tag,slot,base=0):
    dt,jj=divmod(i,2)
    return I(f"ds_read_b64_tr_b16 {ar(Vf(par,dt)+2*jj,2)}, v{vV} offset:{base+jj*512+dt*32}", src=tag, slot=slot)
def frag_reads(h,b,base=0):
    tag=f"h{h}KV{b}"; sl=slotKV(h,b); par=b&1
    return [kread(par,i,tag,sl,base) for i in range(8)]+[vread(par,i,tag,sl,base) for i in range(16)]
def qaddr(s): return (vQ,(s%4)*SLOT)
def bias(regs,up): return [I(f"{'v_add_u32' if up else 'v_subrev_u32'} v{r}, {4*SLOT}, v{r}") for r in regs]
QREGS=[vQ+k for k in range(4)]
def qread(h,s,ks):
    a,off=qaddr(s)
    return I(f"ds_read_b128 {ar(Qr(s,ks))}, v{a+ks}"+(f" offset:{off}" if off else ""), src=f"h{h}Q{s}", slot=slotQ(s), private=True)
def qk_mfmas(s,kpar,sb,u=None):
    o=[]
    for i in range(8):
        kt,ks=divmod(i,4); d=SB[sb]+4*kt
        x=I(f"v_mfma_f32_16x16x32_bf16 {vr(d)}, {ar(Kf(kpar,i))}, {ar(Qr(s,ks))}, {'0' if ks==0 else vr(d)}")
        if u:
            x.meta['expect']={**{r:f"h{u[0]}KV{u[1]}" for r in x.A}, **{r:f"h{u[0]}Q{u[2]}" for r in x.B}}
            x.meta['set']={r:f"S{u}" for r in x.wr}
        o.append(x)
    return o
def pv_mfmas(s,vpar,pb,first,u=None):
    o=[]
    for dt in range(8):
        d=O(s,dt)
        o.append(I(f"v_mfma_f32_16x16x32_bf16 {vr(d)}, {ar(Vf(vpar,dt))}, {vr(PB[pb])}, {'0' if first else vr(d)}"))
    o.append(I(f"v_mfma_f32_16x16x32_bf16 {ar(Lr(s))}, {ar(ONES)}, {vr(PB[pb])}, {'0' if first else ar(Lr(s))}"))
    if u:
        cnt=sum(1 for y in UNITS[:UNITS.index(u)] if y[0]==u[0] and y[2]==u[2])
        for k,x in enumerate(o):
            e={r:f"P{u}" for r in x.B}
            if k<8: e.update({r:f"h{u[0]}KV{u[1]}" for r in x.A})
            if not first: e.update({r:f"O{u[0]}n{cnt}" for r in x.wr})
            x.meta['expect']=e; x.meta['set']={r:f"O{u[0]}n{cnt+1}" for r in x.wr}
    return o
FREE=(5,11,16)
def sm_gaps(s,sb,pb,u=None):
    S=SB[sb]; P=PB[pb]
    T=(lambda **k:k) if u else (lambda **k:{})
    f=lambda e: I(f"v_fma_f32 v{S+e}, v{S+e}, s{sC}, v{MN+s}", **T(expect={('v',S+e):f"S{u}",('v',MN+s):f"M{u and u[0]}"}))
    x=lambda e: I(f"v_exp_f32 v{S+e}, v{S+e}", **T(expect={('v',S+e):f"S{u}"}))
    c=lambda e: I(f"v_cvt_pk_bf16_f32 v{P+e//2}, v{S+e}, v{S+e+1}", **T(expect={('v',S+e):f"S{u}",('v',S+e+1):f"S{u}"}, set={('v',P+e//2):f"P{u}"}))
    return [[f(0),f(1)],[x(0)],[x(1)],[f(2),f(3)],[x(2)],[],[x(3)],[f(4),f(5)],[x(4)],[x(5)],[f(6),f(7)],[],[x(6)],[x(7)],[c(0),c(2)],[c(4),c(6)],[]]
def max_seq(s,sb,h):
    S=SB[sb]
    return [I(f"v_max3_f32 v{T0}, v{S}, v{S+1}, v{S+2}"), I(f"v_max3_f32 v{T3}, v{S+3}, v{S+4}, v{S+5}"),
            I(f"v_max3_f32 v{T0}, v{T0}, v{S+6}, v{S+7}"), I(f"v_max_f32 v{T0}, v{T0}, v{T3}"),
            I(f"v_mov_b32 v{T3}, v{T0}"), I(f"v_permlane16_swap_b32 v{T0}, v{T3}"),
            I(f"v_max_f32 v{T0}, v{T0}, v{T3}"), I(f"v_mov_b32 v{T3}, v{T0}"),
            I(f"v_permlane32_swap_b32 v{T0}, v{T3}"), I(f"v_max_f32 v{T0}, v{T0}, v{T3}"),
            I(f"v_mul_f32 v{MN+s}, s{sNC}, v{T0}", set={('v',MN+s):f"M{h}"})]
MAXG=[11,11,12,12,12,13,14,14,15,16,16]

FA=[(b,s) for s in range(6) for b in (0,1)]
LA=[(10,0),(10,1),(10,2),(11,0),(11,1),(10,3),(11,2),(10,4),(11,3),(10,5),(11,4),(11,5)]
FB=[(0,0),(0,1),(1,0),(0,2),(1,1),(0,3),(1,2),(0,4),(1,3),(0,5),(1,4),(1,5)]
LB=[(10,0),(10,1),(10,2),(11,0),(11,1),(11,2),(10,3),(11,3),(10,4),(11,4),(10,5),(11,5)]
MID=[(b,s) for b in range(2,10) for s in range(6)]
UNITS=[(0,)+u for u in FA+MID+LA]+[(1,)+u for u in FB+MID+LB]
def unit(i): return UNITS[i] if 0<=i<len(UNITS) else None
def put(ex,g,items): ex.setdefault(g,[]).extend(items)

def step(i, ex=None, post=None):
    ex=ex or {}; post={k:list(v) for k,v in (post or {}).items()}
    q,m,p=unit(i+1),unit(i),unit(i-1)
    mf=(qk_mfmas(q[2],q[1]&1,(i+1)&1,q) if q else [None]*8)+(pv_mfmas(p[2],p[1]&1,(i-1)&1,p[1]==0,p) if p else [None]*9)
    g=sm_gaps(m[2],i&1,i&1,m) if m else [[] for _ in range(17)]
    tailmax=[]
    if q and q[1]==0:
        ms=max_seq(q[2],(i+1)&1,q[0])
        if p and m:
            for gg,x in zip(MAXG,ms): g[gg]=g[gg]+[x]
        else:
            for x in ms:
                if x.op.startswith('v_permlane'): tailmax.append(I("s_nop 1"))
                tailmax.append(x)
    out=[I(f"; ---- step {i}  qk{q} sm{m} pv{p}")]
    out+=ex.get(-1,[])
    for k in range(17):
        if mf[k] is not None: out.append(mf[k])
        out+=ex.get(k,[])
        out+=g[k]
        out+=post.get(k,[])
    out+=tailmax
    out+=ex.get(17,[])
    return out


def setrd(reg): return [I(f"v_add_u32 v{vK}, s{reg}, v{vKl}"), I(f"v_add_u32 v{vV}, s{reg}, v{vVl}")]
def free_gaps(ex,lo,n,avoid=()):
    return [x for x in range(lo,17) if x not in FREE and x not in ex and x not in avoid][:n]
def spread(ex,lo,items,avoid=()):
    gs=free_gaps(ex,lo,len(items),avoid)
    assert gs
    while len(gs)<len(items): gs.append(gs[-1])
    for x,i in zip(gs,items): put(ex,x,[i])
def TL():
    if not cfg.tl: return []
    r=[I("s_mov_b64 exec, s[90:91]"), I("v_mov_b32 v0, s98"), I("v_mov_b32 v61, s100"), I("s_mov_b64 exec, -1"), I("s_lshl_b64 s[90:91], s[90:91], 1"), I("s_memtime s[98:99]"), I("s_memrealtime s[100:101]")]
    for x in r: x.meta['skip']=True
    return r
def BAR(): return [I("s_barrier")]+TL()
def WV(tag,lg0=False): return I("s_waitcnt vmcnt(AUTO)"+(" lgkmcnt(0)" if lg0 else ""), auto_vm=tag, need=tag)
def WL(x): return I("s_waitcnt lgkmcnt(AUTO)", auto_lg=x)

def kind(x):
    if x.op.startswith('ds_read'): return 'r'
    if x.op.startswith('ds_write'): return 'w'
    if getattr(x,'dma',False): return 'd'
    if getattr(x,'store',False): return 's'
    return 'a'
def gapcost(ks,free):
    if not ks: return 0
    U={'r':4,'d':6,'w':12,'s':12,'a':4}
    c=sum(U[k] for k in ks)
    if ks[0]=='a': c-=4
    if len(ks)==1 and ks[0]=='d': c=4 if not free else 8
    for p,q in zip(ks,ks[1:]):
        if p=='w' and q=='r': c+=12
    st=12*ks.count('s')
    if free: return st+max(0,c-st-8)
    return c+4*max(0,len([k for k in ks if k!='a'])-1)
def place(ex,groups,lo=0,hi=16,free=FREE):
    groups=[g if isinstance(g,list) else [g] for g in groups]
    n=len(groups)
    if not n: return
    import functools
    base={g:[kind(x) for x in ex.get(g,[]) if not x.label and not x.meta.get('skip')] for g in range(17)}
    @functools.lru_cache(None)
    def f(g,i):
        if i==n: return (0,())
        if g>hi: return (1e9,())
        best=(1e9,())
        for m in range(0,min(4,n-i)+1):
            ks=base[g]+[kind(x) for gr in groups[i:i+m] for x in gr]
            c=gapcost(ks,g in free)-gapcost(base[g],g in free)
            c+=0.01*sum(abs(g-(lo+(hi-lo)*(j+0.5)/n)) for j in range(i,i+m))
            r=f(g+1,i+m)
            if c+r[0]<best[0]: best=(c+r[0],(g,)*m+r[1])
        return best
    c,gs=f(lo,0)
    assert len(gs)==n
    for g,gr in zip(gs,groups): put(ex,g,gr)

ADV=lambda inc: [I(f"s_add_u32 m0, m0, {SLOT}"), I(f"s_cmp_ge_u32 m0, s{sEnd}"), I(f"s_cselect_b32 m0, s{sW4}, m0"), I(f"s_add_u32 s{sOff}, s{sOff}, {inc}")]
def pdma(n,j):
    tg,sl=pair(n)
    if 'Q' in tg: return dma(j,tg,sl,A=sQA,B=sQB,va=vQA,vb=vQB)
    return dma(j,tg,sl,A=sKA,B=sVB,va=vKVA,vb=vKVB)
def blockA(b,pairs,lab,last,nv,lazy):
    reads=frag_reads(0,b+1); tag=f"h0KV{b+1}"
    out=[]; lead=(b%2==0)
    inc=QINC() if 'Q' in pair(pairs[0])[0] else 8192
    if len(pairs)==2: dpos={0:[(0,0,11)],1:[(0,1,3),(0,2,11)],2:[(0,3,11)],3:[(1,0,11)],4:[(1,1,3),(1,2,11)],5:[(1,3,14)]}; advr=(0,3)
    else: dpos={0:[(0,0,11)],1:[],2:[(0,1,11)],3:[(0,2,11)],4:[],5:[(0,3,14)]}; advr=(0,)
    for r in range(6):
        ex={}; post={}
        if r==0:
            put(ex,0,[I(f"s_waitcnt vmcnt({nv}) lgkmcnt(0)", need=tag, loose_ok=True)])
            put(ex,1,BAR())
            put(post,4,setrd(sCur))
        rg=(5,16) if r<5 else (5,11)
        if lazy:
            gs=[6,8,12,13] if r<5 else [2,6,8,9]
            for k in range(4):
                if k<lazy: put(post,gs[k],[reads[4*r+k]])
            rest=reads[4*r+lazy:4*r+4]
            if rest: put(ex,16 if r<5 else 11,rest)
        else:
            put(ex,rg[0],reads[4*r:4*r+2]); put(ex,rg[1],reads[4*r+2:4*r+4])
        for (p,j,g) in dpos[r]: put(ex,g,[pdma(pairs[p],j)])
        if r in advr: spread(ex,2,ADV(inc))
        if r==3: put(ex,15,[I(f"s_waitcnt lgkmcnt({4+min(lazy,4) if lazy else 6})")])
        if r==5:
            spread(ex,0,[I(f"s_add_u32 s{sCur}, s{sCur}, {SLOT}"), I(f"s_cmp_ge_u32 s{sCur}, s{sEnd}"), I(f"s_cselect_b32 s{sCur}, s{sW4}, s{sCur}")])
        if r==5 and not lead:
            put(ex,13,[I(f"s_add_u32 s{sT}, s{sT}, 1")])
            put(ex,15,[I(f"s_cmp_lt_u32 s{sT}, {last}")]); put(ex,16,[I(f"s_cbranch_scc1 {lab}")])
        out+=step(6*b+1+r,ex,post)
    return out
def loopA1(t):
    n=12+4*t
    return blockA(2*t+2,[n,n+1],"LloopA1",2,16,cfg.lazy)+blockA(2*t+3,[n+2,n+3],"LloopA1",2,12,cfg.lazy)
def loopA2(t):
    n=20+2*(t-2)
    return blockA(2*t+2,[n],"LloopA2",4,24,0)+blockA(2*t+3,[n+1],"LloopA2",4,24,0)
def midA(): return [I(f"s_sub_u32 s{sOff}, s{sQn}, {QINC()}")]

sO2=4
def ostore(reg,j,pol):
    p=f" {pol}" if pol else ""
    if cfg.loc>=2:
        return I(f"buffer_store_dwordx4 {vr(reg)}, v{vKVB if j&1 else vKVA}, {sr(sO2 if j>=2 else sO)}, s{sSt} offen{' offset:2080' if j&1 else ''}{p}")
    o=f" offset:{1024*j}" if j else ""
    return I(f"buffer_store_dwordx4 {vr(reg)}, v{vKVA if cfg.loc else vKVB}, {sr(sO)}, s{sSt} offen{o}{p}")
def blockB(b,t):
    reads=frag_reads(1,b+1); tag=f"h1KV{b+1}"
    out=[]; lead=(b%2==0)
    rp,wp=(sPo,sPe) if lead else (sPe,sPo)
    rx=sXo if lead else sXe
    u0=0 if lead else 2
    dr=[I(f"ds_read_b128 {vr(DR[k])}, v{vD[k]}"+(f" offset:{1024*(u0+k)}" if u0+k else ""), src=f"O{t+2}", slot=slotQ(t+2), private=True) for k in range(2)]
    plan=["VRD","RRR","XDR","RRD","RRR","RRD"] if not cfg.late else ["VRD","RRR","RDR","RRD","RRD","RR-"]
    nr=0; nd=0
    for r in range(6):
        ex={}; post={}
        if r==0:
            put(ex,0,[I(f"s_waitcnt vmcnt({8 if cfg.late else (12 if lead else 10)}) lgkmcnt(0)", need=tag, loose_ok=True)])
            put(ex,1,BAR())
            put(ex,2,[I(f"s_mov_b32 m0, s{wp}")]); put(ex,3,[I(f"s_xor_b32 s{rp}, s{rp}, s{rx}")])
            if lead and not cfg.late: spread(ex,6,[I(f"s_cmp_lt_u32 s{sT}, 3"), I(f"s_cselect_b32 s{sA+2}, s{sA+2}, 0"), I(f"s_cselect_b32 s{sB+2}, s{sB+2}, 0")])
        for g,c in zip(FREE,plan[r]):
            if c=='V': put(ex,g,setrd(rp))
            if c=='R': put(ex,g,reads[nr:nr+2]); nr+=2
            if c=='X': put(ex,g,dr)
            if c=='D': put(ex,g,[dma(nd,f"h1KV{b+4}",slotKV(1,b+4),va=vKVA,vb=vKVB)]); nd+=1
        if r==3 and cfg.late: put(ex,15,[I("s_waitcnt lgkmcnt(8)")])
        if r==3 and not cfg.late:
            put(ex,2,[I("s_waitcnt lgkmcnt(2)")]); put(ex,3,[ostore(DR[0],u0,cfg.st)])
        if r==5 and not cfg.late:
            put(ex,3,[ostore(DR[1],u0+1,cfg.st)])
        if r==0: put(ex,4,[I(f"s_add_u32 s{sOff}, s{sOff}, 8192")])
        if r==5 and not lead:
            if not cfg.late: put(ex,9,[I(f"s_add_u32 s{sSt}, s{sSt}, {QINC()}")])
            put(ex,13,[I(f"s_add_u32 s{sT}, s{sT}, 1")])
            put(ex,15,[I(f"s_cmp_lt_u32 s{sT}, {NB()}")])
            if not cfg.late: put(post,3,[I(f"v_add_u32 v{vD[0]}, {SLOT}, v{vD[0]}"), I(f"v_add_u32 v{vD[1]}, {SLOT}, v{vD[1]}")])
            put(ex,16,[I("s_cbranch_scc1 LloopB")])
        out+=step(72+6*b+1+r,ex,post)
    assert nr==24 and nd==4
    return out
def NB(): return 3 if cfg.late else 4
def loopB(t): return blockB(2*t+2,t)+blockB(2*t+3,t)


def blockE(b,lab,last,drain,lazy,nv):
    reads=frag_reads(1,b+1); tag=f"h1KV{b+1}"
    out=[]; lead=(b%2==0)
    rp,wp=(sPo,sPe) if lead else (sPe,sPo)
    rx=sXo if lead else sXe
    sub=b
    off=0 if lead else SLOT
    dr=[I(f"ds_read_b128 {vr(DR[j&1])}, v{vD[j&1]}"+(f" offset:{off+1024*j}" if off+j else ""), src=f"O{sub}", slot=slotQ(sub), private=True) for j in range(4)]
    dpos={0:11,2:11,3:11,5:14}; nd=0
    for r in range(6):
        ex={}; post={}
        if r==0:
            put(ex,0,[I(f"s_waitcnt vmcnt({nv}) lgkmcnt(0)", need=tag, loose_ok=True)])
            put(ex,1,BAR())
            put(ex,2,[I(f"s_mov_b32 m0, s{wp}")]); put(ex,3,[I(f"s_xor_b32 s{rp}, s{rp}, s{rx}")])
            put(ex,4,[I(f"s_add_u32 s{sOff}, s{sOff}, 8192")])
            put(post,4,setrd(rp))
            if lead and not drain: spread(ex,6,[I(f"s_cmp_lt_u32 s{sT}, 3"), I(f"s_cselect_b32 s{sA+2}, s{sA+2}, 0"), I(f"s_cselect_b32 s{sB+2}, s{sB+2}, 0")])
        if lazy:
            gs=[6,8,12,13] if r<5 else [2,6,8,9]
            for k in range(lazy): put(post,gs[k],[reads[4*r+k]])
            rest=reads[4*r+lazy:4*r+4]
            if rest: put(ex,16 if r<5 else 11,rest)
        else:
            rg=(5,16) if r<5 else (5,11)
            put(ex,rg[0],reads[4*r:4*r+2]); put(ex,rg[1],reads[4*r+2:4*r+4])
        if r in dpos:
            put(ex,dpos[r],[dma(nd,f"h1KV{b+4}",slotKV(1,b+4),va=vKVA,vb=vKVB)]); nd+=1
        if drain:
            if r==0: put(ex,14,[dr[0]]);
            if r==1: put(ex,11,[dr[1]]); put(ex,2,[WLn(2 if lazy<4 else 0,lazy)]); put(ex,3,[stx(0,sub)])
            if r==2: put(ex,14,[dr[2]]); put(ex,2,[I("s_waitcnt lgkmcnt(2)")]); put(ex,3,[stx(1,sub)])
            if r==4: put(ex,11,[dr[3]]); put(ex,3,[stx(2,sub)])
            if r==5: put(ex,1,[I("s_waitcnt lgkmcnt(2)")]); put(ex,3,[stx(3,sub)]); put(ex,7,[I(f"s_add_u32 s{sSt}, s{sSt}, {QINC()}")])
        if r==3: put(ex,15,[I(f"s_waitcnt lgkmcnt({min(lazy,4) if lazy else 2})")])
        if r==5 and not lead:
            put(ex,13,[I(f"s_add_u32 s{sT}, s{sT}, 1")])
            put(ex,15,[I(f"s_cmp_lt_u32 s{sT}, {last}")])
            if drain: put(post,4,[I(f"v_add_u32 v{vD[k]}, {2*SLOT}, v{vD[k]}") for k in range(2)])
            put(ex,16,[I(f"s_cbranch_scc1 {lab}")])
        out+=step(72+6*b+1+r,ex,post)
    assert nd==4
    return out
def WLn(n,lazy): return I(f"s_waitcnt lgkmcnt({4-lazy if lazy else 2})")
def stx(j,sub):
    st=ostore(DR[j&1],j,cfg.st); st.meta['expect']={r:f"O{sub}" for r in st.data}; return st
def loopB1(t): return blockE(2*t+2,"LloopB1",2,True,cfg.lazyB,12)+blockE(2*t+3,"LloopB1",2,True,cfg.lazyB,12)
def loopB2(t): return blockE(2*t+2,"LloopB2",4,False,0,8)+blockE(2*t+3,"LloopB2",4,False,0,8)

def tagexp(o,tag):
    if tag:
        h=0 if tag[0]=='O' else 1
        for x in o:
            x.meta['expect']={r:f"O{h}n12" for r in x.rd if (r[0]=='v' and r[1]>=64) or (r[0]=='a' and 224<=r[1]<248)}
    return o
def e_head(s,bad,tag,rc):
    o=[I(f"v_accvgpr_read_b32 v{T2}, a{Lr(s)}"), I(f"v_rcp_f32 v{rc}, v{T2}")]
    o.append(I(f"v_cmp_nge_f32 s[62:63], s{sThr}, v{T2}") if bad is not None else I("s_nop 0"))
    if bad is not None: o.append(I(f"s_or_b64 s[{bad}:{bad+1}], s[{bad}:{bad+1}], s[62:63]"))
    return tagexp(o,tag)
def e_pk(s,dt,tag,rc):
    a=O(s,dt)
    return tagexp([I(f"v_pk_mul_f32 {vr(a+k,2)}, {vr(a+k,2)}, v[{rc}:{rc+1}] op_sel_hi:[1,0]") for k in (0,2)],tag)
def e_cvt(s,dt,tag):
    a=O(s,dt)
    return tagexp([I(f"v_cvt_pk_bf16_f32 v{a}, v{a}, v{a+1}"), I(f"v_cvt_pk_bf16_f32 v{a+1}, v{a+2}, v{a+3}")],tag)
def e_wr(s,dt,off,slot,tag,regs=vW):
    of=off+(dt>>2)*128
    return tagexp([I(f"ds_write_b64 v{regs[dt&3]}, {vr(O(s,dt),2)}"+(f" offset:{of}" if of else ""), wslot=slot, wtag=tag)],tag)[0]
def epi_rd(s, off, slot, tag=None, regs=vR):
    o=[]
    for j in range(4):
        of=off+1024*j
        m=dict(src=tag,slot=slot,private=True) if tag else {}
        o.append(I(f"ds_read_b128 {vr(O(s,2*j))}, v{regs[j&1]}"+(f" offset:{of}" if of else ""), **m))
    return o
def epi_st(s,pol,tag=None):
    o=[ostore(O(s,2*j),j,pol) for j in range(4)]
    if tag:
        for x in o: x.meta['expect']={r:tag for r in x.data}
    return o
def epi(s,off,slot,bad=None,tag=None,regs=vW):
    o=e_head(s,bad,tag,T1)
    for dt in range(8): o+=e_pk(s,dt,tag,T1)
    for dt in range(8): o+=e_cvt(s,dt,tag)
    for dt in range(8): o.append(e_wr(s,dt,off,slot,tag,regs))
    return o

class Epi:
    def __init__(s,rc2=14): s.rc2=rc2; s.tiles=[]; s.cv=[]; s.wr=[]; s.rd=[]; s.st=[]; s.info={}
    def add(s,sub,avail,off,slot,bad,tag,direct,pol,pre=()):
        s.info[sub]=dict(off=off,slot=slot,bad=bad,tag=tag,direct=direct,pol=pol,pre=list(pre))
        s.tiles+=[(avail,sub,dt) for dt in range(8)]
    def mem(s,nst):
        g=[]
        for _ in range(nst):
            if s.st: g.append(s.st.pop(0))
        rd=s.rd; s.rd=[]
        for sub in rd:
            I_=s.info[sub]; r=epi_rd(sub,I_['off'],I_['slot'],I_['tag']); g+=[[x] for x in r]
            st=epi_st(sub,I_['pol'],I_['tag'])
            s.st+=[[WL(r[1]),st[0]],[st[1]],[WL(r[3]),st[2]],[st[3],I(f"s_add_u32 s{sSt}, s{sSt}, {QINC()}")]]
        for sub,dt in s.wr:
            I_=s.info[sub]
            g.append(([I_['pre'][dt]] if (I_['pre'] and dt<4) else [])+[e_wr(sub,dt,I_['off'],I_['slot'],I_['tag'])])
            if dt==7 and I_['direct']: s.rd.append(sub)
        s.wr=[]
        return g
    def chunk(s,i,n):
        take=[]
        while s.tiles and len(take)<n and s.tiles[0][0]<=i: take.append(s.tiles.pop(0)[1:])
        o=[]
        for sub,dt in s.cv: o+=e_cvt(sub,dt,s.info[sub]['tag']); s.wr.append((sub,dt))
        s.cv=[]
        for sub,dt in take:
            I_=s.info[sub]; rc=T1 if sub%2==0 else s.rc2
            if dt==0: o+=e_head(sub,I_['bad'],I_['tag'],rc)
            o+=e_pk(sub,dt,I_['tag'],rc)
        k=max(1,len(take)-2) if s.tiles and s.tiles[0][0]<=i+1 else len(take)
        for sub,dt in take[:k]: o+=e_cvt(sub,dt,s.info[sub]['tag']); s.wr.append((sub,dt))
        s.cv=take[k:]
        return o
    def done(s): return not(s.tiles or s.cv or s.wr or s.rd or s.st)

def startA():
    o=[I("; ---- head A start")]
    f0=frag_reads(0,0); f1=frag_reads(0,1,base=SLOT); f2=frag_reads(0,2)
    o+=setrd(sW4)
    o.append(WV("h0Q0")); o+=BAR()
    o+=[qread(0,0,ks) for ks in range(4)]+f0[:8]
    seq=[]
    for s in (3,4,5): seq+=[('q',s,j) for j in range(4)]
    for b in (2,3,4,5): seq+=[('k',b,j) for j in range(4)]
    def dm():
        k,x,j=seq.pop(0)
        it=[]
        if j==0:
            it+=[setm0(slotQ(x) if k=='q' else slotKV(0,x)), I(f"s_add_u32 s{sTmp}, s{sTmp}, {QINC()}") if k=='q' else I(f"s_add_u32 s{sOff}, s{sOff}, 8192")]
        it.append(qdma(0,x,j,sTmp) if k=='q' else kvdma(0,x,j))
        return it
    for i in range(-1,13):
        ex={}; post={}
        if i==-1:
            put(ex,-1,[WL(f0[0])])
            for k in range(8):
                put(ex,k,f0[8+2*k:10+2*k]+([WL(f0[k+1])] if k<7 else []))
            put(ex,7,dm()+dm())
            put(ex,7,[WV("h0KV1")]+BAR()+f1[:8])
            put(ex,17,[WL(f1[7])])
        else:
            if i==0:
                for k in range(8): put(ex,k,f1[8+2*k:10+2*k])
            if i==3: put(ex,0,[I("s_waitcnt lgkmcnt(0)")]); put(ex,1,BAR())
            if i%2==0 and i<=8:
                s=i//2+1
                qs=[qread(0,s,ks) for ks in range(4)]
                put(ex,2 if i else 8,dm()); put(ex,5 if i else 8,dm())
                if s==4: put(post,9,bias(QREGS,True))
                put(ex,10,[WV(f"h0Q{s}")]); put(ex,11,qs[:2]); put(ex,12,[qs[2]]); put(ex,13,[qs[3]])
                if s==5: put(post,16,bias(QREGS,False))
                put(ex,17,[WL(qs[3])])
            elif i==10:
                put(ex,0,[WV("h0KV2",True)]); put(ex,1,BAR())
                put(ex,2,[I(f"s_add_u32 s{sCur}, s{sW4}, {8*SLOT}")]); put(post,3,setrd(sCur))
                place(ex,f2[:8],lo=4,hi=12)
                put(ex,14,dm()); put(ex,16,dm())
                put(ex,17,[WL(f2[7])])
            elif i==12:
                place(ex,f2[8:],lo=0,hi=13)
                put(ex,14,dm()); put(ex,16,dm())
                put(ex,15,[I(f"s_mov_b32 s{sCur}, s{sW4}")])
                put(ex,17,[WV("h0KV3")])
            else:
                put(ex,5,dm()); put(ex,10,dm())
        if cfg.fill and 0<=i<=9:
            put(ex,-1,[I(f"v_mfma_f32_16x16x32_bf16 a[252:255], {ar(Kf(0,k%8))}, {ar(Qr(0,k%4))}, a[252:255]") for k in range(cfg.fill)])
        o+=step(i,ex,post)
    assert not seq
    return o

def trans():
    o=[]
    f11=frag_reads(0,11); g0=frag_reads(1,0); g1=frag_reads(1,1,base=SLOT); g2=frag_reads(1,2)
    E=Epi()
    idxA={u:k for k,u in enumerate(LA)}
    for s in range(6):
        E.add(s,60+idxA[(11,s)]+2,(s%4)*SLOT,slotQ(s),sBad,f"O{s}",s<2,cfg.st,pre=(bias(vW,True) if s==4 else ()))
    Q=lambda s:[qread(1,s,k) for k in range(4)]
    q5=Q(5)
    R={61:f11[:8], 62:f11[8:16], 63:f11[16:24], 64:Q(0), 65:Q(1), 67:Q(2), 68:Q(3), 69:g0[:4], 70:g0[4:8], 71:g0[8:16], 72:g1[:8], 73:g0[16:24],
       74:g1[8:18], 75:g1[18:24], 76:Q(4), 78:q5, 81:g2[:4], 82:g2[4:8], 83:g2[8:16], 84:g2[16:24]}
    D={}
    for (k,x),steps in zip([('q',4),('q',5),('k',2),('k',3),('k',4),('k',5)],
                           [[61,62,63,64],[65,66,66,67],[69,70,71,72],[76,77,77,78],[79,79,80,80],[81,82,83,84]]):
        for j,i in enumerate(steps): D.setdefault(i,[]).append((k,x,j))
    for i in range(61,85):
        ex={}; post={}
        rs=R.get(i,[]); lo=0; hi=16
        q=unit(i+1); mx=(q[1]==0)
        if i==61:
            put(ex,0,[WV("h0KV11",True)]); put(ex,1,BAR()); put(post,2,setrd(sCur)); lo=3; hi=12
            put(ex,17,[WL(f11[7])])
            put(ex,2,[I(f"s_add_u32 s{sSt}, s{sH}, s{sQw}")])
        if i==64: put(ex,0,[WV("h1Q3")]); put(ex,7,[WL(f11[23])]); lo=1
        if i==69:
            put(ex,0,[WV("h1KV1",True)]); put(ex,1,BAR()); put(post,2,setrd(sW4)); lo=3
            put(ex,2,[I(f"s_add_u32 s{sOff}, s{sHn}, s{sKVw}")]); put(ex,3,[I(f"s_add_u32 s{sOff}, s{sOff}, 8192")])
        if i==70: hi=12; put(ex,17,[WL(g0[7])])
        if i==72: hi=12; put(ex,17,[WL(g1[7])])
        if i==73: hi=5; put(ex,7,[WL(g0[17])]); put(ex,11,[WL(g0[23])])
        if i==75: hi=6; put(ex,7,[WL(g1[17])]); put(ex,12,[WL(g1[23])]); put(post,9,bias(QREGS,True))
        if i==76: put(ex,0,[WV("h1Q4",True)]); put(ex,1,BAR()); lo=2
        if i==77: put(ex,15,[WL(R[76][3])])
        if i==78: put(ex,0,[WV("h1Q5")]); lo=1
        if i==79: put(ex,15,[WL(q5[3])]); put(post,5,bias(QREGS,False))
        if i==81:
            put(ex,0,[WV("h1KV2",True)]); put(ex,1,BAR())
            put(ex,2,[I(f"s_add_u32 s{sPe}, s{sW4}, {8*SLOT}")]); put(post,2,setrd(sPe)); lo=4
            put(ex,3,[I(f"s_add_u32 s{sPo}, s{sW4}, {2*SLOT}")])
        if i==82: hi=12; put(ex,17,[WL(g2[7])])
        if i==84: hi=12
        ch_n=cfg.rho
        mem=E.mem(2)
        ch=E.chunk(i,ch_n)
        free=[g for g in FREE if not(g==16 and (ch or mx)) and not (g==11 and mx)]
        place(ex,rs,lo=lo,hi=hi,free=free)
        dg=[]
        for (k,x,j) in D.get(i,[]):
            pre=[]
            if j==0:
                pre=[setm0(slotQ(x) if k=='q' else slotKV(1,x)), I(f"s_add_u32 s{sOff}, s{sOff}, {QINC() if k=='q' else 8192}")]
            dg.append(pre+[qdma(1,x,j,sOff) if k=='q' else kvdma(1,x,j)])
        place(ex,dg,lo=max(lo,4),hi=16,free=free)
        qlast=max([g for g,v in ex.items() if any(x.meta.get('src','').startswith('h1Q') for x in v)]+[-1])
        need_after=any(kind(gr[-1])=='w' and any(x.meta.get('slot')==gr[-1].meta['wslot'] for x in rs) for gr in mem)
        place(ex,mem,lo=(qlast+1 if need_after else (2 if i in (69,76,81) else 0)),hi=15,free=free)
        put(post,16,ch)
        if i==84:
            spread(ex,0,[I(f"s_mov_b32 s{sT}, 0"), I(f"s_mov_b64 s[{sA}:{sA+1}], s[{sKA}:{sKA+1}]"), I(f"s_mov_b64 s[{sB}:{sB+1}], s[{sVB}:{sVB+1}]")])
            put(ex,17,[WV("h1KV3")])
        if i==83:
            put(post,16,bias(vW,False)+[I(f"v_add_u32 v{vD[k]}, {2*SLOT}, v{vR[k]}") for k in range(2)])
        o+=step(i,ex,post)
    assert E.done()
    return o

def tailB():
    o=[]
    f11=frag_reads(1,11)
    E=Epi()
    idx={u:k for k,u in enumerate(LB)}
    for s in range(5):
        sl=3+(s%3)
        E.add(s,132+idx[(11,s)]+2,(sl-2)*SLOT,sl,sBad2,f"P{s}",True,cfg.st2)
    dq=[(sub,j) for sub in range(2,6) for j in range(4)] if cfg.late else []
    pend=[]
    def drain(i,ex,lo=0):
        nonlocal pend
        g=[]
        for rdx,sub,j in pend:
            st=ostore(DR[j&1],j,cfg.st); st.meta['expect']={r:f"O{sub}" for r in st.data}
            g.append([WL(rdx),st]+([I(f"s_add_u32 s{sSt}, s{sSt}, {QINC()}")] if j==3 else []))
        pend=[]
        place(ex,g,lo=max(lo,2),hi=4)
        if dq:
            sub,j=dq.pop(0)
            of=(sub-2)*SLOT+1024*j
            x=I(f"ds_read_b128 {vr(DR[j&1])}, v{vD[j&1]}"+(f" offset:{of}" if of else ""), src=f"O{sub}", slot=slotQ(sub), private=True)
            pend.append((x,sub,j)); return [x]
        return []
    if cfg.late:
        for b in (8,9):
            reads=frag_reads(1,b+1); lead=(b%2==0)
            rp=sPo if lead else sPe; rx=sXo if lead else sXe
            for r in range(6):
                ex={}; post={}; i=72+6*b+1+r; lo=0
                if r==0:
                    put(ex,0,[WV(f"h1KV{b+1}",True)]); put(ex,1,BAR())
                    put(ex,2,[I(f"s_xor_b32 s{rp}, s{rp}, s{rx}")]); put(post,4,setrd(rp)); lo=3
                d=drain(i,ex,lo)
                rs=reads[4*r:4*r+4]
                place(ex,(rs+d) if r<5 else (rs[:2]+d+rs[2:]),lo=5,hi=(16 if r<5 else 12))
                if r==3: put(ex,17,[WL(reads[7])])
                o+=step(i,ex,post)
    for i in range(133,145):
        ex={}; post={}
        d=drain(i,ex,3) if cfg.late else []
        if d: place(ex,d,lo=14,hi=16)
        if cfg.late and i==137: put(ex,6,[I(f"s_add_u32 s{sSt}, s{sHn}, s{sQw}")])
        if i==133:
            put(ex,0,[WV("h1KV11",True)]); put(ex,1,BAR())
            put(ex,2,[I(f"s_xor_b32 s{sPo}, s{sPo}, s{sXo}")]); put(post,2,setrd(sPo))
            place(ex,f11[:8],lo=3,hi=12)
            put(ex,17,[WL(f11[7])])
            if not cfg.late: put(ex,14,[I(f"s_add_u32 s{sSt}, s{sHn}, s{sQw}")])
        if i==134: place(ex,f11[8:14])
        if i==135: place(ex,f11[14:20])
        if i==136: place(ex,f11[20:24],hi=5); put(ex,7,[WL(f11[19])]+TL()); put(ex,13,[WL(f11[23])])
        mem=E.mem(4)
        ch=E.chunk(i,cfg.rho2)
        lo=0 if i<143 else 8
        free=[g for g in FREE if not(g==16 and ch)] if i<144 else list(range(8,16))
        place(ex,mem,lo=lo,hi=15,free=free)
        put(post,16,ch)
        o+=step(i,ex,post)
    assert not E.tiles and not E.cv
    tag="P5"; sl=5; off=3*SLOT
    m1=[x for g in E.mem(8) for x in g]
    o+=m1
    hd=e_head(5,sBad2,tag,T1)
    o+=[I("s_nop 3")]+hd
    for dt in range(8): o+=e_pk(5,dt,tag,T1)
    o+=[x for g in E.mem(8) for x in g]
    for dt in range(8): o+=e_cvt(5,dt,tag)+([e_wr(5,dt-1,off,sl,tag)] if dt else [])
    o.append(e_wr(5,7,off,sl,tag))
    rd=epi_rd(5,off,sl,tag); o+=rd
    o+=[x for g in E.mem(8) for x in g]
    assert E.done()
    st=epi_st(5,cfg.st2,tag)
    for j in range(4): o+=[WL(rd[j]), st[j]]
    return o

def stamp(k):
    if not cfg.stamps: return []
    op="s_memrealtime" if (cfg.echo>=0 or cfg.rt) else "s_memtime"
    return [I(f"{op} s[{sStamp+4+2*k}:{sStamp+5+2*k}]", skip=True)]

def prologue():
    o=[]
    A=lambda t,**k: o.append(I(t,**k))
    A("s_cmp_ge_u32 s2, 256"); A("s_cbranch_scc1 Lend")
    A("s_load_dwordx4 s[4:7], s[0:1], 0"); A("s_load_dwordx4 s[8:11], s[0:1], 16")
    if cfg.stamps:
        A(f"s_load_dwordx2 s[{sDbg}:{sDbg+1}], s[0:1], 32")
        A(f"s_memtime s[{sStamp}:{sStamp+1}]"); A(f"s_memrealtime s[{sStamp+2}:{sStamp+3}]")
    if cfg.tl:
        A("s_mov_b64 s[90:91], 1"); A("s_memtime s[98:99]"); A("s_memrealtime s[100:101]")
    if cfg.cpf:
        A("s_getpc_b64 s[62:63]"); A("s_lshr_b32 s3, s2, 3"); A("s_mul_i32 s3, s3, 1280")
        A("v_min_u32 v1, 9, v0"); A("v_lshlrev_b32 v1, 7, v1"); A("v_add_u32 v1, s3, v1")
        A("global_load_dword v61, v1, s[62:63]")
    A("v_lshrrev_b32 v1, 6, v0"); A("v_and_b32 v0, 63, v0"); A("v_readfirstlane_b32 s3, v1")
    A(f"v_lshlrev_b32 v{vKVB}, 4, v0")
    A(f"v_lshrrev_b32 v2, 4, v0")
    A(f"v_lshlrev_b32 v3, 6, v2")
    A(f"v_xor_b32 v{vQB}, v{vKVB}, v3")
    if cfg.loc>=2: A(f"v_mov_b32 v{vQA}, v{vQB}"); A(f"v_add_u32 v{vQB}, 2016, v{vQB}")
    else: A(f"v_add_u32 v{vQA}, 1056, v{vQB}")
    if cfg.loc>=1: A(f"v_mov_b32 v{vKVA}, v{vKVB}"); A(f"v_add_u32 v{vKVB}, 2016, v{vKVB}")
    else: A(f"v_add_u32 v{vKVA}, 1056, v{vKVB}")
    A(f"s_mul_i32 s{sW4}, s3, {WREG}"); A(f"s_lshl_b32 s{sKVw}, s3, {10 if cfg.loc>=1 else 11}"); A(f"s_mul_i32 s{sQw}, s3, {1024 if cfg.loc>=2 else 24576}")
    if cfg.diag=='l2only': A("s_and_b32 s62, s2, 7"); A(f"s_mul_i32 s{sH}, s62, {2*HEADB}")
    else: A(f"s_mul_i32 s{sH}, s2, {2*HEADB}")
    A(f"s_add_u32 s{sHn}, s{sH}, {HEADB}")
    for r in (sKA,sVB,sQA,sQB):
        A(f"s_mov_b32 s{r+2}, {TOTB+4096}"); A(f"s_mov_b32 s{r+3}, 0x20000")
    A(f"s_add_u32 s{sOff}, s{sH}, s{sKVw}")
    A(f"s_add_u32 s{sTmp}, s{sH}, s{sQw}")
    o.append(setm0(0))
    A("s_waitcnt lgkmcnt(0)")
    A(f"s_sub_u32 s{sKA}, s6, {0 if cfg.loc>=1 else 1056}"); A(f"s_subb_u32 s{sKA+1}, s7, 0")
    A(f"s_sub_u32 s{sVB}, s8, {1024 if cfg.loc>=1 else 2080}"); A(f"s_subb_u32 s{sVB+1}, s9, 0")
    o+=[kvdma(0,0,j) for j in (0,2,1,3)]
    if cfg.loc>=2:
        A(f"s_mov_b64 s[{sQA}:{sQA+1}], s[4:5]")
        A(f"s_add_u32 s{sQB}, s4, {8192-1024}"); A(f"s_addc_u32 s{sQB+1}, s5, 0")
    else:
        A(f"s_sub_u32 s{sQA}, s4, 1056"); A(f"s_subb_u32 s{sQA+1}, s5, 0")
        A(f"s_sub_u32 s{sQB}, s4, 32"); A(f"s_subb_u32 s{sQB+1}, s5, 0")
    def qd(s):
        o.append(setm0(slotQ(s)))
        A(f"s_add_u32 s{sTmp}, s{sTmp}, {QINC()}" if s else "s_nop 0")
        o.extend(qdma(0,s,j,sTmp) for j in range(4))
    qd(0)
    o.append(setm0(1)); A(f"s_add_u32 s{sOff}, s{sOff}, 8192")
    o+=[kvdma(0,1,j) for j in (0,2,1,3)]
    A(f"s_mov_b64 s[{sA}:{sA+1}], s[{sKA}:{sKA+1}]"); A(f"s_mov_b64 s[{sB}:{sB+1}], s[{sVB}:{sVB+1}]")
    for r in (sA,sB):
        A(f"s_mov_b32 s{r+2}, {TOTB+4096}"); A(f"s_mov_b32 s{r+3}, 0x20000")
    A(f"s_movk_i32 s{sInc}, 8192")
    A(f"v_mov_b32 v{vA}, v{vKVA}"); A(f"v_mov_b32 v{vB}, v{vKVB}")
    A(f"s_mov_b32 s{sO}, s10"); A(f"s_mov_b32 s{sO+1}, s11"); A(f"s_mov_b32 s{sO+2}, {0 if cfg.diag else TOTB}"); A(f"s_mov_b32 s{sO+3}, 0x20000")
    if cfg.loc>=2:
        A(f"s_add_u32 s{sO2}, s10, 8192"); A(f"s_addc_u32 s{sO2+1}, s11, 0"); A(f"s_mov_b32 s{sO2+2}, {0 if cfg.diag else TOTB-8192}"); A(f"s_mov_b32 s{sO2+3}, 0x20000")
    A(f"s_mov_b32 s{sC}, 0x3e0293ee"); A(f"s_mov_b32 s{sNC}, 0xbe0293ee"); A(f"s_mov_b32 s{sThr}, 0x49800000")
    A(f"s_add_u32 s{sEnd}, s{sW4}, {NSLOT*SLOT}")
    A(f"s_add_u32 s{sQn}, s{sHn}, s{sQw}")
    A(f"s_mov_b32 s{sT}, 0"); A("s_mov_b64 vcc, -1")
    A(f"s_mov_b64 s[{sBad}:{sBad+1}], 0"); A(f"s_mov_b64 s[{sBad2}:{sBad2+1}], 0")
    A(f"s_add_u32 s{sXe}, s{sW4}, {8*SLOT}"); A(f"s_add_u32 s62, s{sW4}, {1*SLOT}"); A(f"s_xor_b32 s{sXe}, s{sXe}, s62")
    A(f"s_add_u32 s{sXo}, s{sW4}, {2*SLOT}"); A(f"s_xor_b32 s{sXo}, s{sXo}, s{sW4}")
    A("v_and_b32 v3, 7, v0"); A(f"v_mul_u32_u24 v{vKl}, 2080, v3")
    A("v_bfe_u32 v3, v0, 3, 1"); A(f"v_lshl_add_u32 v{vKl}, v3, 8, v{vKl}")
    A(f"v_lshl_add_u32 v{vKl}, v2, 4, v{vKl}"); A(f"v_subrev_u32 v{vKl}, s{sW4}, v{vKl}")
    A("v_bfe_u32 v3, v0, 2, 3"); A(f"v_mul_u32_u24 v{vVl}, 2080, v3")
    A("v_lshrrev_b32 v3, 5, v0"); A(f"v_lshl_add_u32 v{vVl}, v3, 8, v{vVl}")
    A("v_and_b32 v4, 3, v0"); A(f"v_lshl_add_u32 v{vVl}, v4, 3, v{vVl}")
    A(f"v_add_u32 v{vVl}, 1024, v{vVl}"); A(f"v_subrev_u32 v{vVl}, s{sW4}, v{vVl}")
    A(f"s_add_u32 s62, s{sW4}, {2*SLOT}")
    A("v_bfe_u32 v3, v0, 2, 1"); A("v_mul_u32_u24 v5, 2080, v3")
    A("v_bfe_u32 v3, v0, 3, 1"); A("v_lshl_add_u32 v5, v3, 10, v5")
    A("v_lshl_add_u32 v5, v4, 8, v5"); A("v_lshl_add_u32 v5, v2, 4, v5"); A(f"v_add_u32 v5, s62, v5")
    for ks in range(4):
        A(f"v_xor_b32 v3, {ks}, v4"); A(f"v_lshl_add_u32 v{vQ+ks}, v3, 6, v5")
    A("v_and_b32 v8, 15, v0"); A("v_xor_b32 v9, v8, v2"); A("v_lshlrev_b32 v10, 8, v2"); A("v_add_u32 v10, s62, v10")
    A(f"v_lshl_add_u32 v{vR[0]}, v9, 4, v10"); A("v_xor_b32 v9, 4, v9"); A(f"v_lshl_add_u32 v{vR[1]}, v9, 4, v10")
    A("v_lshlrev_b32 v10, 8, v8"); A("v_and_b32 v9, 1, v2"); A("v_lshl_add_u32 v10, v9, 3, v10"); A("v_add_u32 v10, s62, v10")
    A("v_lshrrev_b32 v9, 1, v2"); A("v_and_b32 v8, 7, v0"); A("v_xor_b32 v9, v9, v8")
    A("v_mov_b32 v11, 0x3f803f80"); A("v_cmp_eq_u32 s[62:63], 0, v4")
    for k in range(4):
        A(f"v_xor_b32 v8, {2*k}, v9"); A(f"v_lshl_add_u32 v{vW[k]}, v8, 4, v10")
    A("v_cndmask_b32 v11, 0, v11, s[62:63]")
    for k in range(4): A(f"v_accvgpr_write_b32 a{ONES+k}, v11")
    if cfg.warm:
        A(f"s_mov_b32 s62, {cfg.warm}"); A("Lwarm:")
        for k in range(8): A(f"v_mfma_f32_16x16x32_bf16 {vr(64+4*k)}, {vr(46)}, {vr(52)}, {vr(64+4*k)}")
        A("s_sub_u32 s62, s62, 1"); A("s_cmp_lg_u32 s62, 0"); A("s_cbranch_scc1 Lwarm")
    qd(1); qd(2)
    return o

def slow_path():
    o=[]
    A=lambda t,**k: o.append(I(t,**k))
    sP=sCur
    A("Lslow:")
    A("s_waitcnt vmcnt(0) lgkmcnt(0)")
    A(f"s_mul_i32 s{sP}, s3, {SLOT}")
    A(f"s_add_u32 s{sTmp}, s{sP}, s{sW4}")
    o+=setrd(sTmp)
    A(f"s_sub_u32 s62, s{sP}, {2*SLOT}")
    for k in range(4): A(f"v_add_u32 v{8+k}, s62, v{vQ+k}")
    A(f"s_mov_b32 m0, s{sTmp}")
    A(f"s_add_u32 s{sOff}, s{sH}, s{sQw}")
    for s in range(6):
        o+=[qdma(0,s,j,sOff) for j in range(4)]
        A("s_waitcnt vmcnt(0)")
        for ks in range(4): A(f"ds_read_b128 {ar(Qr(s,ks))}, v{8+ks}")
        A(f"s_add_u32 s{sOff}, s{sOff}, {QINC()}")
        A("s_waitcnt lgkmcnt(0)")
    for s in range(6): A(f"v_mov_b32 v{MN+s}, 0xff800000")
    def loadkv():
        for j in range(4):
            A(f"s_add_u32 m0, s{sP}, {j*WREG}"); A("s_nop 0")
            o.extend(kvdma(0,0,jj) for jj in range(4))
            A(f"s_add_u32 s{sOff}, s{sOff}, {1024 if cfg.loc>=1 else 2048}")
        if cfg.loc>=1: A(f"s_add_u32 s{sOff}, s{sOff}, 4096")
        A("s_waitcnt vmcnt(0)")
    A(f"s_mov_b32 s{sOff}, s{sH}"); A(f"s_mov_b32 s{sT}, 0")
    A("Lslow1:")
    loadkv()
    for i in range(8): o.append(I(kread(0,i,None,None).text))
    A("s_waitcnt lgkmcnt(0)")
    for s in range(6):
        o+=qk_mfmas(s,0,0)
        A("s_nop 7")
        S=SB[0]
        for e in range(0,8,2): A(f"v_max3_f32 v{MN+s}, v{MN+s}, v{S+e}, v{S+e+1}")
    A(f"s_add_u32 s{sT}, s{sT}, 1"); A(f"s_cmp_lt_u32 s{sT}, 12"); A("s_cbranch_scc1 Lslow1")
    for s in range(6):
        m=MN+s
        A(f"v_mov_b32 v{T1}, v{m}"); A("s_nop 1"); A(f"v_permlane16_swap_b32 v{m}, v{T1}"); A(f"v_max_f32 v{m}, v{m}, v{T1}")
        A(f"v_mov_b32 v{T1}, v{m}"); A("s_nop 1"); A(f"v_permlane32_swap_b32 v{m}, v{T1}"); A(f"v_max_f32 v{m}, v{m}, v{T1}")
        A(f"v_mul_f32 v{m}, s{sNC}, v{m}")
    for r in range(64,256): A(f"v_mov_b32 v{r}, 0")
    for r in range(224,248): A(f"v_accvgpr_write_b32 a{r}, 0")
    A(f"s_mov_b32 s{sOff}, s{sH}"); A(f"s_mov_b32 s{sT}, 0")
    A("Lslow2:")
    loadkv()
    for i in range(8): o.append(I(kread(0,i,None,None).text))
    A("s_waitcnt lgkmcnt(0)")
    for i in range(16):
        o.append(I(vread(0,i,None,None).text))
        if i==7: A("s_waitcnt lgkmcnt(0)")
    A("s_waitcnt lgkmcnt(0)")
    for s in range(6):
        o+=qk_mfmas(s,0,0)
        A("s_nop 7")
        for gp in sm_gaps(s,0,0): o+=gp
        A("s_nop 1")
        o+=pv_mfmas(s,0,0,False)
    A(f"s_add_u32 s{sT}, s{sT}, 1"); A(f"s_cmp_lt_u32 s{sT}, 12"); A("s_cbranch_scc1 Lslow2")
    A("s_nop 7")
    A(f"s_add_u32 s{sSt}, s{sH}, s{sQw}")
    A(f"s_sub_u32 s62, s{sP}, {2*SLOT}")
    for k in range(4): A(f"v_add_u32 v{8+k}, s62, v{vW[k]}")
    for k in range(2): A(f"v_add_u32 v{12+k}, s62, v{vR[k]}")
    for s in range(6):
        o+=epi(s,0,None,regs=[8,9,10,11])+epi_rd(s,0,None,regs=[12,13])+[I("s_waitcnt lgkmcnt(0)")]+epi_st(s,"")
        A(f"s_add_u32 s{sSt}, s{sSt}, {QINC()}")
    A("s_branch Lslow_ret")
    for x in o:
        for k in ('tag','slot','wslot','wtag'): x.meta.pop(k,None)
    return o

def resolve(trace):
    vm=[]; lg=[]
    for x in trace:
        if x.label or x.meta.get('skip'): continue
        if 'auto_vm' in x.meta:
            idx=[k for k,y in enumerate(vm) if y.meta.get('tag')==x.meta['auto_vm']]
            n=min(63,len(vm)-1-max(idx)); x.text=x.text.replace("vmcnt(AUTO)",f"vmcnt({n})"); x.meta['loose_ok']=True
        if 'auto_lg' in x.meta:
            k=[i for i,y in enumerate(lg) if y is x.meta['auto_lg']]
            assert k, "WL target not issued before wait: "+x.meta['auto_lg'].text
            n=min(15,len(lg)-1-k[0]); x.text=x.text.replace("lgkmcnt(AUTO)",f"lgkmcnt({n})")
        if x.kind=='vmem': vm.append(x)
        if x.kind=='ds': lg.append(x)

def build():
    P=prologue(); SA=startA(); TR=trans(); TB=tailB()
    txt=lambda L:[x.text for x in L if not x.text.startswith(';')]
    assert txt(loopA1(0))==txt(loopA1(1)); assert txt(loopA2(2))==txt(loopA2(3))
    for t in range(NB()): assert txt(loopB(t))==txt(loopB(0))
    assert txt(loopB1(0))==txt(loopB1(1)); assert txt(loopB2(2))==txt(loopB2(3))
    if cfg.early: assert not cfg.late
    trace=P+SA
    trace+=loopA1(0)+loopA1(1)+midA()+loopA2(2)+loopA2(3)
    trace+=TR
    if cfg.early: trace+=loopB1(0)+loopB1(1)+loopB2(2)+loopB2(3)
    else:
        for t in range(NB()): trace+=loopB(t)
    trace+=TB
    resolve(trace)
    trace=[x for x in trace if not x.meta.get('skip')]
    probs=check_trace(trace)
    sp=slow_path()
    probs+=check_trace(sp+slow_path())
    seen=set()
    for p in probs:
        if p not in seen: print(p); seen.add(p)
    S=list(P)
    S+=stamp(0)+SA+stamp(1)
    nd=(lambda L:[x for x in L if not getattr(x,'dma',False)]) if cfg.diag=='nodma' else (lambda L:L)
    S+=[I(".p2align 3"),I("LloopA1:")]+nd(loopA1(0))+midA()+[I(".p2align 3"),I("LloopA2:")]+nd(loopA2(2))
    S+=stamp(2)+nd(TR)+stamp(3)
    if cfg.early: S+=[I(".p2align 3"),I("LloopB1:")]+nd(loopB1(0))+[I(".p2align 3"),I("LloopB2:")]+nd(loopB2(2))
    else: S+=[I(".p2align 3"),I("LloopB:")]+nd(loopB(0))
    S+=stamp(4)+TB+stamp(5)
    if cfg.slow:
        S+=[I(f"s_or_b64 s[62:63], s[{sBad}:{sBad+1}], s[{sBad2}:{sBad2+1}]"),
            I("s_waitcnt vmcnt(24)"), I("s_barrier"), I("s_cbranch_scc1 Lslow_entry")]
    S+=[I("Lfin:")]
    if cfg.stamps:
        S+=[I("s_waitcnt vmcnt(0)"), I(f"s_memtime s[{sStamp+16}:{sStamp+17}]"), I(f"s_memrealtime s[{sStamp+18}:{sStamp+19}]"), I("s_waitcnt lgkmcnt(0)")]
        if cfg.echo>=0:
            esrc=[sStamp+2]+[sStamp+4+2*k for k in range(6)]+[sStamp+18]
            S+=[I(f"s_add_u32 s62, s{esrc[cfg.echo]}, 10000"), I("Lspin:"), I("s_sleep 2"), I("s_memrealtime s[88:89]"), I("s_waitcnt lgkmcnt(0)"),
                I("s_sub_u32 s63, s88, s62"), I("s_cmp_lt_i32 s63, 0"), I("s_cbranch_scc1 Lspin")]
        S+=[I(f"v_mov_b32 v8, s{sStamp+2}"), I(f"v_mov_b32 v9, s{sStamp+18}")]
        srcs=[sStamp+4+2*k for k in range(6)]+[sStamp+(18 if cfg.rt else 16)]
        for k,r in enumerate(srcs):
            S+=[I(f"s_sub_u32 s{sTmp}, s{r}, s{sStamp+(2 if cfg.rt else 0)}"), I(f"v_mov_b32 v{10+k}, s{sTmp}")]
        S+=[I("v_mov_b32 v17, 0"), I("v_mov_b32 v18, 0")]
        S+=[I("s_getreg_b32 s62, hwreg(HW_REG_XCC_ID)"), I("v_mov_b32 v19, s62")]
        S+=[I(f"s_mov_b32 s24, s{sDbg}"), I(f"s_mov_b32 s25, s{sDbg+1}"), I(f"s_mov_b32 s26, {cfg.dbgsz}"), I("s_mov_b32 s27, 0x20000"),
            I("s_lshl_b32 s62, s2, 8"), I("s_lshl_b32 s63, s3, 6"), I("s_add_u32 s62, s62, s63"), I("v_mov_b32 v1, 0")]
        if cfg.tl:
            S+=TL()+[I("s_waitcnt lgkmcnt(0)")]+TL()+[I("s_lshl_b32 s61, s62, 3"), I("s_add_u32 s61, s61, 65536"), I(f"v_lshrrev_b32 v5, 2, v{vKVA if cfg.loc else vKVB}"),
                I("buffer_store_dword v0, v5, s[24:27], s61 offen"), I("buffer_store_dword v61, v5, s[24:27], s61 offen offset:256")]
        S+=[I("s_mov_b64 exec, 1"),
            I("buffer_store_dwordx4 v[8:11], v1, s[24:27], s62 offen"), I("buffer_store_dwordx4 v[12:15], v1, s[24:27], s62 offen offset:16"), I("buffer_store_dwordx4 v[16:19], v1, s[24:27], s62 offen offset:32")]
    S+=[I("Lend:"), I("s_endpgm")]
    if cfg.slow:
        S+=[I("Lslow_entry:"), I(f"s_cmp_lg_u64 s[{sBad}:{sBad+1}], 0"), I("s_cbranch_scc1 Lslow"),
            I("Lslow_ret:"), I(f"s_cmp_eq_u64 s[{sBad2}:{sBad2+1}], 0"), I("s_cbranch_scc1 Lfin"),
            I(f"s_mov_b64 s[{sBad2}:{sBad2+1}], 0"), I(f"s_mov_b32 s{sH}, s{sHn}")]
        S+=sp
    if not cfg.slow: S+=[I(".fill 2048, 4, 0xbf810000")]
    return S, bool([p for p in probs if not p.startswith("NOTE")])

from gen import HDR, FTR
def write(fn):
    S,bad=build()
    with open(fn,"w") as f:
        f.write(HDR%(LDSB,NAME,NAME,NAME))
        for x in S:
            t=x.text
            f.write((t if (t.endswith(':') or t.startswith('.')) else "    "+t)+"\n")
        f.write(FTR%NAME)
    return bad
if __name__=="__main__":
    ap=argparse.ArgumentParser()
    ap.add_argument("out"); ap.add_argument("opts",nargs="*")
    a=ap.parse_args()
    for kv in a.opts:
        k,v=kv.split("=",1)
        cur=getattr(cfg,k)
        setattr(cfg,k, (v in("1","True","true")) if isinstance(cur,bool) else (int(v) if isinstance(cur,int) else v.replace("+"," ")))
    bad=write(a.out)
    from mkco import build as mk
    print(mk(a.out), "PROBLEMS" if bad else "clean")
```

```python
import sys, argparse, re
sys.path.insert(0,'work')
from asmlib import I, check_trace
NAME="standalone__gqa_softmax__near_ridge_kernel"
SLOT=16640; WREG=4160; NSLOT=9
LDSB=NSLOT*SLOT
HEADB=98304
TOTB=50331648

class Cfg:
    ld="nt"; st="sc1"; st2="nt"
    stamps=False; rt=False; tl=False; dbgsz=0x400000; echo=-1
    slow=True
    place="D"
    cpf=True
    rho=3; rho2=6
    warm=0
    late=1
    fill=0; padA=0; padN=2; skipd=0
    lazy=4; lazyB=0; early=0
    prof='40,40,40,40'
    np='2222'
    profS=0
    profB='00'
    loc=2
    diag=''
cfg=Cfg()

def O(s,dt): return 64+32*s+4*dt
SB=[16,24]; PB=[32,36]
MN=40
vK,vV,vKl,vVl=46,47,48,49
vA,vB=50,51
vQ=52
vW=[5,6,7,62]
vR=[56,63]
vD=[50,51]
vKVA,vKVB,vQA,vQB=57,58,59,60
vL=15
def QINC(): return 16384 if cfg.loc>=2 else 4096
T0,T1,T2,T3=1,2,3,4
DR=[8,12]
def Qr(s,ks): return 16*s+4*ks
def Kf(par,i): return 96+32*par+4*i
def Vf(par,dt): return 160+32*par+4*dt
def Lr(s): return 224+4*s
ONES=248
sA,sB,sO,sKA,sVB,sQA,sQB=12,16,20,24,28,32,36
sOff,sInc,sCur,sC,sH,sW4,sT,sPe,sEnd,sKVw,sQw,sThr=40,41,42,43,44,45,46,47,48,49,50,51
sBad=52
sTmp,sSt,sNC,sHn,sDbg=55,57,58,59,60
sStamp=64
sQn,sM=84,86
sPo,sXe,sXo,sBad2=92,93,94,96

def vr(a,n=4): return f"v[{a}:{a+n-1}]"
def ar(a,n=4): return f"a[{a}:{a+n-1}]"
def sr(a,n=4): return f"s[{a}:{a+n-1}]"

def slotKV(h,b):
    if b<2: return b
    if h==0: return (6+b)%9
    return [8,0,1,2][(b-2)%4]
def slotQ(s): return 2+s
def pair(n):
    if n<18: return (f"h0KV{n-6}", n%9)
    if n<20: return (f"h1KV{n-18}", n%9)
    if n<26: return (f"h1Q{n-20}", n%9)
    raise ValueError
UOFF=[0,1024,2080,3104]
def dma(j, tag, slot, A=sA, B=sB, va=vA, vb=vB, off=sOff):
    srd=[A,B,A,B][j]; vo=[va,va,vb,vb][j]; imm=UOFF[j]
    o=f" offset:{imm}" if imm else ""
    p=f" {cfg.ld}" if cfg.ld else ""
    return I(f"buffer_load_dwordx4 v{vo}, {sr(srd)}, s{off} offen{o}{p} lds", tag=tag, slot=slot)
def kvdma(h,b,j,off=sOff): return dma(j,f"h{h}KV{b}",slotKV(h,b),A=sKA,B=sVB,va=vKVA,vb=vKVB,off=off)
def qdma(h,s,j,off): return dma(j,f"h{h}Q{s}",slotQ(s),A=sQA,B=sQB,va=vQA,vb=vQB,off=off)
def setm0(slot): return I(f"s_add_u32 m0, s{sW4}, {slot*SLOT}") if slot else I(f"s_mov_b32 m0, s{sW4}")
def kread(par,i,tag,slot,base=0):
    kt,ks=divmod(i,4)
    return I(f"ds_read_b128 {ar(Kf(par,i))}, v{vK} offset:{base+kt*512+ks*64}", src=tag, slot=slot)
def vread(par,i,tag,slot,base=0):
    dt,jj=divmod(i,2)
    return I(f"ds_read_b64_tr_b16 {ar(Vf(par,dt)+2*jj,2)}, v{vV} offset:{base+jj*512+dt*32}", src=tag, slot=slot)
def frag_reads(h,b,base=0):
    tag=f"h{h}KV{b}"; sl=slotKV(h,b); par=b&1
    return [kread(par,i,tag,sl,base) for i in range(8)]+[vread(par,i,tag,sl,base) for i in range(16)]
def qaddr(s): return (vQ,(s%4)*SLOT)
def bias(regs,up): return [I(f"{'v_add_u32' if up else 'v_subrev_u32'} v{r}, {4*SLOT}, v{r}") for r in regs]
QREGS=[vQ+k for k in range(4)]
def qread(h,s,ks):
    a,off=qaddr(s)
    return I(f"ds_read_b128 {ar(Qr(s,ks))}, v{a+ks}"+(f" offset:{off}" if off else ""), src=f"h{h}Q{s}", slot=slotQ(s), private=True)
def qk_mfmas(s,kpar,sb,u=None):
    o=[]
    for i in range(8):
        kt,ks=divmod(i,4); d=SB[sb]+4*kt
        x=I(f"v_mfma_f32_16x16x32_bf16 {vr(d)}, {ar(Kf(kpar,i))}, {ar(Qr(s,ks))}, {'0' if ks==0 else vr(d)}")
        if u:
            x.meta['expect']={**{r:f"h{u[0]}KV{u[1]}" for r in x.A}, **{r:f"h{u[0]}Q{u[2]}" for r in x.B}}
            x.meta['set']={r:f"S{u}" for r in x.wr}
        o.append(x)
    return o
def pv_mfmas(s,vpar,pb,first,u=None):
    o=[]
    for dt in range(8):
        d=O(s,dt)
        o.append(I(f"v_mfma_f32_16x16x32_bf16 {vr(d)}, {ar(Vf(vpar,dt))}, {vr(PB[pb])}, {'0' if first else vr(d)}"))
    o.append(I(f"v_mfma_f32_16x16x32_bf16 {ar(Lr(s))}, {ar(ONES)}, {vr(PB[pb])}, {'0' if first else ar(Lr(s))}"))
    if u:
        cnt=sum(1 for y in UNITS[:UNITS.index(u)] if y[0]==u[0] and y[2]==u[2])
        for k,x in enumerate(o):
            e={r:f"P{u}" for r in x.B}
            if k<8: e.update({r:f"h{u[0]}KV{u[1]}" for r in x.A})
            if not first: e.update({r:f"O{u[0]}n{cnt}" for r in x.wr})
            x.meta['expect']=e; x.meta['set']={r:f"O{u[0]}n{cnt+1}" for r in x.wr}
    return o
FREE=(5,11,16)
def sm_gaps(s,sb,pb,u=None):
    S=SB[sb]; P=PB[pb]
    T=(lambda **k:k) if u else (lambda **k:{})
    f=lambda e: I(f"v_fma_f32 v{S+e}, v{S+e}, s{sC}, v{MN+s}", **T(expect={('v',S+e):f"S{u}",('v',MN+s):f"M{u and u[0]}"}))
    x=lambda e: I(f"v_exp_f32 v{S+e}, v{S+e}", **T(expect={('v',S+e):f"S{u}"}))
    c=lambda e: I(f"v_cvt_pk_bf16_f32 v{P+e//2}, v{S+e}, v{S+e+1}", **T(expect={('v',S+e):f"S{u}",('v',S+e+1):f"S{u}"}, set={('v',P+e//2):f"P{u}"}))
    return [[f(0),f(1)],[x(0)],[x(1)],[f(2),f(3)],[x(2)],[],[x(3)],[f(4),f(5)],[x(4)],[x(5)],[f(6),f(7)],[],[x(6)],[x(7)],[c(0),c(2)],[c(4),c(6)],[]]
def max_seq(s,sb,h):
    S=SB[sb]
    return [I(f"v_max3_f32 v{T0}, v{S}, v{S+1}, v{S+2}"), I(f"v_max3_f32 v{T3}, v{S+3}, v{S+4}, v{S+5}"),
            I(f"v_max3_f32 v{T0}, v{T0}, v{S+6}, v{S+7}"), I(f"v_max_f32 v{T0}, v{T0}, v{T3}"),
            I(f"v_mov_b32 v{T3}, v{T0}"), I(f"v_permlane16_swap_b32 v{T0}, v{T3}"),
            I(f"v_max_f32 v{T0}, v{T0}, v{T3}"), I(f"v_mov_b32 v{T3}, v{T0}"),
            I(f"v_permlane32_swap_b32 v{T0}, v{T3}"), I(f"v_max_f32 v{T0}, v{T0}, v{T3}"),
            I(f"v_mul_f32 v{MN+s}, s{sNC}, v{T0}", set={('v',MN+s):f"M{h}"})]
MAXG=[11,11,12,12,12,13,14,14,15,16,16]

FA=[(b,s) for s in range(6) for b in (0,1)]
LA=[(10,0),(10,1),(10,2),(11,0),(11,1),(10,3),(11,2),(10,4),(11,3),(10,5),(11,4),(11,5)]
FB=[(0,0),(0,1),(1,0),(0,2),(1,1),(0,3),(1,2),(0,4),(1,3),(0,5),(1,4),(1,5)]
LB=[(10,0),(10,1),(10,2),(11,0),(11,1),(11,2),(10,3),(11,3),(10,4),(11,4),(10,5),(11,5)]
MID=[(b,s) for b in range(2,10) for s in range(6)]
UNITS=[(0,)+u for u in FA+MID+LA]+[(1,)+u for u in FB+MID+LB]
def unit(i): return UNITS[i] if 0<=i<len(UNITS) else None
def put(ex,g,items): ex.setdefault(g,[]).extend(items)

def step(i, ex=None, post=None, clump=0):
    ex=ex or {}; post={k:list(v) for k,v in (post or {}).items()}
    q,m,p=unit(i+1),unit(i),unit(i-1)
    mf=(qk_mfmas(q[2],q[1]&1,(i+1)&1,q) if q else [None]*8)+(pv_mfmas(p[2],p[1]&1,(i-1)&1,p[1]==0,p) if p else [None]*9)
    g=sm_gaps(m[2],i&1,i&1,m) if m else [[] for _ in range(17)]
    for src,dst in [(2,1),(9,8),(13,12),(15,14),(4,3),(7,6),(1,0)][:clump]:
        g[dst]=g[dst]+g[src]; g[src]=[]
    tailmax=[]
    if q and q[1]==0:
        ms=max_seq(q[2],(i+1)&1,q[0])
        if p and m:
            for gg,x in zip(MAXG,ms): g[gg]=g[gg]+[x]
        else:
            for x in ms:
                if x.op.startswith('v_permlane'): tailmax.append(I("s_nop 1"))
                tailmax.append(x)
    out=[I(f"; ---- step {i}  qk{q} sm{m} pv{p}")]
    out+=ex.get(-1,[])
    for k in range(17):
        if mf[k] is not None: out.append(mf[k])
        out+=ex.get(k,[])
        out+=g[k]
        out+=post.get(k,[])
    out+=tailmax
    out+=ex.get(17,[])
    return out


def setrd(reg): return [I(f"v_add_u32 v{vK}, s{reg}, v{vKl}"), I(f"v_add_u32 v{vV}, s{reg}, v{vVl}")]
def free_gaps(ex,lo,n,avoid=()):
    return [x for x in range(lo,17) if x not in FREE and x not in ex and x not in avoid][:n]
def spread(ex,lo,items,avoid=()):
    gs=free_gaps(ex,lo,len(items),avoid)
    assert gs
    while len(gs)<len(items): gs.append(gs[-1])
    for x,i in zip(gs,items): put(ex,x,[i])
def TL():
    if not cfg.tl: return []
    r=[I("s_mov_b64 exec, s[90:91]"), I("v_mov_b32 v0, s98"), I("v_mov_b32 v61, s100"), I("s_mov_b64 exec, -1"), I("s_lshl_b64 s[90:91], s[90:91], 1"), I("s_memtime s[98:99]"), I("s_memrealtime s[100:101]")]
    for x in r: x.meta['skip']=True
    return r
def BAR(): return [I("s_barrier")]+TL()
def WV(tag,lg0=False): return I("s_waitcnt vmcnt(AUTO)"+(" lgkmcnt(0)" if lg0 else ""), auto_vm=tag, need=tag)
def WL(x): return I("s_waitcnt lgkmcnt(AUTO)", auto_lg=x)

def kind(x):
    if x.op.startswith('ds_read'): return 'r'
    if x.op.startswith('ds_write'): return 'w'
    if getattr(x,'dma',False): return 'd'
    if getattr(x,'store',False): return 's'
    return 'a'
def gapcost(ks,free):
    if not ks: return 0
    U={'r':4,'d':6,'w':12,'s':12,'a':4}
    c=sum(U[k] for k in ks)
    if ks[0]=='a': c-=4
    if len(ks)==1 and ks[0]=='d': c=4 if not free else 8
    for p,q in zip(ks,ks[1:]):
        if p=='w' and q=='r': c+=12
    st=12*ks.count('s')
    if free: return st+max(0,c-st-8)
    return c+4*max(0,len([k for k in ks if k!='a'])-1)
def place(ex,groups,lo=0,hi=16,free=FREE):
    groups=[g if isinstance(g,list) else [g] for g in groups]
    n=len(groups)
    if not n: return
    import functools
    base={g:[kind(x) for x in ex.get(g,[]) if not x.label and not x.meta.get('skip')] for g in range(17)}
    @functools.lru_cache(None)
    def f(g,i):
        if i==n: return (0,())
        if g>hi: return (1e9,())
        best=(1e9,())
        for m in range(0,min(4,n-i)+1):
            ks=base[g]+[kind(x) for gr in groups[i:i+m] for x in gr]
            c=gapcost(ks,g in free)-gapcost(base[g],g in free)
            c+=0.01*sum(abs(g-(lo+(hi-lo)*(j+0.5)/n)) for j in range(i,i+m))
            r=f(g+1,i+m)
            if c+r[0]<best[0]: best=(c+r[0],(g,)*m+r[1])
        return best
    c,gs=f(lo,0)
    assert len(gs)==n
    for g,gr in zip(gs,groups): put(ex,g,gr)

ADV=lambda inc: [I(f"s_add_u32 m0, m0, {SLOT}"), I(f"s_cmp_ge_u32 m0, s{sEnd}"), I(f"s_cselect_b32 m0, s{sW4}, m0"), I(f"s_add_u32 s{sOff}, s{sOff}, {inc}")]
def pdma(n,j):
    tg,sl=pair(n)
    if 'Q' in tg: return dma(j,tg,sl,A=sQA,B=sQB,va=vQA,vb=vQB)
    return dma(j,tg,sl,A=sKA,B=sVB,va=vKVA,vb=vKVB)
def blockA(b,pairs,lab,last,nv,lazy,clump=0):
    reads=frag_reads(0,b+1); tag=f"h0KV{b+1}"
    out=[]; lead=(b%2==0)
    inc=QINC() if 'Q' in pair(pairs[0])[0] else 8192
    if len(pairs)==2: dpos={0:[(0,0,11)],1:[(0,1,3),(0,2,11)],2:[(0,3,11)],3:[(1,0,11)],4:[(1,1,3),(1,2,11)],5:[(1,3,14)]}; advr=(0,3)
    else: dpos={0:[(0,0,11)],1:[],2:[(0,1,11)],3:[(0,2,11)],4:[],5:[(0,3,14)]}; advr=(0,)
    for r in range(6):
        ex={}; post={}
        if r==0:
            put(ex,0,[I(f"s_waitcnt vmcnt({nv}) lgkmcnt(0)", need=tag, loose_ok=True) if nv is not None else WV(tag,True)])
            put(ex,1,BAR())
            put(post,4,setrd(sCur))
        rg=(5,16) if r<5 else (5,11)
        if lazy:
            gs=[6,8,12,13] if r<5 else [2,6,8,9]
            for k in range(4):
                if k<lazy: put(post,gs[k],[reads[4*r+k]])
            rest=reads[4*r+lazy:4*r+4]
            if rest: put(ex,16 if r<5 else 11,rest)
        else:
            put(ex,rg[0],reads[4*r:4*r+2]); put(ex,rg[1],reads[4*r+2:4*r+4])
        for (p,j,g) in dpos[r]: put(ex,g,[pdma(pairs[p],j)])
        if r in advr: spread(ex,2,ADV(inc))
        if r==3: put(ex,15,[I(f"s_waitcnt lgkmcnt({4+min(lazy,4) if lazy else 6})")])
        if r==5:
            spread(ex,0,[I(f"s_add_u32 s{sCur}, s{sCur}, {SLOT}"), I(f"s_cmp_ge_u32 s{sCur}, s{sEnd}"), I(f"s_cselect_b32 s{sCur}, s{sW4}, s{sCur}")])
        if r==5 and not lead and lab:
            put(ex,13,[I(f"s_add_u32 s{sT}, s{sT}, 1")])
            put(ex,15,[I(f"s_cmp_lt_u32 s{sT}, {last}")]); put(ex,16,[I(f"s_cbranch_scc1 {lab}")])
        out+=step(6*b+1+r,ex,post,clump)
    return out
def loopA1(t):
    n=12+4*t
    return blockA(2*t+2,[n,n+1],"LloopA1",2,16,cfg.lazy)+blockA(2*t+3,[n+2,n+3],"LloopA1",2,12,cfg.lazy)
def rampA():
    o=[]; n=12
    for b,pf in zip(range(2,6),cfg.prof.split(',')):
        o+=blockA(b,[n,n+1],None,0,None,int(pf[0]),int(pf[1])); n+=2
    return o
def loopA2(t):
    n=20+2*(t-2)
    return blockA(2*t+2,[n],"LloopA2",2,24,0)+blockA(2*t+3,[n+1],"LloopA2",2,24,0)
def midA(): return [I(f"s_sub_u32 s{sOff}, s{sQn}, {QINC()}")]

sO2=4
def ostore(reg,j,pol):
    p=f" {pol}" if pol else ""
    if cfg.loc>=2:
        return I(f"buffer_store_dwordx4 {vr(reg)}, v{vKVB if j&1 else vKVA}, {sr(sO2 if j>=2 else sO)}, s{sSt} offen{' offset:2080' if j&1 else ''}{p}")
    o=f" offset:{1024*j}" if j else ""
    return I(f"buffer_store_dwordx4 {vr(reg)}, v{vKVA if cfg.loc else vKVB}, {sr(sO)}, s{sSt} offen{o}{p}")
def blockB(b,t):
    reads=frag_reads(1,b+1); tag=f"h1KV{b+1}"
    out=[]; lead=(b%2==0)
    rp,wp=(sPo,sPe) if lead else (sPe,sPo)
    rx=sXo if lead else sXe
    u0=0 if lead else 2
    dr=[I(f"ds_read_b128 {vr(DR[k])}, v{vD[k]}"+(f" offset:{1024*(u0+k)}" if u0+k else ""), src=f"O{t+2}", slot=slotQ(t+2), private=True) for k in range(2)]
    plan=["VRD","RRR","XDR","RRD","RRR","RRD"] if not cfg.late else ["VRD","RRR","RDR","RRD","RRD","RR-"]
    nr=0; nd=0
    for r in range(6):
        ex={}; post={}
        if r==0:
            put(ex,0,[I(f"s_waitcnt vmcnt({8 if cfg.late else (12 if lead else 10)}) lgkmcnt(0)", need=tag, loose_ok=True)])
            put(ex,1,BAR())
            put(ex,2,[I(f"s_mov_b32 m0, s{wp}")]); put(ex,3,[I(f"s_xor_b32 s{rp}, s{rp}, s{rx}")])
            if lead and not cfg.late: spread(ex,6,[I(f"s_cmp_lt_u32 s{sT}, 3"), I(f"s_cselect_b32 s{sA+2}, s{sA+2}, 0"), I(f"s_cselect_b32 s{sB+2}, s{sB+2}, 0")])
        for g,c in zip(FREE,plan[r]):
            if c=='V': put(ex,g,setrd(rp))
            if c=='R': put(ex,g,reads[nr:nr+2]); nr+=2
            if c=='X': put(ex,g,dr)
            if c=='D': put(ex,g,[dma(nd,f"h1KV{b+4}",slotKV(1,b+4),va=vKVA,vb=vKVB)]); nd+=1
        if r==3 and cfg.late: put(ex,15,[I("s_waitcnt lgkmcnt(8)")])
        if r==3 and not cfg.late:
            put(ex,2,[I("s_waitcnt lgkmcnt(2)")]); put(ex,3,[ostore(DR[0],u0,cfg.st)])
        if r==5 and not cfg.late:
            put(ex,3,[ostore(DR[1],u0+1,cfg.st)])
        if r==0: put(ex,4,[I(f"s_add_u32 s{sOff}, s{sOff}, 8192")])
        if r==5 and not lead:
            if not cfg.late: put(ex,9,[I(f"s_add_u32 s{sSt}, s{sSt}, {QINC()}")])
            put(ex,13,[I(f"s_add_u32 s{sT}, s{sT}, 1")])
            put(ex,15,[I(f"s_cmp_lt_u32 s{sT}, {NB()}")])
            if not cfg.late: put(post,3,[I(f"v_add_u32 v{vD[0]}, {SLOT}, v{vD[0]}"), I(f"v_add_u32 v{vD[1]}, {SLOT}, v{vD[1]}")])
            put(ex,16,[I("s_cbranch_scc1 LloopB")])
        out+=step(72+6*b+1+r,ex,post,int(cfg.profB[1]))
    assert nr==24 and nd==4
    return out
def NB(): return 3 if cfg.late else 4
def loopB(t): return blockB(2*t+2,t)+blockB(2*t+3,t)


def blockE(b,lab,last,drain,lazy,nv):
    reads=frag_reads(1,b+1); tag=f"h1KV{b+1}"
    out=[]; lead=(b%2==0)
    rp,wp=(sPo,sPe) if lead else (sPe,sPo)
    rx=sXo if lead else sXe
    sub=b
    off=0 if lead else SLOT
    dr=[I(f"ds_read_b128 {vr(DR[j&1])}, v{vD[j&1]}"+(f" offset:{off+1024*j}" if off+j else ""), src=f"O{sub}", slot=slotQ(sub), private=True) for j in range(4)]
    dpos={0:11,2:11,3:11,5:14}; nd=0
    for r in range(6):
        ex={}; post={}
        if r==0:
            put(ex,0,[I(f"s_waitcnt vmcnt({nv}) lgkmcnt(0)", need=tag, loose_ok=True)])
            put(ex,1,BAR())
            put(ex,2,[I(f"s_mov_b32 m0, s{wp}")]); put(ex,3,[I(f"s_xor_b32 s{rp}, s{rp}, s{rx}")])
            put(ex,4,[I(f"s_add_u32 s{sOff}, s{sOff}, 8192")])
            put(post,4,setrd(rp))
            if lead and not drain: spread(ex,6,[I(f"s_cmp_lt_u32 s{sT}, 3"), I(f"s_cselect_b32 s{sA+2}, s{sA+2}, 0"), I(f"s_cselect_b32 s{sB+2}, s{sB+2}, 0")])
        if lazy:
            gs=[6,8,12,13] if r<5 else [2,6,8,9]
            for k in range(lazy): put(post,gs[k],[reads[4*r+k]])
            rest=reads[4*r+lazy:4*r+4]
            if rest: put(ex,16 if r<5 else 11,rest)
        else:
            rg=(5,16) if r<5 else (5,11)
            put(ex,rg[0],reads[4*r:4*r+2]); put(ex,rg[1],reads[4*r+2:4*r+4])
        if r in dpos:
            put(ex,dpos[r],[dma(nd,f"h1KV{b+4}",slotKV(1,b+4),va=vKVA,vb=vKVB)]); nd+=1
        if drain:
            if r==0: put(ex,14,[dr[0]]);
            if r==1: put(ex,11,[dr[1]]); put(ex,2,[WLn(2 if lazy<4 else 0,lazy)]); put(ex,3,[stx(0,sub)])
            if r==2: put(ex,14,[dr[2]]); put(ex,2,[I("s_waitcnt lgkmcnt(2)")]); put(ex,3,[stx(1,sub)])
            if r==4: put(ex,11,[dr[3]]); put(ex,3,[stx(2,sub)])
            if r==5: put(ex,1,[I("s_waitcnt lgkmcnt(2)")]); put(ex,3,[stx(3,sub)]); put(ex,7,[I(f"s_add_u32 s{sSt}, s{sSt}, {QINC()}")])
        if r==3: put(ex,15,[I(f"s_waitcnt lgkmcnt({min(lazy,4) if lazy else 2})")])
        if r==5 and not lead:
            put(ex,13,[I(f"s_add_u32 s{sT}, s{sT}, 1")])
            put(ex,15,[I(f"s_cmp_lt_u32 s{sT}, {last}")])
            if drain: put(post,4,[I(f"v_add_u32 v{vD[k]}, {2*SLOT}, v{vD[k]}") for k in range(2)])
            put(ex,16,[I(f"s_cbranch_scc1 {lab}")])
        out+=step(72+6*b+1+r,ex,post)
    assert nd==4
    return out
def WLn(n,lazy): return I(f"s_waitcnt lgkmcnt({4-lazy if lazy else 2})")
def stx(j,sub):
    st=ostore(DR[j&1],j,cfg.st); st.meta['expect']={r:f"O{sub}" for r in st.data}; return st
def loopB1(t): return blockE(2*t+2,"LloopB1",2,True,cfg.lazyB,12)+blockE(2*t+3,"LloopB1",2,True,cfg.lazyB,12)
def loopB2(t): return blockE(2*t+2,"LloopB2",4,False,0,8)+blockE(2*t+3,"LloopB2",4,False,0,8)

def tagexp(o,tag):
    if tag:
        h=0 if tag[0]=='O' else 1
        for x in o:
            x.meta['expect']={r:f"O{h}n12" for r in x.rd if (r[0]=='v' and r[1]>=64) or (r[0]=='a' and 224<=r[1]<248)}
    return o
def e_head(s,bad,tag,rc):
    o=[I(f"v_accvgpr_read_b32 v{T2}, a{Lr(s)}"), I(f"v_rcp_f32 v{rc}, v{T2}")]
    o.append(I(f"v_cmp_nge_f32 s[62:63], s{sThr}, v{T2}") if bad is not None else I("s_nop 0"))
    if bad is not None: o.append(I(f"s_or_b64 s[{bad}:{bad+1}], s[{bad}:{bad+1}], s[62:63]"))
    return tagexp(o,tag)
def e_pk(s,dt,tag,rc):
    a=O(s,dt)
    return tagexp([I(f"v_pk_mul_f32 {vr(a+k,2)}, {vr(a+k,2)}, v[{rc}:{rc+1}] op_sel_hi:[1,0]") for k in (0,2)],tag)
def e_cvt(s,dt,tag):
    a=O(s,dt)
    return tagexp([I(f"v_cvt_pk_bf16_f32 v{a}, v{a}, v{a+1}"), I(f"v_cvt_pk_bf16_f32 v{a+1}, v{a+2}, v{a+3}")],tag)
def e_wr(s,dt,off,slot,tag,regs=vW):
    of=off+(dt>>2)*128
    return tagexp([I(f"ds_write_b64 v{regs[dt&3]}, {vr(O(s,dt),2)}"+(f" offset:{of}" if of else ""), wslot=slot, wtag=tag)],tag)[0]
def epi_rd(s, off, slot, tag=None, regs=vR):
    o=[]
    for j in range(4):
        of=off+1024*j
        m=dict(src=tag,slot=slot,private=True) if tag else {}
        o.append(I(f"ds_read_b128 {vr(O(s,2*j))}, v{regs[j&1]}"+(f" offset:{of}" if of else ""), **m))
    return o
def epi_st(s,pol,tag=None):
    o=[ostore(O(s,2*j),j,pol) for j in range(4)]
    if tag:
        for x in o: x.meta['expect']={r:tag for r in x.data}
    return o
def epi(s,off,slot,bad=None,tag=None,regs=vW):
    o=e_head(s,bad,tag,T1)
    for dt in range(8): o+=e_pk(s,dt,tag,T1)
    for dt in range(8): o+=e_cvt(s,dt,tag)
    for dt in range(8): o.append(e_wr(s,dt,off,slot,tag,regs))
    return o

class Epi:
    def __init__(s,rc2=14): s.rc2=rc2; s.tiles=[]; s.cv=[]; s.wr=[]; s.rd=[]; s.st=[]; s.info={}
    def add(s,sub,avail,off,slot,bad,tag,direct,pol,pre=()):
        s.info[sub]=dict(off=off,slot=slot,bad=bad,tag=tag,direct=direct,pol=pol,pre=list(pre))
        s.tiles+=[(avail,sub,dt) for dt in range(8)]
    def mem(s,nst):
        g=[]
        for _ in range(nst):
            if s.st: g.append(s.st.pop(0))
        rd=s.rd; s.rd=[]
        for sub in rd:
            I_=s.info[sub]; r=epi_rd(sub,I_['off'],I_['slot'],I_['tag']); g+=[[x] for x in r]
            st=epi_st(sub,I_['pol'],I_['tag'])
            s.st+=[[WL(r[1]),st[0]],[st[1]],[WL(r[3]),st[2]],[st[3],I(f"s_add_u32 s{sSt}, s{sSt}, {QINC()}")]]
        for sub,dt in s.wr:
            I_=s.info[sub]
            g.append(([I_['pre'][dt]] if (I_['pre'] and dt<4) else [])+[e_wr(sub,dt,I_['off'],I_['slot'],I_['tag'])])
            if dt==7 and I_['direct']: s.rd.append(sub)
        s.wr=[]
        return g
    def chunk(s,i,n):
        take=[]
        while s.tiles and len(take)<n and s.tiles[0][0]<=i: take.append(s.tiles.pop(0)[1:])
        o=[]
        for sub,dt in s.cv: o+=e_cvt(sub,dt,s.info[sub]['tag']); s.wr.append((sub,dt))
        s.cv=[]
        for sub,dt in take:
            I_=s.info[sub]; rc=T1 if sub%2==0 else s.rc2
            if dt==0: o+=e_head(sub,I_['bad'],I_['tag'],rc)
            o+=e_pk(sub,dt,I_['tag'],rc)
        k=max(1,len(take)-2) if s.tiles and s.tiles[0][0]<=i+1 else len(take)
        for sub,dt in take[:k]: o+=e_cvt(sub,dt,s.info[sub]['tag']); s.wr.append((sub,dt))
        s.cv=take[k:]
        return o
    def done(s): return not(s.tiles or s.cv or s.wr or s.rd or s.st)

def startA():
    o=[I("; ---- head A start")]
    f0=frag_reads(0,0); f1=frag_reads(0,1,base=SLOT); f2=frag_reads(0,2)
    o+=setrd(sW4)
    o.append(WV("h0Q0")); o+=BAR()
    o+=[qread(0,0,ks) for ks in range(4)]+f0[:8]
    seq=[]
    for s in (3,4,5): seq+=[('q',s,j) for j in range(4)]
    for b in (2,3,4,5): seq+=[('k',b,j) for j in range(4)]
    def dm():
        k,x,j=seq.pop(0)
        it=[]
        if j==0:
            it+=[setm0(slotQ(x) if k=='q' else slotKV(0,x)), I(f"s_add_u32 s{sTmp}, s{sTmp}, {QINC()}") if k=='q' else I(f"s_add_u32 s{sOff}, s{sOff}, 8192")]
        it.append(qdma(0,x,j,sTmp) if k=='q' else kvdma(0,x,j))
        return it
    for i in range(-1,13):
        ex={}; post={}
        if i==-1:
            put(ex,-1,[WL(f0[0])])
            for k in range(8):
                put(ex,k,f0[8+2*k:10+2*k]+([WL(f0[k+1])] if k<7 else []))
            put(ex,7,dm()+dm())
            put(ex,7,[WV("h0KV1")]+BAR()+f1[:8])
            put(ex,17,[WL(f1[7])])
        else:
            if i==0:
                for k in range(8): put(ex,k,f1[8+2*k:10+2*k])
            if i==3: put(ex,0,[I("s_waitcnt lgkmcnt(0)")]); put(ex,1,BAR())
            if i%2==0 and i<=8:
                s=i//2+1
                qs=[qread(0,s,ks) for ks in range(4)]
                put(ex,2 if i else 8,dm()); put(ex,5 if i else 8,dm())
                if s==4: put(post,9,bias(QREGS,True))
                put(ex,10,[WV(f"h0Q{s}")]); put(ex,11,qs[:2]); put(ex,12,[qs[2]]); put(ex,13,[qs[3]])
                if s==5: put(post,16,bias(QREGS,False))
                put(ex,17,[WL(qs[3])])
            elif i==10:
                put(ex,0,[WV("h0KV2",True)]); put(ex,1,BAR())
                put(ex,2,[I(f"s_add_u32 s{sCur}, s{sW4}, {8*SLOT}")]); put(post,3,setrd(sCur))
                place(ex,f2[:8],lo=4,hi=12)
                put(ex,14,dm()); put(ex,16,dm())
                put(ex,17,[WL(f2[7])])
            elif i==12:
                place(ex,f2[8:],lo=0,hi=13)
                put(ex,14,dm()); put(ex,16,dm())
                put(ex,15,[I(f"s_mov_b32 s{sCur}, s{sW4}")])
            else:
                put(ex,5,dm()); put(ex,10,dm())
        if cfg.fill and 0<=i<=9:
            put(ex,-1,[I(f"v_mfma_f32_16x16x32_bf16 a[252:255], {ar(Kf(0,k%8))}, {ar(Qr(0,k%4))}, a[252:255]") for k in range(cfg.fill)])
        o+=step(i,ex,post,cfg.profS if i>=8 else 0)
    assert not seq
    return o

def trans():
    o=[]
    f11=frag_reads(0,11); g0=frag_reads(1,0); g1=frag_reads(1,1,base=SLOT); g2=frag_reads(1,2)
    E=Epi()
    idxA={u:k for k,u in enumerate(LA)}
    for s in range(6):
        E.add(s,60+idxA[(11,s)]+2,(s%4)*SLOT,slotQ(s),sBad,f"O{s}",s<2,cfg.st,pre=(bias(vW,True) if s==4 else ()))
    Q=lambda s:[qread(1,s,k) for k in range(4)]
    q5=Q(5)
    R={61:f11[:8], 62:f11[8:16], 63:f11[16:24], 64:Q(0), 65:Q(1), 67:Q(2), 68:Q(3), 69:g0[:4], 70:g0[4:8], 71:g0[8:16], 72:g1[:8], 73:g0[16:24],
       74:g1[8:18], 75:g1[18:24], 76:Q(4), 78:q5, 81:g2[:4], 82:g2[4:8], 83:g2[8:16], 84:g2[16:24]}
    D={}
    for (k,x),steps in zip([('q',4),('q',5),('k',2),('k',3),('k',4),('k',5)],
                           [[61,62,63,64],[65,66,66,67],[69,70,71,72],[76,77,77,78],[79,79,80,80],[81,82,83,84]]):
        for j,i in enumerate(steps): D.setdefault(i,[]).append((k,x,j))
    for i in range(61,85):
        ex={}; post={}
        rs=R.get(i,[]); lo=0; hi=16
        q=unit(i+1); mx=(q[1]==0)
        if i==61:
            put(ex,0,[WV("h0KV11",True)]); put(ex,1,BAR()); put(post,2,setrd(sCur)); lo=3; hi=12
            put(ex,17,[WL(f11[7])])
            put(ex,2,[I(f"s_add_u32 s{sSt}, s{sH}, s{sQw}")])
        if i==64: put(ex,0,[WV("h1Q3")]); put(ex,7,[WL(f11[23])]); lo=1
        if i==69:
            put(ex,0,[WV("h1KV1",True)]); put(ex,1,BAR()); put(post,2,setrd(sW4)); lo=3
            put(ex,2,[I(f"s_add_u32 s{sOff}, s{sHn}, s{sKVw}")]); put(ex,3,[I(f"s_add_u32 s{sOff}, s{sOff}, 8192")])
        if i==70: hi=12; put(ex,17,[WL(g0[7])])
        if i==72: hi=12; put(ex,17,[WL(g1[7])])
        if i==73: hi=5; put(ex,7,[WL(g0[17])]); put(ex,11,[WL(g0[23])])
        if i==75: hi=6; put(ex,7,[WL(g1[17])]); put(ex,12,[WL(g1[23])]); put(post,9,bias(QREGS,True))
        if i==76: put(ex,0,[WV("h1Q4",True)]); put(ex,1,BAR()); lo=2
        if i==77: put(ex,15,[WL(R[76][3])])
        if i==78: put(ex,0,[WV("h1Q5")]); lo=1
        if i==79: put(ex,15,[WL(q5[3])]); put(post,5,bias(QREGS,False))
        if i==81:
            put(ex,0,[WV("h1KV2",True)]); put(ex,1,BAR())
            put(ex,2,[I(f"s_add_u32 s{sPe}, s{sW4}, {8*SLOT}")]); put(post,2,setrd(sPe)); lo=4
            put(ex,3,[I(f"s_add_u32 s{sPo}, s{sW4}, {2*SLOT}")])
        if i==82: hi=12; put(ex,17,[WL(g2[7])])
        if i==84: hi=12
        ch_n=cfg.rho
        mem=E.mem(2)
        ch=E.chunk(i,ch_n)
        free=[g for g in FREE if not(g==16 and (ch or mx)) and not (g==11 and mx)]
        place(ex,rs,lo=lo,hi=hi,free=free)
        dg=[]
        for (k,x,j) in D.get(i,[]):
            pre=[]
            if j==0:
                pre=[setm0(slotQ(x) if k=='q' else slotKV(1,x)), I(f"s_add_u32 s{sOff}, s{sOff}, {QINC() if k=='q' else 8192}")]
            dg.append(pre+[qdma(1,x,j,sOff) if k=='q' else kvdma(1,x,j)])
        place(ex,dg,lo=max(lo,4),hi=16,free=free)
        qlast=max([g for g,v in ex.items() if any(x.meta.get('src','').startswith('h1Q') for x in v)]+[-1])
        need_after=any(kind(gr[-1])=='w' and any(x.meta.get('slot')==gr[-1].meta['wslot'] for x in rs) for gr in mem)
        place(ex,mem,lo=(qlast+1 if need_after else (2 if i in (69,76,81) else 0)),hi=15,free=free)
        put(post,16,ch)
        if i==84:
            spread(ex,0,[I(f"s_mov_b32 s{sT}, 0"), I(f"s_mov_b64 s[{sA}:{sA+1}], s[{sKA}:{sKA+1}]"), I(f"s_mov_b64 s[{sB}:{sB+1}], s[{sVB}:{sVB+1}]")])
            put(ex,17,[WV("h1KV3")])
        if i==83:
            put(post,16,bias(vW,False)+[I(f"v_add_u32 v{vD[k]}, {2*SLOT}, v{vR[k]}") for k in range(2)])
        o+=step(i,ex,post)
    assert E.done()
    return o

def tailB():
    o=[]
    f11=frag_reads(1,11)
    E=Epi()
    idx={u:k for k,u in enumerate(LB)}
    for s in range(5):
        sl=3+(s%3)
        E.add(s,132+idx[(11,s)]+2,(sl-2)*SLOT,sl,sBad2,f"P{s}",True,cfg.st2)
    dq=[(sub,j) for sub in range(2,6) for j in range(4)] if cfg.late else []
    pend=[]
    def drain(i,ex,lo=0):
        nonlocal pend
        g=[]
        for rdx,sub,j in pend:
            st=ostore(DR[j&1],j,cfg.st); st.meta['expect']={r:f"O{sub}" for r in st.data}
            g.append([WL(rdx),st]+([I(f"s_add_u32 s{sSt}, s{sSt}, {QINC()}")] if j==3 else []))
        pend=[]
        place(ex,g,lo=max(lo,2),hi=4)
        if dq:
            sub,j=dq.pop(0)
            of=(sub-2)*SLOT+1024*j
            x=I(f"ds_read_b128 {vr(DR[j&1])}, v{vD[j&1]}"+(f" offset:{of}" if of else ""), src=f"O{sub}", slot=slotQ(sub), private=True)
            pend.append((x,sub,j)); return [x]
        return []
    if cfg.late:
        for b in (8,9):
            reads=frag_reads(1,b+1); lead=(b%2==0)
            rp=sPo if lead else sPe; rx=sXo if lead else sXe
            for r in range(6):
                ex={}; post={}; i=72+6*b+1+r; lo=0
                if r==0:
                    put(ex,0,[WV(f"h1KV{b+1}",True)]); put(ex,1,BAR())
                    put(ex,2,[I(f"s_xor_b32 s{rp}, s{rp}, s{rx}")]); put(post,4,setrd(rp)); lo=3
                d=drain(i,ex,lo)
                rs=reads[4*r:4*r+4]
                place(ex,(rs+d) if r<5 else (rs[:2]+d+rs[2:]),lo=5,hi=(16 if r<5 else 12))
                if r==3: put(ex,17,[WL(reads[7])])
                o+=step(i,ex,post)
    for i in range(133,145):
        ex={}; post={}
        d=drain(i,ex,3) if cfg.late else []
        if d: place(ex,d,lo=14,hi=16)
        if cfg.late and i==137: put(ex,6,[I(f"s_add_u32 s{sSt}, s{sHn}, s{sQw}")])
        if i==133:
            put(ex,0,[WV("h1KV11",True)]); put(ex,1,BAR())
            put(ex,2,[I(f"s_xor_b32 s{sPo}, s{sPo}, s{sXo}")]); put(post,2,setrd(sPo))
            place(ex,f11[:8],lo=3,hi=12)
            put(ex,17,[WL(f11[7])])
            if not cfg.late: put(ex,14,[I(f"s_add_u32 s{sSt}, s{sHn}, s{sQw}")])
        if i==134: place(ex,f11[8:14])
        if i==135: place(ex,f11[14:20])
        if i==136: place(ex,f11[20:24],hi=5); put(ex,7,[WL(f11[19])]+TL()); put(ex,13,[WL(f11[23])])
        mem=E.mem(4)
        ch=E.chunk(i,cfg.rho2)
        lo=0 if i<143 else 8
        free=[g for g in FREE if not(g==16 and ch)] if i<144 else list(range(8,16))
        place(ex,mem,lo=lo,hi=15,free=free)
        put(post,16,ch)
        o+=step(i,ex,post)
    assert not E.tiles and not E.cv
    tag="P5"; sl=5; off=3*SLOT
    m1=[x for g in E.mem(8) for x in g]
    o+=m1
    hd=e_head(5,sBad2,tag,T1)
    o+=[I("s_nop 3")]+hd
    for dt in range(8): o+=e_pk(5,dt,tag,T1)
    o+=[x for g in E.mem(8) for x in g]
    for dt in range(8): o+=e_cvt(5,dt,tag)+([e_wr(5,dt-1,off,sl,tag)] if dt else [])
    o.append(e_wr(5,7,off,sl,tag))
    rd=epi_rd(5,off,sl,tag); o+=rd
    o+=[x for g in E.mem(8) for x in g]
    assert E.done()
    st=epi_st(5,cfg.st2,tag)
    for j in range(4): o+=[WL(rd[j]), st[j]]
    return o

def stamp(k):
    if not cfg.stamps: return []
    op="s_memrealtime" if (cfg.echo>=0 or cfg.rt) else "s_memtime"
    return [I(f"{op} s[{sStamp+4+2*k}:{sStamp+5+2*k}]", skip=True)]

def prologue():
    o=[]
    A=lambda t,**k: o.append(I(t,**k))
    A("s_cmp_ge_u32 s2, 256"); A("s_cbranch_scc1 Lend")
    A("s_load_dwordx4 s[4:7], s[0:1], 0"); A("s_load_dwordx4 s[8:11], s[0:1], 16")
    if cfg.stamps:
        A(f"s_load_dwordx2 s[{sDbg}:{sDbg+1}], s[0:1], 32")
        A(f"s_memtime s[{sStamp}:{sStamp+1}]"); A(f"s_memrealtime s[{sStamp+2}:{sStamp+3}]")
    if cfg.tl:
        A("s_mov_b64 s[90:91], 1"); A("s_memtime s[98:99]"); A("s_memrealtime s[100:101]")
    if cfg.cpf:
        A("s_getpc_b64 s[62:63]"); A("s_lshr_b32 s3, s2, 3"); A("s_mul_i32 s3, s3, 1408")
        A("v_min_u32 v1, 10, v0"); A("v_lshlrev_b32 v1, 7, v1"); A("v_add_u32 v1, s3, v1")
        A("global_load_dword v61, v1, s[62:63]")
    A("v_lshrrev_b32 v1, 6, v0"); A("v_and_b32 v0, 63, v0"); A("v_readfirstlane_b32 s3, v1")
    A(f"v_lshlrev_b32 v{vKVB}, 4, v0")
    A(f"v_lshrrev_b32 v2, 4, v0")
    A(f"v_lshlrev_b32 v3, 6, v2")
    A(f"v_xor_b32 v{vQB}, v{vKVB}, v3")
    if cfg.loc>=2: A(f"v_mov_b32 v{vQA}, v{vQB}"); A(f"v_add_u32 v{vQB}, 2016, v{vQB}")
    else: A(f"v_add_u32 v{vQA}, 1056, v{vQB}")
    if cfg.loc>=1: A(f"v_mov_b32 v{vKVA}, v{vKVB}"); A(f"v_add_u32 v{vKVB}, 2016, v{vKVB}")
    else: A(f"v_add_u32 v{vKVA}, 1056, v{vKVB}")
    A(f"s_mul_i32 s{sW4}, s3, {WREG}"); A(f"s_lshl_b32 s{sKVw}, s3, {10 if cfg.loc>=1 else 11}"); A(f"s_mul_i32 s{sQw}, s3, {1024 if cfg.loc>=2 else 24576}")
    if cfg.diag=='l2only': A("s_and_b32 s62, s2, 7"); A(f"s_mul_i32 s{sH}, s62, {2*HEADB}")
    else: A(f"s_mul_i32 s{sH}, s2, {2*HEADB}")
    A(f"s_add_u32 s{sHn}, s{sH}, {HEADB}")
    for r in (sKA,sVB,sQA,sQB):
        A(f"s_mov_b32 s{r+2}, {TOTB+4096}"); A(f"s_mov_b32 s{r+3}, 0x20000")
    A(f"s_add_u32 s{sOff}, s{sH}, s{sKVw}")
    A(f"s_add_u32 s{sTmp}, s{sH}, s{sQw}")
    o.append(setm0(0))
    A("s_waitcnt lgkmcnt(0)")
    A(f"s_sub_u32 s{sKA}, s6, {0 if cfg.loc>=1 else 1056}"); A(f"s_subb_u32 s{sKA+1}, s7, 0")
    A(f"s_sub_u32 s{sVB}, s8, {1024 if cfg.loc>=1 else 2080}"); A(f"s_subb_u32 s{sVB+1}, s9, 0")
    o+=[kvdma(0,0,j) for j in (0,2,1,3)]
    if cfg.loc>=2:
        A(f"s_mov_b64 s[{sQA}:{sQA+1}], s[4:5]")
        A(f"s_add_u32 s{sQB}, s4, {8192-1024}"); A(f"s_addc_u32 s{sQB+1}, s5, 0")
    else:
        A(f"s_sub_u32 s{sQA}, s4, 1056"); A(f"s_subb_u32 s{sQA+1}, s5, 0")
        A(f"s_sub_u32 s{sQB}, s4, 32"); A(f"s_subb_u32 s{sQB+1}, s5, 0")
    def qd(s):
        o.append(setm0(slotQ(s)))
        A(f"s_add_u32 s{sTmp}, s{sTmp}, {QINC()}" if s else "s_nop 0")
        o.extend(qdma(0,s,j,sTmp) for j in range(4))
    qd(0)
    o.append(setm0(1)); A(f"s_add_u32 s{sOff}, s{sOff}, 8192")
    o+=[kvdma(0,1,j) for j in (0,2,1,3)]
    A(f"s_mov_b64 s[{sA}:{sA+1}], s[{sKA}:{sKA+1}]"); A(f"s_mov_b64 s[{sB}:{sB+1}], s[{sVB}:{sVB+1}]")
    for r in (sA,sB):
        A(f"s_mov_b32 s{r+2}, {TOTB+4096}"); A(f"s_mov_b32 s{r+3}, 0x20000")
    A(f"s_movk_i32 s{sInc}, 8192")
    A(f"v_mov_b32 v{vA}, v{vKVA}"); A(f"v_mov_b32 v{vB}, v{vKVB}")
    A(f"s_mov_b32 s{sO}, s10"); A(f"s_mov_b32 s{sO+1}, s11"); A(f"s_mov_b32 s{sO+2}, {0 if cfg.diag else TOTB}"); A(f"s_mov_b32 s{sO+3}, 0x20000")
    if cfg.loc>=2:
        A(f"s_add_u32 s{sO2}, s10, 8192"); A(f"s_addc_u32 s{sO2+1}, s11, 0"); A(f"s_mov_b32 s{sO2+2}, {0 if cfg.diag else TOTB-8192}"); A(f"s_mov_b32 s{sO2+3}, 0x20000")
    A(f"s_mov_b32 s{sC}, 0x3e0293ee"); A(f"s_mov_b32 s{sNC}, 0xbe0293ee"); A(f"s_mov_b32 s{sThr}, 0x49800000")
    A(f"s_add_u32 s{sEnd}, s{sW4}, {NSLOT*SLOT}")
    A(f"s_add_u32 s{sQn}, s{sHn}, s{sQw}")
    A(f"s_mov_b32 s{sT}, 0"); A("s_mov_b64 vcc, -1")
    A(f"s_mov_b64 s[{sBad}:{sBad+1}], 0"); A(f"s_mov_b64 s[{sBad2}:{sBad2+1}], 0")
    A(f"s_add_u32 s{sXe}, s{sW4}, {8*SLOT}"); A(f"s_add_u32 s62, s{sW4}, {1*SLOT}"); A(f"s_xor_b32 s{sXe}, s{sXe}, s62")
    A(f"s_add_u32 s{sXo}, s{sW4}, {2*SLOT}"); A(f"s_xor_b32 s{sXo}, s{sXo}, s{sW4}")
    A("v_and_b32 v3, 7, v0"); A(f"v_mul_u32_u24 v{vKl}, 2080, v3")
    A("v_bfe_u32 v3, v0, 3, 1"); A(f"v_lshl_add_u32 v{vKl}, v3, 8, v{vKl}")
    A(f"v_lshl_add_u32 v{vKl}, v2, 4, v{vKl}"); A(f"v_subrev_u32 v{vKl}, s{sW4}, v{vKl}")
    A("v_bfe_u32 v3, v0, 2, 3"); A(f"v_mul_u32_u24 v{vVl}, 2080, v3")
    A("v_lshrrev_b32 v3, 5, v0"); A(f"v_lshl_add_u32 v{vVl}, v3, 8, v{vVl}")
    A("v_and_b32 v4, 3, v0"); A(f"v_lshl_add_u32 v{vVl}, v4, 3, v{vVl}")
    A(f"v_add_u32 v{vVl}, 1024, v{vVl}"); A(f"v_subrev_u32 v{vVl}, s{sW4}, v{vVl}")
    A(f"s_add_u32 s62, s{sW4}, {2*SLOT}")
    A("v_bfe_u32 v3, v0, 2, 1"); A("v_mul_u32_u24 v5, 2080, v3")
    A("v_bfe_u32 v3, v0, 3, 1"); A("v_lshl_add_u32 v5, v3, 10, v5")
    A("v_lshl_add_u32 v5, v4, 8, v5"); A("v_lshl_add_u32 v5, v2, 4, v5"); A(f"v_add_u32 v5, s62, v5")
    for ks in range(4):
        A(f"v_xor_b32 v3, {ks}, v4"); A(f"v_lshl_add_u32 v{vQ+ks}, v3, 6, v5")
    A("v_and_b32 v8, 15, v0"); A("v_xor_b32 v9, v8, v2"); A("v_lshlrev_b32 v10, 8, v2"); A("v_add_u32 v10, s62, v10")
    A(f"v_lshl_add_u32 v{vR[0]}, v9, 4, v10"); A("v_xor_b32 v9, 4, v9"); A(f"v_lshl_add_u32 v{vR[1]}, v9, 4, v10")
    A("v_lshlrev_b32 v10, 8, v8"); A("v_and_b32 v9, 1, v2"); A("v_lshl_add_u32 v10, v9, 3, v10"); A("v_add_u32 v10, s62, v10")
    A("v_lshrrev_b32 v9, 1, v2"); A("v_and_b32 v8, 7, v0"); A("v_xor_b32 v9, v9, v8")
    A("v_mov_b32 v11, 0x3f803f80"); A("v_cmp_eq_u32 s[62:63], 0, v4")
    for k in range(4):
        A(f"v_xor_b32 v8, {2*k}, v9"); A(f"v_lshl_add_u32 v{vW[k]}, v8, 4, v10")
    A("v_cndmask_b32 v11, 0, v11, s[62:63]")
    for k in range(4): A(f"v_accvgpr_write_b32 a{ONES+k}, v11")
    if cfg.warm:
        A(f"s_mov_b32 s62, {cfg.warm}"); A("Lwarm:")
        for k in range(8): A(f"v_mfma_f32_16x16x32_bf16 {vr(64+4*k)}, {vr(46)}, {vr(52)}, {vr(64+4*k)}")
        A("s_sub_u32 s62, s62, 1"); A("s_cmp_lg_u32 s62, 0"); A("s_cbranch_scc1 Lwarm")
    qd(1); qd(2)
    return o

def slow_path():
    o=[]
    A=lambda t,**k: o.append(I(t,**k))
    sP=sCur
    A("Lslow:")
    A("s_waitcnt vmcnt(0) lgkmcnt(0)")
    A(f"s_mul_i32 s{sP}, s3, {SLOT}")
    A(f"s_add_u32 s{sTmp}, s{sP}, s{sW4}")
    o+=setrd(sTmp)
    A(f"s_sub_u32 s62, s{sP}, {2*SLOT}")
    for k in range(4): A(f"v_add_u32 v{8+k}, s62, v{vQ+k}")
    A(f"s_mov_b32 m0, s{sTmp}")
    A(f"s_add_u32 s{sOff}, s{sH}, s{sQw}")
    for s in range(6):
        o+=[qdma(0,s,j,sOff) for j in range(4)]
        A("s_waitcnt vmcnt(0)")
        for ks in range(4): A(f"ds_read_b128 {ar(Qr(s,ks))}, v{8+ks}")
        A(f"s_add_u32 s{sOff}, s{sOff}, {QINC()}")
        A("s_waitcnt lgkmcnt(0)")
    for s in range(6): A(f"v_mov_b32 v{MN+s}, 0xff800000")
    def loadkv():
        for j in range(4):
            A(f"s_add_u32 m0, s{sP}, {j*WREG}"); A("s_nop 0")
            o.extend(kvdma(0,0,jj) for jj in range(4))
            A(f"s_add_u32 s{sOff}, s{sOff}, {1024 if cfg.loc>=1 else 2048}")
        if cfg.loc>=1: A(f"s_add_u32 s{sOff}, s{sOff}, 4096")
        A("s_waitcnt vmcnt(0)")
    A(f"s_mov_b32 s{sOff}, s{sH}"); A(f"s_mov_b32 s{sT}, 0")
    A("Lslow1:")
    loadkv()
    for i in range(8): o.append(I(kread(0,i,None,None).text))
    A("s_waitcnt lgkmcnt(0)")
    for s in range(6):
        o+=qk_mfmas(s,0,0)
        A("s_nop 7")
        S=SB[0]
        for e in range(0,8,2): A(f"v_max3_f32 v{MN+s}, v{MN+s}, v{S+e}, v{S+e+1}")
    A(f"s_add_u32 s{sT}, s{sT}, 1"); A(f"s_cmp_lt_u32 s{sT}, 12"); A("s_cbranch_scc1 Lslow1")
    for s in range(6):
        m=MN+s
        A(f"v_mov_b32 v{T1}, v{m}"); A("s_nop 1"); A(f"v_permlane16_swap_b32 v{m}, v{T1}"); A(f"v_max_f32 v{m}, v{m}, v{T1}")
        A(f"v_mov_b32 v{T1}, v{m}"); A("s_nop 1"); A(f"v_permlane32_swap_b32 v{m}, v{T1}"); A(f"v_max_f32 v{m}, v{m}, v{T1}")
        A(f"v_mul_f32 v{m}, s{sNC}, v{m}")
    for r in range(64,256): A(f"v_mov_b32 v{r}, 0")
    for r in range(224,248): A(f"v_accvgpr_write_b32 a{r}, 0")
    A(f"s_mov_b32 s{sOff}, s{sH}"); A(f"s_mov_b32 s{sT}, 0")
    A("Lslow2:")
    loadkv()
    for i in range(8): o.append(I(kread(0,i,None,None).text))
    A("s_waitcnt lgkmcnt(0)")
    for i in range(16):
        o.append(I(vread(0,i,None,None).text))
        if i==7: A("s_waitcnt lgkmcnt(0)")
    A("s_waitcnt lgkmcnt(0)")
    for s in range(6):
        o+=qk_mfmas(s,0,0)
        A("s_nop 7")
        for gp in sm_gaps(s,0,0): o+=gp
        A("s_nop 1")
        o+=pv_mfmas(s,0,0,False)
    A(f"s_add_u32 s{sT}, s{sT}, 1"); A(f"s_cmp_lt_u32 s{sT}, 12"); A("s_cbranch_scc1 Lslow2")
    A("s_nop 7")
    A(f"s_add_u32 s{sSt}, s{sH}, s{sQw}")
    A(f"s_sub_u32 s62, s{sP}, {2*SLOT}")
    for k in range(4): A(f"v_add_u32 v{8+k}, s62, v{vW[k]}")
    for k in range(2): A(f"v_add_u32 v{12+k}, s62, v{vR[k]}")
    for s in range(6):
        o+=epi(s,0,None,regs=[8,9,10,11])+epi_rd(s,0,None,regs=[12,13])+[I("s_waitcnt lgkmcnt(0)")]+epi_st(s,"")
        A(f"s_add_u32 s{sSt}, s{sSt}, {QINC()}")
    A("s_branch Lslow_ret")
    for x in o:
        for k in ('tag','slot','wslot','wtag'): x.meta.pop(k,None)
    return o

def resolve(trace):
    vm=[]; lg=[]
    for x in trace:
        if x.label or x.meta.get('skip'): continue
        if 'auto_vm' in x.meta:
            idx=[k for k,y in enumerate(vm) if y.meta.get('tag')==x.meta['auto_vm']]
            n=min(63,len(vm)-1-max(idx)); x.text=x.text.replace("vmcnt(AUTO)",f"vmcnt({n})"); x.meta['loose_ok']=True
        if 'auto_lg' in x.meta:
            k=[i for i,y in enumerate(lg) if y is x.meta['auto_lg']]
            assert k, "WL target not issued before wait: "+x.meta['auto_lg'].text
            n=min(15,len(lg)-1-k[0]); x.text=x.text.replace("lgkmcnt(AUTO)",f"lgkmcnt({n})")
        if x.kind=='vmem': vm.append(x)
        if x.kind=='ds': lg.append(x)

def build():
    P=prologue(); SA=startA(); RA=rampA(); TR=trans(); TB=tailB()
    txt=lambda L:[x.text for x in L if not x.text.startswith(';')]
    assert txt(loopA1(0))==txt(loopA1(1)); assert txt(loopA2(2))==txt(loopA2(3))
    for t in range(NB()): assert txt(loopB(t))==txt(loopB(0))
    assert txt(loopB1(0))==txt(loopB1(1)); assert txt(loopB2(2))==txt(loopB2(3))
    if cfg.early: assert not cfg.late
    trace=P+SA
    trace+=RA+midA()+loopA2(2)+loopA2(3)
    trace+=TR
    if cfg.early: trace+=loopB1(0)+loopB1(1)+loopB2(2)+loopB2(3)
    else:
        for t in range(NB()): trace+=loopB(t)
    trace+=TB
    resolve(trace)
    trace=[x for x in trace if not x.meta.get('skip')]
    probs=check_trace(trace)
    sp=slow_path()
    probs+=check_trace(sp+slow_path())
    seen=set()
    for p in probs:
        if p not in seen: print(p); seen.add(p)
    S=list(P)
    S+=stamp(0)+SA+stamp(1)
    nd=(lambda L:[x for x in L if not getattr(x,'dma',False)]) if cfg.diag=='nodma' else (lambda L:L)
    S+=nd(RA)+midA()+[I(".p2align 3"),I("LloopA2:")]+nd(loopA2(2))
    S+=stamp(2)+nd(TR)+stamp(3)
    if cfg.early: S+=[I(".p2align 3"),I("LloopB1:")]+nd(loopB1(0))+[I(".p2align 3"),I("LloopB2:")]+nd(loopB2(2))
    else: S+=[I(".p2align 3"),I("LloopB:")]+nd(loopB(0))
    S+=stamp(4)+TB+stamp(5)
    if cfg.slow:
        S+=[I(f"s_or_b64 s[62:63], s[{sBad}:{sBad+1}], s[{sBad2}:{sBad2+1}]"),
            I("s_waitcnt vmcnt(24)"), I("s_barrier"), I("s_cbranch_scc1 Lslow_entry")]
    S+=[I("Lfin:")]
    if cfg.stamps:
        S+=[I("s_waitcnt vmcnt(0)"), I(f"s_memtime s[{sStamp+16}:{sStamp+17}]"), I(f"s_memrealtime s[{sStamp+18}:{sStamp+19}]"), I("s_waitcnt lgkmcnt(0)")]
        if cfg.echo>=0:
            esrc=[sStamp+2]+[sStamp+4+2*k for k in range(6)]+[sStamp+18]
            S+=[I(f"s_add_u32 s62, s{esrc[cfg.echo]}, 10000"), I("Lspin:"), I("s_sleep 2"), I("s_memrealtime s[88:89]"), I("s_waitcnt lgkmcnt(0)"),
                I("s_sub_u32 s63, s88, s62"), I("s_cmp_lt_i32 s63, 0"), I("s_cbranch_scc1 Lspin")]
        S+=[I(f"v_mov_b32 v8, s{sStamp+2}"), I(f"v_mov_b32 v9, s{sStamp+18}")]
        srcs=[sStamp+4+2*k for k in range(6)]+[sStamp+(18 if cfg.rt else 16)]
        for k,r in enumerate(srcs):
            S+=[I(f"s_sub_u32 s{sTmp}, s{r}, s{sStamp+(2 if cfg.rt else 0)}"), I(f"v_mov_b32 v{10+k}, s{sTmp}")]
        S+=[I("v_mov_b32 v17, 0"), I("v_mov_b32 v18, 0")]
        S+=[I("s_getreg_b32 s62, hwreg(HW_REG_XCC_ID)"), I("v_mov_b32 v19, s62")]
        S+=[I(f"s_mov_b32 s24, s{sDbg}"), I(f"s_mov_b32 s25, s{sDbg+1}"), I(f"s_mov_b32 s26, {cfg.dbgsz}"), I("s_mov_b32 s27, 0x20000"),
            I("s_lshl_b32 s62, s2, 8"), I("s_lshl_b32 s63, s3, 6"), I("s_add_u32 s62, s62, s63"), I("v_mov_b32 v1, 0")]
        if cfg.tl:
            S+=TL()+[I("s_waitcnt lgkmcnt(0)")]+TL()+[I("s_lshl_b32 s61, s62, 3"), I("s_add_u32 s61, s61, 65536"), I(f"v_lshrrev_b32 v5, 2, v{vKVA if cfg.loc else vKVB}"),
                I("buffer_store_dword v0, v5, s[24:27], s61 offen"), I("buffer_store_dword v61, v5, s[24:27], s61 offen offset:256")]
        S+=[I("s_mov_b64 exec, 1"),
            I("buffer_store_dwordx4 v[8:11], v1, s[24:27], s62 offen"), I("buffer_store_dwordx4 v[12:15], v1, s[24:27], s62 offen offset:16"), I("buffer_store_dwordx4 v[16:19], v1, s[24:27], s62 offen offset:32")]
    S+=[I("Lend:"), I("s_endpgm")]
    if cfg.slow:
        S+=[I("Lslow_entry:"), I(f"s_cmp_lg_u64 s[{sBad}:{sBad+1}], 0"), I("s_cbranch_scc1 Lslow"),
            I("Lslow_ret:"), I(f"s_cmp_eq_u64 s[{sBad2}:{sBad2+1}], 0"), I("s_cbranch_scc1 Lfin"),
            I(f"s_mov_b64 s[{sBad2}:{sBad2+1}], 0"), I(f"s_mov_b32 s{sH}, s{sHn}")]
        S+=sp
    if not cfg.slow: S+=[I(".fill 2048, 4, 0xbf810000")]
    return S, bool([p for p in probs if not p.startswith("NOTE")])

from gen import HDR, FTR
def write(fn):
    S,bad=build()
    with open(fn,"w") as f:
        f.write(HDR%(LDSB,NAME,NAME,NAME))
        for x in S:
            t=x.text
            f.write((t if (t.endswith(':') or t.startswith('.')) else "    "+t)+"\n")
        f.write(FTR%NAME)
    return bad
if __name__=="__main__":
    ap=argparse.ArgumentParser()
    ap.add_argument("out"); ap.add_argument("opts",nargs="*")
    a=ap.parse_args()
    for kv in a.opts:
        k,v=kv.split("=",1)
        cur=getattr(cfg,k)
        setattr(cfg,k, (v in("1","True","true")) if isinstance(cur,bool) else (int(v) if isinstance(cur,int) else v.replace("+"," ")))
    bad=write(a.out)
    from mkco import build as mk
    print(mk(a.out), "PROBLEMS" if bad else "clean")
```

```python
import sys, argparse, re
sys.path.insert(0,'work')
from asmlib import I, check_trace
NAME="standalone__gqa_softmax__near_ridge_kernel"
SLOT=16640; WREG=4160; NSLOT=9
LDSB=NSLOT*SLOT
HEADB=98304
TOTB=50331648

class Cfg:
    ld="nt"; st="sc1"; st2="nt"
    stamps=False; rt=False; tl=False; dbgsz=0x400000; echo=-1
    slow=True
    place="D"
    cpf=True
    rho=3; rho2=6
    warm=0
    late=1
    fill=0; padA=0; padN=2; skipd=0
    lazy=4; lazyB=0; early=0
    prof='40,40,40,40'
    np='2222'
    early_st=0
    profS=0
    profB='00'
    loc=2
    diag=''
cfg=Cfg()

def O(s,dt): return 64+32*s+4*dt
SB=[16,24]; PB=[32,36]
MN=40
vK,vV,vKl,vVl=46,47,48,49
vA,vB=50,51
vQ=52
vW=[5,6,7,62]
vR=[56,63]
vD=[50,51]
vKVA,vKVB,vQA,vQB=57,58,59,60
vL=15
def QINC(): return 16384 if cfg.loc>=2 else 4096
T0,T1,T2,T3=1,2,3,4
DR=[8,12]
def Qr(s,ks): return 16*s+4*ks
def Kf(par,i): return 96+32*par+4*i
def Vf(par,dt): return 160+32*par+4*dt
def Lr(s): return 224+4*s
ONES=248
sA,sB,sO,sKA,sVB,sQA,sQB=12,16,20,24,28,32,36
sOff,sInc,sCur,sC,sH,sW4,sT,sPe,sEnd,sKVw,sQw,sThr=40,41,42,43,44,45,46,47,48,49,50,51
sBad=52
sTmp,sSt,sNC,sHn,sDbg=55,57,58,59,60
sStamp=64
sQn,sM=84,86
sPo,sXe,sXo,sBad2=92,93,94,96

def vr(a,n=4): return f"v[{a}:{a+n-1}]"
def ar(a,n=4): return f"a[{a}:{a+n-1}]"
def sr(a,n=4): return f"s[{a}:{a+n-1}]"

def slotKV(h,b):
    if b<2: return b
    if h==0: return (6+b)%9
    return [8,0,1,2][(b-2)%4]
def slotQ(s): return 2+s
def pair(n):
    if n<18: return (f"h0KV{n-6}", n%9)
    if n<20: return (f"h1KV{n-18}", n%9)
    if n<26: return (f"h1Q{n-20}", n%9)
    raise ValueError
UOFF=[0,1024,2080,3104]
def dma(j, tag, slot, A=sA, B=sB, va=vA, vb=vB, off=sOff):
    srd=[A,B,A,B][j]; vo=[va,va,vb,vb][j]; imm=UOFF[j]
    o=f" offset:{imm}" if imm else ""
    p=f" {cfg.ld}" if cfg.ld else ""
    return I(f"buffer_load_dwordx4 v{vo}, {sr(srd)}, s{off} offen{o}{p} lds", tag=tag, slot=slot)
def kvdma(h,b,j,off=sOff): return dma(j,f"h{h}KV{b}",slotKV(h,b),A=sKA,B=sVB,va=vKVA,vb=vKVB,off=off)
def qdma(h,s,j,off): return dma(j,f"h{h}Q{s}",slotQ(s),A=sQA,B=sQB,va=vQA,vb=vQB,off=off)
def setm0(slot): return I(f"s_add_u32 m0, s{sW4}, {slot*SLOT}") if slot else I(f"s_mov_b32 m0, s{sW4}")
def kread(par,i,tag,slot,base=0):
    kt,ks=divmod(i,4)
    return I(f"ds_read_b128 {ar(Kf(par,i))}, v{vK} offset:{base+kt*512+ks*64}", src=tag, slot=slot)
def vread(par,i,tag,slot,base=0):
    dt,jj=divmod(i,2)
    return I(f"ds_read_b64_tr_b16 {ar(Vf(par,dt)+2*jj,2)}, v{vV} offset:{base+jj*512+dt*32}", src=tag, slot=slot)
def frag_reads(h,b,base=0):
    tag=f"h{h}KV{b}"; sl=slotKV(h,b); par=b&1
    return [kread(par,i,tag,sl,base) for i in range(8)]+[vread(par,i,tag,sl,base) for i in range(16)]
def qaddr(s): return (vQ,(s%4)*SLOT)
def bias(regs,up): return [I(f"{'v_add_u32' if up else 'v_subrev_u32'} v{r}, {4*SLOT}, v{r}") for r in regs]
QREGS=[vQ+k for k in range(4)]
def qread(h,s,ks):
    a,off=qaddr(s)
    return I(f"ds_read_b128 {ar(Qr(s,ks))}, v{a+ks}"+(f" offset:{off}" if off else ""), src=f"h{h}Q{s}", slot=slotQ(s), private=True)
def qk_mfmas(s,kpar,sb,u=None):
    o=[]
    for i in range(8):
        kt,ks=divmod(i,4); d=SB[sb]+4*kt
        x=I(f"v_mfma_f32_16x16x32_bf16 {vr(d)}, {ar(Kf(kpar,i))}, {ar(Qr(s,ks))}, {'0' if ks==0 else vr(d)}")
        if u:
            x.meta['expect']={**{r:f"h{u[0]}KV{u[1]}" for r in x.A}, **{r:f"h{u[0]}Q{u[2]}" for r in x.B}}
            x.meta['set']={r:f"S{u}" for r in x.wr}
        o.append(x)
    return o
def pv_mfmas(s,vpar,pb,first,u=None):
    o=[]
    for dt in range(8):
        d=O(s,dt)
        o.append(I(f"v_mfma_f32_16x16x32_bf16 {vr(d)}, {ar(Vf(vpar,dt))}, {vr(PB[pb])}, {'0' if first else vr(d)}"))
    o.append(I(f"v_mfma_f32_16x16x32_bf16 {ar(Lr(s))}, {ar(ONES)}, {vr(PB[pb])}, {'0' if first else ar(Lr(s))}"))
    if u:
        cnt=sum(1 for y in UNITS[:UNITS.index(u)] if y[0]==u[0] and y[2]==u[2])
        for k,x in enumerate(o):
            e={r:f"P{u}" for r in x.B}
            if k<8: e.update({r:f"h{u[0]}KV{u[1]}" for r in x.A})
            if not first: e.update({r:f"O{u[0]}n{cnt}" for r in x.wr})
            x.meta['expect']=e; x.meta['set']={r:f"O{u[0]}n{cnt+1}" for r in x.wr}
    return o
FREE=(5,11,16)
def sm_gaps(s,sb,pb,u=None):
    S=SB[sb]; P=PB[pb]
    T=(lambda **k:k) if u else (lambda **k:{})
    f=lambda e: I(f"v_fma_f32 v{S+e}, v{S+e}, s{sC}, v{MN+s}", **T(expect={('v',S+e):f"S{u}",('v',MN+s):f"M{u and u[0]}"}))
    x=lambda e: I(f"v_exp_f32 v{S+e}, v{S+e}", **T(expect={('v',S+e):f"S{u}"}))
    c=lambda e: I(f"v_cvt_pk_bf16_f32 v{P+e//2}, v{S+e}, v{S+e+1}", **T(expect={('v',S+e):f"S{u}",('v',S+e+1):f"S{u}"}, set={('v',P+e//2):f"P{u}"}))
    return [[f(0),f(1)],[x(0)],[x(1)],[f(2),f(3)],[x(2)],[],[x(3)],[f(4),f(5)],[x(4)],[x(5)],[f(6),f(7)],[],[x(6)],[x(7)],[c(0),c(2)],[c(4),c(6)],[]]
def max_seq(s,sb,h):
    S=SB[sb]
    return [I(f"v_max3_f32 v{T0}, v{S}, v{S+1}, v{S+2}"), I(f"v_max3_f32 v{T3}, v{S+3}, v{S+4}, v{S+5}"),
            I(f"v_max3_f32 v{T0}, v{T0}, v{S+6}, v{S+7}"), I(f"v_max_f32 v{T0}, v{T0}, v{T3}"),
            I(f"v_mov_b32 v{T3}, v{T0}"), I(f"v_permlane16_swap_b32 v{T0}, v{T3}"),
            I(f"v_max_f32 v{T0}, v{T0}, v{T3}"), I(f"v_mov_b32 v{T3}, v{T0}"),
            I(f"v_permlane32_swap_b32 v{T0}, v{T3}"), I(f"v_max_f32 v{T0}, v{T0}, v{T3}"),
            I(f"v_mul_f32 v{MN+s}, s{sNC}, v{T0}", set={('v',MN+s):f"M{h}"})]
MAXG=[11,11,12,12,12,13,14,14,15,16,16]

FA=[(b,s) for s in range(6) for b in (0,1)]
LA=[(10,0),(10,1),(10,2),(11,0),(11,1),(10,3),(11,2),(10,4),(11,3),(10,5),(11,4),(11,5)]
FB=[(0,0),(0,1),(1,0),(0,2),(1,1),(0,3),(1,2),(0,4),(1,3),(0,5),(1,4),(1,5)]
LB=[(10,0),(10,1),(10,2),(11,0),(11,1),(11,2),(10,3),(11,3),(10,4),(11,4),(10,5),(11,5)]
MID=[(b,s) for b in range(2,10) for s in range(6)]
UNITS=[(0,)+u for u in FA+MID+LA]+[(1,)+u for u in FB+MID+LB]
def unit(i): return UNITS[i] if 0<=i<len(UNITS) else None
def put(ex,g,items): ex.setdefault(g,[]).extend(items)

def step(i, ex=None, post=None, clump=0):
    ex=ex or {}; post={k:list(v) for k,v in (post or {}).items()}
    q,m,p=unit(i+1),unit(i),unit(i-1)
    mf=(qk_mfmas(q[2],q[1]&1,(i+1)&1,q) if q else [None]*8)+(pv_mfmas(p[2],p[1]&1,(i-1)&1,p[1]==0,p) if p else [None]*9)
    g=sm_gaps(m[2],i&1,i&1,m) if m else [[] for _ in range(17)]
    for src,dst in [(2,1),(9,8),(13,12),(15,14),(4,3),(7,6),(1,0)][:clump]:
        g[dst]=g[dst]+g[src]; g[src]=[]
    tailmax=[]
    if q and q[1]==0:
        ms=max_seq(q[2],(i+1)&1,q[0])
        if p and m:
            for gg,x in zip(MAXG,ms): g[gg]=g[gg]+[x]
        else:
            for x in ms:
                if x.op.startswith('v_permlane'): tailmax.append(I("s_nop 1"))
                tailmax.append(x)
    out=[I(f"; ---- step {i}  qk{q} sm{m} pv{p}")]
    out+=ex.get(-1,[])
    for k in range(17):
        if mf[k] is not None: out.append(mf[k])
        out+=ex.get(k,[])
        out+=g[k]
        out+=post.get(k,[])
    out+=tailmax
    out+=ex.get(17,[])
    return out


def setrd(reg): return [I(f"v_add_u32 v{vK}, s{reg}, v{vKl}"), I(f"v_add_u32 v{vV}, s{reg}, v{vVl}")]
def free_gaps(ex,lo,n,avoid=()):
    return [x for x in range(lo,17) if x not in FREE and x not in ex and x not in avoid][:n]
def spread(ex,lo,items,avoid=()):
    gs=free_gaps(ex,lo,len(items),avoid)
    assert gs
    while len(gs)<len(items): gs.append(gs[-1])
    for x,i in zip(gs,items): put(ex,x,[i])
def TL():
    if not cfg.tl: return []
    r=[I("s_mov_b64 exec, s[90:91]"), I("v_mov_b32 v0, s98"), I("v_mov_b32 v61, s100"), I("s_mov_b64 exec, -1"), I("s_lshl_b64 s[90:91], s[90:91], 1"), I("s_memtime s[98:99]"), I("s_memrealtime s[100:101]")]
    for x in r: x.meta['skip']=True
    return r
def BAR(): return [I("s_barrier")]+TL()
def WV(tag,lg0=False): return I("s_waitcnt vmcnt(AUTO)"+(" lgkmcnt(0)" if lg0 else ""), auto_vm=tag, need=tag)
def WL(x): return I("s_waitcnt lgkmcnt(AUTO)", auto_lg=x)

def kind(x):
    if x.op.startswith('ds_read'): return 'r'
    if x.op.startswith('ds_write'): return 'w'
    if getattr(x,'dma',False): return 'd'
    if getattr(x,'store',False): return 's'
    return 'a'
def gapcost(ks,free):
    if not ks: return 0
    U={'r':4,'d':6,'w':12,'s':12,'a':4}
    c=sum(U[k] for k in ks)
    if ks[0]=='a': c-=4
    if len(ks)==1 and ks[0]=='d': c=4 if not free else 8
    for p,q in zip(ks,ks[1:]):
        if p=='w' and q=='r': c+=12
    st=12*ks.count('s')
    if free: return st+max(0,c-st-8)
    return c+4*max(0,len([k for k in ks if k!='a'])-1)
def place(ex,groups,lo=0,hi=16,free=FREE):
    groups=[g if isinstance(g,list) else [g] for g in groups]
    n=len(groups)
    if not n: return
    import functools
    base={g:[kind(x) for x in ex.get(g,[]) if not x.label and not x.meta.get('skip')] for g in range(17)}
    @functools.lru_cache(None)
    def f(g,i):
        if i==n: return (0,())
        if g>hi: return (1e9,())
        best=(1e9,())
        for m in range(0,min(4,n-i)+1):
            ks=base[g]+[kind(x) for gr in groups[i:i+m] for x in gr]
            c=gapcost(ks,g in free)-gapcost(base[g],g in free)
            c+=0.01*sum(abs(g-(lo+(hi-lo)*(j+0.5)/n)) for j in range(i,i+m))
            r=f(g+1,i+m)
            if c+r[0]<best[0]: best=(c+r[0],(g,)*m+r[1])
        return best
    c,gs=f(lo,0)
    assert len(gs)==n
    for g,gr in zip(gs,groups): put(ex,g,gr)

ADV=lambda inc: [I(f"s_add_u32 m0, m0, {SLOT}"), I(f"s_cmp_ge_u32 m0, s{sEnd}"), I(f"s_cselect_b32 m0, s{sW4}, m0"), I(f"s_add_u32 s{sOff}, s{sOff}, {inc}")]
def pdma(n,j):
    tg,sl=pair(n)
    if 'Q' in tg: return dma(j,tg,sl,A=sQA,B=sQB,va=vQA,vb=vQB)
    return dma(j,tg,sl,A=sKA,B=sVB,va=vKVA,vb=vKVB)
def blockA(b,pairs,lab,last,nv,lazy,clump=0):
    reads=frag_reads(0,b+1); tag=f"h0KV{b+1}"
    out=[]; lead=(b%2==0)
    inc=QINC() if 'Q' in pair(pairs[0])[0] else 8192
    if len(pairs)==2: dpos={0:[(0,0,11)],1:[(0,1,3),(0,2,11)],2:[(0,3,11)],3:[(1,0,11)],4:[(1,1,3),(1,2,11)],5:[(1,3,14)]}; advr=(0,3)
    else: dpos={0:[(0,0,11)],1:[],2:[(0,1,11)],3:[(0,2,11)],4:[],5:[(0,3,14)]}; advr=(0,)
    for r in range(6):
        ex={}; post={}
        if r==0:
            put(ex,0,[I(f"s_waitcnt vmcnt({nv}) lgkmcnt(0)", need=tag, loose_ok=True) if nv is not None else WV(tag,True)])
            put(ex,1,BAR())
            put(post,4,setrd(sCur))
        rg=(5,16) if r<5 else (5,11)
        if lazy:
            gs=[6,8,12,13] if r<5 else [2,6,8,9]
            for k in range(4):
                if k<lazy: put(post,gs[k],[reads[4*r+k]])
            rest=reads[4*r+lazy:4*r+4]
            if rest: put(ex,16 if r<5 else 11,rest)
        else:
            put(ex,rg[0],reads[4*r:4*r+2]); put(ex,rg[1],reads[4*r+2:4*r+4])
        for (p,j,g) in dpos[r]: put(ex,g,[pdma(pairs[p],j)])
        if r in advr: spread(ex,2,ADV(inc))
        if r==3: put(ex,15,[I(f"s_waitcnt lgkmcnt({4+min(lazy,4) if lazy else 6})")])
        if r==5:
            spread(ex,0,[I(f"s_add_u32 s{sCur}, s{sCur}, {SLOT}"), I(f"s_cmp_ge_u32 s{sCur}, s{sEnd}"), I(f"s_cselect_b32 s{sCur}, s{sW4}, s{sCur}")])
        if r==5 and not lead and lab:
            put(ex,13,[I(f"s_add_u32 s{sT}, s{sT}, 1")])
            put(ex,15,[I(f"s_cmp_lt_u32 s{sT}, {last}")]); put(ex,16,[I(f"s_cbranch_scc1 {lab}")])
        out+=step(6*b+1+r,ex,post,clump)
    return out
def loopA1(t):
    n=12+4*t
    return blockA(2*t+2,[n,n+1],"LloopA1",2,16,cfg.lazy)+blockA(2*t+3,[n+2,n+3],"LloopA1",2,12,cfg.lazy)
def rampA():
    o=[]; n=12
    for b,pf in zip(range(2,6),cfg.prof.split(',')):
        o+=blockA(b,[n,n+1],None,0,None,int(pf[0]),int(pf[1])); n+=2
    return o
def loopA2(t):
    n=20+2*(t-2)
    return blockA(2*t+2,[n],"LloopA2",2,24,0)+blockA(2*t+3,[n+1],"LloopA2",2,24,0)
def midA(): return [I(f"s_sub_u32 s{sOff}, s{sQn}, {QINC()}")]

sO2=4
def ostore(reg,j,pol):
    p=f" {pol}" if pol else ""
    if cfg.loc>=2:
        return I(f"buffer_store_dwordx4 {vr(reg)}, v{vKVB if j&1 else vKVA}, {sr(sO2 if j>=2 else sO)}, s{sSt} offen{' offset:2080' if j&1 else ''}{p}")
    o=f" offset:{1024*j}" if j else ""
    return I(f"buffer_store_dwordx4 {vr(reg)}, v{vKVA if cfg.loc else vKVB}, {sr(sO)}, s{sSt} offen{o}{p}")
def blockB(b,t):
    reads=frag_reads(1,b+1); tag=f"h1KV{b+1}"
    out=[]; lead=(b%2==0)
    rp,wp=(sPo,sPe) if lead else (sPe,sPo)
    rx=sXo if lead else sXe
    u0=0 if lead else 2
    dr=[I(f"ds_read_b128 {vr(DR[k])}, v{vD[k]}"+(f" offset:{1024*(u0+k)}" if u0+k else ""), src=f"O{t+2}", slot=slotQ(t+2), private=True) for k in range(2)]
    plan=["VRD","RRR","XDR","RRD","RRR","RRD"] if not cfg.late else ["VRD","RRR","RDR","RRD","RRD","RR-"]
    nr=0; nd=0
    for r in range(6):
        ex={}; post={}
        if r==0:
            put(ex,0,[I(f"s_waitcnt vmcnt({8 if cfg.late else (12 if lead else 10)}) lgkmcnt(0)", need=tag, loose_ok=True)])
            put(ex,1,BAR())
            put(ex,2,[I(f"s_mov_b32 m0, s{wp}")]); put(ex,3,[I(f"s_xor_b32 s{rp}, s{rp}, s{rx}")])
            if lead and not cfg.late: spread(ex,6,[I(f"s_cmp_lt_u32 s{sT}, 3"), I(f"s_cselect_b32 s{sA+2}, s{sA+2}, 0"), I(f"s_cselect_b32 s{sB+2}, s{sB+2}, 0")])
        for g,c in zip(FREE,plan[r]):
            if c=='V': put(ex,g,setrd(rp))
            if c=='R': put(ex,g,reads[nr:nr+2]); nr+=2
            if c=='X': put(ex,g,dr)
            if c=='D': put(ex,g,[dma(nd,f"h1KV{b+4}",slotKV(1,b+4),va=vKVA,vb=vKVB)]); nd+=1
        if r==3 and cfg.late: put(ex,15,[I("s_waitcnt lgkmcnt(8)")])
        if r==3 and not cfg.late:
            put(ex,2,[I("s_waitcnt lgkmcnt(2)")]); put(ex,3,[ostore(DR[0],u0,cfg.st)])
        if r==5 and not cfg.late:
            put(ex,3,[ostore(DR[1],u0+1,cfg.st)])
        if r==0: put(ex,4,[I(f"s_add_u32 s{sOff}, s{sOff}, 8192")])
        if r==5 and not lead:
            if not cfg.late: put(ex,9,[I(f"s_add_u32 s{sSt}, s{sSt}, {QINC()}")])
            put(ex,13,[I(f"s_add_u32 s{sT}, s{sT}, 1")])
            put(ex,15,[I(f"s_cmp_lt_u32 s{sT}, {NB()}")])
            if not cfg.late: put(post,3,[I(f"v_add_u32 v{vD[0]}, {SLOT}, v{vD[0]}"), I(f"v_add_u32 v{vD[1]}, {SLOT}, v{vD[1]}")])
            put(ex,16,[I("s_cbranch_scc1 LloopB")])
        out+=step(72+6*b+1+r,ex,post,int(cfg.profB[1]))
    assert nr==24 and nd==4
    return out
def NB(): return 3 if cfg.late else 4
def loopB(t): return blockB(2*t+2,t)+blockB(2*t+3,t)


def blockE(b,lab,last,drain,lazy,nv):
    reads=frag_reads(1,b+1); tag=f"h1KV{b+1}"
    out=[]; lead=(b%2==0)
    rp,wp=(sPo,sPe) if lead else (sPe,sPo)
    rx=sXo if lead else sXe
    sub=b
    off=0 if lead else SLOT
    dr=[I(f"ds_read_b128 {vr(DR[j&1])}, v{vD[j&1]}"+(f" offset:{off+1024*j}" if off+j else ""), src=f"O{sub}", slot=slotQ(sub), private=True) for j in range(4)]
    dpos={0:11,2:11,3:11,5:14}; nd=0
    for r in range(6):
        ex={}; post={}
        if r==0:
            put(ex,0,[I(f"s_waitcnt vmcnt({nv}) lgkmcnt(0)", need=tag, loose_ok=True)])
            put(ex,1,BAR())
            put(ex,2,[I(f"s_mov_b32 m0, s{wp}")]); put(ex,3,[I(f"s_xor_b32 s{rp}, s{rp}, s{rx}")])
            put(ex,4,[I(f"s_add_u32 s{sOff}, s{sOff}, 8192")])
            put(post,4,setrd(rp))
            if lead and not drain: spread(ex,6,[I(f"s_cmp_lt_u32 s{sT}, 3"), I(f"s_cselect_b32 s{sA+2}, s{sA+2}, 0"), I(f"s_cselect_b32 s{sB+2}, s{sB+2}, 0")])
        if lazy:
            gs=[6,8,12,13] if r<5 else [2,6,8,9]
            for k in range(lazy): put(post,gs[k],[reads[4*r+k]])
            rest=reads[4*r+lazy:4*r+4]
            if rest: put(ex,16 if r<5 else 11,rest)
        else:
            rg=(5,16) if r<5 else (5,11)
            put(ex,rg[0],reads[4*r:4*r+2]); put(ex,rg[1],reads[4*r+2:4*r+4])
        if r in dpos:
            put(ex,dpos[r],[dma(nd,f"h1KV{b+4}",slotKV(1,b+4),va=vKVA,vb=vKVB)]); nd+=1
        if drain:
            if r==0: put(ex,14,[dr[0]]);
            if r==1: put(ex,11,[dr[1]]); put(ex,2,[WLn(2 if lazy<4 else 0,lazy)]); put(ex,3,[stx(0,sub)])
            if r==2: put(ex,14,[dr[2]]); put(ex,2,[I("s_waitcnt lgkmcnt(2)")]); put(ex,3,[stx(1,sub)])
            if r==4: put(ex,11,[dr[3]]); put(ex,3,[stx(2,sub)])
            if r==5: put(ex,1,[I("s_waitcnt lgkmcnt(2)")]); put(ex,3,[stx(3,sub)]); put(ex,7,[I(f"s_add_u32 s{sSt}, s{sSt}, {QINC()}")])
        if r==3: put(ex,15,[I(f"s_waitcnt lgkmcnt({min(lazy,4) if lazy else 2})")])
        if r==5 and not lead:
            put(ex,13,[I(f"s_add_u32 s{sT}, s{sT}, 1")])
            put(ex,15,[I(f"s_cmp_lt_u32 s{sT}, {last}")])
            if drain: put(post,4,[I(f"v_add_u32 v{vD[k]}, {2*SLOT}, v{vD[k]}") for k in range(2)])
            put(ex,16,[I(f"s_cbranch_scc1 {lab}")])
        out+=step(72+6*b+1+r,ex,post)
    assert nd==4
    return out
def WLn(n,lazy): return I(f"s_waitcnt lgkmcnt({4-lazy if lazy else 2})")
def stx(j,sub):
    st=ostore(DR[j&1],j,cfg.st); st.meta['expect']={r:f"O{sub}" for r in st.data}; return st
def loopB1(t): return blockE(2*t+2,"LloopB1",2,True,cfg.lazyB,12)+blockE(2*t+3,"LloopB1",2,True,cfg.lazyB,12)
def loopB2(t): return blockE(2*t+2,"LloopB2",4,False,0,8)+blockE(2*t+3,"LloopB2",4,False,0,8)

def tagexp(o,tag):
    if tag:
        h=0 if tag[0]=='O' else 1
        for x in o:
            x.meta['expect']={r:f"O{h}n12" for r in x.rd if (r[0]=='v' and r[1]>=64) or (r[0]=='a' and 224<=r[1]<248)}
    return o
def e_head(s,bad,tag,rc):
    o=[I(f"v_accvgpr_read_b32 v{T2}, a{Lr(s)}"), I(f"v_rcp_f32 v{rc}, v{T2}")]
    o.append(I(f"v_cmp_nge_f32 s[62:63], s{sThr}, v{T2}") if bad is not None else I("s_nop 0"))
    if bad is not None: o.append(I(f"s_or_b64 s[{bad}:{bad+1}], s[{bad}:{bad+1}], s[62:63]"))
    return tagexp(o,tag)
def e_pk(s,dt,tag,rc):
    a=O(s,dt)
    return tagexp([I(f"v_pk_mul_f32 {vr(a+k,2)}, {vr(a+k,2)}, v[{rc}:{rc+1}] op_sel_hi:[1,0]") for k in (0,2)],tag)
def e_cvt(s,dt,tag):
    a=O(s,dt)
    return tagexp([I(f"v_cvt_pk_bf16_f32 v{a}, v{a}, v{a+1}"), I(f"v_cvt_pk_bf16_f32 v{a+1}, v{a+2}, v{a+3}")],tag)
def e_wr(s,dt,off,slot,tag,regs=vW):
    of=off+(dt>>2)*128
    return tagexp([I(f"ds_write_b64 v{regs[dt&3]}, {vr(O(s,dt),2)}"+(f" offset:{of}" if of else ""), wslot=slot, wtag=tag)],tag)[0]
def epi_rd(s, off, slot, tag=None, regs=vR):
    o=[]
    for j in range(4):
        of=off+1024*j
        m=dict(src=tag,slot=slot,private=True) if tag else {}
        o.append(I(f"ds_read_b128 {vr(O(s,2*j))}, v{regs[j&1]}"+(f" offset:{of}" if of else ""), **m))
    return o
def epi_st(s,pol,tag=None):
    o=[ostore(O(s,2*j),j,pol) for j in range(4)]
    if tag:
        for x in o: x.meta['expect']={r:tag for r in x.data}
    return o
def epi(s,off,slot,bad=None,tag=None,regs=vW):
    o=e_head(s,bad,tag,T1)
    for dt in range(8): o+=e_pk(s,dt,tag,T1)
    for dt in range(8): o+=e_cvt(s,dt,tag)
    for dt in range(8): o.append(e_wr(s,dt,off,slot,tag,regs))
    return o

class Epi:
    def __init__(s,rc2=14): s.rc2=rc2; s.tiles=[]; s.cv=[]; s.wr=[]; s.rd=[]; s.st=[]; s.info={}
    def add(s,sub,avail,off,slot,bad,tag,direct,pol,pre=()):
        s.info[sub]=dict(off=off,slot=slot,bad=bad,tag=tag,direct=direct,pol=pol,pre=list(pre))
        s.tiles+=[(avail,sub,dt) for dt in range(8)]
    def mem(s,nst):
        g=[]
        for _ in range(nst):
            if s.st: g.append(s.st.pop(0))
        rd=s.rd; s.rd=[]
        for sub in rd:
            I_=s.info[sub]; r=epi_rd(sub,I_['off'],I_['slot'],I_['tag']); g+=[[x] for x in r]
            st=epi_st(sub,I_['pol'],I_['tag'])
            s.st+=[[WL(r[1]),st[0]],[st[1]],[WL(r[3]),st[2]],[st[3],I(f"s_add_u32 s{sSt}, s{sSt}, {QINC()}")]]
        for sub,dt in s.wr:
            I_=s.info[sub]
            g.append(([I_['pre'][dt]] if (I_['pre'] and dt<4) else [])+[e_wr(sub,dt,I_['off'],I_['slot'],I_['tag'])])
            if dt==7 and I_['direct']: s.rd.append(sub)
        s.wr=[]
        return g
    def chunk(s,i,n):
        take=[]
        while s.tiles and len(take)<n and s.tiles[0][0]<=i: take.append(s.tiles.pop(0)[1:])
        o=[]
        for sub,dt in s.cv: o+=e_cvt(sub,dt,s.info[sub]['tag']); s.wr.append((sub,dt))
        s.cv=[]
        for sub,dt in take:
            I_=s.info[sub]; rc=T1 if sub%2==0 else s.rc2
            if dt==0: o+=e_head(sub,I_['bad'],I_['tag'],rc)
            o+=e_pk(sub,dt,I_['tag'],rc)
        k=max(1,len(take)-2) if s.tiles and s.tiles[0][0]<=i+1 else len(take)
        for sub,dt in take[:k]: o+=e_cvt(sub,dt,s.info[sub]['tag']); s.wr.append((sub,dt))
        s.cv=take[k:]
        return o
    def done(s): return not(s.tiles or s.cv or s.wr or s.rd or s.st)

def startA():
    o=[I("; ---- head A start")]
    f0=frag_reads(0,0); f1=frag_reads(0,1,base=SLOT); f2=frag_reads(0,2)
    o+=setrd(sW4)
    o.append(WV("h0Q0")); o+=BAR()
    o+=[qread(0,0,ks) for ks in range(4)]+f0[:8]
    seq=[]
    for s in (3,4,5): seq+=[('q',s,j) for j in range(4)]
    for b in (2,3,4,5): seq+=[('k',b,j) for j in range(4)]
    def dm():
        k,x,j=seq.pop(0)
        it=[]
        if j==0:
            it+=[setm0(slotQ(x) if k=='q' else slotKV(0,x)), I(f"s_add_u32 s{sTmp}, s{sTmp}, {QINC()}") if k=='q' else I(f"s_add_u32 s{sOff}, s{sOff}, 8192")]
        it.append(qdma(0,x,j,sTmp) if k=='q' else kvdma(0,x,j))
        return it
    for i in range(-1,13):
        ex={}; post={}
        if i==-1:
            put(ex,-1,[WL(f0[0])])
            for k in range(8):
                put(ex,k,f0[8+2*k:10+2*k]+([WL(f0[k+1])] if k<7 else []))
            put(ex,7,dm()+dm())
            put(ex,7,[WV("h0KV1")]+BAR()+f1[:8])
            put(ex,17,[WL(f1[7])])
        else:
            if i==0:
                for k in range(8): put(ex,k,f1[8+2*k:10+2*k])
            if i==3: put(ex,0,[I("s_waitcnt lgkmcnt(0)")]); put(ex,1,BAR())
            if i%2==0 and i<=8:
                s=i//2+1
                qs=[qread(0,s,ks) for ks in range(4)]
                put(ex,2 if i else 8,dm()); put(ex,5 if i else 8,dm())
                if s==4: put(post,9,bias(QREGS,True))
                put(ex,10,[WV(f"h0Q{s}")]); put(ex,11,qs[:2]); put(ex,12,[qs[2]]); put(ex,13,[qs[3]])
                if s==5: put(post,16,bias(QREGS,False))
                put(ex,17,[WL(qs[3])])
            elif i==10:
                put(ex,0,[WV("h0KV2",True)]); put(ex,1,BAR())
                put(ex,2,[I(f"s_add_u32 s{sCur}, s{sW4}, {8*SLOT}")]); put(post,3,setrd(sCur))
                place(ex,f2[:8],lo=4,hi=12)
                put(ex,14,dm()); put(ex,16,dm())
                put(ex,17,[WL(f2[7])])
            elif i==12:
                place(ex,f2[8:],lo=0,hi=13)
                put(ex,14,dm()); put(ex,16,dm())
                put(ex,15,[I(f"s_mov_b32 s{sCur}, s{sW4}")])
            else:
                put(ex,5,dm()); put(ex,10,dm())
        if cfg.fill and 0<=i<=9:
            put(ex,-1,[I(f"v_mfma_f32_16x16x32_bf16 a[252:255], {ar(Kf(0,k%8))}, {ar(Qr(0,k%4))}, a[252:255]") for k in range(cfg.fill)])
        o+=step(i,ex,post,cfg.profS if i>=8 else 0)
    assert not seq
    return o

def trans():
    o=[]
    f11=frag_reads(0,11); g0=frag_reads(1,0); g1=frag_reads(1,1,base=SLOT); g2=frag_reads(1,2)
    E=Epi()
    idxA={u:k for k,u in enumerate(LA)}
    for s in range(6):
        E.add(s,60+idxA[(11,s)]+2,(s%4)*SLOT,slotQ(s),sBad,f"O{s}",s<2,cfg.st,pre=(bias(vW,True) if s==4 else ()))
    Q=lambda s:[qread(1,s,k) for k in range(4)]
    q5=Q(5)
    R={61:f11[:8], 62:f11[8:16], 63:f11[16:24], 64:Q(0), 65:Q(1), 67:Q(2), 68:Q(3), 69:g0[:4], 70:g0[4:8], 71:g0[8:16], 72:g1[:8], 73:g0[16:24],
       74:g1[8:18], 75:g1[18:24], 76:Q(4), 78:q5, 81:g2[:4], 82:g2[4:8], 83:g2[8:16], 84:g2[16:24]}
    D={}
    for (k,x),steps in zip([('q',4),('q',5),('k',2),('k',3),('k',4),('k',5)],
                           [[61,62,63,64],[65,66,66,67],[69,70,71,72],[76,77,77,78],[79,79,80,80],[81,82,83,84]]):
        for j,i in enumerate(steps): D.setdefault(i,[]).append((k,x,j))
    for i in range(61,85):
        ex={}; post={}
        rs=R.get(i,[]); lo=0; hi=16
        q=unit(i+1); mx=(q[1]==0)
        if i==61:
            put(ex,0,[WV("h0KV11",True)]); put(ex,1,BAR()); put(post,2,setrd(sCur)); lo=3; hi=12
            put(ex,17,[WL(f11[7])])
            put(ex,2,[I(f"s_add_u32 s{sSt}, s{sH}, s{sQw}")])
        if i==64: put(ex,0,[WV("h1Q3")]); put(ex,7,[WL(f11[23])]); lo=1
        if i==69:
            put(ex,0,[WV("h1KV1",True)]); put(ex,1,BAR()); put(post,2,setrd(sW4)); lo=3
            put(ex,2,[I(f"s_add_u32 s{sOff}, s{sHn}, s{sKVw}")]); put(ex,3,[I(f"s_add_u32 s{sOff}, s{sOff}, 8192")])
        if i==70: hi=12; put(ex,17,[WL(g0[7])])
        if i==72: hi=12; put(ex,17,[WL(g1[7])])
        if i==73: hi=5; put(ex,7,[WL(g0[17])]); put(ex,11,[WL(g0[23])])
        if i==75: hi=6; put(ex,7,[WL(g1[17])]); put(ex,12,[WL(g1[23])]); put(post,9,bias(QREGS,True))
        if i==76: put(ex,0,[WV("h1Q4",True)]); put(ex,1,BAR()); lo=2
        if i==77: put(ex,15,[WL(R[76][3])])
        if i==78: put(ex,0,[WV("h1Q5")]); lo=1
        if i==79: put(ex,15,[WL(q5[3])]); put(post,5,bias(QREGS,False))
        if i==81:
            put(ex,0,[WV("h1KV2",True)]); put(ex,1,BAR())
            put(ex,2,[I(f"s_add_u32 s{sPe}, s{sW4}, {8*SLOT}")]); put(post,2,setrd(sPe)); lo=4
            put(ex,3,[I(f"s_add_u32 s{sPo}, s{sW4}, {2*SLOT}")])
        if i==82: hi=12; put(ex,17,[WL(g2[7])])
        if i==84: hi=12
        ch_n=cfg.rho
        mem=E.mem(2)
        ch=E.chunk(i,ch_n)
        free=[g for g in FREE if not(g==16 and (ch or mx)) and not (g==11 and mx)]
        place(ex,rs,lo=lo,hi=hi,free=free)
        dg=[]
        for (k,x,j) in D.get(i,[]):
            pre=[]
            if j==0:
                pre=[setm0(slotQ(x) if k=='q' else slotKV(1,x)), I(f"s_add_u32 s{sOff}, s{sOff}, {QINC() if k=='q' else 8192}")]
            dg.append(pre+[qdma(1,x,j,sOff) if k=='q' else kvdma(1,x,j)])
        place(ex,dg,lo=max(lo,4),hi=16,free=free)
        qlast=max([g for g,v in ex.items() if any(x.meta.get('src','').startswith('h1Q') for x in v)]+[-1])
        need_after=any(kind(gr[-1])=='w' and any(x.meta.get('slot')==gr[-1].meta['wslot'] for x in rs) for gr in mem)
        place(ex,mem,lo=(qlast+1 if need_after else (2 if i in (69,76,81) else 0)),hi=15,free=free)
        put(post,16,ch)
        if i==84:
            spread(ex,0,[I(f"s_mov_b32 s{sT}, 0"), I(f"s_mov_b64 s[{sA}:{sA+1}], s[{sKA}:{sKA+1}]"), I(f"s_mov_b64 s[{sB}:{sB+1}], s[{sVB}:{sVB+1}]")])
            put(ex,17,[WV("h1KV3")])
        if i==83:
            put(post,16,bias(vW,False)+[I(f"v_add_u32 v{vD[k]}, {2*SLOT}, v{vR[k]}") for k in range(2)])
        o+=step(i,ex,post)
    assert E.done()
    return o

def tailB():
    o=[]
    f11=frag_reads(1,11)
    E=Epi()
    idx={u:k for k,u in enumerate(LB)}
    for s in range(5):
        sl=3+(s%3)
        E.add(s,132+idx[(11,s)]+2,(sl-2)*SLOT,sl,sBad2,f"P{s}",True,cfg.st2)
    dq=[(sub,j) for sub in range(2,6) for j in range(4)] if cfg.late else []
    pend=[]
    def drain(i,ex,lo=0):
        nonlocal pend
        g=[]
        for rdx,sub,j in pend:
            st=ostore(DR[j&1],j,cfg.st); st.meta['expect']={r:f"O{sub}" for r in st.data}
            g.append([WL(rdx),st]+([I(f"s_add_u32 s{sSt}, s{sSt}, {QINC()}")] if j==3 else []))
        pend=[]
        place(ex,g,lo=max(lo,2),hi=4)
        if dq:
            sub,j=dq.pop(0)
            of=(sub-2)*SLOT+1024*j
            x=I(f"ds_read_b128 {vr(DR[j&1])}, v{vD[j&1]}"+(f" offset:{of}" if of else ""), src=f"O{sub}", slot=slotQ(sub), private=True)
            pend.append((x,sub,j)); return [x]
        return []
    if cfg.late:
        for b in (8,9):
            reads=frag_reads(1,b+1); lead=(b%2==0)
            rp=sPo if lead else sPe; rx=sXo if lead else sXe
            for r in range(6):
                ex={}; post={}; i=72+6*b+1+r; lo=0
                if r==0:
                    put(ex,0,[WV(f"h1KV{b+1}",True)]); put(ex,1,BAR())
                    put(ex,2,[I(f"s_xor_b32 s{rp}, s{rp}, s{rx}")]); put(post,4,setrd(rp)); lo=3
                d=drain(i,ex,lo)
                rs=reads[4*r:4*r+4]
                place(ex,(rs+d) if r<5 else (rs[:2]+d+rs[2:]),lo=5,hi=(16 if r<5 else 12))
                if r==3: put(ex,17,[WL(reads[7])])
                o+=step(i,ex,post)
    for i in range(133,145):
        ex={}; post={}
        d=drain(i,ex,3) if cfg.late else []
        if d: place(ex,d,lo=14,hi=16)
        if cfg.late and i==137: put(ex,6,[I(f"s_add_u32 s{sSt}, s{sHn}, s{sQw}")])
        if i==133:
            put(ex,0,[WV("h1KV11",True)]); put(ex,1,BAR())
            put(ex,2,[I(f"s_xor_b32 s{sPo}, s{sPo}, s{sXo}")]); put(post,2,setrd(sPo))
            place(ex,f11[:8],lo=3,hi=12)
            put(ex,17,[WL(f11[7])])
            if not cfg.late: put(ex,14,[I(f"s_add_u32 s{sSt}, s{sHn}, s{sQw}")])
        if i==134: place(ex,f11[8:14])
        if i==135: place(ex,f11[14:20])
        if i==136: place(ex,f11[20:24],hi=5); put(ex,7,[WL(f11[19])]+TL()); put(ex,13,[WL(f11[23])])
        mem=E.mem(4)
        ch=E.chunk(i,cfg.rho2)
        lo=0 if i<143 else 8
        free=[g for g in FREE if not(g==16 and ch)] if i<144 else list(range(8,16))
        place(ex,mem,lo=lo,hi=15,free=free)
        put(post,16,ch)
        o+=step(i,ex,post)
    assert not E.tiles and not E.cv
    tag="P5"; sl=5; off=3*SLOT
    m1=[x for g in E.mem(8) for x in g]
    o+=m1
    hd=e_head(5,sBad2,tag,T1)
    o+=[I("s_nop 3")]+hd
    for dt in range(8): o+=e_pk(5,dt,tag,T1)
    o+=[x for g in E.mem(8) for x in g]
    for dt in range(8): o+=e_cvt(5,dt,tag)+([e_wr(5,dt-1,off,sl,tag)] if dt else [])
    o.append(e_wr(5,7,off,sl,tag))
    rd=epi_rd(5,off,sl,tag); o+=rd
    o+=[x for g in E.mem(8) for x in g]
    assert E.done()
    st=epi_st(5,cfg.st2,tag)
    for j in range(4): o+=[WL(rd[j]), st[j]]
    return o

def stamp(k):
    if not cfg.stamps: return []
    op="s_memrealtime" if (cfg.echo>=0 or cfg.rt) else "s_memtime"
    return [I(f"{op} s[{sStamp+4+2*k}:{sStamp+5+2*k}]", skip=True)]

def prologue():
    o=[]
    A=lambda t,**k: o.append(I(t,**k))
    A("s_cmp_ge_u32 s2, 256"); A("s_cbranch_scc1 Lend")
    A("s_load_dwordx4 s[4:7], s[0:1], 0"); A("s_load_dwordx4 s[8:11], s[0:1], 16")
    if cfg.stamps:
        A(f"s_load_dwordx2 s[{sDbg}:{sDbg+1}], s[0:1], 32")
        A(f"s_memtime s[{sStamp}:{sStamp+1}]"); A(f"s_memrealtime s[{sStamp+2}:{sStamp+3}]")
    if cfg.tl:
        A("s_mov_b64 s[90:91], 1"); A("s_memtime s[98:99]"); A("s_memrealtime s[100:101]")
    if cfg.cpf:
        A("s_getpc_b64 s[62:63]"); A("s_lshr_b32 s3, s2, 3"); A("s_mul_i32 s3, s3, 1408")
        A("v_min_u32 v1, 10, v0"); A("v_lshlrev_b32 v1, 7, v1"); A("v_add_u32 v1, s3, v1")
        A("global_load_dword v61, v1, s[62:63]")
    A("v_lshrrev_b32 v1, 6, v0"); A("v_and_b32 v0, 63, v0"); A("v_readfirstlane_b32 s3, v1")
    A(f"v_lshlrev_b32 v{vKVB}, 4, v0")
    A(f"v_lshrrev_b32 v2, 4, v0")
    A(f"v_lshlrev_b32 v3, 6, v2")
    A(f"v_xor_b32 v{vQB}, v{vKVB}, v3")
    if cfg.loc>=2: A(f"v_mov_b32 v{vQA}, v{vQB}"); A(f"v_add_u32 v{vQB}, 2016, v{vQB}")
    else: A(f"v_add_u32 v{vQA}, 1056, v{vQB}")
    if cfg.loc>=1: A(f"v_mov_b32 v{vKVA}, v{vKVB}"); A(f"v_add_u32 v{vKVB}, 2016, v{vKVB}")
    else: A(f"v_add_u32 v{vKVA}, 1056, v{vKVB}")
    A(f"s_mul_i32 s{sW4}, s3, {WREG}"); A(f"s_lshl_b32 s{sKVw}, s3, {10 if cfg.loc>=1 else 11}"); A(f"s_mul_i32 s{sQw}, s3, {1024 if cfg.loc>=2 else 24576}")
    if cfg.diag=='l2only': A("s_and_b32 s62, s2, 7"); A(f"s_mul_i32 s{sH}, s62, {2*HEADB}")
    else: A(f"s_mul_i32 s{sH}, s2, {2*HEADB}")
    A(f"s_add_u32 s{sHn}, s{sH}, {HEADB}")
    for r in (sKA,sVB,sQA,sQB):
        A(f"s_mov_b32 s{r+2}, {TOTB+4096}"); A(f"s_mov_b32 s{r+3}, 0x20000")
    A(f"s_add_u32 s{sOff}, s{sH}, s{sKVw}")
    A(f"s_add_u32 s{sTmp}, s{sH}, s{sQw}")
    o.append(setm0(0))
    A("s_waitcnt lgkmcnt(0)")
    if cfg.early_st: o+=stamp(2)
    A(f"s_sub_u32 s{sKA}, s6, {0 if cfg.loc>=1 else 1056}"); A(f"s_subb_u32 s{sKA+1}, s7, 0")
    A(f"s_sub_u32 s{sVB}, s8, {1024 if cfg.loc>=1 else 2080}"); A(f"s_subb_u32 s{sVB+1}, s9, 0")
    o+=[kvdma(0,0,j) for j in (0,2,1,3)]
    if cfg.loc>=2:
        A(f"s_mov_b64 s[{sQA}:{sQA+1}], s[4:5]")
        A(f"s_add_u32 s{sQB}, s4, {8192-1024}"); A(f"s_addc_u32 s{sQB+1}, s5, 0")
    else:
        A(f"s_sub_u32 s{sQA}, s4, 1056"); A(f"s_subb_u32 s{sQA+1}, s5, 0")
        A(f"s_sub_u32 s{sQB}, s4, 32"); A(f"s_subb_u32 s{sQB+1}, s5, 0")
    def qd(s):
        o.append(setm0(slotQ(s)))
        A(f"s_add_u32 s{sTmp}, s{sTmp}, {QINC()}" if s else "s_nop 0")
        o.extend(qdma(0,s,j,sTmp) for j in range(4))
    qd(0)
    o.append(setm0(1)); A(f"s_add_u32 s{sOff}, s{sOff}, 8192")
    o+=[kvdma(0,1,j) for j in (0,2,1,3)]
    if cfg.early_st: o+=stamp(3)
    A(f"s_mov_b64 s[{sA}:{sA+1}], s[{sKA}:{sKA+1}]"); A(f"s_mov_b64 s[{sB}:{sB+1}], s[{sVB}:{sVB+1}]")
    for r in (sA,sB):
        A(f"s_mov_b32 s{r+2}, {TOTB+4096}"); A(f"s_mov_b32 s{r+3}, 0x20000")
    A(f"s_movk_i32 s{sInc}, 8192")
    A(f"v_mov_b32 v{vA}, v{vKVA}"); A(f"v_mov_b32 v{vB}, v{vKVB}")
    A(f"s_mov_b32 s{sO}, s10"); A(f"s_mov_b32 s{sO+1}, s11"); A(f"s_mov_b32 s{sO+2}, {0 if cfg.diag else TOTB}"); A(f"s_mov_b32 s{sO+3}, 0x20000")
    if cfg.loc>=2:
        A(f"s_add_u32 s{sO2}, s10, 8192"); A(f"s_addc_u32 s{sO2+1}, s11, 0"); A(f"s_mov_b32 s{sO2+2}, {0 if cfg.diag else TOTB-8192}"); A(f"s_mov_b32 s{sO2+3}, 0x20000")
    A(f"s_mov_b32 s{sC}, 0x3e0293ee"); A(f"s_mov_b32 s{sNC}, 0xbe0293ee"); A(f"s_mov_b32 s{sThr}, 0x49800000")
    A(f"s_add_u32 s{sEnd}, s{sW4}, {NSLOT*SLOT}")
    A(f"s_add_u32 s{sQn}, s{sHn}, s{sQw}")
    A(f"s_mov_b32 s{sT}, 0"); A("s_mov_b64 vcc, -1")
    A(f"s_mov_b64 s[{sBad}:{sBad+1}], 0"); A(f"s_mov_b64 s[{sBad2}:{sBad2+1}], 0")
    A(f"s_add_u32 s{sXe}, s{sW4}, {8*SLOT}"); A(f"s_add_u32 s62, s{sW4}, {1*SLOT}"); A(f"s_xor_b32 s{sXe}, s{sXe}, s62")
    A(f"s_add_u32 s{sXo}, s{sW4}, {2*SLOT}"); A(f"s_xor_b32 s{sXo}, s{sXo}, s{sW4}")
    A("v_and_b32 v3, 7, v0"); A(f"v_mul_u32_u24 v{vKl}, 2080, v3")
    A("v_bfe_u32 v3, v0, 3, 1"); A(f"v_lshl_add_u32 v{vKl}, v3, 8, v{vKl}")
    A(f"v_lshl_add_u32 v{vKl}, v2, 4, v{vKl}"); A(f"v_subrev_u32 v{vKl}, s{sW4}, v{vKl}")
    A("v_bfe_u32 v3, v0, 2, 3"); A(f"v_mul_u32_u24 v{vVl}, 2080, v3")
    A("v_lshrrev_b32 v3, 5, v0"); A(f"v_lshl_add_u32 v{vVl}, v3, 8, v{vVl}")
    A("v_and_b32 v4, 3, v0"); A(f"v_lshl_add_u32 v{vVl}, v4, 3, v{vVl}")
    A(f"v_add_u32 v{vVl}, 1024, v{vVl}"); A(f"v_subrev_u32 v{vVl}, s{sW4}, v{vVl}")
    A(f"s_add_u32 s62, s{sW4}, {2*SLOT}")
    A("v_bfe_u32 v3, v0, 2, 1"); A("v_mul_u32_u24 v5, 2080, v3")
    A("v_bfe_u32 v3, v0, 3, 1"); A("v_lshl_add_u32 v5, v3, 10, v5")
    A("v_lshl_add_u32 v5, v4, 8, v5"); A("v_lshl_add_u32 v5, v2, 4, v5"); A(f"v_add_u32 v5, s62, v5")
    for ks in range(4):
        A(f"v_xor_b32 v3, {ks}, v4"); A(f"v_lshl_add_u32 v{vQ+ks}, v3, 6, v5")
    A("v_and_b32 v8, 15, v0"); A("v_xor_b32 v9, v8, v2"); A("v_lshlrev_b32 v10, 8, v2"); A("v_add_u32 v10, s62, v10")
    A(f"v_lshl_add_u32 v{vR[0]}, v9, 4, v10"); A("v_xor_b32 v9, 4, v9"); A(f"v_lshl_add_u32 v{vR[1]}, v9, 4, v10")
    A("v_lshlrev_b32 v10, 8, v8"); A("v_and_b32 v9, 1, v2"); A("v_lshl_add_u32 v10, v9, 3, v10"); A("v_add_u32 v10, s62, v10")
    A("v_lshrrev_b32 v9, 1, v2"); A("v_and_b32 v8, 7, v0"); A("v_xor_b32 v9, v9, v8")
    A("v_mov_b32 v11, 0x3f803f80"); A("v_cmp_eq_u32 s[62:63], 0, v4")
    for k in range(4):
        A(f"v_xor_b32 v8, {2*k}, v9"); A(f"v_lshl_add_u32 v{vW[k]}, v8, 4, v10")
    A("v_cndmask_b32 v11, 0, v11, s[62:63]")
    for k in range(4): A(f"v_accvgpr_write_b32 a{ONES+k}, v11")
    if cfg.warm:
        A(f"s_mov_b32 s62, {cfg.warm}"); A("Lwarm:")
        for k in range(8): A(f"v_mfma_f32_16x16x32_bf16 {vr(64+4*k)}, {vr(46)}, {vr(52)}, {vr(64+4*k)}")
        A("s_sub_u32 s62, s62, 1"); A("s_cmp_lg_u32 s62, 0"); A("s_cbranch_scc1 Lwarm")
    if cfg.early_st: o+=[I("s_waitcnt vmcnt(11)")]+stamp(4)
    qd(1); qd(2)
    return o

def slow_path():
    o=[]
    A=lambda t,**k: o.append(I(t,**k))
    sP=sCur
    A("Lslow:")
    A("s_waitcnt vmcnt(0) lgkmcnt(0)")
    A(f"s_mul_i32 s{sP}, s3, {SLOT}")
    A(f"s_add_u32 s{sTmp}, s{sP}, s{sW4}")
    o+=setrd(sTmp)
    A(f"s_sub_u32 s62, s{sP}, {2*SLOT}")
    for k in range(4): A(f"v_add_u32 v{8+k}, s62, v{vQ+k}")
    A(f"s_mov_b32 m0, s{sTmp}")
    A(f"s_add_u32 s{sOff}, s{sH}, s{sQw}")
    for s in range(6):
        o+=[qdma(0,s,j,sOff) for j in range(4)]
        A("s_waitcnt vmcnt(0)")
        for ks in range(4): A(f"ds_read_b128 {ar(Qr(s,ks))}, v{8+ks}")
        A(f"s_add_u32 s{sOff}, s{sOff}, {QINC()}")
        A("s_waitcnt lgkmcnt(0)")
    for s in range(6): A(f"v_mov_b32 v{MN+s}, 0xff800000")
    def loadkv():
        for j in range(4):
            A(f"s_add_u32 m0, s{sP}, {j*WREG}"); A("s_nop 0")
            o.extend(kvdma(0,0,jj) for jj in range(4))
            A(f"s_add_u32 s{sOff}, s{sOff}, {1024 if cfg.loc>=1 else 2048}")
        if cfg.loc>=1: A(f"s_add_u32 s{sOff}, s{sOff}, 4096")
        A("s_waitcnt vmcnt(0)")
    A(f"s_mov_b32 s{sOff}, s{sH}"); A(f"s_mov_b32 s{sT}, 0")
    A("Lslow1:")
    loadkv()
    for i in range(8): o.append(I(kread(0,i,None,None).text))
    A("s_waitcnt lgkmcnt(0)")
    for s in range(6):
        o+=qk_mfmas(s,0,0)
        A("s_nop 7")
        S=SB[0]
        for e in range(0,8,2): A(f"v_max3_f32 v{MN+s}, v{MN+s}, v{S+e}, v{S+e+1}")
    A(f"s_add_u32 s{sT}, s{sT}, 1"); A(f"s_cmp_lt_u32 s{sT}, 12"); A("s_cbranch_scc1 Lslow1")
    for s in range(6):
        m=MN+s
        A(f"v_mov_b32 v{T1}, v{m}"); A("s_nop 1"); A(f"v_permlane16_swap_b32 v{m}, v{T1}"); A(f"v_max_f32 v{m}, v{m}, v{T1}")
        A(f"v_mov_b32 v{T1}, v{m}"); A("s_nop 1"); A(f"v_permlane32_swap_b32 v{m}, v{T1}"); A(f"v_max_f32 v{m}, v{m}, v{T1}")
        A(f"v_mul_f32 v{m}, s{sNC}, v{m}")
    for r in range(64,256): A(f"v_mov_b32 v{r}, 0")
    for r in range(224,248): A(f"v_accvgpr_write_b32 a{r}, 0")
    A(f"s_mov_b32 s{sOff}, s{sH}"); A(f"s_mov_b32 s{sT}, 0")
    A("Lslow2:")
    loadkv()
    for i in range(8): o.append(I(kread(0,i,None,None).text))
    A("s_waitcnt lgkmcnt(0)")
    for i in range(16):
        o.append(I(vread(0,i,None,None).text))
        if i==7: A("s_waitcnt lgkmcnt(0)")
    A("s_waitcnt lgkmcnt(0)")
    for s in range(6):
        o+=qk_mfmas(s,0,0)
        A("s_nop 7")
        for gp in sm_gaps(s,0,0): o+=gp
        A("s_nop 1")
        o+=pv_mfmas(s,0,0,False)
    A(f"s_add_u32 s{sT}, s{sT}, 1"); A(f"s_cmp_lt_u32 s{sT}, 12"); A("s_cbranch_scc1 Lslow2")
    A("s_nop 7")
    A(f"s_add_u32 s{sSt}, s{sH}, s{sQw}")
    A(f"s_sub_u32 s62, s{sP}, {2*SLOT}")
    for k in range(4): A(f"v_add_u32 v{8+k}, s62, v{vW[k]}")
    for k in range(2): A(f"v_add_u32 v{12+k}, s62, v{vR[k]}")
    for s in range(6):
        o+=epi(s,0,None,regs=[8,9,10,11])+epi_rd(s,0,None,regs=[12,13])+[I("s_waitcnt lgkmcnt(0)")]+epi_st(s,"")
        A(f"s_add_u32 s{sSt}, s{sSt}, {QINC()}")
    A("s_branch Lslow_ret")
    for x in o:
        for k in ('tag','slot','wslot','wtag'): x.meta.pop(k,None)
    return o

def resolve(trace):
    vm=[]; lg=[]
    for x in trace:
        if x.label or x.meta.get('skip'): continue
        if 'auto_vm' in x.meta:
            idx=[k for k,y in enumerate(vm) if y.meta.get('tag')==x.meta['auto_vm']]
            n=min(63,len(vm)-1-max(idx)); x.text=x.text.replace("vmcnt(AUTO)",f"vmcnt({n})"); x.meta['loose_ok']=True
        if 'auto_lg' in x.meta:
            k=[i for i,y in enumerate(lg) if y is x.meta['auto_lg']]
            assert k, "WL target not issued before wait: "+x.meta['auto_lg'].text
            n=min(15,len(lg)-1-k[0]); x.text=x.text.replace("lgkmcnt(AUTO)",f"lgkmcnt({n})")
        if x.kind=='vmem': vm.append(x)
        if x.kind=='ds': lg.append(x)

def build():
    P=prologue(); SA=startA(); RA=rampA(); TR=trans(); TB=tailB()
    txt=lambda L:[x.text for x in L if not x.text.startswith(';')]
    assert txt(loopA1(0))==txt(loopA1(1)); assert txt(loopA2(2))==txt(loopA2(3))
    for t in range(NB()): assert txt(loopB(t))==txt(loopB(0))
    assert txt(loopB1(0))==txt(loopB1(1)); assert txt(loopB2(2))==txt(loopB2(3))
    if cfg.early: assert not cfg.late
    trace=P+SA
    trace+=RA+midA()+loopA2(2)+loopA2(3)
    trace+=TR
    if cfg.early: trace+=loopB1(0)+loopB1(1)+loopB2(2)+loopB2(3)
    else:
        for t in range(NB()): trace+=loopB(t)
    trace+=TB
    resolve(trace)
    trace=[x for x in trace if not x.meta.get('skip')]
    probs=check_trace(trace)
    sp=slow_path()
    probs+=check_trace(sp+slow_path())
    seen=set()
    for p in probs:
        if p not in seen: print(p); seen.add(p)
    S=list(P)
    S+=stamp(0)+SA+stamp(1)
    nd=(lambda L:[x for x in L if not getattr(x,'dma',False)]) if cfg.diag=='nodma' else (lambda L:L)
    S+=nd(RA)+midA()+[I(".p2align 3"),I("LloopA2:")]+nd(loopA2(2))
    S+=(stamp(2) if not cfg.early_st else [])+nd(TR)+(stamp(3) if not cfg.early_st else [])
    if cfg.early: S+=[I(".p2align 3"),I("LloopB1:")]+nd(loopB1(0))+[I(".p2align 3"),I("LloopB2:")]+nd(loopB2(2))
    else: S+=[I(".p2align 3"),I("LloopB:")]+nd(loopB(0))
    S+=(stamp(4) if not cfg.early_st else [])+TB+stamp(5)
    if cfg.slow:
        S+=[I(f"s_or_b64 s[62:63], s[{sBad}:{sBad+1}], s[{sBad2}:{sBad2+1}]"),
            I("s_waitcnt vmcnt(24)"), I("s_barrier"), I("s_cbranch_scc1 Lslow_entry")]
    S+=[I("Lfin:")]
    if cfg.stamps:
        S+=[I("s_waitcnt vmcnt(0)"), I(f"s_memtime s[{sStamp+16}:{sStamp+17}]"), I(f"s_memrealtime s[{sStamp+18}:{sStamp+19}]"), I("s_waitcnt lgkmcnt(0)")]
        if cfg.echo>=0:
            esrc=[sStamp+2]+[sStamp+4+2*k for k in range(6)]+[sStamp+18]
            S+=[I(f"s_add_u32 s62, s{esrc[cfg.echo]}, 10000"), I("Lspin:"), I("s_sleep 2"), I("s_memrealtime s[88:89]"), I("s_waitcnt lgkmcnt(0)"),
                I("s_sub_u32 s63, s88, s62"), I("s_cmp_lt_i32 s63, 0"), I("s_cbranch_scc1 Lspin")]
        S+=[I(f"v_mov_b32 v8, s{sStamp+2}"), I(f"v_mov_b32 v9, s{sStamp+18}")]
        srcs=[sStamp+4+2*k for k in range(6)]+[sStamp+(18 if cfg.rt else 16)]
        for k,r in enumerate(srcs):
            S+=[I(f"s_sub_u32 s{sTmp}, s{r}, s{sStamp+(2 if cfg.rt else 0)}"), I(f"v_mov_b32 v{10+k}, s{sTmp}")]
        S+=[I("v_mov_b32 v17, 0"), I("v_mov_b32 v18, 0")]
        S+=[I("s_getreg_b32 s62, hwreg(HW_REG_XCC_ID)"), I("v_mov_b32 v19, s62")]
        S+=[I(f"s_mov_b32 s24, s{sDbg}"), I(f"s_mov_b32 s25, s{sDbg+1}"), I(f"s_mov_b32 s26, {cfg.dbgsz}"), I("s_mov_b32 s27, 0x20000"),
            I("s_lshl_b32 s62, s2, 8"), I("s_lshl_b32 s63, s3, 6"), I("s_add_u32 s62, s62, s63"), I("v_mov_b32 v1, 0")]
        if cfg.tl:
            S+=TL()+[I("s_waitcnt lgkmcnt(0)")]+TL()+[I("s_lshl_b32 s61, s62, 3"), I("s_add_u32 s61, s61, 65536"), I(f"v_lshrrev_b32 v5, 2, v{vKVA if cfg.loc else vKVB}"),
                I("buffer_store_dword v0, v5, s[24:27], s61 offen"), I("buffer_store_dword v61, v5, s[24:27], s61 offen offset:256")]
        S+=[I("s_mov_b64 exec, 1"),
            I("buffer_store_dwordx4 v[8:11], v1, s[24:27], s62 offen"), I("buffer_store_dwordx4 v[12:15], v1, s[24:27], s62 offen offset:16"), I("buffer_store_dwordx4 v[16:19], v1, s[24:27], s62 offen offset:32")]
    S+=[I("Lend:"), I("s_endpgm")]
    if cfg.slow:
        S+=[I("Lslow_entry:"), I(f"s_cmp_lg_u64 s[{sBad}:{sBad+1}], 0"), I("s_cbranch_scc1 Lslow"),
            I("Lslow_ret:"), I(f"s_cmp_eq_u64 s[{sBad2}:{sBad2+1}], 0"), I("s_cbranch_scc1 Lfin"),
            I(f"s_mov_b64 s[{sBad2}:{sBad2+1}], 0"), I(f"s_mov_b32 s{sH}, s{sHn}")]
        S+=sp
    if not cfg.slow: S+=[I(".fill 2048, 4, 0xbf810000")]
    return S, bool([p for p in probs if not p.startswith("NOTE")])

from gen import HDR, FTR
def write(fn):
    S,bad=build()
    with open(fn,"w") as f:
        f.write(HDR%(LDSB,NAME,NAME,NAME))
        for x in S:
            t=x.text
            f.write((t if (t.endswith(':') or t.startswith('.')) else "    "+t)+"\n")
        f.write(FTR%NAME)
    return bad
if __name__=="__main__":
    ap=argparse.ArgumentParser()
    ap.add_argument("out"); ap.add_argument("opts",nargs="*")
    a=ap.parse_args()
    for kv in a.opts:
        k,v=kv.split("=",1)
        cur=getattr(cfg,k)
        setattr(cfg,k, (v in("1","True","true")) if isinstance(cur,bool) else (int(v) if isinstance(cur,int) else v.replace("+"," ")))
    bad=write(a.out)
    from mkco import build as mk
    print(mk(a.out), "PROBLEMS" if bad else "clean")
```

```python
import sys, argparse, re, functools
sys.path.insert(0,'work')
from asmlib import I, check_trace
NAME="standalone__gqa_softmax__near_ridge_kernel"
SLOT=16640; WREG=4160; NSLOT=9
LDSB=NSLOT*SLOT
HEADB=98304
TOTB=50331648

class Cfg:
    ld="nt"; st="sc1"; st2="nt"
    stamps=False; rt=False; tl=False; dbgsz=0x400000; echo=-1; diag=''
    slow=True; cpf=True
    rho=3; rhoG=3; rhoE=8
    prof='47,47,44,40'
    loopR=False
    profB='00,00'
    profB0=''
    profO=''
    oddB=False
    dl=2
cfg=Cfg()

def O(s,dt): return 64+32*s+4*dt
SB=[16,24]; PB=[32,36]
MN=40
vK,vV,vKl,vVl=46,47,48,49
vD=[50,51]
vQ=52
vR=[56,63]
vKVA,vKVB,vQA,vQB=57,58,59,60
vW=[5,6,7,62]
T0,T1,T2,T3=1,2,3,4
DR=[8,12]
QREGS=[vQ+k for k in range(4)]
def Qr(s,ks): return 16*s+4*ks
def Kf(par,i): return 96+32*par+4*i
def Vf(par,dt): return 160+32*par+4*dt
def Lr(s): return 224+4*s
ONES=248
sKA,sVB,sQA,sQB,sO=8,12,16,20,24
sOff,sCur,sC,sH,sW4,sT,sPe,sEnd,sKVw,sQw,sThr=40,42,43,44,45,46,47,48,49,50,51
sBad=52; sBad2=96
sTmp,sSt,sNC,sHn,sDbg=55,57,58,59,60
sSd,sDi=41,54
sStamp=64
sPo,sXe,sXo=92,93,94

def vr(a,n=4): return f"v[{a}:{a+n-1}]"
def ar(a,n=4): return f"a[{a}:{a+n-1}]"
def sr(a,n=4): return f"s[{a}:{a+n-1}]"
def offs(o): return f" offset:{o}" if o else ""

def slotKV(h,b):
    if b<2: return b
    if h==0: return (6+b)%9
    return [8,0,1,2][(b-2)%4]
def slotQ(s): return 2+s
UOFF=[0,1024,2080,3104]
def dma(j,tag,slot,q,off=sOff):
    A,B,va,vb=(sQA,sQB,vQA,vQB) if q else (sKA,sVB,vKVA,vKVB)
    p=f" {cfg.ld}" if cfg.ld else ""
    return I(f"buffer_load_dwordx4 v{[va,va,vb,vb][j]}, {sr([A,B,A,B][j])}, s{off} offen{offs(UOFF[j])}{p} lds", tag=tag, slot=slot)
def kvdma(h,b,j,off=sOff): return dma(j,f"h{h}KV{b}",slotKV(h,b),False,off)
def qdma(h,s,j,off=sOff): return dma(j,f"h{h}Q{s}",slotQ(s),True,off)
def pdma(n,j):
    if n<18: return kvdma(0,n-6,j)
    if n<20: return kvdma(1,n-18,j)
    return qdma(1,n-20,j)
def setm0(slot): return I(f"s_add_u32 m0, s{sW4}, {slot*SLOT}") if slot else I(f"s_mov_b32 m0, s{sW4}")
def frag_reads(h,b,base=0,rk=vK,rv=vV,tags=True):
    m=dict(src=f"h{h}KV{b}",slot=slotKV(h,b)) if tags else {}
    par=b&1
    return [I(f"ds_read_b128 {ar(Kf(par,i))}, v{rk}{offs(base+(i//4)*512+(i%4)*64)}",**m) for i in range(8)]+\
           [I(f"ds_read_b64_tr_b16 {ar(Vf(par,i//2)+2*(i%2),2)}, v{rv}{offs(base+(i%2)*512+(i//2)*32)}",**m) for i in range(16)]
def qreads(h,s): return [I(f"ds_read_b128 {ar(Qr(s,ks))}, v{vQ+ks}{offs((s%4)*SLOT)}", src=f"h{h}Q{s}", slot=slotQ(s), private=True) for ks in range(4)]
def bias(regs,up): return [I(f"{'v_add_u32' if up else 'v_subrev_u32'} v{r}, {4*SLOT}, v{r}") for r in regs]
def setrd(reg,rk=vK,rv=vV): return [I(f"v_add_u32 v{rk}, s{reg}, v{vKl}"), I(f"v_add_u32 v{rv}, s{reg}, v{vVl}")]

FA=[(b,s) for s in range(6) for b in (0,1)]
LA=[(10,0),(10,1),(10,2),(11,0),(11,1),(10,3),(11,2),(10,4),(11,3),(10,5),(11,4),(11,5)]
FB=[(0,0),(0,1),(1,0),(0,2),(1,1),(0,3),(1,2),(0,4),(1,3),(0,5),(1,4),(1,5)]
MID=[(b,s) for b in range(2,10) for s in range(6)]
GB=[(b,s) for b in (8,9,10,11) for s in (0,1,2)]+[(8,3),(8,4),(8,5),(9,3),(9,4),(9,5),(10,3),(11,3),(10,4),(11,4),(10,5),(11,5)]
UNITS=[(0,)+u for u in FA+MID+LA]+[(1,)+u for u in FB+MID[:36]+GB]
def unit(i): return UNITS[i] if 0<=i<len(UNITS) else None

MF="v_mfma_f32_16x16x32_bf16"
def qk_mfmas(s,kpar,sb,u=None):
    o=[]
    for i in range(8):
        kt,ks=divmod(i,4); d=SB[sb]+4*kt
        x=I(f"{MF} {vr(d)}, {ar(Kf(kpar,i))}, {ar(Qr(s,ks))}, {'0' if ks==0 else vr(d)}")
        if u:
            x.meta['expect']={**{r:f"h{u[0]}KV{u[1]}" for r in x.A}, **{r:f"h{u[0]}Q{u[2]}" for r in x.B}}
            x.meta['set']={r:f"S{u}" for r in x.wr}
        o.append(x)
    return o
def pv_mfmas(s,vpar,pb,first,u=None):
    o=[I(f"{MF} {vr(O(s,dt))}, {ar(Vf(vpar,dt))}, {vr(PB[pb])}, {'0' if first else vr(O(s,dt))}") for dt in range(8)]
    o.append(I(f"{MF} {ar(Lr(s))}, {ar(ONES)}, {vr(PB[pb])}, {'0' if first else ar(Lr(s))}"))
    if u:
        cnt=sum(1 for y in UNITS[:UNITS.index(u)] if y[0]==u[0] and y[2]==u[2])
        for k,x in enumerate(o):
            e={r:f"P{u}" for r in x.B}
            if k<8: e.update({r:f"h{u[0]}KV{u[1]}" for r in x.A})
            if not first: e.update({r:f"O{u[0]}n{cnt}" for r in x.wr})
            x.meta['expect']=e; x.meta['set']={r:f"O{u[0]}n{cnt+1}" for r in x.wr}
    return o
FREE=(5,11,16)
def sm_gaps(s,sb,pb,u=None):
    S=SB[sb]; P=PB[pb]
    T=(lambda **k:k) if u else (lambda **k:{})
    f=lambda e: I(f"v_fma_f32 v{S+e}, v{S+e}, s{sC}, v{MN+s}", **T(expect={('v',S+e):f"S{u}",('v',MN+s):f"M{u and u[0]}"}))
    x=lambda e: I(f"v_exp_f32 v{S+e}, v{S+e}", **T(expect={('v',S+e):f"S{u}"}))
    c=lambda e: I(f"v_cvt_pk_bf16_f32 v{P+e//2}, v{S+e}, v{S+e+1}", **T(expect={('v',S+e):f"S{u}",('v',S+e+1):f"S{u}"}, set={('v',P+e//2):f"P{u}"}))
    return [[f(0),f(1)],[x(0)],[x(1)],[f(2),f(3)],[x(2)],[],[x(3)],[f(4),f(5)],[x(4)],[x(5)],[f(6),f(7)],[],[x(6)],[x(7)],[c(0),c(2)],[c(4),c(6)],[]]
def max_seq(s,sb,h):
    S=SB[sb]
    return [I(f"v_max3_f32 v{T0}, v{S}, v{S+1}, v{S+2}"), I(f"v_max3_f32 v{T3}, v{S+3}, v{S+4}, v{S+5}"),
            I(f"v_max3_f32 v{T0}, v{T0}, v{S+6}, v{S+7}"), I(f"v_max_f32 v{T0}, v{T0}, v{T3}"),
            I(f"v_mov_b32 v{T3}, v{T0}"), I(f"v_permlane16_swap_b32 v{T0}, v{T3}"),
            I(f"v_max_f32 v{T0}, v{T0}, v{T3}"), I(f"v_mov_b32 v{T3}, v{T0}"),
            I(f"v_permlane32_swap_b32 v{T0}, v{T3}"), I(f"v_max_f32 v{T0}, v{T0}, v{T3}"),
            I(f"v_mul_f32 v{MN+s}, s{sNC}, v{T0}", set={('v',MN+s):f"M{h}"})]
MAXG=[11,11,12,12,12,13,14,14,15,16,16]
def put(ex,g,items): ex.setdefault(g,[]).extend(items)

def step(i, ex=None, post=None, clump=0):
    ex=ex or {}; post=post or {}
    q,m,p=unit(i+1),unit(i),unit(i-1)
    mf=(qk_mfmas(q[2],q[1]&1,(i+1)&1,q) if q else [None]*8)+(pv_mfmas(p[2],p[1]&1,(i-1)&1,p[1]==0,p) if p else [None]*9)
    g=sm_gaps(m[2],i&1,i&1,m) if m else [[] for _ in range(17)]
    for src,dst in [(2,1),(9,8),(13,12),(15,14),(4,3),(7,6),(1,0)][:clump]:
        g[dst]=g[dst]+g[src]; g[src]=[]
    tailmax=[]
    if q and q[1]==0:
        ms=max_seq(q[2],(i+1)&1,q[0])
        if p and m:
            for gg,x in zip(MAXG,ms): g[gg]=g[gg]+[x]
        else:
            for x in ms:
                if x.op.startswith('v_permlane'): tailmax.append(I("s_nop 1"))
                tailmax.append(x)
    out=[I(f"; ---- step {i}: QK{q} softmax{m} PV{p}")]
    out+=ex.get(-1,[])
    for k in range(17):
        if mf[k] is not None: out.append(mf[k])
        out+=ex.get(k,[])+g[k]+post.get(k,[])
    return out+tailmax+ex.get(17,[])

def free_gaps(ex,lo,n,avoid=()):
    return [x for x in range(lo,17) if x not in FREE and x not in ex and x not in avoid][:n]
def spread(ex,lo,items,avoid=()):
    gs=free_gaps(ex,lo,len(items),avoid)
    while len(gs)<len(items): gs.append(gs[-1])
    for x,i in zip(gs,items): put(ex,x,[i])
def TL():
    if not cfg.tl: return []
    r=[I("s_mov_b64 exec, s[90:91]"), I("v_mov_b32 v0, s98"), I("v_mov_b32 v61, s100"), I("s_mov_b64 exec, -1"), I("s_lshl_b64 s[90:91], s[90:91], 1"), I("s_memtime s[98:99]"), I("s_memrealtime s[100:101]")]
    for x in r: x.meta['skip']=True
    return r
def BAR(): return [I("s_barrier")]+TL()
def WV(tag,lg0=False): return I("s_waitcnt vmcnt(AUTO)"+(" lgkmcnt(0)" if lg0 else ""), auto_vm=tag, need=tag)
def WL(x): return I("s_waitcnt lgkmcnt(AUTO)", auto_lg=x)

def kind(x):
    if x.op.startswith('ds_read'): return 'r'
    if x.op.startswith('ds_write'): return 'w'
    if getattr(x,'dma',False): return 'd'
    if getattr(x,'store',False): return 's'
    return 'a'
def gapcost(ks,free):
    if not ks: return 0
    U={'r':4,'d':6,'w':12,'s':12,'a':4}
    c=sum(U[k] for k in ks)
    if ks[0]=='a': c-=4
    if len(ks)==1 and ks[0]=='d': c=4 if not free else 8
    for p,q in zip(ks,ks[1:]):
        if p=='w' and q=='r': c+=12
    st=12*ks.count('s')
    if free: return st+max(0,c-st-8)
    return c+4*max(0,len([k for k in ks if k!='a'])-1)
def place(ex,groups,lo=0,hi=16,free=FREE):
    groups=[g if isinstance(g,list) else [g] for g in groups]
    n=len(groups)
    if not n: return
    base={g:[kind(x) for x in ex.get(g,[]) if not x.label and not x.meta.get('skip')] for g in range(17)}
    @functools.lru_cache(None)
    def f(g,i):
        if i==n: return (0,())
        if g>hi: return (1e9,())
        best=(1e9,())
        for m in range(0,min(4,n-i)+1):
            ks=base[g]+[kind(x) for gr in groups[i:i+m] for x in gr]
            c=gapcost(ks,g in free)-gapcost(base[g],g in free)
            c+=0.01*sum(abs(g-(lo+(hi-lo)*(j+0.5)/n)) for j in range(i,i+m))
            r=f(g+1,i+m)
            if c+r[0]<best[0]: best=(c+r[0],(g,)*m+r[1])
        return best
    c,gs=f(lo,0)
    assert len(gs)==n
    for g,gr in zip(gs,groups): put(ex,g,gr)

def put_reads(ex,post,reads,r,late):
    rs=reads[4*r:4*r+4]
    if late:
        gs=[6,8,12,13] if r<5 else [2,6,8,9]
        for k in range(late): put(post,gs[k],[rs[k]])
        if rs[late:]: put(ex,16 if r<5 else 11,rs[late:])
    else:
        rg=(5,16) if r<5 else (5,11)
        put(ex,rg[0],rs[:2]); put(ex,rg[1],rs[2:])
def loop_end(ex,lab,n):
    put(ex,13,[I(f"s_add_u32 s{sT}, s{sT}, 1")]); put(ex,15,[I(f"s_cmp_lt_u32 s{sT}, {n}")]); put(ex,16,[I(f"s_cbranch_scc1 {lab}")])

def blockA(b,pairs,pf,nv=None,lab=None,n=0):
    late,clump=int(pf[0]),int(pf[1])
    reads=frag_reads(0,b+1); tag=f"h0KV{b+1}"
    out=[]
    inc=4096 if pairs[0]>=20 else 8192
    if len(pairs)==2: dpos={0:[(0,0,11)],1:[(0,1,3),(0,2,11)],2:[(0,3,11)],3:[(1,0,11)],4:[(1,1,3),(1,2,11)],5:[(1,3,14)]}; advr=(0,3)
    else: dpos={0:[(0,0,11)],2:[(0,1,11)],3:[(0,2,11)],4:[(0,3,11)]}; advr=(0,)
    for r in range(6):
        ex={}; post={}
        if r==0:
            put(ex,0,[I(f"s_waitcnt vmcnt({nv}) lgkmcnt(0)", need=tag, loose_ok=True) if nv is not None else WV(tag,True)])
            put(ex,1,BAR()); put(post,4,setrd(sCur))
        put_reads(ex,post,reads,r,late)
        for (p,j,g) in dpos.get(r,[]): put(ex,g,[pdma(pairs[p],j)])
        if r in advr: spread(ex,2,[I(f"s_add_u32 m0, m0, {SLOT}"), I(f"s_cmp_ge_u32 m0, s{sEnd}"), I(f"s_cselect_b32 m0, s{sW4}, m0"), I(f"s_add_u32 s{sOff}, s{sOff}, {inc}")])
        if r==3: put(ex,15,[I(f"s_waitcnt lgkmcnt({4+late if late else 6})")])
        if r==5:
            spread(ex,0,[I(f"s_add_u32 s{sCur}, s{sCur}, {SLOT}"), I(f"s_cmp_ge_u32 s{sCur}, s{sEnd}"), I(f"s_cselect_b32 s{sCur}, s{sW4}, s{sCur}")])
            if lab: loop_end(ex,lab,n)
        out+=step(6*b+1+r,ex,post,clump)
    return out
def rampA(t=None,prof=None):
    pf=(prof or cfg.prof).split(',')
    if t is not None:
        n=12+4*t
        return blockA(2*t+2,[n,n+1],pf[0],nv=8)+blockA(2*t+3,[n+2,n+3],pf[1],nv=12,lab="LloopA1",n=2)
    o=[]
    for k,b in enumerate(range(2,6)): o+=blockA(b,[12+2*k,13+2*k],pf[k])
    return o
def midA(): return [I(f"s_add_u32 s{sOff}, s{sHn}, s{sQw}"), I(f"s_sub_u32 s{sOff}, s{sOff}, 4096"), I(f"s_mov_b32 s{sT}, 0")]
def loopA2(t): return blockA(2*t+6,[20+2*t],'00',nv=24)+blockA(2*t+7,[21+2*t],'00',nv=24,lab="LloopA2",n=2)

def ostore(reg,j,pol,so,tag=None):
    x=I(f"buffer_store_dwordx4 {vr(reg)}, v{vKVB}, {sr(sO)}, s{so} offen{offs(1024*j)}"+(f" {pol}" if pol else ""))
    if tag: x.meta['expect']={r:tag for r in x.data}
    return x
DIRECT=2
def dunit(k): return (DIRECT+k//4, k%4)
def blockB(b,pf,lab=None,n=0):
    late,clump=int(pf[0]),int(pf[1])
    t=(b-2)//2
    reads=frag_reads(1,b+1); tag=f"h1KV{b+1}"
    out=[]; lead=(b%2==0)
    rp,wp=(sPo,sPe) if lead else (sPe,sPo)
    rx=sXo if lead else sXe
    nb=cfg.dl//2; loc0=(0 if lead else nb)
    dr=[]; sts=[]
    for k in range(nb):
        sub,j=dunit(cfg.dl*t+loc0+k); jj=loc0+k
        dr.append(I(f"ds_read_b128 {vr(DR[jj&1])}, v{vD[jj&1]}{offs(1024*jj)}", src=f"O{sub}", slot=slotQ(sub), private=True))
        sts.append(ostore(DR[jj&1],jj,cfg.st,sSd,f"O{sub}"))
    for r in range(6):
        ex={}; post={}
        if r==0:
            put(ex,0,[I(f"s_waitcnt vmcnt({8+nb}) lgkmcnt(0)", need=tag, loose_ok=True)])
            put(ex,1,BAR())
            put(ex,2,[I(f"s_mov_b32 m0, s{wp}")]); put(ex,3,[I(f"s_xor_b32 s{rp}, s{rp}, s{rx}")])
            put(ex,4,[I(f"s_add_u32 s{sOff}, s{sOff}, 8192")]); put(post,4,setrd(rp))
        put_reads(ex,post,reads,r,late)
        if r<4: put(ex,11,[kvdma(1,b+4,r)])
        if r==3: put(ex,15,[I(f"s_waitcnt lgkmcnt({4+late if late else 6})")])
        if r==4 and nb: put(ex,11,dr)
        if r==5 and nb:
            put(ex,1,[I("s_waitcnt lgkmcnt(2)")]); put(ex,3,[sts[0]])
            if nb==2: put(ex,10,[sts[1]])
        if r==5 and not lead:
            if nb:
                put(ex,12,[I(f"s_add_u32 s{sSd}, s{sSd}, {1024*cfg.dl}")])
                inc=f"{SLOT}" if cfg.dl==4 else f"s{sDi}"
                put(post,16 if not lab else 7,[I(f"v_add_u32 v{vD[k]}, {inc}, v{vD[k]}") for k in range(2)])
                if cfg.dl==2: put(ex,0,[I(f"s_xor_b32 s{sDi}, s{sDi}, {2048^(SLOT-2048)}")])
            if lab: loop_end(ex,lab,n)
        out+=step(72+6*b+1+r,ex,post,clump)
    return out
def loopB(t):
    pf=cfg.profB.split(',')
    return blockB(2*t+2,pf[0])+blockB(2*t+3,pf[1],lab="LloopB",n=(2 if cfg.profB0 else 3))
def peelB():
    pf=cfg.profB0.split(',')
    return blockB(2,pf[0])+blockB(3,pf[1])

def tagexp(o,tag):
    if tag:
        h=0 if tag[0]=='O' else 1
        for x in o:
            x.meta['expect']={r:f"O{h}n12" for r in x.rd if (r[0]=='v' and r[1]>=64) or (r[0]=='a' and 224<=r[1]<248)}
    return o
def e_head(s,bad,tag,rc):
    o=[I(f"v_accvgpr_read_b32 v{T2}, a{Lr(s)}"), I(f"v_rcp_f32 v{rc}, v{T2}")]
    o.append(I(f"v_cmp_nge_f32 vcc, s{sThr}, v{T2}") if bad is not None else I("s_nop 0"))
    if bad is not None: o.append(I(f"s_or_b64 s[{bad}:{bad+1}], s[{bad}:{bad+1}], vcc"))
    return tagexp(o,tag)
def e_pk(s,dt,tag,rc):
    a=O(s,dt)
    return tagexp([I(f"v_pk_mul_f32 {vr(a+k,2)}, {vr(a+k,2)}, v[{rc}:{rc+1}] op_sel_hi:[1,0]") for k in (0,2)],tag)
def e_cvt(s,dt,tag):
    a=O(s,dt)
    return tagexp([I(f"v_cvt_pk_bf16_f32 v{a}, v{a}, v{a+1}"), I(f"v_cvt_pk_bf16_f32 v{a+1}, v{a+2}, v{a+3}")],tag)
def e_wr(s,dt,off,slot,tag,regs=vW):
    return tagexp([I(f"ds_write_b64 v{regs[dt&3]}, {vr(O(s,dt),2)}{offs(off+(dt>>2)*128)}", wslot=slot, wtag=tag)],tag)[0]
def epi_rd(s,off,slot,tag=None,regs=vR):
    m=dict(src=tag,slot=slot,private=True) if tag else {}
    return [I(f"ds_read_b128 {vr(O(s,2*j))}, v{regs[j&1]}{offs(off+1024*j)}", **m) for j in range(4)]
def epi_st(s,pol,so,tag=None): return [ostore(O(s,2*j),j,pol,so,tag) for j in range(4)]

class Epi:
    def __init__(s,rc2,so): s.rc2=rc2; s.so=so; s.tiles=[]; s.cv=[]; s.wr=[]; s.rd=[]; s.st=[]; s.info={}
    def add(s,sub,avail,off,slot,bad,tag,direct,pol,pre=()):
        s.info[sub]=dict(off=off,slot=slot,bad=bad,tag=tag,direct=direct,pol=pol,pre=list(pre))
        s.tiles+=[(avail,sub,dt) for dt in range(8)]
    def _rd(s,g):
        rd=s.rd; s.rd=[]
        for sub in rd:
            I_=s.info[sub]; r=epi_rd(sub,I_['off'],I_['slot'],I_['tag']); g+=[[x] for x in r]
            st=epi_st(sub,I_['pol'],s.so,I_['tag'])
            s.st+=[[WL(r[1]),st[0]],[st[1]],[WL(r[3]),st[2]],[st[3],I(f"s_add_u32 s{s.so}, s{s.so}, 4096")]]
    def mem(s,nst,fast=False):
        g=[]
        for _ in range(nst):
            if s.st: g.append(s.st.pop(0))
        s._rd(g)
        for sub,dt in s.wr:
            I_=s.info[sub]
            g.append(([I_['pre'][dt]] if (I_['pre'] and dt<4) else [])+[e_wr(sub,dt,I_['off'],I_['slot'],I_['tag'])])
            if dt==7 and I_['direct']: s.rd.append(sub)
        s.wr=[]
        if fast: s._rd(g)
        return g
    def chunk(s,i,n):
        take=[]
        while s.tiles and len(take)<n and s.tiles[0][0]<=i: take.append(s.tiles.pop(0)[1:])
        o=[]
        for sub,dt in s.cv: o+=e_cvt(sub,dt,s.info[sub]['tag']); s.wr.append((sub,dt))
        s.cv=[]
        heads=[]
        for sub,dt in take:
            I_=s.info[sub]; rc=T1 if sub%2==0 else s.rc2
            if dt==0: heads+=e_head(sub,I_['bad'],I_['tag'],rc)
        o=heads+o
        for sub,dt in take:
            o+=e_pk(sub,dt,s.info[sub]['tag'],T1 if sub%2==0 else s.rc2)
        k=max(1,len(take)-2) if s.tiles and s.tiles[0][0]<=i+1 else len(take)
        for sub,dt in take[:k]: o+=e_cvt(sub,dt,s.info[sub]['tag']); s.wr.append((sub,dt))
        s.cv=take[k:]
        return o
    def done(s): return not(s.tiles or s.cv or s.wr or s.rd or s.st)

def startA():
    o=[I("; ==== head A, first two key blocks (q-major, as Q arrives)")]
    f0=frag_reads(0,0); f1=frag_reads(0,1,base=SLOT); f2=frag_reads(0,2)
    o+=setrd(sW4)
    o.append(WV("h0Q0")); o+=BAR()
    o+=qreads(0,0)+f0[:8]
    seq=[('q',s,j) for s in (3,4,5) for j in range(4)]+[('k',b,j) for b in (2,3,4,5) for j in range(4)]
    def dm():
        k,x,j=seq.pop(0); it=[]
        if j==0:
            it+=[setm0(slotQ(x) if k=='q' else slotKV(0,x)), I(f"s_add_u32 s{sTmp}, s{sTmp}, 4096") if k=='q' else I(f"s_add_u32 s{sOff}, s{sOff}, 8192")]
        return it+[qdma(0,x,j,sTmp) if k=='q' else kvdma(0,x,j)]
    for i in range(-1,13):
        ex={}; post={}
        if i==-1:
            put(ex,-1,[WL(f0[0])])
            for k in range(8): put(ex,k,f0[8+2*k:10+2*k]+([WL(f0[k+1])] if k<7 else []))
            put(ex,7,dm()+dm()+[WV("h0KV1")]+BAR()+f1[:8])
            put(ex,17,[WL(f1[7])])
        else:
            if i==0:
                for k in range(8): put(ex,k,f1[8+2*k:10+2*k])
            if i==3: put(ex,0,[I("s_waitcnt lgkmcnt(0)")]); put(ex,1,BAR())
            if i%2==0 and i<=8:
                s=i//2+1; qs=qreads(0,s)
                put(ex,2 if i else 8,dm()); put(ex,5 if i else 8,dm())
                if s==4: put(post,9,bias(QREGS,True))
                put(ex,10,[WV(f"h0Q{s}")]); put(ex,11,qs[:2]); put(ex,12,[qs[2]]); put(ex,13,[qs[3]])
                if s==5: put(post,16,bias(QREGS,False))
                put(ex,17,[WL(qs[3])])
            elif i==10:
                put(ex,0,[WV("h0KV2",True)]); put(ex,1,BAR())
                put(ex,2,[I(f"s_add_u32 s{sCur}, s{sW4}, {8*SLOT}")]); put(post,3,setrd(sCur))
                place(ex,f2[:8],lo=4,hi=12)
                put(ex,14,dm()); put(ex,16,dm())
                put(ex,17,[WL(f2[7])])
            elif i==12:
                place(ex,f2[8:],lo=0,hi=13)
                put(ex,14,dm()); put(ex,16,dm())
                put(ex,15,[I(f"s_mov_b32 s{sCur}, s{sW4}")])
            else:
                put(ex,5,dm()); put(ex,10,dm())
        o+=step(i,ex,post)
    assert not seq
    return o

def trans():
    o=[I("; ==== head A last two key blocks + head B first two, epilogue of head A streamed")]
    f11=frag_reads(0,11); g0=frag_reads(1,0); g1=frag_reads(1,1,base=SLOT); g2=frag_reads(1,2)
    E=Epi(14,sSd)
    idxA={u:k for k,u in enumerate(LA)}
    for s in range(6):
        E.add(s,60+idxA[(11,s)]+2,(s%4)*SLOT,slotQ(s),sBad,f"O{s}",s<DIRECT,cfg.st,pre=(bias(vW,True) if s==4 else ()))
    Q=lambda s:qreads(1,s)
    q5=Q(5)
    R={61:f11[:8], 62:f11[8:16], 63:f11[16:24], 64:Q(0), 65:Q(1), 67:Q(2), 68:Q(3), 69:g0[:4], 70:g0[4:8], 71:g0[8:16], 72:g1[:8], 73:g0[16:24],
       74:g1[8:18], 75:g1[18:24], 76:Q(4), 78:q5, 81:g2[:4], 82:g2[4:8], 83:g2[8:16], 84:g2[16:24]}
    D={}
    for (k,x),steps in zip([('q',4),('q',5),('k',2),('k',3),('k',4),('k',5)],
                           [[61,62,63,64],[65,66,66,67],[69,70,71,72],[76,77,77,78],[79,79,80,80],[81,82,83,84]]):
        for j,i in enumerate(steps): D.setdefault(i,[]).append((k,x,j))
    for i in range(61,85):
        ex={}; post={}
        rs=R.get(i,[]); lo=0; hi=16
        mx=(unit(i+1)[1]==0)
        if i==61:
            put(ex,0,[WV("h0KV11",True)]); put(ex,1,BAR()); put(post,2,setrd(sCur)); lo=3; hi=12
            put(ex,17,[WL(f11[7])])
            put(ex,2,[I(f"s_add_u32 s{sSd}, s{sH}, s{sQw}")])
        if i==64: put(ex,0,[WV("h1Q3")]); put(ex,7,[WL(f11[23])]); lo=1
        if i==69:
            put(ex,0,[WV("h1KV1",True)]); put(ex,1,BAR()); put(post,2,setrd(sW4)); lo=3
            put(ex,2,[I(f"s_add_u32 s{sOff}, s{sHn}, s{sKVw}")]); put(ex,3,[I(f"s_add_u32 s{sOff}, s{sOff}, 8192")])
        if i==70: hi=12; put(ex,17,[WL(g0[7])])
        if i==72: hi=12; put(ex,17,[WL(g1[7])])
        if i==73: hi=5; put(ex,7,[WL(g0[17])]); put(ex,11,[WL(g0[23])])
        if i==75: hi=6; put(ex,7,[WL(g1[17])]); put(ex,12,[WL(g1[23])]); put(post,9,bias(QREGS,True))
        if i==76: put(ex,0,[WV("h1Q4",True)]); put(ex,1,BAR()); lo=2
        if i==77: put(ex,15,[WL(R[76][3])])
        if i==78: put(ex,0,[WV("h1Q5")]); lo=1
        if i==79: put(ex,15,[WL(q5[3])])
        if i==81:
            put(ex,0,[WV("h1KV2",True)]); put(ex,1,BAR())
            put(ex,2,[I(f"s_add_u32 s{sPe}, s{sW4}, {8*SLOT}")]); put(post,2,setrd(sPe)); lo=4
            put(ex,3,[I(f"s_add_u32 s{sPo}, s{sW4}, {2*SLOT}")])
        if i==82: hi=12; put(ex,17,[WL(g2[7])])
        if i==84: hi=12
        mem=E.mem(2)
        ch=E.chunk(i,cfg.rho)
        free=[g for g in FREE if not(g==16 and (ch or mx)) and not (g==11 and mx)]
        place(ex,rs,lo=lo,hi=hi,free=free)
        dg=[]
        for (k,x,j) in D.get(i,[]):
            pre=[setm0(slotQ(x) if k=='q' else slotKV(1,x)), I(f"s_add_u32 s{sOff}, s{sOff}, {4096 if k=='q' else 8192}")] if j==0 else []
            dg.append(pre+[qdma(1,x,j) if k=='q' else kvdma(1,x,j)])
        place(ex,dg,lo=max(lo,4),hi=16,free=free)
        qlast=max([g for g,v in ex.items() if any(x.meta.get('src','').startswith('h1Q') for x in v)]+[-1])
        need_after=any(kind(gr[-1])=='w' and any(x.meta.get('slot')==gr[-1].meta['wslot'] for x in rs) for gr in mem)
        place(ex,mem,lo=(qlast+1 if need_after else (2 if i in (69,76,81) else 0)),hi=15,free=free)
        put(post,16,ch)
        if i==83:
            put(post,16,bias(vW,False)+[I(f"v_add_u32 v{vD[k]}, {DIRECT*SLOT}, v{vR[k]}") for k in range(2)])
        if i==84:
            spread(ex,0,[I(f"s_mov_b32 s{sT}, 0"), I(f"s_movk_i32 s{sDi}, {SLOT-2048}"), I(f"s_add_u32 s{sSt}, s{sHn}, s{sQw}")])
            put(ex,17,[WV("h1KV3")])
        o+=step(i,ex,post)
    assert E.done()
    return o

def tailB():
    o=[I("; ==== head B last four key blocks: q sub-tiles 0-2 first, then 3-5; epilogue streamed")]
    base=120
    vK2,vV2=vQ,vQ+1
    def fr(b): return frag_reads(1,b,base=slotKV(1,b)*SLOT) if b!=10 else frag_reads(1,b,rk=vK2,rv=vV2)
    F=[fr(b) for b in [9,10,11,8,9,10,11]]
    R={}
    def addR(i,L): R.setdefault(i,[]).extend(L)
    for m in range(7):
        K,V=F[m][:8],F[m][8:]
        if m==0: addR(base+1,K)
        elif m<6: addR(base+3*m-1,K[:3]); addR(base+3*m,K[3:6]); addR(base+3*m+1,K[6:])
        else: addR(base+17,K)
        if m<6:
            addR(base+3*m+1,V[:(0 if m==0 else 5)]); addR(base+3*m+2,V[(0 if m==0 else 5):(8 if m==0 else 10)]); addR(base+3*m+3,V[(8 if m==0 else 10):(16 if m in (0,5) else 15)])
            if m not in (0,5): R.setdefault(base+3*m+4,[]).insert(0,V[15])
        else: addR(base+19,V[:12]); addR(base+20,V[12:])
    E=Epi(vQ+2,sSt)
    idx={u:k for k,u in enumerate(GB)}
    for s_ in range(5):
        sl=3+(s_%2)
        E.add(s_,base+idx[(11,s_)]+2,(sl-2)*SLOT,sl,sBad2,f"P{s_}",True,cfg.st2)
    k0=3*cfg.dl; dq=list(range(k0,16)); pend=[]
    o_sub0,o_j0=dunit(k0)
    for i in range(base+1,base+25):
        ex={}; post={}; rel=i-base; lo=0; hi=16
        rs=list(R.get(i,[]))
        if rel==1:
            put(ex,0,[WV("h1KV10",True)]); put(ex,1,BAR())
            put(ex,2,[I(f"s_add_u32 s{sTmp}, s{sW4}, {8*SLOT}")])
            put(post,2,setrd(sW4)); lo=3; hi=12
            put(post,13,setrd(sTmp,vK2,vV2))
        if rel==5: put(ex,0,[WV("h1KV11")]); put(ex,1,BAR()); lo=2
        if rel==12: put(ex,3,TL())
        g=[]
        for rdx,k in pend:
            sub,j=dunit(k); jj=(k-k0)%4
            g.append([WL(rdx),ostore(DR[k&1],jj,cfg.st,sSd,f"O{sub}")]+([I(f"s_add_u32 s{sSd}, s{sSd}, 4096")] if jj==3 else []))
        pend=[]
        place(ex,g,lo=max(lo,3),hi=4)
        if dq:
            k=dq.pop(0); sub,j=dunit(k)
            x=I(f"ds_read_b128 {vr(DR[k&1])}, v{vD[j&1]}{offs((sub-o_sub0)*SLOT+1024*(j-o_j0))}", src=f"O{sub}", slot=slotQ(sub), private=True)
            pend.append((x,k)); place(ex,[x],lo=13,hi=15)
        mem=E.mem(2 if rel<21 else 4, fast=(rel>=21))
        ch=E.chunk(i,cfg.rhoG if rel<20 else cfg.rhoE)
        free=[g_ for g_ in FREE if not(g_==16 and ch)] if rel<24 else list(range(8,16))
        for m in range(7):
            K,V=F[m][:8],F[m][8:]
            needK = base+3*m+2 if m<6 else base+18
            needV = base+3*m+4 if m<6 else base+20
            if i==needK-1:
                put(ex,17,[WL(K[7])])
                if rs and rs[-1] is K[7]: hi=min(hi,13)
            if i==needV:
                late=[x for x in V if x in rs]
                if late:
                    place(ex,late,lo=0,hi=5,free=free); rs=[x for x in rs if x not in late]; lo=max(lo,6)
                    put(ex,7,[WL(V[15-len(late)])]); put(ex,8+(16-len(late))//2-1,[WL(V[15])])
                else: put(ex,7,[WL(V[15])])
        place(ex,rs,lo=lo,hi=hi,free=free)
        place(ex,mem,lo=(0 if rel<23 else 8),hi=(15 if rel<24 else 16),free=free)
        put(post,16,ch)
        o+=step(i,ex,post)
    assert not E.tiles and not E.cv and not dq and not pend and not E.wr and not E.rd
    tag="P5"; sl=5; off=3*SLOT
    rest=[x for g in E.mem(8) for x in g]
    assert E.done()
    pad=max(0,8-len(rest)-len([x for x in ex.get(16,[])]))
    o+=rest+([I(f"s_nop {pad-1}")] if pad else [])+e_head(5,sBad2,tag,T1)
    for half in (0,1):
        for dt in range(4*half,4*half+4): o+=e_pk(5,dt,tag,T1)
        for dt in range(4*half,4*half+4): o+=e_cvt(5,dt,tag)
        for dt in range(4*half,4*half+4): o.append(e_wr(5,dt,off,sl,tag))
    rd=epi_rd(5,off,sl,tag); o+=rd
    st=epi_st(5,cfg.st2,sSt,tag)
    for j in range(4): o+=[WL(rd[j]), st[j]]
    return o

def stamp(k):
    if not cfg.stamps: return []
    op="s_memrealtime" if (cfg.echo>=0 or cfg.rt) else "s_memtime"
    return [I(f"{op} s[{sStamp+4+2*k}:{sStamp+5+2*k}]", skip=True)]

def lane_consts(A,base):
    A("v_and_b32 v4, 3, v0")
    A("v_bfe_u32 v3, v0, 2, 1"); A("v_mul_u32_u24 v9, 2080, v3")
    A("v_bfe_u32 v3, v0, 3, 1"); A("v_lshl_add_u32 v9, v3, 10, v9")
    A("v_lshl_add_u32 v9, v4, 8, v9"); A("v_lshl_add_u32 v9, v2, 4, v9"); A(f"v_add_u32 v9, s{base}, v9")
    for ks in range(4):
        A(f"v_xor_b32 v3, {ks}, v4"); A(f"v_lshl_add_u32 v{vQ+ks}, v3, 6, v9")
    A("v_and_b32 v8, 15, v0"); A("v_xor_b32 v9, v8, v2"); A("v_lshlrev_b32 v10, 8, v2"); A(f"v_add_u32 v10, s{base}, v10")
    A(f"v_lshl_add_u32 v{vR[0]}, v9, 4, v10"); A("v_xor_b32 v9, 4, v9"); A(f"v_lshl_add_u32 v{vR[1]}, v9, 4, v10")
    A("v_lshlrev_b32 v10, 8, v8"); A("v_and_b32 v9, 1, v2"); A("v_lshl_add_u32 v10, v9, 3, v10"); A(f"v_add_u32 v10, s{base}, v10")
    A("v_lshrrev_b32 v9, 1, v2"); A("v_and_b32 v8, 7, v0"); A("v_xor_b32 v9, v9, v8")
    for k in range(4):
        A(f"v_xor_b32 v8, {2*k}, v9"); A(f"v_lshl_add_u32 v{vW[k]}, v8, 4, v10")

CPF_LINES=11
def prologue():
    o=[]
    A=lambda t,**k: o.append(I(t,**k))
    A(f"s_load_dwordx2 s[{sKA}:{sKA+1}], s[0:1], 8"); A(f"s_load_dwordx2 s[{sVB}:{sVB+1}], s[0:1], 16")
    A(f"s_load_dwordx2 s[{sQA}:{sQA+1}], s[0:1], 0"); A(f"s_load_dwordx2 s[{sO}:{sO+1}], s[0:1], 24")
    if cfg.stamps:
        A(f"s_load_dwordx2 s[{sDbg}:{sDbg+1}], s[0:1], 32")
        A(f"s_memtime s[{sStamp}:{sStamp+1}]"); A(f"s_memrealtime s[{sStamp+2}:{sStamp+3}]")
    if cfg.tl:
        A("s_mov_b64 s[90:91], 1"); A("s_memtime s[98:99]"); A("s_memrealtime s[100:101]")
    A("s_cmp_ge_u32 s2, 256"); A("s_cbranch_scc1 Lend")
    A("v_lshrrev_b32 v1, 6, v0"); A("v_and_b32 v0, 63, v0"); A("v_readfirstlane_b32 s3, v1")
    A(f"v_lshlrev_b32 v{vKVB}, 4, v0"); A(f"v_add_u32 v{vKVA}, 1056, v{vKVB}")
    if cfg.diag=='l2only': A("s_and_b32 s62, s2, 7"); A(f"s_mul_i32 s{sH}, s62, {2*HEADB}")
    else: A(f"s_mul_i32 s{sH}, s2, {2*HEADB}")
    A(f"s_mov_b32 s{sKA+2}, {TOTB+4096}"); A(f"s_mov_b32 s{sKA+3}, 0x20000"); A(f"s_mov_b64 s[{sVB+2}:{sVB+3}], s[{sKA+2}:{sKA+3}]")
    A(f"s_mul_i32 s{sW4}, s3, {WREG}"); A(f"s_lshl_b32 s{sKVw}, s3, 11")
    A(f"s_add_u32 s{sOff}, s{sH}, s{sKVw}")
    o.append(setm0(0))
    A("s_waitcnt lgkmcnt(0)")
    A(f"s_sub_u32 s{sKA}, s{sKA}, 1056"); A(f"s_subb_u32 s{sKA+1}, s{sKA+1}, 0")
    o+=[kvdma(0,0,0),kvdma(0,0,2)]
    A(f"s_sub_u32 s{sVB}, s{sVB}, 2080"); A(f"s_subb_u32 s{sVB+1}, s{sVB+1}, 0")
    o+=[kvdma(0,0,1),kvdma(0,0,3)]
    if cfg.cpf:
        A("s_getpc_b64 s[62:63]"); A("s_lshr_b32 s4, s2, 3"); A(f"s_mul_i32 s4, s4, {128*CPF_LINES}")
        A(f"v_min_u32 v1, {CPF_LINES-1}, v0"); A("v_lshl_add_u32 v1, v1, 7, s4")
        A("global_load_dword v61, v1, s[62:63]")
    A("v_lshrrev_b32 v2, 4, v0"); A("v_lshlrev_b32 v3, 6, v2"); A(f"v_xor_b32 v{vQB}, v{vKVB}, v3"); A(f"v_add_u32 v{vQA}, 1056, v{vQB}")
    A(f"s_mul_i32 s{sQw}, s3, 24576"); A(f"s_add_u32 s{sTmp}, s{sH}, s{sQw}")
    A(f"s_sub_u32 s{sQB}, s{sQA}, 32"); A(f"s_subb_u32 s{sQB+1}, s{sQA+1}, 0")
    A(f"s_sub_u32 s{sQA}, s{sQA}, 1056"); A(f"s_subb_u32 s{sQA+1}, s{sQA+1}, 0")
    o.append(setm0(slotQ(0)))
    A(f"s_mov_b64 s[{sQA+2}:{sQA+3}], s[{sKA+2}:{sKA+3}]"); A(f"s_mov_b64 s[{sQB+2}:{sQB+3}], s[{sKA+2}:{sKA+3}]")
    o+=[qdma(0,0,j,sTmp) for j in range(4)]
    o.append(setm0(1)); A(f"s_add_u32 s{sOff}, s{sOff}, 8192")
    o+=[kvdma(0,1,j) for j in (0,2,1,3)]
    A(f"s_mov_b32 s{sO+2}, {0 if cfg.diag else TOTB}"); A(f"s_mov_b32 s{sO+3}, 0x20000")
    A(f"s_add_u32 s{sHn}, s{sH}, {HEADB}")
    A(f"s_mov_b32 s{sC}, 0x3e0293ee"); A(f"s_mov_b32 s{sNC}, 0xbe0293ee"); A(f"s_mov_b32 s{sThr}, 0x49800000")
    A(f"s_add_u32 s{sEnd}, s{sW4}, {NSLOT*SLOT}")
    A(f"s_mov_b32 s{sT}, 0")
    if cfg.profO or cfg.oddB: A("s_getreg_b32 s95, hwreg(HW_REG_XCC_ID)")
    A(f"s_mov_b64 s[{sBad}:{sBad+1}], 0"); A(f"s_mov_b64 s[{sBad2}:{sBad2+1}], 0")
    A(f"s_add_u32 s{sXe}, s{sW4}, {8*SLOT}"); A(f"s_add_u32 s4, s{sW4}, {SLOT}"); A(f"s_xor_b32 s{sXe}, s{sXe}, s4")
    A(f"s_add_u32 s4, s{sW4}, {2*SLOT}"); A(f"s_xor_b32 s{sXo}, s4, s{sW4}")
    A("v_and_b32 v3, 7, v0"); A(f"v_mul_u32_u24 v{vKl}, 2080, v3")
    A("v_bfe_u32 v3, v0, 3, 1"); A(f"v_lshl_add_u32 v{vKl}, v3, 8, v{vKl}")
    A(f"v_lshl_add_u32 v{vKl}, v2, 4, v{vKl}"); A(f"v_subrev_u32 v{vKl}, s{sW4}, v{vKl}")
    A("v_bfe_u32 v3, v0, 2, 3"); A(f"v_mul_u32_u24 v{vVl}, 2080, v3")
    A("v_lshrrev_b32 v3, 5, v0"); A(f"v_lshl_add_u32 v{vVl}, v3, 8, v{vVl}")
    A("v_and_b32 v4, 3, v0"); A(f"v_lshl_add_u32 v{vVl}, v4, 3, v{vVl}")
    A(f"v_add_u32 v{vVl}, 1024, v{vVl}"); A(f"v_subrev_u32 v{vVl}, s{sW4}, v{vVl}")
    A("v_mov_b32 v11, 0x3f803f80"); A("v_cmp_eq_u32 vcc, 0, v4")
    lane_consts(A,4)
    A("v_cndmask_b32 v11, 0, v11, vcc")
    for k in range(4): A(f"v_accvgpr_write_b32 a{ONES+k}, v11")
    for s in (1,2):
        o.append(setm0(slotQ(s))); A(f"s_add_u32 s{sTmp}, s{sTmp}, 4096")
        o+=[qdma(0,s,j,sTmp) for j in range(4)]
    return o

def slow_path():
    o=[]
    A=lambda t,**k: o.append(I(t,**k))
    sP=sCur
    A("Lslow:")
    A("s_waitcnt vmcnt(0) lgkmcnt(0)")
    A(f"s_mul_i32 s{sP}, s3, {SLOT}")
    A(f"s_add_u32 s{sTmp}, s{sP}, s{sW4}")
    o+=setrd(sTmp)
    A(f"v_lshrrev_b32 v0, 4, v{vKVB}"); A("v_lshrrev_b32 v2, 4, v0")
    lane_consts(A,sTmp)
    A(f"s_mov_b32 m0, s{sTmp}")
    A(f"s_add_u32 s{sOff}, s{sH}, s{sQw}")
    for s in range(6):
        o+=[qdma(0,s,j) for j in range(4)]
        A("s_waitcnt vmcnt(0)")
        for ks in range(4): A(f"ds_read_b128 {ar(Qr(s,ks))}, v{vQ+ks}")
        A(f"s_add_u32 s{sOff}, s{sOff}, 4096")
        A("s_waitcnt lgkmcnt(0)")
    for s in range(6): A(f"v_mov_b32 v{MN+s}, 0xff800000")
    def loadkv():
        for j in range(4):
            A(f"s_add_u32 m0, s{sP}, {j*WREG}"); A("s_nop 0")
            o.extend(kvdma(0,0,jj) for jj in range(4))
            A(f"s_add_u32 s{sOff}, s{sOff}, 2048")
        A("s_waitcnt vmcnt(0)")
    A(f"s_mov_b32 s{sOff}, s{sH}"); A(f"s_mov_b32 s{sT}, 0")
    A("Lslow1:")
    loadkv()
    o+=frag_reads(0,0,tags=False)[:8]
    A("s_waitcnt lgkmcnt(0)")
    for s in range(6):
        o+=qk_mfmas(s,0,0)
        A("s_nop 7")
        for e in range(0,8,2): A(f"v_max3_f32 v{MN+s}, v{MN+s}, v{SB[0]+e}, v{SB[0]+e+1}")
    A(f"s_add_u32 s{sT}, s{sT}, 1"); A(f"s_cmp_lt_u32 s{sT}, 12"); A("s_cbranch_scc1 Lslow1")
    for s in range(6):
        m=MN+s
        A(f"v_mov_b32 v{T1}, v{m}"); A("s_nop 1"); A(f"v_permlane16_swap_b32 v{m}, v{T1}"); A(f"v_max_f32 v{m}, v{m}, v{T1}")
        A(f"v_mov_b32 v{T1}, v{m}"); A("s_nop 1"); A(f"v_permlane32_swap_b32 v{m}, v{T1}"); A(f"v_max_f32 v{m}, v{m}, v{T1}")
        A(f"v_mul_f32 v{m}, s{sNC}, v{m}")
    for r in range(64,256): A(f"v_mov_b32 v{r}, 0")
    for r in range(224,248): A(f"v_accvgpr_write_b32 a{r}, 0")
    A(f"s_mov_b32 s{sOff}, s{sH}"); A(f"s_mov_b32 s{sT}, 0")
    A("Lslow2:")
    loadkv()
    fr=frag_reads(0,0,tags=False)
    for k in range(3):
        o+=fr[8*k:8*k+8]; A("s_waitcnt lgkmcnt(0)")
    for s in range(6):
        o+=qk_mfmas(s,0,0)
        A("s_nop 7")
        for gp in sm_gaps(s,0,0): o+=gp
        A("s_nop 1")
        o+=pv_mfmas(s,0,0,False)
    A(f"s_add_u32 s{sT}, s{sT}, 1"); A(f"s_cmp_lt_u32 s{sT}, 12"); A("s_cbranch_scc1 Lslow2")
    A("s_nop 7")
    A(f"s_add_u32 s{sSt}, s{sH}, s{sQw}")
    for s in range(6):
        o+=e_head(s,None,None,T1)
        for dt in range(8): o+=e_pk(s,dt,None,T1)
        for dt in range(8): o+=e_cvt(s,dt,None)
        for dt in range(8): o.append(e_wr(s,dt,0,None,None))
        o+=epi_rd(s,0,None)+[I("s_waitcnt lgkmcnt(0)")]+epi_st(s,"",sSt)
        A(f"s_add_u32 s{sSt}, s{sSt}, 4096")
    A("s_branch Lslow_ret")
    for x in o:
        for k in ('tag','slot','wslot','wtag'): x.meta.pop(k,None)
    return o

def resolve(trace):
    vm=[]; lg=[]
    for x in trace:
        if x.label or x.meta.get('skip'): continue
        if 'auto_vm' in x.meta:
            idx=[k for k,y in enumerate(vm) if y.meta.get('tag')==x.meta['auto_vm']]
            n=min(63,len(vm)-1-max(idx)); x.text=x.text.replace("vmcnt(AUTO)",f"vmcnt({n})"); x.meta['loose_ok']=True
        if 'auto_lg' in x.meta:
            k=[i for i,y in enumerate(lg) if y is x.meta['auto_lg']]
            assert k, "WL target not issued before wait: "+x.meta['auto_lg'].text
            n=min(15,len(lg)-1-k[0]); x.text=x.text.replace("lgkmcnt(AUTO)",f"lgkmcnt({n})")
        if x.kind=='vmem': vm.append(x)
        if x.kind=='ds': lg.append(x)

def build():
    P=prologue(); SA=startA(); TR=trans(); TB=tailB()
    txt=lambda L:[x.text for x in L if not x.text.startswith(';')]
    assert txt(loopA2(0))==txt(loopA2(1))
    tb=range(1,3) if cfg.profB0 else range(3)
    for t in tb: assert txt(loopB(t))==txt(loopB(tb[0]))
    if cfg.loopR:
        assert txt(rampA(0))==txt(rampA(1)); RAt=rampA(0)+rampA(1); RA=[I(".p2align 3"),I("LloopA1:")]+rampA(0)
    else: RA=RAt=rampA()
    PB_=peelB() if cfg.profB0 else []
    extra=[]
    if cfg.profO:
        RO=rampA(prof=cfg.profO)
        t2=prologue()+startA()+RO+midA()+loopA2(0); resolve(t2)
        for p in check_trace([x for x in t2 if not x.meta.get('skip')]): print("ODD:",p)
        RA=[I("s_bitcmp1_b32 s95, 0"), I("s_cbranch_scc1 LrampO")]+RA+[I("s_branch LrampJ"), I("LrampO:")]+RO+[I("LrampJ:")]
    trace=P+SA+RAt+midA()+loopA2(0)+loopA2(1)+TR+PB_
    for t in tb: trace+=loopB(t)
    trace+=TB
    resolve(trace)
    probs=check_trace([x for x in trace if not x.meta.get('skip')])
    sp=slow_path()
    probs+=check_trace(sp+slow_path())
    seen=set()
    for p in probs:
        if p not in seen: print(p); seen.add(p)
    nd=(lambda L:[x for x in L if not getattr(x,'dma',False)]) if cfg.diag=='nodma' else (lambda L:L)
    S=list(P)+stamp(0)+SA+stamp(1)+nd(RA)+midA()+[I(".p2align 3"),I("LloopA2:")]+nd(loopA2(0))
    if cfg.oddB: PB_=[I("s_bitcmp1_b32 s95, 0"), I(f"s_cselect_b32 s{sT}, -1, 0"), I("s_cbranch_scc1 LloopB")]+PB_
    S+=stamp(2)+nd(TR)+stamp(3)+nd(PB_)+[I(".p2align 3"),I("LloopB:")]+nd(loopB(tb[0]))
    S+=stamp(4)+TB+stamp(5)
    if cfg.slow:
        S+=[I(f"s_or_b64 s[62:63], s[{sBad}:{sBad+1}], s[{sBad2}:{sBad2+1}]"), I("s_barrier"), I("s_cbranch_scc1 Lslow_entry")]
    S+=[I("Lfin:")]
    if cfg.stamps:
        S+=[I("s_waitcnt vmcnt(0)"), I(f"s_memtime s[{sStamp+16}:{sStamp+17}]"), I(f"s_memrealtime s[{sStamp+18}:{sStamp+19}]"), I("s_waitcnt lgkmcnt(0)")]
        if cfg.echo>=0:
            esrc=[sStamp+2]+[sStamp+4+2*k for k in range(6)]+[sStamp+18]
            S+=[I(f"s_add_u32 s62, s{esrc[cfg.echo]}, 10000"), I("Lspin:"), I("s_sleep 2"), I("s_memrealtime s[88:89]"), I("s_waitcnt lgkmcnt(0)"),
                I("s_sub_u32 s63, s88, s62"), I("s_cmp_lt_i32 s63, 0"), I("s_cbranch_scc1 Lspin")]
        S+=[I(f"v_mov_b32 v8, s{sStamp+2}"), I(f"v_mov_b32 v9, s{sStamp+18}")]
        srcs=[sStamp+4+2*k for k in range(6)]+[sStamp+(18 if cfg.rt else 16)]
        for k,r in enumerate(srcs):
            S+=[I(f"s_sub_u32 s{sTmp}, s{r}, s{sStamp+(2 if cfg.rt else 0)}"), I(f"v_mov_b32 v{10+k}, s{sTmp}")]
        S+=[I("v_mov_b32 v17, 0"), I("v_mov_b32 v18, 0"), I("s_getreg_b32 s62, hwreg(HW_REG_XCC_ID)"), I("v_mov_b32 v19, s62")]
        S+=[I(f"s_mov_b32 s28, s{sDbg}"), I(f"s_mov_b32 s29, s{sDbg+1}"), I(f"s_mov_b32 s30, {cfg.dbgsz}"), I("s_mov_b32 s31, 0x20000"),
            I("s_lshl_b32 s62, s2, 8"), I("s_lshl_b32 s63, s3, 6"), I("s_add_u32 s62, s62, s63"), I("v_mov_b32 v1, 0")]
        if cfg.tl:
            S+=TL()+[I("s_waitcnt lgkmcnt(0)")]+TL()+[I("s_lshl_b32 s61, s62, 3"), I("s_add_u32 s61, s61, 65536"), I(f"v_lshrrev_b32 v5, 2, v{vKVB}"),
                I("buffer_store_dword v0, v5, s[28:31], s61 offen"), I("buffer_store_dword v61, v5, s[28:31], s61 offen offset:256")]
        S+=[I("s_mov_b64 exec, 1"),
            I("buffer_store_dwordx4 v[8:11], v1, s[28:31], s62 offen"), I("buffer_store_dwordx4 v[12:15], v1, s[28:31], s62 offen offset:16"), I("buffer_store_dwordx4 v[16:19], v1, s[28:31], s62 offen offset:32")]
    S+=[I("Lend:"), I("s_endpgm")]
    if cfg.slow:
        S+=[I("Lslow_entry:"), I(f"s_cmp_lg_u64 s[{sBad}:{sBad+1}], 0"), I("s_cbranch_scc1 Lslow"),
            I("Lslow_ret:"), I(f"s_cmp_eq_u64 s[{sBad2}:{sBad2+1}], 0"), I("s_cbranch_scc1 Lfin"),
            I(f"s_mov_b64 s[{sBad2}:{sBad2+1}], 0"), I(f"s_mov_b32 s{sH}, s{sHn}")]
        S+=sp
    else: S+=[I(".fill 2048, 4, 0xbf810000")]
    return S, bool([p for p in probs if not p.startswith("NOTE")])

from gen import HDR, FTR
def write(fn):
    S,bad=build()
    with open(fn,"w") as f:
        f.write(HDR%(LDSB,NAME,NAME,NAME))
        for x in S:
            t=x.text
            f.write((t if (t.endswith(':') or t.startswith('.')) else "    "+t)+"\n")
        f.write(FTR%NAME)
    return bad
def sizes(co):
    import subprocess
    out=subprocess.run(["llvm-objdump","-d","--mcpu=gfx950",co],capture_output=True,text=True).stdout
    sym={m.group(2):int(m.group(1),16) for m in re.finditer(r"^([0-9a-f]+) <(\w+)>:",out,re.M)}
    last=int(re.findall(r"// ([0-9A-F]{12}):",out)[-1],16)
    st=sym[NAME]
    return sym.get('Lfin',sym.get('Lend'))-st, last+4-st
if __name__=="__main__":
    ap=argparse.ArgumentParser()
    ap.add_argument("out"); ap.add_argument("opts",nargs="*")
    a=ap.parse_args()
    for kv in a.opts:
        k,v=kv.split("=",1)
        cur=getattr(cfg,k)
        setattr(cfg,k, (v in("1","True","true")) if isinstance(cur,bool) else (int(v) if isinstance(cur,int) else v.replace("+"," ")))
    from mkco import build as mk
    for it in range(2):
        bad=write(a.out); co=mk(a.out); hot,tot=sizes(co)
        need=-(-hot//(32*128))
        if need==CPF_LINES: break
        CPF_LINES=need
    assert 32*128*CPF_LINES+256<=tot, (hot,tot)
    print(co, "PROBLEMS" if bad else "clean", "hot",hot,"total",tot,"cpf lines",CPF_LINES)
```

```python
import sys, argparse, re, functools
sys.path.insert(0,'work')
from asmlib import I, check_trace
NAME="standalone__gqa_softmax__near_ridge_kernel"
SLOT=16640; WREG=4160; NSLOT=9
LDSB=NSLOT*SLOT
HEADB=98304
TOTB=50331648

class Cfg:
    ld="nt"; st="sc1"; st2="nt"
    stamps=False; rt=False; tl=False; dbgsz=0x400000; echo=-1; diag=''
    slow=True; cpf=True
    rho=3; rhoG=3; rhoE=8
    prof='47,47,44,40'
    loopR=False
    profB='00,00'
    profB0='40,20'
    profO=''
    oddB=False
    midprof=''
    profS=0
    st3=''; n3=3
    pkf=0
    drop=''
    dl=0
cfg=Cfg()

def O(s,dt): return 64+32*s+4*dt
SB=[16,24]; PB=[32,36]
MN=40
vK,vV,vKl,vVl=46,47,48,49
vD=[50,51]
vQ=52
vR=[56,63]
vKVA,vKVB,vQA,vQB=57,58,59,60
vW=[5,6,7,62]
T0,T1,T2,T3=1,2,3,4
DR=[8,12]
QREGS=[vQ+k for k in range(4)]
def Qr(s,ks): return 16*s+4*ks
def Kf(par,i): return 96+32*par+4*i
def Vf(par,dt): return 160+32*par+4*dt
def Lr(s): return 224+4*s
ONES=248
sKA,sVB,sQA,sQB,sO=8,12,16,20,24
sOff,sCur,sC,sH,sW4,sT,sPe,sEnd,sKVw,sQw,sThr=40,42,43,44,45,46,47,48,49,50,51
sBad=52; sBad2=96
sTmp,sSt,sNC,sHn,sDbg=55,57,58,59,60
sSd,sDi=41,54
sStamp=64
sPo,sXe,sXo=92,93,94
sC2=38

def vr(a,n=4): return f"v[{a}:{a+n-1}]"
def ar(a,n=4): return f"a[{a}:{a+n-1}]"
def sr(a,n=4): return f"s[{a}:{a+n-1}]"
def offs(o): return f" offset:{o}" if o else ""

def slotKV(h,b):
    if b<2: return b
    if h==0: return (6+b)%9
    return [8,0,1,2][(b-2)%4]
def slotQ(s): return 2+s
UOFF=[0,1024,2080,3104]
def dma(j,tag,slot,q,off=sOff):
    A,B,va,vb=(sQA,sQB,vQA,vQB) if q else (sKA,sVB,vKVA,vKVB)
    p=f" {cfg.ld}" if cfg.ld else ""
    return I(f"buffer_load_dwordx4 v{[va,va,vb,vb][j]}, {sr([A,B,A,B][j])}, s{off} offen{offs(UOFF[j])}{p} lds", tag=tag, slot=slot)
def kvdma(h,b,j,off=sOff): return dma(j,f"h{h}KV{b}",slotKV(h,b),False,off)
def qdma(h,s,j,off=sOff): return dma(j,f"h{h}Q{s}",slotQ(s),True,off)
def pdma(n,j):
    if n<18: return kvdma(0,n-6,j)
    if n<20: return kvdma(1,n-18,j)
    return qdma(1,n-20,j)
def setm0(slot): return I(f"s_add_u32 m0, s{sW4}, {slot*SLOT}") if slot else I(f"s_mov_b32 m0, s{sW4}")
def frag_reads(h,b,base=0,rk=vK,rv=vV,tags=True):
    m=dict(src=f"h{h}KV{b}",slot=slotKV(h,b)) if tags else {}
    par=b&1
    return [I(f"ds_read_b128 {ar(Kf(par,i))}, v{rk}{offs(base+(i//4)*512+(i%4)*64)}",**m) for i in range(8)]+\
           [I(f"ds_read_b64_tr_b16 {ar(Vf(par,i//2)+2*(i%2),2)}, v{rv}{offs(base+(i%2)*512+(i//2)*32)}",**m) for i in range(16)]
def qreads(h,s): return [I(f"ds_read_b128 {ar(Qr(s,ks))}, v{vQ+ks}{offs((s%4)*SLOT)}", src=f"h{h}Q{s}", slot=slotQ(s), private=True) for ks in range(4)]
def bias(regs,up): return [I(f"{'v_add_u32' if up else 'v_subrev_u32'} v{r}, {4*SLOT}, v{r}") for r in regs]
def setrd(reg,rk=vK,rv=vV): return [I(f"v_add_u32 v{rk}, s{reg}, v{vKl}"), I(f"v_add_u32 v{rv}, s{reg}, v{vVl}")]

FA=[(b,s) for s in range(6) for b in (0,1)]
LA=[(10,0),(10,1),(10,2),(11,0),(11,1),(10,3),(11,2),(10,4),(11,3),(10,5),(11,4),(11,5)]
FB=[(0,0),(0,1),(1,0),(0,2),(1,1),(0,3),(1,2),(0,4),(1,3),(0,5),(1,4),(1,5)]
MID=[(b,s) for b in range(2,10) for s in range(6)]
GB=[(b,s) for b in (8,9,10,11) for s in (0,1,2)]+[(8,3),(8,4),(8,5),(9,3),(9,4),(9,5),(10,3),(11,3),(10,4),(11,4),(10,5),(11,5)]
UNITS=[(0,)+u for u in FA+MID+LA]+[(1,)+u for u in FB+MID[:36]+GB]
def unit(i): return UNITS[i] if 0<=i<len(UNITS) else None

MF="v_mfma_f32_16x16x32_bf16"
def qk_mfmas(s,kpar,sb,u=None):
    o=[]
    for i in range(8):
        kt,ks=divmod(i,4); d=SB[sb]+4*kt
        x=I(f"{MF} {vr(d)}, {ar(Kf(kpar,i))}, {ar(Qr(s,ks))}, {'0' if ks==0 else vr(d)}")
        if u:
            x.meta['expect']={**{r:f"h{u[0]}KV{u[1]}" for r in x.A}, **{r:f"h{u[0]}Q{u[2]}" for r in x.B}}
            x.meta['set']={r:f"S{u}" for r in x.wr}
        o.append(x)
    return o
def pv_mfmas(s,vpar,pb,first,u=None):
    o=[I(f"{MF} {vr(O(s,dt))}, {ar(Vf(vpar,dt))}, {vr(PB[pb])}, {'0' if first else vr(O(s,dt))}") for dt in range(8)]
    o.append(I(f"{MF} {ar(Lr(s))}, {ar(ONES)}, {vr(PB[pb])}, {'0' if first else ar(Lr(s))}"))
    if u:
        cnt=sum(1 for y in UNITS[:UNITS.index(u)] if y[0]==u[0] and y[2]==u[2])
        for k,x in enumerate(o):
            e={r:f"P{u}" for r in x.B}
            if k<8: e.update({r:f"h{u[0]}KV{u[1]}" for r in x.A})
            if not first: e.update({r:f"O{u[0]}n{cnt}" for r in x.wr})
            x.meta['expect']=e; x.meta['set']={r:f"O{u[0]}n{cnt+1}" for r in x.wr}
    return o
FREE=(5,11,16)
def sm_gaps(s,sb,pb,u=None):
    S=SB[sb]; P=PB[pb]
    T=(lambda **k:k) if u else (lambda **k:{})
    f=lambda e: I(f"v_fma_f32 v{S+e}, v{S+e}, s{sC}, v{MN+s}", **T(expect={('v',S+e):f"S{u}",('v',MN+s):f"M{u and u[0]}"}))
    x=lambda e: I(f"v_exp_f32 v{S+e}, v{S+e}", **T(expect={('v',S+e):f"S{u}"}))
    c=lambda e: I(f"v_cvt_pk_bf16_f32 v{P+e//2}, v{S+e}, v{S+e+1}", **T(expect={('v',S+e):f"S{u}",('v',S+e+1):f"S{u}"}, set={('v',P+e//2):f"P{u}"}))
    if cfg.pkf:
        mb=MN+(s&~1); sel="op_sel:[0,0,1] op_sel_hi:[1,0,1]" if s&1 else "op_sel_hi:[1,0,0]"
        pf=lambda e: I(f"v_pk_fma_f32 v[{S+e}:{S+e+1}], v[{S+e}:{S+e+1}], s[{sC2}:{sC2+1}], v[{mb}:{mb+1}] {sel}", **T(expect={('v',S+e):f"S{u}",('v',MN+s):f"M{u and u[0]}"}))
        if cfg.pkf==1: return [[pf(0)],[x(0)],[x(1)],[pf(2)],[x(2)],[],[x(3)],[pf(4)],[x(4)],[x(5)],[pf(6)],[],[x(6)],[x(7)],[c(0),c(2)],[c(4),c(6)],[]]
        return [[pf(0),pf(2),pf(4),pf(6)],[x(0)],[x(1)],[],[x(2)],[],[x(3)],[],[x(4)],[x(5)],[],[],[x(6)],[x(7)],[c(0),c(2)],[c(4),c(6)],[]]
    return [[f(0),f(1)],[x(0)],[x(1)],[f(2),f(3)],[x(2)],[],[x(3)],[f(4),f(5)],[x(4)],[x(5)],[f(6),f(7)],[],[x(6)],[x(7)],[c(0),c(2)],[c(4),c(6)],[]]
def max_seq(s,sb,h):
    S=SB[sb]
    return [I(f"v_max3_f32 v{T0}, v{S}, v{S+1}, v{S+2}"), I(f"v_max3_f32 v{T3}, v{S+3}, v{S+4}, v{S+5}"),
            I(f"v_max3_f32 v{T0}, v{T0}, v{S+6}, v{S+7}"), I(f"v_max_f32 v{T0}, v{T0}, v{T3}"),
            I(f"v_mov_b32 v{T3}, v{T0}"), I(f"v_permlane16_swap_b32 v{T0}, v{T3}"),
            I(f"v_max_f32 v{T0}, v{T0}, v{T3}"), I(f"v_mov_b32 v{T3}, v{T0}"),
            I(f"v_permlane32_swap_b32 v{T0}, v{T3}"), I(f"v_max_f32 v{T0}, v{T0}, v{T3}"),
            I(f"v_mul_f32 v{MN+s}, s{sNC}, v{T0}", set={('v',MN+s):f"M{h}"})]
MAXG=[11,11,12,12,12,13,14,14,15,16,16]
def put(ex,g,items): ex.setdefault(g,[]).extend(items)

def step(i, ex=None, post=None, clump=0):
    ex=ex or {}; post=post or {}
    q,m,p=unit(i+1),unit(i),unit(i-1)
    mf=(qk_mfmas(q[2],q[1]&1,(i+1)&1,q) if q else [None]*8)+(pv_mfmas(p[2],p[1]&1,(i-1)&1,p[1]==0,p) if p else [None]*9)
    g=sm_gaps(m[2],i&1,i&1,m) if m else [[] for _ in range(17)]
    for src,dst in [(2,1),(9,8),(13,12),(15,14),(4,3),(7,6),(1,0)][:clump]:
        g[dst]=g[dst]+g[src]; g[src]=[]
    tailmax=[]
    if q and q[1]==0:
        ms=max_seq(q[2],(i+1)&1,q[0])
        if p and m:
            for gg,x in zip(MAXG,ms): g[gg]=g[gg]+[x]
        else:
            for x in ms:
                if x.op.startswith('v_permlane'): tailmax.append(I("s_nop 1"))
                tailmax.append(x)
    out=[I(f"; ---- step {i}: QK{q} softmax{m} PV{p}")]
    out+=ex.get(-1,[])
    for k in range(17):
        if mf[k] is not None: out.append(mf[k])
        out+=ex.get(k,[])+g[k]+post.get(k,[])
    return out+tailmax+ex.get(17,[])

def free_gaps(ex,lo,n,avoid=()):
    return [x for x in range(lo,17) if x not in FREE and x not in ex and x not in avoid][:n]
def spread(ex,lo,items,avoid=()):
    gs=free_gaps(ex,lo,len(items),avoid)
    while len(gs)<len(items): gs.append(gs[-1])
    for x,i in zip(gs,items): put(ex,x,[i])
def TL():
    if not cfg.tl: return []
    r=[I("s_mov_b64 exec, s[90:91]"), I("v_mov_b32 v0, s98"), I("v_mov_b32 v61, s100"), I("s_mov_b64 exec, -1"), I("s_lshl_b64 s[90:91], s[90:91], 1"), I("s_memtime s[98:99]"), I("s_memrealtime s[100:101]")]
    for x in r: x.meta['skip']=True
    return r
def BAR(): return [I("s_barrier")]+TL()
def WV(tag,lg0=False): return I("s_waitcnt vmcnt(AUTO)"+(" lgkmcnt(0)" if lg0 else ""), auto_vm=tag, need=tag)
def WL(x): return I("s_waitcnt lgkmcnt(AUTO)", auto_lg=x)

def kind(x):
    if x.op.startswith('ds_read'): return 'r'
    if x.op.startswith('ds_write'): return 'w'
    if getattr(x,'dma',False): return 'd'
    if getattr(x,'store',False): return 's'
    return 'a'
def gapcost(ks,free):
    if not ks: return 0
    U={'r':4,'d':6,'w':12,'s':12,'a':4}
    c=sum(U[k] for k in ks)
    if ks[0]=='a': c-=4
    if len(ks)==1 and ks[0]=='d': c=4 if not free else 8
    for p,q in zip(ks,ks[1:]):
        if p=='w' and q=='r': c+=12
    st=12*ks.count('s')
    if free: return st+max(0,c-st-8)
    return c+4*max(0,len([k for k in ks if k!='a'])-1)
def place(ex,groups,lo=0,hi=16,free=FREE):
    groups=[g if isinstance(g,list) else [g] for g in groups]
    n=len(groups)
    if not n: return
    base={g:[kind(x) for x in ex.get(g,[]) if not x.label and not x.meta.get('skip')] for g in range(17)}
    @functools.lru_cache(None)
    def f(g,i):
        if i==n: return (0,())
        if g>hi: return (1e9,())
        best=(1e9,())
        for m in range(0,min(4,n-i)+1):
            ks=base[g]+[kind(x) for gr in groups[i:i+m] for x in gr]
            c=gapcost(ks,g in free)-gapcost(base[g],g in free)
            c+=0.01*sum(abs(g-(lo+(hi-lo)*(j+0.5)/n)) for j in range(i,i+m))
            r=f(g+1,i+m)
            if c+r[0]<best[0]: best=(c+r[0],(g,)*m+r[1])
        return best
    c,gs=f(lo,0)
    assert len(gs)==n
    for g,gr in zip(gs,groups): put(ex,g,gr)

def put_reads(ex,post,reads,r,late):
    rs=reads[4*r:4*r+4]
    if late:
        gs=[6,8,12,13] if r<5 else [2,6,8,9]
        for k in range(late): put(post,gs[k],[rs[k]])
        if rs[late:]: put(ex,16 if r<5 else 11,rs[late:])
    else:
        rg=(5,16) if r<5 else (5,11)
        put(ex,rg[0],rs[:2]); put(ex,rg[1],rs[2:])
def loop_end(ex,lab,n):
    put(ex,13,[I(f"s_add_u32 s{sT}, s{sT}, 1")]); put(ex,15,[I(f"s_cmp_lt_u32 s{sT}, {n}")]); put(ex,16,[I(f"s_cbranch_scc1 {lab}")])

def blockA(b,pairs,pf,nv=None,lab=None,n=0):
    late,clump=int(pf[0]),int(pf[1])
    reads=frag_reads(0,b+1); tag=f"h0KV{b+1}"
    out=[]
    inc=4096 if pairs[0]>=20 else 8192
    if len(pairs)==2: dpos={0:[(0,0,11)],1:[(0,1,3),(0,2,11)],2:[(0,3,11)],3:[(1,0,11)],4:[(1,1,3),(1,2,11)],5:[(1,3,14)]}; advr=(0,3)
    else: dpos={0:[(0,0,11)],2:[(0,1,11)],3:[(0,2,11)],4:[(0,3,11)]}; advr=(0,)
    for r in range(6):
        ex={}; post={}
        if r==0:
            put(ex,0,[I(f"s_waitcnt vmcnt({nv}) lgkmcnt(0)", need=tag, loose_ok=True) if nv is not None else WV(tag,True)])
            put(ex,1,BAR()); put(post,4,setrd(sCur))
        put_reads(ex,post,reads,r,late)
        for (p,j,g) in dpos.get(r,[]): put(ex,g,[pdma(pairs[p],j)])
        if r in advr: spread(ex,2,[I(f"s_add_u32 m0, m0, {SLOT}"), I(f"s_cmp_ge_u32 m0, s{sEnd}"), I(f"s_cselect_b32 m0, s{sW4}, m0"), I(f"s_add_u32 s{sOff}, s{sOff}, {inc}")])
        if r==3: put(ex,15,[I(f"s_waitcnt lgkmcnt({4+late if late else 6})")])
        if r==5:
            spread(ex,0,[I(f"s_add_u32 s{sCur}, s{sCur}, {SLOT}"), I(f"s_cmp_ge_u32 s{sCur}, s{sEnd}"), I(f"s_cselect_b32 s{sCur}, s{sW4}, s{sCur}")])
            if lab: loop_end(ex,lab,n)
        out+=step(6*b+1+r,ex,post,clump)
    return out
def rampA(t=None,prof=None):
    pf=(prof or cfg.prof).split(',')
    if t is not None:
        n=12+4*t
        return blockA(2*t+2,[n,n+1],pf[0],nv=8)+blockA(2*t+3,[n+2,n+3],pf[1],nv=12,lab="LloopA1",n=2)
    o=[]
    for k,b in enumerate(range(2,6)): o+=blockA(b,[12+2*k,13+2*k],pf[k])
    return o
def staticA():
    out=[]
    seq=[(n,j) for n in range(12,24) for j in range(4)]
    pos={4:[(0,11),(2,11),(3,11),(4,11)], 5:[(0,11),(1,11),(2,11),(3,11),(4,11)], 6:[(0,11),(1,11),(2,11),(3,11),(4,11),(5,14)],
         7:[(0,11),(1,11),(2,3),(2,11),(3,11),(4,11),(5,14)], 8:[(0,11),(1,3),(1,11),(2,11),(3,11),(4,3),(4,11),(5,14)]}
    pf=cfg.midprof.split(',')
    assert sum(int(p[2]) for p in pf)==48
    for b,p in zip(range(2,10),pf):
        late,clump,nd=int(p[0]),int(p[1]),int(p[2])
        sl=slotKV(0,b+1); base=(sl%4)*SLOT
        reads=frag_reads(0,b+1,base=base); tag=f"h0KV{b+1}"
        for r in range(6):
            ex={}; post={}
            if r==0:
                put(ex,0,[WV(tag,True)]); put(ex,1,BAR())
                if sl%4==0:
                    put(ex,2,[I(f"s_add_u32 s{sCur}, s{sW4}, {sl*SLOT}")]); put(post,4,setrd(sCur))
            put_reads(ex,post,reads,r,late)
            for (rr,g) in pos[nd]:
                if rr==r:
                    n,j=seq.pop(0)
                    if j==0:
                        pre=[setm0(n%9), I(f"s_add_u32 s{sOff}, s{sOff}, {4096 if n>20 else 8192}") if n!=20 else I(f"s_add_u32 s{sOff}, s{sHn}, s{sQw}")]
                        gs=[x for x in range(g-1,-1,-1) if x not in ex and x not in FREE][:2]
                        while len(gs)<2: gs.append(g)
                        put(ex,gs[1],[pre[0]]); put(ex,gs[0],[pre[1]])
                    put(ex,g,[pdma(n,j)])
            if r==3: put(ex,15,[WL(reads[7])])
            if b==9 and r==5: put(ex,12,[I(f"s_add_u32 s{sCur}, s{sW4}, {8*SLOT}")])
            out+=step(6*b+1+r,ex,post,clump)
    assert not seq
    return out
def midA(): return [I(f"s_add_u32 s{sOff}, s{sHn}, s{sQw}"), I(f"s_sub_u32 s{sOff}, s{sOff}, 4096"), I(f"s_mov_b32 s{sT}, 0")]
def loopA2(t): return blockA(2*t+6,[20+2*t],'00',nv=24)+blockA(2*t+7,[21+2*t],'00',nv=24,lab="LloopA2",n=2)

def ostore(reg,j,pol,so,tag=None):
    x=I(f"buffer_store_dwordx4 {vr(reg)}, v{vKVB}, {sr(sO)}, s{so} offen{offs(1024*j)}"+(f" {pol}" if pol else ""))
    if tag: x.meta['expect']={r:tag for r in x.data}
    return x
DIRECT=2
def dunit(k): return (DIRECT+k//4, k%4)
def blockB(b,pf,lab=None,n=0):
    late,clump=int(pf[0]),int(pf[1])
    t=(b-2)//2
    reads=frag_reads(1,b+1); tag=f"h1KV{b+1}"
    out=[]; lead=(b%2==0)
    rp,wp=(sPo,sPe) if lead else (sPe,sPo)
    rx=sXo if lead else sXe
    nb=cfg.dl//2; loc0=(0 if lead else nb)
    dr=[]; sts=[]
    for k in range(nb):
        sub,j=dunit(cfg.dl*t+loc0+k); jj=loc0+k
        dr.append(I(f"ds_read_b128 {vr(DR[jj&1])}, v{vD[jj&1]}{offs(1024*jj)}", src=f"O{sub}", slot=slotQ(sub), private=True))
        sts.append(ostore(DR[jj&1],jj,cfg.st,sSd,f"O{sub}"))
    for r in range(6):
        ex={}; post={}
        if r==0:
            put(ex,0,[I(f"s_waitcnt vmcnt({8+nb}) lgkmcnt(0)", need=tag, loose_ok=True)])
            put(ex,1,BAR())
            put(ex,2,[I(f"s_mov_b32 m0, s{wp}")]); put(ex,3,[I(f"s_xor_b32 s{rp}, s{rp}, s{rx}")])
            put(ex,4,[I(f"s_add_u32 s{sOff}, s{sOff}, 8192")]); put(post,4,setrd(rp))
        put_reads(ex,post,reads,r,late)
        if r<4: put(ex,11,[kvdma(1,b+4,r)])
        if r==3: put(ex,15,[I(f"s_waitcnt lgkmcnt({4+late if late else 6})")])
        if r==4 and nb: put(ex,11,dr)
        if r==5 and nb:
            put(ex,1,[I("s_waitcnt lgkmcnt(2)")]); put(ex,3,[sts[0]])
            if nb==2: put(ex,10,[sts[1]])
        if r==5 and not lead:
            if nb:
                put(ex,12,[I(f"s_add_u32 s{sSd}, s{sSd}, {1024*cfg.dl}")])
                inc=f"{SLOT}" if cfg.dl==4 else f"s{sDi}"
                put(post,16 if not lab else 7,[I(f"v_add_u32 v{vD[k]}, {inc}, v{vD[k]}") for k in range(2)])
                if cfg.dl==2: put(ex,0,[I(f"s_xor_b32 s{sDi}, s{sDi}, {2048^(SLOT-2048)}")])
            if lab: loop_end(ex,lab,n)
        out+=step(72+6*b+1+r,ex,post,clump)
    return out
def loopB(t):
    pf=cfg.profB.split(',')
    return blockB(2*t+2,pf[0])+blockB(2*t+3,pf[1],lab="LloopB",n=(2 if cfg.profB0 else 3))
def peelB():
    pf=cfg.profB0.split(',')
    return blockB(2,pf[0])+blockB(3,pf[1])

def tagexp(o,tag):
    if tag:
        h=0 if tag[0]=='O' else 1
        for x in o:
            x.meta['expect']={r:f"O{h}n12" for r in x.rd if (r[0]=='v' and r[1]>=64) or (r[0]=='a' and 224<=r[1]<248)}
    return o
def e_head(s,bad,tag,rc):
    o=[I(f"v_accvgpr_read_b32 v{T2}, a{Lr(s)}"), I(f"v_rcp_f32 v{rc}, v{T2}")]
    o.append(I(f"v_cmp_nge_f32 vcc, s{sThr}, v{T2}") if bad is not None else I("s_nop 0"))
    if bad is not None: o.append(I(f"s_or_b64 s[{bad}:{bad+1}], s[{bad}:{bad+1}], vcc"))
    return tagexp(o,tag)
def e_pk(s,dt,tag,rc):
    a=O(s,dt)
    return tagexp([I(f"v_pk_mul_f32 {vr(a+k,2)}, {vr(a+k,2)}, v[{rc}:{rc+1}] op_sel_hi:[1,0]") for k in (0,2)],tag)
def e_cvt(s,dt,tag):
    a=O(s,dt)
    return tagexp([I(f"v_cvt_pk_bf16_f32 v{a}, v{a}, v{a+1}"), I(f"v_cvt_pk_bf16_f32 v{a+1}, v{a+2}, v{a+3}")],tag)
def e_wr(s,dt,off,slot,tag,regs=vW):
    return tagexp([I(f"ds_write_b64 v{regs[dt&3]}, {vr(O(s,dt),2)}{offs(off+(dt>>2)*128)}", wslot=slot, wtag=tag)],tag)[0]
def epi_rd(s,off,slot,tag=None,regs=vR):
    m=dict(src=tag,slot=slot,private=True) if tag else {}
    return [I(f"ds_read_b128 {vr(O(s,2*j))}, v{regs[j&1]}{offs(off+1024*j)}", **m) for j in range(4)]
def epi_st(s,pol,so,tag=None): return [ostore(O(s,2*j),j,pol,so,tag) for j in range(4)]

class Epi:
    def __init__(s,rc2,so): s.rc2=rc2; s.so=so; s.tiles=[]; s.cv=[]; s.wr=[]; s.rd=[]; s.st=[]; s.info={}
    def add(s,sub,avail,off,slot,bad,tag,direct,pol,pre=()):
        s.info[sub]=dict(off=off,slot=slot,bad=bad,tag=tag,direct=direct,pol=pol,pre=list(pre))
        s.tiles+=[(avail,sub,dt) for dt in range(8)]
    def _rd(s,g):
        rd=s.rd; s.rd=[]
        for sub in rd:
            I_=s.info[sub]; r=epi_rd(sub,I_['off'],I_['slot'],I_['tag']); g+=[[x] for x in r]
            st=epi_st(sub,I_['pol'],s.so,I_['tag'])
            s.st+=[[WL(r[1]),st[0]],[st[1]],[WL(r[3]),st[2]],[st[3],I(f"s_add_u32 s{s.so}, s{s.so}, 4096")]]
    def mem(s,nst,fast=False):
        g=[]
        for _ in range(nst):
            if s.st: g.append(s.st.pop(0))
        s._rd(g)
        for sub,dt in s.wr:
            I_=s.info[sub]
            g.append(([I_['pre'][dt]] if (I_['pre'] and dt<4) else [])+[e_wr(sub,dt,I_['off'],I_['slot'],I_['tag'])])
            if dt==7 and I_['direct']: s.rd.append(sub)
        s.wr=[]
        if fast: s._rd(g)
        return g
    def chunk(s,i,n):
        take=[]
        while s.tiles and len(take)<n and s.tiles[0][0]<=i: take.append(s.tiles.pop(0)[1:])
        o=[]
        for sub,dt in s.cv: o+=e_cvt(sub,dt,s.info[sub]['tag']); s.wr.append((sub,dt))
        s.cv=[]
        heads=[]
        for sub,dt in take:
            I_=s.info[sub]; rc=T1 if sub%2==0 else s.rc2
            if dt==0: heads+=e_head(sub,I_['bad'],I_['tag'],rc)
        o=heads+o
        for sub,dt in take:
            o+=e_pk(sub,dt,s.info[sub]['tag'],T1 if sub%2==0 else s.rc2)
        k=max(1,len(take)-2) if s.tiles and s.tiles[0][0]<=i+1 else len(take)
        for sub,dt in take[:k]: o+=e_cvt(sub,dt,s.info[sub]['tag']); s.wr.append((sub,dt))
        s.cv=take[k:]
        return o
    def done(s): return not(s.tiles or s.cv or s.wr or s.rd or s.st)

def startA():
    o=[I("; ==== head A, first two key blocks (q-major, as Q arrives)")]
    f0=frag_reads(0,0); f1=frag_reads(0,1,base=SLOT); f2=frag_reads(0,2)
    o+=setrd(sW4)
    o.append(WV("h0Q0")); o+=BAR()
    o+=qreads(0,0)+f0[:8]
    seq=[('q',s,j) for s in (3,4,5) for j in range(4)]+[('k',b,j) for b in (2,3,4,5) for j in range(4)]
    def dm():
        k,x,j=seq.pop(0); it=[]
        if j==0:
            it+=[setm0(slotQ(x) if k=='q' else slotKV(0,x)), I(f"s_add_u32 s{sTmp}, s{sTmp}, 4096") if k=='q' else I(f"s_add_u32 s{sOff}, s{sOff}, 8192")]
        return it+[qdma(0,x,j,sTmp) if k=='q' else kvdma(0,x,j)]
    for i in range(-1,13):
        ex={}; post={}
        if i==-1:
            put(ex,-1,[WL(f0[0])])
            for k in range(8): put(ex,k,f0[8+2*k:10+2*k]+([WL(f0[k+1])] if k<7 else []))
            put(ex,7,dm()+dm()+[WV("h0KV1")]+BAR()+f1[:8])
            put(ex,17,[WL(f1[7])])
        else:
            if i==0:
                for k in range(8): put(ex,k,f1[8+2*k:10+2*k])
            if i==3: put(ex,0,[I("s_waitcnt lgkmcnt(0)")]); put(ex,1,BAR())
            if i%2==0 and i<=8:
                s=i//2+1; qs=qreads(0,s)
                put(ex,2 if i else 8,dm()); put(ex,5 if i else 8,dm())
                if s==4: put(post,9,bias(QREGS,True))
                put(ex,10,[WV(f"h0Q{s}")]); put(ex,11,qs[:2]); put(ex,12,[qs[2]]); put(ex,13,[qs[3]])
                if s==5: put(post,16,bias(QREGS,False))
                put(ex,17,[WL(qs[3])])
            elif i==10:
                put(ex,0,[WV("h0KV2",True)]); put(ex,1,BAR())
                put(ex,2,[I(f"s_add_u32 s{sCur}, s{sW4}, {8*SLOT}")]); put(post,3,setrd(sCur))
                place(ex,f2[:8],lo=4,hi=12)
                put(ex,14,dm()); put(ex,16,dm())
                put(ex,17,[WL(f2[7])])
            elif i==12:
                place(ex,f2[8:],lo=0,hi=13)
                put(ex,14,dm()); put(ex,16,dm())
                put(ex,15,[I(f"s_mov_b32 s{sCur}, s{sW4}")])
            else:
                put(ex,5,dm()); put(ex,10,dm())
        o+=step(i,ex,post,cfg.profS if (i>=6 and i%2==0) or i>9 else 0)
    assert not seq
    return o

def trans():
    o=[I("; ==== head A last two key blocks + head B first two, epilogue of head A streamed")]
    f11=frag_reads(0,11); g0=frag_reads(1,0); g1=frag_reads(1,1,base=SLOT); g2=frag_reads(1,2)
    E=Epi(14,sSd)
    idxA={u:k for k,u in enumerate(LA)}
    for s in range(6):
        E.add(s,60+idxA[(11,s)]+2,(s%4)*SLOT,slotQ(s),sBad,f"O{s}",s<DIRECT,cfg.st,pre=(bias(vW,True) if s==4 else ()))
    Q=lambda s:qreads(1,s)
    q5=Q(5)
    R={61:f11[:8], 62:f11[8:16], 63:f11[16:24], 64:Q(0), 65:Q(1), 67:Q(2), 68:Q(3), 69:g0[:4], 70:g0[4:8], 71:g0[8:16], 72:g1[:8], 73:g0[16:24],
       74:g1[8:18], 75:g1[18:24], 76:Q(4), 78:q5, 81:g2[:4], 82:g2[4:8], 83:g2[8:16], 84:g2[16:24]}
    D={}
    for (k,x),steps in zip([('q',4),('q',5),('k',2),('k',3),('k',4),('k',5)],
                           [[61,62,63,64],[65,66,66,67],[69,70,71,72],[76,77,77,78],[79,79,80,80],[81,82,83,84]]):
        for j,i in enumerate(steps): D.setdefault(i,[]).append((k,x,j))
    for i in range(61,85):
        ex={}; post={}
        rs=R.get(i,[]); lo=0; hi=16
        mx=(unit(i+1)[1]==0)
        if i==61:
            put(ex,0,[WV("h0KV11",True)]); put(ex,1,BAR()); put(post,2,setrd(sCur)); lo=3; hi=12
            put(ex,17,[WL(f11[7])])
            put(ex,2,[I(f"s_add_u32 s{sSd}, s{sH}, s{sQw}")])
        if i==64: put(ex,0,[WV("h1Q3")]); put(ex,7,[WL(f11[23])]); lo=1
        if i==69:
            put(ex,0,[WV("h1KV1",True)]); put(ex,1,BAR()); put(post,2,setrd(sW4)); lo=3
            put(ex,2,[I(f"s_add_u32 s{sOff}, s{sHn}, s{sKVw}")]); put(ex,3,[I(f"s_add_u32 s{sOff}, s{sOff}, 8192")])
        if i==70: hi=12; put(ex,17,[WL(g0[7])])
        if i==72: hi=12; put(ex,17,[WL(g1[7])])
        if i==73: hi=5; put(ex,7,[WL(g0[17])]); put(ex,11,[WL(g0[23])])
        if i==75: hi=6; put(ex,7,[WL(g1[17])]); put(ex,12,[WL(g1[23])]); put(post,9,bias(QREGS,True))
        if i==76: put(ex,0,[WV("h1Q4",True)]); put(ex,1,BAR()); lo=2
        if i==77: put(ex,15,[WL(R[76][3])])
        if i==78: put(ex,0,[WV("h1Q5")]); lo=1
        if i==79: put(ex,15,[WL(q5[3])])
        if i==81:
            put(ex,0,[WV("h1KV2",True)]); put(ex,1,BAR())
            put(ex,2,[I(f"s_add_u32 s{sPe}, s{sW4}, {8*SLOT}")]); put(post,2,setrd(sPe)); lo=4
            put(ex,3,[I(f"s_add_u32 s{sPo}, s{sW4}, {2*SLOT}")])
        if i==82: hi=12; put(ex,17,[WL(g2[7])])
        if i==84: hi=12
        mem=E.mem(2)
        ch=E.chunk(i,cfg.rho)
        free=[g for g in FREE if not(g==16 and (ch or mx)) and not (g==11 and mx)]
        place(ex,rs,lo=lo,hi=hi,free=free)
        dg=[]
        for (k,x,j) in D.get(i,[]):
            pre=[setm0(slotQ(x) if k=='q' else slotKV(1,x)), I(f"s_add_u32 s{sOff}, s{sOff}, {4096 if k=='q' else 8192}")] if j==0 else []
            dg.append(pre+[qdma(1,x,j) if k=='q' else kvdma(1,x,j)])
        place(ex,dg,lo=max(lo,4),hi=16,free=free)
        qlast=max([g for g,v in ex.items() if any(x.meta.get('src','').startswith('h1Q') for x in v)]+[-1])
        need_after=any(kind(gr[-1])=='w' and any(x.meta.get('slot')==gr[-1].meta['wslot'] for x in rs) for gr in mem)
        place(ex,mem,lo=(qlast+1 if need_after else (2 if i in (69,76,81) else 0)),hi=15,free=free)
        put(post,16,ch)
        if i==83:
            put(post,16,bias(vW,False)+[I(f"v_add_u32 v{vD[k]}, {DIRECT*SLOT}, v{vR[k]}") for k in range(2)])
        if i==84:
            spread(ex,0,[I(f"s_mov_b32 s{sT}, 0"), I(f"s_movk_i32 s{sDi}, {SLOT-2048}"), I(f"s_add_u32 s{sSt}, s{sHn}, s{sQw}")])
            put(ex,17,[WV("h1KV3")])
        o+=step(i,ex,post)
    assert E.done()
    return o

def tailB():
    o=[I("; ==== head B last four key blocks: q sub-tiles 0-2 first, then 3-5; epilogue streamed")]
    base=120
    vK2,vV2=vQ,vQ+1
    def fr(b): return frag_reads(1,b,base=slotKV(1,b)*SLOT) if b!=10 else frag_reads(1,b,rk=vK2,rv=vV2)
    F=[fr(b) for b in [9,10,11,8,9,10,11]]
    R={}
    def addR(i,L): R.setdefault(i,[]).extend(L)
    for m in range(7):
        K,V=F[m][:8],F[m][8:]
        if m==0: addR(base+1,K)
        elif m<6: addR(base+3*m-1,K[:3]); addR(base+3*m,K[3:6]); addR(base+3*m+1,K[6:])
        else: addR(base+17,K)
        if m<6:
            addR(base+3*m+1,V[:(0 if m==0 else 5)]); addR(base+3*m+2,V[(0 if m==0 else 5):(8 if m==0 else 10)]); addR(base+3*m+3,V[(8 if m==0 else 10):(16 if m in (0,5) else 15)])
            if m not in (0,5): R.setdefault(base+3*m+4,[]).insert(0,V[15])
        else: addR(base+19,V[:12]); addR(base+20,V[12:])
    E=Epi(vQ+2,sSt)
    idx={u:k for k,u in enumerate(GB)}
    for s_ in range(5):
        sl=3+(s_%2)
        E.add(s_,base+idx[(11,s_)]+2,(sl-2)*SLOT,sl,sBad2,f"P{s_}",True,(cfg.st3 if (cfg.st3 and s_<cfg.n3) else cfg.st2))
    k0=3*cfg.dl; dq=list(range(k0,16)); pend=[]
    o_sub0,o_j0=dunit(k0)
    for i in range(base+1,base+25):
        ex={}; post={}; rel=i-base; lo=0; hi=16
        rs=list(R.get(i,[]))
        if rel==1:
            put(ex,0,[WV("h1KV10",True)]); put(ex,1,BAR())
            put(ex,2,[I(f"s_add_u32 s{sTmp}, s{sW4}, {8*SLOT}")])
            put(post,2,setrd(sW4)); lo=3; hi=12
            put(post,13,setrd(sTmp,vK2,vV2))
        if rel==5: put(ex,0,[WV("h1KV11")]); put(ex,1,BAR()); lo=2
        if rel==12: put(ex,3,TL())
        g=[]
        for rdx,k in pend:
            sub,j=dunit(k); jj=(k-k0)%4
            g.append([WL(rdx),ostore(DR[k&1],jj,cfg.st,sSd,f"O{sub}")]+([I(f"s_add_u32 s{sSd}, s{sSd}, 4096")] if jj==3 else []))
        pend=[]
        place(ex,g,lo=max(lo,3),hi=4)
        if dq:
            k=dq.pop(0); sub,j=dunit(k)
            x=I(f"ds_read_b128 {vr(DR[k&1])}, v{vD[j&1]}{offs((sub-o_sub0)*SLOT+1024*(j-o_j0))}", src=f"O{sub}", slot=slotQ(sub), private=True)
            pend.append((x,k)); place(ex,[x],lo=13,hi=15)
        mem=E.mem(2 if rel<21 else 4, fast=(rel>=21))
        ch=E.chunk(i,cfg.rhoG if rel<20 else cfg.rhoE)
        free=[g_ for g_ in FREE if not(g_==16 and ch)] if rel<24 else list(range(8,16))
        for m in range(7):
            K,V=F[m][:8],F[m][8:]
            needK = base+3*m+2 if m<6 else base+18
            needV = base+3*m+4 if m<6 else base+20
            if i==needK-1:
                put(ex,17,[WL(K[7])])
                if rs and rs[-1] is K[7]: hi=min(hi,13)
            if i==needV:
                late=[x for x in V if x in rs]
                if late:
                    place(ex,late,lo=0,hi=5,free=free); rs=[x for x in rs if x not in late]; lo=max(lo,6)
                    put(ex,7,[WL(V[15-len(late)])]); put(ex,8+(16-len(late))//2-1,[WL(V[15])])
                else: put(ex,7,[WL(V[15])])
        place(ex,rs,lo=lo,hi=hi,free=free)
        place(ex,mem,lo=(0 if rel<23 else 8),hi=(15 if rel<24 else 16),free=free)
        put(post,16,ch)
        o+=step(i,ex,post)
    assert not E.tiles and not E.cv and not dq and not pend and not E.wr and not E.rd
    tag="P5"; sl=5; off=3*SLOT
    rest=[x for g in E.mem(8) for x in g]
    assert E.done()
    pad=max(0,8-len(rest)-len([x for x in ex.get(16,[])]))
    o+=rest+([I(f"s_nop {pad-1}")] if pad else [])+e_head(5,sBad2,tag,T1)
    for half in (0,1):
        for dt in range(4*half,4*half+4): o+=e_pk(5,dt,tag,T1)
        for dt in range(4*half,4*half+4): o+=e_cvt(5,dt,tag)
        for dt in range(4*half,4*half+4): o.append(e_wr(5,dt,off,sl,tag))
    rd=epi_rd(5,off,sl,tag); o+=rd
    st=epi_st(5,cfg.st2,sSt,tag)
    for j in range(4): o+=[WL(rd[j]), st[j]]
    return o

def stamp(k):
    if not cfg.stamps: return []
    op="s_memrealtime" if (cfg.echo>=0 or cfg.rt) else "s_memtime"
    return [I(f"{op} s[{sStamp+4+2*k}:{sStamp+5+2*k}]", skip=True)]

def lane_consts(A,base):
    A("v_and_b32 v4, 3, v0")
    A("v_bfe_u32 v3, v0, 2, 1"); A("v_mul_u32_u24 v9, 2080, v3")
    A("v_bfe_u32 v3, v0, 3, 1"); A("v_lshl_add_u32 v9, v3, 10, v9")
    A("v_lshl_add_u32 v9, v4, 8, v9"); A("v_lshl_add_u32 v9, v2, 4, v9"); A(f"v_add_u32 v9, s{base}, v9")
    for ks in range(4):
        A(f"v_xor_b32 v3, {ks}, v4"); A(f"v_lshl_add_u32 v{vQ+ks}, v3, 6, v9")
    A("v_and_b32 v8, 15, v0"); A("v_xor_b32 v9, v8, v2"); A("v_lshlrev_b32 v10, 8, v2"); A(f"v_add_u32 v10, s{base}, v10")
    A(f"v_lshl_add_u32 v{vR[0]}, v9, 4, v10"); A("v_xor_b32 v9, 4, v9"); A(f"v_lshl_add_u32 v{vR[1]}, v9, 4, v10")
    A("v_lshlrev_b32 v10, 8, v8"); A("v_and_b32 v9, 1, v2"); A("v_lshl_add_u32 v10, v9, 3, v10"); A(f"v_add_u32 v10, s{base}, v10")
    A("v_lshrrev_b32 v9, 1, v2"); A("v_and_b32 v8, 7, v0"); A("v_xor_b32 v9, v9, v8")
    for k in range(4):
        A(f"v_xor_b32 v8, {2*k}, v9"); A(f"v_lshl_add_u32 v{vW[k]}, v8, 4, v10")

CPF_LINES=11
def prologue():
    o=[]
    A=lambda t,**k: o.append(I(t,**k))
    A(f"s_load_dwordx2 s[{sKA}:{sKA+1}], s[0:1], 8"); A(f"s_load_dwordx2 s[{sVB}:{sVB+1}], s[0:1], 16")
    A(f"s_load_dwordx2 s[{sQA}:{sQA+1}], s[0:1], 0"); A(f"s_load_dwordx2 s[{sO}:{sO+1}], s[0:1], 24")
    if cfg.stamps:
        A(f"s_load_dwordx2 s[{sDbg}:{sDbg+1}], s[0:1], 32")
        A(f"s_memtime s[{sStamp}:{sStamp+1}]"); A(f"s_memrealtime s[{sStamp+2}:{sStamp+3}]")
    if cfg.tl:
        A("s_mov_b64 s[90:91], 1"); A("s_memtime s[98:99]"); A("s_memrealtime s[100:101]")
    A("s_cmp_ge_u32 s2, 256"); A("s_cbranch_scc1 Lend")
    A("v_lshrrev_b32 v1, 6, v0"); A("v_and_b32 v0, 63, v0"); A("v_readfirstlane_b32 s3, v1")
    A(f"v_lshlrev_b32 v{vKVB}, 4, v0"); A(f"v_add_u32 v{vKVA}, 1056, v{vKVB}")
    if cfg.diag=='l2only': A("s_and_b32 s62, s2, 7"); A(f"s_mul_i32 s{sH}, s62, {2*HEADB}")
    else: A(f"s_mul_i32 s{sH}, s2, {2*HEADB}")
    A(f"s_mov_b32 s{sKA+2}, {TOTB+4096}"); A(f"s_mov_b32 s{sKA+3}, 0x20000"); A(f"s_mov_b64 s[{sVB+2}:{sVB+3}], s[{sKA+2}:{sKA+3}]")
    A(f"s_mul_i32 s{sW4}, s3, {WREG}"); A(f"s_lshl_b32 s{sKVw}, s3, 11")
    A(f"s_add_u32 s{sOff}, s{sH}, s{sKVw}")
    o.append(setm0(0))
    A("s_waitcnt lgkmcnt(0)")
    A(f"s_sub_u32 s{sKA}, s{sKA}, 1056"); A(f"s_subb_u32 s{sKA+1}, s{sKA+1}, 0")
    o+=[kvdma(0,0,0),kvdma(0,0,2)]
    A(f"s_sub_u32 s{sVB}, s{sVB}, 2080"); A(f"s_subb_u32 s{sVB+1}, s{sVB+1}, 0")
    o+=[kvdma(0,0,1),kvdma(0,0,3)]
    if cfg.cpf:
        A("s_getpc_b64 s[62:63]"); A("s_lshr_b32 s4, s2, 3"); A(f"s_mul_i32 s4, s4, {128*CPF_LINES}")
        A(f"v_min_u32 v1, {CPF_LINES-1}, v0"); A("v_lshl_add_u32 v1, v1, 7, s4")
        A("global_load_dword v61, v1, s[62:63]")
    A("v_lshrrev_b32 v2, 4, v0"); A("v_lshlrev_b32 v3, 6, v2"); A(f"v_xor_b32 v{vQB}, v{vKVB}, v3"); A(f"v_add_u32 v{vQA}, 1056, v{vQB}")
    A(f"s_mul_i32 s{sQw}, s3, 24576"); A(f"s_add_u32 s{sTmp}, s{sH}, s{sQw}")
    A(f"s_sub_u32 s{sQB}, s{sQA}, 32"); A(f"s_subb_u32 s{sQB+1}, s{sQA+1}, 0")
    A(f"s_sub_u32 s{sQA}, s{sQA}, 1056"); A(f"s_subb_u32 s{sQA+1}, s{sQA+1}, 0")
    o.append(setm0(slotQ(0)))
    A(f"s_mov_b64 s[{sQA+2}:{sQA+3}], s[{sKA+2}:{sKA+3}]"); A(f"s_mov_b64 s[{sQB+2}:{sQB+3}], s[{sKA+2}:{sKA+3}]")
    o+=[qdma(0,0,j,sTmp) for j in range(4)]
    o.append(setm0(1)); A(f"s_add_u32 s{sOff}, s{sOff}, 8192")
    o+=[kvdma(0,1,j) for j in (0,2,1,3)]
    A(f"s_mov_b32 s{sO+2}, {0 if cfg.diag else TOTB}"); A(f"s_mov_b32 s{sO+3}, 0x20000")
    A(f"s_add_u32 s{sHn}, s{sH}, {HEADB}")
    A(f"s_mov_b32 s{sC}, 0x3e0293ee"); A(f"s_mov_b32 s{sNC}, 0xbe0293ee"); A(f"s_mov_b32 s{sThr}, 0x49800000")
    A(f"s_mov_b32 s{sC2}, 0x3e0293ee"); A(f"s_mov_b32 s{sC2+1}, 0x3e0293ee")
    A(f"s_add_u32 s{sEnd}, s{sW4}, {NSLOT*SLOT}")
    A(f"s_mov_b32 s{sT}, 0")
    if cfg.profO or cfg.oddB: A("s_getreg_b32 s95, hwreg(HW_REG_XCC_ID)")
    A(f"s_mov_b64 s[{sBad}:{sBad+1}], 0"); A(f"s_mov_b64 s[{sBad2}:{sBad2+1}], 0")
    A(f"s_add_u32 s{sXe}, s{sW4}, {8*SLOT}"); A(f"s_add_u32 s4, s{sW4}, {SLOT}"); A(f"s_xor_b32 s{sXe}, s{sXe}, s4")
    A(f"s_add_u32 s4, s{sW4}, {2*SLOT}"); A(f"s_xor_b32 s{sXo}, s4, s{sW4}")
    A("v_and_b32 v3, 7, v0"); A(f"v_mul_u32_u24 v{vKl}, 2080, v3")
    A("v_bfe_u32 v3, v0, 3, 1"); A(f"v_lshl_add_u32 v{vKl}, v3, 8, v{vKl}")
    A(f"v_lshl_add_u32 v{vKl}, v2, 4, v{vKl}"); A(f"v_subrev_u32 v{vKl}, s{sW4}, v{vKl}")
    A("v_bfe_u32 v3, v0, 2, 3"); A(f"v_mul_u32_u24 v{vVl}, 2080, v3")
    A("v_lshrrev_b32 v3, 5, v0"); A(f"v_lshl_add_u32 v{vVl}, v3, 8, v{vVl}")
    A("v_and_b32 v4, 3, v0"); A(f"v_lshl_add_u32 v{vVl}, v4, 3, v{vVl}")
    A(f"v_add_u32 v{vVl}, 1024, v{vVl}"); A(f"v_subrev_u32 v{vVl}, s{sW4}, v{vVl}")
    A("v_mov_b32 v11, 0x3f803f80"); A("v_cmp_eq_u32 vcc, 0, v4")
    lane_consts(A,4)
    A("v_cndmask_b32 v11, 0, v11, vcc")
    for k in range(4): A(f"v_accvgpr_write_b32 a{ONES+k}, v11")
    for s in (1,2):
        o.append(setm0(slotQ(s))); A(f"s_add_u32 s{sTmp}, s{sTmp}, 4096")
        o+=[qdma(0,s,j,sTmp) for j in range(4)]
    return o

def slow_path():
    o=[]
    A=lambda t,**k: o.append(I(t,**k))
    sP=sCur
    A("Lslow:")
    A("s_waitcnt vmcnt(0) lgkmcnt(0)")
    A(f"s_mul_i32 s{sP}, s3, {SLOT}")
    A(f"s_add_u32 s{sTmp}, s{sP}, s{sW4}")
    o+=setrd(sTmp)
    A(f"v_lshrrev_b32 v0, 4, v{vKVB}"); A("v_lshrrev_b32 v2, 4, v0")
    lane_consts(A,sTmp)
    A(f"s_mov_b32 m0, s{sTmp}")
    A(f"s_add_u32 s{sOff}, s{sH}, s{sQw}")
    for s in range(6):
        o+=[qdma(0,s,j) for j in range(4)]
        A("s_waitcnt vmcnt(0)")
        for ks in range(4): A(f"ds_read_b128 {ar(Qr(s,ks))}, v{vQ+ks}")
        A(f"s_add_u32 s{sOff}, s{sOff}, 4096")
        A("s_waitcnt lgkmcnt(0)")
    for s in range(6): A(f"v_mov_b32 v{MN+s}, 0xff800000")
    def loadkv():
        for j in range(4):
            A(f"s_add_u32 m0, s{sP}, {j*WREG}"); A("s_nop 0")
            o.extend(kvdma(0,0,jj) for jj in range(4))
            A(f"s_add_u32 s{sOff}, s{sOff}, 2048")
        A("s_waitcnt vmcnt(0)")
    A(f"s_mov_b32 s{sOff}, s{sH}"); A(f"s_mov_b32 s{sT}, 0")
    A("Lslow1:")
    loadkv()
    o+=frag_reads(0,0,tags=False)[:8]
    A("s_waitcnt lgkmcnt(0)")
    for s in range(6):
        o+=qk_mfmas(s,0,0)
        A("s_nop 7")
        for e in range(0,8,2): A(f"v_max3_f32 v{MN+s}, v{MN+s}, v{SB[0]+e}, v{SB[0]+e+1}")
    A(f"s_add_u32 s{sT}, s{sT}, 1"); A(f"s_cmp_lt_u32 s{sT}, 12"); A("s_cbranch_scc1 Lslow1")
    for s in range(6):
        m=MN+s
        A(f"v_mov_b32 v{T1}, v{m}"); A("s_nop 1"); A(f"v_permlane16_swap_b32 v{m}, v{T1}"); A(f"v_max_f32 v{m}, v{m}, v{T1}")
        A(f"v_mov_b32 v{T1}, v{m}"); A("s_nop 1"); A(f"v_permlane32_swap_b32 v{m}, v{T1}"); A(f"v_max_f32 v{m}, v{m}, v{T1}")
        A(f"v_mul_f32 v{m}, s{sNC}, v{m}")
    for r in range(64,256): A(f"v_mov_b32 v{r}, 0")
    for r in range(224,248): A(f"v_accvgpr_write_b32 a{r}, 0")
    A(f"s_mov_b32 s{sOff}, s{sH}"); A(f"s_mov_b32 s{sT}, 0")
    A("Lslow2:")
    loadkv()
    fr=frag_reads(0,0,tags=False)
    for k in range(3):
        o+=fr[8*k:8*k+8]; A("s_waitcnt lgkmcnt(0)")
    for s in range(6):
        o+=qk_mfmas(s,0,0)
        A("s_nop 7")
        for gp in sm_gaps(s,0,0): o+=gp
        A("s_nop 1")
        o+=pv_mfmas(s,0,0,False)
    A(f"s_add_u32 s{sT}, s{sT}, 1"); A(f"s_cmp_lt_u32 s{sT}, 12"); A("s_cbranch_scc1 Lslow2")
    A("s_nop 7")
    A(f"s_add_u32 s{sSt}, s{sH}, s{sQw}")
    for s in range(6):
        o+=e_head(s,None,None,T1)
        for dt in range(8): o+=e_pk(s,dt,None,T1)
        for dt in range(8): o+=e_cvt(s,dt,None)
        for dt in range(8): o.append(e_wr(s,dt,0,None,None))
        o+=epi_rd(s,0,None)+[I("s_waitcnt lgkmcnt(0)")]+epi_st(s,"",sSt)
        A(f"s_add_u32 s{sSt}, s{sSt}, 4096")
    A("s_branch Lslow_ret")
    for x in o:
        for k in ('tag','slot','wslot','wtag'): x.meta.pop(k,None)
    return o

def resolve(trace):
    vm=[]; lg=[]
    for x in trace:
        if x.label or x.meta.get('skip'): continue
        if 'auto_vm' in x.meta:
            idx=[k for k,y in enumerate(vm) if y.meta.get('tag')==x.meta['auto_vm']]
            n=min(63,len(vm)-1-max(idx)); x.text=x.text.replace("vmcnt(AUTO)",f"vmcnt({n})"); x.meta['loose_ok']=True
        if 'auto_lg' in x.meta:
            k=[i for i,y in enumerate(lg) if y is x.meta['auto_lg']]
            assert k, "WL target not issued before wait: "+x.meta['auto_lg'].text
            n=min(15,len(lg)-1-k[0]); x.text=x.text.replace("lgkmcnt(AUTO)",f"lgkmcnt({n})")
        if x.kind=='vmem': vm.append(x)
        if x.kind=='ds': lg.append(x)

def build():
    P=prologue(); SA=startA(); TR=trans(); TB=tailB()
    txt=lambda L:[x.text for x in L if not x.text.startswith(';')]
    assert txt(loopA2(0))==txt(loopA2(1))
    tb=range(1,3) if cfg.profB0 else range(3)
    for t in tb: assert txt(loopB(t))==txt(loopB(tb[0]))
    if cfg.loopR:
        assert txt(rampA(0))==txt(rampA(1)); RAt=rampA(0)+rampA(1); RA=[I(".p2align 3"),I("LloopA1:")]+rampA(0)
    else: RA=RAt=rampA()
    PB_=peelB() if cfg.profB0 else []
    extra=[]
    if cfg.profO:
        RO=rampA(prof=cfg.profO)
        t2=prologue()+startA()+RO+midA()+loopA2(0); resolve(t2)
        for p in check_trace([x for x in t2 if not x.meta.get('skip')]): print("ODD:",p)
        RA=[I("s_bitcmp1_b32 s95, 0"), I("s_cbranch_scc1 LrampO")]+RA+[I("s_branch LrampJ"), I("LrampO:")]+RO+[I("LrampJ:")]
    if cfg.midprof:
        MA=staticA(); trace=P+SA+MA+TR+PB_
    else: trace=P+SA+RAt+midA()+loopA2(0)+loopA2(1)+TR+PB_
    for t in tb: trace+=loopB(t)
    trace+=TB
    resolve(trace)
    probs=check_trace([x for x in trace if not x.meta.get('skip')])
    sp=slow_path()
    probs+=check_trace(sp+slow_path())
    seen=set()
    for p in probs:
        if p not in seen: print(p); seen.add(p)
    nd=(lambda L:[x for x in L if not getattr(x,'dma',False)]) if cfg.diag=='nodma' else (lambda L:L)
    if cfg.midprof: S=list(P)+stamp(0)+SA+stamp(1)+nd(MA)
    else: S=list(P)+stamp(0)+SA+stamp(1)+nd(RA)+midA()+[I(".p2align 3"),I("LloopA2:")]+nd(loopA2(0))
    if cfg.oddB: PB_=[I("s_bitcmp1_b32 s95, 0"), I(f"s_cselect_b32 s{sT}, -1, 0"), I("s_cbranch_scc1 LloopB")]+PB_
    S+=stamp(2)+nd(TR)+stamp(3)+nd(PB_)+[I(".p2align 3"),I("LloopB:")]+nd(loopB(tb[0]))
    S+=stamp(4)+TB+stamp(5)
    if cfg.slow:
        S+=[I(f"s_or_b64 s[62:63], s[{sBad}:{sBad+1}], s[{sBad2}:{sBad2+1}]"), I("s_barrier"), I("s_cbranch_scc1 Lslow_entry")]
    S+=[I("Lfin:")]
    if cfg.stamps:
        S+=[I("s_waitcnt vmcnt(0)"), I(f"s_memtime s[{sStamp+16}:{sStamp+17}]"), I(f"s_memrealtime s[{sStamp+18}:{sStamp+19}]"), I("s_waitcnt lgkmcnt(0)")]
        if cfg.echo>=0:
            esrc=[sStamp+2]+[sStamp+4+2*k for k in range(6)]+[sStamp+18]
            S+=[I(f"s_add_u32 s62, s{esrc[cfg.echo]}, 10000"), I("Lspin:"), I("s_sleep 2"), I("s_memrealtime s[88:89]"), I("s_waitcnt lgkmcnt(0)"),
                I("s_sub_u32 s63, s88, s62"), I("s_cmp_lt_i32 s63, 0"), I("s_cbranch_scc1 Lspin")]
        S+=[I(f"v_mov_b32 v8, s{sStamp+2}"), I(f"v_mov_b32 v9, s{sStamp+18}")]
        srcs=[sStamp+4+2*k for k in range(6)]+[sStamp+(18 if cfg.rt else 16)]
        for k,r in enumerate(srcs):
            S+=[I(f"s_sub_u32 s{sTmp}, s{r}, s{sStamp+(2 if cfg.rt else 0)}"), I(f"v_mov_b32 v{10+k}, s{sTmp}")]
        S+=[I("v_mov_b32 v17, 0"), I("v_mov_b32 v18, 0"), I("s_getreg_b32 s62, hwreg(HW_REG_XCC_ID)"), I("v_mov_b32 v19, s62")]
        S+=[I(f"s_mov_b32 s28, s{sDbg}"), I(f"s_mov_b32 s29, s{sDbg+1}"), I(f"s_mov_b32 s30, {cfg.dbgsz}"), I("s_mov_b32 s31, 0x20000"),
            I("s_lshl_b32 s62, s2, 8"), I("s_lshl_b32 s63, s3, 6"), I("s_add_u32 s62, s62, s63"), I("v_mov_b32 v1, 0")]
        if cfg.tl:
            S+=TL()+[I("s_waitcnt lgkmcnt(0)")]+TL()+[I("s_lshl_b32 s61, s62, 3"), I("s_add_u32 s61, s61, 65536"), I(f"v_lshrrev_b32 v5, 2, v{vKVB}"),
                I("buffer_store_dword v0, v5, s[28:31], s61 offen"), I("buffer_store_dword v61, v5, s[28:31], s61 offen offset:256")]
        S+=[I("s_mov_b64 exec, 1"),
            I("buffer_store_dwordx4 v[8:11], v1, s[28:31], s62 offen"), I("buffer_store_dwordx4 v[12:15], v1, s[28:31], s62 offen offset:16"), I("buffer_store_dwordx4 v[16:19], v1, s[28:31], s62 offen offset:32")]
    S+=[I("Lend:"), I("s_endpgm")]
    if cfg.slow:
        S+=[I("Lslow_entry:"), I(f"s_cmp_lg_u64 s[{sBad}:{sBad+1}], 0"), I("s_cbranch_scc1 Lslow"),
            I("Lslow_ret:"), I(f"s_cmp_eq_u64 s[{sBad2}:{sBad2+1}], 0"), I("s_cbranch_scc1 Lfin"),
            I(f"s_mov_b64 s[{sBad2}:{sBad2+1}], 0"), I(f"s_mov_b32 s{sH}, s{sHn}")]
        S+=sp
    else: S+=[I(".fill 2048, 4, 0xbf810000")]
    return S, bool([p for p in probs if not p.startswith("NOTE")])

from gen import HDR, FTR
def write(fn):
    S,bad=build()
    with open(fn,"w") as f:
        f.write(HDR%(LDSB,NAME,NAME,NAME))
        for x in S:
            t=x.text
            if cfg.drop=='exp' and t.startswith('v_exp'): t=t.replace('v_exp_f32','v_mov_b32')
            if cfg.drop=='exp0' and t.startswith('v_exp'): continue
            if cfg.drop=='fma' and t.startswith('v_fma'): continue
            if cfg.drop=='sum' and t.startswith(MF+' a['): continue
            f.write((t if (t.endswith(':') or t.startswith('.')) else "    "+t)+"\n")
        f.write(FTR%NAME)
    return bad
def sizes(co):
    import subprocess
    out=subprocess.run(["llvm-objdump","-d","--mcpu=gfx950",co],capture_output=True,text=True).stdout
    sym={m.group(2):int(m.group(1),16) for m in re.finditer(r"^([0-9a-f]+) <(\w+)>:",out,re.M)}
    last=int(re.findall(r"// ([0-9A-F]{12}):",out)[-1],16)
    st=sym[NAME]
    return sym.get('Lfin',sym.get('Lend'))-st, last+4-st
if __name__=="__main__":
    ap=argparse.ArgumentParser()
    ap.add_argument("out"); ap.add_argument("opts",nargs="*")
    a=ap.parse_args()
    for kv in a.opts:
        k,v=kv.split("=",1)
        cur=getattr(cfg,k)
        setattr(cfg,k, (v in("1","True","true")) if isinstance(cur,bool) else (int(v) if isinstance(cur,int) else v.replace("+"," ")))
    from mkco import build as mk
    for it in range(2):
        bad=write(a.out); co=mk(a.out); hot,tot=sizes(co)
        need=-(-hot//(32*128))
        if need==CPF_LINES: break
        CPF_LINES=need
    assert 32*128*CPF_LINES+256<=tot, (hot,tot)
    print(co, "PROBLEMS" if bad else "clean", "hot",hot,"total",tot,"cpf lines",CPF_LINES)
```

```python
import sys, argparse, re, functools
sys.path.insert(0,'work')
from asmlib import I, check_trace
NAME="standalone__gqa_softmax__near_ridge_kernel"
SLOT=16640; WREG=4160; NSLOT=9
LDSB=NSLOT*SLOT
HEADB=98304
TOTB=50331648

class Cfg:
    ld="nt"; st="sc1"; st2="nt"
    stamps=False; rt=False; tl=False; dbgsz=0x400000; echo=-1; diag=''
    slow=True; cpf=True
    rho=3; rhoG=3; rhoE=8
    prof='47,47,44,40'
    loopR=False
    profB='00,00'
    profB0='40,20'
    profO=''
    oddB=False
    midprof=''
    profS=0
    pads=0
    padoff=0
    st3=''; n3=3
    pkf=0
    drop=''
    dl=0
cfg=Cfg()

def O(s,dt): return 64+32*s+4*dt
SB=[16,24]; PB=[32,36]
MN=40
vK,vV,vKl,vVl=46,47,48,49
vD=[50,51]
vQ=52
vR=[56,63]
vKVA,vKVB,vQA,vQB=57,58,59,60
vW=[5,6,7,62]
T0,T1,T2,T3=1,2,3,4
DR=[8,12]
QREGS=[vQ+k for k in range(4)]
def Qr(s,ks): return 16*s+4*ks
def Kf(par,i): return 96+32*par+4*i
def Vf(par,dt): return 160+32*par+4*dt
def Lr(s): return 224+4*s
ONES=248
sKA,sVB,sQA,sQB,sO=8,12,16,20,24
sOff,sCur,sC,sH,sW4,sT,sPe,sEnd,sKVw,sQw,sThr=40,42,43,44,45,46,47,48,49,50,51
sBad=52; sBad2=96
sTmp,sSt,sNC,sHn,sDbg=55,57,58,59,60
sSd,sDi=41,54
sStamp=64
sPo,sXe,sXo=92,93,94
sC2=38

def vr(a,n=4): return f"v[{a}:{a+n-1}]"
def ar(a,n=4): return f"a[{a}:{a+n-1}]"
def sr(a,n=4): return f"s[{a}:{a+n-1}]"
def offs(o): return f" offset:{o}" if o else ""

def slotKV(h,b):
    if b<2: return b
    if h==0: return (6+b)%9
    return [8,0,1,2][(b-2)%4]
def slotQ(s): return 2+s
UOFF=[0,1024,2080,3104]
def dma(j,tag,slot,q,off=sOff):
    A,B,va,vb=(sQA,sQB,vQA,vQB) if q else (sKA,sVB,vKVA,vKVB)
    p=f" {cfg.ld}" if cfg.ld else ""
    return I(f"buffer_load_dwordx4 v{[va,va,vb,vb][j]}, {sr([A,B,A,B][j])}, s{off} offen{offs(UOFF[j])}{p} lds", tag=tag, slot=slot)
def kvdma(h,b,j,off=sOff): return dma(j,f"h{h}KV{b}",slotKV(h,b),False,off)
def qdma(h,s,j,off=sOff): return dma(j,f"h{h}Q{s}",slotQ(s),True,off)
def pdma(n,j):
    if n<18: return kvdma(0,n-6,j)
    if n<20: return kvdma(1,n-18,j)
    return qdma(1,n-20,j)
def setm0(slot): return I(f"s_add_u32 m0, s{sW4}, {slot*SLOT}") if slot else I(f"s_mov_b32 m0, s{sW4}")
def frag_reads(h,b,base=0,rk=vK,rv=vV,tags=True):
    m=dict(src=f"h{h}KV{b}",slot=slotKV(h,b)) if tags else {}
    par=b&1
    return [I(f"ds_read_b128 {ar(Kf(par,i))}, v{rk}{offs(base+(i//4)*512+(i%4)*64)}",**m) for i in range(8)]+\
           [I(f"ds_read_b64_tr_b16 {ar(Vf(par,i//2)+2*(i%2),2)}, v{rv}{offs(base+(i%2)*512+(i//2)*32)}",**m) for i in range(16)]
def qreads(h,s): return [I(f"ds_read_b128 {ar(Qr(s,ks))}, v{vQ+ks}{offs((s%4)*SLOT)}", src=f"h{h}Q{s}", slot=slotQ(s), private=True) for ks in range(4)]
def bias(regs,up): return [I(f"{'v_add_u32' if up else 'v_subrev_u32'} v{r}, {4*SLOT}, v{r}") for r in regs]
def setrd(reg,rk=vK,rv=vV): return [I(f"v_add_u32 v{rk}, s{reg}, v{vKl}"), I(f"v_add_u32 v{rv}, s{reg}, v{vVl}")]

FA=[(b,s) for s in range(6) for b in (0,1)]
LA=[(10,0),(10,1),(10,2),(11,0),(11,1),(10,3),(11,2),(10,4),(11,3),(10,5),(11,4),(11,5)]
FB=[(0,0),(0,1),(1,0),(0,2),(1,1),(0,3),(1,2),(0,4),(1,3),(0,5),(1,4),(1,5)]
MID=[(b,s) for b in range(2,10) for s in range(6)]
GB=[(b,s) for b in (8,9,10,11) for s in (0,1,2)]+[(8,3),(8,4),(8,5),(9,3),(9,4),(9,5),(10,3),(11,3),(10,4),(11,4),(10,5),(11,5)]
UNITS=[(0,)+u for u in FA+MID+LA]+[(1,)+u for u in FB+MID[:36]+GB]
def unit(i): return UNITS[i] if 0<=i<len(UNITS) else None

MF="v_mfma_f32_16x16x32_bf16"
def qk_mfmas(s,kpar,sb,u=None):
    o=[]
    for i in range(8):
        kt,ks=divmod(i,4); d=SB[sb]+4*kt
        x=I(f"{MF} {vr(d)}, {ar(Kf(kpar,i))}, {ar(Qr(s,ks))}, {'0' if ks==0 else vr(d)}")
        if u:
            x.meta['expect']={**{r:f"h{u[0]}KV{u[1]}" for r in x.A}, **{r:f"h{u[0]}Q{u[2]}" for r in x.B}}
            x.meta['set']={r:f"S{u}" for r in x.wr}
        o.append(x)
    return o
def pv_mfmas(s,vpar,pb,first,u=None):
    o=[I(f"{MF} {vr(O(s,dt))}, {ar(Vf(vpar,dt))}, {vr(PB[pb])}, {'0' if first else vr(O(s,dt))}") for dt in range(8)]
    o.append(I(f"{MF} {ar(Lr(s))}, {ar(ONES)}, {vr(PB[pb])}, {'0' if first else ar(Lr(s))}"))
    if u:
        cnt=sum(1 for y in UNITS[:UNITS.index(u)] if y[0]==u[0] and y[2]==u[2])
        for k,x in enumerate(o):
            e={r:f"P{u}" for r in x.B}
            if k<8: e.update({r:f"h{u[0]}KV{u[1]}" for r in x.A})
            if not first: e.update({r:f"O{u[0]}n{cnt}" for r in x.wr})
            x.meta['expect']=e; x.meta['set']={r:f"O{u[0]}n{cnt+1}" for r in x.wr}
    return o
FREE=(5,11,16)
def sm_gaps(s,sb,pb,u=None):
    S=SB[sb]; P=PB[pb]
    T=(lambda **k:k) if u else (lambda **k:{})
    f=lambda e: I(f"v_fma_f32 v{S+e}, v{S+e}, s{sC}, v{MN+s}", **T(expect={('v',S+e):f"S{u}",('v',MN+s):f"M{u and u[0]}"}))
    x=lambda e: I(f"v_exp_f32 v{S+e}, v{S+e}", **T(expect={('v',S+e):f"S{u}"}))
    c=lambda e: I(f"v_cvt_pk_bf16_f32 v{P+e//2}, v{S+e}, v{S+e+1}", **T(expect={('v',S+e):f"S{u}",('v',S+e+1):f"S{u}"}, set={('v',P+e//2):f"P{u}"}))
    if cfg.pkf:
        mb=MN+(s&~1); sel="op_sel:[0,0,1] op_sel_hi:[1,0,1]" if s&1 else "op_sel_hi:[1,0,0]"
        pf=lambda e: I(f"v_pk_fma_f32 v[{S+e}:{S+e+1}], v[{S+e}:{S+e+1}], s[{sC2}:{sC2+1}], v[{mb}:{mb+1}] {sel}", **T(expect={('v',S+e):f"S{u}",('v',MN+s):f"M{u and u[0]}"}))
        if cfg.pkf==1: return [[pf(0)],[x(0)],[x(1)],[pf(2)],[x(2)],[],[x(3)],[pf(4)],[x(4)],[x(5)],[pf(6)],[],[x(6)],[x(7)],[c(0),c(2)],[c(4),c(6)],[]]
        return [[pf(0),pf(2),pf(4),pf(6)],[x(0)],[x(1)],[],[x(2)],[],[x(3)],[],[x(4)],[x(5)],[],[],[x(6)],[x(7)],[c(0),c(2)],[c(4),c(6)],[]]
    return [[f(0),f(1)],[x(0)],[x(1)],[f(2),f(3)],[x(2)],[],[x(3)],[f(4),f(5)],[x(4)],[x(5)],[f(6),f(7)],[],[x(6)],[x(7)],[c(0),c(2)],[c(4),c(6)],[]]
def max_seq(s,sb,h):
    S=SB[sb]
    return [I(f"v_max3_f32 v{T0}, v{S}, v{S+1}, v{S+2}"), I(f"v_max3_f32 v{T3}, v{S+3}, v{S+4}, v{S+5}"),
            I(f"v_max3_f32 v{T0}, v{T0}, v{S+6}, v{S+7}"), I(f"v_max_f32 v{T0}, v{T0}, v{T3}"),
            I(f"v_mov_b32 v{T3}, v{T0}"), I(f"v_permlane16_swap_b32 v{T0}, v{T3}"),
            I(f"v_max_f32 v{T0}, v{T0}, v{T3}"), I(f"v_mov_b32 v{T3}, v{T0}"),
            I(f"v_permlane32_swap_b32 v{T0}, v{T3}"), I(f"v_max_f32 v{T0}, v{T0}, v{T3}"),
            I(f"v_mul_f32 v{MN+s}, s{sNC}, v{T0}", set={('v',MN+s):f"M{h}"})]
MAXG=[11,11,12,12,12,13,14,14,15,16,16]
def put(ex,g,items): ex.setdefault(g,[]).extend(items)

def step(i, ex=None, post=None, clump=0):
    ex=ex or {}; post=post or {}
    q,m,p=unit(i+1),unit(i),unit(i-1)
    mf=(qk_mfmas(q[2],q[1]&1,(i+1)&1,q) if q else [None]*8)+(pv_mfmas(p[2],p[1]&1,(i-1)&1,p[1]==0,p) if p else [None]*9)
    g=sm_gaps(m[2],i&1,i&1,m) if m else [[] for _ in range(17)]
    for src,dst in [(2,1),(9,8),(13,12),(15,14),(4,3),(7,6),(1,0)][:clump]:
        g[dst]=g[dst]+g[src]; g[src]=[]
    tailmax=[]
    if q and q[1]==0:
        ms=max_seq(q[2],(i+1)&1,q[0])
        if p and m:
            for gg,x in zip(MAXG,ms): g[gg]=g[gg]+[x]
        else:
            for x in ms:
                if x.op.startswith('v_permlane'): tailmax.append(I("s_nop 1"))
                tailmax.append(x)
    out=[I(f"; ---- step {i}: QK{q} softmax{m} PV{p}")]
    out+=ex.get(-1,[])
    for k in range(17):
        if mf[k] is not None: out.append(mf[k])
        out+=ex.get(k,[])+g[k]+post.get(k,[])
    return out+tailmax+ex.get(17,[])

def free_gaps(ex,lo,n,avoid=()):
    return [x for x in range(lo,17) if x not in FREE and x not in ex and x not in avoid][:n]
def spread(ex,lo,items,avoid=()):
    gs=free_gaps(ex,lo,len(items),avoid)
    while len(gs)<len(items): gs.append(gs[-1])
    for x,i in zip(gs,items): put(ex,x,[i])
def TL():
    if not cfg.tl: return []
    r=[I("s_mov_b64 exec, s[90:91]"), I("v_mov_b32 v0, s98"), I("v_mov_b32 v61, s100"), I("s_mov_b64 exec, -1"), I("s_lshl_b64 s[90:91], s[90:91], 1"), I("s_memtime s[98:99]"), I("s_memrealtime s[100:101]")]
    for x in r: x.meta['skip']=True
    return r
def BAR(): return [I("s_barrier")]+TL()
def WV(tag,lg0=False): return I("s_waitcnt vmcnt(AUTO)"+(" lgkmcnt(0)" if lg0 else ""), auto_vm=tag, need=tag)
def WL(x): return I("s_waitcnt lgkmcnt(AUTO)", auto_lg=x)

def kind(x):
    if x.op.startswith('ds_read'): return 'r'
    if x.op.startswith('ds_write'): return 'w'
    if getattr(x,'dma',False): return 'd'
    if getattr(x,'store',False): return 's'
    return 'a'
def gapcost(ks,free):
    if not ks: return 0
    U={'r':4,'d':6,'w':12,'s':12,'a':4}
    c=sum(U[k] for k in ks)
    if ks[0]=='a': c-=4
    if len(ks)==1 and ks[0]=='d': c=4 if not free else 8
    for p,q in zip(ks,ks[1:]):
        if p=='w' and q=='r': c+=12
    st=12*ks.count('s')
    if free: return st+max(0,c-st-8)
    return c+4*max(0,len([k for k in ks if k!='a'])-1)
def place(ex,groups,lo=0,hi=16,free=FREE):
    groups=[g if isinstance(g,list) else [g] for g in groups]
    n=len(groups)
    if not n: return
    base={g:[kind(x) for x in ex.get(g,[]) if not x.label and not x.meta.get('skip')] for g in range(17)}
    @functools.lru_cache(None)
    def f(g,i):
        if i==n: return (0,())
        if g>hi: return (1e9,())
        best=(1e9,())
        for m in range(0,min(4,n-i)+1):
            ks=base[g]+[kind(x) for gr in groups[i:i+m] for x in gr]
            c=gapcost(ks,g in free)-gapcost(base[g],g in free)
            c+=0.01*sum(abs(g-(lo+(hi-lo)*(j+0.5)/n)) for j in range(i,i+m))
            r=f(g+1,i+m)
            if c+r[0]<best[0]: best=(c+r[0],(g,)*m+r[1])
        return best
    c,gs=f(lo,0)
    assert len(gs)==n
    for g,gr in zip(gs,groups): put(ex,g,gr)

def put_reads(ex,post,reads,r,late):
    rs=reads[4*r:4*r+4]
    if late:
        gs=[6,8,12,13] if r<5 else [2,6,8,9]
        for k in range(late): put(post,gs[k],[rs[k]])
        if rs[late:]: put(ex,16 if r<5 else 11,rs[late:])
    else:
        rg=(5,16) if r<5 else (5,11)
        put(ex,rg[0],rs[:2]); put(ex,rg[1],rs[2:])
def loop_end(ex,lab,n):
    put(ex,13,[I(f"s_add_u32 s{sT}, s{sT}, 1")]); put(ex,15,[I(f"s_cmp_lt_u32 s{sT}, {n}")]); put(ex,16,[I(f"s_cbranch_scc1 {lab}")])

def blockA(b,pairs,pf,nv=None,lab=None,n=0):
    late,clump=int(pf[0]),int(pf[1])
    reads=frag_reads(0,b+1); tag=f"h0KV{b+1}"
    out=[]
    inc=4096 if pairs[0]>=20 else 8192
    if len(pairs)==2: dpos={0:[(0,0,11)],1:[(0,1,3),(0,2,11)],2:[(0,3,11)],3:[(1,0,11)],4:[(1,1,3),(1,2,11)],5:[(1,3,14)]}; advr=(0,3)
    else: dpos={0:[(0,0,11)],2:[(0,1,11)],3:[(0,2,11)],4:[(0,3,11)]}; advr=(0,)
    for r in range(6):
        ex={}; post={}
        if r==0:
            put(ex,0,[I(f"s_waitcnt vmcnt({nv}) lgkmcnt(0)", need=tag, loose_ok=True) if nv is not None else WV(tag,True)])
            put(ex,1,BAR()); put(post,4,setrd(sCur))
        put_reads(ex,post,reads,r,late)
        for (p,j,g) in dpos.get(r,[]): put(ex,g,[pdma(pairs[p],j)])
        if r in advr: spread(ex,2,[I(f"s_add_u32 m0, m0, {SLOT}"), I(f"s_cmp_ge_u32 m0, s{sEnd}"), I(f"s_cselect_b32 m0, s{sW4}, m0"), I(f"s_add_u32 s{sOff}, s{sOff}, {inc}")])
        if r==3: put(ex,15,[I(f"s_waitcnt lgkmcnt({4+late if late else 6})")])
        if r==5:
            spread(ex,0,[I(f"s_add_u32 s{sCur}, s{sCur}, {SLOT}"), I(f"s_cmp_ge_u32 s{sCur}, s{sEnd}"), I(f"s_cselect_b32 s{sCur}, s{sW4}, s{sCur}")])
            if lab: loop_end(ex,lab,n)
        out+=step(6*b+1+r,ex,post,clump)
    return out
def rampA(t=None,prof=None):
    pf=(prof or cfg.prof).split(',')
    if t is not None:
        n=12+4*t
        return blockA(2*t+2,[n,n+1],pf[0],nv=8)+blockA(2*t+3,[n+2,n+3],pf[1],nv=12,lab="LloopA1",n=2)
    o=[]
    for k,b in enumerate(range(2,6)): o+=blockA(b,[12+2*k,13+2*k],pf[k])
    return o
def staticA():
    out=[]
    seq=[(n,j) for n in range(12,24) for j in range(4)]
    pos={4:[(0,11),(2,11),(3,11),(4,11)], 5:[(0,11),(1,11),(2,11),(3,11),(4,11)], 6:[(0,11),(1,11),(2,11),(3,11),(4,11),(5,14)],
         7:[(0,11),(1,11),(2,3),(2,11),(3,11),(4,11),(5,14)], 8:[(0,11),(1,3),(1,11),(2,11),(3,11),(4,3),(4,11),(5,14)]}
    pf=cfg.midprof.split(',')
    assert sum(int(p[2]) for p in pf)==48
    for b,p in zip(range(2,10),pf):
        late,clump,nd=int(p[0]),int(p[1]),int(p[2])
        sl=slotKV(0,b+1); base=(sl%4)*SLOT
        reads=frag_reads(0,b+1,base=base); tag=f"h0KV{b+1}"
        for r in range(6):
            ex={}; post={}
            if r==0:
                put(ex,0,[WV(tag,True)]); put(ex,1,BAR())
                if sl%4==0:
                    put(ex,2,[I(f"s_add_u32 s{sCur}, s{sW4}, {sl*SLOT}")]); put(post,4,setrd(sCur))
            put_reads(ex,post,reads,r,late)
            for (rr,g) in pos[nd]:
                if rr==r:
                    n,j=seq.pop(0)
                    if j==0:
                        pre=[setm0(n%9), I(f"s_add_u32 s{sOff}, s{sOff}, {4096 if n>20 else 8192}") if n!=20 else I(f"s_add_u32 s{sOff}, s{sHn}, s{sQw}")]
                        gs=[x for x in range(g-1,-1,-1) if x not in ex and x not in FREE][:2]
                        while len(gs)<2: gs.append(g)
                        put(ex,gs[1],[pre[0]]); put(ex,gs[0],[pre[1]])
                    put(ex,g,[pdma(n,j)])
            if r==3: put(ex,15,[WL(reads[7])])
            if b==9 and r==5: put(ex,12,[I(f"s_add_u32 s{sCur}, s{sW4}, {8*SLOT}")])
            out+=step(6*b+1+r,ex,post,clump)
    assert not seq
    return out
def midA(): return [I(f"s_add_u32 s{sOff}, s{sHn}, s{sQw}"), I(f"s_sub_u32 s{sOff}, s{sOff}, 4096"), I(f"s_mov_b32 s{sT}, 0")]
def loopA2(t): return blockA(2*t+6,[20+2*t],'00',nv=24)+blockA(2*t+7,[21+2*t],'00',nv=24,lab="LloopA2",n=2)

def ostore(reg,j,pol,so,tag=None):
    x=I(f"buffer_store_dwordx4 {vr(reg)}, v{vKVB}, {sr(sO)}, s{so} offen{offs(1024*j)}"+(f" {pol}" if pol else ""))
    if tag: x.meta['expect']={r:tag for r in x.data}
    return x
DIRECT=2
def dunit(k): return (DIRECT+k//4, k%4)
def blockB(b,pf,lab=None,n=0):
    late,clump=int(pf[0]),int(pf[1])
    t=(b-2)//2
    reads=frag_reads(1,b+1); tag=f"h1KV{b+1}"
    out=[]; lead=(b%2==0)
    rp,wp=(sPo,sPe) if lead else (sPe,sPo)
    rx=sXo if lead else sXe
    nb=cfg.dl//2; loc0=(0 if lead else nb)
    dr=[]; sts=[]
    for k in range(nb):
        sub,j=dunit(cfg.dl*t+loc0+k); jj=loc0+k
        dr.append(I(f"ds_read_b128 {vr(DR[jj&1])}, v{vD[jj&1]}{offs(1024*jj)}", src=f"O{sub}", slot=slotQ(sub), private=True))
        sts.append(ostore(DR[jj&1],jj,cfg.st,sSd,f"O{sub}"))
    for r in range(6):
        ex={}; post={}
        if r==0:
            put(ex,0,[I(f"s_waitcnt vmcnt({8+nb}) lgkmcnt(0)", need=tag, loose_ok=True)])
            put(ex,1,BAR())
            put(ex,2,[I(f"s_mov_b32 m0, s{wp}")]); put(ex,3,[I(f"s_xor_b32 s{rp}, s{rp}, s{rx}")])
            put(ex,4,[I(f"s_add_u32 s{sOff}, s{sOff}, 8192")]); put(post,4,setrd(rp))
        put_reads(ex,post,reads,r,late)
        if r<4: put(ex,11,[kvdma(1,b+4,r)])
        if r==3: put(ex,15,[I(f"s_waitcnt lgkmcnt({4+late if late else 6})")])
        if r==4 and nb: put(ex,11,dr)
        if r==5 and nb:
            put(ex,1,[I("s_waitcnt lgkmcnt(2)")]); put(ex,3,[sts[0]])
            if nb==2: put(ex,10,[sts[1]])
        if r==5 and not lead:
            if nb:
                put(ex,12,[I(f"s_add_u32 s{sSd}, s{sSd}, {1024*cfg.dl}")])
                inc=f"{SLOT}" if cfg.dl==4 else f"s{sDi}"
                put(post,16 if not lab else 7,[I(f"v_add_u32 v{vD[k]}, {inc}, v{vD[k]}") for k in range(2)])
                if cfg.dl==2: put(ex,0,[I(f"s_xor_b32 s{sDi}, s{sDi}, {2048^(SLOT-2048)}")])
            if lab: loop_end(ex,lab,n)
        out+=step(72+6*b+1+r,ex,post,clump)
    return out
def loopB(t):
    pf=cfg.profB.split(',')
    return blockB(2*t+2,pf[0])+blockB(2*t+3,pf[1],lab="LloopB",n=(2 if cfg.profB0 else 3))
def peelB():
    pf=cfg.profB0.split(',')
    return blockB(2,pf[0])+blockB(3,pf[1])

def tagexp(o,tag):
    if tag:
        h=0 if tag[0]=='O' else 1
        for x in o:
            x.meta['expect']={r:f"O{h}n12" for r in x.rd if (r[0]=='v' and r[1]>=64) or (r[0]=='a' and 224<=r[1]<248)}
    return o
def e_head(s,bad,tag,rc):
    o=[I(f"v_accvgpr_read_b32 v{T2}, a{Lr(s)}"), I(f"v_rcp_f32 v{rc}, v{T2}")]
    o.append(I(f"v_cmp_nge_f32 vcc, s{sThr}, v{T2}") if bad is not None else I("s_nop 0"))
    if bad is not None: o.append(I(f"s_or_b64 s[{bad}:{bad+1}], s[{bad}:{bad+1}], vcc"))
    return tagexp(o,tag)
def e_pk(s,dt,tag,rc):
    a=O(s,dt)
    return tagexp([I(f"v_pk_mul_f32 {vr(a+k,2)}, {vr(a+k,2)}, v[{rc}:{rc+1}] op_sel_hi:[1,0]") for k in (0,2)],tag)
def e_cvt(s,dt,tag):
    a=O(s,dt)
    return tagexp([I(f"v_cvt_pk_bf16_f32 v{a}, v{a}, v{a+1}"), I(f"v_cvt_pk_bf16_f32 v{a+1}, v{a+2}, v{a+3}")],tag)
def e_wr(s,dt,off,slot,tag,regs=vW):
    return tagexp([I(f"ds_write_b64 v{regs[dt&3]}, {vr(O(s,dt),2)}{offs(off+(dt>>2)*128)}", wslot=slot, wtag=tag)],tag)[0]
def epi_rd(s,off,slot,tag=None,regs=vR):
    m=dict(src=tag,slot=slot,private=True) if tag else {}
    return [I(f"ds_read_b128 {vr(O(s,2*j))}, v{regs[j&1]}{offs(off+1024*j)}", **m) for j in range(4)]
def epi_st(s,pol,so,tag=None): return [ostore(O(s,2*j),j,pol,so,tag) for j in range(4)]

class Epi:
    def __init__(s,rc2,so): s.rc2=rc2; s.so=so; s.tiles=[]; s.cv=[]; s.wr=[]; s.rd=[]; s.st=[]; s.info={}
    def add(s,sub,avail,off,slot,bad,tag,direct,pol,pre=()):
        s.info[sub]=dict(off=off,slot=slot,bad=bad,tag=tag,direct=direct,pol=pol,pre=list(pre))
        s.tiles+=[(avail,sub,dt) for dt in range(8)]
    def _rd(s,g):
        rd=s.rd; s.rd=[]
        for sub in rd:
            I_=s.info[sub]; r=epi_rd(sub,I_['off'],I_['slot'],I_['tag']); g+=[[x] for x in r]
            st=epi_st(sub,I_['pol'],s.so,I_['tag'])
            s.st+=[[WL(r[1]),st[0]],[st[1]],[WL(r[3]),st[2]],[st[3],I(f"s_add_u32 s{s.so}, s{s.so}, 4096")]]
    def mem(s,nst,fast=False):
        g=[]
        for _ in range(nst):
            if s.st: g.append(s.st.pop(0))
        s._rd(g)
        for sub,dt in s.wr:
            I_=s.info[sub]
            g.append(([I_['pre'][dt]] if (I_['pre'] and dt<4) else [])+[e_wr(sub,dt,I_['off'],I_['slot'],I_['tag'])])
            if dt==7 and I_['direct']: s.rd.append(sub)
        s.wr=[]
        if fast: s._rd(g)
        return g
    def chunk(s,i,n):
        take=[]
        while s.tiles and len(take)<n and s.tiles[0][0]<=i: take.append(s.tiles.pop(0)[1:])
        o=[]
        for sub,dt in s.cv: o+=e_cvt(sub,dt,s.info[sub]['tag']); s.wr.append((sub,dt))
        s.cv=[]
        heads=[]
        for sub,dt in take:
            I_=s.info[sub]; rc=T1 if sub%2==0 else s.rc2
            if dt==0: heads+=e_head(sub,I_['bad'],I_['tag'],rc)
        o=heads+o
        for sub,dt in take:
            o+=e_pk(sub,dt,s.info[sub]['tag'],T1 if sub%2==0 else s.rc2)
        k=max(1,len(take)-2) if s.tiles and s.tiles[0][0]<=i+1 else len(take)
        for sub,dt in take[:k]: o+=e_cvt(sub,dt,s.info[sub]['tag']); s.wr.append((sub,dt))
        s.cv=take[k:]
        return o
    def done(s): return not(s.tiles or s.cv or s.wr or s.rd or s.st)

NPADS=0
PADAT={}
def SITE(k): return min(9,(k-1)*10//max(NPADS,1)-1+0)
def startA():
    o=[I("; ==== head A, first two key blocks (q-major, as Q arrives)")]
    f0=frag_reads(0,0); f1=frag_reads(0,1,base=SLOT); f2=frag_reads(0,2)
    o+=setrd(sW4)
    o.append(WV("h0Q0")); o+=BAR()
    o+=qreads(0,0)+f0[:8]
    seq=[('q',s,j) for s in (3,4,5) for j in range(4)]+[('k',b,j) for b in (2,3,4,5) for j in range(4)]
    def dm():
        k,x,j=seq.pop(0); it=[]
        if j==0:
            it+=[setm0(slotQ(x) if k=='q' else slotKV(0,x)), I(f"s_add_u32 s{sTmp}, s{sTmp}, 4096") if k=='q' else I(f"s_add_u32 s{sOff}, s{sOff}, 8192")]
        return it+[qdma(0,x,j,sTmp) if k=='q' else kvdma(0,x,j)]
    for i in range(-1,13):
        ex={}; post={}
        if i==-1:
            put(ex,-1,[WL(f0[0])])
            for k in range(8): put(ex,k,f0[8+2*k:10+2*k]+([WL(f0[k+1])] if k<7 else []))
            put(ex,7,dm()+dm()+[WV("h0KV1")]+BAR()+f1[:8])
            put(ex,17,[WL(f1[7])])
        else:
            if i==0:
                for k in range(8): put(ex,k,f1[8+2*k:10+2*k])
            if i==3: put(ex,0,[I("s_waitcnt lgkmcnt(0)")]); put(ex,1,BAR())
            if i%2==0 and i<=8:
                s=i//2+1; qs=qreads(0,s)
                put(ex,2 if i else 8,dm()); put(ex,5 if i else 8,dm())
                if s==4: put(post,9,bias(QREGS,True))
                put(ex,10,[WV(f"h0Q{s}")]); put(ex,11,qs[:2]); put(ex,12,[qs[2]]); put(ex,13,[qs[3]])
                if s==5: put(post,16,bias(QREGS,False))
                put(ex,17,[WL(qs[3])])
            elif i==10:
                put(ex,0,[WV("h0KV2",True)]); put(ex,1,BAR())
                put(ex,2,[I(f"s_add_u32 s{sCur}, s{sW4}, {8*SLOT}")]); put(post,3,setrd(sCur))
                place(ex,f2[:8],lo=4,hi=12)
                put(ex,14,dm()); put(ex,16,dm())
                put(ex,17,[WL(f2[7])])
            elif i==12:
                place(ex,f2[8:],lo=0,hi=13)
                put(ex,14,dm()); put(ex,16,dm())
                put(ex,15,[I(f"s_mov_b32 s{sCur}, s{sW4}")])
            else:
                put(ex,5,dm()); put(ex,10,dm())
        ks=[k for k in range(1,NPADS+1) if SITE(k)==i]
        for k in ks:
            site=[I("s_mov_b64 exec, 0"), I(f"s_branch Lpad{k}"), I(f"Lret{k}:"), I("s_mov_b64 exec, -1")]
            if i%2==0 and 0<=i<=8: ex[10]=site+ex[10]
            else: put(ex,17,site)
        o+=step(i,ex,post,cfg.profS if (i>=6 and i%2==0) or i>9 else 0)
    assert not seq
    return o

def trans():
    o=[I("; ==== head A last two key blocks + head B first two, epilogue of head A streamed")]
    f11=frag_reads(0,11); g0=frag_reads(1,0); g1=frag_reads(1,1,base=SLOT); g2=frag_reads(1,2)
    E=Epi(14,sSd)
    idxA={u:k for k,u in enumerate(LA)}
    for s in range(6):
        E.add(s,60+idxA[(11,s)]+2,(s%4)*SLOT,slotQ(s),sBad,f"O{s}",s<DIRECT,cfg.st,pre=(bias(vW,True) if s==4 else ()))
    Q=lambda s:qreads(1,s)
    q5=Q(5)
    R={61:f11[:8], 62:f11[8:16], 63:f11[16:24], 64:Q(0), 65:Q(1), 67:Q(2), 68:Q(3), 69:g0[:4], 70:g0[4:8], 71:g0[8:16], 72:g1[:8], 73:g0[16:24],
       74:g1[8:18], 75:g1[18:24], 76:Q(4), 78:q5, 81:g2[:4], 82:g2[4:8], 83:g2[8:16], 84:g2[16:24]}
    D={}
    for (k,x),steps in zip([('q',4),('q',5),('k',2),('k',3),('k',4),('k',5)],
                           [[61,62,63,64],[65,66,66,67],[69,70,71,72],[76,77,77,78],[79,79,80,80],[81,82,83,84]]):
        for j,i in enumerate(steps): D.setdefault(i,[]).append((k,x,j))
    for i in range(61,85):
        ex={}; post={}
        rs=R.get(i,[]); lo=0; hi=16
        mx=(unit(i+1)[1]==0)
        if i==61:
            put(ex,0,[WV("h0KV11",True)]); put(ex,1,BAR()); put(post,2,setrd(sCur)); lo=3; hi=12
            put(ex,17,[WL(f11[7])])
            put(ex,2,[I(f"s_add_u32 s{sSd}, s{sH}, s{sQw}")])
        if i==64: put(ex,0,[WV("h1Q3")]); put(ex,7,[WL(f11[23])]); lo=1
        if i==69:
            put(ex,0,[WV("h1KV1",True)]); put(ex,1,BAR()); put(post,2,setrd(sW4)); lo=3
            put(ex,2,[I(f"s_add_u32 s{sOff}, s{sHn}, s{sKVw}")]); put(ex,3,[I(f"s_add_u32 s{sOff}, s{sOff}, 8192")])
        if i==70: hi=12; put(ex,17,[WL(g0[7])])
        if i==72: hi=12; put(ex,17,[WL(g1[7])])
        if i==73: hi=5; put(ex,7,[WL(g0[17])]); put(ex,11,[WL(g0[23])])
        if i==75: hi=6; put(ex,7,[WL(g1[17])]); put(ex,12,[WL(g1[23])]); put(post,9,bias(QREGS,True))
        if i==76: put(ex,0,[WV("h1Q4",True)]); put(ex,1,BAR()); lo=2
        if i==77: put(ex,15,[WL(R[76][3])])
        if i==78: put(ex,0,[WV("h1Q5")]); lo=1
        if i==79: put(ex,15,[WL(q5[3])])
        if i==81:
            put(ex,0,[WV("h1KV2",True)]); put(ex,1,BAR())
            put(ex,2,[I(f"s_add_u32 s{sPe}, s{sW4}, {8*SLOT}")]); put(post,2,setrd(sPe)); lo=4
            put(ex,3,[I(f"s_add_u32 s{sPo}, s{sW4}, {2*SLOT}")])
        if i==82: hi=12; put(ex,17,[WL(g2[7])])
        if i==84: hi=12
        mem=E.mem(2)
        ch=E.chunk(i,cfg.rho)
        free=[g for g in FREE if not(g==16 and (ch or mx)) and not (g==11 and mx)]
        place(ex,rs,lo=lo,hi=hi,free=free)
        dg=[]
        for (k,x,j) in D.get(i,[]):
            pre=[setm0(slotQ(x) if k=='q' else slotKV(1,x)), I(f"s_add_u32 s{sOff}, s{sOff}, {4096 if k=='q' else 8192}")] if j==0 else []
            dg.append(pre+[qdma(1,x,j) if k=='q' else kvdma(1,x,j)])
        place(ex,dg,lo=max(lo,4),hi=16,free=free)
        qlast=max([g for g,v in ex.items() if any(x.meta.get('src','').startswith('h1Q') for x in v)]+[-1])
        need_after=any(kind(gr[-1])=='w' and any(x.meta.get('slot')==gr[-1].meta['wslot'] for x in rs) for gr in mem)
        place(ex,mem,lo=(qlast+1 if need_after else (2 if i in (69,76,81) else 0)),hi=15,free=free)
        put(post,16,ch)
        if i==83:
            put(post,16,bias(vW,False)+[I(f"v_add_u32 v{vD[k]}, {DIRECT*SLOT}, v{vR[k]}") for k in range(2)])
        if i==84:
            spread(ex,0,[I(f"s_mov_b32 s{sT}, 0"), I(f"s_movk_i32 s{sDi}, {SLOT-2048}"), I(f"s_add_u32 s{sSt}, s{sHn}, s{sQw}")])
            put(ex,17,[WV("h1KV3")])
        o+=step(i,ex,post)
    assert E.done()
    return o

def tailB():
    o=[I("; ==== head B last four key blocks: q sub-tiles 0-2 first, then 3-5; epilogue streamed")]
    base=120
    vK2,vV2=vQ,vQ+1
    def fr(b): return frag_reads(1,b,base=slotKV(1,b)*SLOT) if b!=10 else frag_reads(1,b,rk=vK2,rv=vV2)
    F=[fr(b) for b in [9,10,11,8,9,10,11]]
    R={}
    def addR(i,L): R.setdefault(i,[]).extend(L)
    for m in range(7):
        K,V=F[m][:8],F[m][8:]
        if m==0: addR(base+1,K)
        elif m<6: addR(base+3*m-1,K[:3]); addR(base+3*m,K[3:6]); addR(base+3*m+1,K[6:])
        else: addR(base+17,K)
        if m<6:
            addR(base+3*m+1,V[:(0 if m==0 else 5)]); addR(base+3*m+2,V[(0 if m==0 else 5):(8 if m==0 else 10)]); addR(base+3*m+3,V[(8 if m==0 else 10):(16 if m in (0,5) else 15)])
            if m not in (0,5): R.setdefault(base+3*m+4,[]).insert(0,V[15])
        else: addR(base+19,V[:12]); addR(base+20,V[12:])
    E=Epi(vQ+2,sSt)
    idx={u:k for k,u in enumerate(GB)}
    for s_ in range(5):
        sl=3+(s_%2)
        E.add(s_,base+idx[(11,s_)]+2,(sl-2)*SLOT,sl,sBad2,f"P{s_}",True,(cfg.st3 if (cfg.st3 and s_<cfg.n3) else cfg.st2))
    k0=3*cfg.dl; dq=list(range(k0,16)); pend=[]
    o_sub0,o_j0=dunit(k0)
    for i in range(base+1,base+25):
        ex={}; post={}; rel=i-base; lo=0; hi=16
        rs=list(R.get(i,[]))
        if rel==1:
            put(ex,0,[WV("h1KV10",True)]); put(ex,1,BAR())
            put(ex,2,[I(f"s_add_u32 s{sTmp}, s{sW4}, {8*SLOT}")])
            put(post,2,setrd(sW4)); lo=3; hi=12
            put(post,13,setrd(sTmp,vK2,vV2))
        if rel==5: put(ex,0,[WV("h1KV11")]); put(ex,1,BAR()); lo=2
        if rel==12: put(ex,3,TL())
        g=[]
        for rdx,k in pend:
            sub,j=dunit(k); jj=(k-k0)%4
            g.append([WL(rdx),ostore(DR[k&1],jj,cfg.st,sSd,f"O{sub}")]+([I(f"s_add_u32 s{sSd}, s{sSd}, 4096")] if jj==3 else []))
        pend=[]
        place(ex,g,lo=max(lo,3),hi=4)
        if dq:
            k=dq.pop(0); sub,j=dunit(k)
            x=I(f"ds_read_b128 {vr(DR[k&1])}, v{vD[j&1]}{offs((sub-o_sub0)*SLOT+1024*(j-o_j0))}", src=f"O{sub}", slot=slotQ(sub), private=True)
            pend.append((x,k)); place(ex,[x],lo=13,hi=15)
        mem=E.mem(2 if rel<21 else 4, fast=(rel>=21))
        ch=E.chunk(i,cfg.rhoG if rel<20 else cfg.rhoE)
        free=[g_ for g_ in FREE if not(g_==16 and ch)] if rel<24 else list(range(8,16))
        for m in range(7):
            K,V=F[m][:8],F[m][8:]
            needK = base+3*m+2 if m<6 else base+18
            needV = base+3*m+4 if m<6 else base+20
            if i==needK-1:
                put(ex,17,[WL(K[7])])
                if rs and rs[-1] is K[7]: hi=min(hi,13)
            if i==needV:
                late=[x for x in V if x in rs]
                if late:
                    place(ex,late,lo=0,hi=5,free=free); rs=[x for x in rs if x not in late]; lo=max(lo,6)
                    put(ex,7,[WL(V[15-len(late)])]); put(ex,8+(16-len(late))//2-1,[WL(V[15])])
                else: put(ex,7,[WL(V[15])])
        place(ex,rs,lo=lo,hi=hi,free=free)
        place(ex,mem,lo=(0 if rel<23 else 8),hi=(15 if rel<24 else 16),free=free)
        put(post,16,ch)
        o+=step(i,ex,post)
    assert not E.tiles and not E.cv and not dq and not pend and not E.wr and not E.rd
    tag="P5"; sl=5; off=3*SLOT
    rest=[x for g in E.mem(8) for x in g]
    assert E.done()
    pad=max(0,8-len(rest)-len([x for x in ex.get(16,[])]))
    o+=rest+([I(f"s_nop {pad-1}")] if pad else [])+e_head(5,sBad2,tag,T1)
    for half in (0,1):
        for dt in range(4*half,4*half+4): o+=e_pk(5,dt,tag,T1)
        for dt in range(4*half,4*half+4): o+=e_cvt(5,dt,tag)
        for dt in range(4*half,4*half+4): o.append(e_wr(5,dt,off,sl,tag))
    rd=epi_rd(5,off,sl,tag); o+=rd
    st=epi_st(5,cfg.st2,sSt,tag)
    for j in range(4): o+=[WL(rd[j]), st[j]]
    return o

def stamp(k):
    if not cfg.stamps: return []
    op="s_memrealtime" if (cfg.echo>=0 or cfg.rt) else "s_memtime"
    return [I(f"{op} s[{sStamp+4+2*k}:{sStamp+5+2*k}]", skip=True)]

def lane_consts(A,base):
    A("v_and_b32 v4, 3, v0")
    A("v_bfe_u32 v3, v0, 2, 1"); A("v_mul_u32_u24 v9, 2080, v3")
    A("v_bfe_u32 v3, v0, 3, 1"); A("v_lshl_add_u32 v9, v3, 10, v9")
    A("v_lshl_add_u32 v9, v4, 8, v9"); A("v_lshl_add_u32 v9, v2, 4, v9"); A(f"v_add_u32 v9, s{base}, v9")
    for ks in range(4):
        A(f"v_xor_b32 v3, {ks}, v4"); A(f"v_lshl_add_u32 v{vQ+ks}, v3, 6, v9")
    A("v_and_b32 v8, 15, v0"); A("v_xor_b32 v9, v8, v2"); A("v_lshlrev_b32 v10, 8, v2"); A(f"v_add_u32 v10, s{base}, v10")
    A(f"v_lshl_add_u32 v{vR[0]}, v9, 4, v10"); A("v_xor_b32 v9, 4, v9"); A(f"v_lshl_add_u32 v{vR[1]}, v9, 4, v10")
    A("v_lshlrev_b32 v10, 8, v8"); A("v_and_b32 v9, 1, v2"); A("v_lshl_add_u32 v10, v9, 3, v10"); A(f"v_add_u32 v10, s{base}, v10")
    A("v_lshrrev_b32 v9, 1, v2"); A("v_and_b32 v8, 7, v0"); A("v_xor_b32 v9, v9, v8")
    for k in range(4):
        A(f"v_xor_b32 v8, {2*k}, v9"); A(f"v_lshl_add_u32 v{vW[k]}, v8, 4, v10")

CPF_LINES=11
def prologue():
    o=[]
    A=lambda t,**k: o.append(I(t,**k))
    A(f"s_load_dwordx2 s[{sKA}:{sKA+1}], s[0:1], 8"); A(f"s_load_dwordx2 s[{sVB}:{sVB+1}], s[0:1], 16")
    A(f"s_load_dwordx2 s[{sQA}:{sQA+1}], s[0:1], 0"); A(f"s_load_dwordx2 s[{sO}:{sO+1}], s[0:1], 24")
    if cfg.stamps:
        A(f"s_load_dwordx2 s[{sDbg}:{sDbg+1}], s[0:1], 32")
        A(f"s_memtime s[{sStamp}:{sStamp+1}]"); A(f"s_memrealtime s[{sStamp+2}:{sStamp+3}]")
    if cfg.tl:
        A("s_mov_b64 s[90:91], 1"); A("s_memtime s[98:99]"); A("s_memrealtime s[100:101]")
    A("s_cmp_ge_u32 s2, 256"); A("s_cbranch_scc1 Lend")
    A("v_lshrrev_b32 v1, 6, v0"); A("v_and_b32 v0, 63, v0"); A("v_readfirstlane_b32 s3, v1")
    A(f"v_lshlrev_b32 v{vKVB}, 4, v0"); A(f"v_add_u32 v{vKVA}, 1056, v{vKVB}")
    if cfg.diag=='l2only': A("s_and_b32 s62, s2, 7"); A(f"s_mul_i32 s{sH}, s62, {2*HEADB}")
    else: A(f"s_mul_i32 s{sH}, s2, {2*HEADB}")
    A(f"s_mov_b32 s{sKA+2}, {TOTB+4096}"); A(f"s_mov_b32 s{sKA+3}, 0x20000"); A(f"s_mov_b64 s[{sVB+2}:{sVB+3}], s[{sKA+2}:{sKA+3}]")
    A(f"s_mul_i32 s{sW4}, s3, {WREG}"); A(f"s_lshl_b32 s{sKVw}, s3, 11")
    A(f"s_add_u32 s{sOff}, s{sH}, s{sKVw}")
    o.append(setm0(0))
    A("s_waitcnt lgkmcnt(0)")
    A(f"s_sub_u32 s{sKA}, s{sKA}, 1056"); A(f"s_subb_u32 s{sKA+1}, s{sKA+1}, 0")
    o+=[kvdma(0,0,0),kvdma(0,0,2)]
    A(f"s_sub_u32 s{sVB}, s{sVB}, 2080"); A(f"s_subb_u32 s{sVB+1}, s{sVB+1}, 0")
    o+=[kvdma(0,0,1),kvdma(0,0,3)]
    if cfg.cpf:
        A("s_getpc_b64 s[62:63]")
        if cfg.pads: A("Lpc:"); A("s_add_u32 s62, s62, Lmain-Lpc"); A("s_addc_u32 s63, s63, 0")
        A("s_lshr_b32 s4, s2, 3"); A(f"s_mul_i32 s4, s4, {128*CPF_LINES}")
        A(f"v_min_u32 v1, {CPF_LINES-1}, v0"); A("v_lshl_add_u32 v1, v1, 7, s4")
        A("global_load_dword v61, v1, s[62:63]")
    A("v_lshrrev_b32 v2, 4, v0"); A("v_lshlrev_b32 v3, 6, v2"); A(f"v_xor_b32 v{vQB}, v{vKVB}, v3"); A(f"v_add_u32 v{vQA}, 1056, v{vQB}")
    A(f"s_mul_i32 s{sQw}, s3, 24576"); A(f"s_add_u32 s{sTmp}, s{sH}, s{sQw}")
    A(f"s_sub_u32 s{sQB}, s{sQA}, 32"); A(f"s_subb_u32 s{sQB+1}, s{sQA+1}, 0")
    A(f"s_sub_u32 s{sQA}, s{sQA}, 1056"); A(f"s_subb_u32 s{sQA+1}, s{sQA+1}, 0")
    o.append(setm0(slotQ(0)))
    A(f"s_mov_b64 s[{sQA+2}:{sQA+3}], s[{sKA+2}:{sKA+3}]"); A(f"s_mov_b64 s[{sQB+2}:{sQB+3}], s[{sKA+2}:{sKA+3}]")
    o+=[qdma(0,0,j,sTmp) for j in range(4)]
    o.append(setm0(1)); A(f"s_add_u32 s{sOff}, s{sOff}, 8192")
    o+=[kvdma(0,1,j) for j in (0,2,1,3)]
    A(f"s_mov_b32 s{sO+2}, {0 if cfg.diag else TOTB}"); A(f"s_mov_b32 s{sO+3}, 0x20000")
    A(f"s_add_u32 s{sHn}, s{sH}, {HEADB}")
    A(f"s_mov_b32 s{sC}, 0x3e0293ee"); A(f"s_mov_b32 s{sNC}, 0xbe0293ee"); A(f"s_mov_b32 s{sThr}, 0x49800000")
    A(f"s_mov_b32 s{sC2}, 0x3e0293ee"); A(f"s_mov_b32 s{sC2+1}, 0x3e0293ee")
    A(f"s_add_u32 s{sEnd}, s{sW4}, {NSLOT*SLOT}")
    A(f"s_mov_b32 s{sT}, 0")
    if cfg.profO or cfg.oddB: A("s_getreg_b32 s95, hwreg(HW_REG_XCC_ID)")
    A(f"s_mov_b64 s[{sBad}:{sBad+1}], 0"); A(f"s_mov_b64 s[{sBad2}:{sBad2+1}], 0")
    A(f"s_add_u32 s{sXe}, s{sW4}, {8*SLOT}"); A(f"s_add_u32 s4, s{sW4}, {SLOT}"); A(f"s_xor_b32 s{sXe}, s{sXe}, s4")
    A(f"s_add_u32 s4, s{sW4}, {2*SLOT}"); A(f"s_xor_b32 s{sXo}, s4, s{sW4}")
    A("v_and_b32 v3, 7, v0"); A(f"v_mul_u32_u24 v{vKl}, 2080, v3")
    A("v_bfe_u32 v3, v0, 3, 1"); A(f"v_lshl_add_u32 v{vKl}, v3, 8, v{vKl}")
    A(f"v_lshl_add_u32 v{vKl}, v2, 4, v{vKl}"); A(f"v_subrev_u32 v{vKl}, s{sW4}, v{vKl}")
    A("v_bfe_u32 v3, v0, 2, 3"); A(f"v_mul_u32_u24 v{vVl}, 2080, v3")
    A("v_lshrrev_b32 v3, 5, v0"); A(f"v_lshl_add_u32 v{vVl}, v3, 8, v{vVl}")
    A("v_and_b32 v4, 3, v0"); A(f"v_lshl_add_u32 v{vVl}, v4, 3, v{vVl}")
    A(f"v_add_u32 v{vVl}, 1024, v{vVl}"); A(f"v_subrev_u32 v{vVl}, s{sW4}, v{vVl}")
    A("v_mov_b32 v11, 0x3f803f80"); A("v_cmp_eq_u32 vcc, 0, v4")
    lane_consts(A,4)
    A("v_cndmask_b32 v11, 0, v11, vcc")
    for k in range(4): A(f"v_accvgpr_write_b32 a{ONES+k}, v11")
    for s in (1,2):
        o.append(setm0(slotQ(s))); A(f"s_add_u32 s{sTmp}, s{sTmp}, 4096")
        o+=[qdma(0,s,j,sTmp) for j in range(4)]
    return o

def slow_path():
    o=[]
    A=lambda t,**k: o.append(I(t,**k))
    sP=sCur
    A("Lslow:")
    A("s_waitcnt vmcnt(0) lgkmcnt(0)")
    A(f"s_mul_i32 s{sP}, s3, {SLOT}")
    A(f"s_add_u32 s{sTmp}, s{sP}, s{sW4}")
    o+=setrd(sTmp)
    A(f"v_lshrrev_b32 v0, 4, v{vKVB}"); A("v_lshrrev_b32 v2, 4, v0")
    lane_consts(A,sTmp)
    A(f"s_mov_b32 m0, s{sTmp}")
    A(f"s_add_u32 s{sOff}, s{sH}, s{sQw}")
    for s in range(6):
        o+=[qdma(0,s,j) for j in range(4)]
        A("s_waitcnt vmcnt(0)")
        for ks in range(4): A(f"ds_read_b128 {ar(Qr(s,ks))}, v{vQ+ks}")
        A(f"s_add_u32 s{sOff}, s{sOff}, 4096")
        A("s_waitcnt lgkmcnt(0)")
    for s in range(6): A(f"v_mov_b32 v{MN+s}, 0xff800000")
    def loadkv():
        for j in range(4):
            A(f"s_add_u32 m0, s{sP}, {j*WREG}"); A("s_nop 0")
            o.extend(kvdma(0,0,jj) for jj in range(4))
            A(f"s_add_u32 s{sOff}, s{sOff}, 2048")
        A("s_waitcnt vmcnt(0)")
    A(f"s_mov_b32 s{sOff}, s{sH}"); A(f"s_mov_b32 s{sT}, 0")
    A("Lslow1:")
    loadkv()
    o+=frag_reads(0,0,tags=False)[:8]
    A("s_waitcnt lgkmcnt(0)")
    for s in range(6):
        o+=qk_mfmas(s,0,0)
        A("s_nop 7")
        for e in range(0,8,2): A(f"v_max3_f32 v{MN+s}, v{MN+s}, v{SB[0]+e}, v{SB[0]+e+1}")
    A(f"s_add_u32 s{sT}, s{sT}, 1"); A(f"s_cmp_lt_u32 s{sT}, 12"); A("s_cbranch_scc1 Lslow1")
    for s in range(6):
        m=MN+s
        A(f"v_mov_b32 v{T1}, v{m}"); A("s_nop 1"); A(f"v_permlane16_swap_b32 v{m}, v{T1}"); A(f"v_max_f32 v{m}, v{m}, v{T1}")
        A(f"v_mov_b32 v{T1}, v{m}"); A("s_nop 1"); A(f"v_permlane32_swap_b32 v{m}, v{T1}"); A(f"v_max_f32 v{m}, v{m}, v{T1}")
        A(f"v_mul_f32 v{m}, s{sNC}, v{m}")
    for r in range(64,256): A(f"v_mov_b32 v{r}, 0")
    for r in range(224,248): A(f"v_accvgpr_write_b32 a{r}, 0")
    A(f"s_mov_b32 s{sOff}, s{sH}"); A(f"s_mov_b32 s{sT}, 0")
    A("Lslow2:")
    loadkv()
    fr=frag_reads(0,0,tags=False)
    for k in range(3):
        o+=fr[8*k:8*k+8]; A("s_waitcnt lgkmcnt(0)")
    for s in range(6):
        o+=qk_mfmas(s,0,0)
        A("s_nop 7")
        for gp in sm_gaps(s,0,0): o+=gp
        A("s_nop 1")
        o+=pv_mfmas(s,0,0,False)
    A(f"s_add_u32 s{sT}, s{sT}, 1"); A(f"s_cmp_lt_u32 s{sT}, 12"); A("s_cbranch_scc1 Lslow2")
    A("s_nop 7")
    A(f"s_add_u32 s{sSt}, s{sH}, s{sQw}")
    for s in range(6):
        o+=e_head(s,None,None,T1)
        for dt in range(8): o+=e_pk(s,dt,None,T1)
        for dt in range(8): o+=e_cvt(s,dt,None)
        for dt in range(8): o.append(e_wr(s,dt,0,None,None))
        o+=epi_rd(s,0,None)+[I("s_waitcnt lgkmcnt(0)")]+epi_st(s,"",sSt)
        A(f"s_add_u32 s{sSt}, s{sSt}, 4096")
    A("s_branch Lslow_ret")
    for x in o:
        for k in ('tag','slot','wslot','wtag'): x.meta.pop(k,None)
    return o

def resolve(trace):
    vm=[]; lg=[]
    for x in trace:
        if x.label or x.meta.get('skip'): continue
        if 'auto_vm' in x.meta:
            idx=[k for k,y in enumerate(vm) if y.meta.get('tag')==x.meta['auto_vm']]
            n=min(63,len(vm)-1-max(idx)); x.text=x.text.replace("vmcnt(AUTO)",f"vmcnt({n})"); x.meta['loose_ok']=True
        if 'auto_lg' in x.meta:
            k=[i for i,y in enumerate(lg) if y is x.meta['auto_lg']]
            assert k, "WL target not issued before wait: "+x.meta['auto_lg'].text
            n=min(15,len(lg)-1-k[0]); x.text=x.text.replace("lgkmcnt(AUTO)",f"lgkmcnt({n})")
        if x.kind=='vmem': vm.append(x)
        if x.kind=='ds': lg.append(x)

def build():
    P=prologue(); SA=startA(); TR=trans(); TB=tailB()
    txt=lambda L:[x.text for x in L if not x.text.startswith(';')]
    assert txt(loopA2(0))==txt(loopA2(1))
    tb=range(1,3) if cfg.profB0 else range(3)
    for t in tb: assert txt(loopB(t))==txt(loopB(tb[0]))
    if cfg.loopR:
        assert txt(rampA(0))==txt(rampA(1)); RAt=rampA(0)+rampA(1); RA=[I(".p2align 3"),I("LloopA1:")]+rampA(0)
    else: RA=RAt=rampA()
    PB_=peelB() if cfg.profB0 else []
    extra=[]
    if cfg.profO:
        RO=rampA(prof=cfg.profO)
        t2=prologue()+startA()+RO+midA()+loopA2(0); resolve(t2)
        for p in check_trace([x for x in t2 if not x.meta.get('skip')]): print("ODD:",p)
        RA=[I("s_bitcmp1_b32 s95, 0"), I("s_cbranch_scc1 LrampO")]+RA+[I("s_branch LrampJ"), I("LrampO:")]+RO+[I("LrampJ:")]
    if cfg.midprof:
        MA=staticA(); trace=P+SA+MA+TR+PB_
    else: trace=P+SA+RAt+midA()+loopA2(0)+loopA2(1)+TR+PB_
    for t in tb: trace+=loopB(t)
    trace+=TB
    resolve(trace)
    probs=check_trace([x for x in trace if not x.meta.get('skip')])
    sp=slow_path()
    probs+=check_trace(sp+slow_path())
    seen=set()
    for p in probs:
        if p not in seen: print(p); seen.add(p)
    nd=(lambda L:[x for x in L if not getattr(x,'dma',False)]) if cfg.diag=='nodma' else (lambda L:L)
    if cfg.pads: P=P+[I("s_branch Lmain"), I(".p2align 12"), I("Lmain:")]
    if cfg.midprof: S=list(P)+stamp(0)+SA+stamp(1)+nd(MA)
    else: S=list(P)+stamp(0)+SA+stamp(1)+nd(RA)+midA()+[I(".p2align 3"),I("LloopA2:")]+nd(loopA2(0))
    if cfg.oddB: PB_=[I("s_bitcmp1_b32 s95, 0"), I(f"s_cselect_b32 s{sT}, -1, 0"), I("s_cbranch_scc1 LloopB")]+PB_
    S+=stamp(2)+nd(TR)+stamp(3)+nd(PB_)+[I(".p2align 3"),I("LloopB:")]+nd(loopB(tb[0]))
    S+=stamp(4)+TB+stamp(5)
    if cfg.slow:
        S+=[I(f"s_or_b64 s[62:63], s[{sBad}:{sBad+1}], s[{sBad2}:{sBad2+1}]"), I("s_barrier"), I("s_cbranch_scc1 Lslow_entry")]
    S+=[I("Lfin:")]
    if cfg.stamps:
        S+=[I("s_waitcnt vmcnt(0)"), I(f"s_memtime s[{sStamp+16}:{sStamp+17}]"), I(f"s_memrealtime s[{sStamp+18}:{sStamp+19}]"), I("s_waitcnt lgkmcnt(0)")]
        if cfg.echo>=0:
            esrc=[sStamp+2]+[sStamp+4+2*k for k in range(6)]+[sStamp+18]
            S+=[I(f"s_add_u32 s62, s{esrc[cfg.echo]}, 10000"), I("Lspin:"), I("s_sleep 2"), I("s_memrealtime s[88:89]"), I("s_waitcnt lgkmcnt(0)"),
                I("s_sub_u32 s63, s88, s62"), I("s_cmp_lt_i32 s63, 0"), I("s_cbranch_scc1 Lspin")]
        S+=[I(f"v_mov_b32 v8, s{sStamp+2}"), I(f"v_mov_b32 v9, s{sStamp+18}")]
        srcs=[sStamp+4+2*k for k in range(6)]+[sStamp+(18 if cfg.rt else 16)]
        for k,r in enumerate(srcs):
            S+=[I(f"s_sub_u32 s{sTmp}, s{r}, s{sStamp+(2 if cfg.rt else 0)}"), I(f"v_mov_b32 v{10+k}, s{sTmp}")]
        S+=[I("v_mov_b32 v17, 0"), I("v_mov_b32 v18, 0"), I("s_getreg_b32 s62, hwreg(HW_REG_XCC_ID)"), I("v_mov_b32 v19, s62")]
        S+=[I(f"s_mov_b32 s28, s{sDbg}"), I(f"s_mov_b32 s29, s{sDbg+1}"), I(f"s_mov_b32 s30, {cfg.dbgsz}"), I("s_mov_b32 s31, 0x20000"),
            I("s_lshl_b32 s62, s2, 8"), I("s_lshl_b32 s63, s3, 6"), I("s_add_u32 s62, s62, s63"), I("v_mov_b32 v1, 0")]
        if cfg.tl:
            S+=TL()+[I("s_waitcnt lgkmcnt(0)")]+TL()+[I("s_lshl_b32 s61, s62, 3"), I("s_add_u32 s61, s61, 65536"), I(f"v_lshrrev_b32 v5, 2, v{vKVB}"),
                I("buffer_store_dword v0, v5, s[28:31], s61 offen"), I("buffer_store_dword v61, v5, s[28:31], s61 offen offset:256")]
        S+=[I("s_mov_b64 exec, 1"),
            I("buffer_store_dwordx4 v[8:11], v1, s[28:31], s62 offen"), I("buffer_store_dwordx4 v[12:15], v1, s[28:31], s62 offen offset:16"), I("buffer_store_dwordx4 v[16:19], v1, s[28:31], s62 offen offset:32")]
    S+=[I("Lend:"), I("s_endpgm")]
    if cfg.slow:
        S+=[I("Lslow_entry:"), I(f"s_cmp_lg_u64 s[{sBad}:{sBad+1}], 0"), I("s_cbranch_scc1 Lslow"),
            I("Lslow_ret:"), I(f"s_cmp_eq_u64 s[{sBad2}:{sBad2+1}], 0"), I("s_cbranch_scc1 Lfin"),
            I(f"s_mov_b64 s[{sBad2}:{sBad2+1}], 0"), I(f"s_mov_b32 s{sH}, s{sHn}")]
        S+=sp
    else: S+=[I(".fill 2048, 4, 0xbf810000")]
    return S, bool([p for p in probs if not p.startswith("NOTE")])

from gen import HDR, FTR
def isize(x):
    return SZ[x.text]
def write(fn):
    S,bad=build()
    if cfg.pads and SZ:
        out=[]; addr=None; k=1
        for n,x in enumerate(S):
            out.append(x)
            if x.text=="Lmain:": addr=0; continue
            if addr is None: continue
            if x.text==".p2align 3": addr=(addr+7)&~7; continue
            if x.label: continue
            a0=addr; addr+=SZ.get(x.text,4)
            if k<=NPADS and addr>=k*cfg.pads+cfg.padoff and (x.kind=='mfma' or addr>=k*cfg.pads+cfg.padoff+24) and not x.op.startswith('s_cbranch') and not x.op.startswith('s_branch') and x.text!='s_mov_b64 exec, 0':
                out+=[I(f"Lpad{k}:"), I(f"s_cbranch_execz Lret{k}")]; addr+=4; k+=1
        assert k==NPADS+1,(k,NPADS)
        S=out
    with open(fn,"w") as f:
        f.write(HDR%(LDSB,NAME,NAME,NAME))
        for x in S:
            t=x.text
            if cfg.drop=='exp' and t.startswith('v_exp'): t=t.replace('v_exp_f32','v_mov_b32')
            if cfg.drop=='exp0' and t.startswith('v_exp'): continue
            if cfg.drop=='fma' and t.startswith('v_fma'): continue
            if cfg.drop=='sum' and t.startswith(MF+' a['): continue
            f.write((t if (t.endswith(':') or t.startswith('.')) else "    "+t)+"\n")
        f.write(FTR%NAME)
    return bad
SZ={}
def sizes(co):
    import subprocess
    out=subprocess.run(["llvm-objdump","-d","--mcpu=gfx950",co],capture_output=True,text=True).stdout
    sym={m.group(2):int(m.group(1),16) for m in re.finditer(r"^([0-9a-f]+) <(\w+)>:",out,re.M)}
    last=int(re.findall(r"// ([0-9A-F]{12}):",out)[-1],16)
    st=sym.get('Lmain',sym[NAME])
    return sym.get('Lfin',sym.get('Lend'))-st, last+4-st
if __name__=="__main__":
    ap=argparse.ArgumentParser()
    ap.add_argument("out"); ap.add_argument("opts",nargs="*")
    a=ap.parse_args()
    for kv in a.opts:
        k,v=kv.split("=",1)
        cur=getattr(cfg,k)
        setattr(cfg,k, (v in("1","True","true")) if isinstance(cur,bool) else (int(v) if isinstance(cur,int) else v.replace("+"," ")))
    from mkco import build as mk
    for it in range(4):
        bad=write(a.out); co=mk(a.out); hot,tot=sizes(co)
        need=-(-hot//(32*128))
        done=(need==CPF_LINES)
        CPF_LINES=need
        if cfg.pads:
            import subprocess
            lst=subprocess.run(["llvm-objdump","-d","--mcpu=gfx950",co],capture_output=True,text=True).stdout
            lst=lst[lst.index("<Lmain>:"):]
            enc=[len(m.group(1).split())*4 for m in re.finditer(r"// [0-9A-F]{12}: ([0-9A-F ]+)",lst)]
            src=open(a.out).read(); src=src[src.index("Lmain:\n"):].split("\n")[1:]
            j=0; addr=0
            for ln in src:
                t=ln.strip()
                if t.startswith(".section"): break
                if t==".p2align 3":
                    if addr%8: j+=1; addr+=4
                    continue
                if not t or t.startswith(";") or t.endswith(":") or t.startswith("."): continue
                SZ[t]=enc[j]; addr+=enc[j]; j+=1
            np_=(hot-64-cfg.padoff)//cfg.pads
            if np_!=NPADS: done=False
            NPADS=np_
        if done and it>0: break
    assert 32*128*CPF_LINES+256<=tot, (hot,tot)
    print(co, "PROBLEMS" if bad else "clean", "hot",hot,"total",tot,"cpf lines",CPF_LINES)
```

```python
import re
REG = re.compile(r'\b([vas])(?:\[(\d+):(\d+)\]|(\d+))')
def regs_of(tok):
    out=[]
    tok=tok.strip()
    if tok in ('vcc',): return [('s','vcc')]
    if tok=='m0': return [('s','m0')]
    if tok=='exec': return [('s','exec')]
    m=REG.fullmatch(tok.lstrip('-'))
    if not m: return out
    k=m.group(1)
    if m.group(2) is not None: return [(k,i) for i in range(int(m.group(2)),int(m.group(3))+1)]
    return [(k,int(m.group(4)))]
TRANS=('v_exp_f32','v_rcp_f32','v_log_f32','v_rsq_f32','v_sqrt_f32')
class I:
    def __init__(s, text, **meta):
        s.text=text; s.meta=meta
        t=text.split(';')[0].strip()
        s.label = t.endswith(':') or t.startswith('.') or t==''
        s.rd=[]; s.wr=[]; s.op=''; s.kind='other'
        if s.label: return
        p=t.split(None,1); s.op=p[0]
        ops=[]
        if len(p)>1:
            ops=[x.strip() for x in re.split(r',(?![^\[]*\])', p[1])]
            if ops:
                last=ops[-1].split()
                ops[-1]=last[0]; s.mods=last[1:]
        op=s.op
        R=lambda i: regs_of(ops[i]) if i<len(ops) else []
        if op.startswith('v_mfma'):
            s.kind='mfma'; s.wr=R(0); s.A=R(1); s.B=R(2); s.C=R(3); s.rd=s.A+s.B+s.C
            s.passes=4 if '16x16x32' in op else 8
        elif op.startswith('v_cmp'):
            s.kind='valu'; s.wr=R(0); s.rd=R(1)+R(2)
        elif op.startswith('v_permlane'):
            s.kind='valu'; s.wr=R(0)+R(1); s.rd=R(0)+R(1)
        elif op.startswith('v_readfirstlane') or op.startswith('v_readlane') or op.startswith('v_writelane'):
            s.kind='valu'; s.wr=R(0); s.rd=R(1)+R(2)
        elif op.startswith('v_'):
            s.kind='valu'; s.wr=R(0); s.rd=sum((R(i) for i in range(1,len(ops))),[])
            if op.startswith('v_fmac') or op.startswith('v_dot2c'): s.rd+=R(0)
        elif op.startswith('ds_read'):
            s.kind='ds'; s.wr=R(0); s.rd=R(1)
        elif op.startswith('ds_write'):
            s.kind='ds'; s.rd=R(0)+R(1)
        elif op.startswith('buffer_load') or op.startswith('global_load'):
            s.kind='vmem'
            if ' lds' in t: s.rd=R(0)+R(1)+R(2)+[('s','m0')]; s.dma=True
            else: s.wr=R(0); s.rd=R(1)+R(2)+R(3)
        elif op.startswith('buffer_store') or op.startswith('global_store') or op.startswith('buffer_atomic'):
            s.kind='vmem'; s.store=True; s.rd=R(0)+R(1)+R(2)+R(3); s.data=R(0) if op.startswith('buffer') else R(1)
        elif op.startswith('s_load') or op.startswith('s_memtime') or op.startswith('s_memrealtime'):
            s.kind='smem'; s.wr=R(0); s.rd=R(1)
        elif op in ('s_waitcnt','s_barrier','s_nop','s_endpgm','s_setprio','s_sleep') or op.startswith('s_cbranch') or op=='s_branch':
            s.kind='ctl'
        elif op.startswith('s_cmp') or op.startswith('s_bitcmp'):
            s.kind='salu'; s.rd=R(0)+R(1)
        elif op.startswith('s_'):
            s.kind='salu'; s.wr=R(0); s.rd=sum((R(i) for i in range(1,len(ops))),[])
        else:
            raise ValueError("unknown instr "+text)
    def states(s):
        if s.label: return 0
        if s.op=='s_nop': return int(s.text.split()[1],0)+1
        return 1

def check_trace(tr, verbose=True):
    probs=[]
    tr=[x for x in tr if not x.label]
    pos=[]; p=0
    for x in tr:
        pos.append(p); p+=x.states()
    W=24
    for j,c in enumerate(tr):
        i=j-1
        while i>=0:
            a=tr[i]
            d=pos[j]-pos[i]-a.states()
            if d>W: break
            need=0; why=''
            aw=set(a.wr);
            def ov(x,y): return bool(set(x)&set(y))
            if a.kind=='valu':
                vw=[r for r in a.wr if r[0] in 'va']; sw=[r for r in a.wr if r[0]=='s']
                if c.kind=='mfma' and ov(vw,c.rd): need,why=2,'valu->mfma'
                if c.op.startswith('v_permlane') and ov(vw,c.rd): need,why=max(need,2),'valu->permlane'
                if (c.op.startswith('v_readfirstlane') or c.op.startswith('v_readlane')) and ov(vw,c.rd): need,why=max(need,1),'valu->readlane'
                if a.op in TRANS and c.kind=='valu' and c.op not in TRANS and ov(vw,c.rd): need,why=max(need,1),'trans->valu'
                if sw and c.kind=='vmem' and ov(sw,c.rd): need,why=max(need,5),'valu sgpr->vmem'
                if sw and c.kind=='valu' and (ov(sw,c.rd) or (('s','vcc') in sw and 'vcc' in c.text.split(',',1)[-1])): need,why=max(need,2),'valu sgpr->valu'
            if a.kind=='mfma':
                n1={4:8,8:12}[a.passes]; n2={4:6,8:10}[a.passes]; n3={4:3,8:7}[a.passes]
                if c.kind=='mfma':
                    if ov(a.wr,c.A+c.B): need,why=n1,'mfma D->A/B'
                    if ov(a.wr,c.C) and not (a.wr==c.C and a.passes==c.passes): need,why=max(need,n2),'mfma D->C overlap'
                elif c.kind=='valu':
                    if ov(a.wr,c.rd+c.wr): need,why=n1,'mfma D->valu'
                    if ov(a.C,c.wr): need,why=max(need,n3),'mfma C WAR valu'
                elif c.kind in('ds','vmem'):
                    if ov(a.wr,c.rd+c.wr): need,why=n1,'mfma D->mem'
            if a.kind=='salu' and ('s','m0') in a.wr and getattr(c,'dma',False): need,why=max(need,1),'m0->dma'
            if getattr(a,'store',False) and 'x4' in a.op and c.kind in('valu','mfma','ds','vmem') and ov(a.data,c.wr): need,why=max(need,2),'store data WAR'
            if d<need: probs.append(f"HAZARD {why}: need {need} have {d}: [{a.text}] -> [{c.text}]")
            i-=1
    lg=[]
    vm=[]
    pend={}
    landed=set();
    visible=set()
    slot_readers={}
    slot_content={}
    slot_busy={}
    content={}
    for j,c in enumerate(tr):
        for r,t in c.meta.get('expect',{}).items():
            if content.get(r)!=t: probs.append(f"SEMANTIC {r} holds {content.get(r)} expected {t} at [{c.text}]")
        for r,t in c.meta.get('set',{}).items(): content[r]=t
        if c.kind=='ds' and c.meta.get('src'):
            for r in c.wr: content[r]=c.meta['src']
        if c.op=='s_waitcnt':
            m=re.search(r'vmcnt\((\d+)\)',c.text)
            if m:
                n=int(m.group(1))
                if 'need' in c.meta:
                    tag=c.meta['need']
                    idx=[k for k,x in enumerate(vm) if tr[x].meta.get('tag')==tag]
                    loosest = len(vm)-1-max(idx) if idx else None
                    if verbose and loosest is not None and loosest!=n and not c.meta.get('loose_ok'): probs.append(f"NOTE wait {c.text} for {tag}: loosest N={loosest}")
                while len(vm)>n:
                    x=vm.pop(0)
                    for r in tr[x].wr:
                        if pend.get(r)==('vm',x): del pend[r]
                    tr[x].done=True
            m=re.search(r'lgkmcnt\((\d+)\)',c.text)
            if m:
                n=int(m.group(1))
                if any(tr[x].kind=='smem' for x in lg) and n!=0: probs.append("smem outstanding with counted lgkm wait: "+c.text)
                while len(lg)>n:
                    x=lg.pop(0)
                    for r in tr[x].wr:
                        if pend.get(r)==('lg',x): del pend[r]
                    tr[x].done=True
            continue
        for r in c.rd+c.wr:
            if r in pend: probs.append(f"UNWAITED {r} from [{tr[pend[r][1]].text}] used by [{c.text}]")
        if c.op=='s_barrier':
            tags={}
            for k in range(j):
                x=tr[k]
                if getattr(x,'dma',False) and 'tag' in x.meta:
                    key=(x.meta['tag'],x.meta.get('part'))
                    tags.setdefault(key,True)
                    if not getattr(x,'done',False): tags[key]=False
            visible={t for t,ok in tags.items() if ok}
            for sl,rs in slot_readers.items():
                slot_readers[sl]=[x for x in rs if not getattr(tr[x],'done',False)]
        if c.kind=='ds' and c.meta.get('wslot') is not None:
            sl=c.meta['wslot']
            for x in slot_readers.get(sl,[]):
                if not tr[x].meta.get('private'): probs.append(f"DSWRITE into slot {sl} w/o barrier after shared read [{tr[x].text}]")
            if any(getattr(tr[k],'dma',False) and tr[k].meta.get('slot')==sl and not getattr(tr[k],'done',False) for k in range(j)): probs.append(f"DSWRITE into slot {sl} while dma pending")
            slot_content[sl]=c.meta['wtag']
        if c.kind=='ds' and 'src' in c.meta:
            tag=c.meta['src']; sl=c.meta['slot']
            if slot_content.get(sl)!=tag: probs.append(f"SLOT {sl} holds {slot_content.get(sl)} but read wants {tag}: {c.text}")
            if c.meta.get('private'):
                if any(getattr(tr[k],'dma',False) and tr[k].meta.get('tag')==tag and not getattr(tr[k],'done',False) for k in range(j)): probs.append(f"READ of {tag} before landed: {c.text}")
            else:
                if (tag,c.meta.get('part')) not in visible: probs.append(f"READ of {tag} not visible (no wait+barrier): {c.text}")
            slot_readers.setdefault(sl,[]).append(j)
        if getattr(c,'dma',False) and 'tag' in c.meta:
            sl=c.meta['slot']
            for x in slot_readers.get(sl,[]):
                if tr[x].meta.get('private'):
                    if not getattr(tr[x],'done',False): probs.append(f"DMA {c.meta['tag']} into slot {sl} while own read pending")
                else: probs.append(f"DMA {c.meta['tag']} into slot {sl} w/o barrier after read [{tr[x].text}]")
            slot_readers[sl]=[]
            slot_content[sl]=c.meta['tag']
        if c.kind in('ds','smem'):
            c.done=False
            lg.append(j)
            for r in c.wr: pend[r]=('lg',j)
        if c.kind=='vmem':
            c.done=False
            vm.append(j)
            if len(vm)>63: probs.append("vmcnt overflow >63 at "+c.text)
            for r in c.wr: pend[r]=('vm',j)
    return probs
```

```python
import sys, argparse, re, functools
sys.path.insert(0,'work')
from asmlib import I, check_trace
NAME="standalone__gqa_softmax__near_ridge_kernel"
SLOT=16640; WREG=4160; NSLOT=9
LDSB=NSLOT*SLOT
HEADB=98304
TOTB=50331648

class Cfg:
    ld="nt"; st="sc1"; st2="nt"
    stamps=False; rt=False; tl=False; dbgsz=0x400000; echo=-1; diag=''
    slow=True; cpf=True
    rho=3; rhoG=3; rhoE=8
    prof='47,47,44,40'
    loopR=False
    profB='00,00'
    profB0='40,20'
    profO=''
    oddB=False
    midprof=''
    profS=0
    G=1
    rho2=8; nd1=13
    tls=False
    su=0
    bar11=0
    pads=0
    padoff=0
    st3=''; n3=3
    pkf=0
    drop=''
    dl=0
cfg=Cfg()

def O(s,dt): return 64+32*s+4*dt
SB=[16,24]; PB=[32,36]
MN=40
vK,vV,vKl,vVl=46,47,48,49
vD=[50,51]
vQ=52
vR=[56,63]
vKVA,vKVB,vQA,vQB=57,58,59,60
vW=[5,6,7,62]
T0,T1,T2,T3=1,2,3,4
DR=[8,12]
QREGS=[vQ+k for k in range(4)]
def Qr(s,ks): return 16*s+4*ks
def Kf(par,i): return 96+32*par+4*i
def Vf(par,dt): return 160+32*par+4*dt
def Lr(s): return 224+4*s
ONES=248
sKA,sVB,sQA,sQB,sO=8,12,16,20,24
sOff,sCur,sC,sH,sW4,sT,sPe,sEnd,sKVw,sQw,sThr=40,42,43,44,45,46,47,48,49,50,51
sBad=52; sBad2=96
sTmp,sSt,sNC,sHn,sDbg=55,57,58,59,60
sSd,sDi=41,54
sStamp=64
sPo,sXe,sXo=92,93,94
sC2=38

def vr(a,n=4): return f"v[{a}:{a+n-1}]"
def ar(a,n=4): return f"a[{a}:{a+n-1}]"
def sr(a,n=4): return f"s[{a}:{a+n-1}]"
def offs(o): return f" offset:{o}" if o else ""

def slotKV(h,b):
    if b<2: return b
    if h==0: return (6+b)%9
    return [8,0,1,2][(b-2)%4]
def slotQ(s): return 2+s
UOFF=[0,1024,2080,3104]
def dma(j,tag,slot,q,off=sOff):
    A,B,va,vb=(sQA,sQB,vQA,vQB) if q else (sKA,sVB,vKVA,vKVB)
    p=f" {cfg.ld}" if cfg.ld else ""
    return I(f"buffer_load_dwordx4 v{[va,va,vb,vb][j]}, {sr([A,B,A,B][j])}, s{off} offen{offs(UOFF[j])}{p} lds", tag=tag, slot=slot, part=(None if q else 'KV'[j&1]))
def kvdma(h,b,j,off=sOff): return dma(j,f"h{h}KV{b}",slotKV(h,b),False,off)
def qdma(h,s,j,off=sOff): return dma(j,f"h{h}Q{s}",slotQ(s),True,off)
def pdma(n,j):
    if n<18: return kvdma(0,n-6,j)
    if n<20: return kvdma(1,n-18,j)
    return qdma(1,n-20,j)
def setm0(slot): return I(f"s_add_u32 m0, s{sW4}, {slot*SLOT}") if slot else I(f"s_mov_b32 m0, s{sW4}")
def frag_reads(h,b,base=0,rk=vK,rv=vV,tags=True):
    m=dict(src=f"h{h}KV{b}",slot=slotKV(h,b)) if tags else {}
    par=b&1
    return [I(f"ds_read_b128 {ar(Kf(par,i))}, v{rk}{offs(base+(i//4)*512+(i%4)*64)}",part='K',**m) for i in range(8)]+\
           [I(f"ds_read_b64_tr_b16 {ar(Vf(par,i//2)+2*(i%2),2)}, v{rv}{offs(base+(i%2)*512+(i//2)*32)}",part='V',**m) for i in range(16)]
def qreads(h,s): return [I(f"ds_read_b128 {ar(Qr(s,ks))}, v{vQ+ks}{offs((s%4)*SLOT)}", src=f"h{h}Q{s}", slot=slotQ(s), private=True) for ks in range(4)]
def bias(regs,up): return [I(f"{'v_add_u32' if up else 'v_subrev_u32'} v{r}, {4*SLOT}, v{r}") for r in regs]
def setrd(reg,rk=vK,rv=vV): return [I(f"v_add_u32 v{rk}, s{reg}, v{vKl}"), I(f"v_add_u32 v{rv}, s{reg}, v{vVl}")]

FA=[(b,s) for s in range(6) for b in (0,1)]
LA=[(10,0),(10,1),(10,2),(11,0),(11,1),(10,3),(11,2),(10,4),(11,3),(10,5),(11,4),(11,5)]
FB=[(0,0),(0,1),(1,0),(0,2),(1,1),(0,3),(1,2),(0,4),(1,3),(0,5),(1,4),(1,5)]
MID=[(b,s) for b in range(2,10) for s in range(6)]
GB=[(b,s) for b in (8,9,10,11) for s in (0,1,2)]+[(8,3),(8,4),(8,5),(9,3),(9,4),(9,5),(10,3),(11,3),(10,4),(11,4),(10,5),(11,5)]
LB=[(10,0),(10,1),(10,2),(11,0),(11,1),(11,2),(10,3),(11,3),(10,4),(11,4),(10,5),(11,5)]
LQ=[(b,s) for s in range(6) for b in (10,11)]
UNITS=[]
def set_units():
    UNITS[:]=[(0,)+u for u in FA+MID+LA]+[(1,)+u for u in (FB+MID[:36]+GB if cfg.G==1 else FB+MID+(LB if cfg.G==0 else LQ))]
def unit(i): return UNITS[i] if 0<=i<len(UNITS) else None

MF="v_mfma_f32_16x16x32_bf16"
def qk_mfmas(s,kpar,sb,u=None):
    o=[]
    for i in range(8):
        kt,ks=divmod(i,4); d=SB[sb]+4*kt
        x=I(f"{MF} {vr(d)}, {ar(Kf(kpar,i))}, {ar(Qr(s,ks))}, {'0' if ks==0 else vr(d)}")
        if u:
            x.meta['expect']={**{r:f"h{u[0]}KV{u[1]}" for r in x.A}, **{r:f"h{u[0]}Q{u[2]}" for r in x.B}}
            x.meta['set']={r:f"S{u}" for r in x.wr}
        o.append(x)
    return o
def pv_mfmas(s,vpar,pb,first,u=None):
    o=[I(f"{MF} {vr(O(s,dt))}, {ar(Vf(vpar,dt))}, {vr(PB[pb])}, {'0' if first else vr(O(s,dt))}") for dt in range(8)]
    o.append(I(f"{MF} {ar(Lr(s))}, {ar(ONES)}, {vr(PB[pb])}, {'0' if first else ar(Lr(s))}"))
    if u:
        cnt=sum(1 for y in UNITS[:UNITS.index(u)] if y[0]==u[0] and y[2]==u[2])
        for k,x in enumerate(o):
            e={r:f"P{u}" for r in x.B}
            if k<8: e.update({r:f"h{u[0]}KV{u[1]}" for r in x.A})
            if not first: e.update({r:f"O{u[0]}n{cnt}" for r in x.wr})
            x.meta['expect']=e; x.meta['set']={r:f"O{u[0]}n{cnt+1}" for r in x.wr}
    return o
FREE=(5,11,16)
def sm_gaps(s,sb,pb,u=None):
    S=SB[sb]; P=PB[pb]
    T=(lambda **k:k) if u else (lambda **k:{})
    f=lambda e: I(f"v_fma_f32 v{S+e}, v{S+e}, s{sC}, v{MN+s}", **T(expect={('v',S+e):f"S{u}",('v',MN+s):f"M{u and u[0]}"}))
    x=lambda e: I(f"v_exp_f32 v{S+e}, v{S+e}", **T(expect={('v',S+e):f"S{u}"}))
    c=lambda e: I(f"v_cvt_pk_bf16_f32 v{P+e//2}, v{S+e}, v{S+e+1}", **T(expect={('v',S+e):f"S{u}",('v',S+e+1):f"S{u}"}, set={('v',P+e//2):f"P{u}"}))
    if cfg.pkf:
        mb=MN+(s&~1); sel="op_sel:[0,0,1] op_sel_hi:[1,0,1]" if s&1 else "op_sel_hi:[1,0,0]"
        pf=lambda e: I(f"v_pk_fma_f32 v[{S+e}:{S+e+1}], v[{S+e}:{S+e+1}], s[{sC2}:{sC2+1}], v[{mb}:{mb+1}] {sel}", **T(expect={('v',S+e):f"S{u}",('v',MN+s):f"M{u and u[0]}"}))
        if cfg.pkf==1: return [[pf(0)],[x(0)],[x(1)],[pf(2)],[x(2)],[],[x(3)],[pf(4)],[x(4)],[x(5)],[pf(6)],[],[x(6)],[x(7)],[c(0),c(2)],[c(4),c(6)],[]]
        return [[pf(0),pf(2),pf(4),pf(6)],[x(0)],[x(1)],[],[x(2)],[],[x(3)],[],[x(4)],[x(5)],[],[],[x(6)],[x(7)],[c(0),c(2)],[c(4),c(6)],[]]
    return [[f(0),f(1)],[x(0)],[x(1)],[f(2),f(3)],[x(2)],[],[x(3)],[f(4),f(5)],[x(4)],[x(5)],[f(6),f(7)],[],[x(6)],[x(7)],[c(0),c(2)],[c(4),c(6)],[]]
def max_seq(s,sb,h):
    S=SB[sb]
    return [I(f"v_max3_f32 v{T0}, v{S}, v{S+1}, v{S+2}"), I(f"v_max3_f32 v{T3}, v{S+3}, v{S+4}, v{S+5}"),
            I(f"v_max3_f32 v{T0}, v{T0}, v{S+6}, v{S+7}"), I(f"v_max_f32 v{T0}, v{T0}, v{T3}"),
            I(f"v_mov_b32 v{T3}, v{T0}"), I(f"v_permlane16_swap_b32 v{T0}, v{T3}"),
            I(f"v_max_f32 v{T0}, v{T0}, v{T3}"), I(f"v_mov_b32 v{T3}, v{T0}"),
            I(f"v_permlane32_swap_b32 v{T0}, v{T3}"), I(f"v_max_f32 v{T0}, v{T0}, v{T3}"),
            I(f"v_mul_f32 v{MN+s}, s{sNC}, v{T0}", set={('v',MN+s):f"M{h}"})]
MAXG=[11,11,12,12,12,13,14,14,15,16,16]
def put(ex,g,items): ex.setdefault(g,[]).extend(items)

def step(i, ex=None, post=None, clump=0, sumfirst=False):
    ex=ex or {}; post=post or {}
    q,m,p=unit(i+1),unit(i),unit(i-1)
    mf=(qk_mfmas(q[2],q[1]&1,(i+1)&1,q) if q else [None]*8)+(pv_mfmas(p[2],p[1]&1,(i-1)&1,p[1]==0,p) if p else [None]*9)
    if sumfirst: mf=mf[:8]+[mf[16]]+mf[8:16]
    g=sm_gaps(m[2],i&1,i&1,m) if m else [[] for _ in range(17)]
    for src,dst in [(2,1),(9,8),(13,12),(15,14),(4,3),(7,6),(1,0)][:clump]:
        g[dst]=g[dst]+g[src]; g[src]=[]
    tailmax=[]
    if q and q[1]==0:
        ms=max_seq(q[2],(i+1)&1,q[0])
        if p and m:
            for gg,x in zip(MAXG,ms): g[gg]=g[gg]+[x]
        else:
            for x in ms:
                if x.op.startswith('v_permlane'): tailmax.append(I("s_nop 1"))
                tailmax.append(x)
    out=[I(f"; ---- step {i}: QK{q} softmax{m} PV{p}")]
    if cfg.tls and i<=30:
        w=I("s_waitcnt lgkmcnt(0)"); w.meta['skip']=True
        out+=[w]+TL()
    out+=ex.get(-1,[])
    for k in range(17):
        if mf[k] is not None: out.append(mf[k])
        out+=ex.get(k,[])+g[k]+post.get(k,[])
    return out+tailmax+ex.get(17,[])

def free_gaps(ex,lo,n,avoid=()):
    return [x for x in range(lo,17) if x not in FREE and x not in ex and x not in avoid][:n]
def spread(ex,lo,items,avoid=()):
    gs=free_gaps(ex,lo,len(items),avoid)
    while len(gs)<len(items): gs.append(gs[-1])
    for x,i in zip(gs,items): put(ex,x,[i])
def TL():
    if not cfg.tl: return []
    r=[I("s_mov_b64 exec, s[90:91]"), I("v_mov_b32 v0, s98"), I("v_mov_b32 v61, s100"), I("s_mov_b64 exec, -1"), I("s_lshl_b64 s[90:91], s[90:91], 1"), I("s_memtime s[98:99]"), I("s_memrealtime s[100:101]")]
    for x in r: x.meta['skip']=True
    return r
def BAR(): return [I("s_barrier")]+([] if cfg.tls else TL())
def WV(tag,lg0=False,part=None): return I("s_waitcnt vmcnt(AUTO)"+(" lgkmcnt(0)" if lg0 else ""), auto_vm=tag, need=tag, wpart=part)
def WL(x): return I("s_waitcnt lgkmcnt(AUTO)", auto_lg=x)

def kind(x):
    if x.op.startswith('ds_read'): return 'r'
    if x.op.startswith('ds_write'): return 'w'
    if getattr(x,'dma',False): return 'd'
    if getattr(x,'store',False): return 's'
    return 'a'
def gapcost(ks,free):
    if not ks: return 0
    U={'r':4,'d':6,'w':12,'s':12,'a':4}
    c=sum(U[k] for k in ks)
    if ks[0]=='a': c-=4
    if len(ks)==1 and ks[0]=='d': c=4 if not free else 8
    for p,q in zip(ks,ks[1:]):
        if p=='w' and q=='r': c+=12
    st=12*ks.count('s')
    if free: return st+max(0,c-st-8)
    return c+4*max(0,len([k for k in ks if k!='a'])-1)
def place(ex,groups,lo=0,hi=16,free=FREE):
    groups=[g if isinstance(g,list) else [g] for g in groups]
    n=len(groups)
    if not n: return
    base={g:[kind(x) for x in ex.get(g,[]) if not x.label and not x.meta.get('skip')] for g in range(17)}
    @functools.lru_cache(None)
    def f(g,i):
        if i==n: return (0,())
        if g>hi: return (1e9,())
        best=(1e9,())
        for m in range(0,min(4,n-i)+1):
            ks=base[g]+[kind(x) for gr in groups[i:i+m] for x in gr]
            c=gapcost(ks,g in free)-gapcost(base[g],g in free)
            c+=0.01*sum(abs(g-(lo+(hi-lo)*(j+0.5)/n)) for j in range(i,i+m))
            r=f(g+1,i+m)
            if c+r[0]<best[0]: best=(c+r[0],(g,)*m+r[1])
        return best
    c,gs=f(lo,0)
    assert len(gs)==n
    for g,gr in zip(gs,groups): put(ex,g,gr)

def put_reads(ex,post,reads,r,late):
    rs=reads[4*r:4*r+4]
    if late:
        gs=[6,8,12,13] if r<5 else [2,6,8,9]
        for k in range(late): put(post,gs[k],[rs[k]])
        if rs[late:]: put(ex,16 if r<5 else 11,rs[late:])
    else:
        rg=(5,16) if r<5 else (5,11)
        put(ex,rg[0],rs[:2]); put(ex,rg[1],rs[2:])
def loop_end(ex,lab,n):
    put(ex,13,[I(f"s_add_u32 s{sT}, s{sT}, 1")]); put(ex,15,[I(f"s_cmp_lt_u32 s{sT}, {n}")]); put(ex,16,[I(f"s_cbranch_scc1 {lab}")])

def blockA(b,pairs,pf,nv=None,lab=None,n=0):
    late,clump=int(pf[0]),int(pf[1])
    reads=frag_reads(0,b+1); tag=f"h0KV{b+1}"
    out=[]
    inc=4096 if pairs[0]>=20 else 8192
    if len(pairs)==2: dpos={0:[(0,0,11)],1:[(0,1,3),(0,2,11)],2:[(0,3,11)],3:[(1,0,11)],4:[(1,1,3),(1,2,11)],5:[(1,3,14)]}; advr=(0,3)
    else: dpos={0:[(0,0,11)],2:[(0,1,11)],3:[(0,2,11)],4:[(0,3,11)]}; advr=(0,)
    for r in range(6):
        ex={}; post={}
        if r==0:
            put(ex,0,[I(f"s_waitcnt vmcnt({nv}) lgkmcnt(0)", need=tag, loose_ok=True) if nv is not None else WV(tag,True)])
            put(ex,1,BAR()); put(post,4,setrd(sCur))
        put_reads(ex,post,reads,r,late)
        for (p,j,g) in dpos.get(r,[]): put(ex,g,[pdma(pairs[p],j)])
        if r in advr: spread(ex,2,[I(f"s_add_u32 m0, m0, {SLOT}"), I(f"s_cmp_ge_u32 m0, s{sEnd}"), I(f"s_cselect_b32 m0, s{sW4}, m0"), I(f"s_add_u32 s{sOff}, s{sOff}, {inc}")])
        if r==3: put(ex,15,[I(f"s_waitcnt lgkmcnt({4+late if late else 6})")])
        if r==5:
            spread(ex,0,[I(f"s_add_u32 s{sCur}, s{sCur}, {SLOT}"), I(f"s_cmp_ge_u32 s{sCur}, s{sEnd}"), I(f"s_cselect_b32 s{sCur}, s{sW4}, s{sCur}")])
            if lab: loop_end(ex,lab,n)
        out+=step(6*b+1+r,ex,post,clump)
    return out
def rampA(t=None,prof=None):
    pf=(prof or cfg.prof).split(',')
    if t is not None:
        n=12+4*t
        return blockA(2*t+2,[n,n+1],pf[0],nv=8)+blockA(2*t+3,[n+2,n+3],pf[1],nv=12,lab="LloopA1",n=2)
    o=[]
    for k,b in enumerate(range(2,6)): o+=blockA(b,[12+2*k,13+2*k],pf[k])
    return o
def staticA():
    out=[]
    seq=[(n,j) for n in range(12,24) for j in range(4)]
    pos={4:[(0,11),(2,11),(3,11),(4,11)], 5:[(0,11),(1,11),(2,11),(3,11),(4,11)], 6:[(0,11),(1,11),(2,11),(3,11),(4,11),(5,14)],
         7:[(0,11),(1,11),(2,3),(2,11),(3,11),(4,11),(5,14)], 8:[(0,11),(1,3),(1,11),(2,11),(3,11),(4,3),(4,11),(5,14)]}
    pf=cfg.midprof.split(',')
    assert sum(int(p[2]) for p in pf)==48
    for b,p in zip(range(2,10),pf):
        late,clump,nd=int(p[0]),int(p[1]),int(p[2])
        sl=slotKV(0,b+1); base=(sl%4)*SLOT
        reads=frag_reads(0,b+1,base=base); tag=f"h0KV{b+1}"
        for r in range(6):
            ex={}; post={}
            lb=2 if (b==2 and cfg.su&4) else 0
            if r==0 and lb: put(ex,7,[I("s_waitcnt lgkmcnt(0)")])
            if r==lb:
                put(ex,0,[WV(tag,True)]); put(ex,1,BAR())
                if sl%4==0:
                    put(ex,2,[I(f"s_add_u32 s{sCur}, s{sW4}, {sl*SLOT}")]); put(post,4,setrd(sCur))
            if lb:
                if r>=2:
                    rr=reads[6*(r-2):6*(r-2)+6]
                    gs=[6,8,12,13] if r<5 else [2,6,8,9]
                    put(ex,5,rr[:2])
                    for k in range(4): put(post,gs[k] if r<5 else [6,8,9,10][k],[rr[2+k]])
            else: put_reads(ex,post,reads,r,late)
            for (rr,g) in pos[nd]:
                if rr==r:
                    n,j=seq.pop(0)
                    if j==0:
                        pre=[setm0(n%9), I(f"s_add_u32 s{sOff}, s{sOff}, {4096 if n>20 else 8192}") if n!=20 else I(f"s_add_u32 s{sOff}, s{sHn}, s{sQw}")]
                        gs=[x for x in range(g-1,-1,-1) if x not in ex and x not in FREE][:2]
                        while len(gs)<2: gs.append(g)
                        put(ex,gs[1],[pre[0]]); put(ex,gs[0],[pre[1]])
                    put(ex,g,[pdma(n,j)])
            if r==3: put(ex,15,[WL(reads[7])])
            if b==9 and r==5: put(ex,12,[I(f"s_add_u32 s{sCur}, s{sW4}, {8*SLOT}")])
            out+=step(6*b+1+r,ex,post,clump)
    assert not seq
    return out
def midA(): return [I(f"s_add_u32 s{sOff}, s{sHn}, s{sQw}"), I(f"s_sub_u32 s{sOff}, s{sOff}, 4096"), I(f"s_mov_b32 s{sT}, 0")]
def loopA2(t): return blockA(2*t+6,[20+2*t],'00',nv=24)+blockA(2*t+7,[21+2*t],'00',nv=24,lab="LloopA2",n=2)

def ostore(reg,j,pol,so,tag=None):
    x=I(f"buffer_store_dwordx4 {vr(reg)}, v{vKVB}, {sr(sO)}, s{so} offen{offs(1024*j)}"+(f" {pol}" if pol else ""))
    if tag: x.meta['expect']={r:tag for r in x.data}
    return x
DIRECT=2
def dunit(k): return (DIRECT+k//4, k%4)
def blockB(b,pf,lab=None,n=0):
    late,clump=int(pf[0]),int(pf[1])
    t=(b-2)//2
    reads=frag_reads(1,b+1); tag=f"h1KV{b+1}"
    out=[]; lead=(b%2==0)
    rp,wp=(sPo,sPe) if lead else (sPe,sPo)
    rx=sXo if lead else sXe
    nb=cfg.dl//2; loc0=(0 if lead else nb)
    dr=[]; sts=[]
    for k in range(nb):
        sub,j=dunit(cfg.dl*t+loc0+k); jj=loc0+k
        dr.append(I(f"ds_read_b128 {vr(DR[jj&1])}, v{vD[jj&1]}{offs(1024*jj)}", src=f"O{sub}", slot=slotQ(sub), private=True))
        sts.append(ostore(DR[jj&1],jj,cfg.st,sSd,f"O{sub}"))
    for r in range(6):
        ex={}; post={}
        if r==0:
            put(ex,0,[I(f"s_waitcnt vmcnt({8+nb}) lgkmcnt(0)", need=tag, loose_ok=True)])
            put(ex,1,BAR())
            put(ex,2,[I(f"s_mov_b32 m0, s{wp}")]); put(ex,3,[I(f"s_xor_b32 s{rp}, s{rp}, s{rx}")])
            put(ex,4,[I(f"s_add_u32 s{sOff}, s{sOff}, 8192")]); put(post,4,setrd(rp))
        put_reads(ex,post,reads,r,late)
        if r<4: put(ex,11,[kvdma(1,b+4,r)])
        if r==3: put(ex,15,[I(f"s_waitcnt lgkmcnt({4+late if late else 6})")])
        if r==4 and nb: put(ex,11,dr)
        if r==5 and nb:
            put(ex,1,[I("s_waitcnt lgkmcnt(2)")]); put(ex,3,[sts[0]])
            if nb==2: put(ex,10,[sts[1]])
        if r==5 and not lead:
            if nb:
                put(ex,12,[I(f"s_add_u32 s{sSd}, s{sSd}, {1024*cfg.dl}")])
                inc=f"{SLOT}" if cfg.dl==4 else f"s{sDi}"
                put(post,16 if not lab else 7,[I(f"v_add_u32 v{vD[k]}, {inc}, v{vD[k]}") for k in range(2)])
                if cfg.dl==2: put(ex,0,[I(f"s_xor_b32 s{sDi}, s{sDi}, {2048^(SLOT-2048)}")])
            if lab: loop_end(ex,lab,n)
        out+=step(72+6*b+1+r,ex,post,clump)
    return out
def loopB(t):
    pf=cfg.profB.split(',')
    return blockB(2*t+2,pf[0])+blockB(2*t+3,pf[1],lab="LloopB",n=(2 if cfg.profB0 else 3))
def peelB():
    pf=cfg.profB0.split(',')
    return blockB(2,pf[0])+blockB(3,pf[1])

def tagexp(o,tag):
    if tag:
        h=0 if tag[0]=='O' else 1
        for x in o:
            x.meta['expect']={r:f"O{h}n12" for r in x.rd if (r[0]=='v' and r[1]>=64) or (r[0]=='a' and 224<=r[1]<248)}
    return o
def e_head(s,bad,tag,rc):
    o=[I(f"v_accvgpr_read_b32 v{T2}, a{Lr(s)}"), I(f"v_rcp_f32 v{rc}, v{T2}")]
    o.append(I(f"v_cmp_nge_f32 vcc, s{sThr}, v{T2}") if bad is not None else I("s_nop 0"))
    if bad is not None: o.append(I(f"s_or_b64 s[{bad}:{bad+1}], s[{bad}:{bad+1}], vcc"))
    return tagexp(o,tag)
def e_pk(s,dt,tag,rc):
    a=O(s,dt)
    return tagexp([I(f"v_pk_mul_f32 {vr(a+k,2)}, {vr(a+k,2)}, v[{rc}:{rc+1}] op_sel_hi:[1,0]") for k in (0,2)],tag)
def e_cvt(s,dt,tag):
    a=O(s,dt)
    return tagexp([I(f"v_cvt_pk_bf16_f32 v{a}, v{a}, v{a+1}"), I(f"v_cvt_pk_bf16_f32 v{a+1}, v{a+2}, v{a+3}")],tag)
def e_wr(s,dt,off,slot,tag,regs=vW):
    return tagexp([I(f"ds_write_b64 v{regs[dt&3]}, {vr(O(s,dt),2)}{offs(off+(dt>>2)*128)}", wslot=slot, wtag=tag)],tag)[0]
def epi_rd(s,off,slot,tag=None,regs=vR):
    m=dict(src=tag,slot=slot,private=True) if tag else {}
    return [I(f"ds_read_b128 {vr(O(s,2*j))}, v{regs[j&1]}{offs(off+1024*j)}", **m) for j in range(4)]
def epi_st(s,pol,so,tag=None): return [ostore(O(s,2*j),j,pol,so,tag) for j in range(4)]

class Epi:
    def __init__(s,rc2,so): s.rc2=rc2; s.so=so; s.tiles=[]; s.cv=[]; s.wr=[]; s.rd=[]; s.st=[]; s.info={}
    def add(s,sub,avail,off,slot,bad,tag,direct,pol,pre=()):
        s.info[sub]=dict(off=off,slot=slot,bad=bad,tag=tag,direct=direct,pol=pol,pre=list(pre))
        s.tiles+=[(avail,sub,dt) for dt in range(8)]
    def _rd(s,g):
        rd=s.rd; s.rd=[]
        for sub in rd:
            I_=s.info[sub]; r=epi_rd(sub,I_['off'],I_['slot'],I_['tag']); g+=[[x] for x in r]
            st=epi_st(sub,I_['pol'],s.so,I_['tag'])
            s.st+=[[WL(r[1]),st[0]],[st[1]],[WL(r[3]),st[2]],[st[3],I(f"s_add_u32 s{s.so}, s{s.so}, 4096")]]
    def mem(s,nst,fast=False):
        g=[]
        for _ in range(nst):
            if s.st: g.append(s.st.pop(0))
        s._rd(g)
        for sub,dt in s.wr:
            I_=s.info[sub]
            g.append(([I_['pre'][dt]] if (I_['pre'] and dt<4) else [])+[e_wr(sub,dt,I_['off'],I_['slot'],I_['tag'])])
            if dt==7 and I_['direct']: s.rd.append(sub)
        s.wr=[]
        if fast: s._rd(g)
        return g
    def chunk(s,i,n):
        take=[]
        while s.tiles and len(take)<n and s.tiles[0][0]<=i: take.append(s.tiles.pop(0)[1:])
        o=[]
        for sub,dt in s.cv: o+=e_cvt(sub,dt,s.info[sub]['tag']); s.wr.append((sub,dt))
        s.cv=[]
        heads=[]
        for sub,dt in take:
            I_=s.info[sub]; rc=T1 if sub%2==0 else s.rc2
            if dt==0: heads+=e_head(sub,I_['bad'],I_['tag'],rc)
        o=heads+o
        for sub,dt in take:
            o+=e_pk(sub,dt,s.info[sub]['tag'],T1 if sub%2==0 else s.rc2)
        k=max(1,len(take)-2) if s.tiles and s.tiles[0][0]<=i+1 else len(take)
        for sub,dt in take[:k]: o+=e_cvt(sub,dt,s.info[sub]['tag']); s.wr.append((sub,dt))
        s.cv=take[k:]
        return o
    def done(s): return not(s.tiles or s.cv or s.wr or s.rd or s.st)

NPADS=0
PADAT={}
def SITE(k): return min(9,(k-1)*10//max(NPADS,1)-1+0)
def startA():
    o=[I("; ==== head A, first two key blocks (q-major, as Q arrives)")]
    f0=frag_reads(0,0); f1=frag_reads(0,1,base=SLOT); f2=frag_reads(0,2)
    o+=setrd(sW4)
    o.append(WV("h0Q0")); o+=BAR()
    o+=qreads(0,0)+f0[:8]
    seq=[('q',s,j) for s in (3,4,5) for j in range(4)]+[('k',b,j) for b in (2,3,4,5) for j in (0,2,1,3)]
    def dm():
        k,x,j=seq.pop(0); it=[]
        if j==0:
            it+=[setm0(slotQ(x) if k=='q' else slotKV(0,x)), I(f"s_add_u32 s{sTmp}, s{sTmp}, 4096") if k=='q' else I(f"s_add_u32 s{sOff}, s{sOff}, 8192")]
        return it+[qdma(0,x,j,sTmp) if k=='q' else kvdma(0,x,j)]
    for i in range(-1,13):
        ex={}; post={}
        if i==-1:
            put(ex,-1,[WL(f0[0])])
            if cfg.su&1:
                for k in range(7): put(ex,k,[WL(f0[k+1])])
                put(ex,7,dm()+dm()+[WV("h0KV1",part='K')]+BAR()+f1[:8])
            else:
                for k in range(8): put(ex,k,f0[8+2*k:10+2*k]+([WL(f0[k+1])] if k<7 else []))
                put(ex,7,dm()+dm()+[WV("h0KV1")]+BAR()+f1[:8])
            put(ex,17,[WL(f1[7])])
        else:
            if i==0 and cfg.su&1:
                put(ex,9,[WV("h0KV1")]+BAR()+f0[8:])
            if i==1 and cfg.su&1:
                for k in range(8): put(ex,k,f1[8+2*k:10+2*k])
            if i==2 and cfg.su&1: put(ex,7,[WL(f1[23])])
            if i==0 and not cfg.su&1:
                for k in range(8): put(ex,k,f1[8+2*k:10+2*k])
            if i==3: put(ex,0,[I("s_waitcnt lgkmcnt(0)")]); put(ex,1,BAR())
            if i%2==0 and i<=8:
                s=i//2+1; qs=qreads(0,s)
                put(ex,2 if i else 8,dm()); put(ex,5 if i else 8,dm())
                if s==4: put(post,9,bias(QREGS,True))
                put(ex,10,[WV(f"h0Q{s}")]); put(ex,11,qs[:2]); put(ex,12,[qs[2]]); put(ex,13,[qs[3]])
                if s==5: put(post,16,bias(QREGS,False))
                put(ex,17,[WL(qs[3])])
            elif i==10:
                put(ex,0,[WV("h0KV2",True,part=('K' if cfg.su&2 else None))]); put(ex,1,BAR())
                put(ex,2,[I(f"s_add_u32 s{sCur}, s{sW4}, {8*SLOT}")]); put(post,3,setrd(sCur))
                place(ex,f2[:8],lo=4,hi=12)
                put(ex,14,dm()); put(ex,16,dm())
                put(ex,17,[WL(f2[7])])
            elif i==12:
                place(ex,f2[8:],lo=0,hi=13)
                put(ex,14,dm()); put(ex,16,dm())
                put(ex,15,[I(f"s_mov_b32 s{sCur}, s{sW4}")])
            else:
                put(ex,5,dm()); put(ex,10,dm())
                if i==11 and cfg.su&2: put(ex,15,[WV("h0KV2")]); put(ex,16,BAR())
        ks=[k for k in range(1,NPADS+1) if SITE(k)==i]
        for k in ks:
            site=[I("s_mov_b64 exec, 0"), I(f"s_branch Lpad{k}"), I(f"Lret{k}:"), I("s_mov_b64 exec, -1")]
            if i%2==0 and 0<=i<=8: ex[10]=site+ex[10]
            else: put(ex,17,site)
        o+=step(i,ex,post,cfg.profS if (i>=6 and i%2==0) or i>9 else 0)
    assert not seq
    return o

def trans():
    o=[I("; ==== head A last two key blocks + head B first two, epilogue of head A streamed")]
    f11=frag_reads(0,11); g0=frag_reads(1,0); g1=frag_reads(1,1,base=SLOT); g2=frag_reads(1,2)
    E=Epi(14,sSd)
    idxA={u:k for k,u in enumerate(LA)}
    for s in range(6):
        E.add(s,60+idxA[(11,s)]+2,(s%4)*SLOT,slotQ(s),sBad,f"O{s}",s<DIRECT,cfg.st,pre=(bias(vW,True) if s==4 else ()))
    Q=lambda s:qreads(1,s)
    q5=Q(5)
    R={61:f11[:8], 62:f11[8:16], 63:f11[16:24], 64:Q(0), 65:Q(1), 67:Q(2), 68:Q(3), 69:g0[:4], 70:g0[4:8], 71:g0[8:16], 72:g1[:8], 73:g0[16:24],
       74:g1[8:18], 75:g1[18:24], 76:Q(4), 78:q5, 81:g2[:4], 82:g2[4:8], 83:g2[8:16], 84:g2[16:24]}
    D={}
    for (k,x),steps in zip([('q',4),('q',5),('k',2),('k',3),('k',4),('k',5)],
                           [[61,62,63,64],[65,66,66,67],[69,70,71,72],[76,77,77,78],[79,79,80,80],[81,82,83,84]]):
        for j,i in enumerate(steps): D.setdefault(i,[]).append((k,x,j))
    for i in range(61,85):
        ex={}; post={}
        rs=R.get(i,[]); lo=0; hi=16
        mx=(unit(i+1)[1]==0)
        if i==61:
            put(ex,0,[WV("h0KV11",True)]); put(ex,1,BAR()); put(post,2,setrd(sCur)); lo=3; hi=12
            put(ex,17,[WL(f11[7])])
            put(ex,2,[I(f"s_add_u32 s{sSd}, s{sH}, s{sQw}")])
        if i==64: put(ex,0,[WV("h1Q3")]); put(ex,7,[WL(f11[23])]); lo=1
        if i==69:
            put(ex,0,[WV("h1KV1",True)]); put(ex,1,BAR()); put(post,2,setrd(sW4)); lo=3
            put(ex,2,[I(f"s_add_u32 s{sOff}, s{sHn}, s{sKVw}")]); put(ex,3,[I(f"s_add_u32 s{sOff}, s{sOff}, 8192")])
        if i==70: hi=12; put(ex,17,[WL(g0[7])])
        if i==72: hi=12; put(ex,17,[WL(g1[7])])
        if i==73: hi=5; put(ex,7,[WL(g0[17])]); put(ex,11,[WL(g0[23])])
        if i==75: hi=6; put(ex,7,[WL(g1[17])]); put(ex,12,[WL(g1[23])]); put(post,9,bias(QREGS,True))
        if i==76: put(ex,0,[WV("h1Q4",True)]); put(ex,1,BAR()); lo=2
        if i==77: put(ex,15,[WL(R[76][3])])
        if i==78: put(ex,0,[WV("h1Q5")]); lo=1
        if i==79: put(ex,15,[WL(q5[3])])
        if i==81:
            put(ex,0,[WV("h1KV2",True)]); put(ex,1,BAR())
            put(ex,2,[I(f"s_add_u32 s{sPe}, s{sW4}, {8*SLOT}")]); put(post,2,setrd(sPe)); lo=4
            put(ex,3,[I(f"s_add_u32 s{sPo}, s{sW4}, {2*SLOT}")])
        if i==82: hi=12; put(ex,17,[WL(g2[7])])
        if i==84: hi=12
        mem=E.mem(2)
        ch=E.chunk(i,cfg.rho)
        free=[g for g in FREE if not(g==16 and (ch or mx)) and not (g==11 and mx)]
        place(ex,rs,lo=lo,hi=hi,free=free)
        dg=[]
        for (k,x,j) in D.get(i,[]):
            pre=[setm0(slotQ(x) if k=='q' else slotKV(1,x)), I(f"s_add_u32 s{sOff}, s{sOff}, {4096 if k=='q' else 8192}")] if j==0 else []
            dg.append(pre+[qdma(1,x,j) if k=='q' else kvdma(1,x,j)])
        place(ex,dg,lo=max(lo,4),hi=16,free=free)
        qlast=max([g for g,v in ex.items() if any(x.meta.get('src','').startswith('h1Q') for x in v)]+[-1])
        need_after=any(kind(gr[-1])=='w' and any(x.meta.get('slot')==gr[-1].meta['wslot'] for x in rs) for gr in mem)
        place(ex,mem,lo=(qlast+1 if need_after else (2 if i in (69,76,81) else 0)),hi=15,free=free)
        put(post,16,ch)
        if i==83:
            put(post,16,bias(vW,False)+[I(f"v_add_u32 v{vD[k]}, {DIRECT*SLOT}, v{vR[k]}") for k in range(2)])
        if i==84:
            spread(ex,0,[I(f"s_mov_b32 s{sT}, 0"), I(f"s_movk_i32 s{sDi}, {SLOT-2048}"), I(f"s_add_u32 s{sSt}, s{sHn}, s{sQw}")])
            put(ex,17,[WV("h1KV3")])
        o+=step(i,ex,post)
    assert E.done()
    return o

def tailB():
    o=[I("; ==== head B last four key blocks: q sub-tiles 0-2 first, then 3-5; epilogue streamed")]
    base=120
    vK2,vV2=vQ,vQ+1
    def fr(b): return frag_reads(1,b,base=slotKV(1,b)*SLOT) if b!=10 else frag_reads(1,b,rk=vK2,rv=vV2)
    F=[fr(b) for b in [9,10,11,8,9,10,11]]
    R={}
    def addR(i,L): R.setdefault(i,[]).extend(L)
    for m in range(7):
        K,V=F[m][:8],F[m][8:]
        if m==0: addR(base+1,K)
        elif m<6: addR(base+3*m-1,K[:3]); addR(base+3*m,K[3:6]); addR(base+3*m+1,K[6:])
        else: addR(base+17,K)
        if m<6:
            addR(base+3*m+1,V[:(0 if m==0 else 5)]); addR(base+3*m+2,V[(0 if m==0 else 5):(8 if m==0 else 10)]); addR(base+3*m+3,V[(8 if m==0 else 10):(16 if m in (0,5) else 15)])
            if m not in (0,5): R.setdefault(base+3*m+4,[]).insert(0,V[15])
        else: addR(base+19,V[:12]); addR(base+20,V[12:])
    E=Epi(vQ+2,sSt)
    idx={u:k for k,u in enumerate(GB)}
    for s_ in range(5):
        sl=3+(s_%2)
        E.add(s_,base+idx[(11,s_)]+2,(sl-2)*SLOT,sl,sBad2,f"P{s_}",True,(cfg.st3 if (cfg.st3 and s_<cfg.n3) else cfg.st2))
    k0=3*cfg.dl; dq=list(range(k0,16)); pend=[]
    o_sub0,o_j0=dunit(k0)
    for i in range(base+1,base+25):
        ex={}; post={}; rel=i-base; lo=0; hi=16
        rs=list(R.get(i,[]))
        if rel==1:
            put(ex,0,[WV("h1KV10",True)]); put(ex,1,BAR())
            put(ex,2,[I(f"s_add_u32 s{sTmp}, s{sW4}, {8*SLOT}")])
            put(post,2,setrd(sW4)); lo=3; hi=12
            put(post,13,setrd(sTmp,vK2,vV2))
        if rel==5: put(ex,0,[WV("h1KV11")]); put(ex,1,BAR()); lo=2
        if rel==12: put(ex,3,TL())
        g=[]
        for rdx,k in pend:
            sub,j=dunit(k); jj=(k-k0)%4
            g.append([WL(rdx),ostore(DR[k&1],jj,cfg.st,sSd,f"O{sub}")]+([I(f"s_add_u32 s{sSd}, s{sSd}, 4096")] if jj==3 else []))
        pend=[]
        place(ex,g,lo=max(lo,3),hi=4)
        if dq:
            k=dq.pop(0); sub,j=dunit(k)
            x=I(f"ds_read_b128 {vr(DR[k&1])}, v{vD[j&1]}{offs((sub-o_sub0)*SLOT+1024*(j-o_j0))}", src=f"O{sub}", slot=slotQ(sub), private=True)
            pend.append((x,k)); place(ex,[x],lo=13,hi=15)
        mem=E.mem(2 if rel<21 else 4, fast=(rel>=21))
        ch=E.chunk(i,cfg.rhoG if rel<20 else cfg.rhoE)
        free=[g_ for g_ in FREE if not(g_==16 and ch)] if rel<24 else list(range(8,16))
        for m in range(7):
            K,V=F[m][:8],F[m][8:]
            needK = base+3*m+2 if m<6 else base+18
            needV = base+3*m+4 if m<6 else base+20
            if i==needK-1:
                put(ex,17,[WL(K[7])])
                if rs and rs[-1] is K[7]: hi=min(hi,13)
            if i==needV:
                late=[x for x in V if x in rs]
                if late:
                    place(ex,late,lo=0,hi=5,free=free); rs=[x for x in rs if x not in late]; lo=max(lo,6)
                    put(ex,7,[WL(V[15-len(late)])]); put(ex,8+(16-len(late))//2-1,[WL(V[15])])
                else: put(ex,7,[WL(V[15])])
        place(ex,rs,lo=lo,hi=hi,free=free)
        place(ex,mem,lo=(0 if rel<23 else 8),hi=(15 if rel<24 else 16),free=free)
        put(post,16,ch)
        o+=step(i,ex,post)
    assert not E.tiles and not E.cv and not dq and not pend and not E.wr and not E.rd
    return o+final5(E,ex)

def final5(E,ex):
    o=[]
    tag="P5"; sl=5; off=3*SLOT
    rest=[x for g in E.mem(8) for x in g]
    assert E.done()
    pad=max(0,8-len(rest)-len([x for x in ex.get(16,[])]))
    o+=rest+([I(f"s_nop {pad-1}")] if pad else [])+e_head(5,sBad2,tag,T1)
    for half in (0,1):
        for dt in range(4*half,4*half+4): o+=e_pk(5,dt,tag,T1)
        for dt in range(4*half,4*half+4): o+=e_cvt(5,dt,tag)
        for dt in range(4*half,4*half+4): o.append(e_wr(5,dt,off,sl,tag))
    rd=epi_rd(5,off,sl,tag); o+=rd
    st=epi_st(5,cfg.st2,sSt,tag)
    for j in range(4): o+=[WL(rd[j]), st[j]]
    return o

def tailK():
    o=[I("; ==== head B blocks 8,9 (parked output drained) and last two key blocks, epilogue streamed")]
    E=Epi(vQ+2,sSt)
    idx={u:k for k,u in enumerate(LB)}
    for s_ in range(5):
        sl=3+(s_%2)
        E.add(s_,132+idx[(11,s_)]+2,(sl-2)*SLOT,sl,sBad2,f"P{s_}",True,cfg.st2)
    k0=3*cfg.dl; dq=list(range(k0,16)); pend=[]
    o_sub0,o_j0=dunit(k0)
    f11=frag_reads(1,11)
    for i in range(121,145):
        ex={}; post={}; lo=0; hi=16; rs=[]
        if i<133:
            b,r=divmod(i-73,6); lead=(b%2==0)
            if r==0:
                reads=frag_reads(1,b+1); rp=sPo if lead else sPe; rx=sXo if lead else sXe
                put(ex,0,[WV(f"h1KV{b+1}",True)]); put(ex,1,BAR())
                put(ex,2,[I(f"s_xor_b32 s{rp}, s{rp}, s{rx}")]); put(post,4,setrd(rp)); lo=5
            rs=reads[4*r:4*r+4]
            if r==5: hi=11
            if r==3: put(ex,17,[WL(reads[7])])
        if i==133:
            put(ex,0,[WV("h1KV11",True)]); put(ex,1,BAR())
            put(ex,2,[I(f"s_xor_b32 s{sPo}, s{sPo}, s{sXo}")]); put(post,2,setrd(sPo)); lo=3; hi=12
            rs=f11[:8]; put(ex,17,[WL(f11[7])])
        if i==134: rs=f11[8:14]
        if i==135: rs=f11[14:20]
        if i==136: rs=f11[20:24]; hi=5; put(ex,7,[WL(f11[19])]+TL()); put(ex,13,[WL(f11[23])])
        g=[]
        for rdx,k in pend:
            sub,j=dunit(k); jj=(k-k0)%4
            g.append([WL(rdx),ostore(DR[k&1],jj,cfg.st,sSd,f"O{sub}")]+([I(f"s_add_u32 s{sSd}, s{sSd}, 4096")] if jj==3 else []))
        pend=[]
        place(ex,g,lo=3,hi=4)
        mem=E.mem(4, fast=True)
        ch=E.chunk(i,cfg.rho2)
        free=[g_ for g_ in FREE if not(g_==16 and ch)] if i<144 else list(range(8,16))
        place(ex,rs,lo=lo,hi=hi,free=free)
        if dq:
            k=dq.pop(0); sub,j=dunit(k)
            x=I(f"ds_read_b128 {vr(DR[k&1])}, v{vD[j&1]}{offs((sub-o_sub0)*SLOT+1024*(j-o_j0))}", src=f"O{sub}", slot=slotQ(sub), private=True)
            pend.append((x,k)); place(ex,[x],lo=6,hi=(16 if hi==16 else 12),free=free)
        place(ex,mem,lo=(0 if i<143 else 8),hi=(15 if i<144 else 16),free=free)
        put(post,16,ch)
        o+=step(i,ex,post)
    assert not E.tiles and not E.cv and not dq and not pend and not E.wr and not E.rd
    return o+final5(E,ex)

def tailQ():
    o=[I("; ==== head B blocks 8,9 (parked output drained) and last two key blocks q-major, epilogue right behind each sub-tile")]
    k0=3*cfg.dl; dq=list(range(k0,16)); pend=[]
    o_sub0,o_j0=dunit(k0)
    f9=frag_reads(1,9); f10=frag_reads(1,10); f11=frag_reads(1,11,rk=vQ,rv=vQ+1)
    R={121+r:f9[4*r:4*r+4] for r in range(6)}
    R.update({127:f10[:5],128:f10[5:11],129:f10[11:17],130:f10[17:21]+f11[:2],131:f11[2:8],132:f10[21:24],133:f11[8:18],134:f11[18:24]})
    stq=[]; nxt=[]
    nd2=max(0,len(dq)-cfg.nd1)
    for i in range(121,145):
        ex={}; post={}; lo=0; hi=16; rs=list(R.get(i,[]))
        p=unit(i-1); fin=(p[1]==11)
        if i==121:
            put(ex,0,[WV("h1KV9",True)]); put(ex,1,BAR())
            put(ex,2,[I(f"s_xor_b32 s{sPo}, s{sPo}, s{sXo}")]); put(post,4,setrd(sPo)); lo=5
        if i==124: put(ex,17,[WL(f9[7])])
        if i==126: hi=11
        if i==127:
            put(ex,0,[WV("h1KV10" if cfg.bar11 else "h1KV11",True)]); put(ex,1,BAR())
            put(ex,2,[I(f"s_xor_b32 s{sPe}, s{sPe}, s{sXe}")]); put(post,4,setrd(sPe)); lo=5
        if i==128: put(post,4,setrd(sW4,vQ,vQ+1))
        if i==130:
            put(ex,17,[WL(f10[7])])
            if cfg.bar11: put(ex,6,[WV("h1KV11")]); put(ex,7,[I("s_barrier")])
        if i==131: hi=12; put(ex,17,[WL(f11[7])])
        if i==133: put(ex,7,[WL(f10[23])]+TL())
        if i==134: hi=5; put(ex,8,[WL(f11[17])]); put(ex,13,[WL(f11[23])])
        free=[g_ for g_ in FREE if not(g_==16 and fin)] if i<144 else list(range(8,16))
        g=[]
        for rdx,k in pend:
            sub,j=dunit(k); jj=(k-k0)%4
            g.append([WL(rdx),ostore(DR[k&1],jj,cfg.st,sSd,f"O{sub}")]+([I(f"s_add_u32 s{sSd}, s{sSd}, 4096")] if jj==3 else []))
        if g: place(ex,g[:1],lo=3,hi=4)
        if len(g)>1: place(ex,g[1:],lo=9,hi=10)
        two=len(pend)>1; pend=[]
        if i==130:
            place(ex,rs[:4],lo=0,hi=11,free=free); place(ex,rs[4:],lo=8,hi=16,free=free)
        else: place(ex,rs,lo=lo,hi=hi,free=free)
        n=0
        if dq: n=1
        if dq and nd2>0 and (i%2==0 or nd2>6): n=2; nd2-=1
        xs=[]
        for _ in range(min(n,len(dq))):
            k=dq.pop(0); sub,j=dunit(k)
            x=I(f"ds_read_b128 {vr(DR[k&1])}, v{vD[j&1]}{offs((sub-o_sub0)*SLOT+1024*(j-o_j0))}", src=f"O{sub}", slot=slotQ(sub), private=True)
            pend.append((x,k)); xs.append(x)
        place(ex,xs,lo=11,hi=(16 if hi==16 else 12),free=free)
        mlo=0 if i<143 else 8
        if nxt:
            place(ex,nxt,lo=mlo,hi=16,free=free); nxt=[]
        elif stq:
            place(ex,stq,lo=mlo,hi=15,free=free); stq=[]
        if fin and p[2]<5:
            s_=p[2]; tag=f"P{s_}"; sl=3+(s_%2); off=(sl-2)*SLOT
            ch=e_head(s_,sBad2,tag,T1)
            for dt in range(8): ch+=e_pk(s_,dt,tag,T1)
            for dt in range(8): ch+=e_cvt(s_,dt,tag)
            put(post,13,ch[:1]); put(post,14,ch[1:2]); put(post,16,ch[2:])
            rd=epi_rd(s_,off,sl,tag); st=epi_st(s_,cfg.st2,sSt,tag)
            nxt=[[e_wr(s_,dt,off,sl,tag)] for dt in range(8)]+[[x] for x in rd]
            stq=[[WL(rd[1]),st[0]],[st[1]],[WL(rd[3]),st[2]],[st[3],I(f"s_add_u32 s{sSt}, s{sSt}, 4096")]]
        o+=step(i,ex,post,sumfirst=fin)
    assert not dq and not pend and not nxt and not stq
    tag="P5"; sl=5; off=3*SLOT
    o+=e_head(5,sBad2,tag,T1)
    for half in (0,1):
        for dt in range(4*half,4*half+4): o+=e_pk(5,dt,tag,T1)
        for dt in range(4*half,4*half+4): o+=e_cvt(5,dt,tag)
        for dt in range(4*half,4*half+4): o.append(e_wr(5,dt,off,sl,tag))
    rd=epi_rd(5,off,sl,tag); o+=rd
    st=epi_st(5,cfg.st2,sSt,tag)
    for j in range(4): o+=[WL(rd[j]), st[j]]
    return o

def stamp(k):
    if not cfg.stamps: return []
    op="s_memrealtime" if (cfg.echo>=0 or cfg.rt) else "s_memtime"
    return [I(f"{op} s[{sStamp+4+2*k}:{sStamp+5+2*k}]", skip=True)]

def lane_consts(A,base):
    A("v_and_b32 v4, 3, v0")
    A("v_bfe_u32 v3, v0, 2, 1"); A("v_mul_u32_u24 v9, 2080, v3")
    A("v_bfe_u32 v3, v0, 3, 1"); A("v_lshl_add_u32 v9, v3, 10, v9")
    A("v_lshl_add_u32 v9, v4, 8, v9"); A("v_lshl_add_u32 v9, v2, 4, v9"); A(f"v_add_u32 v9, s{base}, v9")
    for ks in range(4):
        A(f"v_xor_b32 v3, {ks}, v4"); A(f"v_lshl_add_u32 v{vQ+ks}, v3, 6, v9")
    A("v_and_b32 v8, 15, v0"); A("v_xor_b32 v9, v8, v2"); A("v_lshlrev_b32 v10, 8, v2"); A(f"v_add_u32 v10, s{base}, v10")
    A(f"v_lshl_add_u32 v{vR[0]}, v9, 4, v10"); A("v_xor_b32 v9, 4, v9"); A(f"v_lshl_add_u32 v{vR[1]}, v9, 4, v10")
    A("v_lshlrev_b32 v10, 8, v8"); A("v_and_b32 v9, 1, v2"); A("v_lshl_add_u32 v10, v9, 3, v10"); A(f"v_add_u32 v10, s{base}, v10")
    A("v_lshrrev_b32 v9, 1, v2"); A("v_and_b32 v8, 7, v0"); A("v_xor_b32 v9, v9, v8")
    for k in range(4):
        A(f"v_xor_b32 v8, {2*k}, v9"); A(f"v_lshl_add_u32 v{vW[k]}, v8, 4, v10")

CPF_LINES=11
def prologue():
    o=[]
    A=lambda t,**k: o.append(I(t,**k))
    A(f"s_load_dwordx2 s[{sKA}:{sKA+1}], s[0:1], 8"); A(f"s_load_dwordx2 s[{sVB}:{sVB+1}], s[0:1], 16")
    A(f"s_load_dwordx2 s[{sQA}:{sQA+1}], s[0:1], 0"); A(f"s_load_dwordx2 s[{sO}:{sO+1}], s[0:1], 24")
    if cfg.stamps:
        A(f"s_load_dwordx2 s[{sDbg}:{sDbg+1}], s[0:1], 32")
        A(f"s_memtime s[{sStamp}:{sStamp+1}]"); A(f"s_memrealtime s[{sStamp+2}:{sStamp+3}]")
    if cfg.tl:
        A("s_mov_b64 s[90:91], 1"); A("s_memtime s[98:99]"); A("s_memrealtime s[100:101]")
    A("s_cmp_ge_u32 s2, 256"); A("s_cbranch_scc1 Lend")
    A("v_lshrrev_b32 v1, 6, v0"); A("v_and_b32 v0, 63, v0"); A("v_readfirstlane_b32 s3, v1")
    A(f"v_lshlrev_b32 v{vKVB}, 4, v0"); A(f"v_add_u32 v{vKVA}, 1056, v{vKVB}")
    if cfg.diag=='l2only': A("s_and_b32 s62, s2, 7"); A(f"s_mul_i32 s{sH}, s62, {2*HEADB}")
    else: A(f"s_mul_i32 s{sH}, s2, {2*HEADB}")
    A(f"s_mov_b32 s{sKA+2}, {TOTB+4096}"); A(f"s_mov_b32 s{sKA+3}, 0x20000"); A(f"s_mov_b64 s[{sVB+2}:{sVB+3}], s[{sKA+2}:{sKA+3}]")
    A(f"s_mul_i32 s{sW4}, s3, {WREG}"); A(f"s_lshl_b32 s{sKVw}, s3, 11")
    A(f"s_add_u32 s{sOff}, s{sH}, s{sKVw}")
    o.append(setm0(0))
    A("s_waitcnt lgkmcnt(0)")
    A(f"s_sub_u32 s{sKA}, s{sKA}, 1056"); A(f"s_subb_u32 s{sKA+1}, s{sKA+1}, 0")
    o+=[kvdma(0,0,0),kvdma(0,0,2)]
    A(f"s_sub_u32 s{sVB}, s{sVB}, 2080"); A(f"s_subb_u32 s{sVB+1}, s{sVB+1}, 0")
    if not cfg.su&1: o+=[kvdma(0,0,1),kvdma(0,0,3)]
    if cfg.cpf:
        A("s_getpc_b64 s[62:63]")
        if cfg.pads: A("Lpc:"); A("s_add_u32 s62, s62, Lmain-Lpc"); A("s_addc_u32 s63, s63, 0")
        A("s_lshr_b32 s4, s2, 3"); A(f"s_mul_i32 s4, s4, {128*CPF_LINES}")
        A(f"v_min_u32 v1, {CPF_LINES-1}, v0"); A("v_lshl_add_u32 v1, v1, 7, s4")
        A("global_load_dword v61, v1, s[62:63]")
    A("v_lshrrev_b32 v2, 4, v0"); A("v_lshlrev_b32 v3, 6, v2"); A(f"v_xor_b32 v{vQB}, v{vKVB}, v3"); A(f"v_add_u32 v{vQA}, 1056, v{vQB}")
    A(f"s_mul_i32 s{sQw}, s3, 24576"); A(f"s_add_u32 s{sTmp}, s{sH}, s{sQw}")
    A(f"s_sub_u32 s{sQB}, s{sQA}, 32"); A(f"s_subb_u32 s{sQB+1}, s{sQA+1}, 0")
    A(f"s_sub_u32 s{sQA}, s{sQA}, 1056"); A(f"s_subb_u32 s{sQA+1}, s{sQA+1}, 0")
    o.append(setm0(slotQ(0)))
    A(f"s_mov_b64 s[{sQA+2}:{sQA+3}], s[{sKA+2}:{sKA+3}]"); A(f"s_mov_b64 s[{sQB+2}:{sQB+3}], s[{sKA+2}:{sKA+3}]")
    o+=[qdma(0,0,j,sTmp) for j in range(4)]
    if cfg.su&1:
        o.append(setm0(1)); A(f"s_add_u32 s4, s{sOff}, 8192")
        o+=[kvdma(0,1,j,4) for j in (0,2)]
        o+=[setm0(0),I("s_nop 0"),kvdma(0,0,1),kvdma(0,0,3)]
    o.append(setm0(1)); A(f"s_add_u32 s{sOff}, s{sOff}, 8192")
    o+=[kvdma(0,1,j) for j in ((1,3) if cfg.su&1 else (0,2,1,3))]
    A(f"s_mov_b32 s{sO+2}, {0 if cfg.diag else TOTB}"); A(f"s_mov_b32 s{sO+3}, 0x20000")
    A(f"s_add_u32 s{sHn}, s{sH}, {HEADB}")
    A(f"s_mov_b32 s{sC}, 0x3e0293ee"); A(f"s_mov_b32 s{sNC}, 0xbe0293ee"); A(f"s_mov_b32 s{sThr}, 0x49800000")
    A(f"s_mov_b32 s{sC2}, 0x3e0293ee"); A(f"s_mov_b32 s{sC2+1}, 0x3e0293ee")
    A(f"s_add_u32 s{sEnd}, s{sW4}, {NSLOT*SLOT}")
    A(f"s_mov_b32 s{sT}, 0")
    if cfg.profO or cfg.oddB: A("s_getreg_b32 s95, hwreg(HW_REG_XCC_ID)")
    A(f"s_mov_b64 s[{sBad}:{sBad+1}], 0"); A(f"s_mov_b64 s[{sBad2}:{sBad2+1}], 0")
    A(f"s_add_u32 s{sXe}, s{sW4}, {8*SLOT}"); A(f"s_add_u32 s4, s{sW4}, {SLOT}"); A(f"s_xor_b32 s{sXe}, s{sXe}, s4")
    A(f"s_add_u32 s4, s{sW4}, {2*SLOT}"); A(f"s_xor_b32 s{sXo}, s4, s{sW4}")
    A("v_and_b32 v3, 7, v0"); A(f"v_mul_u32_u24 v{vKl}, 2080, v3")
    A("v_bfe_u32 v3, v0, 3, 1"); A(f"v_lshl_add_u32 v{vKl}, v3, 8, v{vKl}")
    A(f"v_lshl_add_u32 v{vKl}, v2, 4, v{vKl}"); A(f"v_subrev_u32 v{vKl}, s{sW4}, v{vKl}")
    A("v_bfe_u32 v3, v0, 2, 3"); A(f"v_mul_u32_u24 v{vVl}, 2080, v3")
    A("v_lshrrev_b32 v3, 5, v0"); A(f"v_lshl_add_u32 v{vVl}, v3, 8, v{vVl}")
    A("v_and_b32 v4, 3, v0"); A(f"v_lshl_add_u32 v{vVl}, v4, 3, v{vVl}")
    A(f"v_add_u32 v{vVl}, 1024, v{vVl}"); A(f"v_subrev_u32 v{vVl}, s{sW4}, v{vVl}")
    A("v_mov_b32 v11, 0x3f803f80"); A("v_cmp_eq_u32 vcc, 0, v4")
    lane_consts(A,4)
    A("v_cndmask_b32 v11, 0, v11, vcc")
    for k in range(4): A(f"v_accvgpr_write_b32 a{ONES+k}, v11")
    for s in (1,2):
        o.append(setm0(slotQ(s))); A(f"s_add_u32 s{sTmp}, s{sTmp}, 4096")
        o+=[qdma(0,s,j,sTmp) for j in range(4)]
    return o

def slow_path():
    o=[]
    A=lambda t,**k: o.append(I(t,**k))
    sP=sCur
    A("Lslow:")
    A("s_waitcnt vmcnt(0) lgkmcnt(0)")
    A(f"s_mul_i32 s{sP}, s3, {SLOT}")
    A(f"s_add_u32 s{sTmp}, s{sP}, s{sW4}")
    o+=setrd(sTmp)
    A(f"v_lshrrev_b32 v0, 4, v{vKVB}"); A("v_lshrrev_b32 v2, 4, v0")
    lane_consts(A,sTmp)
    A(f"s_mov_b32 m0, s{sTmp}")
    A(f"s_add_u32 s{sOff}, s{sH}, s{sQw}")
    for s in range(6):
        o+=[qdma(0,s,j) for j in range(4)]
        A("s_waitcnt vmcnt(0)")
        for ks in range(4): A(f"ds_read_b128 {ar(Qr(s,ks))}, v{vQ+ks}")
        A(f"s_add_u32 s{sOff}, s{sOff}, 4096")
        A("s_waitcnt lgkmcnt(0)")
    for s in range(6): A(f"v_mov_b32 v{MN+s}, 0xff800000")
    def loadkv():
        for j in range(4):
            A(f"s_add_u32 m0, s{sP}, {j*WREG}"); A("s_nop 0")
            o.extend(kvdma(0,0,jj) for jj in range(4))
            A(f"s_add_u32 s{sOff}, s{sOff}, 2048")
        A("s_waitcnt vmcnt(0)")
    A(f"s_mov_b32 s{sOff}, s{sH}"); A(f"s_mov_b32 s{sT}, 0")
    A("Lslow1:")
    loadkv()
    o+=frag_reads(0,0,tags=False)[:8]
    A("s_waitcnt lgkmcnt(0)")
    for s in range(6):
        o+=qk_mfmas(s,0,0)
        A("s_nop 7")
        for e in range(0,8,2): A(f"v_max3_f32 v{MN+s}, v{MN+s}, v{SB[0]+e}, v{SB[0]+e+1}")
    A(f"s_add_u32 s{sT}, s{sT}, 1"); A(f"s_cmp_lt_u32 s{sT}, 12"); A("s_cbranch_scc1 Lslow1")
    for s in range(6):
        m=MN+s
        A(f"v_mov_b32 v{T1}, v{m}"); A("s_nop 1"); A(f"v_permlane16_swap_b32 v{m}, v{T1}"); A(f"v_max_f32 v{m}, v{m}, v{T1}")
        A(f"v_mov_b32 v{T1}, v{m}"); A("s_nop 1"); A(f"v_permlane32_swap_b32 v{m}, v{T1}"); A(f"v_max_f32 v{m}, v{m}, v{T1}")
        A(f"v_mul_f32 v{m}, s{sNC}, v{m}")
    for r in range(64,256): A(f"v_mov_b32 v{r}, 0")
    for r in range(224,248): A(f"v_accvgpr_write_b32 a{r}, 0")
    A(f"s_mov_b32 s{sOff}, s{sH}"); A(f"s_mov_b32 s{sT}, 0")
    A("Lslow2:")
    loadkv()
    fr=frag_reads(0,0,tags=False)
    for k in range(3):
        o+=fr[8*k:8*k+8]; A("s_waitcnt lgkmcnt(0)")
    for s in range(6):
        o+=qk_mfmas(s,0,0)
        A("s_nop 7")
        for gp in sm_gaps(s,0,0): o+=gp
        A("s_nop 1")
        o+=pv_mfmas(s,0,0,False)
    A(f"s_add_u32 s{sT}, s{sT}, 1"); A(f"s_cmp_lt_u32 s{sT}, 12"); A("s_cbranch_scc1 Lslow2")
    A("s_nop 7")
    A(f"s_add_u32 s{sSt}, s{sH}, s{sQw}")
    for s in range(6):
        o+=e_head(s,None,None,T1)
        for dt in range(8): o+=e_pk(s,dt,None,T1)
        for dt in range(8): o+=e_cvt(s,dt,None)
        for dt in range(8): o.append(e_wr(s,dt,0,None,None))
        o+=epi_rd(s,0,None)+[I("s_waitcnt lgkmcnt(0)")]+epi_st(s,"",sSt)
        A(f"s_add_u32 s{sSt}, s{sSt}, 4096")
    A("s_branch Lslow_ret")
    for x in o:
        for k in ('tag','slot','wslot','wtag'): x.meta.pop(k,None)
    return o

def resolve(trace):
    vm=[]; lg=[]
    for x in trace:
        if x.label or x.meta.get('skip'): continue
        if 'auto_vm' in x.meta:
            idx=[k for k,y in enumerate(vm) if y.meta.get('tag')==x.meta['auto_vm'] and x.meta.get('wpart') in (None,y.meta.get('part'))]
            n=min(63,len(vm)-1-max(idx)); x.text=x.text.replace("vmcnt(AUTO)",f"vmcnt({n})"); x.meta['loose_ok']=True
        if 'auto_lg' in x.meta:
            k=[i for i,y in enumerate(lg) if y is x.meta['auto_lg']]
            assert k, "WL target not issued before wait: "+x.meta['auto_lg'].text
            n=min(15,len(lg)-1-k[0]); x.text=x.text.replace("lgkmcnt(AUTO)",f"lgkmcnt({n})")
        if x.kind=='vmem': vm.append(x)
        if x.kind=='ds': lg.append(x)

def build():
    set_units()
    P=prologue(); SA=startA(); TR=trans(); TB=[tailK,tailB,tailQ][cfg.G]()
    txt=lambda L:[x.text for x in L if not x.text.startswith(';')]
    assert txt(loopA2(0))==txt(loopA2(1))
    tb=range(1,3) if cfg.profB0 else range(3)
    for t in tb: assert txt(loopB(t))==txt(loopB(tb[0]))
    if cfg.loopR:
        assert txt(rampA(0))==txt(rampA(1)); RAt=rampA(0)+rampA(1); RA=[I(".p2align 3"),I("LloopA1:")]+rampA(0)
    else: RA=RAt=rampA()
    PB_=peelB() if cfg.profB0 else []
    extra=[]
    if cfg.profO:
        RO=rampA(prof=cfg.profO)
        t2=prologue()+startA()+RO+midA()+loopA2(0); resolve(t2)
        for p in check_trace([x for x in t2 if not x.meta.get('skip')]): print("ODD:",p)
        RA=[I("s_bitcmp1_b32 s95, 0"), I("s_cbranch_scc1 LrampO")]+RA+[I("s_branch LrampJ"), I("LrampO:")]+RO+[I("LrampJ:")]
    if cfg.midprof:
        MA=staticA(); trace=P+SA+MA+TR+PB_
    else: trace=P+SA+RAt+midA()+loopA2(0)+loopA2(1)+TR+PB_
    for t in tb: trace+=loopB(t)
    trace+=TB
    resolve(trace)
    probs=check_trace([x for x in trace if not x.meta.get('skip')])
    sp=slow_path()
    probs+=check_trace(sp+slow_path())
    seen=set()
    for p in probs:
        if p not in seen: print(p); seen.add(p)
    nd=(lambda L:[x for x in L if not getattr(x,'dma',False)]) if cfg.diag=='nodma' else (lambda L:L)
    if cfg.pads: P=P+[I("s_branch Lmain"), I(".p2align 12"), I("Lmain:")]
    if cfg.midprof: S=list(P)+stamp(0)+SA+stamp(1)+nd(MA)
    else: S=list(P)+stamp(0)+SA+stamp(1)+nd(RA)+midA()+[I(".p2align 3"),I("LloopA2:")]+nd(loopA2(0))
    if cfg.oddB: PB_=[I("s_bitcmp1_b32 s95, 0"), I(f"s_cselect_b32 s{sT}, -1, 0"), I("s_cbranch_scc1 LloopB")]+PB_
    S+=stamp(2)+nd(TR)+stamp(3)+nd(PB_)+[I(".p2align 3"),I("LloopB:")]+nd(loopB(tb[0]))
    S+=stamp(4)+TB+stamp(5)
    if cfg.slow:
        S+=[I(f"s_or_b64 s[62:63], s[{sBad}:{sBad+1}], s[{sBad2}:{sBad2+1}]"), I("s_barrier"), I("s_cbranch_scc1 Lslow_entry")]
    S+=[I("Lfin:")]
    if cfg.stamps:
        S+=[I("s_waitcnt vmcnt(0)"), I(f"s_memtime s[{sStamp+16}:{sStamp+17}]"), I(f"s_memrealtime s[{sStamp+18}:{sStamp+19}]"), I("s_waitcnt lgkmcnt(0)")]
        if cfg.echo>=0:
            esrc=[sStamp+2]+[sStamp+4+2*k for k in range(6)]+[sStamp+18]
            S+=[I(f"s_add_u32 s62, s{esrc[cfg.echo]}, 10000"), I("Lspin:"), I("s_sleep 2"), I("s_memrealtime s[88:89]"), I("s_waitcnt lgkmcnt(0)"),
                I("s_sub_u32 s63, s88, s62"), I("s_cmp_lt_i32 s63, 0"), I("s_cbranch_scc1 Lspin")]
        S+=[I(f"v_mov_b32 v8, s{sStamp+2}"), I(f"v_mov_b32 v9, s{sStamp+18}")]
        srcs=[sStamp+4+2*k for k in range(6)]+[sStamp+(18 if cfg.rt else 16)]
        for k,r in enumerate(srcs):
            S+=[I(f"s_sub_u32 s{sTmp}, s{r}, s{sStamp+(2 if cfg.rt else 0)}"), I(f"v_mov_b32 v{10+k}, s{sTmp}")]
        S+=[I("v_mov_b32 v17, 0"), I("v_mov_b32 v18, 0"), I("s_getreg_b32 s62, hwreg(HW_REG_XCC_ID)"), I("v_mov_b32 v19, s62")]
        S+=[I(f"s_mov_b32 s28, s{sDbg}"), I(f"s_mov_b32 s29, s{sDbg+1}"), I(f"s_mov_b32 s30, {cfg.dbgsz}"), I("s_mov_b32 s31, 0x20000"),
            I("s_lshl_b32 s62, s2, 8"), I("s_lshl_b32 s63, s3, 6"), I("s_add_u32 s62, s62, s63"), I("v_mov_b32 v1, 0")]
        if cfg.tl:
            S+=TL()+[I("s_waitcnt lgkmcnt(0)")]+TL()+[I("s_lshl_b32 s61, s62, 3"), I("s_add_u32 s61, s61, 65536"), I(f"v_lshrrev_b32 v5, 2, v{vKVB}"),
                I("buffer_store_dword v0, v5, s[28:31], s61 offen"), I("buffer_store_dword v61, v5, s[28:31], s61 offen offset:256")]
        S+=[I("s_mov_b64 exec, 1"),
            I("buffer_store_dwordx4 v[8:11], v1, s[28:31], s62 offen"), I("buffer_store_dwordx4 v[12:15], v1, s[28:31], s62 offen offset:16"), I("buffer_store_dwordx4 v[16:19], v1, s[28:31], s62 offen offset:32")]
    S+=[I("Lend:"), I("s_endpgm")]
    if cfg.slow:
        S+=[I("Lslow_entry:"), I(f"s_cmp_lg_u64 s[{sBad}:{sBad+1}], 0"), I("s_cbranch_scc1 Lslow"),
            I("Lslow_ret:"), I(f"s_cmp_eq_u64 s[{sBad2}:{sBad2+1}], 0"), I("s_cbranch_scc1 Lfin"),
            I(f"s_mov_b64 s[{sBad2}:{sBad2+1}], 0"), I(f"s_mov_b32 s{sH}, s{sHn}")]
        S+=sp
    else: S+=[I(".fill 2048, 4, 0xbf810000")]
    return S, bool([p for p in probs if not p.startswith("NOTE")])

from gen import HDR, FTR
def isize(x):
    return SZ[x.text]
def write(fn):
    S,bad=build()
    if cfg.pads and SZ:
        out=[]; addr=None; k=1
        for n,x in enumerate(S):
            out.append(x)
            if x.text=="Lmain:": addr=0; continue
            if addr is None: continue
            if x.text==".p2align 3": addr=(addr+7)&~7; continue
            if x.label: continue
            a0=addr; addr+=SZ.get(x.text,4)
            if k<=NPADS and addr>=k*cfg.pads+cfg.padoff and (x.kind=='mfma' or addr>=k*cfg.pads+cfg.padoff+24) and not x.op.startswith('s_cbranch') and not x.op.startswith('s_branch') and x.text!='s_mov_b64 exec, 0':
                out+=[I(f"Lpad{k}:"), I(f"s_cbranch_execz Lret{k}")]; addr+=4; k+=1
        assert k==NPADS+1,(k,NPADS)
        S=out
    with open(fn,"w") as f:
        f.write(HDR%(LDSB,NAME,NAME,NAME))
        for x in S:
            t=x.text
            if cfg.drop=='exp' and t.startswith('v_exp'): t=t.replace('v_exp_f32','v_mov_b32')
            if cfg.drop=='exp0' and t.startswith('v_exp'): continue
            if cfg.drop=='fma' and t.startswith('v_fma'): continue
            if cfg.drop=='sum' and t.startswith(MF+' a['): continue
            f.write((t if (t.endswith(':') or t.startswith('.')) else "    "+t)+"\n")
        f.write(FTR%NAME)
    return bad
SZ={}
def sizes(co):
    import subprocess
    out=subprocess.run(["llvm-objdump","-d","--mcpu=gfx950",co],capture_output=True,text=True).stdout
    sym={m.group(2):int(m.group(1),16) for m in re.finditer(r"^([0-9a-f]+) <(\w+)>:",out,re.M)}
    last=int(re.findall(r"// ([0-9A-F]{12}):",out)[-1],16)
    st=sym.get('Lmain',sym[NAME])
    return sym.get('Lfin',sym.get('Lend'))-st, last+4-st
if __name__=="__main__":
    ap=argparse.ArgumentParser()
    ap.add_argument("out"); ap.add_argument("opts",nargs="*")
    a=ap.parse_args()
    for kv in a.opts:
        k,v=kv.split("=",1)
        cur=getattr(cfg,k)
        setattr(cfg,k, (v in("1","True","true")) if isinstance(cur,bool) else (int(v) if isinstance(cur,int) else v.replace("+"," ")))
    from mkco import build as mk
    for it in range(4):
        bad=write(a.out); co=mk(a.out); hot,tot=sizes(co)
        need=-(-hot//(32*128))
        done=(need==CPF_LINES)
        CPF_LINES=need
        if cfg.pads:
            import subprocess
            lst=subprocess.run(["llvm-objdump","-d","--mcpu=gfx950",co],capture_output=True,text=True).stdout
            lst=lst[lst.index("<Lmain>:"):]
            enc=[len(m.group(1).split())*4 for m in re.finditer(r"// [0-9A-F]{12}: ([0-9A-F ]+)",lst)]
            src=open(a.out).read(); src=src[src.index("Lmain:\n"):].split("\n")[1:]
            j=0; addr=0
            for ln in src:
                t=ln.strip()
                if t.startswith(".section"): break
                if t==".p2align 3":
                    if addr%8: j+=1; addr+=4
                    continue
                if not t or t.startswith(";") or t.endswith(":") or t.startswith("."): continue
                SZ[t]=enc[j]; addr+=enc[j]; j+=1
            np_=(hot-64-cfg.padoff)//cfg.pads
            if np_!=NPADS: done=False
            NPADS=np_
        if done and it>0: break
    assert 32*128*CPF_LINES+256<=tot, (hot,tot)
    print(co, "PROBLEMS" if bad else "clean", "hot",hot,"total",tot,"cpf lines",CPF_LINES)
```

```python
import sys, argparse, re, functools
sys.path.insert(0,'work')
from asmlib import I, check_trace
NAME="standalone__gqa_softmax__near_ridge_kernel"
SLOT=16640; WREG=4160; NSLOT=9
LDSB=NSLOT*SLOT
HEADB=98304
TOTB=50331648

class Cfg:
    ld="nt"; st="sc1"; st2="nt"
    stamps=False; rt=False; tl=False; dbgsz=0x400000; echo=-1; diag=''
    slow=True; cpf=True
    rho=3; rhoG=3; rhoE=8
    prof='47,47,44,40'
    loopR=False
    profB='00,00'
    profB0='40,20'
    profO=''
    oddB=False
    midprof=''
    profS=0
    G=1
    rho2=8; nd1=13
    tls=False
    su=0
    bar11=0
    pads=0
    padoff=0
    st3=''; n3=3
    pkf=0
    drop=''
    dl=0
cfg=Cfg()

def O(s,dt): return 64+32*s+4*dt
SB=[16,24]; PB=[32,36]
MN=40
vK,vV,vKl,vVl=46,47,48,49
vD=[50,51]
vQ=52
vR=[56,63]
vKVA,vKVB,vQA,vQB=57,58,59,60
vW=[5,6,7,62]
T0,T1,T2,T3=1,2,3,4
DR=[8,12]
QREGS=[vQ+k for k in range(4)]
def Qr(s,ks): return 16*s+4*ks
def Kf(par,i): return 96+32*par+4*i
def Vf(par,dt): return 160+32*par+4*dt
def Lr(s): return 224+4*s
ONES=248
sKA,sVB,sQA,sQB,sO=8,12,16,20,24
sOff,sCur,sC,sH,sW4,sT,sPe,sEnd,sKVw,sQw,sThr=40,42,43,44,45,46,47,48,49,50,51
sBad=52; sBad2=96
sTmp,sSt,sNC,sHn,sDbg=55,57,58,59,60
sSd,sDi=41,54
sStamp=64
sPo,sXe,sXo=92,93,94
sC2=38

def vr(a,n=4): return f"v[{a}:{a+n-1}]"
def ar(a,n=4): return f"a[{a}:{a+n-1}]"
def sr(a,n=4): return f"s[{a}:{a+n-1}]"
def offs(o): return f" offset:{o}" if o else ""

def slotKV(h,b):
    if b<2: return b
    if h==0: return (6+b)%9
    return [8,0,1,2][(b-2)%4]
def slotQ(s): return 2+s
UOFF=[0,1024,2080,3104]
def dma(j,tag,slot,q,off=sOff):
    A,B,va,vb=(sQA,sQB,vQA,vQB) if q else (sKA,sVB,vKVA,vKVB)
    p=f" {cfg.ld}" if cfg.ld else ""
    return I(f"buffer_load_dwordx4 v{[va,va,vb,vb][j]}, {sr([A,B,A,B][j])}, s{off} offen{offs(UOFF[j])}{p} lds", tag=tag, slot=slot, part=(None if q else 'KV'[j&1]))
def kvdma(h,b,j,off=sOff): return dma(j,f"h{h}KV{b}",slotKV(h,b),False,off)
def qdma(h,s,j,off=sOff): return dma(j,f"h{h}Q{s}",slotQ(s),True,off)
def pdma(n,j):
    if n<18: return kvdma(0,n-6,j)
    if n<20: return kvdma(1,n-18,j)
    return qdma(1,n-20,j)
def setm0(slot): return I(f"s_add_u32 m0, s{sW4}, {slot*SLOT}") if slot else I(f"s_mov_b32 m0, s{sW4}")
def frag_reads(h,b,base=0,rk=vK,rv=vV,tags=True):
    m=dict(src=f"h{h}KV{b}",slot=slotKV(h,b)) if tags else {}
    par=b&1
    return [I(f"ds_read_b128 {ar(Kf(par,i))}, v{rk}{offs(base+(i//4)*512+(i%4)*64)}",part='K',**m) for i in range(8)]+\
           [I(f"ds_read_b64_tr_b16 {ar(Vf(par,i//2)+2*(i%2),2)}, v{rv}{offs(base+(i%2)*512+(i//2)*32)}",part='V',**m) for i in range(16)]
def qreads(h,s): return [I(f"ds_read_b128 {ar(Qr(s,ks))}, v{vQ+ks}{offs((s%4)*SLOT)}", src=f"h{h}Q{s}", slot=slotQ(s), private=True) for ks in range(4)]
def bias(regs,up): return [I(f"{'v_add_u32' if up else 'v_subrev_u32'} v{r}, {4*SLOT}, v{r}") for r in regs]
def setrd(reg,rk=vK,rv=vV): return [I(f"v_add_u32 v{rk}, s{reg}, v{vKl}"), I(f"v_add_u32 v{rv}, s{reg}, v{vVl}")]

FA=[(b,s) for s in range(6) for b in (0,1)]
LA=[(10,0),(10,1),(10,2),(11,0),(11,1),(10,3),(11,2),(10,4),(11,3),(10,5),(11,4),(11,5)]
FB=[(0,0),(0,1),(1,0),(0,2),(1,1),(0,3),(1,2),(0,4),(1,3),(0,5),(1,4),(1,5)]
MID=[(b,s) for b in range(2,10) for s in range(6)]
GB=[(b,s) for b in (8,9,10,11) for s in (0,1,2)]+[(8,3),(8,4),(8,5),(9,3),(9,4),(9,5),(10,3),(11,3),(10,4),(11,4),(10,5),(11,5)]
LB=[(10,0),(10,1),(10,2),(11,0),(11,1),(11,2),(10,3),(11,3),(10,4),(11,4),(10,5),(11,5)]
LQ=[(b,s) for s in range(6) for b in (10,11)]
UNITS=[]
def set_units():
    UNITS[:]=[(0,)+u for u in FA+MID+LA]+[(1,)+u for u in (FB+MID[:36]+GB if cfg.G==1 else FB+MID+(LB if cfg.G==0 else LQ))]
def unit(i): return UNITS[i] if 0<=i<len(UNITS) else None

MF="v_mfma_f32_16x16x32_bf16"
def qk_mfmas(s,kpar,sb,u=None):
    o=[]
    for i in range(8):
        kt,ks=divmod(i,4); d=SB[sb]+4*kt
        x=I(f"{MF} {vr(d)}, {ar(Kf(kpar,i))}, {ar(Qr(s,ks))}, {'0' if ks==0 else vr(d)}")
        if u:
            x.meta['expect']={**{r:f"h{u[0]}KV{u[1]}" for r in x.A}, **{r:f"h{u[0]}Q{u[2]}" for r in x.B}}
            x.meta['set']={r:f"S{u}" for r in x.wr}
        o.append(x)
    return o
def pv_mfmas(s,vpar,pb,first,u=None):
    o=[I(f"{MF} {vr(O(s,dt))}, {ar(Vf(vpar,dt))}, {vr(PB[pb])}, {'0' if first else vr(O(s,dt))}") for dt in range(8)]
    o.append(I(f"{MF} {ar(Lr(s))}, {ar(ONES)}, {vr(PB[pb])}, {'0' if first else ar(Lr(s))}"))
    if u:
        cnt=sum(1 for y in UNITS[:UNITS.index(u)] if y[0]==u[0] and y[2]==u[2])
        for k,x in enumerate(o):
            e={r:f"P{u}" for r in x.B}
            if k<8: e.update({r:f"h{u[0]}KV{u[1]}" for r in x.A})
            if not first: e.update({r:f"O{u[0]}n{cnt}" for r in x.wr})
            x.meta['expect']=e; x.meta['set']={r:f"O{u[0]}n{cnt+1}" for r in x.wr}
    return o
FREE=(5,11,16)
def sm_gaps(s,sb,pb,u=None):
    S=SB[sb]; P=PB[pb]
    T=(lambda **k:k) if u else (lambda **k:{})
    f=lambda e: I(f"v_fma_f32 v{S+e}, v{S+e}, s{sC}, v{MN+s}", **T(expect={('v',S+e):f"S{u}",('v',MN+s):f"M{u and u[0]}"}))
    x=lambda e: I(f"v_exp_f32 v{S+e}, v{S+e}", **T(expect={('v',S+e):f"S{u}"}))
    c=lambda e: I(f"v_cvt_pk_bf16_f32 v{P+e//2}, v{S+e}, v{S+e+1}", **T(expect={('v',S+e):f"S{u}",('v',S+e+1):f"S{u}"}, set={('v',P+e//2):f"P{u}"}))
    if cfg.pkf:
        mb=MN+(s&~1); sel="op_sel:[0,0,1] op_sel_hi:[1,0,1]" if s&1 else "op_sel_hi:[1,0,0]"
        pf=lambda e: I(f"v_pk_fma_f32 v[{S+e}:{S+e+1}], v[{S+e}:{S+e+1}], s[{sC2}:{sC2+1}], v[{mb}:{mb+1}] {sel}", **T(expect={('v',S+e):f"S{u}",('v',MN+s):f"M{u and u[0]}"}))
        if cfg.pkf==1: return [[pf(0)],[x(0)],[x(1)],[pf(2)],[x(2)],[],[x(3)],[pf(4)],[x(4)],[x(5)],[pf(6)],[],[x(6)],[x(7)],[c(0),c(2)],[c(4),c(6)],[]]
        return [[pf(0),pf(2),pf(4),pf(6)],[x(0)],[x(1)],[],[x(2)],[],[x(3)],[],[x(4)],[x(5)],[],[],[x(6)],[x(7)],[c(0),c(2)],[c(4),c(6)],[]]
    return [[f(0),f(1)],[x(0)],[x(1)],[f(2),f(3)],[x(2)],[],[x(3)],[f(4),f(5)],[x(4)],[x(5)],[f(6),f(7)],[],[x(6)],[x(7)],[c(0),c(2)],[c(4),c(6)],[]]
def max_seq(s,sb,h):
    S=SB[sb]
    return [I(f"v_max3_f32 v{T0}, v{S}, v{S+1}, v{S+2}"), I(f"v_max3_f32 v{T3}, v{S+3}, v{S+4}, v{S+5}"),
            I(f"v_max3_f32 v{T0}, v{T0}, v{S+6}, v{S+7}"), I(f"v_max_f32 v{T0}, v{T0}, v{T3}"),
            I(f"v_mov_b32 v{T3}, v{T0}"), I(f"v_permlane16_swap_b32 v{T0}, v{T3}"),
            I(f"v_max_f32 v{T0}, v{T0}, v{T3}"), I(f"v_mov_b32 v{T3}, v{T0}"),
            I(f"v_permlane32_swap_b32 v{T0}, v{T3}"), I(f"v_max_f32 v{T0}, v{T0}, v{T3}"),
            I(f"v_mul_f32 v{MN+s}, s{sNC}, v{T0}", set={('v',MN+s):f"M{h}"})]
MAXG=[11,11,12,12,12,13,14,14,15,16,16]
def put(ex,g,items): ex.setdefault(g,[]).extend(items)

def step(i, ex=None, post=None, clump=0, sumfirst=False):
    ex=ex or {}; post=post or {}
    q,m,p=unit(i+1),unit(i),unit(i-1)
    mf=(qk_mfmas(q[2],q[1]&1,(i+1)&1,q) if q else [None]*8)+(pv_mfmas(p[2],p[1]&1,(i-1)&1,p[1]==0,p) if p else [None]*9)
    if sumfirst: mf=mf[:8]+[mf[16]]+mf[8:16]
    g=sm_gaps(m[2],i&1,i&1,m) if m else [[] for _ in range(17)]
    for src,dst in [(2,1),(9,8),(13,12),(15,14),(4,3),(7,6),(1,0)][:clump]:
        g[dst]=g[dst]+g[src]; g[src]=[]
    tailmax=[]
    if q and q[1]==0:
        ms=max_seq(q[2],(i+1)&1,q[0])
        if p and m:
            for gg,x in zip(MAXG,ms): g[gg]=g[gg]+[x]
        else:
            for x in ms:
                if x.op.startswith('v_permlane'): tailmax.append(I("s_nop 1"))
                tailmax.append(x)
    out=[I(f"; ---- step {i}: QK{q} softmax{m} PV{p}")]
    if cfg.tls and i<=30:
        w=I("s_waitcnt lgkmcnt(0)"); w.meta['skip']=True
        out+=[w]+TL()
    out+=ex.get(-1,[])
    for k in range(17):
        if mf[k] is not None: out.append(mf[k])
        out+=ex.get(k,[])+g[k]+post.get(k,[])
    return out+tailmax+ex.get(17,[])

def free_gaps(ex,lo,n,avoid=()):
    return [x for x in range(lo,17) if x not in FREE and x not in ex and x not in avoid][:n]
def spread(ex,lo,items,avoid=()):
    gs=free_gaps(ex,lo,len(items),avoid)
    while len(gs)<len(items): gs.append(gs[-1])
    for x,i in zip(gs,items): put(ex,x,[i])
def TL():
    if not cfg.tl: return []
    r=[I("s_mov_b64 exec, s[90:91]"), I("v_mov_b32 v0, s98"), I("v_mov_b32 v61, s100"), I("s_mov_b64 exec, -1"), I("s_lshl_b64 s[90:91], s[90:91], 1"), I("s_memtime s[98:99]"), I("s_memrealtime s[100:101]")]
    for x in r: x.meta['skip']=True
    return r
def BAR(): return [I("s_barrier")]+([] if cfg.tls else TL())
def WV(tag,lg0=False,part=None): return I("s_waitcnt vmcnt(AUTO)"+(" lgkmcnt(0)" if lg0 else ""), auto_vm=tag, need=tag, wpart=part)
def WL(x): return I("s_waitcnt lgkmcnt(AUTO)", auto_lg=x)

def kind(x):
    if x.op.startswith('ds_read'): return 'r'
    if x.op.startswith('ds_write'): return 'w'
    if getattr(x,'dma',False): return 'd'
    if getattr(x,'store',False): return 's'
    return 'a'
def gapcost(ks,free):
    if not ks: return 0
    U={'r':4,'d':6,'w':12,'s':12,'a':4}
    c=sum(U[k] for k in ks)
    if ks[0]=='a': c-=4
    if len(ks)==1 and ks[0]=='d': c=4 if not free else 8
    for p,q in zip(ks,ks[1:]):
        if p=='w' and q=='r': c+=12
    st=12*ks.count('s')
    if free: return st+max(0,c-st-8)
    return c+4*max(0,len([k for k in ks if k!='a'])-1)
def place(ex,groups,lo=0,hi=16,free=FREE):
    groups=[g if isinstance(g,list) else [g] for g in groups]
    n=len(groups)
    if not n: return
    base={g:[kind(x) for x in ex.get(g,[]) if not x.label and not x.meta.get('skip')] for g in range(17)}
    @functools.lru_cache(None)
    def f(g,i):
        if i==n: return (0,())
        if g>hi: return (1e9,())
        best=(1e9,())
        for m in range(0,min(4,n-i)+1):
            ks=base[g]+[kind(x) for gr in groups[i:i+m] for x in gr]
            c=gapcost(ks,g in free)-gapcost(base[g],g in free)
            c+=0.01*sum(abs(g-(lo+(hi-lo)*(j+0.5)/n)) for j in range(i,i+m))
            r=f(g+1,i+m)
            if c+r[0]<best[0]: best=(c+r[0],(g,)*m+r[1])
        return best
    c,gs=f(lo,0)
    assert len(gs)==n
    for g,gr in zip(gs,groups): put(ex,g,gr)

def put_reads(ex,post,reads,r,late):
    rs=reads[4*r:4*r+4]
    nw=max(0,late-4); late=min(late,4)
    if late:
        gs=[6,8,12,13] if r<5 else [2,6,8,9]
        for k in range(late): put(post,gs[k],[rs[k]]+([I("s_waitcnt lgkmcnt(0)")] if k in [3,1,2,0][:nw] else []))
        if rs[late:]: put(ex,16 if r<5 else 11,rs[late:])
    else:
        rg=(5,16) if r<5 else (5,11)
        put(ex,rg[0],rs[:2]); put(ex,rg[1],rs[2:])
def loop_end(ex,lab,n):
    put(ex,13,[I(f"s_add_u32 s{sT}, s{sT}, 1")]); put(ex,15,[I(f"s_cmp_lt_u32 s{sT}, {n}")]); put(ex,16,[I(f"s_cbranch_scc1 {lab}")])

def blockA(b,pairs,pf,nv=None,lab=None,n=0):
    late,clump=int(pf[0]),int(pf[1])
    reads=frag_reads(0,b+1); tag=f"h0KV{b+1}"
    out=[]
    inc=4096 if pairs[0]>=20 else 8192
    if len(pairs)==2: dpos={0:[(0,0,11)],1:[(0,1,3),(0,2,11)],2:[(0,3,11)],3:[(1,0,11)],4:[(1,1,3),(1,2,11)],5:[(1,3,14)]}; advr=(0,3)
    else: dpos={0:[(0,0,11)],2:[(0,1,11)],3:[(0,2,11)],4:[(0,3,11)]}; advr=(0,)
    for r in range(6):
        ex={}; post={}
        if r==0:
            put(ex,0,[I(f"s_waitcnt vmcnt({nv}) lgkmcnt(0)", need=tag, loose_ok=True) if nv is not None else WV(tag,True)])
            put(ex,1,BAR()); put(post,4,setrd(sCur))
        put_reads(ex,post,reads,r,late)
        for (p,j,g) in dpos.get(r,[]): put(ex,g,[pdma(pairs[p],j)])
        if r in advr: spread(ex,2,[I(f"s_add_u32 m0, m0, {SLOT}"), I(f"s_cmp_ge_u32 m0, s{sEnd}"), I(f"s_cselect_b32 m0, s{sW4}, m0"), I(f"s_add_u32 s{sOff}, s{sOff}, {inc}")])
        if r==3: put(ex,15,[I(f"s_waitcnt lgkmcnt({4+late if late else 6})")])
        if r==5:
            spread(ex,0,[I(f"s_add_u32 s{sCur}, s{sCur}, {SLOT}"), I(f"s_cmp_ge_u32 s{sCur}, s{sEnd}"), I(f"s_cselect_b32 s{sCur}, s{sW4}, s{sCur}")])
            if lab: loop_end(ex,lab,n)
        out+=step(6*b+1+r,ex,post,clump)
    return out
def rampA(t=None,prof=None):
    pf=(prof or cfg.prof).split(',')
    if t is not None:
        n=12+4*t
        return blockA(2*t+2,[n,n+1],pf[0],nv=8)+blockA(2*t+3,[n+2,n+3],pf[1],nv=12,lab="LloopA1",n=2)
    o=[]
    for k,b in enumerate(range(2,6)): o+=blockA(b,[12+2*k,13+2*k],pf[k])
    return o
def staticA():
    out=[]
    seq=[(n,j) for n in range(12,24) for j in range(4)]
    pos={4:[(0,11),(2,11),(3,11),(4,11)], 5:[(0,11),(1,11),(2,11),(3,11),(4,11)], 6:[(0,11),(1,11),(2,11),(3,11),(4,11),(5,14)],
         7:[(0,11),(1,11),(2,3),(2,11),(3,11),(4,11),(5,14)], 8:[(0,11),(1,3),(1,11),(2,11),(3,11),(4,3),(4,11),(5,14)]}
    pf=cfg.midprof.split(',')
    assert sum(int(p[2]) for p in pf)==48
    for b,p in zip(range(2,10),pf):
        late,clump,nd=int(p[0]),int(p[1]),int(p[2])
        sl=slotKV(0,b+1); base=(sl%4)*SLOT
        reads=frag_reads(0,b+1,base=base); tag=f"h0KV{b+1}"
        for r in range(6):
            ex={}; post={}
            lb=2 if (b==2 and cfg.su&4) else 0
            if r==0 and lb: put(ex,7,[I("s_waitcnt lgkmcnt(0)")])
            if r==lb:
                put(ex,0,[WV(tag,True)]); put(ex,1,BAR())
                if sl%4==0:
                    put(ex,2,[I(f"s_add_u32 s{sCur}, s{sW4}, {sl*SLOT}")]); put(post,4,setrd(sCur))
            if lb:
                if r>=2:
                    rr=reads[6*(r-2):6*(r-2)+6]
                    gs=[6,8,12,13] if r<5 else [2,6,8,9]
                    put(ex,5,rr[:2])
                    for k in range(4): put(post,gs[k] if r<5 else [6,8,9,10][k],[rr[2+k]]+([I("s_waitcnt lgkmcnt(0)")] if k in [3,1,2,0][:max(0,late-4)] else []))
            else: put_reads(ex,post,reads,r,late)
            for (rr,g) in pos[nd]:
                if rr==r:
                    n,j=seq.pop(0)
                    if j==0:
                        pre=[setm0(n%9), I(f"s_add_u32 s{sOff}, s{sOff}, {4096 if n>20 else 8192}") if n!=20 else I(f"s_add_u32 s{sOff}, s{sHn}, s{sQw}")]
                        gs=[x for x in range(g-1,-1,-1) if x not in ex and x not in FREE][:2]
                        while len(gs)<2: gs.append(g)
                        put(ex,gs[1],[pre[0]]); put(ex,gs[0],[pre[1]])
                    put(ex,g,[pdma(n,j)])
            if r==3: put(ex,15,[WL(reads[7])])
            if b==9 and r==5: put(ex,12,[I(f"s_add_u32 s{sCur}, s{sW4}, {8*SLOT}")])
            out+=step(6*b+1+r,ex,post,clump)
    assert not seq
    return out
def midA(): return [I(f"s_add_u32 s{sOff}, s{sHn}, s{sQw}"), I(f"s_sub_u32 s{sOff}, s{sOff}, 4096"), I(f"s_mov_b32 s{sT}, 0")]
def loopA2(t): return blockA(2*t+6,[20+2*t],'00',nv=24)+blockA(2*t+7,[21+2*t],'00',nv=24,lab="LloopA2",n=2)

def ostore(reg,j,pol,so,tag=None):
    x=I(f"buffer_store_dwordx4 {vr(reg)}, v{vKVB}, {sr(sO)}, s{so} offen{offs(1024*j)}"+(f" {pol}" if pol else ""))
    if tag: x.meta['expect']={r:tag for r in x.data}
    return x
DIRECT=2
def dunit(k): return (DIRECT+k//4, k%4)
def blockB(b,pf,lab=None,n=0):
    late,clump=int(pf[0]),int(pf[1])
    t=(b-2)//2
    reads=frag_reads(1,b+1); tag=f"h1KV{b+1}"
    out=[]; lead=(b%2==0)
    rp,wp=(sPo,sPe) if lead else (sPe,sPo)
    rx=sXo if lead else sXe
    nb=cfg.dl//2; loc0=(0 if lead else nb)
    dr=[]; sts=[]
    for k in range(nb):
        sub,j=dunit(cfg.dl*t+loc0+k); jj=loc0+k
        dr.append(I(f"ds_read_b128 {vr(DR[jj&1])}, v{vD[jj&1]}{offs(1024*jj)}", src=f"O{sub}", slot=slotQ(sub), private=True))
        sts.append(ostore(DR[jj&1],jj,cfg.st,sSd,f"O{sub}"))
    for r in range(6):
        ex={}; post={}
        if r==0:
            put(ex,0,[I(f"s_waitcnt vmcnt({8+nb}) lgkmcnt(0)", need=tag, loose_ok=True)])
            put(ex,1,BAR())
            put(ex,2,[I(f"s_mov_b32 m0, s{wp}")]); put(ex,3,[I(f"s_xor_b32 s{rp}, s{rp}, s{rx}")])
            put(ex,4,[I(f"s_add_u32 s{sOff}, s{sOff}, 8192")]); put(post,4,setrd(rp))
        put_reads(ex,post,reads,r,late)
        if r<4: put(ex,11,[kvdma(1,b+4,r)])
        if r==3: put(ex,15,[I(f"s_waitcnt lgkmcnt({4+late if late else 6})")])
        if r==4 and nb: put(ex,11,dr)
        if r==5 and nb:
            put(ex,1,[I("s_waitcnt lgkmcnt(2)")]); put(ex,3,[sts[0]])
            if nb==2: put(ex,10,[sts[1]])
        if r==5 and not lead:
            if nb:
                put(ex,12,[I(f"s_add_u32 s{sSd}, s{sSd}, {1024*cfg.dl}")])
                inc=f"{SLOT}" if cfg.dl==4 else f"s{sDi}"
                put(post,16 if not lab else 7,[I(f"v_add_u32 v{vD[k]}, {inc}, v{vD[k]}") for k in range(2)])
                if cfg.dl==2: put(ex,0,[I(f"s_xor_b32 s{sDi}, s{sDi}, {2048^(SLOT-2048)}")])
            if lab: loop_end(ex,lab,n)
        out+=step(72+6*b+1+r,ex,post,clump)
    return out
def loopB(t):
    pf=cfg.profB.split(',')
    return blockB(2*t+2,pf[0])+blockB(2*t+3,pf[1],lab="LloopB",n=(2 if cfg.profB0 else 3))
def peelB():
    pf=cfg.profB0.split(',')
    return blockB(2,pf[0])+blockB(3,pf[1])

def tagexp(o,tag):
    if tag:
        h=0 if tag[0]=='O' else 1
        for x in o:
            x.meta['expect']={r:f"O{h}n12" for r in x.rd if (r[0]=='v' and r[1]>=64) or (r[0]=='a' and 224<=r[1]<248)}
    return o
def e_head(s,bad,tag,rc):
    o=[I(f"v_accvgpr_read_b32 v{T2}, a{Lr(s)}"), I(f"v_rcp_f32 v{rc}, v{T2}")]
    o.append(I(f"v_cmp_nge_f32 vcc, s{sThr}, v{T2}") if bad is not None else I("s_nop 0"))
    if bad is not None: o.append(I(f"s_or_b64 s[{bad}:{bad+1}], s[{bad}:{bad+1}], vcc"))
    return tagexp(o,tag)
def e_pk(s,dt,tag,rc):
    a=O(s,dt)
    return tagexp([I(f"v_pk_mul_f32 {vr(a+k,2)}, {vr(a+k,2)}, v[{rc}:{rc+1}] op_sel_hi:[1,0]") for k in (0,2)],tag)
def e_cvt(s,dt,tag):
    a=O(s,dt)
    return tagexp([I(f"v_cvt_pk_bf16_f32 v{a}, v{a}, v{a+1}"), I(f"v_cvt_pk_bf16_f32 v{a+1}, v{a+2}, v{a+3}")],tag)
def e_wr(s,dt,off,slot,tag,regs=vW):
    return tagexp([I(f"ds_write_b64 v{regs[dt&3]}, {vr(O(s,dt),2)}{offs(off+(dt>>2)*128)}", wslot=slot, wtag=tag)],tag)[0]
def epi_rd(s,off,slot,tag=None,regs=vR):
    m=dict(src=tag,slot=slot,private=True) if tag else {}
    return [I(f"ds_read_b128 {vr(O(s,2*j))}, v{regs[j&1]}{offs(off+1024*j)}", **m) for j in range(4)]
def epi_st(s,pol,so,tag=None): return [ostore(O(s,2*j),j,pol,so,tag) for j in range(4)]

class Epi:
    def __init__(s,rc2,so): s.rc2=rc2; s.so=so; s.tiles=[]; s.cv=[]; s.wr=[]; s.rd=[]; s.st=[]; s.info={}
    def add(s,sub,avail,off,slot,bad,tag,direct,pol,pre=()):
        s.info[sub]=dict(off=off,slot=slot,bad=bad,tag=tag,direct=direct,pol=pol,pre=list(pre))
        s.tiles+=[(avail,sub,dt) for dt in range(8)]
    def _rd(s,g):
        rd=s.rd; s.rd=[]
        for sub in rd:
            I_=s.info[sub]; r=epi_rd(sub,I_['off'],I_['slot'],I_['tag']); g+=[[x] for x in r]
            st=epi_st(sub,I_['pol'],s.so,I_['tag'])
            s.st+=[[WL(r[1]),st[0]],[st[1]],[WL(r[3]),st[2]],[st[3],I(f"s_add_u32 s{s.so}, s{s.so}, 4096")]]
    def mem(s,nst,fast=False):
        g=[]
        for _ in range(nst):
            if s.st: g.append(s.st.pop(0))
        s._rd(g)
        for sub,dt in s.wr:
            I_=s.info[sub]
            g.append(([I_['pre'][dt]] if (I_['pre'] and dt<4) else [])+[e_wr(sub,dt,I_['off'],I_['slot'],I_['tag'])])
            if dt==7 and I_['direct']: s.rd.append(sub)
        s.wr=[]
        if fast: s._rd(g)
        return g
    def chunk(s,i,n):
        take=[]
        while s.tiles and len(take)<n and s.tiles[0][0]<=i: take.append(s.tiles.pop(0)[1:])
        o=[]
        for sub,dt in s.cv: o+=e_cvt(sub,dt,s.info[sub]['tag']); s.wr.append((sub,dt))
        s.cv=[]
        heads=[]
        for sub,dt in take:
            I_=s.info[sub]; rc=T1 if sub%2==0 else s.rc2
            if dt==0: heads+=e_head(sub,I_['bad'],I_['tag'],rc)
        o=heads+o
        for sub,dt in take:
            o+=e_pk(sub,dt,s.info[sub]['tag'],T1 if sub%2==0 else s.rc2)
        k=max(1,len(take)-2) if s.tiles and s.tiles[0][0]<=i+1 else len(take)
        for sub,dt in take[:k]: o+=e_cvt(sub,dt,s.info[sub]['tag']); s.wr.append((sub,dt))
        s.cv=take[k:]
        return o
    def done(s): return not(s.tiles or s.cv or s.wr or s.rd or s.st)

NPADS=0
PADAT={}
def SITE(k): return min(9,(k-1)*10//max(NPADS,1)-1+0)
def startA():
    o=[I("; ==== head A, first two key blocks (q-major, as Q arrives)")]
    f0=frag_reads(0,0); f1=frag_reads(0,1,base=SLOT); f2=frag_reads(0,2)
    o+=setrd(sW4)
    o.append(WV("h0Q0")); o+=BAR()
    o+=qreads(0,0)+f0[:8]
    seq=[('q',s,j) for s in (3,4,5) for j in range(4)]+[('k',b,j) for b in (2,3,4,5) for j in (0,2,1,3)]
    def dm():
        k,x,j=seq.pop(0); it=[]
        if j==0:
            it+=[setm0(slotQ(x) if k=='q' else slotKV(0,x)), I(f"s_add_u32 s{sTmp}, s{sTmp}, 4096") if k=='q' else I(f"s_add_u32 s{sOff}, s{sOff}, 8192")]
        return it+[qdma(0,x,j,sTmp) if k=='q' else kvdma(0,x,j)]
    for i in range(-1,13):
        ex={}; post={}
        if i==-1:
            put(ex,-1,[WL(f0[0])])
            if cfg.su&1:
                for k in range(7): put(ex,k,[WL(f0[k+1])])
                put(ex,7,dm()+dm()+[WV("h0KV1",part='K')]+BAR()+f1[:8])
            else:
                for k in range(8): put(ex,k,f0[8+2*k:10+2*k]+([WL(f0[k+1])] if k<7 else []))
                put(ex,7,dm()+dm()+[WV("h0KV1")]+BAR()+f1[:8])
            put(ex,17,[WL(f1[7])])
        else:
            if i==0 and cfg.su&1:
                put(ex,9,[WV("h0KV1")]+BAR()+f0[8:])
            if i==1 and cfg.su&1:
                for k in range(8): put(ex,k,f1[8+2*k:10+2*k])
            if i==2 and cfg.su&1: put(ex,7,[WL(f1[23])])
            if i==0 and not cfg.su&1:
                for k in range(8): put(ex,k,f1[8+2*k:10+2*k])
            if i==3: put(ex,0,[I("s_waitcnt lgkmcnt(0)")]); put(ex,1,BAR())
            if i%2==0 and i<=8:
                s=i//2+1; qs=qreads(0,s)
                put(ex,2 if i else 8,dm()); put(ex,5 if i else 8,dm())
                if s==4: put(post,9,bias(QREGS,True))
                put(ex,10,[WV(f"h0Q{s}")]); put(ex,11,qs[:2]); put(ex,12,[qs[2]]); put(ex,13,[qs[3]])
                if s==5: put(post,16,bias(QREGS,False))
                put(ex,17,[WL(qs[3])])
            elif i==10:
                put(ex,0,[WV("h0KV2",True,part=('K' if cfg.su&2 else None))]); put(ex,1,BAR())
                put(ex,2,[I(f"s_add_u32 s{sCur}, s{sW4}, {8*SLOT}")]); put(post,3,setrd(sCur))
                place(ex,f2[:8],lo=4,hi=12)
                put(ex,14,dm()); put(ex,16,dm())
                put(ex,17,[WL(f2[7])])
            elif i==12:
                place(ex,f2[8:],lo=0,hi=13)
                put(ex,14,dm()); put(ex,16,dm())
                put(ex,15,[I(f"s_mov_b32 s{sCur}, s{sW4}")])
            else:
                put(ex,5,dm()); put(ex,10,dm())
                if i==11 and cfg.su&2: put(ex,15,[WV("h0KV2")]); put(ex,16,BAR())
        ks=[k for k in range(1,NPADS+1) if SITE(k)==i]
        for k in ks:
            site=[I("s_mov_b64 exec, 0"), I(f"s_branch Lpad{k}"), I(f"Lret{k}:"), I("s_mov_b64 exec, -1")]
            if i%2==0 and 0<=i<=8: ex[10]=site+ex[10]
            else: put(ex,17,site)
        o+=step(i,ex,post,cfg.profS if (i>=6 and i%2==0) or i>9 else 0)
    assert not seq
    return o

def trans():
    o=[I("; ==== head A last two key blocks + head B first two, epilogue of head A streamed")]
    f11=frag_reads(0,11); g0=frag_reads(1,0); g1=frag_reads(1,1,base=SLOT); g2=frag_reads(1,2)
    E=Epi(14,sSd)
    idxA={u:k for k,u in enumerate(LA)}
    for s in range(6):
        E.add(s,60+idxA[(11,s)]+2,(s%4)*SLOT,slotQ(s),sBad,f"O{s}",s<DIRECT,cfg.st,pre=(bias(vW,True) if s==4 else ()))
    Q=lambda s:qreads(1,s)
    q5=Q(5)
    R={61:f11[:8], 62:f11[8:16], 63:f11[16:24], 64:Q(0), 65:Q(1), 67:Q(2), 68:Q(3), 69:g0[:4], 70:g0[4:8], 71:g0[8:16], 72:g1[:8], 73:g0[16:24],
       74:g1[8:18], 75:g1[18:24], 76:Q(4), 78:q5, 81:g2[:4], 82:g2[4:8], 83:g2[8:16], 84:g2[16:24]}
    D={}
    for (k,x),steps in zip([('q',4),('q',5),('k',2),('k',3),('k',4),('k',5)],
                           [[61,62,63,64],[65,66,66,67],[69,70,71,72],[76,77,77,78],[79,79,80,80],[81,82,83,84]]):
        for j,i in enumerate(steps): D.setdefault(i,[]).append((k,x,j))
    for i in range(61,85):
        ex={}; post={}
        rs=R.get(i,[]); lo=0; hi=16
        mx=(unit(i+1)[1]==0)
        if i==61:
            put(ex,0,[WV("h0KV11",True)]); put(ex,1,BAR()); put(post,2,setrd(sCur)); lo=3; hi=12
            put(ex,17,[WL(f11[7])])
            put(ex,2,[I(f"s_add_u32 s{sSd}, s{sH}, s{sQw}")])
        if i==64: put(ex,0,[WV("h1Q3")]); put(ex,7,[WL(f11[23])]); lo=1
        if i==69:
            put(ex,0,[WV("h1KV1",True)]); put(ex,1,BAR()); put(post,2,setrd(sW4)); lo=3
            put(ex,2,[I(f"s_add_u32 s{sOff}, s{sHn}, s{sKVw}")]); put(ex,3,[I(f"s_add_u32 s{sOff}, s{sOff}, 8192")])
        if i==70: hi=12; put(ex,17,[WL(g0[7])])
        if i==72: hi=12; put(ex,17,[WL(g1[7])])
        if i==73: hi=5; put(ex,7,[WL(g0[17])]); put(ex,11,[WL(g0[23])])
        if i==75: hi=6; put(ex,7,[WL(g1[17])]); put(ex,12,[WL(g1[23])]); put(post,9,bias(QREGS,True))
        if i==76: put(ex,0,[WV("h1Q4",True)]); put(ex,1,BAR()); lo=2
        if i==77: put(ex,15,[WL(R[76][3])])
        if i==78: put(ex,0,[WV("h1Q5")]); lo=1
        if i==79: put(ex,15,[WL(q5[3])])
        if i==81:
            put(ex,0,[WV("h1KV2",True)]); put(ex,1,BAR())
            put(ex,2,[I(f"s_add_u32 s{sPe}, s{sW4}, {8*SLOT}")]); put(post,2,setrd(sPe)); lo=4
            put(ex,3,[I(f"s_add_u32 s{sPo}, s{sW4}, {2*SLOT}")])
        if i==82: hi=12; put(ex,17,[WL(g2[7])])
        if i==84: hi=12
        mem=E.mem(2)
        ch=E.chunk(i,cfg.rho)
        free=[g for g in FREE if not(g==16 and (ch or mx)) and not (g==11 and mx)]
        place(ex,rs,lo=lo,hi=hi,free=free)
        dg=[]
        for (k,x,j) in D.get(i,[]):
            pre=[setm0(slotQ(x) if k=='q' else slotKV(1,x)), I(f"s_add_u32 s{sOff}, s{sOff}, {4096 if k=='q' else 8192}")] if j==0 else []
            dg.append(pre+[qdma(1,x,j) if k=='q' else kvdma(1,x,j)])
        place(ex,dg,lo=max(lo,4),hi=16,free=free)
        qlast=max([g for g,v in ex.items() if any(x.meta.get('src','').startswith('h1Q') for x in v)]+[-1])
        need_after=any(kind(gr[-1])=='w' and any(x.meta.get('slot')==gr[-1].meta['wslot'] for x in rs) for gr in mem)
        place(ex,mem,lo=(qlast+1 if need_after else (2 if i in (69,76,81) else 0)),hi=15,free=free)
        put(post,16,ch)
        if i==83:
            put(post,16,bias(vW,False)+[I(f"v_add_u32 v{vD[k]}, {DIRECT*SLOT}, v{vR[k]}") for k in range(2)])
        if i==84:
            spread(ex,0,[I(f"s_mov_b32 s{sT}, 0"), I(f"s_movk_i32 s{sDi}, {SLOT-2048}"), I(f"s_add_u32 s{sSt}, s{sHn}, s{sQw}")])
            put(ex,17,[WV("h1KV3")])
        o+=step(i,ex,post)
    assert E.done()
    return o

def tailB():
    o=[I("; ==== head B last four key blocks: q sub-tiles 0-2 first, then 3-5; epilogue streamed")]
    base=120
    vK2,vV2=vQ,vQ+1
    def fr(b): return frag_reads(1,b,base=slotKV(1,b)*SLOT) if b!=10 else frag_reads(1,b,rk=vK2,rv=vV2)
    F=[fr(b) for b in [9,10,11,8,9,10,11]]
    R={}
    def addR(i,L): R.setdefault(i,[]).extend(L)
    for m in range(7):
        K,V=F[m][:8],F[m][8:]
        if m==0: addR(base+1,K)
        elif m<6: addR(base+3*m-1,K[:3]); addR(base+3*m,K[3:6]); addR(base+3*m+1,K[6:])
        else: addR(base+17,K)
        if m<6:
            addR(base+3*m+1,V[:(0 if m==0 else 5)]); addR(base+3*m+2,V[(0 if m==0 else 5):(8 if m==0 else 10)]); addR(base+3*m+3,V[(8 if m==0 else 10):(16 if m in (0,5) else 15)])
            if m not in (0,5): R.setdefault(base+3*m+4,[]).insert(0,V[15])
        else: addR(base+19,V[:12]); addR(base+20,V[12:])
    E=Epi(vQ+2,sSt)
    idx={u:k for k,u in enumerate(GB)}
    for s_ in range(5):
        sl=3+(s_%2)
        E.add(s_,base+idx[(11,s_)]+2,(sl-2)*SLOT,sl,sBad2,f"P{s_}",True,(cfg.st3 if (cfg.st3 and s_<cfg.n3) else cfg.st2))
    k0=3*cfg.dl; dq=list(range(k0,16)); pend=[]
    o_sub0,o_j0=dunit(k0)
    for i in range(base+1,base+25):
        ex={}; post={}; rel=i-base; lo=0; hi=16
        rs=list(R.get(i,[]))
        if rel==1:
            put(ex,0,[WV("h1KV10",True)]); put(ex,1,BAR())
            put(ex,2,[I(f"s_add_u32 s{sTmp}, s{sW4}, {8*SLOT}")])
            put(post,2,setrd(sW4)); lo=3; hi=12
            put(post,13,setrd(sTmp,vK2,vV2))
        if rel==5: put(ex,0,[WV("h1KV11")]); put(ex,1,BAR()); lo=2
        if rel==12: put(ex,3,TL())
        g=[]
        for rdx,k in pend:
            sub,j=dunit(k); jj=(k-k0)%4
            g.append([WL(rdx),ostore(DR[k&1],jj,cfg.st,sSd,f"O{sub}")]+([I(f"s_add_u32 s{sSd}, s{sSd}, 4096")] if jj==3 else []))
        pend=[]
        place(ex,g,lo=max(lo,3),hi=4)
        if dq:
            k=dq.pop(0); sub,j=dunit(k)
            x=I(f"ds_read_b128 {vr(DR[k&1])}, v{vD[j&1]}{offs((sub-o_sub0)*SLOT+1024*(j-o_j0))}", src=f"O{sub}", slot=slotQ(sub), private=True)
            pend.append((x,k)); place(ex,[x],lo=13,hi=15)
        mem=E.mem(2 if rel<21 else 4, fast=(rel>=21))
        ch=E.chunk(i,cfg.rhoG if rel<20 else cfg.rhoE)
        free=[g_ for g_ in FREE if not(g_==16 and ch)] if rel<24 else list(range(8,16))
        for m in range(7):
            K,V=F[m][:8],F[m][8:]
            needK = base+3*m+2 if m<6 else base+18
            needV = base+3*m+4 if m<6 else base+20
            if i==needK-1:
                put(ex,17,[WL(K[7])])
                if rs and rs[-1] is K[7]: hi=min(hi,13)
            if i==needV:
                late=[x for x in V if x in rs]
                if late:
                    place(ex,late,lo=0,hi=5,free=free); rs=[x for x in rs if x not in late]; lo=max(lo,6)
                    put(ex,7,[WL(V[15-len(late)])]); put(ex,8+(16-len(late))//2-1,[WL(V[15])])
                else: put(ex,7,[WL(V[15])])
        place(ex,rs,lo=lo,hi=hi,free=free)
        place(ex,mem,lo=(0 if rel<23 else 8),hi=(15 if rel<24 else 16),free=free)
        put(post,16,ch)
        o+=step(i,ex,post)
    assert not E.tiles and not E.cv and not dq and not pend and not E.wr and not E.rd
    return o+final5(E,ex)

def final5(E,ex):
    o=[]
    tag="P5"; sl=5; off=3*SLOT
    rest=[x for g in E.mem(8) for x in g]
    assert E.done()
    pad=max(0,8-len(rest)-len([x for x in ex.get(16,[])]))
    o+=rest+([I(f"s_nop {pad-1}")] if pad else [])+e_head(5,sBad2,tag,T1)
    for half in (0,1):
        for dt in range(4*half,4*half+4): o+=e_pk(5,dt,tag,T1)
        for dt in range(4*half,4*half+4): o+=e_cvt(5,dt,tag)
        for dt in range(4*half,4*half+4): o.append(e_wr(5,dt,off,sl,tag))
    rd=epi_rd(5,off,sl,tag); o+=rd
    st=epi_st(5,cfg.st2,sSt,tag)
    for j in range(4): o+=[WL(rd[j]), st[j]]
    return o

def tailK():
    o=[I("; ==== head B blocks 8,9 (parked output drained) and last two key blocks, epilogue streamed")]
    E=Epi(vQ+2,sSt)
    idx={u:k for k,u in enumerate(LB)}
    for s_ in range(5):
        sl=3+(s_%2)
        E.add(s_,132+idx[(11,s_)]+2,(sl-2)*SLOT,sl,sBad2,f"P{s_}",True,cfg.st2)
    k0=3*cfg.dl; dq=list(range(k0,16)); pend=[]
    o_sub0,o_j0=dunit(k0)
    f11=frag_reads(1,11)
    for i in range(121,145):
        ex={}; post={}; lo=0; hi=16; rs=[]
        if i<133:
            b,r=divmod(i-73,6); lead=(b%2==0)
            if r==0:
                reads=frag_reads(1,b+1); rp=sPo if lead else sPe; rx=sXo if lead else sXe
                put(ex,0,[WV(f"h1KV{b+1}",True)]); put(ex,1,BAR())
                put(ex,2,[I(f"s_xor_b32 s{rp}, s{rp}, s{rx}")]); put(post,4,setrd(rp)); lo=5
            rs=reads[4*r:4*r+4]
            if r==5: hi=11
            if r==3: put(ex,17,[WL(reads[7])])
        if i==133:
            put(ex,0,[WV("h1KV11",True)]); put(ex,1,BAR())
            put(ex,2,[I(f"s_xor_b32 s{sPo}, s{sPo}, s{sXo}")]); put(post,2,setrd(sPo)); lo=3; hi=12
            rs=f11[:8]; put(ex,17,[WL(f11[7])])
        if i==134: rs=f11[8:14]
        if i==135: rs=f11[14:20]
        if i==136: rs=f11[20:24]; hi=5; put(ex,7,[WL(f11[19])]+TL()); put(ex,13,[WL(f11[23])])
        g=[]
        for rdx,k in pend:
            sub,j=dunit(k); jj=(k-k0)%4
            g.append([WL(rdx),ostore(DR[k&1],jj,cfg.st,sSd,f"O{sub}")]+([I(f"s_add_u32 s{sSd}, s{sSd}, 4096")] if jj==3 else []))
        pend=[]
        place(ex,g,lo=3,hi=4)
        mem=E.mem(4, fast=True)
        ch=E.chunk(i,cfg.rho2)
        free=[g_ for g_ in FREE if not(g_==16 and ch)] if i<144 else list(range(8,16))
        place(ex,rs,lo=lo,hi=hi,free=free)
        if dq:
            k=dq.pop(0); sub,j=dunit(k)
            x=I(f"ds_read_b128 {vr(DR[k&1])}, v{vD[j&1]}{offs((sub-o_sub0)*SLOT+1024*(j-o_j0))}", src=f"O{sub}", slot=slotQ(sub), private=True)
            pend.append((x,k)); place(ex,[x],lo=6,hi=(16 if hi==16 else 12),free=free)
        place(ex,mem,lo=(0 if i<143 else 8),hi=(15 if i<144 else 16),free=free)
        put(post,16,ch)
        o+=step(i,ex,post)
    assert not E.tiles and not E.cv and not dq and not pend and not E.wr and not E.rd
    return o+final5(E,ex)

def tailQ():
    o=[I("; ==== head B blocks 8,9 (parked output drained) and last two key blocks q-major, epilogue right behind each sub-tile")]
    k0=3*cfg.dl; dq=list(range(k0,16)); pend=[]
    o_sub0,o_j0=dunit(k0)
    f9=frag_reads(1,9); f10=frag_reads(1,10); f11=frag_reads(1,11,rk=vQ,rv=vQ+1)
    R={121+r:f9[4*r:4*r+4] for r in range(6)}
    R.update({127:f10[:5],128:f10[5:11],129:f10[11:17],130:f10[17:21]+f11[:2],131:f11[2:8],132:f10[21:24],133:f11[8:18],134:f11[18:24]})
    stq=[]; nxt=[]
    nd2=max(0,len(dq)-cfg.nd1)
    for i in range(121,145):
        ex={}; post={}; lo=0; hi=16; rs=list(R.get(i,[]))
        p=unit(i-1); fin=(p[1]==11)
        if i==121:
            put(ex,0,[WV("h1KV9",True)]); put(ex,1,BAR())
            put(ex,2,[I(f"s_xor_b32 s{sPo}, s{sPo}, s{sXo}")]); put(post,4,setrd(sPo)); lo=5
        if i==124: put(ex,17,[WL(f9[7])])
        if i==126: hi=11
        if i==127:
            put(ex,0,[WV("h1KV10" if cfg.bar11 else "h1KV11",True)]); put(ex,1,BAR())
            put(ex,2,[I(f"s_xor_b32 s{sPe}, s{sPe}, s{sXe}")]); put(post,4,setrd(sPe)); lo=5
        if i==128: put(post,4,setrd(sW4,vQ,vQ+1))
        if i==130:
            put(ex,17,[WL(f10[7])])
            if cfg.bar11: put(ex,6,[WV("h1KV11")]); put(ex,7,[I("s_barrier")])
        if i==131: hi=12; put(ex,17,[WL(f11[7])])
        if i==133: put(ex,7,[WL(f10[23])]+TL())
        if i==134: hi=5; put(ex,8,[WL(f11[17])]); put(ex,13,[WL(f11[23])])
        free=[g_ for g_ in FREE if not(g_==16 and fin)] if i<144 else list(range(8,16))
        g=[]
        for rdx,k in pend:
            sub,j=dunit(k); jj=(k-k0)%4
            g.append([WL(rdx),ostore(DR[k&1],jj,cfg.st,sSd,f"O{sub}")]+([I(f"s_add_u32 s{sSd}, s{sSd}, 4096")] if jj==3 else []))
        if g: place(ex,g[:1],lo=3,hi=4)
        if len(g)>1: place(ex,g[1:],lo=9,hi=10)
        two=len(pend)>1; pend=[]
        if i==130:
            place(ex,rs[:4],lo=0,hi=11,free=free); place(ex,rs[4:],lo=8,hi=16,free=free)
        else: place(ex,rs,lo=lo,hi=hi,free=free)
        n=0
        if dq: n=1
        if dq and nd2>0 and (i%2==0 or nd2>6): n=2; nd2-=1
        xs=[]
        for _ in range(min(n,len(dq))):
            k=dq.pop(0); sub,j=dunit(k)
            x=I(f"ds_read_b128 {vr(DR[k&1])}, v{vD[j&1]}{offs((sub-o_sub0)*SLOT+1024*(j-o_j0))}", src=f"O{sub}", slot=slotQ(sub), private=True)
            pend.append((x,k)); xs.append(x)
        place(ex,xs,lo=11,hi=(16 if hi==16 else 12),free=free)
        mlo=0 if i<143 else 8
        if nxt:
            place(ex,nxt,lo=mlo,hi=16,free=free); nxt=[]
        elif stq:
            place(ex,stq,lo=mlo,hi=15,free=free); stq=[]
        if fin and p[2]<5:
            s_=p[2]; tag=f"P{s_}"; sl=3+(s_%2); off=(sl-2)*SLOT
            ch=e_head(s_,sBad2,tag,T1)
            for dt in range(8): ch+=e_pk(s_,dt,tag,T1)
            for dt in range(8): ch+=e_cvt(s_,dt,tag)
            put(post,13,ch[:1]); put(post,14,ch[1:2]); put(post,16,ch[2:])
            rd=epi_rd(s_,off,sl,tag); st=epi_st(s_,cfg.st2,sSt,tag)
            nxt=[[e_wr(s_,dt,off,sl,tag)] for dt in range(8)]+[[x] for x in rd]
            stq=[[WL(rd[1]),st[0]],[st[1]],[WL(rd[3]),st[2]],[st[3],I(f"s_add_u32 s{sSt}, s{sSt}, 4096")]]
        o+=step(i,ex,post,sumfirst=fin)
    assert not dq and not pend and not nxt and not stq
    tag="P5"; sl=5; off=3*SLOT
    o+=e_head(5,sBad2,tag,T1)
    for half in (0,1):
        for dt in range(4*half,4*half+4): o+=e_pk(5,dt,tag,T1)
        for dt in range(4*half,4*half+4): o+=e_cvt(5,dt,tag)
        for dt in range(4*half,4*half+4): o.append(e_wr(5,dt,off,sl,tag))
    rd=epi_rd(5,off,sl,tag); o+=rd
    st=epi_st(5,cfg.st2,sSt,tag)
    for j in range(4): o+=[WL(rd[j]), st[j]]
    return o

def stamp(k):
    if not cfg.stamps: return []
    op="s_memrealtime" if (cfg.echo>=0 or cfg.rt) else "s_memtime"
    return [I(f"{op} s[{sStamp+4+2*k}:{sStamp+5+2*k}]", skip=True)]

def lane_consts(A,base):
    A("v_and_b32 v4, 3, v0")
    A("v_bfe_u32 v3, v0, 2, 1"); A("v_mul_u32_u24 v9, 2080, v3")
    A("v_bfe_u32 v3, v0, 3, 1"); A("v_lshl_add_u32 v9, v3, 10, v9")
    A("v_lshl_add_u32 v9, v4, 8, v9"); A("v_lshl_add_u32 v9, v2, 4, v9"); A(f"v_add_u32 v9, s{base}, v9")
    for ks in range(4):
        A(f"v_xor_b32 v3, {ks}, v4"); A(f"v_lshl_add_u32 v{vQ+ks}, v3, 6, v9")
    A("v_and_b32 v8, 15, v0"); A("v_xor_b32 v9, v8, v2"); A("v_lshlrev_b32 v10, 8, v2"); A(f"v_add_u32 v10, s{base}, v10")
    A(f"v_lshl_add_u32 v{vR[0]}, v9, 4, v10"); A("v_xor_b32 v9, 4, v9"); A(f"v_lshl_add_u32 v{vR[1]}, v9, 4, v10")
    A("v_lshlrev_b32 v10, 8, v8"); A("v_and_b32 v9, 1, v2"); A("v_lshl_add_u32 v10, v9, 3, v10"); A(f"v_add_u32 v10, s{base}, v10")
    A("v_lshrrev_b32 v9, 1, v2"); A("v_and_b32 v8, 7, v0"); A("v_xor_b32 v9, v9, v8")
    for k in range(4):
        A(f"v_xor_b32 v8, {2*k}, v9"); A(f"v_lshl_add_u32 v{vW[k]}, v8, 4, v10")

CPF_LINES=11
def prologue():
    o=[]
    A=lambda t,**k: o.append(I(t,**k))
    A(f"s_load_dwordx2 s[{sKA}:{sKA+1}], s[0:1], 8"); A(f"s_load_dwordx2 s[{sVB}:{sVB+1}], s[0:1], 16")
    A(f"s_load_dwordx2 s[{sQA}:{sQA+1}], s[0:1], 0"); A(f"s_load_dwordx2 s[{sO}:{sO+1}], s[0:1], 24")
    if cfg.stamps:
        A(f"s_load_dwordx2 s[{sDbg}:{sDbg+1}], s[0:1], 32")
        A(f"s_memtime s[{sStamp}:{sStamp+1}]"); A(f"s_memrealtime s[{sStamp+2}:{sStamp+3}]")
    if cfg.tl:
        A("s_mov_b64 s[90:91], 1"); A("s_memtime s[98:99]"); A("s_memrealtime s[100:101]")
    A("s_cmp_ge_u32 s2, 256"); A("s_cbranch_scc1 Lend")
    A("v_lshrrev_b32 v1, 6, v0"); A("v_and_b32 v0, 63, v0"); A("v_readfirstlane_b32 s3, v1")
    A(f"v_lshlrev_b32 v{vKVB}, 4, v0"); A(f"v_add_u32 v{vKVA}, 1056, v{vKVB}")
    if cfg.diag=='l2only': A("s_and_b32 s62, s2, 7"); A(f"s_mul_i32 s{sH}, s62, {2*HEADB}")
    else: A(f"s_mul_i32 s{sH}, s2, {2*HEADB}")
    A(f"s_mov_b32 s{sKA+2}, {TOTB+4096}"); A(f"s_mov_b32 s{sKA+3}, 0x20000"); A(f"s_mov_b64 s[{sVB+2}:{sVB+3}], s[{sKA+2}:{sKA+3}]")
    A(f"s_mul_i32 s{sW4}, s3, {WREG}"); A(f"s_lshl_b32 s{sKVw}, s3, 11")
    A(f"s_add_u32 s{sOff}, s{sH}, s{sKVw}")
    o.append(setm0(0))
    A("s_waitcnt lgkmcnt(0)")
    A(f"s_sub_u32 s{sKA}, s{sKA}, 1056"); A(f"s_subb_u32 s{sKA+1}, s{sKA+1}, 0")
    o+=[kvdma(0,0,0),kvdma(0,0,2)]
    A(f"s_sub_u32 s{sVB}, s{sVB}, 2080"); A(f"s_subb_u32 s{sVB+1}, s{sVB+1}, 0")
    if not cfg.su&1: o+=[kvdma(0,0,1),kvdma(0,0,3)]
    if cfg.cpf:
        A("s_getpc_b64 s[62:63]")
        if cfg.pads: A("Lpc:"); A("s_add_u32 s62, s62, Lmain-Lpc"); A("s_addc_u32 s63, s63, 0")
        A("s_lshr_b32 s4, s2, 3"); A(f"s_mul_i32 s4, s4, {128*CPF_LINES}")
        A(f"v_min_u32 v1, {CPF_LINES-1}, v0"); A("v_lshl_add_u32 v1, v1, 7, s4")
        A("global_load_dword v61, v1, s[62:63]")
    A("v_lshrrev_b32 v2, 4, v0"); A("v_lshlrev_b32 v3, 6, v2"); A(f"v_xor_b32 v{vQB}, v{vKVB}, v3"); A(f"v_add_u32 v{vQA}, 1056, v{vQB}")
    A(f"s_mul_i32 s{sQw}, s3, 24576"); A(f"s_add_u32 s{sTmp}, s{sH}, s{sQw}")
    A(f"s_sub_u32 s{sQB}, s{sQA}, 32"); A(f"s_subb_u32 s{sQB+1}, s{sQA+1}, 0")
    A(f"s_sub_u32 s{sQA}, s{sQA}, 1056"); A(f"s_subb_u32 s{sQA+1}, s{sQA+1}, 0")
    o.append(setm0(slotQ(0)))
    A(f"s_mov_b64 s[{sQA+2}:{sQA+3}], s[{sKA+2}:{sKA+3}]"); A(f"s_mov_b64 s[{sQB+2}:{sQB+3}], s[{sKA+2}:{sKA+3}]")
    o+=[qdma(0,0,j,sTmp) for j in range(4)]
    if cfg.su&1:
        o.append(setm0(1)); A(f"s_add_u32 s4, s{sOff}, 8192")
        o+=[kvdma(0,1,j,4) for j in (0,2)]
        o+=[setm0(0),I("s_nop 0"),kvdma(0,0,1),kvdma(0,0,3)]
    o.append(setm0(1)); A(f"s_add_u32 s{sOff}, s{sOff}, 8192")
    o+=[kvdma(0,1,j) for j in ((1,3) if cfg.su&1 else (0,2,1,3))]
    A(f"s_mov_b32 s{sO+2}, {0 if cfg.diag else TOTB}"); A(f"s_mov_b32 s{sO+3}, 0x20000")
    A(f"s_add_u32 s{sHn}, s{sH}, {HEADB}")
    A(f"s_mov_b32 s{sC}, 0x3e0293ee"); A(f"s_mov_b32 s{sNC}, 0xbe0293ee"); A(f"s_mov_b32 s{sThr}, 0x4e800000")
    A(f"s_mov_b32 s{sC2}, 0x3e0293ee"); A(f"s_mov_b32 s{sC2+1}, 0x3e0293ee")
    A(f"s_add_u32 s{sEnd}, s{sW4}, {NSLOT*SLOT}")
    A(f"s_mov_b32 s{sT}, 0")
    if cfg.profO or cfg.oddB: A("s_getreg_b32 s95, hwreg(HW_REG_XCC_ID)")
    A(f"s_mov_b64 s[{sBad}:{sBad+1}], 0"); A(f"s_mov_b64 s[{sBad2}:{sBad2+1}], 0")
    A(f"s_add_u32 s{sXe}, s{sW4}, {8*SLOT}"); A(f"s_add_u32 s4, s{sW4}, {SLOT}"); A(f"s_xor_b32 s{sXe}, s{sXe}, s4")
    A(f"s_add_u32 s4, s{sW4}, {2*SLOT}"); A(f"s_xor_b32 s{sXo}, s4, s{sW4}")
    A("v_and_b32 v3, 7, v0"); A(f"v_mul_u32_u24 v{vKl}, 2080, v3")
    A("v_bfe_u32 v3, v0, 3, 1"); A(f"v_lshl_add_u32 v{vKl}, v3, 8, v{vKl}")
    A(f"v_lshl_add_u32 v{vKl}, v2, 4, v{vKl}"); A(f"v_subrev_u32 v{vKl}, s{sW4}, v{vKl}")
    A("v_bfe_u32 v3, v0, 2, 3"); A(f"v_mul_u32_u24 v{vVl}, 2080, v3")
    A("v_lshrrev_b32 v3, 5, v0"); A(f"v_lshl_add_u32 v{vVl}, v3, 8, v{vVl}")
    A("v_and_b32 v4, 3, v0"); A(f"v_lshl_add_u32 v{vVl}, v4, 3, v{vVl}")
    A(f"v_add_u32 v{vVl}, 1024, v{vVl}"); A(f"v_subrev_u32 v{vVl}, s{sW4}, v{vVl}")
    A("v_mov_b32 v11, 0x3f803f80"); A("v_cmp_eq_u32 vcc, 0, v4")
    lane_consts(A,4)
    A("v_cndmask_b32 v11, 0, v11, vcc")
    for k in range(4): A(f"v_accvgpr_write_b32 a{ONES+k}, v11")
    for s in (1,2):
        o.append(setm0(slotQ(s))); A(f"s_add_u32 s{sTmp}, s{sTmp}, 4096")
        o+=[qdma(0,s,j,sTmp) for j in range(4)]
    return o

def slow_path():
    o=[]
    A=lambda t,**k: o.append(I(t,**k))
    sP=sCur
    A("Lslow:")
    A("s_waitcnt vmcnt(0) lgkmcnt(0)")
    A(f"s_mul_i32 s{sP}, s3, {SLOT}")
    A(f"s_add_u32 s{sTmp}, s{sP}, s{sW4}")
    o+=setrd(sTmp)
    A(f"v_lshrrev_b32 v0, 4, v{vKVB}"); A("v_lshrrev_b32 v2, 4, v0")
    lane_consts(A,sTmp)
    A(f"s_mov_b32 m0, s{sTmp}")
    A(f"s_add_u32 s{sOff}, s{sH}, s{sQw}")
    for s in range(6):
        o+=[qdma(0,s,j) for j in range(4)]
        A("s_waitcnt vmcnt(0)")
        for ks in range(4): A(f"ds_read_b128 {ar(Qr(s,ks))}, v{vQ+ks}")
        A(f"s_add_u32 s{sOff}, s{sOff}, 4096")
        A("s_waitcnt lgkmcnt(0)")
    for s in range(6): A(f"v_mov_b32 v{MN+s}, 0xff800000")
    def loadkv():
        for j in range(4):
            A(f"s_add_u32 m0, s{sP}, {j*WREG}"); A("s_nop 0")
            o.extend(kvdma(0,0,jj) for jj in range(4))
            A(f"s_add_u32 s{sOff}, s{sOff}, 2048")
        A("s_waitcnt vmcnt(0)")
    A(f"s_mov_b32 s{sOff}, s{sH}"); A(f"s_mov_b32 s{sT}, 0")
    A("Lslow1:")
    loadkv()
    o+=frag_reads(0,0,tags=False)[:8]
    A("s_waitcnt lgkmcnt(0)")
    for s in range(6):
        o+=qk_mfmas(s,0,0)
        A("s_nop 7")
        for e in range(0,8,2): A(f"v_max3_f32 v{MN+s}, v{MN+s}, v{SB[0]+e}, v{SB[0]+e+1}")
    A(f"s_add_u32 s{sT}, s{sT}, 1"); A(f"s_cmp_lt_u32 s{sT}, 12"); A("s_cbranch_scc1 Lslow1")
    for s in range(6):
        m=MN+s
        A(f"v_mov_b32 v{T1}, v{m}"); A("s_nop 1"); A(f"v_permlane16_swap_b32 v{m}, v{T1}"); A(f"v_max_f32 v{m}, v{m}, v{T1}")
        A(f"v_mov_b32 v{T1}, v{m}"); A("s_nop 1"); A(f"v_permlane32_swap_b32 v{m}, v{T1}"); A(f"v_max_f32 v{m}, v{m}, v{T1}")
        A(f"v_mul_f32 v{m}, s{sNC}, v{m}")
    for r in range(64,256): A(f"v_mov_b32 v{r}, 0")
    for r in range(224,248): A(f"v_accvgpr_write_b32 a{r}, 0")
    A(f"s_mov_b32 s{sOff}, s{sH}"); A(f"s_mov_b32 s{sT}, 0")
    A("Lslow2:")
    loadkv()
    fr=frag_reads(0,0,tags=False)
    for k in range(3):
        o+=fr[8*k:8*k+8]; A("s_waitcnt lgkmcnt(0)")
    for s in range(6):
        o+=qk_mfmas(s,0,0)
        A("s_nop 7")
        for gp in sm_gaps(s,0,0): o+=gp
        A("s_nop 1")
        o+=pv_mfmas(s,0,0,False)
    A(f"s_add_u32 s{sT}, s{sT}, 1"); A(f"s_cmp_lt_u32 s{sT}, 12"); A("s_cbranch_scc1 Lslow2")
    A("s_nop 7")
    A(f"s_add_u32 s{sSt}, s{sH}, s{sQw}")
    for s in range(6):
        o+=e_head(s,None,None,T1)
        for dt in range(8): o+=e_pk(s,dt,None,T1)
        for dt in range(8): o+=e_cvt(s,dt,None)
        for dt in range(8): o.append(e_wr(s,dt,0,None,None))
        o+=epi_rd(s,0,None)+[I("s_waitcnt lgkmcnt(0)")]+epi_st(s,"",sSt)
        A(f"s_add_u32 s{sSt}, s{sSt}, 4096")
    A("s_branch Lslow_ret")
    for x in o:
        for k in ('tag','slot','wslot','wtag'): x.meta.pop(k,None)
    return o

def resolve(trace):
    vm=[]; lg=[]
    for x in trace:
        if x.label or x.meta.get('skip'): continue
        if 'auto_vm' in x.meta:
            idx=[k for k,y in enumerate(vm) if y.meta.get('tag')==x.meta['auto_vm'] and x.meta.get('wpart') in (None,y.meta.get('part'))]
            n=min(63,len(vm)-1-max(idx)); x.text=x.text.replace("vmcnt(AUTO)",f"vmcnt({n})"); x.meta['loose_ok']=True
        if 'auto_lg' in x.meta:
            k=[i for i,y in enumerate(lg) if y is x.meta['auto_lg']]
            assert k, "WL target not issued before wait: "+x.meta['auto_lg'].text
            n=min(15,len(lg)-1-k[0]); x.text=x.text.replace("lgkmcnt(AUTO)",f"lgkmcnt({n})")
        if x.kind=='vmem': vm.append(x)
        if x.kind=='ds': lg.append(x)

def build():
    set_units()
    P=prologue(); SA=startA(); TR=trans(); TB=[tailK,tailB,tailQ][cfg.G]()
    txt=lambda L:[x.text for x in L if not x.text.startswith(';')]
    assert txt(loopA2(0))==txt(loopA2(1))
    tb=range(1,3) if cfg.profB0 else range(3)
    for t in tb: assert txt(loopB(t))==txt(loopB(tb[0]))
    if cfg.loopR:
        assert txt(rampA(0))==txt(rampA(1)); RAt=rampA(0)+rampA(1); RA=[I(".p2align 3"),I("LloopA1:")]+rampA(0)
    else: RA=RAt=rampA()
    PB_=peelB() if cfg.profB0 else []
    extra=[]
    if cfg.profO:
        RO=rampA(prof=cfg.profO)
        t2=prologue()+startA()+RO+midA()+loopA2(0); resolve(t2)
        for p in check_trace([x for x in t2 if not x.meta.get('skip')]): print("ODD:",p)
        RA=[I("s_bitcmp1_b32 s95, 0"), I("s_cbranch_scc1 LrampO")]+RA+[I("s_branch LrampJ"), I("LrampO:")]+RO+[I("LrampJ:")]
    if cfg.midprof:
        MA=staticA(); trace=P+SA+MA+TR+PB_
    else: trace=P+SA+RAt+midA()+loopA2(0)+loopA2(1)+TR+PB_
    for t in tb: trace+=loopB(t)
    trace+=TB
    resolve(trace)
    probs=check_trace([x for x in trace if not x.meta.get('skip')])
    sp=slow_path()
    probs+=check_trace(sp+slow_path())
    seen=set()
    for p in probs:
        if p not in seen: print(p); seen.add(p)
    nd=(lambda L:[x for x in L if not getattr(x,'dma',False)]) if cfg.diag=='nodma' else (lambda L:L)
    if cfg.pads: P=P+[I("s_branch Lmain"), I(".p2align 12"), I("Lmain:")]
    if cfg.midprof: S=list(P)+stamp(0)+SA+stamp(1)+nd(MA)
    else: S=list(P)+stamp(0)+SA+stamp(1)+nd(RA)+midA()+[I(".p2align 3"),I("LloopA2:")]+nd(loopA2(0))
    if cfg.oddB: PB_=[I("s_bitcmp1_b32 s95, 0"), I(f"s_cselect_b32 s{sT}, -1, 0"), I("s_cbranch_scc1 LloopB")]+PB_
    S+=stamp(2)+nd(TR)+stamp(3)+nd(PB_)+[I(".p2align 3"),I("LloopB:")]+nd(loopB(tb[0]))
    S+=stamp(4)+TB+stamp(5)
    if cfg.slow:
        S+=[I(f"s_or_b64 s[62:63], s[{sBad}:{sBad+1}], s[{sBad2}:{sBad2+1}]"), I("s_barrier"), I("s_cbranch_scc1 Lslow_entry")]
    S+=[I("Lfin:")]
    if cfg.stamps:
        S+=[I("s_waitcnt vmcnt(0)"), I(f"s_memtime s[{sStamp+16}:{sStamp+17}]"), I(f"s_memrealtime s[{sStamp+18}:{sStamp+19}]"), I("s_waitcnt lgkmcnt(0)")]
        if cfg.echo>=0:
            esrc=[sStamp+2]+[sStamp+4+2*k for k in range(6)]+[sStamp+18]
            S+=[I(f"s_add_u32 s62, s{esrc[cfg.echo]}, 10000"), I("Lspin:"), I("s_sleep 2"), I("s_memrealtime s[88:89]"), I("s_waitcnt lgkmcnt(0)"),
                I("s_sub_u32 s63, s88, s62"), I("s_cmp_lt_i32 s63, 0"), I("s_cbranch_scc1 Lspin")]
        S+=[I(f"v_mov_b32 v8, s{sStamp+2}"), I(f"v_mov_b32 v9, s{sStamp+18}")]
        srcs=[sStamp+4+2*k for k in range(6)]+[sStamp+(18 if cfg.rt else 16)]
        for k,r in enumerate(srcs):
            S+=[I(f"s_sub_u32 s{sTmp}, s{r}, s{sStamp+(2 if cfg.rt else 0)}"), I(f"v_mov_b32 v{10+k}, s{sTmp}")]
        S+=[I("v_mov_b32 v17, 0"), I("v_mov_b32 v18, 0"), I("s_getreg_b32 s62, hwreg(HW_REG_XCC_ID)"), I("v_mov_b32 v19, s62")]
        S+=[I(f"s_mov_b32 s28, s{sDbg}"), I(f"s_mov_b32 s29, s{sDbg+1}"), I(f"s_mov_b32 s30, {cfg.dbgsz}"), I("s_mov_b32 s31, 0x20000"),
            I("s_lshl_b32 s62, s2, 8"), I("s_lshl_b32 s63, s3, 6"), I("s_add_u32 s62, s62, s63"), I("v_mov_b32 v1, 0")]
        if cfg.tl:
            S+=TL()+[I("s_waitcnt lgkmcnt(0)")]+TL()+[I("s_lshl_b32 s61, s62, 3"), I("s_add_u32 s61, s61, 65536"), I(f"v_lshrrev_b32 v5, 2, v{vKVB}"),
                I("buffer_store_dword v0, v5, s[28:31], s61 offen"), I("buffer_store_dword v61, v5, s[28:31], s61 offen offset:256")]
        S+=[I("s_mov_b64 exec, 1"),
            I("buffer_store_dwordx4 v[8:11], v1, s[28:31], s62 offen"), I("buffer_store_dwordx4 v[12:15], v1, s[28:31], s62 offen offset:16"), I("buffer_store_dwordx4 v[16:19], v1, s[28:31], s62 offen offset:32")]
    S+=[I("Lend:"), I("s_endpgm")]
    if cfg.slow:
        S+=[I("Lslow_entry:"), I(f"s_cmp_lg_u64 s[{sBad}:{sBad+1}], 0"), I("s_cbranch_scc1 Lslow"),
            I("Lslow_ret:"), I(f"s_cmp_eq_u64 s[{sBad2}:{sBad2+1}], 0"), I("s_cbranch_scc1 Lfin"),
            I(f"s_mov_b64 s[{sBad2}:{sBad2+1}], 0"), I(f"s_mov_b32 s{sH}, s{sHn}")]
        S+=sp
    else: S+=[I(".fill 2048, 4, 0xbf810000")]
    return S, bool([p for p in probs if not p.startswith("NOTE")])

from gen import HDR, FTR
def isize(x):
    return SZ[x.text]
def write(fn):
    S,bad=build()
    if cfg.pads and SZ:
        out=[]; addr=None; k=1
        for n,x in enumerate(S):
            out.append(x)
            if x.text=="Lmain:": addr=0; continue
            if addr is None: continue
            if x.text==".p2align 3": addr=(addr+7)&~7; continue
            if x.label: continue
            a0=addr; addr+=SZ.get(x.text,4)
            if k<=NPADS and addr>=k*cfg.pads+cfg.padoff and (x.kind=='mfma' or addr>=k*cfg.pads+cfg.padoff+24) and not x.op.startswith('s_cbranch') and not x.op.startswith('s_branch') and x.text!='s_mov_b64 exec, 0':
                out+=[I(f"Lpad{k}:"), I(f"s_cbranch_execz Lret{k}")]; addr+=4; k+=1
        assert k==NPADS+1,(k,NPADS)
        S=out
    with open(fn,"w") as f:
        f.write(HDR%(LDSB,NAME,NAME,NAME))
        for x in S:
            t=x.text
            if cfg.drop=='exp' and t.startswith('v_exp'): t=t.replace('v_exp_f32','v_mov_b32')
            if cfg.drop=='exp0' and t.startswith('v_exp'): continue
            if cfg.drop=='fma' and t.startswith('v_fma'): continue
            if cfg.drop=='sum' and t.startswith(MF+' a['): continue
            f.write((t if (t.endswith(':') or t.startswith('.')) else "    "+t)+"\n")
        f.write(FTR%NAME)
    return bad
SZ={}
def sizes(co):
    import subprocess
    out=subprocess.run(["llvm-objdump","-d","--mcpu=gfx950",co],capture_output=True,text=True).stdout
    sym={m.group(2):int(m.group(1),16) for m in re.finditer(r"^([0-9a-f]+) <(\w+)>:",out,re.M)}
    last=int(re.findall(r"// ([0-9A-F]{12}):",out)[-1],16)
    st=sym.get('Lmain',sym[NAME])
    return sym.get('Lfin',sym.get('Lend'))-st, last+4-st
if __name__=="__main__":
    ap=argparse.ArgumentParser()
    ap.add_argument("out"); ap.add_argument("opts",nargs="*")
    a=ap.parse_args()
    for kv in a.opts:
        k,v=kv.split("=",1)
        cur=getattr(cfg,k)
        setattr(cfg,k, (v in("1","True","true")) if isinstance(cur,bool) else (int(v) if isinstance(cur,int) else v.replace("+"," ")))
    from mkco import build as mk
    for it in range(4):
        bad=write(a.out); co=mk(a.out); hot,tot=sizes(co)
        need=-(-hot//(32*128))
        done=(need==CPF_LINES)
        CPF_LINES=need
        if cfg.pads:
            import subprocess
            lst=subprocess.run(["llvm-objdump","-d","--mcpu=gfx950",co],capture_output=True,text=True).stdout
            lst=lst[lst.index("<Lmain>:"):]
            enc=[len(m.group(1).split())*4 for m in re.finditer(r"// [0-9A-F]{12}: ([0-9A-F ]+)",lst)]
            src=open(a.out).read(); src=src[src.index("Lmain:\n"):].split("\n")[1:]
            j=0; addr=0
            for ln in src:
                t=ln.strip()
                if t.startswith(".section"): break
                if t==".p2align 3":
                    if addr%8: j+=1; addr+=4
                    continue
                if not t or t.startswith(";") or t.endswith(":") or t.startswith("."): continue
                SZ[t]=enc[j]; addr+=enc[j]; j+=1
            np_=(hot-64-cfg.padoff)//cfg.pads
            if np_!=NPADS: done=False
            NPADS=np_
        if done and it>0: break
    assert 32*128*CPF_LINES+256<=tot, (hot,tot)
    print(co, "PROBLEMS" if bad else "clean", "hot",hot,"total",tot,"cpf lines",CPF_LINES)
```

```python
import sys, argparse, re, functools
sys.path.insert(0,'work')
from asmlib import I, check_trace
NAME="standalone__gqa_softmax__near_ridge_kernel"
SLOT=16640; WREG=4160; NSLOT=9
LDSB=NSLOT*SLOT
HEADB=98304
TOTB=50331648

class Cfg:
    ld="nt"; st="sc1"; st2="nt"
    stamps=False; rt=False; tl=False; dbgsz=0x400000; echo=-1; diag=''
    slow=True; cpf=True
    rho=3; rhoG=3; rhoE=8
    prof='47,47,44,40'
    loopR=False
    profB='00,00'
    profB0='40,20'
    profO=''
    oddB=False
    midprof=''
    profS=0
    G=1
    rho2=8; nd1=13
    tls=False
    profBs=''
    profT=0
    pro=0
    su=0
    bar11=0
    pads=0
    padoff=0
    st3=''; n3=3
    pkf=0
    drop=''
    dl=0
cfg=Cfg()

def O(s,dt): return 64+32*s+4*dt
SB=[16,24]; PB=[32,36]
MN=40
vK,vV,vKl,vVl=46,47,48,49
vD=[50,51]
vQ=52
vR=[56,63]
vKVA,vKVB,vQA,vQB=57,58,59,60
vW=[5,6,7,62]
T0,T1,T2,T3=1,2,3,4
DR=[8,12]
QREGS=[vQ+k for k in range(4)]
def Qr(s,ks): return 16*s+4*ks
def Kf(par,i): return 96+32*par+4*i
def Vf(par,dt): return 160+32*par+4*dt
def Lr(s): return 224+4*s
ONES=248
sKA,sVB,sQA,sQB,sO=8,12,16,20,24
sOff,sCur,sC,sH,sW4,sT,sPe,sEnd,sKVw,sQw,sThr=40,42,43,44,45,46,47,48,49,50,51
sBad=52; sBad2=96
sTmp,sSt,sNC,sHn,sDbg=55,57,58,59,60
sSd,sDi=41,54
sStamp=64
sPo,sXe,sXo=92,93,94
sC2=38

def vr(a,n=4): return f"v[{a}:{a+n-1}]"
def ar(a,n=4): return f"a[{a}:{a+n-1}]"
def sr(a,n=4): return f"s[{a}:{a+n-1}]"
def offs(o): return f" offset:{o}" if o else ""

def slotKV(h,b):
    if b<2: return b
    if h==0: return (6+b)%9
    return [8,0,1,2][(b-2)%4]
def slotQ(s): return 2+s
UOFF=[0,1024,2080,3104]
def dma(j,tag,slot,q,off=sOff):
    A,B,va,vb=(sQA,sQB,vQA,vQB) if q else (sKA,sVB,vKVA,vKVB)
    p=f" {cfg.ld}" if cfg.ld else ""
    return I(f"buffer_load_dwordx4 v{[va,va,vb,vb][j]}, {sr([A,B,A,B][j])}, s{off} offen{offs(UOFF[j])}{p} lds", tag=tag, slot=slot, part=(None if q else 'KV'[j&1]))
def kvdma(h,b,j,off=sOff): return dma(j,f"h{h}KV{b}",slotKV(h,b),False,off)
def qdma(h,s,j,off=sOff): return dma(j,f"h{h}Q{s}",slotQ(s),True,off)
def pdma(n,j):
    if n<18: return kvdma(0,n-6,j)
    if n<20: return kvdma(1,n-18,j)
    return qdma(1,n-20,j)
def setm0(slot): return I(f"s_add_u32 m0, s{sW4}, {slot*SLOT}") if slot else I(f"s_mov_b32 m0, s{sW4}")
def frag_reads(h,b,base=0,rk=vK,rv=vV,tags=True):
    m=dict(src=f"h{h}KV{b}",slot=slotKV(h,b)) if tags else {}
    par=b&1
    return [I(f"ds_read_b128 {ar(Kf(par,i))}, v{rk}{offs(base+(i//4)*512+(i%4)*64)}",part='K',**m) for i in range(8)]+\
           [I(f"ds_read_b64_tr_b16 {ar(Vf(par,i//2)+2*(i%2),2)}, v{rv}{offs(base+(i%2)*512+(i//2)*32)}",part='V',**m) for i in range(16)]
def qreads(h,s): return [I(f"ds_read_b128 {ar(Qr(s,ks))}, v{vQ+ks}{offs((s%4)*SLOT)}", src=f"h{h}Q{s}", slot=slotQ(s), private=True) for ks in range(4)]
def bias(regs,up): return [I(f"{'v_add_u32' if up else 'v_subrev_u32'} v{r}, {4*SLOT}, v{r}") for r in regs]
def setrd(reg,rk=vK,rv=vV): return [I(f"v_add_u32 v{rk}, s{reg}, v{vKl}"), I(f"v_add_u32 v{rv}, s{reg}, v{vVl}")]

FA=[(b,s) for s in range(6) for b in (0,1)]
LA=[(10,0),(10,1),(10,2),(11,0),(11,1),(10,3),(11,2),(10,4),(11,3),(10,5),(11,4),(11,5)]
FB=[(0,0),(0,1),(1,0),(0,2),(1,1),(0,3),(1,2),(0,4),(1,3),(0,5),(1,4),(1,5)]
MID=[(b,s) for b in range(2,10) for s in range(6)]
GB=[(b,s) for b in (8,9,10,11) for s in (0,1,2)]+[(8,3),(8,4),(8,5),(9,3),(9,4),(9,5),(10,3),(11,3),(10,4),(11,4),(10,5),(11,5)]
LB=[(10,0),(10,1),(10,2),(11,0),(11,1),(11,2),(10,3),(11,3),(10,4),(11,4),(10,5),(11,5)]
LQ=[(b,s) for s in range(6) for b in (10,11)]
UNITS=[]
def set_units():
    UNITS[:]=[(0,)+u for u in FA+MID+LA]+[(1,)+u for u in (FB+MID[:36]+GB if cfg.G==1 else FB+MID+(LB if cfg.G==0 else LQ))]
def unit(i): return UNITS[i] if 0<=i<len(UNITS) else None

MF="v_mfma_f32_16x16x32_bf16"
def qk_mfmas(s,kpar,sb,u=None):
    o=[]
    for i in range(8):
        kt,ks=divmod(i,4); d=SB[sb]+4*kt
        x=I(f"{MF} {vr(d)}, {ar(Kf(kpar,i))}, {ar(Qr(s,ks))}, {'0' if ks==0 else vr(d)}")
        if u:
            x.meta['expect']={**{r:f"h{u[0]}KV{u[1]}" for r in x.A}, **{r:f"h{u[0]}Q{u[2]}" for r in x.B}}
            x.meta['set']={r:f"S{u}" for r in x.wr}
        o.append(x)
    return o
def pv_mfmas(s,vpar,pb,first,u=None):
    o=[I(f"{MF} {vr(O(s,dt))}, {ar(Vf(vpar,dt))}, {vr(PB[pb])}, {'0' if first else vr(O(s,dt))}") for dt in range(8)]
    o.append(I(f"{MF} {ar(Lr(s))}, {ar(ONES)}, {vr(PB[pb])}, {'0' if first else ar(Lr(s))}"))
    if u:
        cnt=sum(1 for y in UNITS[:UNITS.index(u)] if y[0]==u[0] and y[2]==u[2])
        for k,x in enumerate(o):
            e={r:f"P{u}" for r in x.B}
            if k<8: e.update({r:f"h{u[0]}KV{u[1]}" for r in x.A})
            if not first: e.update({r:f"O{u[0]}n{cnt}" for r in x.wr})
            x.meta['expect']=e; x.meta['set']={r:f"O{u[0]}n{cnt+1}" for r in x.wr}
    return o
FREE=(5,11,16)
def sm_gaps(s,sb,pb,u=None):
    S=SB[sb]; P=PB[pb]
    T=(lambda **k:k) if u else (lambda **k:{})
    f=lambda e: I(f"v_fma_f32 v{S+e}, v{S+e}, s{sC}, v{MN+s}", **T(expect={('v',S+e):f"S{u}",('v',MN+s):f"M{u and u[0]}"}))
    x=lambda e: I(f"v_exp_f32 v{S+e}, v{S+e}", **T(expect={('v',S+e):f"S{u}"}))
    c=lambda e: I(f"v_cvt_pk_bf16_f32 v{P+e//2}, v{S+e}, v{S+e+1}", **T(expect={('v',S+e):f"S{u}",('v',S+e+1):f"S{u}"}, set={('v',P+e//2):f"P{u}"}))
    if cfg.pkf:
        mb=MN+(s&~1); sel="op_sel:[0,0,1] op_sel_hi:[1,0,1]" if s&1 else "op_sel_hi:[1,0,0]"
        pf=lambda e: I(f"v_pk_fma_f32 v[{S+e}:{S+e+1}], v[{S+e}:{S+e+1}], s[{sC2}:{sC2+1}], v[{mb}:{mb+1}] {sel}", **T(expect={('v',S+e):f"S{u}",('v',MN+s):f"M{u and u[0]}"}))
        if cfg.pkf==1: return [[pf(0)],[x(0)],[x(1)],[pf(2)],[x(2)],[],[x(3)],[pf(4)],[x(4)],[x(5)],[pf(6)],[],[x(6)],[x(7)],[c(0),c(2)],[c(4),c(6)],[]]
        return [[pf(0),pf(2),pf(4),pf(6)],[x(0)],[x(1)],[],[x(2)],[],[x(3)],[],[x(4)],[x(5)],[],[],[x(6)],[x(7)],[c(0),c(2)],[c(4),c(6)],[]]
    return [[f(0),f(1)],[x(0)],[x(1)],[f(2),f(3)],[x(2)],[],[x(3)],[f(4),f(5)],[x(4)],[x(5)],[f(6),f(7)],[],[x(6)],[x(7)],[c(0),c(2)],[c(4),c(6)],[]]
def max_seq(s,sb,h):
    S=SB[sb]
    return [I(f"v_max3_f32 v{T0}, v{S}, v{S+1}, v{S+2}"), I(f"v_max3_f32 v{T3}, v{S+3}, v{S+4}, v{S+5}"),
            I(f"v_max3_f32 v{T0}, v{T0}, v{S+6}, v{S+7}"), I(f"v_max_f32 v{T0}, v{T0}, v{T3}"),
            I(f"v_mov_b32 v{T3}, v{T0}"), I(f"v_permlane16_swap_b32 v{T0}, v{T3}"),
            I(f"v_max_f32 v{T0}, v{T0}, v{T3}"), I(f"v_mov_b32 v{T3}, v{T0}"),
            I(f"v_permlane32_swap_b32 v{T0}, v{T3}"), I(f"v_max_f32 v{T0}, v{T0}, v{T3}"),
            I(f"v_mul_f32 v{MN+s}, s{sNC}, v{T0}", set={('v',MN+s):f"M{h}"})]
MAXG=[11,11,12,12,12,13,14,14,15,16,16]
def put(ex,g,items): ex.setdefault(g,[]).extend(items)

def step(i, ex=None, post=None, clump=0, sumfirst=False):
    ex=ex or {}; post=post or {}
    q,m,p=unit(i+1),unit(i),unit(i-1)
    mf=(qk_mfmas(q[2],q[1]&1,(i+1)&1,q) if q else [None]*8)+(pv_mfmas(p[2],p[1]&1,(i-1)&1,p[1]==0,p) if p else [None]*9)
    if sumfirst: mf=mf[:8]+[mf[16]]+mf[8:16]
    g=sm_gaps(m[2],i&1,i&1,m) if m else [[] for _ in range(17)]
    for src,dst in [(2,1),(9,8),(13,12),(15,14),(4,3),(7,6),(1,0)][:clump]:
        g[dst]=g[dst]+g[src]; g[src]=[]
    tailmax=[]
    if q and q[1]==0:
        ms=max_seq(q[2],(i+1)&1,q[0])
        if p and m:
            for gg,x in zip(MAXG,ms): g[gg]=g[gg]+[x]
        else:
            for x in ms:
                if x.op.startswith('v_permlane'): tailmax.append(I("s_nop 1"))
                tailmax.append(x)
    out=[I(f"; ---- step {i}: QK{q} softmax{m} PV{p}")]
    if cfg.tls and i<=30:
        w=I("s_waitcnt lgkmcnt(0)"); w.meta['skip']=True
        out+=[w]+TL()
    out+=ex.get(-1,[])
    for k in range(17):
        if mf[k] is not None: out.append(mf[k])
        out+=ex.get(k,[])+g[k]+post.get(k,[])
    return out+tailmax+ex.get(17,[])

def free_gaps(ex,lo,n,avoid=()):
    return [x for x in range(lo,17) if x not in FREE and x not in ex and x not in avoid][:n]
def spread(ex,lo,items,avoid=()):
    gs=free_gaps(ex,lo,len(items),avoid)
    while len(gs)<len(items): gs.append(gs[-1])
    for x,i in zip(gs,items): put(ex,x,[i])
def TL():
    if not cfg.tl: return []
    r=[I("s_mov_b64 exec, s[90:91]"), I("v_mov_b32 v0, s98"), I("v_mov_b32 v61, s100"), I("s_mov_b64 exec, -1"), I("s_lshl_b64 s[90:91], s[90:91], 1"), I("s_memtime s[98:99]"), I("s_memrealtime s[100:101]")]
    for x in r: x.meta['skip']=True
    return r
def BAR(): return [I("s_barrier")]+([] if cfg.tls else TL())
def WV(tag,lg0=False,part=None): return I("s_waitcnt vmcnt(AUTO)"+(" lgkmcnt(0)" if lg0 else ""), auto_vm=tag, need=tag, wpart=part)
def WL(x): return I("s_waitcnt lgkmcnt(AUTO)", auto_lg=x)

def kind(x):
    if x.op.startswith('ds_read'): return 'r'
    if x.op.startswith('ds_write'): return 'w'
    if getattr(x,'dma',False): return 'd'
    if getattr(x,'store',False): return 's'
    return 'a'
def gapcost(ks,free):
    if not ks: return 0
    U={'r':4,'d':6,'w':12,'s':12,'a':4}
    c=sum(U[k] for k in ks)
    if ks[0]=='a': c-=4
    if len(ks)==1 and ks[0]=='d': c=4 if not free else 8
    for p,q in zip(ks,ks[1:]):
        if p=='w' and q=='r': c+=12
    st=12*ks.count('s')
    if free: return st+max(0,c-st-8)
    return c+4*max(0,len([k for k in ks if k!='a'])-1)
def place(ex,groups,lo=0,hi=16,free=FREE):
    groups=[g if isinstance(g,list) else [g] for g in groups]
    n=len(groups)
    if not n: return
    base={g:[kind(x) for x in ex.get(g,[]) if not x.label and not x.meta.get('skip')] for g in range(17)}
    @functools.lru_cache(None)
    def f(g,i):
        if i==n: return (0,())
        if g>hi: return (1e9,())
        best=(1e9,())
        for m in range(0,min(4,n-i)+1):
            ks=base[g]+[kind(x) for gr in groups[i:i+m] for x in gr]
            c=gapcost(ks,g in free)-gapcost(base[g],g in free)
            c+=0.01*sum(abs(g-(lo+(hi-lo)*(j+0.5)/n)) for j in range(i,i+m))
            r=f(g+1,i+m)
            if c+r[0]<best[0]: best=(c+r[0],(g,)*m+r[1])
        return best
    c,gs=f(lo,0)
    assert len(gs)==n
    for g,gr in zip(gs,groups): put(ex,g,gr)

def put_reads(ex,post,reads,r,late):
    rs=reads[4*r:4*r+4]
    nw=max(0,late-4); late=min(late,4)
    if late:
        gs=[6,8,12,13] if r<5 else [2,6,8,9]
        for k in range(late): put(post,gs[k],[rs[k]]+([I("s_waitcnt lgkmcnt(0)")] if k in [3,1,2,0][:nw] else []))
        if rs[late:]: put(ex,16 if r<5 else 11,rs[late:])
    else:
        rg=(5,16) if r<5 else (5,11)
        put(ex,rg[0],rs[:2]); put(ex,rg[1],rs[2:])
def loop_end(ex,lab,n):
    put(ex,13,[I(f"s_add_u32 s{sT}, s{sT}, 1")]); put(ex,15,[I(f"s_cmp_lt_u32 s{sT}, {n}")]); put(ex,16,[I(f"s_cbranch_scc1 {lab}")])

def blockA(b,pairs,pf,nv=None,lab=None,n=0):
    late,clump=int(pf[0]),int(pf[1])
    reads=frag_reads(0,b+1); tag=f"h0KV{b+1}"
    out=[]
    inc=4096 if pairs[0]>=20 else 8192
    if len(pairs)==2: dpos={0:[(0,0,11)],1:[(0,1,3),(0,2,11)],2:[(0,3,11)],3:[(1,0,11)],4:[(1,1,3),(1,2,11)],5:[(1,3,14)]}; advr=(0,3)
    else: dpos={0:[(0,0,11)],2:[(0,1,11)],3:[(0,2,11)],4:[(0,3,11)]}; advr=(0,)
    for r in range(6):
        ex={}; post={}
        if r==0:
            put(ex,0,[I(f"s_waitcnt vmcnt({nv}) lgkmcnt(0)", need=tag, loose_ok=True) if nv is not None else WV(tag,True)])
            put(ex,1,BAR()); put(post,4,setrd(sCur))
        put_reads(ex,post,reads,r,late)
        for (p,j,g) in dpos.get(r,[]): put(ex,g,[pdma(pairs[p],j)])
        if r in advr: spread(ex,2,[I(f"s_add_u32 m0, m0, {SLOT}"), I(f"s_cmp_ge_u32 m0, s{sEnd}"), I(f"s_cselect_b32 m0, s{sW4}, m0"), I(f"s_add_u32 s{sOff}, s{sOff}, {inc}")])
        if r==3: put(ex,15,[I(f"s_waitcnt lgkmcnt({4+late if late else 6})")])
        if r==5:
            spread(ex,0,[I(f"s_add_u32 s{sCur}, s{sCur}, {SLOT}"), I(f"s_cmp_ge_u32 s{sCur}, s{sEnd}"), I(f"s_cselect_b32 s{sCur}, s{sW4}, s{sCur}")])
            if lab: loop_end(ex,lab,n)
        out+=step(6*b+1+r,ex,post,clump)
    return out
def rampA(t=None,prof=None):
    pf=(prof or cfg.prof).split(',')
    if t is not None:
        n=12+4*t
        return blockA(2*t+2,[n,n+1],pf[0],nv=8)+blockA(2*t+3,[n+2,n+3],pf[1],nv=12,lab="LloopA1",n=2)
    o=[]
    for k,b in enumerate(range(2,6)): o+=blockA(b,[12+2*k,13+2*k],pf[k])
    return o
def staticA():
    out=[]
    seq=[(n,j) for n in range(12,24) for j in range(4)]
    pos={4:[(0,11),(2,11),(3,11),(4,11)], 5:[(0,11),(1,11),(2,11),(3,11),(4,11)], 6:[(0,11),(1,11),(2,11),(3,11),(4,11),(5,14)],
         7:[(0,11),(1,11),(2,3),(2,11),(3,11),(4,11),(5,14)], 8:[(0,11),(1,3),(1,11),(2,11),(3,11),(4,3),(4,11),(5,14)]}
    pf=cfg.midprof.split(',')
    assert sum(int(p[2]) for p in pf)==48
    for b,p in zip(range(2,10),pf):
        late,clump,nd=int(p[0]),int(p[1]),int(p[2])
        sl=slotKV(0,b+1); base=(sl%4)*SLOT
        reads=frag_reads(0,b+1,base=base); tag=f"h0KV{b+1}"
        for r in range(6):
            ex={}; post={}
            lb=2 if (b==2 and cfg.su&4) else 0
            if r==0 and lb: put(ex,7,[I("s_waitcnt lgkmcnt(0)")])
            if r==lb:
                put(ex,0,[WV(tag,True)]); put(ex,1,BAR())
                if sl%4==0:
                    put(ex,2,[I(f"s_add_u32 s{sCur}, s{sW4}, {sl*SLOT}")]); put(post,4,setrd(sCur))
            if lb:
                if r>=2:
                    rr=reads[6*(r-2):6*(r-2)+6]
                    gs=[6,8,12,13] if r<5 else [2,6,8,9]
                    put(ex,5,rr[:2])
                    for k in range(4): put(post,gs[k] if r<5 else [6,8,9,10][k],[rr[2+k]]+([I("s_waitcnt lgkmcnt(0)")] if k in [3,1,2,0][:max(0,late-4)] else []))
            else: put_reads(ex,post,reads,r,late)
            for (rr,g) in pos[nd]:
                if rr==r:
                    n,j=seq.pop(0)
                    if j==0:
                        pre=[setm0(n%9), I(f"s_add_u32 s{sOff}, s{sOff}, {4096 if n>20 else 8192}") if n!=20 else I(f"s_add_u32 s{sOff}, s{sHn}, s{sQw}")]
                        gs=[x for x in range(g-1,-1,-1) if x not in ex and x not in FREE][:2]
                        while len(gs)<2: gs.append(g)
                        put(ex,gs[1],[pre[0]]); put(ex,gs[0],[pre[1]])
                    put(ex,g,[pdma(n,j)])
            if r==3: put(ex,15,[WL(reads[7])])
            if b==9 and r==5: put(ex,12,[I(f"s_add_u32 s{sCur}, s{sW4}, {8*SLOT}")])
            out+=step(6*b+1+r,ex,post,clump)
    assert not seq
    return out
def midA(): return [I(f"s_add_u32 s{sOff}, s{sHn}, s{sQw}"), I(f"s_sub_u32 s{sOff}, s{sOff}, 4096"), I(f"s_mov_b32 s{sT}, 0")]
def loopA2(t): return blockA(2*t+6,[20+2*t],'00',nv=24)+blockA(2*t+7,[21+2*t],'00',nv=24,lab="LloopA2",n=2)

def ostore(reg,j,pol,so,tag=None):
    x=I(f"buffer_store_dwordx4 {vr(reg)}, v{vKVB}, {sr(sO)}, s{so} offen{offs(1024*j)}"+(f" {pol}" if pol else ""))
    if tag: x.meta['expect']={r:tag for r in x.data}
    return x
DIRECT=2
def dunit(k): return (DIRECT+k//4, k%4)
def blockB(b,pf,lab=None,n=0):
    late,clump=int(pf[0]),int(pf[1])
    t=(b-2)//2
    reads=frag_reads(1,b+1); tag=f"h1KV{b+1}"
    out=[]; lead=(b%2==0)
    rp,wp=(sPo,sPe) if lead else (sPe,sPo)
    rx=sXo if lead else sXe
    nb=cfg.dl//2; loc0=(0 if lead else nb)
    dr=[]; sts=[]
    for k in range(nb):
        sub,j=dunit(cfg.dl*t+loc0+k); jj=loc0+k
        dr.append(I(f"ds_read_b128 {vr(DR[jj&1])}, v{vD[jj&1]}{offs(1024*jj)}", src=f"O{sub}", slot=slotQ(sub), private=True))
        sts.append(ostore(DR[jj&1],jj,cfg.st,sSd,f"O{sub}"))
    for r in range(6):
        ex={}; post={}
        if r==0:
            put(ex,0,[I(f"s_waitcnt vmcnt({8+nb}) lgkmcnt(0)", need=tag, loose_ok=True)])
            put(ex,1,BAR())
            put(ex,2,[I(f"s_mov_b32 m0, s{wp}")]); put(ex,3,[I(f"s_xor_b32 s{rp}, s{rp}, s{rx}")])
            put(ex,4,[I(f"s_add_u32 s{sOff}, s{sOff}, 8192")]); put(post,4,setrd(rp))
        put_reads(ex,post,reads,r,late)
        if r<4: put(ex,11,[kvdma(1,b+4,r)])
        if r==3: put(ex,15,[I(f"s_waitcnt lgkmcnt({4+late if late else 6})")])
        if r==4 and nb: put(ex,11,dr)
        if r==5 and nb:
            put(ex,1,[I("s_waitcnt lgkmcnt(2)")]); put(ex,3,[sts[0]])
            if nb==2: put(ex,10,[sts[1]])
        if r==5 and not lead:
            if nb:
                put(ex,12,[I(f"s_add_u32 s{sSd}, s{sSd}, {1024*cfg.dl}")])
                inc=f"{SLOT}" if cfg.dl==4 else f"s{sDi}"
                put(post,16 if not lab else 7,[I(f"v_add_u32 v{vD[k]}, {inc}, v{vD[k]}") for k in range(2)])
                if cfg.dl==2: put(ex,0,[I(f"s_xor_b32 s{sDi}, s{sDi}, {2048^(SLOT-2048)}")])
            if lab: loop_end(ex,lab,n)
        out+=step(72+6*b+1+r,ex,post,clump)
    return out
def loopB(t):
    pf=cfg.profB.split(',')
    return blockB(2*t+2,pf[0])+blockB(2*t+3,pf[1],lab="LloopB",n=(2 if cfg.profB0 else 3))
def peelB():
    if cfg.profBs:
        o=[]
        for b,p in zip(range(2,8),cfg.profBs.split(',')): o+=blockB(b,p)
        return o
    pf=cfg.profB0.split(',')
    return blockB(2,pf[0])+blockB(3,pf[1])

def tagexp(o,tag):
    if tag:
        h=0 if tag[0]=='O' else 1
        for x in o:
            x.meta['expect']={r:f"O{h}n12" for r in x.rd if (r[0]=='v' and r[1]>=64) or (r[0]=='a' and 224<=r[1]<248)}
    return o
def e_head(s,bad,tag,rc):
    o=[I(f"v_accvgpr_read_b32 v{T2}, a{Lr(s)}"), I(f"v_rcp_f32 v{rc}, v{T2}")]
    o.append(I(f"v_cmp_nge_f32 vcc, s{sThr}, v{T2}") if bad is not None else I("s_nop 0"))
    if bad is not None: o.append(I(f"s_or_b64 s[{bad}:{bad+1}], s[{bad}:{bad+1}], vcc"))
    return tagexp(o,tag)
def e_pk(s,dt,tag,rc):
    a=O(s,dt)
    return tagexp([I(f"v_pk_mul_f32 {vr(a+k,2)}, {vr(a+k,2)}, v[{rc}:{rc+1}] op_sel_hi:[1,0]") for k in (0,2)],tag)
def e_cvt(s,dt,tag):
    a=O(s,dt)
    return tagexp([I(f"v_cvt_pk_bf16_f32 v{a}, v{a}, v{a+1}"), I(f"v_cvt_pk_bf16_f32 v{a+1}, v{a+2}, v{a+3}")],tag)
def e_wr(s,dt,off,slot,tag,regs=vW):
    return tagexp([I(f"ds_write_b64 v{regs[dt&3]}, {vr(O(s,dt),2)}{offs(off+(dt>>2)*128)}", wslot=slot, wtag=tag)],tag)[0]
def epi_rd(s,off,slot,tag=None,regs=vR):
    m=dict(src=tag,slot=slot,private=True) if tag else {}
    return [I(f"ds_read_b128 {vr(O(s,2*j))}, v{regs[j&1]}{offs(off+1024*j)}", **m) for j in range(4)]
def epi_st(s,pol,so,tag=None): return [ostore(O(s,2*j),j,pol,so,tag) for j in range(4)]

class Epi:
    def __init__(s,rc2,so): s.rc2=rc2; s.so=so; s.tiles=[]; s.cv=[]; s.wr=[]; s.rd=[]; s.st=[]; s.info={}
    def add(s,sub,avail,off,slot,bad,tag,direct,pol,pre=()):
        s.info[sub]=dict(off=off,slot=slot,bad=bad,tag=tag,direct=direct,pol=pol,pre=list(pre))
        s.tiles+=[(avail,sub,dt) for dt in range(8)]
    def _rd(s,g):
        rd=s.rd; s.rd=[]
        for sub in rd:
            I_=s.info[sub]; r=epi_rd(sub,I_['off'],I_['slot'],I_['tag']); g+=[[x] for x in r]
            st=epi_st(sub,I_['pol'],s.so,I_['tag'])
            s.st+=[[WL(r[1]),st[0]],[st[1]],[WL(r[3]),st[2]],[st[3],I(f"s_add_u32 s{s.so}, s{s.so}, 4096")]]
    def mem(s,nst,fast=False):
        g=[]
        for _ in range(nst):
            if s.st: g.append(s.st.pop(0))
        s._rd(g)
        for sub,dt in s.wr:
            I_=s.info[sub]
            g.append(([I_['pre'][dt]] if (I_['pre'] and dt<4) else [])+[e_wr(sub,dt,I_['off'],I_['slot'],I_['tag'])])
            if dt==7 and I_['direct']: s.rd.append(sub)
        s.wr=[]
        if fast: s._rd(g)
        return g
    def chunk(s,i,n):
        take=[]
        while s.tiles and len(take)<n and s.tiles[0][0]<=i: take.append(s.tiles.pop(0)[1:])
        o=[]
        for sub,dt in s.cv: o+=e_cvt(sub,dt,s.info[sub]['tag']); s.wr.append((sub,dt))
        s.cv=[]
        heads=[]
        for sub,dt in take:
            I_=s.info[sub]; rc=T1 if sub%2==0 else s.rc2
            if dt==0: heads+=e_head(sub,I_['bad'],I_['tag'],rc)
        o=heads+o
        for sub,dt in take:
            o+=e_pk(sub,dt,s.info[sub]['tag'],T1 if sub%2==0 else s.rc2)
        k=max(1,len(take)-2) if s.tiles and s.tiles[0][0]<=i+1 else len(take)
        for sub,dt in take[:k]: o+=e_cvt(sub,dt,s.info[sub]['tag']); s.wr.append((sub,dt))
        s.cv=take[k:]
        return o
    def done(s): return not(s.tiles or s.cv or s.wr or s.rd or s.st)

NPADS=0
PADAT={}
def SITE(k): return min(9,(k-1)*10//max(NPADS,1)-1+0)
def startA():
    o=[I("; ==== head A, first two key blocks (q-major, as Q arrives)")]
    f0=frag_reads(0,0); f1=frag_reads(0,1,base=SLOT); f2=frag_reads(0,2)
    o+=setrd(sW4)
    o.append(WV("h0Q0")); o+=BAR()
    o+=qreads(0,0)+f0[:8]
    seq=[('q',s,j) for s in (3,4,5) for j in range(4)]+[('k',b,j) for b in (2,3,4,5) for j in (0,2,1,3)]
    def dm():
        k,x,j=seq.pop(0); it=[]
        if j==0:
            it+=[setm0(slotQ(x) if k=='q' else slotKV(0,x)), I(f"s_add_u32 s{sTmp}, s{sTmp}, 4096") if k=='q' else I(f"s_add_u32 s{sOff}, s{sOff}, 8192")]
        return it+[qdma(0,x,j,sTmp) if k=='q' else kvdma(0,x,j)]
    for i in range(-1,13):
        ex={}; post={}
        if i==-1:
            put(ex,-1,[WL(f0[0])])
            if cfg.su&1:
                for k in range(7): put(ex,k,[WL(f0[k+1])])
                put(ex,7,dm()+dm()+[WV("h0KV1",part='K')]+BAR()+f1[:8])
            else:
                for k in range(8): put(ex,k,f0[8+2*k:10+2*k]+([WL(f0[k+1])] if k<7 else []))
                put(ex,7,dm()+dm()+[WV("h0KV1")]+BAR()+f1[:8])
            put(ex,17,[WL(f1[7])])
        else:
            if i==0 and cfg.su&1:
                put(ex,9,[WV("h0KV1")]+BAR()+f0[8:])
            if i==1 and cfg.su&1:
                for k in range(8): put(ex,k,f1[8+2*k:10+2*k])
            if i==2 and cfg.su&1: put(ex,7,[WL(f1[23])])
            if i==0 and not cfg.su&1:
                for k in range(8): put(ex,k,f1[8+2*k:10+2*k])
            if i==3: put(ex,0,[I("s_waitcnt lgkmcnt(0)")]); put(ex,1,BAR())
            if i%2==0 and i<=8:
                s=i//2+1; qs=qreads(0,s)
                put(ex,2 if i else 8,dm()); put(ex,5 if i else 8,dm())
                if s==4: put(post,9,bias(QREGS,True))
                put(ex,10,[WV(f"h0Q{s}")]); put(ex,11,qs[:2]); put(ex,12,[qs[2]]); put(ex,13,[qs[3]])
                if s==5: put(post,16,bias(QREGS,False))
                put(ex,17,[WL(qs[3])])
            elif i==10:
                put(ex,0,[WV("h0KV2",True,part=('K' if cfg.su&2 else None))]); put(ex,1,BAR())
                put(ex,2,[I(f"s_add_u32 s{sCur}, s{sW4}, {8*SLOT}")]); put(post,3,setrd(sCur))
                place(ex,f2[:8],lo=4,hi=12)
                put(ex,14,dm()); put(ex,16,dm())
                put(ex,17,[WL(f2[7])])
            elif i==12:
                place(ex,f2[8:],lo=0,hi=13)
                put(ex,14,dm()); put(ex,16,dm())
                put(ex,15,[I(f"s_mov_b32 s{sCur}, s{sW4}")])
            else:
                put(ex,5,dm()); put(ex,10,dm())
                if i==11 and cfg.su&2: put(ex,15,[WV("h0KV2")]); put(ex,16,BAR())
        ks=[k for k in range(1,NPADS+1) if SITE(k)==i]
        for k in ks:
            site=[I("s_mov_b64 exec, 0"), I(f"s_branch Lpad{k}"), I(f"Lret{k}:"), I("s_mov_b64 exec, -1")]
            if i%2==0 and 0<=i<=8: ex[10]=site+ex[10]
            else: put(ex,17,site)
        o+=step(i,ex,post,cfg.profS if (i>=6 and i%2==0) or i>9 else 0)
    assert not seq
    return o

def trans():
    o=[I("; ==== head A last two key blocks + head B first two, epilogue of head A streamed")]
    f11=frag_reads(0,11); g0=frag_reads(1,0); g1=frag_reads(1,1,base=SLOT); g2=frag_reads(1,2)
    E=Epi(14,sSd)
    idxA={u:k for k,u in enumerate(LA)}
    for s in range(6):
        E.add(s,60+idxA[(11,s)]+2,(s%4)*SLOT,slotQ(s),sBad,f"O{s}",s<DIRECT,cfg.st,pre=(bias(vW,True) if s==4 else ()))
    Q=lambda s:qreads(1,s)
    q5=Q(5)
    R={61:f11[:8], 62:f11[8:16], 63:f11[16:24], 64:Q(0), 65:Q(1), 67:Q(2), 68:Q(3), 69:g0[:4], 70:g0[4:8], 71:g0[8:16], 72:g1[:8], 73:g0[16:24],
       74:g1[8:18], 75:g1[18:24], 76:Q(4), 78:q5, 81:g2[:4], 82:g2[4:8], 83:g2[8:16], 84:g2[16:24]}
    D={}
    for (k,x),steps in zip([('q',4),('q',5),('k',2),('k',3),('k',4),('k',5)],
                           [[61,62,63,64],[65,66,66,67],[69,70,71,72],[76,77,77,78],[79,79,80,80],[81,82,83,84]]):
        for j,i in enumerate(steps): D.setdefault(i,[]).append((k,x,j))
    for i in range(61,85):
        ex={}; post={}
        rs=R.get(i,[]); lo=0; hi=16
        mx=(unit(i+1)[1]==0)
        if i==61:
            put(ex,0,[WV("h0KV11",True)]); put(ex,1,BAR()); put(post,2,setrd(sCur)); lo=3; hi=12
            put(ex,17,[WL(f11[7])])
            put(ex,2,[I(f"s_add_u32 s{sSd}, s{sH}, s{sQw}")])
        if i==64: put(ex,0,[WV("h1Q3")]); put(ex,7,[WL(f11[23])]); lo=1
        if i==69:
            put(ex,0,[WV("h1KV1",True)]); put(ex,1,BAR()); put(post,2,setrd(sW4)); lo=3
            put(ex,2,[I(f"s_add_u32 s{sOff}, s{sHn}, s{sKVw}")]); put(ex,3,[I(f"s_add_u32 s{sOff}, s{sOff}, 8192")])
        if i==70: hi=12; put(ex,17,[WL(g0[7])])
        if i==72: hi=12; put(ex,17,[WL(g1[7])])
        if i==73: hi=5; put(ex,7,[WL(g0[17])]); put(ex,11,[WL(g0[23])])
        if i==75: hi=6; put(ex,7,[WL(g1[17])]); put(ex,12,[WL(g1[23])]); put(post,9,bias(QREGS,True))
        if i==76: put(ex,0,[WV("h1Q4",True)]); put(ex,1,BAR()); lo=2
        if i==77: put(ex,15,[WL(R[76][3])])
        if i==78: put(ex,0,[WV("h1Q5")]); lo=1
        if i==79: put(ex,15,[WL(q5[3])])
        if i==81:
            put(ex,0,[WV("h1KV2",True)]); put(ex,1,BAR())
            put(ex,2,[I(f"s_add_u32 s{sPe}, s{sW4}, {8*SLOT}")]); put(post,2,setrd(sPe)); lo=4
            put(ex,3,[I(f"s_add_u32 s{sPo}, s{sW4}, {2*SLOT}")])
        if i==82: hi=12; put(ex,17,[WL(g2[7])])
        if i==84: hi=12
        mem=E.mem(2)
        ch=E.chunk(i,cfg.rho)
        free=[g for g in FREE if not(g==16 and (ch or mx)) and not (g==11 and mx)]
        place(ex,rs,lo=lo,hi=hi,free=free)
        dg=[]
        for (k,x,j) in D.get(i,[]):
            pre=[setm0(slotQ(x) if k=='q' else slotKV(1,x)), I(f"s_add_u32 s{sOff}, s{sOff}, {4096 if k=='q' else 8192}")] if j==0 else []
            dg.append(pre+[qdma(1,x,j) if k=='q' else kvdma(1,x,j)])
        place(ex,dg,lo=max(lo,4),hi=16,free=free)
        qlast=max([g for g,v in ex.items() if any(x.meta.get('src','').startswith('h1Q') for x in v)]+[-1])
        need_after=any(kind(gr[-1])=='w' and any(x.meta.get('slot')==gr[-1].meta['wslot'] for x in rs) for gr in mem)
        place(ex,mem,lo=(qlast+1 if need_after else (2 if i in (69,76,81) else 0)),hi=15,free=free)
        put(post,16,ch)
        if i==83:
            put(post,16,bias(vW,False)+[I(f"v_add_u32 v{vD[k]}, {DIRECT*SLOT}, v{vR[k]}") for k in range(2)])
        if i==84:
            spread(ex,0,[I(f"s_mov_b32 s{sT}, 0"), I(f"s_movk_i32 s{sDi}, {SLOT-2048}"), I(f"s_add_u32 s{sSt}, s{sHn}, s{sQw}")])
            put(ex,17,[WV("h1KV3")])
        o+=step(i,ex,post)
    assert E.done()
    return o

def tailB():
    o=[I("; ==== head B last four key blocks: q sub-tiles 0-2 first, then 3-5; epilogue streamed")]
    base=120
    vK2,vV2=vQ,vQ+1
    def fr(b): return frag_reads(1,b,base=slotKV(1,b)*SLOT) if b!=10 else frag_reads(1,b,rk=vK2,rv=vV2)
    F=[fr(b) for b in [9,10,11,8,9,10,11]]
    R={}
    def addR(i,L): R.setdefault(i,[]).extend(L)
    for m in range(7):
        K,V=F[m][:8],F[m][8:]
        if m==0: addR(base+1,K)
        elif m<6: addR(base+3*m-1,K[:3]); addR(base+3*m,K[3:6]); addR(base+3*m+1,K[6:])
        else: addR(base+17,K)
        if m<6:
            addR(base+3*m+1,V[:(0 if m==0 else 5)]); addR(base+3*m+2,V[(0 if m==0 else 5):(8 if m==0 else 10)]); addR(base+3*m+3,V[(8 if m==0 else 10):(16 if m in (0,5) else 15)])
            if m not in (0,5): R.setdefault(base+3*m+4,[]).insert(0,V[15])
        else: addR(base+19,V[:12]); addR(base+20,V[12:])
    E=Epi(vQ+2,sSt)
    idx={u:k for k,u in enumerate(GB)}
    for s_ in range(5):
        sl=3+(s_%2)
        E.add(s_,base+idx[(11,s_)]+2,(sl-2)*SLOT,sl,sBad2,f"P{s_}",True,(cfg.st3 if (cfg.st3 and s_<cfg.n3) else cfg.st2))
    k0=3*cfg.dl; dq=list(range(k0,16)); pend=[]
    o_sub0,o_j0=dunit(k0)
    for i in range(base+1,base+25):
        ex={}; post={}; rel=i-base; lo=0; hi=16
        rs=list(R.get(i,[]))
        if rel==1:
            put(ex,0,[WV("h1KV10",True)]); put(ex,1,BAR())
            put(ex,2,[I(f"s_add_u32 s{sTmp}, s{sW4}, {8*SLOT}")])
            put(post,2,setrd(sW4)); lo=3; hi=12
            put(post,13,setrd(sTmp,vK2,vV2))
        if rel==5: put(ex,0,[WV("h1KV11")]); put(ex,1,BAR()); lo=2
        if rel==12: put(ex,3,TL())
        g=[]
        for rdx,k in pend:
            sub,j=dunit(k); jj=(k-k0)%4
            g.append([WL(rdx),ostore(DR[k&1],jj,cfg.st,sSd,f"O{sub}")]+([I(f"s_add_u32 s{sSd}, s{sSd}, 4096")] if jj==3 else []))
        pend=[]
        place(ex,g,lo=max(lo,3),hi=4)
        if dq:
            k=dq.pop(0); sub,j=dunit(k)
            x=I(f"ds_read_b128 {vr(DR[k&1])}, v{vD[j&1]}{offs((sub-o_sub0)*SLOT+1024*(j-o_j0))}", src=f"O{sub}", slot=slotQ(sub), private=True)
            pend.append((x,k)); place(ex,[x],lo=13,hi=15)
        mem=E.mem(2 if rel<21 else 4, fast=(rel>=21))
        ch=E.chunk(i,cfg.rhoG if rel<20 else cfg.rhoE)
        free=[g_ for g_ in FREE if not(g_==16 and ch)] if rel<24 else list(range(8,16))
        for m in range(7):
            K,V=F[m][:8],F[m][8:]
            needK = base+3*m+2 if m<6 else base+18
            needV = base+3*m+4 if m<6 else base+20
            if i==needK-1:
                put(ex,17,[WL(K[7])])
                if rs and rs[-1] is K[7]: hi=min(hi,13)
            if i==needV:
                late=[x for x in V if x in rs]
                if late:
                    place(ex,late,lo=0,hi=5,free=free); rs=[x for x in rs if x not in late]; lo=max(lo,6)
                    put(ex,7,[WL(V[15-len(late)])]); put(ex,8+(16-len(late))//2-1,[WL(V[15])])
                else: put(ex,7,[WL(V[15])])
        place(ex,rs,lo=lo,hi=hi,free=free)
        place(ex,mem,lo=(0 if rel<23 else 8),hi=(15 if rel<24 else 16),free=free)
        put(post,16,ch)
        o+=step(i,ex,post)
    assert not E.tiles and not E.cv and not dq and not pend and not E.wr and not E.rd
    return o+final5(E,ex)

def final5(E,ex):
    o=[]
    tag="P5"; sl=5; off=3*SLOT
    rest=[x for g in E.mem(8) for x in g]
    assert E.done()
    pad=max(0,8-len(rest)-len([x for x in ex.get(16,[])]))
    o+=rest+([I(f"s_nop {pad-1}")] if pad else [])+e_head(5,sBad2,tag,T1)
    for half in (0,1):
        for dt in range(4*half,4*half+4): o+=e_pk(5,dt,tag,T1)
        for dt in range(4*half,4*half+4): o+=e_cvt(5,dt,tag)
        for dt in range(4*half,4*half+4): o.append(e_wr(5,dt,off,sl,tag))
    rd=epi_rd(5,off,sl,tag); o+=rd
    st=epi_st(5,cfg.st2,sSt,tag)
    for j in range(4): o+=[WL(rd[j]), st[j]]
    return o

def tailK():
    o=[I("; ==== head B blocks 8,9 (parked output drained) and last two key blocks, epilogue streamed")]
    E=Epi(vQ+2,sSt)
    idx={u:k for k,u in enumerate(LB)}
    for s_ in range(5):
        sl=3+(s_%2)
        E.add(s_,132+idx[(11,s_)]+2,(sl-2)*SLOT,sl,sBad2,f"P{s_}",True,cfg.st2)
    k0=3*cfg.dl; dq=list(range(k0,16)); pend=[]
    o_sub0,o_j0=dunit(k0)
    f11=frag_reads(1,11)
    for i in range(121,145):
        ex={}; post={}; lo=0; hi=16; rs=[]
        if i<133:
            b,r=divmod(i-73,6); lead=(b%2==0)
            if r==0:
                reads=frag_reads(1,b+1); rp=sPo if lead else sPe; rx=sXo if lead else sXe
                put(ex,0,[WV(f"h1KV{b+1}",True)]); put(ex,1,BAR())
                put(ex,2,[I(f"s_xor_b32 s{rp}, s{rp}, s{rx}")]); put(post,4,setrd(rp)); lo=5
            rs=reads[4*r:4*r+4]
            if r==5: hi=11
            if r==3: put(ex,17,[WL(reads[7])])
        if i==133:
            put(ex,0,[WV("h1KV11",True)]); put(ex,1,BAR())
            put(ex,2,[I(f"s_xor_b32 s{sPo}, s{sPo}, s{sXo}")]); put(post,2,setrd(sPo)); lo=3; hi=12
            rs=f11[:8]; put(ex,17,[WL(f11[7])])
        if i==134: rs=f11[8:14]
        if i==135: rs=f11[14:20]
        if i==136: rs=f11[20:24]; hi=5; put(ex,7,[WL(f11[19])]+TL()); put(ex,13,[WL(f11[23])])
        g=[]
        for rdx,k in pend:
            sub,j=dunit(k); jj=(k-k0)%4
            g.append([WL(rdx),ostore(DR[k&1],jj,cfg.st,sSd,f"O{sub}")]+([I(f"s_add_u32 s{sSd}, s{sSd}, 4096")] if jj==3 else []))
        pend=[]
        place(ex,g,lo=3,hi=4)
        mem=E.mem(4, fast=True)
        ch=E.chunk(i,cfg.rho2)
        free=[g_ for g_ in FREE if not(g_==16 and ch)] if i<144 else list(range(8,16))
        place(ex,rs,lo=lo,hi=hi,free=free)
        if dq:
            k=dq.pop(0); sub,j=dunit(k)
            x=I(f"ds_read_b128 {vr(DR[k&1])}, v{vD[j&1]}{offs((sub-o_sub0)*SLOT+1024*(j-o_j0))}", src=f"O{sub}", slot=slotQ(sub), private=True)
            pend.append((x,k)); place(ex,[x],lo=6,hi=(16 if hi==16 else 12),free=free)
        place(ex,mem,lo=(0 if i<143 else 8),hi=(15 if i<144 else 16),free=free)
        put(post,16,ch)
        o+=step(i,ex,post)
    assert not E.tiles and not E.cv and not dq and not pend and not E.wr and not E.rd
    return o+final5(E,ex)

def tailQ():
    o=[I("; ==== head B blocks 8,9 (parked output drained) and last two key blocks q-major, epilogue right behind each sub-tile")]
    k0=3*cfg.dl; dq=list(range(k0,16)); pend=[]
    o_sub0,o_j0=dunit(k0)
    f9=frag_reads(1,9); f10=frag_reads(1,10); f11=frag_reads(1,11,rk=vQ,rv=vQ+1)
    R={121+r:f9[4*r:4*r+4] for r in range(6)}
    R.update({127:f10[:5],128:f10[5:11],129:f10[11:17],130:f10[17:21]+f11[:2],131:f11[2:8],132:f10[21:24],133:f11[8:18],134:f11[18:24]})
    stq=[]; nxt=[]
    nd2=max(0,len(dq)-cfg.nd1)
    for i in range(121,145):
        ex={}; post={}; lo=0; hi=16; rs=list(R.get(i,[]))
        p=unit(i-1); fin=(p[1]==11)
        if i==121:
            put(ex,0,[WV("h1KV9",True)]); put(ex,1,BAR())
            put(ex,2,[I(f"s_xor_b32 s{sPo}, s{sPo}, s{sXo}")]); put(post,4,setrd(sPo)); lo=5
        if i==124: put(ex,17,[WL(f9[7])])
        if i==126: hi=11
        if i==127:
            put(ex,0,[WV("h1KV10" if cfg.bar11 else "h1KV11",True)]); put(ex,1,BAR())
            put(ex,2,[I(f"s_xor_b32 s{sPe}, s{sPe}, s{sXe}")]); put(post,4,setrd(sPe)); lo=5
        if i==128: put(post,4,setrd(sW4,vQ,vQ+1))
        if i==130:
            put(ex,17,[WL(f10[7])])
            if cfg.bar11: put(ex,6,[WV("h1KV11")]); put(ex,7,[I("s_barrier")])
        if i==131: hi=12; put(ex,17,[WL(f11[7])])
        if i==133: put(ex,7,[WL(f10[23])]+TL())
        if i==134: hi=5; put(ex,8,[WL(f11[17])]); put(ex,13,[WL(f11[23])])
        free=[g_ for g_ in FREE if not(g_==16 and fin)] if i<144 else list(range(8,16))
        g=[]
        for rdx,k in pend:
            sub,j=dunit(k); jj=(k-k0)%4
            g.append([WL(rdx),ostore(DR[k&1],jj,cfg.st,sSd,f"O{sub}")]+([I(f"s_add_u32 s{sSd}, s{sSd}, 4096")] if jj==3 else []))
        if g: place(ex,g[:1],lo=3,hi=4)
        if len(g)>1: place(ex,g[1:],lo=9,hi=10)
        two=len(pend)>1; pend=[]
        if i==130:
            place(ex,rs[:4],lo=0,hi=11,free=free); place(ex,rs[4:],lo=8,hi=16,free=free)
        else: place(ex,rs,lo=lo,hi=hi,free=free)
        n=0
        if dq: n=1
        if dq and nd2>0 and (i%2==0 or nd2>6): n=2; nd2-=1
        xs=[]
        for _ in range(min(n,len(dq))):
            k=dq.pop(0); sub,j=dunit(k)
            x=I(f"ds_read_b128 {vr(DR[k&1])}, v{vD[j&1]}{offs((sub-o_sub0)*SLOT+1024*(j-o_j0))}", src=f"O{sub}", slot=slotQ(sub), private=True)
            pend.append((x,k)); xs.append(x)
        place(ex,xs,lo=11,hi=(16 if hi==16 else 12),free=free)
        mlo=0 if i<143 else 8
        if nxt:
            place(ex,nxt,lo=mlo,hi=16,free=free); nxt=[]
        elif stq:
            place(ex,stq,lo=mlo,hi=15,free=free); stq=[]
        if fin and p[2]<5:
            s_=p[2]; tag=f"P{s_}"; sl=3+(s_%2); off=(sl-2)*SLOT
            ch=e_head(s_,sBad2,tag,T1)
            for dt in range(8): ch+=e_pk(s_,dt,tag,T1)
            for dt in range(8): ch+=e_cvt(s_,dt,tag)
            put(post,13,ch[:1]); put(post,14,ch[1:2]); put(post,16,ch[2:])
            rd=epi_rd(s_,off,sl,tag); st=epi_st(s_,cfg.st2,sSt,tag)
            nxt=[[e_wr(s_,dt,off,sl,tag)] for dt in range(8)]+[[x] for x in rd]
            stq=[[WL(rd[1]),st[0]],[st[1]],[WL(rd[3]),st[2]],[st[3],I(f"s_add_u32 s{sSt}, s{sSt}, 4096")]]
        o+=step(i,ex,post,(cfg.profT if i<133 else 0),sumfirst=fin)
    assert not dq and not pend and not nxt and not stq
    tag="P5"; sl=5; off=3*SLOT
    o+=e_head(5,sBad2,tag,T1)
    for half in (0,1):
        for dt in range(4*half,4*half+4): o+=e_pk(5,dt,tag,T1)
        for dt in range(4*half,4*half+4): o+=e_cvt(5,dt,tag)
        for dt in range(4*half,4*half+4): o.append(e_wr(5,dt,off,sl,tag))
    rd=epi_rd(5,off,sl,tag); o+=rd
    st=epi_st(5,cfg.st2,sSt,tag)
    for j in range(4): o+=[WL(rd[j]), st[j]]
    return o

def stamp(k):
    if not cfg.stamps: return []
    op="s_memrealtime" if (cfg.echo>=0 or cfg.rt) else "s_memtime"
    return [I(f"{op} s[{sStamp+4+2*k}:{sStamp+5+2*k}]", skip=True)]

def lane_consts(A,base):
    A("v_and_b32 v4, 3, v0")
    A("v_bfe_u32 v3, v0, 2, 1"); A("v_mul_u32_u24 v9, 2080, v3")
    A("v_bfe_u32 v3, v0, 3, 1"); A("v_lshl_add_u32 v9, v3, 10, v9")
    A("v_lshl_add_u32 v9, v4, 8, v9"); A("v_lshl_add_u32 v9, v2, 4, v9"); A(f"v_add_u32 v9, s{base}, v9")
    for ks in range(4):
        A(f"v_xor_b32 v3, {ks}, v4"); A(f"v_lshl_add_u32 v{vQ+ks}, v3, 6, v9")
    A("v_and_b32 v8, 15, v0"); A("v_xor_b32 v9, v8, v2"); A("v_lshlrev_b32 v10, 8, v2"); A(f"v_add_u32 v10, s{base}, v10")
    A(f"v_lshl_add_u32 v{vR[0]}, v9, 4, v10"); A("v_xor_b32 v9, 4, v9"); A(f"v_lshl_add_u32 v{vR[1]}, v9, 4, v10")
    A("v_lshlrev_b32 v10, 8, v8"); A("v_and_b32 v9, 1, v2"); A("v_lshl_add_u32 v10, v9, 3, v10"); A(f"v_add_u32 v10, s{base}, v10")
    A("v_lshrrev_b32 v9, 1, v2"); A("v_and_b32 v8, 7, v0"); A("v_xor_b32 v9, v9, v8")
    for k in range(4):
        A(f"v_xor_b32 v8, {2*k}, v9"); A(f"v_lshl_add_u32 v{vW[k]}, v8, 4, v10")

CPF_LINES=11
def prologue():
    o=[]
    A=lambda t,**k: o.append(I(t,**k))
    A(f"s_load_dwordx2 s[{sKA}:{sKA+1}], s[0:1], 8"); A(f"s_load_dwordx2 s[{sVB}:{sVB+1}], s[0:1], 16")
    A(f"s_load_dwordx2 s[{sQA}:{sQA+1}], s[0:1], 0"); A(f"s_load_dwordx2 s[{sO}:{sO+1}], s[0:1], 24")
    if cfg.stamps:
        A(f"s_load_dwordx2 s[{sDbg}:{sDbg+1}], s[0:1], 32")
        A(f"s_memtime s[{sStamp}:{sStamp+1}]"); A(f"s_memrealtime s[{sStamp+2}:{sStamp+3}]")
    if cfg.tl:
        A("s_mov_b64 s[90:91], 1"); A("s_memtime s[98:99]"); A("s_memrealtime s[100:101]")
    A("s_cmp_ge_u32 s2, 256"); A("s_cbranch_scc1 Lend")
    A("v_lshrrev_b32 v1, 6, v0"); A("v_and_b32 v0, 63, v0"); A("v_readfirstlane_b32 s3, v1")
    if cfg.pro:
        A("s_getpc_b64 s[62:63]"); A("Lpc:")
        A("v_min_u32 v2, 3, v0"); A("v_lshlrev_b32 v2, 7, v2")
        A("global_load_dword v61, v2, s[62:63] offset:64")
        A("s_lshr_b32 s4, s2, 3"); A(f"s_mul_i32 s4, s4, {128*CPF_LINES}"); A("s_add_u32 s4, s4, Lmain-Lpc")
        A(f"v_min_u32 v1, {CPF_LINES-1}, v0"); A("v_lshl_add_u32 v1, v1, 7, s4")
        A("global_load_dword v15, v1, s[62:63]")
    A(f"v_lshlrev_b32 v{vKVB}, 4, v0"); A(f"v_add_u32 v{vKVA}, 1056, v{vKVB}")
    if cfg.diag=='l2only': A("s_and_b32 s62, s2, 7"); A(f"s_mul_i32 s{sH}, s62, {2*HEADB}")
    else: A(f"s_mul_i32 s{sH}, s2, {2*HEADB}")
    A(f"s_mov_b32 s{sKA+2}, {TOTB+4096}"); A(f"s_mov_b32 s{sKA+3}, 0x20000"); A(f"s_mov_b64 s[{sVB+2}:{sVB+3}], s[{sKA+2}:{sKA+3}]")
    A(f"s_mul_i32 s{sW4}, s3, {WREG}"); A(f"s_lshl_b32 s{sKVw}, s3, 11")
    A(f"s_add_u32 s{sOff}, s{sH}, s{sKVw}")
    o.append(setm0(0))
    A("s_waitcnt lgkmcnt(0)")
    A(f"s_sub_u32 s{sKA}, s{sKA}, 1056"); A(f"s_subb_u32 s{sKA+1}, s{sKA+1}, 0")
    o+=[kvdma(0,0,0),kvdma(0,0,2)]
    A(f"s_sub_u32 s{sVB}, s{sVB}, 2080"); A(f"s_subb_u32 s{sVB+1}, s{sVB+1}, 0")
    if not cfg.su&1: o+=[kvdma(0,0,1),kvdma(0,0,3)]
    if cfg.cpf and not cfg.pro:
        A("s_getpc_b64 s[62:63]")
        if cfg.pads: A("Lpc:"); A("s_add_u32 s62, s62, Lmain-Lpc"); A("s_addc_u32 s63, s63, 0")
        A("s_lshr_b32 s4, s2, 3"); A(f"s_mul_i32 s4, s4, {128*CPF_LINES}")
        A(f"v_min_u32 v1, {CPF_LINES-1}, v0"); A("v_lshl_add_u32 v1, v1, 7, s4")
        A("global_load_dword v61, v1, s[62:63]")
    A("v_lshrrev_b32 v2, 4, v0"); A("v_lshlrev_b32 v4, 6, v2"); A(f"v_xor_b32 v{vQB}, v{vKVB}, v4"); A(f"v_add_u32 v{vQA}, 1056, v{vQB}")
    A(f"s_mul_i32 s{sQw}, s3, 24576"); A(f"s_add_u32 s{sTmp}, s{sH}, s{sQw}")
    A(f"s_sub_u32 s{sQB}, s{sQA}, 32"); A(f"s_subb_u32 s{sQB+1}, s{sQA+1}, 0")
    A(f"s_sub_u32 s{sQA}, s{sQA}, 1056"); A(f"s_subb_u32 s{sQA+1}, s{sQA+1}, 0")
    o.append(setm0(slotQ(0)))
    A(f"s_mov_b64 s[{sQA+2}:{sQA+3}], s[{sKA+2}:{sKA+3}]"); A(f"s_mov_b64 s[{sQB+2}:{sQB+3}], s[{sKA+2}:{sKA+3}]")
    o+=[qdma(0,0,j,sTmp) for j in range(4)]
    if cfg.su&1:
        o.append(setm0(1)); A(f"s_add_u32 s4, s{sOff}, 8192")
        o+=[kvdma(0,1,j,4) for j in (0,2)]
        o+=[setm0(0),I("s_nop 0"),kvdma(0,0,1),kvdma(0,0,3)]
    o.append(setm0(1)); A(f"s_add_u32 s{sOff}, s{sOff}, 8192")
    o+=[kvdma(0,1,j) for j in ((1,3) if cfg.su&1 else (0,2,1,3))]
    if cfg.pro: o+=[I("s_branch Lmain"), I(".p2align 12"), I("Lmain:")]
    A(f"s_mov_b32 s{sO+2}, {0 if cfg.diag else TOTB}"); A(f"s_mov_b32 s{sO+3}, 0x20000")
    A(f"s_add_u32 s{sHn}, s{sH}, {HEADB}")
    A(f"s_mov_b32 s{sC}, 0x3e0293ee"); A(f"s_mov_b32 s{sNC}, 0xbe0293ee"); A(f"s_mov_b32 s{sThr}, 0x4e800000")
    if cfg.pkf: A(f"s_mov_b32 s{sC2}, 0x3e0293ee"); A(f"s_mov_b32 s{sC2+1}, 0x3e0293ee")
    A(f"s_add_u32 s{sEnd}, s{sW4}, {NSLOT*SLOT}")
    A(f"s_mov_b32 s{sT}, 0")
    if cfg.profO or cfg.oddB: A("s_getreg_b32 s95, hwreg(HW_REG_XCC_ID)")
    A(f"s_mov_b64 s[{sBad}:{sBad+1}], 0"); A(f"s_mov_b64 s[{sBad2}:{sBad2+1}], 0")
    A(f"s_add_u32 s{sXe}, s{sW4}, {8*SLOT}"); A(f"s_add_u32 s4, s{sW4}, {SLOT}"); A(f"s_xor_b32 s{sXe}, s{sXe}, s4")
    A(f"s_add_u32 s4, s{sW4}, {2*SLOT}"); A(f"s_xor_b32 s{sXo}, s4, s{sW4}")
    A("v_and_b32 v3, 7, v0"); A(f"v_mul_u32_u24 v{vKl}, 2080, v3")
    A("v_bfe_u32 v3, v0, 3, 1"); A(f"v_lshl_add_u32 v{vKl}, v3, 8, v{vKl}")
    A(f"v_lshl_add_u32 v{vKl}, v2, 4, v{vKl}"); A(f"v_subrev_u32 v{vKl}, s{sW4}, v{vKl}")
    A("v_bfe_u32 v3, v0, 2, 3"); A(f"v_mul_u32_u24 v{vVl}, 2080, v3")
    A("v_lshrrev_b32 v3, 5, v0"); A(f"v_lshl_add_u32 v{vVl}, v3, 8, v{vVl}")
    A("v_and_b32 v4, 3, v0"); A(f"v_lshl_add_u32 v{vVl}, v4, 3, v{vVl}")
    A(f"v_add_u32 v{vVl}, 1024, v{vVl}"); A(f"v_subrev_u32 v{vVl}, s{sW4}, v{vVl}")
    A("v_mov_b32 v11, 0x3f803f80"); A("v_cmp_eq_u32 vcc, 0, v4")
    lane_consts(A,4)
    A("v_cndmask_b32 v11, 0, v11, vcc")
    for k in range(4): A(f"v_accvgpr_write_b32 a{ONES+k}, v11")
    for s in (1,2):
        o.append(setm0(slotQ(s))); A(f"s_add_u32 s{sTmp}, s{sTmp}, 4096")
        o+=[qdma(0,s,j,sTmp) for j in range(4)]
    return o

def slow_path():
    o=[]
    A=lambda t,**k: o.append(I(t,**k))
    sP=sCur
    A("Lslow:")
    A("s_waitcnt vmcnt(0) lgkmcnt(0)")
    A(f"s_mul_i32 s{sP}, s3, {SLOT}")
    A(f"s_add_u32 s{sTmp}, s{sP}, s{sW4}")
    o+=setrd(sTmp)
    A(f"v_lshrrev_b32 v0, 4, v{vKVB}"); A("v_lshrrev_b32 v2, 4, v0")
    lane_consts(A,sTmp)
    A(f"s_mov_b32 m0, s{sTmp}")
    A(f"s_add_u32 s{sOff}, s{sH}, s{sQw}")
    for s in range(6):
        o+=[qdma(0,s,j) for j in range(4)]
        A("s_waitcnt vmcnt(0)")
        for ks in range(4): A(f"ds_read_b128 {ar(Qr(s,ks))}, v{vQ+ks}")
        A(f"s_add_u32 s{sOff}, s{sOff}, 4096")
        A("s_waitcnt lgkmcnt(0)")
    for s in range(6): A(f"v_mov_b32 v{MN+s}, 0xff800000")
    def loadkv():
        for j in range(4):
            A(f"s_add_u32 m0, s{sP}, {j*WREG}"); A("s_nop 0")
            o.extend(kvdma(0,0,jj) for jj in range(4))
            A(f"s_add_u32 s{sOff}, s{sOff}, 2048")
        A("s_waitcnt vmcnt(0)")
    A(f"s_mov_b32 s{sOff}, s{sH}"); A(f"s_mov_b32 s{sT}, 0")
    A("Lslow1:")
    loadkv()
    o+=frag_reads(0,0,tags=False)[:8]
    A("s_waitcnt lgkmcnt(0)")
    for s in range(6):
        o+=qk_mfmas(s,0,0)
        A("s_nop 7")
        for e in range(0,8,2): A(f"v_max3_f32 v{MN+s}, v{MN+s}, v{SB[0]+e}, v{SB[0]+e+1}")
    A(f"s_add_u32 s{sT}, s{sT}, 1"); A(f"s_cmp_lt_u32 s{sT}, 12"); A("s_cbranch_scc1 Lslow1")
    for s in range(6):
        m=MN+s
        A(f"v_mov_b32 v{T1}, v{m}"); A("s_nop 1"); A(f"v_permlane16_swap_b32 v{m}, v{T1}"); A(f"v_max_f32 v{m}, v{m}, v{T1}")
        A(f"v_mov_b32 v{T1}, v{m}"); A("s_nop 1"); A(f"v_permlane32_swap_b32 v{m}, v{T1}"); A(f"v_max_f32 v{m}, v{m}, v{T1}")
        A(f"v_mul_f32 v{m}, s{sNC}, v{m}")
    for r in range(64,256): A(f"v_mov_b32 v{r}, 0")
    for r in range(224,248): A(f"v_accvgpr_write_b32 a{r}, 0")
    A(f"s_mov_b32 s{sOff}, s{sH}"); A(f"s_mov_b32 s{sT}, 0")
    A("Lslow2:")
    loadkv()
    fr=frag_reads(0,0,tags=False)
    for k in range(3):
        o+=fr[8*k:8*k+8]; A("s_waitcnt lgkmcnt(0)")
    for s in range(6):
        o+=qk_mfmas(s,0,0)
        A("s_nop 7")
        for gp in sm_gaps(s,0,0): o+=gp
        A("s_nop 1")
        o+=pv_mfmas(s,0,0,False)
    A(f"s_add_u32 s{sT}, s{sT}, 1"); A(f"s_cmp_lt_u32 s{sT}, 12"); A("s_cbranch_scc1 Lslow2")
    A("s_nop 7")
    A(f"s_add_u32 s{sSt}, s{sH}, s{sQw}")
    for s in range(6):
        o+=e_head(s,None,None,T1)
        for dt in range(8): o+=e_pk(s,dt,None,T1)
        for dt in range(8): o+=e_cvt(s,dt,None)
        for dt in range(8): o.append(e_wr(s,dt,0,None,None))
        o+=epi_rd(s,0,None)+[I("s_waitcnt lgkmcnt(0)")]+epi_st(s,"",sSt)
        A(f"s_add_u32 s{sSt}, s{sSt}, 4096")
    A("s_branch Lslow_ret")
    for x in o:
        for k in ('tag','slot','wslot','wtag'): x.meta.pop(k,None)
    return o

def resolve(trace):
    vm=[]; lg=[]
    for x in trace:
        if x.label or x.meta.get('skip'): continue
        if 'auto_vm' in x.meta:
            idx=[k for k,y in enumerate(vm) if y.meta.get('tag')==x.meta['auto_vm'] and x.meta.get('wpart') in (None,y.meta.get('part'))]
            n=min(63,len(vm)-1-max(idx)); x.text=x.text.replace("vmcnt(AUTO)",f"vmcnt({n})"); x.meta['loose_ok']=True
        if 'auto_lg' in x.meta:
            k=[i for i,y in enumerate(lg) if y is x.meta['auto_lg']]
            assert k, "WL target not issued before wait: "+x.meta['auto_lg'].text
            n=min(15,len(lg)-1-k[0]); x.text=x.text.replace("lgkmcnt(AUTO)",f"lgkmcnt({n})")
        if x.kind=='vmem': vm.append(x)
        if x.kind=='ds': lg.append(x)

def build():
    set_units()
    P=prologue(); SA=startA(); TR=trans(); TB=[tailK,tailB,tailQ][cfg.G]()
    txt=lambda L:[x.text for x in L if not x.text.startswith(';')]
    assert txt(loopA2(0))==txt(loopA2(1))
    tb=range(1,3) if cfg.profB0 else range(3)
    for t in tb: assert txt(loopB(t))==txt(loopB(tb[0]))
    if cfg.loopR:
        assert txt(rampA(0))==txt(rampA(1)); RAt=rampA(0)+rampA(1); RA=[I(".p2align 3"),I("LloopA1:")]+rampA(0)
    else: RA=RAt=rampA()
    PB_=peelB() if cfg.profB0 else []
    extra=[]
    if cfg.profO:
        RO=rampA(prof=cfg.profO)
        t2=prologue()+startA()+RO+midA()+loopA2(0); resolve(t2)
        for p in check_trace([x for x in t2 if not x.meta.get('skip')]): print("ODD:",p)
        RA=[I("s_bitcmp1_b32 s95, 0"), I("s_cbranch_scc1 LrampO")]+RA+[I("s_branch LrampJ"), I("LrampO:")]+RO+[I("LrampJ:")]
    if cfg.midprof:
        MA=staticA(); trace=P+SA+MA+TR+PB_
    else: trace=P+SA+RAt+midA()+loopA2(0)+loopA2(1)+TR+PB_
    if not cfg.profBs:
        for t in tb: trace+=loopB(t)
    trace+=TB
    resolve(trace)
    probs=check_trace([x for x in trace if not x.meta.get('skip')])
    sp=slow_path()
    probs+=check_trace(sp+slow_path())
    seen=set()
    for p in probs:
        if p not in seen: print(p); seen.add(p)
    nd=(lambda L:[x for x in L if not getattr(x,'dma',False)]) if cfg.diag=='nodma' else (lambda L:L)
    if cfg.pads and not cfg.pro: P=P+[I("s_branch Lmain"), I(".p2align 12"), I("Lmain:")]
    if cfg.midprof: S=list(P)+stamp(0)+SA+stamp(1)+nd(MA)
    else: S=list(P)+stamp(0)+SA+stamp(1)+nd(RA)+midA()+[I(".p2align 3"),I("LloopA2:")]+nd(loopA2(0))
    if cfg.oddB: PB_=[I("s_bitcmp1_b32 s95, 0"), I(f"s_cselect_b32 s{sT}, -1, 0"), I("s_cbranch_scc1 LloopB")]+PB_
    S+=stamp(2)+nd(TR)+stamp(3)+nd(PB_)+([I(".p2align 3"),I("LloopB:")]+nd(loopB(tb[0])) if not cfg.profBs else [])
    S+=stamp(4)+TB+stamp(5)
    if cfg.slow:
        S+=[I(f"s_or_b64 s[62:63], s[{sBad}:{sBad+1}], s[{sBad2}:{sBad2+1}]"), I("s_barrier"), I("s_cbranch_scc1 Lslow_entry")]
    S+=[I("Lfin:")]
    if cfg.stamps:
        S+=[I("s_waitcnt vmcnt(0)"), I(f"s_memtime s[{sStamp+16}:{sStamp+17}]"), I(f"s_memrealtime s[{sStamp+18}:{sStamp+19}]"), I("s_waitcnt lgkmcnt(0)")]
        if cfg.echo>=0:
            esrc=[sStamp+2]+[sStamp+4+2*k for k in range(6)]+[sStamp+18]
            S+=[I(f"s_add_u32 s62, s{esrc[cfg.echo]}, 10000"), I("Lspin:"), I("s_sleep 2"), I("s_memrealtime s[88:89]"), I("s_waitcnt lgkmcnt(0)"),
                I("s_sub_u32 s63, s88, s62"), I("s_cmp_lt_i32 s63, 0"), I("s_cbranch_scc1 Lspin")]
        S+=[I(f"v_mov_b32 v8, s{sStamp+2}"), I(f"v_mov_b32 v9, s{sStamp+18}")]
        srcs=[sStamp+4+2*k for k in range(6)]+[sStamp+(18 if cfg.rt else 16)]
        for k,r in enumerate(srcs):
            S+=[I(f"s_sub_u32 s{sTmp}, s{r}, s{sStamp+(2 if cfg.rt else 0)}"), I(f"v_mov_b32 v{10+k}, s{sTmp}")]
        S+=[I("v_mov_b32 v17, 0"), I("v_mov_b32 v18, 0"), I("s_getreg_b32 s62, hwreg(HW_REG_XCC_ID)"), I("v_mov_b32 v19, s62")]
        S+=[I(f"s_mov_b32 s28, s{sDbg}"), I(f"s_mov_b32 s29, s{sDbg+1}"), I(f"s_mov_b32 s30, {cfg.dbgsz}"), I("s_mov_b32 s31, 0x20000"),
            I("s_lshl_b32 s62, s2, 8"), I("s_lshl_b32 s63, s3, 6"), I("s_add_u32 s62, s62, s63"), I("v_mov_b32 v1, 0")]
        if cfg.tl:
            S+=TL()+[I("s_waitcnt lgkmcnt(0)")]+TL()+[I("s_lshl_b32 s61, s62, 3"), I("s_add_u32 s61, s61, 65536"), I(f"v_lshrrev_b32 v5, 2, v{vKVB}"),
                I("buffer_store_dword v0, v5, s[28:31], s61 offen"), I("buffer_store_dword v61, v5, s[28:31], s61 offen offset:256")]
        S+=[I("s_mov_b64 exec, 1"),
            I("buffer_store_dwordx4 v[8:11], v1, s[28:31], s62 offen"), I("buffer_store_dwordx4 v[12:15], v1, s[28:31], s62 offen offset:16"), I("buffer_store_dwordx4 v[16:19], v1, s[28:31], s62 offen offset:32")]
    S+=[I("Lend:"), I("s_endpgm")]
    if cfg.slow:
        S+=[I("Lslow_entry:"), I(f"s_cmp_lg_u64 s[{sBad}:{sBad+1}], 0"), I("s_cbranch_scc1 Lslow"),
            I("Lslow_ret:"), I(f"s_cmp_eq_u64 s[{sBad2}:{sBad2+1}], 0"), I("s_cbranch_scc1 Lfin"),
            I(f"s_mov_b64 s[{sBad2}:{sBad2+1}], 0"), I(f"s_mov_b32 s{sH}, s{sHn}")]
        S+=sp
    else: S+=[I(".fill 2048, 4, 0xbf810000")]
    return S, bool([p for p in probs if not p.startswith("NOTE")])

from gen import HDR, FTR
def isize(x):
    return SZ[x.text]
def write(fn):
    S,bad=build()
    if cfg.pads and SZ:
        out=[]; addr=None; k=1
        for n,x in enumerate(S):
            out.append(x)
            if x.text=="Lmain:": addr=0; continue
            if addr is None: continue
            if x.text==".p2align 3": addr=(addr+7)&~7; continue
            if x.label: continue
            a0=addr; addr+=SZ.get(x.text,4)
            if k<=NPADS and addr>=k*cfg.pads+cfg.padoff and (x.kind=='mfma' or addr>=k*cfg.pads+cfg.padoff+24) and not x.op.startswith('s_cbranch') and not x.op.startswith('s_branch') and x.text!='s_mov_b64 exec, 0':
                out+=[I(f"Lpad{k}:"), I(f"s_cbranch_execz Lret{k}")]; addr+=4; k+=1
        assert k==NPADS+1,(k,NPADS)
        S=out
    with open(fn,"w") as f:
        f.write(HDR%(LDSB,NAME,NAME,NAME))
        for x in S:
            t=x.text
            if cfg.drop=='exp' and t.startswith('v_exp'): t=t.replace('v_exp_f32','v_mov_b32')
            if cfg.drop=='exp0' and t.startswith('v_exp'): continue
            if cfg.drop=='fma' and t.startswith('v_fma'): continue
            if cfg.drop=='sum' and t.startswith(MF+' a['): continue
            f.write((t if (t.endswith(':') or t.startswith('.')) else "    "+t)+"\n")
        f.write(FTR%NAME)
    return bad
SZ={}
def sizes(co):
    import subprocess
    out=subprocess.run(["llvm-objdump","-d","--mcpu=gfx950",co],capture_output=True,text=True).stdout
    sym={m.group(2):int(m.group(1),16) for m in re.finditer(r"^([0-9a-f]+) <(\w+)>:",out,re.M)}
    last=int(re.findall(r"// ([0-9A-F]{12}):",out)[-1],16)
    st=sym.get('Lmain',sym[NAME])
    return sym.get('Lfin',sym.get('Lend'))-st, last+4-st
if __name__=="__main__":
    ap=argparse.ArgumentParser()
    ap.add_argument("out"); ap.add_argument("opts",nargs="*")
    a=ap.parse_args()
    for kv in a.opts:
        k,v=kv.split("=",1)
        cur=getattr(cfg,k)
        setattr(cfg,k, (v in("1","True","true")) if isinstance(cur,bool) else (int(v) if isinstance(cur,int) else v.replace("+"," ")))
    from mkco import build as mk
    for it in range(4):
        bad=write(a.out); co=mk(a.out); hot,tot=sizes(co)
        need=-(-hot//(32*128))
        done=(need==CPF_LINES)
        CPF_LINES=need
        if cfg.pads:
            import subprocess
            lst=subprocess.run(["llvm-objdump","-d","--mcpu=gfx950",co],capture_output=True,text=True).stdout
            lst=lst[lst.index("<Lmain>:"):]
            enc=[len(m.group(1).split())*4 for m in re.finditer(r"// [0-9A-F]{12}: ([0-9A-F ]+)",lst)]
            src=open(a.out).read(); src=src[src.index("Lmain:\n"):].split("\n")[1:]
            j=0; addr=0
            for ln in src:
                t=ln.strip()
                if t.startswith(".section"): break
                if t==".p2align 3":
                    if addr%8: j+=1; addr+=4
                    continue
                if not t or t.startswith(";") or t.endswith(":") or t.startswith("."): continue
                SZ[t]=enc[j]; addr+=enc[j]; j+=1
            np_=(hot-64-cfg.padoff)//cfg.pads
            if np_!=NPADS: done=False
            NPADS=np_
        if done and it>0: break
    assert 32*128*CPF_LINES+256<=tot, (hot,tot)
    print(co, "PROBLEMS" if bad else "clean", "hot",hot,"total",tot,"cpf lines",CPF_LINES)
```

```python
import sys, argparse, re, functools
sys.path.insert(0,'work')
from asmlib import I, check_trace
NAME="standalone__gqa_softmax__near_ridge_kernel"
SLOT=16640; WREG=4160; NSLOT=9
LDSB=NSLOT*SLOT
HEADB=98304
TOTB=50331648

class Cfg:
    ld="nt"; st="sc1"; st2="nt"
    stamps=False; rt=False; tl=False; dbgsz=0x400000; echo=-1; diag=''
    slow=True; cpf=True
    rho=3; rhoG=3; rhoE=8
    prof='47,47,44,40'
    loopR=False
    profB='00,00'
    profB0='40,20'
    profO=''
    oddB=False
    midprof=''
    profS=0
    G=1
    rho2=8; nd1=13
    tls=False
    profBs=''
    profT=0
    pro=0
    jit=0
    tsched=''
    echox=-1
    su=0
    bar11=0
    pads=0
    padoff=0
    st3=''; n3=3
    pkf=0
    drop=''
    dl=0
cfg=Cfg()

def O(s,dt): return 64+32*s+4*dt
SB=[16,24]; PB=[32,36]
MN=40
vK,vV,vKl,vVl=46,47,48,49
vD=[50,51]
vQ=52
vR=[56,63]
vKVA,vKVB,vQA,vQB=57,58,59,60
vW=[5,6,7,62]
T0,T1,T2,T3=1,2,3,4
DR=[8,12]
QREGS=[vQ+k for k in range(4)]
def Qr(s,ks): return 16*s+4*ks
def Kf(par,i): return 96+32*par+4*i
def Vf(par,dt): return 160+32*par+4*dt
def Lr(s): return 224+4*s
ONES=248
sKA,sVB,sQA,sQB,sO=8,12,16,20,24
sOff,sCur,sC,sH,sW4,sT,sPe,sEnd,sKVw,sQw,sThr=40,42,43,44,45,46,47,48,49,50,51
sBad=52; sBad2=96
sTmp,sSt,sNC,sHn,sDbg=55,57,58,59,60
sSd,sDi=41,54
sStamp=64
sPo,sXe,sXo=92,93,94
sC2=38

def vr(a,n=4): return f"v[{a}:{a+n-1}]"
def ar(a,n=4): return f"a[{a}:{a+n-1}]"
def sr(a,n=4): return f"s[{a}:{a+n-1}]"
def offs(o): return f" offset:{o}" if o else ""

def slotKV(h,b):
    if b<2: return b
    if h==0: return (6+b)%9
    return [8,0,1,2][(b-2)%4]
def slotQ(s): return 2+s
UOFF=[0,1024,2080,3104]
def dma(j,tag,slot,q,off=sOff):
    A,B,va,vb=(sQA,sQB,vQA,vQB) if q else (sKA,sVB,vKVA,vKVB)
    p=f" {cfg.ld}" if cfg.ld else ""
    return I(f"buffer_load_dwordx4 v{[va,va,vb,vb][j]}, {sr([A,B,A,B][j])}, s{off} offen{offs(UOFF[j])}{p} lds", tag=tag, slot=slot, part=(None if q else 'KV'[j&1]))
def kvdma(h,b,j,off=sOff): return dma(j,f"h{h}KV{b}",slotKV(h,b),False,off)
def qdma(h,s,j,off=sOff): return dma(j,f"h{h}Q{s}",slotQ(s),True,off)
def pdma(n,j):
    if n<18: return kvdma(0,n-6,j)
    if n<20: return kvdma(1,n-18,j)
    return qdma(1,n-20,j)
def setm0(slot): return I(f"s_add_u32 m0, s{sW4}, {slot*SLOT}") if slot else I(f"s_mov_b32 m0, s{sW4}")
def frag_reads(h,b,base=0,rk=vK,rv=vV,tags=True):
    m=dict(src=f"h{h}KV{b}",slot=slotKV(h,b)) if tags else {}
    par=b&1
    return [I(f"ds_read_b128 {ar(Kf(par,i))}, v{rk}{offs(base+(i//4)*512+(i%4)*64)}",part='K',**m) for i in range(8)]+\
           [I(f"ds_read_b64_tr_b16 {ar(Vf(par,i//2)+2*(i%2),2)}, v{rv}{offs(base+(i%2)*512+(i//2)*32)}",part='V',**m) for i in range(16)]
def qreads(h,s): return [I(f"ds_read_b128 {ar(Qr(s,ks))}, v{vQ+ks}{offs((s%4)*SLOT)}", src=f"h{h}Q{s}", slot=slotQ(s), private=True) for ks in range(4)]
def bias(regs,up): return [I(f"{'v_add_u32' if up else 'v_subrev_u32'} v{r}, {4*SLOT}, v{r}") for r in regs]
def setrd(reg,rk=vK,rv=vV): return [I(f"v_add_u32 v{rk}, s{reg}, v{vKl}"), I(f"v_add_u32 v{rv}, s{reg}, v{vVl}")]

FA=[(b,s) for s in range(6) for b in (0,1)]
LA=[(10,0),(10,1),(10,2),(11,0),(11,1),(10,3),(11,2),(10,4),(11,3),(10,5),(11,4),(11,5)]
FB=[(0,0),(0,1),(1,0),(0,2),(1,1),(0,3),(1,2),(0,4),(1,3),(0,5),(1,4),(1,5)]
MID=[(b,s) for b in range(2,10) for s in range(6)]
GB=[(b,s) for b in (8,9,10,11) for s in (0,1,2)]+[(8,3),(8,4),(8,5),(9,3),(9,4),(9,5),(10,3),(11,3),(10,4),(11,4),(10,5),(11,5)]
LB=[(10,0),(10,1),(10,2),(11,0),(11,1),(11,2),(10,3),(11,3),(10,4),(11,4),(10,5),(11,5)]
LQ=[(b,s) for s in range(6) for b in (10,11)]
UNITS=[]
def set_units():
    UNITS[:]=[(0,)+u for u in FA+MID+LA]+[(1,)+u for u in (FB+MID[:36]+GB if cfg.G==1 else FB+MID+(LB if cfg.G==0 else LQ))]
def unit(i): return UNITS[i] if 0<=i<len(UNITS) else None

MF="v_mfma_f32_16x16x32_bf16"
def qk_mfmas(s,kpar,sb,u=None):
    o=[]
    for i in range(8):
        kt,ks=divmod(i,4); d=SB[sb]+4*kt
        x=I(f"{MF} {vr(d)}, {ar(Kf(kpar,i))}, {ar(Qr(s,ks))}, {'0' if ks==0 else vr(d)}")
        if u:
            x.meta['expect']={**{r:f"h{u[0]}KV{u[1]}" for r in x.A}, **{r:f"h{u[0]}Q{u[2]}" for r in x.B}}
            x.meta['set']={r:f"S{u}" for r in x.wr}
        o.append(x)
    return o
def pv_mfmas(s,vpar,pb,first,u=None):
    o=[I(f"{MF} {vr(O(s,dt))}, {ar(Vf(vpar,dt))}, {vr(PB[pb])}, {'0' if first else vr(O(s,dt))}") for dt in range(8)]
    o.append(I(f"{MF} {ar(Lr(s))}, {ar(ONES)}, {vr(PB[pb])}, {'0' if first else ar(Lr(s))}"))
    if u:
        cnt=sum(1 for y in UNITS[:UNITS.index(u)] if y[0]==u[0] and y[2]==u[2])
        for k,x in enumerate(o):
            e={r:f"P{u}" for r in x.B}
            if k<8: e.update({r:f"h{u[0]}KV{u[1]}" for r in x.A})
            if not first: e.update({r:f"O{u[0]}n{cnt}" for r in x.wr})
            x.meta['expect']=e; x.meta['set']={r:f"O{u[0]}n{cnt+1}" for r in x.wr}
    return o
FREE=(5,11,16)
def sm_gaps(s,sb,pb,u=None):
    S=SB[sb]; P=PB[pb]
    T=(lambda **k:k) if u else (lambda **k:{})
    f=lambda e: I(f"v_fma_f32 v{S+e}, v{S+e}, s{sC}, v{MN+s}", **T(expect={('v',S+e):f"S{u}",('v',MN+s):f"M{u and u[0]}"}))
    x=lambda e: I(f"v_exp_f32 v{S+e}, v{S+e}", **T(expect={('v',S+e):f"S{u}"}))
    c=lambda e: I(f"v_cvt_pk_bf16_f32 v{P+e//2}, v{S+e}, v{S+e+1}", **T(expect={('v',S+e):f"S{u}",('v',S+e+1):f"S{u}"}, set={('v',P+e//2):f"P{u}"}))
    if cfg.pkf:
        mb=MN+(s&~1); sel="op_sel:[0,0,1] op_sel_hi:[1,0,1]" if s&1 else "op_sel_hi:[1,0,0]"
        pf=lambda e: I(f"v_pk_fma_f32 v[{S+e}:{S+e+1}], v[{S+e}:{S+e+1}], s[{sC2}:{sC2+1}], v[{mb}:{mb+1}] {sel}", **T(expect={('v',S+e):f"S{u}",('v',MN+s):f"M{u and u[0]}"}))
        if cfg.pkf==1: return [[pf(0)],[x(0)],[x(1)],[pf(2)],[x(2)],[],[x(3)],[pf(4)],[x(4)],[x(5)],[pf(6)],[],[x(6)],[x(7)],[c(0),c(2)],[c(4),c(6)],[]]
        return [[pf(0),pf(2),pf(4),pf(6)],[x(0)],[x(1)],[],[x(2)],[],[x(3)],[],[x(4)],[x(5)],[],[],[x(6)],[x(7)],[c(0),c(2)],[c(4),c(6)],[]]
    return [[f(0),f(1)],[x(0)],[x(1)],[f(2),f(3)],[x(2)],[],[x(3)],[f(4),f(5)],[x(4)],[x(5)],[f(6),f(7)],[],[x(6)],[x(7)],[c(0),c(2)],[c(4),c(6)],[]]
def max_seq(s,sb,h):
    S=SB[sb]
    return [I(f"v_max3_f32 v{T0}, v{S}, v{S+1}, v{S+2}"), I(f"v_max3_f32 v{T3}, v{S+3}, v{S+4}, v{S+5}"),
            I(f"v_max3_f32 v{T0}, v{T0}, v{S+6}, v{S+7}"), I(f"v_max_f32 v{T0}, v{T0}, v{T3}"),
            I(f"v_mov_b32 v{T3}, v{T0}"), I(f"v_permlane16_swap_b32 v{T0}, v{T3}"),
            I(f"v_max_f32 v{T0}, v{T0}, v{T3}"), I(f"v_mov_b32 v{T3}, v{T0}"),
            I(f"v_permlane32_swap_b32 v{T0}, v{T3}"), I(f"v_max_f32 v{T0}, v{T0}, v{T3}"),
            I(f"v_mul_f32 v{MN+s}, s{sNC}, v{T0}", set={('v',MN+s):f"M{h}"})]
MAXG=[11,11,12,12,12,13,14,14,15,16,16]
def put(ex,g,items): ex.setdefault(g,[]).extend(items)

def step(i, ex=None, post=None, clump=0, sumfirst=False):
    ex=ex or {}; post=post or {}
    q,m,p=unit(i+1),unit(i),unit(i-1)
    mf=(qk_mfmas(q[2],q[1]&1,(i+1)&1,q) if q else [None]*8)+(pv_mfmas(p[2],p[1]&1,(i-1)&1,p[1]==0,p) if p else [None]*9)
    if sumfirst: mf=mf[:8]+[mf[16]]+mf[8:16]
    g=sm_gaps(m[2],i&1,i&1,m) if m else [[] for _ in range(17)]
    for src,dst in [(2,1),(9,8),(13,12),(15,14),(4,3),(7,6),(1,0)][:clump]:
        g[dst]=g[dst]+g[src]; g[src]=[]
    tailmax=[]
    if q and q[1]==0:
        ms=max_seq(q[2],(i+1)&1,q[0])
        if p and m:
            for gg,x in zip(MAXG,ms): g[gg]=g[gg]+[x]
        else:
            for x in ms:
                if x.op.startswith('v_permlane'): tailmax.append(I("s_nop 1"))
                tailmax.append(x)
    out=[I(f"; ---- step {i}: QK{q} softmax{m} PV{p}")]
    if cfg.tls and i<=30:
        w=I("s_waitcnt lgkmcnt(0)"); w.meta['skip']=True
        out+=[w]+TL()
    out+=ex.get(-1,[])
    for k in range(17):
        if mf[k] is not None: out.append(mf[k])
        out+=ex.get(k,[])+g[k]+post.get(k,[])
    return out+tailmax+ex.get(17,[])

def free_gaps(ex,lo,n,avoid=()):
    return [x for x in range(lo,17) if x not in FREE and x not in ex and x not in avoid][:n]
def spread(ex,lo,items,avoid=()):
    gs=free_gaps(ex,lo,len(items),avoid)
    while len(gs)<len(items): gs.append(gs[-1])
    for x,i in zip(gs,items): put(ex,x,[i])
def TL():
    if not cfg.tl: return []
    r=[I("s_mov_b64 exec, s[90:91]"), I("v_mov_b32 v0, s98"), I("v_mov_b32 v61, s100"), I("s_mov_b64 exec, -1"), I("s_lshl_b64 s[90:91], s[90:91], 1"), I("s_memtime s[98:99]"), I("s_memrealtime s[100:101]")]
    for x in r: x.meta['skip']=True
    return r
JN=[0]
def BAR():
    r=[I("s_barrier")]+([] if cfg.tls else TL())
    if cfg.jit:
        x=I("JITTER_PLACEHOLDER:"); x.meta['jit']=True; r.append(x)
    return r
def WV(tag,lg0=False,part=None): return I("s_waitcnt vmcnt(AUTO)"+(" lgkmcnt(0)" if lg0 else ""), auto_vm=tag, need=tag, wpart=part)
def WL(x): return I("s_waitcnt lgkmcnt(AUTO)", auto_lg=x)

def kind(x):
    if x.op.startswith('ds_read'): return 'r'
    if x.op.startswith('ds_write'): return 'w'
    if getattr(x,'dma',False): return 'd'
    if getattr(x,'store',False): return 's'
    return 'a'
def gapcost(ks,free):
    if not ks: return 0
    U={'r':4,'d':6,'w':12,'s':12,'a':4}
    c=sum(U[k] for k in ks)
    if ks[0]=='a': c-=4
    if len(ks)==1 and ks[0]=='d': c=4 if not free else 8
    for p,q in zip(ks,ks[1:]):
        if p=='w' and q=='r': c+=12
    st=12*ks.count('s')
    if free: return st+max(0,c-st-8)
    return c+4*max(0,len([k for k in ks if k!='a'])-1)
def place(ex,groups,lo=0,hi=16,free=FREE):
    groups=[g if isinstance(g,list) else [g] for g in groups]
    n=len(groups)
    if not n: return
    base={g:[kind(x) for x in ex.get(g,[]) if not x.label and not x.meta.get('skip')] for g in range(17)}
    @functools.lru_cache(None)
    def f(g,i):
        if i==n: return (0,())
        if g>hi: return (1e9,())
        best=(1e9,())
        for m in range(0,min(4,n-i)+1):
            ks=base[g]+[kind(x) for gr in groups[i:i+m] for x in gr]
            c=gapcost(ks,g in free)-gapcost(base[g],g in free)
            c+=0.01*sum(abs(g-(lo+(hi-lo)*(j+0.5)/n)) for j in range(i,i+m))
            r=f(g+1,i+m)
            if c+r[0]<best[0]: best=(c+r[0],(g,)*m+r[1])
        return best
    c,gs=f(lo,0)
    assert len(gs)==n
    for g,gr in zip(gs,groups): put(ex,g,gr)

def put_reads(ex,post,reads,r,late):
    rs=reads[4*r:4*r+4]
    nw=max(0,late-4); late=min(late,4)
    if late:
        gs=[6,8,12,13] if r<5 else [2,6,8,9]
        for k in range(late): put(post,gs[k],[rs[k]]+([I("s_waitcnt lgkmcnt(0)")] if k in [3,1,2,0][:nw] else []))
        if rs[late:]: put(ex,16 if r<5 else 11,rs[late:])
    else:
        rg=(5,16) if r<5 else (5,11)
        put(ex,rg[0],rs[:2]); put(ex,rg[1],rs[2:])
def loop_end(ex,lab,n):
    put(ex,13,[I(f"s_add_u32 s{sT}, s{sT}, 1")]); put(ex,15,[I(f"s_cmp_lt_u32 s{sT}, {n}")]); put(ex,16,[I(f"s_cbranch_scc1 {lab}")])

def blockA(b,pairs,pf,nv=None,lab=None,n=0):
    late,clump=int(pf[0]),int(pf[1])
    reads=frag_reads(0,b+1); tag=f"h0KV{b+1}"
    out=[]
    inc=4096 if pairs[0]>=20 else 8192
    if len(pairs)==2: dpos={0:[(0,0,11)],1:[(0,1,3),(0,2,11)],2:[(0,3,11)],3:[(1,0,11)],4:[(1,1,3),(1,2,11)],5:[(1,3,14)]}; advr=(0,3)
    else: dpos={0:[(0,0,11)],2:[(0,1,11)],3:[(0,2,11)],4:[(0,3,11)]}; advr=(0,)
    for r in range(6):
        ex={}; post={}
        if r==0:
            put(ex,0,[I(f"s_waitcnt vmcnt({nv}) lgkmcnt(0)", need=tag, loose_ok=True) if nv is not None else WV(tag,True)])
            put(ex,1,BAR()); put(post,4,setrd(sCur))
        put_reads(ex,post,reads,r,late)
        for (p,j,g) in dpos.get(r,[]): put(ex,g,[pdma(pairs[p],j)])
        if r in advr: spread(ex,2,[I(f"s_add_u32 m0, m0, {SLOT}"), I(f"s_cmp_ge_u32 m0, s{sEnd}"), I(f"s_cselect_b32 m0, s{sW4}, m0"), I(f"s_add_u32 s{sOff}, s{sOff}, {inc}")])
        if r==3: put(ex,15,[I(f"s_waitcnt lgkmcnt({4+late if late else 6})")])
        if r==5:
            spread(ex,0,[I(f"s_add_u32 s{sCur}, s{sCur}, {SLOT}"), I(f"s_cmp_ge_u32 s{sCur}, s{sEnd}"), I(f"s_cselect_b32 s{sCur}, s{sW4}, s{sCur}")])
            if lab: loop_end(ex,lab,n)
        out+=step(6*b+1+r,ex,post,clump)
    return out
def rampA(t=None,prof=None):
    pf=(prof or cfg.prof).split(',')
    if t is not None:
        n=12+4*t
        return blockA(2*t+2,[n,n+1],pf[0],nv=8)+blockA(2*t+3,[n+2,n+3],pf[1],nv=12,lab="LloopA1",n=2)
    o=[]
    for k,b in enumerate(range(2,6)): o+=blockA(b,[12+2*k,13+2*k],pf[k])
    return o
def staticA():
    out=[I("; ==== head A key blocks 2..9")]
    seq=[(n,j) for n in range(12,24) for j in range(4)]
    pos={4:[(0,11),(2,11),(3,11),(4,11)], 5:[(0,11),(1,11),(2,11),(3,11),(4,11)], 6:[(0,11),(1,11),(2,11),(3,11),(4,11),(5,14)],
         7:[(0,11),(1,11),(2,3),(2,11),(3,11),(4,11),(5,14)], 8:[(0,11),(1,3),(1,11),(2,11),(3,11),(4,3),(4,11),(5,14)]}
    pf=cfg.midprof.split(',')
    assert sum(int(p[2]) for p in pf)==48
    for b,p in zip(range(2,10),pf):
        late,clump,nd=int(p[0]),int(p[1]),int(p[2])
        sl=slotKV(0,b+1); base=(sl%4)*SLOT
        reads=frag_reads(0,b+1,base=base); tag=f"h0KV{b+1}"
        for r in range(6):
            ex={}; post={}
            lb=2 if (b==2 and cfg.su&4) else 0
            if r==0 and lb: put(ex,7,[I("s_waitcnt lgkmcnt(0)")])
            if r==lb:
                put(ex,0,[WV(tag,True)]); put(ex,1,BAR())
                if sl%4==0:
                    put(ex,2,[I(f"s_add_u32 s{sCur}, s{sW4}, {sl*SLOT}")]); put(post,4,setrd(sCur))
            if lb:
                if r>=2:
                    rr=reads[6*(r-2):6*(r-2)+6]
                    gs=[6,8,12,13] if r<5 else [2,6,8,9]
                    put(ex,5,rr[:2])
                    for k in range(4): put(post,gs[k] if r<5 else [6,8,9,10][k],[rr[2+k]]+([I("s_waitcnt lgkmcnt(0)")] if k in [3,1,2,0][:max(0,late-4)] else []))
            else: put_reads(ex,post,reads,r,late)
            for (rr,g) in pos[nd]:
                if rr==r:
                    n,j=seq.pop(0)
                    if j==0:
                        pre=[setm0(n%9), I(f"s_add_u32 s{sOff}, s{sOff}, {4096 if n>20 else 8192}") if n!=20 else I(f"s_add_u32 s{sOff}, s{sHn}, s{sQw}")]
                        gs=[x for x in range(g-1,-1,-1) if x not in ex and x not in FREE][:2]
                        while len(gs)<2: gs.append(g)
                        put(ex,gs[1],[pre[0]]); put(ex,gs[0],[pre[1]])
                    put(ex,g,[pdma(n,j)])
            if r==3: put(ex,15,[WL(reads[7])])
            if b==9 and r==5: put(ex,12,[I(f"s_add_u32 s{sCur}, s{sW4}, {8*SLOT}")])
            out+=step(6*b+1+r,ex,post,clump)
    assert not seq
    return out
def midA(): return [I(f"s_add_u32 s{sOff}, s{sHn}, s{sQw}"), I(f"s_sub_u32 s{sOff}, s{sOff}, 4096"), I(f"s_mov_b32 s{sT}, 0")]
def loopA2(t): return blockA(2*t+6,[20+2*t],'00',nv=24)+blockA(2*t+7,[21+2*t],'00',nv=24,lab="LloopA2",n=2)

def ostore(reg,j,pol,so,tag=None):
    x=I(f"buffer_store_dwordx4 {vr(reg)}, v{vKVB}, {sr(sO)}, s{so} offen{offs(1024*j)}"+(f" {pol}" if pol else ""))
    if tag: x.meta['expect']={r:tag for r in x.data}
    return x
DIRECT=2
def dunit(k): return (DIRECT+k//4, k%4)
def blockB(b,pf,lab=None,n=0):
    late,clump=int(pf[0]),int(pf[1])
    t=(b-2)//2
    reads=frag_reads(1,b+1); tag=f"h1KV{b+1}"
    out=[]; lead=(b%2==0)
    rp,wp=(sPo,sPe) if lead else (sPe,sPo)
    rx=sXo if lead else sXe
    nb=cfg.dl//2; loc0=(0 if lead else nb)
    dr=[]; sts=[]
    for k in range(nb):
        sub,j=dunit(cfg.dl*t+loc0+k); jj=loc0+k
        dr.append(I(f"ds_read_b128 {vr(DR[jj&1])}, v{vD[jj&1]}{offs(1024*jj)}", src=f"O{sub}", slot=slotQ(sub), private=True))
        sts.append(ostore(DR[jj&1],jj,cfg.st,sSd,f"O{sub}"))
    for r in range(6):
        ex={}; post={}
        if r==0:
            put(ex,0,[I(f"s_waitcnt vmcnt({8+nb}) lgkmcnt(0)", need=tag, loose_ok=True)])
            put(ex,1,BAR())
            put(ex,2,[I(f"s_mov_b32 m0, s{wp}")]); put(ex,3,[I(f"s_xor_b32 s{rp}, s{rp}, s{rx}")])
            put(ex,4,[I(f"s_add_u32 s{sOff}, s{sOff}, 8192")]); put(post,4,setrd(rp))
        put_reads(ex,post,reads,r,late)
        if r<4: put(ex,11,[kvdma(1,b+4,r)])
        if r==3: put(ex,15,[I(f"s_waitcnt lgkmcnt({4+late if late else 6})")])
        if r==4 and nb: put(ex,11,dr)
        if r==5 and nb:
            put(ex,1,[I("s_waitcnt lgkmcnt(2)")]); put(ex,3,[sts[0]])
            if nb==2: put(ex,10,[sts[1]])
        if r==5 and not lead:
            if nb:
                put(ex,12,[I(f"s_add_u32 s{sSd}, s{sSd}, {1024*cfg.dl}")])
                inc=f"{SLOT}" if cfg.dl==4 else f"s{sDi}"
                put(post,16 if not lab else 7,[I(f"v_add_u32 v{vD[k]}, {inc}, v{vD[k]}") for k in range(2)])
                if cfg.dl==2: put(ex,0,[I(f"s_xor_b32 s{sDi}, s{sDi}, {2048^(SLOT-2048)}")])
            if lab: loop_end(ex,lab,n)
        out+=step(72+6*b+1+r,ex,post,clump)
    return out
def loopB(t):
    pf=cfg.profB.split(',')
    return blockB(2*t+2,pf[0])+blockB(2*t+3,pf[1],lab="LloopB",n=(2 if cfg.profB0 else 3))
def peelB():
    if cfg.profBs:
        o=[]
        for b,p in zip(range(2,8),cfg.profBs.split(',')): o+=blockB(b,p)
        return o
    pf=cfg.profB0.split(',')
    return blockB(2,pf[0])+blockB(3,pf[1])

def tagexp(o,tag):
    if tag:
        h=0 if tag[0]=='O' else 1
        for x in o:
            x.meta['expect']={r:f"O{h}n12" for r in x.rd if (r[0]=='v' and r[1]>=64) or (r[0]=='a' and 224<=r[1]<248)}
    return o
def e_head(s,bad,tag,rc):
    o=[I(f"v_accvgpr_read_b32 v{T2}, a{Lr(s)}"), I(f"v_rcp_f32 v{rc}, v{T2}")]
    o.append(I(f"v_cmp_nge_f32 vcc, s{sThr}, v{T2}") if bad is not None else I("s_nop 0"))
    if bad is not None: o.append(I(f"s_or_b64 s[{bad}:{bad+1}], s[{bad}:{bad+1}], vcc"))
    return tagexp(o,tag)
def e_pk(s,dt,tag,rc):
    a=O(s,dt)
    return tagexp([I(f"v_pk_mul_f32 {vr(a+k,2)}, {vr(a+k,2)}, v[{rc}:{rc+1}] op_sel_hi:[1,0]") for k in (0,2)],tag)
def e_cvt(s,dt,tag):
    a=O(s,dt)
    return tagexp([I(f"v_cvt_pk_bf16_f32 v{a}, v{a}, v{a+1}"), I(f"v_cvt_pk_bf16_f32 v{a+1}, v{a+2}, v{a+3}")],tag)
def e_wr(s,dt,off,slot,tag,regs=vW):
    return tagexp([I(f"ds_write_b64 v{regs[dt&3]}, {vr(O(s,dt),2)}{offs(off+(dt>>2)*128)}", wslot=slot, wtag=tag)],tag)[0]
def epi_rd(s,off,slot,tag=None,regs=vR):
    m=dict(src=tag,slot=slot,private=True) if tag else {}
    return [I(f"ds_read_b128 {vr(O(s,2*j))}, v{regs[j&1]}{offs(off+1024*j)}", **m) for j in range(4)]
def epi_st(s,pol,so,tag=None): return [ostore(O(s,2*j),j,pol,so,tag) for j in range(4)]

class Epi:
    def __init__(s,rc2,so): s.rc2=rc2; s.so=so; s.tiles=[]; s.cv=[]; s.wr=[]; s.rd=[]; s.st=[]; s.info={}
    def add(s,sub,avail,off,slot,bad,tag,direct,pol,pre=()):
        s.info[sub]=dict(off=off,slot=slot,bad=bad,tag=tag,direct=direct,pol=pol,pre=list(pre))
        s.tiles+=[(avail,sub,dt) for dt in range(8)]
    def _rd(s,g):
        rd=s.rd; s.rd=[]
        for sub in rd:
            I_=s.info[sub]; r=epi_rd(sub,I_['off'],I_['slot'],I_['tag']); g+=[[x] for x in r]
            st=epi_st(sub,I_['pol'],s.so,I_['tag'])
            s.st+=[[WL(r[1]),st[0]],[st[1]],[WL(r[3]),st[2]],[st[3],I(f"s_add_u32 s{s.so}, s{s.so}, 4096")]]
    def mem(s,nst,fast=False):
        g=[]
        for _ in range(nst):
            if s.st: g.append(s.st.pop(0))
        s._rd(g)
        for sub,dt in s.wr:
            I_=s.info[sub]
            g.append(([I_['pre'][dt]] if (I_['pre'] and dt<4) else [])+[e_wr(sub,dt,I_['off'],I_['slot'],I_['tag'])])
            if dt==7 and I_['direct']: s.rd.append(sub)
        s.wr=[]
        if fast: s._rd(g)
        return g
    def chunk(s,i,n,full=False):
        take=[]
        while s.tiles and len(take)<n and s.tiles[0][0]<=i: take.append(s.tiles.pop(0)[1:])
        o=[]
        for sub,dt in s.cv: o+=e_cvt(sub,dt,s.info[sub]['tag']); s.wr.append((sub,dt))
        s.cv=[]
        heads=[]
        for sub,dt in take:
            I_=s.info[sub]; rc=T1 if sub%2==0 else s.rc2
            if dt==0: heads+=e_head(sub,I_['bad'],I_['tag'],rc)
        o=heads+o
        for sub,dt in take:
            o+=e_pk(sub,dt,s.info[sub]['tag'],T1 if sub%2==0 else s.rc2)
        k=max(1,len(take)-2) if (s.tiles and s.tiles[0][0]<=i+1 and not full) else len(take)
        for sub,dt in take[:k]: o+=e_cvt(sub,dt,s.info[sub]['tag']); s.wr.append((sub,dt))
        s.cv=take[k:]
        return o
    def done(s): return not(s.tiles or s.cv or s.wr or s.rd or s.st)

NPADS=0
PADAT={}
def SITE(k): return min(9,(k-1)*10//max(NPADS,1)-1+0)
def startA():
    o=[I("; ==== head A, first two key blocks (q-major, as Q arrives)")]
    f0=frag_reads(0,0); f1=frag_reads(0,1,base=SLOT); f2=frag_reads(0,2)
    o+=setrd(sW4)
    o.append(WV("h0Q0")); o+=BAR()
    o+=qreads(0,0)+f0[:8]
    seq=[('q',s,j) for s in (3,4,5) for j in range(4)]+[('k',b,j) for b in (2,3,4,5) for j in (0,2,1,3)]
    def dm():
        k,x,j=seq.pop(0); it=[]
        if j==0:
            it+=[setm0(slotQ(x) if k=='q' else slotKV(0,x)), I(f"s_add_u32 s{sTmp}, s{sTmp}, 4096") if k=='q' else I(f"s_add_u32 s{sOff}, s{sOff}, 8192")]
        return it+[qdma(0,x,j,sTmp) if k=='q' else kvdma(0,x,j)]
    for i in range(-1,13):
        ex={}; post={}
        if i==-1:
            put(ex,-1,[WL(f0[0])])
            if cfg.su&1:
                for k in range(7): put(ex,k,[WL(f0[k+1])])
                put(ex,7,dm()+dm()+[WV("h0KV1",part='K')]+BAR()+f1[:8])
            else:
                for k in range(8): put(ex,k,f0[8+2*k:10+2*k]+([WL(f0[k+1])] if k<7 else []))
                put(ex,7,dm()+dm()+[WV("h0KV1")]+BAR()+f1[:8])
            put(ex,17,[WL(f1[7])])
        else:
            if i==0 and cfg.su&1:
                put(ex,9,[WV("h0KV1")]+BAR()+f0[8:])
            if i==1 and cfg.su&1:
                for k in range(8): put(ex,k,f1[8+2*k:10+2*k])
            if i==2 and cfg.su&1: put(ex,7,[WL(f1[23])])
            if i==0 and not cfg.su&1:
                for k in range(8): put(ex,k,f1[8+2*k:10+2*k])
            if i==3: put(ex,0,[I("s_waitcnt lgkmcnt(0)")]); put(ex,1,BAR())
            if i%2==0 and i<=8:
                s=i//2+1; qs=qreads(0,s)
                put(ex,2 if i else 8,dm()); put(ex,5 if i else 8,dm())
                if s==4: put(post,9,bias(QREGS,True))
                put(ex,10,[WV(f"h0Q{s}")]); put(ex,11,qs[:2]); put(ex,12,[qs[2]]); put(ex,13,[qs[3]])
                if s==5: put(post,16,bias(QREGS,False))
                put(ex,17,[WL(qs[3])])
            elif i==10:
                put(ex,0,[WV("h0KV2",True,part=('K' if cfg.su&2 else None))]); put(ex,1,BAR())
                put(ex,2,[I(f"s_add_u32 s{sCur}, s{sW4}, {8*SLOT}")]); put(post,3,setrd(sCur))
                place(ex,f2[:8],lo=4,hi=12)
                put(ex,14,dm()); put(ex,16,dm())
                put(ex,17,[WL(f2[7])])
            elif i==12:
                place(ex,f2[8:],lo=0,hi=13)
                put(ex,14,dm()); put(ex,16,dm())
                put(ex,15,[I(f"s_mov_b32 s{sCur}, s{sW4}")])
            else:
                put(ex,5,dm()); put(ex,10,dm())
                if i==11 and cfg.su&2: put(ex,15,[WV("h0KV2")]); put(ex,16,BAR())
        ks=[k for k in range(1,NPADS+1) if SITE(k)==i]
        for k in ks:
            site=[I("s_mov_b64 exec, 0"), I(f"s_branch Lpad{k}"), I(f"Lret{k}:"), I("s_mov_b64 exec, -1")]
            if i%2==0 and 0<=i<=8: ex[10]=site+ex[10]
            else: put(ex,17,site)
        o+=step(i,ex,post,cfg.profS if (i>=6 and i%2==0) or i>9 else 0)
    assert not seq
    return o

def trans():
    o=[I("; ==== head A last two key blocks + head B first two, epilogue of head A streamed")]
    f11=frag_reads(0,11); g0=frag_reads(1,0); g1=frag_reads(1,1,base=SLOT); g2=frag_reads(1,2)
    E=Epi(14,sSd)
    idxA={u:k for k,u in enumerate(LA)}
    for s in range(6):
        E.add(s,60+idxA[(11,s)]+2,(s%4)*SLOT,slotQ(s),sBad,f"O{s}",s<DIRECT,cfg.st,pre=(bias(vW,True) if s==4 else ()))
    Q=lambda s:qreads(1,s)
    q5=Q(5)
    R={61:f11[:8], 62:f11[8:16], 63:f11[16:24], 64:Q(0), 65:Q(1), 67:Q(2), 68:Q(3), 69:g0[:4], 70:g0[4:8], 71:g0[8:16], 72:g1[:8], 73:g0[16:24],
       74:g1[8:18], 75:g1[18:24], 76:Q(4), 78:q5, 81:g2[:4], 82:g2[4:8], 83:g2[8:16], 84:g2[16:24]}
    D={}
    for (k,x),steps in zip([('q',4),('q',5),('k',2),('k',3),('k',4),('k',5)],
                           [[61,62,63,64],[65,66,66,67],[69,70,71,72],[76,77,77,78],[79,79,80,80],[81,82,83,84]]):
        for j,i in enumerate(steps): D.setdefault(i,[]).append((k,x,j))
    for i in range(61,85):
        ex={}; post={}
        rs=R.get(i,[]); lo=0; hi=16
        mx=(unit(i+1)[1]==0)
        if i==61:
            put(ex,0,[WV("h0KV11",True)]); put(ex,1,BAR()); put(post,2,setrd(sCur)); lo=3; hi=12
            put(ex,17,[WL(f11[7])])
            put(ex,2,[I(f"s_add_u32 s{sSd}, s{sH}, s{sQw}")])
        if i==64: put(ex,0,[WV("h1Q3")]); put(ex,7,[WL(f11[23])]); lo=1
        if i==69:
            put(ex,0,[WV("h1KV1",True)]); put(ex,1,BAR()); put(post,2,setrd(sW4)); lo=3
            put(ex,2,[I(f"s_add_u32 s{sOff}, s{sHn}, s{sKVw}")]); put(ex,3,[I(f"s_add_u32 s{sOff}, s{sOff}, 8192")])
        if i==70: hi=12; put(ex,17,[WL(g0[7])])
        if i==72: hi=12; put(ex,17,[WL(g1[7])])
        if i==73: hi=5; put(ex,7,[WL(g0[17])]); put(ex,11,[WL(g0[23])])
        if i==75: hi=6; put(ex,7,[WL(g1[17])]); put(ex,12,[WL(g1[23])]); put(post,9,bias(QREGS,True))
        if i==76: put(ex,0,[WV("h1Q4",True)]); put(ex,1,BAR()); lo=2
        if i==77: put(ex,15,[WL(R[76][3])])
        if i==78: put(ex,0,[WV("h1Q5")]); lo=1
        if i==79: put(ex,15,[WL(q5[3])])
        if i==81:
            put(ex,0,[WV("h1KV2",True)]); put(ex,1,BAR())
            put(ex,2,[I(f"s_add_u32 s{sPe}, s{sW4}, {8*SLOT}")]); put(post,2,setrd(sPe)); lo=4
            put(ex,3,[I(f"s_add_u32 s{sPo}, s{sW4}, {2*SLOT}")])
        if i==82: hi=12; put(ex,17,[WL(g2[7])])
        if i==84: hi=12
        mem=E.mem(2)
        if cfg.tsched:
            sd=dict((int(a),int(b)) for a,b in (x.split(':') for x in cfg.tsched.split(',')))
            ch=E.chunk(i,sd.get(i,0),full=(i+1 not in sd))
        else: ch=E.chunk(i,cfg.rho)
        free=[g for g in FREE if not(g==16 and (ch or mx)) and not (g==11 and mx)]
        place(ex,rs,lo=lo,hi=hi,free=free)
        dg=[]
        for (k,x,j) in D.get(i,[]):
            pre=[setm0(slotQ(x) if k=='q' else slotKV(1,x)), I(f"s_add_u32 s{sOff}, s{sOff}, {4096 if k=='q' else 8192}")] if j==0 else []
            dg.append(pre+[qdma(1,x,j) if k=='q' else kvdma(1,x,j)])
        place(ex,dg,lo=max(lo,4),hi=16,free=free)
        qlast=max([g for g,v in ex.items() if any(x.meta.get('src','').startswith('h1Q') for x in v)]+[-1])
        need_after=any(kind(gr[-1])=='w' and any(x.meta.get('slot')==gr[-1].meta['wslot'] for x in rs) for gr in mem)
        place(ex,mem,lo=(qlast+1 if need_after else (2 if i in (69,76,81) else 0)),hi=15,free=free)
        put(post,16,ch)
        if i==83:
            put(post,16,bias(vW,False)+[I(f"v_add_u32 v{vD[k]}, {DIRECT*SLOT}, v{vR[k]}") for k in range(2)])
        if i==84:
            spread(ex,0,[I(f"s_mov_b32 s{sT}, 0"), I(f"s_movk_i32 s{sDi}, {SLOT-2048}"), I(f"s_add_u32 s{sSt}, s{sHn}, s{sQw}")])
            put(ex,17,[WV("h1KV3")])
        o+=step(i,ex,post)
    assert E.done()
    return o

def tailB():
    o=[I("; ==== head B last four key blocks: q sub-tiles 0-2 first, then 3-5; epilogue streamed")]
    base=120
    vK2,vV2=vQ,vQ+1
    def fr(b): return frag_reads(1,b,base=slotKV(1,b)*SLOT) if b!=10 else frag_reads(1,b,rk=vK2,rv=vV2)
    F=[fr(b) for b in [9,10,11,8,9,10,11]]
    R={}
    def addR(i,L): R.setdefault(i,[]).extend(L)
    for m in range(7):
        K,V=F[m][:8],F[m][8:]
        if m==0: addR(base+1,K)
        elif m<6: addR(base+3*m-1,K[:3]); addR(base+3*m,K[3:6]); addR(base+3*m+1,K[6:])
        else: addR(base+17,K)
        if m<6:
            addR(base+3*m+1,V[:(0 if m==0 else 5)]); addR(base+3*m+2,V[(0 if m==0 else 5):(8 if m==0 else 10)]); addR(base+3*m+3,V[(8 if m==0 else 10):(16 if m in (0,5) else 15)])
            if m not in (0,5): R.setdefault(base+3*m+4,[]).insert(0,V[15])
        else: addR(base+19,V[:12]); addR(base+20,V[12:])
    E=Epi(vQ+2,sSt)
    idx={u:k for k,u in enumerate(GB)}
    for s_ in range(5):
        sl=3+(s_%2)
        E.add(s_,base+idx[(11,s_)]+2,(sl-2)*SLOT,sl,sBad2,f"P{s_}",True,(cfg.st3 if (cfg.st3 and s_<cfg.n3) else cfg.st2))
    k0=3*cfg.dl; dq=list(range(k0,16)); pend=[]
    o_sub0,o_j0=dunit(k0)
    for i in range(base+1,base+25):
        ex={}; post={}; rel=i-base; lo=0; hi=16
        rs=list(R.get(i,[]))
        if rel==1:
            put(ex,0,[WV("h1KV10",True)]); put(ex,1,BAR())
            put(ex,2,[I(f"s_add_u32 s{sTmp}, s{sW4}, {8*SLOT}")])
            put(post,2,setrd(sW4)); lo=3; hi=12
            put(post,13,setrd(sTmp,vK2,vV2))
        if rel==5: put(ex,0,[WV("h1KV11")]); put(ex,1,BAR()); lo=2
        if rel==12: put(ex,3,TL())
        g=[]
        for rdx,k in pend:
            sub,j=dunit(k); jj=(k-k0)%4
            g.append([WL(rdx),ostore(DR[k&1],jj,cfg.st,sSd,f"O{sub}")]+([I(f"s_add_u32 s{sSd}, s{sSd}, 4096")] if jj==3 else []))
        pend=[]
        place(ex,g,lo=max(lo,3),hi=4)
        if dq:
            k=dq.pop(0); sub,j=dunit(k)
            x=I(f"ds_read_b128 {vr(DR[k&1])}, v{vD[j&1]}{offs((sub-o_sub0)*SLOT+1024*(j-o_j0))}", src=f"O{sub}", slot=slotQ(sub), private=True)
            pend.append((x,k)); place(ex,[x],lo=13,hi=15)
        mem=E.mem(2 if rel<21 else 4, fast=(rel>=21))
        ch=E.chunk(i,cfg.rhoG if rel<20 else cfg.rhoE)
        free=[g_ for g_ in FREE if not(g_==16 and ch)] if rel<24 else list(range(8,16))
        for m in range(7):
            K,V=F[m][:8],F[m][8:]
            needK = base+3*m+2 if m<6 else base+18
            needV = base+3*m+4 if m<6 else base+20
            if i==needK-1:
                put(ex,17,[WL(K[7])])
                if rs and rs[-1] is K[7]: hi=min(hi,13)
            if i==needV:
                late=[x for x in V if x in rs]
                if late:
                    place(ex,late,lo=0,hi=5,free=free); rs=[x for x in rs if x not in late]; lo=max(lo,6)
                    put(ex,7,[WL(V[15-len(late)])]); put(ex,8+(16-len(late))//2-1,[WL(V[15])])
                else: put(ex,7,[WL(V[15])])
        place(ex,rs,lo=lo,hi=hi,free=free)
        place(ex,mem,lo=(0 if rel<23 else 8),hi=(15 if rel<24 else 16),free=free)
        put(post,16,ch)
        o+=step(i,ex,post)
    assert not E.tiles and not E.cv and not dq and not pend and not E.wr and not E.rd
    return o+final5(E,ex)

def final5(E,ex):
    o=[]
    tag="P5"; sl=5; off=3*SLOT
    rest=[x for g in E.mem(8) for x in g]
    assert E.done()
    pad=max(0,8-len(rest)-len([x for x in ex.get(16,[])]))
    o+=rest+([I(f"s_nop {pad-1}")] if pad else [])+e_head(5,sBad2,tag,T1)
    for half in (0,1):
        for dt in range(4*half,4*half+4): o+=e_pk(5,dt,tag,T1)
        for dt in range(4*half,4*half+4): o+=e_cvt(5,dt,tag)
        for dt in range(4*half,4*half+4): o.append(e_wr(5,dt,off,sl,tag))
    rd=epi_rd(5,off,sl,tag); o+=rd
    st=epi_st(5,cfg.st2,sSt,tag)
    for j in range(4): o+=[WL(rd[j]), st[j]]
    return o

def tailK():
    o=[I("; ==== head B blocks 8,9 (parked output drained) and last two key blocks, epilogue streamed")]
    E=Epi(vQ+2,sSt)
    idx={u:k for k,u in enumerate(LB)}
    for s_ in range(5):
        sl=3+(s_%2)
        E.add(s_,132+idx[(11,s_)]+2,(sl-2)*SLOT,sl,sBad2,f"P{s_}",True,cfg.st2)
    k0=3*cfg.dl; dq=list(range(k0,16)); pend=[]
    o_sub0,o_j0=dunit(k0)
    f11=frag_reads(1,11)
    for i in range(121,145):
        ex={}; post={}; lo=0; hi=16; rs=[]
        if i<133:
            b,r=divmod(i-73,6); lead=(b%2==0)
            if r==0:
                reads=frag_reads(1,b+1); rp=sPo if lead else sPe; rx=sXo if lead else sXe
                put(ex,0,[WV(f"h1KV{b+1}",True)]); put(ex,1,BAR())
                put(ex,2,[I(f"s_xor_b32 s{rp}, s{rp}, s{rx}")]); put(post,4,setrd(rp)); lo=5
            rs=reads[4*r:4*r+4]
            if r==5: hi=11
            if r==3: put(ex,17,[WL(reads[7])])
        if i==133:
            put(ex,0,[WV("h1KV11",True)]); put(ex,1,BAR())
            put(ex,2,[I(f"s_xor_b32 s{sPo}, s{sPo}, s{sXo}")]); put(post,2,setrd(sPo)); lo=3; hi=12
            rs=f11[:8]; put(ex,17,[WL(f11[7])])
        if i==134: rs=f11[8:14]
        if i==135: rs=f11[14:20]
        if i==136: rs=f11[20:24]; hi=5; put(ex,7,[WL(f11[19])]+TL()); put(ex,13,[WL(f11[23])])
        g=[]
        for rdx,k in pend:
            sub,j=dunit(k); jj=(k-k0)%4
            g.append([WL(rdx),ostore(DR[k&1],jj,cfg.st,sSd,f"O{sub}")]+([I(f"s_add_u32 s{sSd}, s{sSd}, 4096")] if jj==3 else []))
        pend=[]
        place(ex,g,lo=3,hi=4)
        mem=E.mem(4, fast=True)
        ch=E.chunk(i,cfg.rho2)
        free=[g_ for g_ in FREE if not(g_==16 and ch)] if i<144 else list(range(8,16))
        place(ex,rs,lo=lo,hi=hi,free=free)
        if dq:
            k=dq.pop(0); sub,j=dunit(k)
            x=I(f"ds_read_b128 {vr(DR[k&1])}, v{vD[j&1]}{offs((sub-o_sub0)*SLOT+1024*(j-o_j0))}", src=f"O{sub}", slot=slotQ(sub), private=True)
            pend.append((x,k)); place(ex,[x],lo=6,hi=(16 if hi==16 else 12),free=free)
        place(ex,mem,lo=(0 if i<143 else 8),hi=(15 if i<144 else 16),free=free)
        put(post,16,ch)
        o+=step(i,ex,post)
    assert not E.tiles and not E.cv and not dq and not pend and not E.wr and not E.rd
    return o+final5(E,ex)

def tailQ():
    o=[I("; ==== head B blocks 8,9 (parked output drained) and last two key blocks q-major, epilogue right behind each sub-tile")]
    k0=3*cfg.dl; dq=list(range(k0,16)); pend=[]
    o_sub0,o_j0=dunit(k0)
    f9=frag_reads(1,9); f10=frag_reads(1,10); f11=frag_reads(1,11,rk=vQ,rv=vQ+1)
    R={121+r:f9[4*r:4*r+4] for r in range(6)}
    R.update({127:f10[:5],128:f10[5:11],129:f10[11:17],130:f10[17:21]+f11[:2],131:f11[2:8],132:f10[21:24],133:f11[8:18],134:f11[18:24]})
    stq=[]; nxt=[]
    nd2=max(0,len(dq)-cfg.nd1)
    for i in range(121,145):
        ex={}; post={}; lo=0; hi=16; rs=list(R.get(i,[]))
        p=unit(i-1); fin=(p[1]==11)
        if i==121:
            put(ex,0,[WV("h1KV9",True)]); put(ex,1,BAR())
            put(ex,2,[I(f"s_xor_b32 s{sPo}, s{sPo}, s{sXo}")]); put(post,4,setrd(sPo)); lo=5
        if i==124: put(ex,17,[WL(f9[7])])
        if i==126: hi=11
        if i==127:
            put(ex,0,[WV("h1KV10" if cfg.bar11 else "h1KV11",True)]); put(ex,1,BAR())
            put(ex,2,[I(f"s_xor_b32 s{sPe}, s{sPe}, s{sXe}")]); put(post,4,setrd(sPe)); lo=5
        if i==128: put(post,4,setrd(sW4,vQ,vQ+1))
        if i==130:
            put(ex,17,[WL(f10[7])])
            if cfg.bar11: put(ex,6,[WV("h1KV11")]); put(ex,7,[I("s_barrier")])
        if i==131: hi=12; put(ex,17,[WL(f11[7])])
        if i==133: put(ex,7,[WL(f10[23])]+TL())
        if i==134: hi=5; put(ex,8,[WL(f11[17])]); put(ex,13,[WL(f11[23])])
        free=[g_ for g_ in FREE if not(g_==16 and fin)] if i<144 else list(range(8,16))
        g=[]
        for rdx,k in pend:
            sub,j=dunit(k); jj=(k-k0)%4
            g.append([WL(rdx),ostore(DR[k&1],jj,cfg.st,sSd,f"O{sub}")]+([I(f"s_add_u32 s{sSd}, s{sSd}, 4096")] if jj==3 else []))
        if g: place(ex,g[:1],lo=3,hi=4)
        if len(g)>1: place(ex,g[1:],lo=9,hi=10)
        two=len(pend)>1; pend=[]
        if i==130:
            place(ex,rs[:4],lo=0,hi=11,free=free); place(ex,rs[4:],lo=8,hi=16,free=free)
        else: place(ex,rs,lo=lo,hi=hi,free=free)
        n=0
        if dq: n=1
        if dq and nd2>0 and (i%2==0 or nd2>6): n=2; nd2-=1
        xs=[]
        for _ in range(min(n,len(dq))):
            k=dq.pop(0); sub,j=dunit(k)
            x=I(f"ds_read_b128 {vr(DR[k&1])}, v{vD[j&1]}{offs((sub-o_sub0)*SLOT+1024*(j-o_j0))}", src=f"O{sub}", slot=slotQ(sub), private=True)
            pend.append((x,k)); xs.append(x)
        place(ex,xs,lo=11,hi=(16 if hi==16 else 12),free=free)
        mlo=0 if i<143 else 8
        if nxt:
            place(ex,nxt,lo=mlo,hi=16,free=free); nxt=[]
        elif stq:
            place(ex,stq,lo=mlo,hi=15,free=free); stq=[]
        if fin and p[2]<5:
            s_=p[2]; tag=f"P{s_}"; sl=3+(s_%2); off=(sl-2)*SLOT
            ch=e_head(s_,sBad2,tag,T1)
            for dt in range(8): ch+=e_pk(s_,dt,tag,T1)
            for dt in range(8): ch+=e_cvt(s_,dt,tag)
            put(post,13,ch[:1]); put(post,14,ch[1:2]); put(post,16,ch[2:])
            rd=epi_rd(s_,off,sl,tag); st=epi_st(s_,cfg.st2,sSt,tag)
            nxt=[[e_wr(s_,dt,off,sl,tag)] for dt in range(8)]+[[x] for x in rd]
            stq=[[WL(rd[1]),st[0]],[st[1]],[WL(rd[3]),st[2]],[st[3],I(f"s_add_u32 s{sSt}, s{sSt}, 4096")]]
        o+=step(i,ex,post,(cfg.profT if i<133 else 0),sumfirst=fin)
    assert not dq and not pend and not nxt and not stq
    tag="P5"; sl=5; off=3*SLOT
    o+=e_head(5,sBad2,tag,T1)
    for half in (0,1):
        for dt in range(4*half,4*half+4): o+=e_pk(5,dt,tag,T1)
        for dt in range(4*half,4*half+4): o+=e_cvt(5,dt,tag)
        for dt in range(4*half,4*half+4): o.append(e_wr(5,dt,off,sl,tag))
    rd=epi_rd(5,off,sl,tag); o+=rd
    st=epi_st(5,cfg.st2,sSt,tag)
    for j in range(4): o+=[WL(rd[j]), st[j]]
    return o

def stamp(k):
    if not cfg.stamps: return []
    op="s_memrealtime" if (cfg.echo>=0 or cfg.rt) else "s_memtime"
    return [I(f"{op} s[{sStamp+4+2*k}:{sStamp+5+2*k}]", skip=True)]

def lane_consts(A,base):
    A("v_and_b32 v4, 3, v0")
    A("v_bfe_u32 v3, v0, 2, 1"); A("v_mul_u32_u24 v9, 2080, v3")
    A("v_bfe_u32 v3, v0, 3, 1"); A("v_lshl_add_u32 v9, v3, 10, v9")
    A("v_lshl_add_u32 v9, v4, 8, v9"); A("v_lshl_add_u32 v9, v2, 4, v9"); A(f"v_add_u32 v9, s{base}, v9")
    for ks in range(4):
        A(f"v_xor_b32 v3, {ks}, v4"); A(f"v_lshl_add_u32 v{vQ+ks}, v3, 6, v9")
    A("v_and_b32 v8, 15, v0"); A("v_xor_b32 v9, v8, v2"); A("v_lshlrev_b32 v10, 8, v2"); A(f"v_add_u32 v10, s{base}, v10")
    A(f"v_lshl_add_u32 v{vR[0]}, v9, 4, v10"); A("v_xor_b32 v9, 4, v9"); A(f"v_lshl_add_u32 v{vR[1]}, v9, 4, v10")
    A("v_lshlrev_b32 v10, 8, v8"); A("v_and_b32 v9, 1, v2"); A("v_lshl_add_u32 v10, v9, 3, v10"); A(f"v_add_u32 v10, s{base}, v10")
    A("v_lshrrev_b32 v9, 1, v2"); A("v_and_b32 v8, 7, v0"); A("v_xor_b32 v9, v9, v8")
    for k in range(4):
        A(f"v_xor_b32 v8, {2*k}, v9"); A(f"v_lshl_add_u32 v{vW[k]}, v8, 4, v10")

CPF_LINES=11
def prologue():
    o=[]
    A=lambda t,**k: o.append(I(t,**k))
    A(f"s_load_dwordx2 s[{sKA}:{sKA+1}], s[0:1], 8"); A(f"s_load_dwordx2 s[{sVB}:{sVB+1}], s[0:1], 16")
    A(f"s_load_dwordx2 s[{sQA}:{sQA+1}], s[0:1], 0"); A(f"s_load_dwordx2 s[{sO}:{sO+1}], s[0:1], 24")
    if cfg.stamps:
        A(f"s_load_dwordx2 s[{sDbg}:{sDbg+1}], s[0:1], 32")
        A(f"s_memtime s[{sStamp}:{sStamp+1}]"); A(f"s_memrealtime s[{sStamp+2}:{sStamp+3}]")
    if cfg.tl:
        A("s_mov_b64 s[90:91], 1"); A("s_memtime s[98:99]"); A("s_memrealtime s[100:101]")
    A("s_cmp_ge_u32 s2, 256"); A("s_cbranch_scc1 Lend")
    A("v_lshrrev_b32 v1, 6, v0"); A("v_and_b32 v0, 63, v0"); A("v_readfirstlane_b32 s3, v1")
    if cfg.pro:
        A("s_getpc_b64 s[62:63]"); A("Lpc:")
        A("v_min_u32 v2, 3, v0"); A("v_lshlrev_b32 v2, 7, v2")
        A("global_load_dword v61, v2, s[62:63] offset:64")
        A("s_lshr_b32 s4, s2, 3"); A(f"s_mul_i32 s4, s4, {128*CPF_LINES}"); A("s_add_u32 s4, s4, Lmain-Lpc")
        A(f"v_min_u32 v1, {CPF_LINES-1}, v0"); A("v_lshl_add_u32 v1, v1, 7, s4")
        A("global_load_dword v15, v1, s[62:63]")
    A(f"v_lshlrev_b32 v{vKVB}, 4, v0"); A(f"v_add_u32 v{vKVA}, 1056, v{vKVB}")
    if cfg.diag=='l2only': A("s_and_b32 s62, s2, 7"); A(f"s_mul_i32 s{sH}, s62, {2*HEADB}")
    else: A(f"s_mul_i32 s{sH}, s2, {2*HEADB}")
    A(f"s_mov_b32 s{sKA+2}, {TOTB+1056}"); A(f"s_mov_b32 s{sKA+3}, 0x20000"); A(f"s_mov_b32 s{sVB+2}, {TOTB+2080}"); A(f"s_mov_b32 s{sVB+3}, s{sKA+3}")
    A(f"s_mul_i32 s{sW4}, s3, {WREG}"); A(f"s_lshl_b32 s{sKVw}, s3, 11")
    A(f"s_add_u32 s{sOff}, s{sH}, s{sKVw}")
    o.append(setm0(0))
    A("s_waitcnt lgkmcnt(0)")
    A(f"s_sub_u32 s{sKA}, s{sKA}, 1056"); A(f"s_subb_u32 s{sKA+1}, s{sKA+1}, 0")
    o+=[kvdma(0,0,0),kvdma(0,0,2)]
    A(f"s_sub_u32 s{sVB}, s{sVB}, 2080"); A(f"s_subb_u32 s{sVB+1}, s{sVB+1}, 0")
    if not cfg.su&1: o+=[kvdma(0,0,1),kvdma(0,0,3)]
    if cfg.cpf and not cfg.pro:
        A("s_getpc_b64 s[62:63]")
        if cfg.pads: A("Lpc:"); A("s_add_u32 s62, s62, Lmain-Lpc"); A("s_addc_u32 s63, s63, 0")
        A("s_lshr_b32 s4, s2, 3"); A(f"s_mul_i32 s4, s4, {128*CPF_LINES}")
        A(f"v_min_u32 v1, {CPF_LINES-1}, v0"); A("v_lshl_add_u32 v1, v1, 7, s4")
        A("global_load_dword v61, v1, s[62:63]")
    A("v_lshrrev_b32 v2, 4, v0"); A("v_lshlrev_b32 v4, 6, v2"); A(f"v_xor_b32 v{vQB}, v{vKVB}, v4"); A(f"v_add_u32 v{vQA}, 1056, v{vQB}")
    A(f"s_mul_i32 s{sQw}, s3, 24576"); A(f"s_add_u32 s{sTmp}, s{sH}, s{sQw}")
    A(f"s_sub_u32 s{sQB}, s{sQA}, 32"); A(f"s_subb_u32 s{sQB+1}, s{sQA+1}, 0")
    A(f"s_sub_u32 s{sQA}, s{sQA}, 1056"); A(f"s_subb_u32 s{sQA+1}, s{sQA+1}, 0")
    o.append(setm0(slotQ(0)))
    A(f"s_mov_b64 s[{sQA+2}:{sQA+3}], s[{sKA+2}:{sKA+3}]"); A(f"s_mov_b32 s{sQB+2}, {TOTB+32}"); A(f"s_mov_b32 s{sQB+3}, s{sKA+3}")
    o+=[qdma(0,0,j,sTmp) for j in range(4)]
    if cfg.su&1:
        o.append(setm0(1)); A(f"s_add_u32 s4, s{sOff}, 8192")
        o+=[kvdma(0,1,j,4) for j in (0,2)]
        o+=[setm0(0),I("s_nop 0"),kvdma(0,0,1),kvdma(0,0,3)]
    o.append(setm0(1)); A(f"s_add_u32 s{sOff}, s{sOff}, 8192")
    o+=[kvdma(0,1,j) for j in ((1,3) if cfg.su&1 else (0,2,1,3))]
    if cfg.pro: o+=[I("s_branch Lmain"), I(".p2align 12"), I("Lmain:")]
    A(f"s_mov_b32 s{sO+2}, {0 if cfg.diag else TOTB}"); A(f"s_mov_b32 s{sO+3}, 0x20000")
    A(f"s_add_u32 s{sHn}, s{sH}, {HEADB}")
    A(f"s_mov_b32 s{sC}, 0x3e0293ee"); A(f"s_mov_b32 s{sNC}, 0xbe0293ee"); A(f"s_mov_b32 s{sThr}, 0x4e800000")
    if cfg.pkf: A(f"s_mov_b32 s{sC2}, 0x3e0293ee"); A(f"s_mov_b32 s{sC2+1}, 0x3e0293ee")
    A(f"s_add_u32 s{sEnd}, s{sW4}, {NSLOT*SLOT}")
    A(f"s_mov_b32 s{sT}, 0")
    if cfg.profO or cfg.oddB: A("s_getreg_b32 s95, hwreg(HW_REG_XCC_ID)")
    A(f"s_mov_b64 s[{sBad}:{sBad+1}], 0"); A(f"s_mov_b64 s[{sBad2}:{sBad2+1}], 0")
    A(f"s_add_u32 s{sXe}, s{sW4}, {8*SLOT}"); A(f"s_add_u32 s4, s{sW4}, {SLOT}"); A(f"s_xor_b32 s{sXe}, s{sXe}, s4")
    A(f"s_add_u32 s4, s{sW4}, {2*SLOT}"); A(f"s_xor_b32 s{sXo}, s4, s{sW4}")
    A("v_and_b32 v3, 7, v0"); A(f"v_mul_u32_u24 v{vKl}, 2080, v3")
    A("v_bfe_u32 v3, v0, 3, 1"); A(f"v_lshl_add_u32 v{vKl}, v3, 8, v{vKl}")
    A(f"v_lshl_add_u32 v{vKl}, v2, 4, v{vKl}"); A(f"v_subrev_u32 v{vKl}, s{sW4}, v{vKl}")
    A("v_bfe_u32 v3, v0, 2, 3"); A(f"v_mul_u32_u24 v{vVl}, 2080, v3")
    A("v_lshrrev_b32 v3, 5, v0"); A(f"v_lshl_add_u32 v{vVl}, v3, 8, v{vVl}")
    A("v_and_b32 v4, 3, v0"); A(f"v_lshl_add_u32 v{vVl}, v4, 3, v{vVl}")
    A(f"v_add_u32 v{vVl}, 1024, v{vVl}"); A(f"v_subrev_u32 v{vVl}, s{sW4}, v{vVl}")
    A("v_mov_b32 v11, 0x3f803f80"); A("v_cmp_eq_u32 vcc, 0, v4")
    lane_consts(A,4)
    A("v_cndmask_b32 v11, 0, v11, vcc")
    for k in range(4): A(f"v_accvgpr_write_b32 a{ONES+k}, v11")
    for s in (1,2):
        o.append(setm0(slotQ(s))); A(f"s_add_u32 s{sTmp}, s{sTmp}, 4096")
        o+=[qdma(0,s,j,sTmp) for j in range(4)]
    return o

def slow_path():
    o=[]
    A=lambda t,**k: o.append(I(t,**k))
    sP=sCur
    A("; ==== fallback: exact two-pass softmax with the true row max for this wave's 96 rows of the head at byte offset s44")
    A("Lslow:")
    A("s_waitcnt vmcnt(0) lgkmcnt(0)")
    A(f"s_mul_i32 s{sP}, s3, {SLOT}")
    A(f"s_add_u32 s{sTmp}, s{sP}, s{sW4}")
    o+=setrd(sTmp)
    A(f"v_lshrrev_b32 v0, 4, v{vKVB}"); A("v_lshrrev_b32 v2, 4, v0")
    lane_consts(A,sTmp)
    A(f"s_mov_b32 m0, s{sTmp}")
    A(f"s_add_u32 s{sOff}, s{sH}, s{sQw}")
    for s in range(6):
        o+=[qdma(0,s,j) for j in range(4)]
        A("s_waitcnt vmcnt(0)")
        for ks in range(4): A(f"ds_read_b128 {ar(Qr(s,ks))}, v{vQ+ks}")
        A(f"s_add_u32 s{sOff}, s{sOff}, 4096")
        A("s_waitcnt lgkmcnt(0)")
    for s in range(6): A(f"v_mov_b32 v{MN+s}, 0xff800000")
    def loadkv():
        for j in range(4):
            A(f"s_add_u32 m0, s{sP}, {j*WREG}"); A("s_nop 0")
            o.extend(kvdma(0,0,jj) for jj in range(4))
            A(f"s_add_u32 s{sOff}, s{sOff}, 2048")
        A("s_waitcnt vmcnt(0)")
    A(f"s_mov_b32 s{sOff}, s{sH}"); A(f"s_mov_b32 s{sT}, 0")
    A("Lslow1:")
    loadkv()
    o+=frag_reads(0,0,tags=False)[:8]
    A("s_waitcnt lgkmcnt(0)")
    for s in range(6):
        o+=qk_mfmas(s,0,0)
        A("s_nop 7")
        for e in range(0,8,2): A(f"v_max3_f32 v{MN+s}, v{MN+s}, v{SB[0]+e}, v{SB[0]+e+1}")
    A(f"s_add_u32 s{sT}, s{sT}, 1"); A(f"s_cmp_lt_u32 s{sT}, 12"); A("s_cbranch_scc1 Lslow1")
    for s in range(6):
        m=MN+s
        A(f"v_mov_b32 v{T1}, v{m}"); A("s_nop 1"); A(f"v_permlane16_swap_b32 v{m}, v{T1}"); A(f"v_max_f32 v{m}, v{m}, v{T1}")
        A(f"v_mov_b32 v{T1}, v{m}"); A("s_nop 1"); A(f"v_permlane32_swap_b32 v{m}, v{T1}"); A(f"v_max_f32 v{m}, v{m}, v{T1}")
        A(f"v_mul_f32 v{m}, s{sNC}, v{m}")
    for r in range(64,256): A(f"v_mov_b32 v{r}, 0")
    for r in range(224,248): A(f"v_accvgpr_write_b32 a{r}, 0")
    A(f"s_mov_b32 s{sOff}, s{sH}"); A(f"s_mov_b32 s{sT}, 0")
    A("Lslow2:")
    loadkv()
    fr=frag_reads(0,0,tags=False)
    for k in range(3):
        o+=fr[8*k:8*k+8]; A("s_waitcnt lgkmcnt(0)")
    for s in range(6):
        o+=qk_mfmas(s,0,0)
        A("s_nop 7")
        for gp in sm_gaps(s,0,0): o+=gp
        A("s_nop 1")
        o+=pv_mfmas(s,0,0,False)
    A(f"s_add_u32 s{sT}, s{sT}, 1"); A(f"s_cmp_lt_u32 s{sT}, 12"); A("s_cbranch_scc1 Lslow2")
    A("s_nop 7")
    A(f"s_add_u32 s{sSt}, s{sH}, s{sQw}")
    for s in range(6):
        o+=e_head(s,None,None,T1)
        for dt in range(8): o+=e_pk(s,dt,None,T1)
        for dt in range(8): o+=e_cvt(s,dt,None)
        for dt in range(8): o.append(e_wr(s,dt,0,None,None))
        o+=epi_rd(s,0,None)+[I("s_waitcnt lgkmcnt(0)")]+epi_st(s,"",sSt)
        A(f"s_add_u32 s{sSt}, s{sSt}, 4096")
    A("s_branch Lslow_ret")
    for x in o:
        for k in ('tag','slot','wslot','wtag'): x.meta.pop(k,None)
    return o

def resolve(trace):
    vm=[]; lg=[]
    for x in trace:
        if x.label or x.meta.get('skip'): continue
        if 'auto_vm' in x.meta:
            idx=[k for k,y in enumerate(vm) if y.meta.get('tag')==x.meta['auto_vm'] and x.meta.get('wpart') in (None,y.meta.get('part'))]
            n=min(63,len(vm)-1-max(idx)); x.text=x.text.replace("vmcnt(AUTO)",f"vmcnt({n})"); x.meta['loose_ok']=True
        if 'auto_lg' in x.meta:
            k=[i for i,y in enumerate(lg) if y is x.meta['auto_lg']]
            assert k, "WL target not issued before wait: "+x.meta['auto_lg'].text
            n=min(15,len(lg)-1-k[0]); x.text=x.text.replace("lgkmcnt(AUTO)",f"lgkmcnt({n})")
        if x.kind=='vmem': vm.append(x)
        if x.kind=='ds': lg.append(x)

def build():
    set_units()
    P=prologue(); SA=startA(); TR=trans(); TB=[tailK,tailB,tailQ][cfg.G]()
    txt=lambda L:[x.text for x in L if not x.text.startswith(';')]
    assert txt(loopA2(0))==txt(loopA2(1))
    tb=range(1,3) if cfg.profB0 else range(3)
    for t in tb: assert txt(loopB(t))==txt(loopB(tb[0]))
    if cfg.loopR:
        assert txt(rampA(0))==txt(rampA(1)); RAt=rampA(0)+rampA(1); RA=[I(".p2align 3"),I("LloopA1:")]+rampA(0)
    else: RA=RAt=rampA()
    PB_=peelB() if cfg.profB0 else []
    extra=[]
    if cfg.profO:
        RO=rampA(prof=cfg.profO)
        t2=prologue()+startA()+RO+midA()+loopA2(0); resolve(t2)
        for p in check_trace([x for x in t2 if not x.meta.get('skip')]): print("ODD:",p)
        RA=[I("s_bitcmp1_b32 s95, 0"), I("s_cbranch_scc1 LrampO")]+RA+[I("s_branch LrampJ"), I("LrampO:")]+RO+[I("LrampJ:")]
    if cfg.midprof:
        MA=staticA(); trace=P+SA+MA+TR+PB_
    else: trace=P+SA+RAt+midA()+loopA2(0)+loopA2(1)+TR+PB_
    if not cfg.profBs:
        for t in tb: trace+=loopB(t)
    trace+=TB
    resolve(trace)
    probs=check_trace([x for x in trace if not x.meta.get('skip')])
    sp=slow_path()
    probs+=check_trace(sp+slow_path())
    seen=set()
    for p in probs:
        if p not in seen: print(p); seen.add(p)
    nd=(lambda L:[x for x in L if not getattr(x,'dma',False)]) if cfg.diag=='nodma' else (lambda L:L)
    if cfg.pads and not cfg.pro: P=P+[I("s_branch Lmain"), I(".p2align 12"), I("Lmain:")]
    if cfg.midprof: S=list(P)+stamp(0)+SA+stamp(1)+nd(MA)
    else: S=list(P)+stamp(0)+SA+stamp(1)+nd(RA)+midA()+[I(".p2align 3"),I("LloopA2:")]+nd(loopA2(0))
    if cfg.oddB: PB_=[I("s_bitcmp1_b32 s95, 0"), I(f"s_cselect_b32 s{sT}, -1, 0"), I("s_cbranch_scc1 LloopB")]+PB_
    S+=stamp(2)+nd(TR)+stamp(3)+nd(PB_)+([I(".p2align 3"),I("LloopB:")]+nd(loopB(tb[0])) if not cfg.profBs else [])
    S+=stamp(4)+TB+stamp(5)
    if cfg.slow:
        S+=[I(f"s_or_b64 s[62:63], s[{sBad}:{sBad+1}], s[{sBad2}:{sBad2+1}]"), I("s_barrier"), I("s_cbranch_scc1 Lslow_entry")]
    S+=[I("Lfin:")]
    if cfg.stamps:
        S+=[I("s_waitcnt vmcnt(0)"), I(f"s_memtime s[{sStamp+16}:{sStamp+17}]"), I(f"s_memrealtime s[{sStamp+18}:{sStamp+19}]"), I("s_waitcnt lgkmcnt(0)")]
        if cfg.echo>=0:
            esrc=[sStamp+2]+[sStamp+4+2*k for k in range(6)]+[sStamp+18]
            if cfg.echox>=0: S+=[I("s_getreg_b32 s62, hwreg(HW_REG_XCC_ID)"), I("s_and_b32 s62, s62, 7"), I(f"s_cmp_lg_u32 s62, {cfg.echox}"), I("s_cbranch_scc1 Lend")]
            S+=[I(f"s_add_u32 s62, s{esrc[cfg.echo]}, 10000"), I("Lspin:"), I("s_sleep 2"), I("s_memrealtime s[88:89]"), I("s_waitcnt lgkmcnt(0)"),
                I("s_sub_u32 s63, s88, s62"), I("s_cmp_lt_i32 s63, 0"), I("s_cbranch_scc1 Lspin")]
        S+=[I(f"v_mov_b32 v8, s{sStamp+2}"), I(f"v_mov_b32 v9, s{sStamp+18}")]
        srcs=[sStamp+4+2*k for k in range(6)]+[sStamp+(18 if cfg.rt else 16)]
        for k,r in enumerate(srcs):
            S+=[I(f"s_sub_u32 s{sTmp}, s{r}, s{sStamp+(2 if cfg.rt else 0)}"), I(f"v_mov_b32 v{10+k}, s{sTmp}")]
        S+=[I("v_mov_b32 v17, 0"), I("v_mov_b32 v18, 0"), I("s_getreg_b32 s62, hwreg(HW_REG_XCC_ID)"), I("v_mov_b32 v19, s62")]
        S+=[I(f"s_mov_b32 s28, s{sDbg}"), I(f"s_mov_b32 s29, s{sDbg+1}"), I(f"s_mov_b32 s30, {cfg.dbgsz}"), I("s_mov_b32 s31, 0x20000"),
            I("s_lshl_b32 s62, s2, 8"), I("s_lshl_b32 s63, s3, 6"), I("s_add_u32 s62, s62, s63"), I("v_mov_b32 v1, 0")]
        if cfg.tl:
            S+=TL()+[I("s_waitcnt lgkmcnt(0)")]+TL()+[I("s_lshl_b32 s61, s62, 3"), I("s_add_u32 s61, s61, 65536"), I(f"v_lshrrev_b32 v5, 2, v{vKVB}"),
                I("buffer_store_dword v0, v5, s[28:31], s61 offen"), I("buffer_store_dword v61, v5, s[28:31], s61 offen offset:256")]
        S+=[I("s_mov_b64 exec, 1"),
            I("buffer_store_dwordx4 v[8:11], v1, s[28:31], s62 offen"), I("buffer_store_dwordx4 v[12:15], v1, s[28:31], s62 offen offset:16"), I("buffer_store_dwordx4 v[16:19], v1, s[28:31], s62 offen offset:32")]
    S+=[I("Lend:"), I("s_endpgm")]
    if cfg.slow:
        S+=[I("Lslow_entry:"), I(f"s_cmp_lg_u64 s[{sBad}:{sBad+1}], 0"), I("s_cbranch_scc1 Lslow"),
            I("Lslow_ret:"), I(f"s_cmp_eq_u64 s[{sBad2}:{sBad2+1}], 0"), I("s_cbranch_scc1 Lfin"),
            I(f"s_mov_b64 s[{sBad2}:{sBad2+1}], 0"), I(f"s_mov_b32 s{sH}, s{sHn}")]
        S+=sp
    else: S+=[I(".fill 2048, 4, 0xbf810000")]
    return S, bool([p for p in probs if not p.startswith("NOTE")])

from gen import FTR
HDR="""; Kernarg layout for this problem (48 bytes, ptrs only, base s[0:1]):
;   offset   0: d_in[0] q  shape=(16, 32, 384, 128) dtype=bfloat16 strides=(3145728, 98304, 256, 2) contiguous=True
;   offset   8: d_in[1] k  shape=(16, 32, 384, 128) dtype=bfloat16 strides=(3145728, 98304, 256, 2) contiguous=True
;   offset  16: d_in[2] v  shape=(16, 32, 384, 128) dtype=bfloat16 strides=(3145728, 98304, 256, 2) contiguous=True
; @launch grid=(256,1,1) block=(256,1,1) lds=%d
;
; softmax(Q K^T / sqrt(128)) V for 512 heads of 384 x 128.   (emitted by my own generator script)
; -------------------------------------------------------------------------------------------------
; * One workgroup (4 waves, one per SIMD, 512 registers each) per CU handles heads 2*wg (A) and 2*wg+1 (B).
; * v_mfma_f32_16x16x32_bf16 throughout:  S^T = K Q^T (8 MFMA),  O^T += V^T P^T (8 MFMA),  row sums l += 1^T P^T (1 MFMA).
; * Q/K/V stream global -> LDS with buffer_load ... lds through nine 16640-byte slots (padded so that the K b128 reads and the
;   transposing V reads are bank-conflict free); K/V fragments are double buffered in AGPRs, O lives in v64..v255.
; * Softmax guard: p = exp2(c*s - c*m) with m = the row's true max over its first key block (so l >= 1, nothing underflows that the
;   two-pass softmax that subtracts the true max over all 384 keys.
;   part of head A's output is parked in LDS and written while head B no longer loads.
; * Lpad<k>/Lret<k>: while waiting for the first loads each wave touches the first line of every 4 KiB page of the kernel once
;   (branch there with EXEC=0 and straight back, no memory instruction runs) because instruction prefetch stops at page ends.
.amdgcn_target "amdgcn-amd-amdhsa--gfx950"
.text
.globl %s
.p2align 8
.type %s,@function
%s:
"""
def isize(x):
    return SZ[x.text]
def write(fn):
    S,bad=build()
    if cfg.pads and SZ:
        out=[]; addr=None; k=1
        for n,x in enumerate(S):
            out.append(x)
            if x.text=="Lmain:": addr=0; continue
            if addr is None: continue
            if x.text==".p2align 3": addr=(addr+7)&~7; continue
            if x.label: continue
            a0=addr; addr+=SZ.get(x.text,4)
            if k<=NPADS and addr>=k*cfg.pads+cfg.padoff and (x.kind=='mfma' or addr>=k*cfg.pads+cfg.padoff+24) and not x.op.startswith('s_cbranch') and not x.op.startswith('s_branch') and x.text!='s_mov_b64 exec, 0':
                out+=[I(f"Lpad{k}:"), I(f"s_cbranch_execz Lret{k}")]; addr+=4; k+=1
        assert k==NPADS+1,(k,NPADS)
        S=out
    with open(fn,"w") as f:
        f.write(HDR%(LDSB,NAME,NAME,NAME))
        jn=0
        for x in S:
            t=x.text
            if x.meta.get('jit'):
                jn+=1
                f.write(f"    s_cmp_eq_u32 s3, {(jn*cfg.jit)%4}\n    s_cbranch_scc0 Ljit{jn}\n    s_sleep {20+10*(jn%5)}\nLjit{jn}:\n"); continue
            if cfg.drop=='exp' and t.startswith('v_exp'): t=t.replace('v_exp_f32','v_mov_b32')
            if cfg.drop=='exp0' and t.startswith('v_exp'): continue
            if cfg.drop=='fma' and t.startswith('v_fma'): continue
            if cfg.drop=='sum' and t.startswith(MF+' a['): continue
            f.write((t if (t.endswith(':') or t.startswith('.')) else "    "+t)+"\n")
        f.write(FTR%NAME)
    return bad
SZ={}
def sizes(co):
    import subprocess
    out=subprocess.run(["llvm-objdump","-d","--mcpu=gfx950",co],capture_output=True,text=True).stdout
    sym={m.group(2):int(m.group(1),16) for m in re.finditer(r"^([0-9a-f]+) <(\w+)>:",out,re.M)}
    last=int(re.findall(r"// ([0-9A-F]{12}):",out)[-1],16)
    st=sym.get('Lmain',sym[NAME])
    return sym.get('Lfin',sym.get('Lend'))-st, last+4-st
if __name__=="__main__":
    ap=argparse.ArgumentParser()
    ap.add_argument("out"); ap.add_argument("opts",nargs="*")
    a=ap.parse_args()
    for kv in a.opts:
        k,v=kv.split("=",1)
        cur=getattr(cfg,k)
        setattr(cfg,k, (v in("1","True","true")) if isinstance(cur,bool) else (int(v) if isinstance(cur,int) else v.replace("+"," ")))
    from mkco import build as mk
    for it in range(4):
        bad=write(a.out); co=mk(a.out); hot,tot=sizes(co)
        need=-(-hot//(32*128))
        done=(need==CPF_LINES)
        CPF_LINES=need
        if cfg.pads:
            import subprocess
            lst=subprocess.run(["llvm-objdump","-d","--mcpu=gfx950",co],capture_output=True,text=True).stdout
            lst=lst[lst.index("<Lmain>:"):]
            enc=[len(m.group(1).split())*4 for m in re.finditer(r"// [0-9A-F]{12}: ([0-9A-F ]+)",lst)]
            src=open(a.out).read(); src=src[src.index("Lmain:\n"):].split("\n")[1:]
            j=0; addr=0
            for ln in src:
                t=ln.strip()
                if t.startswith(".section"): break
                if t==".p2align 3":
                    if addr%8: j+=1; addr+=4
                    continue
                if not t or t.startswith(";") or t.endswith(":") or t.startswith("."): continue
                SZ[t]=enc[j]; addr+=enc[j]; j+=1
            np_=(hot-64-cfg.padoff)//cfg.pads
            if np_!=NPADS: done=False
            NPADS=np_
        if done and it>0: break
    assert 32*128*CPF_LINES+256<=tot, (hot,tot)
    print(co, "PROBLEMS" if bad else "clean", "hot",hot,"total",tot,"cpf lines",CPF_LINES)
```

```python
import sys, argparse, re, functools
sys.path.insert(0,'work')
from asmlib import I, check_trace
NAME="standalone__gqa_softmax__near_ridge_kernel"
SLOT=16640; WREG=4160; NSLOT=9
LDSB=NSLOT*SLOT
HEADB=98304
TOTB=50331648

class Cfg:
    ld="nt"; st="sc1"; st2="nt"
    stamps=False; rt=False; tl=False; dbgsz=0x400000; echo=-1; diag=''
    slow=True; cpf=True
    rho=3; rhoG=3; rhoE=8
    prof='47,47,44,40'
    loopR=False
    profB='00,00'
    profB0='40,20'
    profO=''
    oddB=False
    midprof=''
    profS=0
    G=1
    rho2=8; nd1=13
    tls=False
    profBs=''
    profT=0
    pro=0
    jit=0
    tsched=''
    echox=-1
    tw=0
    su=0
    bar11=0
    pads=0
    padoff=0
    st3=''; n3=3
    pkf=0
    drop=''
    dl=0
cfg=Cfg()

def O(s,dt): return 64+32*s+4*dt
SB=[16,24]; PB=[32,36]
MN=40
vK,vV,vKl,vVl=46,47,48,49
vD=[50,51]
vQ=52
vR=[56,63]
vKVA,vKVB,vQA,vQB=57,58,59,60
vW=[5,6,7,62]
T0,T1,T2,T3=1,2,3,4
DR=[8,12]
QREGS=[vQ+k for k in range(4)]
def Qr(s,ks): return 16*s+4*ks
def Kf(par,i): return 96+32*par+4*i
def Vf(par,dt): return 160+32*par+4*dt
def Lr(s): return 224+4*s
ONES=248
sKA,sVB,sQA,sQB,sO=8,12,16,20,24
sOff,sCur,sC,sH,sW4,sT,sPe,sEnd,sKVw,sQw,sThr=40,42,43,44,45,46,47,48,49,50,51
sBad=52; sBad2=96
sTmp,sSt,sNC,sHn,sDbg=55,57,58,59,60
sSd,sDi=41,54
sStamp=64
sPo,sXe,sXo=92,93,94
sC2=38

def vr(a,n=4): return f"v[{a}:{a+n-1}]"
def ar(a,n=4): return f"a[{a}:{a+n-1}]"
def sr(a,n=4): return f"s[{a}:{a+n-1}]"
def offs(o): return f" offset:{o}" if o else ""

def slotKV(h,b):
    if b<2: return b
    if h==0: return (6+b)%9
    return ([8,2,0,1] if cfg.tw&2 else [8,0,1,2])[(b-2)%4]
def slotQ(s): return 2+s
UOFF=[0,1024,2080,3104]
def dma(j,tag,slot,q,off=sOff):
    A,B,va,vb=(sQA,sQB,vQA,vQB) if q else (sKA,sVB,vKVA,vKVB)
    p=f" {cfg.ld}" if cfg.ld else ""
    return I(f"buffer_load_dwordx4 v{[va,va,vb,vb][j]}, {sr([A,B,A,B][j])}, s{off} offen{offs(UOFF[j])}{p} lds", tag=tag, slot=slot, part=(None if q else 'KV'[j&1]))
def kvdma(h,b,j,off=sOff): return dma(j,f"h{h}KV{b}",slotKV(h,b),False,off)
def qdma(h,s,j,off=sOff): return dma(j,f"h{h}Q{s}",slotQ(s),True,off)
def pdma(n,j):
    if n<18: return kvdma(0,n-6,j)
    if n<20: return kvdma(1,n-18,j)
    return qdma(1,n-20,j)
def setm0(slot): return I(f"s_add_u32 m0, s{sW4}, {slot*SLOT}") if slot else I(f"s_mov_b32 m0, s{sW4}")
def frag_reads(h,b,base=0,rk=vK,rv=vV,tags=True):
    m=dict(src=f"h{h}KV{b}",slot=slotKV(h,b)) if tags else {}
    par=b&1
    return [I(f"ds_read_b128 {ar(Kf(par,i))}, v{rk}{offs(base+(i//4)*512+(i%4)*64)}",part='K',**m) for i in range(8)]+\
           [I(f"ds_read_b64_tr_b16 {ar(Vf(par,i//2)+2*(i%2),2)}, v{rv}{offs(base+(i%2)*512+(i//2)*32)}",part='V',**m) for i in range(16)]
def qreads(h,s): return [I(f"ds_read_b128 {ar(Qr(s,ks))}, v{vQ+ks}{offs((s%4)*SLOT)}", src=f"h{h}Q{s}", slot=slotQ(s), private=True) for ks in range(4)]
def bias(regs,up): return [I(f"{'v_add_u32' if up else 'v_subrev_u32'} v{r}, {4*SLOT}, v{r}") for r in regs]
def setrd(reg,rk=vK,rv=vV): return [I(f"v_add_u32 v{rk}, s{reg}, v{vKl}"), I(f"v_add_u32 v{rv}, s{reg}, v{vVl}")]

FA=[(b,s) for s in range(6) for b in (0,1)]
LA=[(10,0),(10,1),(10,2),(11,0),(11,1),(10,3),(11,2),(10,4),(11,3),(10,5),(11,4),(11,5)]
FB=[(0,0),(0,1),(1,0),(0,2),(1,1),(0,3),(1,2),(0,4),(1,3),(0,5),(1,4),(1,5)]
MID=[(b,s) for b in range(2,10) for s in range(6)]
GB=[(b,s) for b in (8,9,10,11) for s in (0,1,2)]+[(8,3),(8,4),(8,5),(9,3),(9,4),(9,5),(10,3),(11,3),(10,4),(11,4),(10,5),(11,5)]
LB=[(10,0),(10,1),(10,2),(11,0),(11,1),(11,2),(10,3),(11,3),(10,4),(11,4),(10,5),(11,5)]
LQ=[(b,s) for s in range(6) for b in (10,11)]
UNITS=[]
def set_units():
    UNITS[:]=[(0,)+u for u in FA+MID+LA]+[(1,)+u for u in (FB+MID[:36]+GB if cfg.G==1 else FB+MID+(LB if cfg.G==0 else LQ))]
def unit(i): return UNITS[i] if 0<=i<len(UNITS) else None

MF="v_mfma_f32_16x16x32_bf16"
def qk_mfmas(s,kpar,sb,u=None):
    o=[]
    for i in range(8):
        kt,ks=divmod(i,4); d=SB[sb]+4*kt
        x=I(f"{MF} {vr(d)}, {ar(Kf(kpar,i))}, {ar(Qr(s,ks))}, {'0' if ks==0 else vr(d)}")
        if u:
            x.meta['expect']={**{r:f"h{u[0]}KV{u[1]}" for r in x.A}, **{r:f"h{u[0]}Q{u[2]}" for r in x.B}}
            x.meta['set']={r:f"S{u}" for r in x.wr}
        o.append(x)
    return o
def pv_mfmas(s,vpar,pb,first,u=None):
    o=[I(f"{MF} {vr(O(s,dt))}, {ar(Vf(vpar,dt))}, {vr(PB[pb])}, {'0' if first else vr(O(s,dt))}") for dt in range(8)]
    o.append(I(f"{MF} {ar(Lr(s))}, {ar(ONES)}, {vr(PB[pb])}, {'0' if first else ar(Lr(s))}"))
    if u:
        cnt=sum(1 for y in UNITS[:UNITS.index(u)] if y[0]==u[0] and y[2]==u[2])
        for k,x in enumerate(o):
            e={r:f"P{u}" for r in x.B}
            if k<8: e.update({r:f"h{u[0]}KV{u[1]}" for r in x.A})
            if not first: e.update({r:f"O{u[0]}n{cnt}" for r in x.wr})
            x.meta['expect']=e; x.meta['set']={r:f"O{u[0]}n{cnt+1}" for r in x.wr}
    return o
FREE=(5,11,16)
def sm_gaps(s,sb,pb,u=None):
    S=SB[sb]; P=PB[pb]
    T=(lambda **k:k) if u else (lambda **k:{})
    f=lambda e: I(f"v_fma_f32 v{S+e}, v{S+e}, s{sC}, v{MN+s}", **T(expect={('v',S+e):f"S{u}",('v',MN+s):f"M{u and u[0]}"}))
    x=lambda e: I(f"v_exp_f32 v{S+e}, v{S+e}", **T(expect={('v',S+e):f"S{u}"}))
    c=lambda e: I(f"v_cvt_pk_bf16_f32 v{P+e//2}, v{S+e}, v{S+e+1}", **T(expect={('v',S+e):f"S{u}",('v',S+e+1):f"S{u}"}, set={('v',P+e//2):f"P{u}"}))
    if cfg.pkf:
        mb=MN+(s&~1); sel="op_sel:[0,0,1] op_sel_hi:[1,0,1]" if s&1 else "op_sel_hi:[1,0,0]"
        pf=lambda e: I(f"v_pk_fma_f32 v[{S+e}:{S+e+1}], v[{S+e}:{S+e+1}], s[{sC2}:{sC2+1}], v[{mb}:{mb+1}] {sel}", **T(expect={('v',S+e):f"S{u}",('v',MN+s):f"M{u and u[0]}"}))
        if cfg.pkf==1: return [[pf(0)],[x(0)],[x(1)],[pf(2)],[x(2)],[],[x(3)],[pf(4)],[x(4)],[x(5)],[pf(6)],[],[x(6)],[x(7)],[c(0),c(2)],[c(4),c(6)],[]]
        return [[pf(0),pf(2),pf(4),pf(6)],[x(0)],[x(1)],[],[x(2)],[],[x(3)],[],[x(4)],[x(5)],[],[],[x(6)],[x(7)],[c(0),c(2)],[c(4),c(6)],[]]
    return [[f(0),f(1)],[x(0)],[x(1)],[f(2),f(3)],[x(2)],[],[x(3)],[f(4),f(5)],[x(4)],[x(5)],[f(6),f(7)],[],[x(6)],[x(7)],[c(0),c(2)],[c(4),c(6)],[]]
def max_seq(s,sb,h):
    S=SB[sb]
    return [I(f"v_max3_f32 v{T0}, v{S}, v{S+1}, v{S+2}"), I(f"v_max3_f32 v{T3}, v{S+3}, v{S+4}, v{S+5}"),
            I(f"v_max3_f32 v{T0}, v{T0}, v{S+6}, v{S+7}"), I(f"v_max_f32 v{T0}, v{T0}, v{T3}"),
            I(f"v_mov_b32 v{T3}, v{T0}"), I(f"v_permlane16_swap_b32 v{T0}, v{T3}"),
            I(f"v_max_f32 v{T0}, v{T0}, v{T3}"), I(f"v_mov_b32 v{T3}, v{T0}"),
            I(f"v_permlane32_swap_b32 v{T0}, v{T3}"), I(f"v_max_f32 v{T0}, v{T0}, v{T3}"),
            I(f"v_mul_f32 v{MN+s}, s{sNC}, v{T0}", set={('v',MN+s):f"M{h}"})]
MAXG=[11,11,12,12,12,13,14,14,15,16,16]
def put(ex,g,items): ex.setdefault(g,[]).extend(items)

def step(i, ex=None, post=None, clump=0, sumfirst=False):
    ex=ex or {}; post=post or {}
    q,m,p=unit(i+1),unit(i),unit(i-1)
    mf=(qk_mfmas(q[2],q[1]&1,(i+1)&1,q) if q else [None]*8)+(pv_mfmas(p[2],p[1]&1,(i-1)&1,p[1]==0,p) if p else [None]*9)
    if sumfirst: mf=mf[:8]+[mf[16]]+mf[8:16]
    g=sm_gaps(m[2],i&1,i&1,m) if m else [[] for _ in range(17)]
    for src,dst in [(2,1),(9,8),(13,12),(15,14),(4,3),(7,6),(1,0)][:clump]:
        g[dst]=g[dst]+g[src]; g[src]=[]
    tailmax=[]
    if q and q[1]==0:
        ms=max_seq(q[2],(i+1)&1,q[0])
        if p and m:
            for gg,x in zip(MAXG,ms): g[gg]=g[gg]+[x]
        else:
            for x in ms:
                if x.op.startswith('v_permlane'): tailmax.append(I("s_nop 1"))
                tailmax.append(x)
    out=[I(f"; ---- step {i}: QK{q} softmax{m} PV{p}")]
    if cfg.tls and i<=30:
        w=I("s_waitcnt lgkmcnt(0)"); w.meta['skip']=True
        out+=[w]+TL()
    out+=ex.get(-1,[])
    for k in range(17):
        if mf[k] is not None: out.append(mf[k])
        out+=ex.get(k,[])+g[k]+post.get(k,[])
    return out+tailmax+ex.get(17,[])

def free_gaps(ex,lo,n,avoid=()):
    return [x for x in range(lo,17) if x not in FREE and x not in ex and x not in avoid][:n]
def spread(ex,lo,items,avoid=()):
    gs=free_gaps(ex,lo,len(items),avoid)
    while len(gs)<len(items): gs.append(gs[-1])
    for x,i in zip(gs,items): put(ex,x,[i])
def TL():
    if not cfg.tl: return []
    r=[I("s_mov_b64 exec, s[90:91]"), I("v_mov_b32 v0, s98"), I("v_mov_b32 v61, s100"), I("s_mov_b64 exec, -1"), I("s_lshl_b64 s[90:91], s[90:91], 1"), I("s_memtime s[98:99]"), I("s_memrealtime s[100:101]")]
    for x in r: x.meta['skip']=True
    return r
JN=[0]
def BAR():
    r=[I("s_barrier")]+([] if cfg.tls else TL())
    if cfg.jit:
        x=I("JITTER_PLACEHOLDER:"); x.meta['jit']=True; r.append(x)
    return r
def WV(tag,lg0=False,part=None): return I("s_waitcnt vmcnt(AUTO)"+(" lgkmcnt(0)" if lg0 else ""), auto_vm=tag, need=tag, wpart=part)
def WL(x): return I("s_waitcnt lgkmcnt(AUTO)", auto_lg=x)

def kind(x):
    if x.op.startswith('ds_read'): return 'r'
    if x.op.startswith('ds_write'): return 'w'
    if getattr(x,'dma',False): return 'd'
    if getattr(x,'store',False): return 's'
    return 'a'
def gapcost(ks,free):
    if not ks: return 0
    U={'r':4,'d':6,'w':12,'s':12,'a':4}
    c=sum(U[k] for k in ks)
    if ks[0]=='a': c-=4
    if len(ks)==1 and ks[0]=='d': c=4 if not free else 8
    for p,q in zip(ks,ks[1:]):
        if p=='w' and q=='r': c+=12
    st=12*ks.count('s')
    if free: return st+max(0,c-st-8)
    return c+4*max(0,len([k for k in ks if k!='a'])-1)
def place(ex,groups,lo=0,hi=16,free=FREE):
    groups=[g if isinstance(g,list) else [g] for g in groups]
    n=len(groups)
    if not n: return
    base={g:[kind(x) for x in ex.get(g,[]) if not x.label and not x.meta.get('skip')] for g in range(17)}
    @functools.lru_cache(None)
    def f(g,i):
        if i==n: return (0,())
        if g>hi: return (1e9,())
        best=(1e9,())
        for m in range(0,min(4,n-i)+1):
            ks=base[g]+[kind(x) for gr in groups[i:i+m] for x in gr]
            c=gapcost(ks,g in free)-gapcost(base[g],g in free)
            c+=0.01*sum(abs(g-(lo+(hi-lo)*(j+0.5)/n)) for j in range(i,i+m))
            r=f(g+1,i+m)
            if c+r[0]<best[0]: best=(c+r[0],(g,)*m+r[1])
        return best
    c,gs=f(lo,0)
    assert len(gs)==n
    for g,gr in zip(gs,groups): put(ex,g,gr)

def put_reads(ex,post,reads,r,late):
    rs=reads[4*r:4*r+4]
    nw=max(0,late-4); late=min(late,4)
    if late:
        gs=[6,8,12,13] if r<5 else [2,6,8,9]
        for k in range(late): put(post,gs[k],[rs[k]]+([I("s_waitcnt lgkmcnt(0)")] if k in [3,1,2,0][:nw] else []))
        if rs[late:]: put(ex,16 if r<5 else 11,rs[late:])
    else:
        rg=(5,16) if r<5 else (5,11)
        put(ex,rg[0],rs[:2]); put(ex,rg[1],rs[2:])
def loop_end(ex,lab,n):
    put(ex,13,[I(f"s_add_u32 s{sT}, s{sT}, 1")]); put(ex,15,[I(f"s_cmp_lt_u32 s{sT}, {n}")]); put(ex,16,[I(f"s_cbranch_scc1 {lab}")])

def blockA(b,pairs,pf,nv=None,lab=None,n=0):
    late,clump=int(pf[0]),int(pf[1])
    reads=frag_reads(0,b+1); tag=f"h0KV{b+1}"
    out=[]
    inc=4096 if pairs[0]>=20 else 8192
    if len(pairs)==2: dpos={0:[(0,0,11)],1:[(0,1,3),(0,2,11)],2:[(0,3,11)],3:[(1,0,11)],4:[(1,1,3),(1,2,11)],5:[(1,3,14)]}; advr=(0,3)
    else: dpos={0:[(0,0,11)],2:[(0,1,11)],3:[(0,2,11)],4:[(0,3,11)]}; advr=(0,)
    for r in range(6):
        ex={}; post={}
        if r==0:
            put(ex,0,[I(f"s_waitcnt vmcnt({nv}) lgkmcnt(0)", need=tag, loose_ok=True) if nv is not None else WV(tag,True)])
            put(ex,1,BAR()); put(post,4,setrd(sCur))
        put_reads(ex,post,reads,r,late)
        for (p,j,g) in dpos.get(r,[]): put(ex,g,[pdma(pairs[p],j)])
        if r in advr: spread(ex,2,[I(f"s_add_u32 m0, m0, {SLOT}"), I(f"s_cmp_ge_u32 m0, s{sEnd}"), I(f"s_cselect_b32 m0, s{sW4}, m0"), I(f"s_add_u32 s{sOff}, s{sOff}, {inc}")])
        if r==3: put(ex,15,[I(f"s_waitcnt lgkmcnt({4+late if late else 6})")])
        if r==5:
            spread(ex,0,[I(f"s_add_u32 s{sCur}, s{sCur}, {SLOT}"), I(f"s_cmp_ge_u32 s{sCur}, s{sEnd}"), I(f"s_cselect_b32 s{sCur}, s{sW4}, s{sCur}")])
            if lab: loop_end(ex,lab,n)
        out+=step(6*b+1+r,ex,post,clump)
    return out
def rampA(t=None,prof=None):
    pf=(prof or cfg.prof).split(',')
    if t is not None:
        n=12+4*t
        return blockA(2*t+2,[n,n+1],pf[0],nv=8)+blockA(2*t+3,[n+2,n+3],pf[1],nv=12,lab="LloopA1",n=2)
    o=[]
    for k,b in enumerate(range(2,6)): o+=blockA(b,[12+2*k,13+2*k],pf[k])
    return o
def staticA():
    out=[I("; ==== head A key blocks 2..9")]
    seq=[(n,j) for n in range(12,24) for j in range(4)]
    pos={4:[(0,11),(2,11),(3,11),(4,11)], 5:[(0,11),(1,11),(2,11),(3,11),(4,11)], 6:[(0,11),(1,11),(2,11),(3,11),(4,11),(5,14)],
         7:[(0,11),(1,11),(2,3),(2,11),(3,11),(4,11),(5,14)], 8:[(0,11),(1,3),(1,11),(2,11),(3,11),(4,3),(4,11),(5,14)]}
    pf=cfg.midprof.split(',')
    assert sum(int(p[2]) for p in pf)==48
    for b,p in zip(range(2,10),pf):
        late,clump,nd=int(p[0]),int(p[1]),int(p[2])
        sl=slotKV(0,b+1); base=(sl%4)*SLOT
        reads=frag_reads(0,b+1,base=base); tag=f"h0KV{b+1}"
        for r in range(6):
            ex={}; post={}
            lb=2 if (b==2 and cfg.su&4) else 0
            if r==0 and lb: put(ex,7,[I("s_waitcnt lgkmcnt(0)")])
            if r==lb:
                put(ex,0,[WV(tag,True)]); put(ex,1,BAR())
                if sl%4==0:
                    put(ex,2,[I(f"s_add_u32 s{sCur}, s{sW4}, {sl*SLOT}")]); put(post,4,setrd(sCur))
            if lb:
                if r>=2:
                    rr=reads[6*(r-2):6*(r-2)+6]
                    gs=[6,8,12,13] if r<5 else [2,6,8,9]
                    put(ex,5,rr[:2])
                    for k in range(4): put(post,gs[k] if r<5 else [6,8,9,10][k],[rr[2+k]]+([I("s_waitcnt lgkmcnt(0)")] if k in [3,1,2,0][:max(0,late-4)] else []))
            else: put_reads(ex,post,reads,r,late)
            for (rr,g) in pos[nd]:
                if rr==r:
                    n,j=seq.pop(0)
                    if j==0:
                        pre=[setm0(n%9), I(f"s_add_u32 s{sOff}, s{sOff}, {4096 if n>20 else 8192}") if n!=20 else I(f"s_add_u32 s{sOff}, s{sHn}, s{sQw}")]
                        gs=[x for x in range(g-1,-1,-1) if x not in ex and x not in FREE][:2]
                        while len(gs)<2: gs.append(g)
                        put(ex,gs[1],[pre[0]]); put(ex,gs[0],[pre[1]])
                    put(ex,g,[pdma(n,j)])
            if r==3: put(ex,15,[WL(reads[7])])
            if b==9 and r==5: put(ex,12,[I(f"s_add_u32 s{sCur}, s{sW4}, {8*SLOT}")])
            out+=step(6*b+1+r,ex,post,clump)
    assert not seq
    return out
def midA(): return [I(f"s_add_u32 s{sOff}, s{sHn}, s{sQw}"), I(f"s_sub_u32 s{sOff}, s{sOff}, 4096"), I(f"s_mov_b32 s{sT}, 0")]
def loopA2(t): return blockA(2*t+6,[20+2*t],'00',nv=24)+blockA(2*t+7,[21+2*t],'00',nv=24,lab="LloopA2",n=2)

def ostore(reg,j,pol,so,tag=None):
    x=I(f"buffer_store_dwordx4 {vr(reg)}, v{vKVB}, {sr(sO)}, s{so} offen{offs(1024*j)}"+(f" {pol}" if pol else ""))
    if tag: x.meta['expect']={r:tag for r in x.data}
    return x
DIRECT=2
def dunit(k): return (DIRECT+k//4, k%4)
def blockB(b,pf,lab=None,n=0):
    late,clump=int(pf[0]),int(pf[1])
    t=(b-2)//2
    reads=frag_reads(1,b+1); tag=f"h1KV{b+1}"
    out=[]; lead=(b%2==0)
    rp,wp=(sPo,sPe) if lead else (sPe,sPo)
    rx=sXo if lead else sXe
    nb=cfg.dl//2; loc0=(0 if lead else nb)
    dr=[]; sts=[]
    for k in range(nb):
        sub,j=dunit(cfg.dl*t+loc0+k); jj=loc0+k
        dr.append(I(f"ds_read_b128 {vr(DR[jj&1])}, v{vD[jj&1]}{offs(1024*jj)}", src=f"O{sub}", slot=slotQ(sub), private=True))
        sts.append(ostore(DR[jj&1],jj,cfg.st,sSd,f"O{sub}"))
    for r in range(6):
        ex={}; post={}
        if r==0:
            put(ex,0,[I(f"s_waitcnt vmcnt({8+nb}) lgkmcnt(0)", need=tag, loose_ok=True)])
            put(ex,1,BAR())
            put(ex,2,[I(f"s_mov_b32 m0, s{wp}")]); put(ex,3,[I(f"s_xor_b32 s{rp}, s{rp}, s{rx}")])
            put(ex,4,[I(f"s_add_u32 s{sOff}, s{sOff}, 8192")]); put(post,4,setrd(rp))
        put_reads(ex,post,reads,r,late)
        if r<4: put(ex,11,[kvdma(1,b+4,r)])
        if r==3: put(ex,15,[I(f"s_waitcnt lgkmcnt({4+late if late else 6})")])
        if r==4 and nb: put(ex,11,dr)
        if r==5 and nb:
            put(ex,1,[I("s_waitcnt lgkmcnt(2)")]); put(ex,3,[sts[0]])
            if nb==2: put(ex,10,[sts[1]])
        if r==5 and not lead:
            if nb:
                put(ex,12,[I(f"s_add_u32 s{sSd}, s{sSd}, {1024*cfg.dl}")])
                inc=f"{SLOT}" if cfg.dl==4 else f"s{sDi}"
                put(post,16 if not lab else 7,[I(f"v_add_u32 v{vD[k]}, {inc}, v{vD[k]}") for k in range(2)])
                if cfg.dl==2: put(ex,0,[I(f"s_xor_b32 s{sDi}, s{sDi}, {2048^(SLOT-2048)}")])
            if lab: loop_end(ex,lab,n)
        out+=step(72+6*b+1+r,ex,post,clump)
    return out
def loopB(t):
    pf=cfg.profB.split(',')
    return blockB(2*t+2,pf[0])+blockB(2*t+3,pf[1],lab="LloopB",n=(2 if cfg.profB0 else 3))
def peelB():
    if cfg.profBs:
        o=[]
        for b,p in zip(range(2,8),cfg.profBs.split(',')): o+=blockB(b,p)
        return o
    pf=cfg.profB0.split(',')
    return blockB(2,pf[0])+blockB(3,pf[1])

def tagexp(o,tag):
    if tag:
        h=0 if tag[0]=='O' else 1
        for x in o:
            x.meta['expect']={r:f"O{h}n12" for r in x.rd if (r[0]=='v' and r[1]>=64) or (r[0]=='a' and 224<=r[1]<248)}
    return o
def e_head(s,bad,tag,rc):
    o=[I(f"v_accvgpr_read_b32 v{T2}, a{Lr(s)}"), I(f"v_rcp_f32 v{rc}, v{T2}")]
    o.append(I(f"v_cmp_nge_f32 vcc, s{sThr}, v{T2}") if bad is not None else I("s_nop 0"))
    if bad is not None: o.append(I(f"s_or_b64 s[{bad}:{bad+1}], s[{bad}:{bad+1}], vcc"))
    return tagexp(o,tag)
def e_pk(s,dt,tag,rc):
    a=O(s,dt)
    return tagexp([I(f"v_pk_mul_f32 {vr(a+k,2)}, {vr(a+k,2)}, v[{rc}:{rc+1}] op_sel_hi:[1,0]") for k in (0,2)],tag)
def e_cvt(s,dt,tag):
    a=O(s,dt)
    return tagexp([I(f"v_cvt_pk_bf16_f32 v{a}, v{a}, v{a+1}"), I(f"v_cvt_pk_bf16_f32 v{a+1}, v{a+2}, v{a+3}")],tag)
def e_wr(s,dt,off,slot,tag,regs=vW):
    return tagexp([I(f"ds_write_b64 v{regs[dt&3]}, {vr(O(s,dt),2)}{offs(off+(dt>>2)*128)}", wslot=slot, wtag=tag)],tag)[0]
def epi_rd(s,off,slot,tag=None,regs=vR):
    m=dict(src=tag,slot=slot,private=True) if tag else {}
    return [I(f"ds_read_b128 {vr(O(s,2*j))}, v{regs[j&1]}{offs(off+1024*j)}", **m) for j in range(4)]
def epi_st(s,pol,so,tag=None): return [ostore(O(s,2*j),j,pol,so,tag) for j in range(4)]

class Epi:
    def __init__(s,rc2,so): s.rc2=rc2; s.so=so; s.tiles=[]; s.cv=[]; s.wr=[]; s.rd=[]; s.st=[]; s.info={}
    def add(s,sub,avail,off,slot,bad,tag,direct,pol,pre=()):
        s.info[sub]=dict(off=off,slot=slot,bad=bad,tag=tag,direct=direct,pol=pol,pre=list(pre))
        s.tiles+=[(avail,sub,dt) for dt in range(8)]
    def _rd(s,g):
        rd=s.rd; s.rd=[]
        for sub in rd:
            I_=s.info[sub]; r=epi_rd(sub,I_['off'],I_['slot'],I_['tag']); g+=[[x] for x in r]
            st=epi_st(sub,I_['pol'],s.so,I_['tag'])
            s.st+=[[WL(r[1]),st[0]],[st[1]],[WL(r[3]),st[2]],[st[3],I(f"s_add_u32 s{s.so}, s{s.so}, 4096")]]
    def mem(s,nst,fast=False):
        g=[]
        for _ in range(nst):
            if s.st: g.append(s.st.pop(0))
        s._rd(g)
        for sub,dt in s.wr:
            I_=s.info[sub]
            g.append(([I_['pre'][dt]] if (I_['pre'] and dt<4) else [])+[e_wr(sub,dt,I_['off'],I_['slot'],I_['tag'])])
            if dt==7 and I_['direct']: s.rd.append(sub)
        s.wr=[]
        if fast: s._rd(g)
        return g
    def chunk(s,i,n,full=False):
        take=[]
        while s.tiles and len(take)<n and s.tiles[0][0]<=i: take.append(s.tiles.pop(0)[1:])
        o=[]
        for sub,dt in s.cv: o+=e_cvt(sub,dt,s.info[sub]['tag']); s.wr.append((sub,dt))
        s.cv=[]
        heads=[]
        for sub,dt in take:
            I_=s.info[sub]; rc=T1 if sub%2==0 else s.rc2
            if dt==0: heads+=e_head(sub,I_['bad'],I_['tag'],rc)
        o=heads+o
        for sub,dt in take:
            o+=e_pk(sub,dt,s.info[sub]['tag'],T1 if sub%2==0 else s.rc2)
        k=max(1,len(take)-2) if (s.tiles and s.tiles[0][0]<=i+1 and not full) else len(take)
        for sub,dt in take[:k]: o+=e_cvt(sub,dt,s.info[sub]['tag']); s.wr.append((sub,dt))
        s.cv=take[k:]
        return o
    def done(s): return not(s.tiles or s.cv or s.wr or s.rd or s.st)

NPADS=0
PADAT={}
def SITE(k): return min(9,(k-1)*10//max(NPADS,1)-1+0)
def startA():
    o=[I("; ==== head A, first two key blocks (q-major, as Q arrives)")]
    f0=frag_reads(0,0); f1=frag_reads(0,1,base=SLOT); f2=frag_reads(0,2)
    o+=setrd(sW4)
    o.append(WV("h0Q0")); o+=BAR()
    o+=qreads(0,0)+f0[:8]
    seq=[('q',s,j) for s in (3,4,5) for j in range(4)]+[('k',b,j) for b in (2,3,4,5) for j in (0,2,1,3)]
    def dm():
        k,x,j=seq.pop(0); it=[]
        if j==0:
            it+=[setm0(slotQ(x) if k=='q' else slotKV(0,x)), I(f"s_add_u32 s{sTmp}, s{sTmp}, 4096") if k=='q' else I(f"s_add_u32 s{sOff}, s{sOff}, 8192")]
        return it+[qdma(0,x,j,sTmp) if k=='q' else kvdma(0,x,j)]
    for i in range(-1,13):
        ex={}; post={}
        if i==-1:
            put(ex,-1,[WL(f0[0])])
            if cfg.su&1:
                for k in range(7): put(ex,k,[WL(f0[k+1])])
                put(ex,7,dm()+dm()+[WV("h0KV1",part='K')]+BAR()+f1[:8])
            else:
                for k in range(8): put(ex,k,f0[8+2*k:10+2*k]+([WL(f0[k+1])] if k<7 else []))
                put(ex,7,dm()+dm()+[WV("h0KV1")]+BAR()+f1[:8])
            put(ex,17,[WL(f1[7])])
        else:
            if i==0 and cfg.su&1:
                put(ex,9,[WV("h0KV1")]+BAR()+f0[8:])
            if i==1 and cfg.su&1:
                for k in range(8): put(ex,k,f1[8+2*k:10+2*k])
            if i==2 and cfg.su&1: put(ex,7,[WL(f1[23])])
            if i==0 and not cfg.su&1:
                for k in range(8): put(ex,k,f1[8+2*k:10+2*k])
            if i==3: put(ex,0,[I("s_waitcnt lgkmcnt(0)")]); put(ex,1,BAR())
            if i%2==0 and i<=8:
                s=i//2+1; qs=qreads(0,s)
                put(ex,2 if i else 8,dm()); put(ex,5 if i else 8,dm())
                if s==4: put(post,9,bias(QREGS,True))
                put(ex,10,[WV(f"h0Q{s}")]); put(ex,11,qs[:2]); put(ex,12,[qs[2]]); put(ex,13,[qs[3]])
                if s==5: put(post,16,bias(QREGS,False))
                put(ex,17,[WL(qs[3])])
            elif i==10:
                put(ex,0,[WV("h0KV2",True,part=('K' if cfg.su&2 else None))]); put(ex,1,BAR())
                put(ex,2,[I(f"s_add_u32 s{sCur}, s{sW4}, {8*SLOT}")]); put(post,3,setrd(sCur))
                place(ex,f2[:8],lo=4,hi=12)
                put(ex,14,dm()); put(ex,16,dm())
                put(ex,17,[WL(f2[7])])
            elif i==12:
                place(ex,f2[8:],lo=0,hi=13)
                put(ex,14,dm()); put(ex,16,dm())
                put(ex,15,[I(f"s_mov_b32 s{sCur}, s{sW4}")])
            else:
                put(ex,5,dm()); put(ex,10,dm())
                if i==11 and cfg.su&2: put(ex,15,[WV("h0KV2")]); put(ex,16,BAR())
        ks=[k for k in range(1,NPADS+1) if SITE(k)==i]
        for k in ks:
            site=[I("s_mov_b64 exec, 0"), I(f"s_branch Lpad{k}"), I(f"Lret{k}:"), I("s_mov_b64 exec, -1")]
            if i%2==0 and 0<=i<=8: ex[10]=site+ex[10]
            else: put(ex,17,site)
        o+=step(i,ex,post,cfg.profS if (i>=6 and i%2==0) or i>9 else 0)
    assert not seq
    return o

def trans():
    o=[I("; ==== head A last two key blocks + head B first two, epilogue of head A streamed")]
    f11=frag_reads(0,11); g0=frag_reads(1,0); g1=frag_reads(1,1,base=SLOT); g2=frag_reads(1,2)
    E=Epi(14,sSd)
    idxA={u:k for k,u in enumerate(LA)}
    for s in range(6):
        E.add(s,60+idxA[(11,s)]+2,(s%4)*SLOT,slotQ(s),sBad,f"O{s}",s<DIRECT,cfg.st,pre=(bias(vW,True) if s==4 else ()))
    Q=lambda s:qreads(1,s)
    q5=Q(5)
    R={61:f11[:8], 62:f11[8:16], 63:f11[16:24], 64:Q(0), 65:Q(1), 67:Q(2), 68:Q(3), 69:g0[:4], 70:g0[4:8], 71:g0[8:16], 72:g1[:8], 73:g0[16:24],
       74:g1[8:18], 75:g1[18:24], 76:Q(4), 78:q5, 81:g2[:4], 82:g2[4:8], 83:g2[8:16], 84:g2[16:24]}
    D={}
    for (k,x),steps in zip([('q',4),('q',5),('k',2),('k',3),('k',4),('k',5)],
                           ([[61,62,63,64],[65,66,67,68],[69,70,70,71],[73,74,75,76],[77,78,79,80],[81,82,83,84]] if cfg.tw&2 else
                            [[61,62,63,64],[65,66,66,67],[69,70,71,72],[76,77,77,78],[79,79,80,80],[81,82,83,84]])):
        for j,i in enumerate(steps): D.setdefault(i,[]).append((k,x,j))
    for i in range(61,85):
        ex={}; post={}
        rs=R.get(i,[]); lo=0; hi=16
        mx=(unit(i+1)[1]==0)
        if i==61:
            put(ex,0,[WV("h0KV11",True)]); put(ex,1,BAR()); put(post,2,setrd(sCur)); lo=3; hi=12
            put(ex,17,[WL(f11[7])])
            put(ex,2,[I(f"s_add_u32 s{sSd}, s{sH}, s{sQw}")])
        if i==64: put(ex,0,[WV("h1Q1" if cfg.tw&1 else "h1Q3")]); put(ex,7,[WL(f11[23])]); lo=1
        if i==67 and cfg.tw&1: put(ex,0,[WV("h1Q2")]); lo=1
        if i==68 and cfg.tw&1: put(ex,0,[WV("h1Q3")]); lo=1
        if i==69:
            put(ex,0,[WV("h1KV1",True)]); put(ex,1,BAR()); put(post,2,setrd(sW4)); lo=3
            put(ex,2,[I(f"s_add_u32 s{sOff}, s{sHn}, s{sKVw}")]); put(ex,3,[I(f"s_add_u32 s{sOff}, s{sOff}, 8192")])
        if i==70: hi=12; put(ex,17,[WL(g0[7])])
        if i==72: hi=12; put(ex,17,[WL(g1[7])])
        if i==73: hi=5; put(ex,7,[WL(g0[17])]); put(ex,11,[WL(g0[23])])
        if i==75: hi=6; put(ex,7,[WL(g1[17])]); put(ex,12,[WL(g1[23])]); put(post,9,bias(QREGS,True))
        if i==76: put(ex,0,[WV("h1Q4",True)]); put(ex,1,BAR()); lo=2
        if i==77: put(ex,15,[WL(R[76][3])])
        if i==78: put(ex,0,[WV("h1Q5")]); lo=1
        if i==79: put(ex,15,[WL(q5[3])])
        if i==81:
            put(ex,0,[WV("h1KV2",True)]); put(ex,1,BAR())
            put(ex,2,[I(f"s_add_u32 s{sPe}, s{sW4}, {8*SLOT}")]); put(post,2,setrd(sPe)); lo=4
            put(ex,3,[I(f"s_add_u32 s{sPo}, s{sW4}, {slotKV(1,5)*SLOT}")])
        if i==82: hi=12; put(ex,17,[WL(g2[7])])
        if i==84: hi=12
        mem=E.mem(2)
        if cfg.tsched:
            sd=dict((int(a),int(b)) for a,b in (x.split(':') for x in cfg.tsched.split(',')))
            ch=E.chunk(i,sd.get(i,0),full=(i+1 not in sd))
        else: ch=E.chunk(i,cfg.rho)
        free=[g for g in FREE if not(g==16 and (ch or mx)) and not (g==11 and mx)]
        place(ex,rs,lo=lo,hi=hi,free=free)
        dg=[]
        for (k,x,j) in D.get(i,[]):
            pre=[setm0(slotQ(x) if k=='q' else slotKV(1,x)), I(f"s_add_u32 s{sOff}, s{sOff}, {4096 if k=='q' else 8192}")] if j==0 else []
            dg.append(pre+[qdma(1,x,j) if k=='q' else kvdma(1,x,j)])
        place(ex,dg,lo=max(lo,4),hi=16,free=free)
        qlast=max([g for g,v in ex.items() if any(x.meta.get('src','').startswith('h1Q') for x in v)]+[-1])
        need_after=any(kind(gr[-1])=='w' and any(x.meta.get('slot')==gr[-1].meta['wslot'] for x in rs) for gr in mem)
        place(ex,mem,lo=(qlast+1 if need_after else (2 if i in (69,76,81) else 0)),hi=15,free=free)
        put(post,16,ch)
        if i==83:
            put(post,16,bias(vW,False)+[I(f"v_add_u32 v{vD[k]}, {DIRECT*SLOT}, v{vR[k]}") for k in range(2)])
        if i==84:
            spread(ex,0,[I(f"s_mov_b32 s{sT}, 0"), I(f"s_movk_i32 s{sDi}, {SLOT-2048}"), I(f"s_add_u32 s{sSt}, s{sHn}, s{sQw}")])
            put(ex,17,[WV("h1KV3")])
        o+=step(i,ex,post)
    assert E.done()
    return o

def tailB():
    o=[I("; ==== head B last four key blocks: q sub-tiles 0-2 first, then 3-5; epilogue streamed")]
    base=120
    vK2,vV2=vQ,vQ+1
    def fr(b): return frag_reads(1,b,base=slotKV(1,b)*SLOT) if b!=10 else frag_reads(1,b,rk=vK2,rv=vV2)
    F=[fr(b) for b in [9,10,11,8,9,10,11]]
    R={}
    def addR(i,L): R.setdefault(i,[]).extend(L)
    for m in range(7):
        K,V=F[m][:8],F[m][8:]
        if m==0: addR(base+1,K)
        elif m<6: addR(base+3*m-1,K[:3]); addR(base+3*m,K[3:6]); addR(base+3*m+1,K[6:])
        else: addR(base+17,K)
        if m<6:
            addR(base+3*m+1,V[:(0 if m==0 else 5)]); addR(base+3*m+2,V[(0 if m==0 else 5):(8 if m==0 else 10)]); addR(base+3*m+3,V[(8 if m==0 else 10):(16 if m in (0,5) else 15)])
            if m not in (0,5): R.setdefault(base+3*m+4,[]).insert(0,V[15])
        else: addR(base+19,V[:12]); addR(base+20,V[12:])
    E=Epi(vQ+2,sSt)
    idx={u:k for k,u in enumerate(GB)}
    for s_ in range(5):
        sl=3+(s_%2)
        E.add(s_,base+idx[(11,s_)]+2,(sl-2)*SLOT,sl,sBad2,f"P{s_}",True,(cfg.st3 if (cfg.st3 and s_<cfg.n3) else cfg.st2))
    k0=3*cfg.dl; dq=list(range(k0,16)); pend=[]
    o_sub0,o_j0=dunit(k0)
    for i in range(base+1,base+25):
        ex={}; post={}; rel=i-base; lo=0; hi=16
        rs=list(R.get(i,[]))
        if rel==1:
            put(ex,0,[WV("h1KV10",True)]); put(ex,1,BAR())
            put(ex,2,[I(f"s_add_u32 s{sTmp}, s{sW4}, {8*SLOT}")])
            put(post,2,setrd(sW4)); lo=3; hi=12
            put(post,13,setrd(sTmp,vK2,vV2))
        if rel==5: put(ex,0,[WV("h1KV11")]); put(ex,1,BAR()); lo=2
        if rel==12: put(ex,3,TL())
        g=[]
        for rdx,k in pend:
            sub,j=dunit(k); jj=(k-k0)%4
            g.append([WL(rdx),ostore(DR[k&1],jj,cfg.st,sSd,f"O{sub}")]+([I(f"s_add_u32 s{sSd}, s{sSd}, 4096")] if jj==3 else []))
        pend=[]
        place(ex,g,lo=max(lo,3),hi=4)
        if dq:
            k=dq.pop(0); sub,j=dunit(k)
            x=I(f"ds_read_b128 {vr(DR[k&1])}, v{vD[j&1]}{offs((sub-o_sub0)*SLOT+1024*(j-o_j0))}", src=f"O{sub}", slot=slotQ(sub), private=True)
            pend.append((x,k)); place(ex,[x],lo=13,hi=15)
        mem=E.mem(2 if rel<21 else 4, fast=(rel>=21))
        ch=E.chunk(i,cfg.rhoG if rel<20 else cfg.rhoE)
        free=[g_ for g_ in FREE if not(g_==16 and ch)] if rel<24 else list(range(8,16))
        for m in range(7):
            K,V=F[m][:8],F[m][8:]
            needK = base+3*m+2 if m<6 else base+18
            needV = base+3*m+4 if m<6 else base+20
            if i==needK-1:
                put(ex,17,[WL(K[7])])
                if rs and rs[-1] is K[7]: hi=min(hi,13)
            if i==needV:
                late=[x for x in V if x in rs]
                if late:
                    place(ex,late,lo=0,hi=5,free=free); rs=[x for x in rs if x not in late]; lo=max(lo,6)
                    put(ex,7,[WL(V[15-len(late)])]); put(ex,8+(16-len(late))//2-1,[WL(V[15])])
                else: put(ex,7,[WL(V[15])])
        place(ex,rs,lo=lo,hi=hi,free=free)
        place(ex,mem,lo=(0 if rel<23 else 8),hi=(15 if rel<24 else 16),free=free)
        put(post,16,ch)
        o+=step(i,ex,post)
    assert not E.tiles and not E.cv and not dq and not pend and not E.wr and not E.rd
    return o+final5(E,ex)

def final5(E,ex):
    o=[]
    tag="P5"; sl=5; off=3*SLOT
    rest=[x for g in E.mem(8) for x in g]
    assert E.done()
    pad=max(0,8-len(rest)-len([x for x in ex.get(16,[])]))
    o+=rest+([I(f"s_nop {pad-1}")] if pad else [])+e_head(5,sBad2,tag,T1)
    for half in (0,1):
        for dt in range(4*half,4*half+4): o+=e_pk(5,dt,tag,T1)
        for dt in range(4*half,4*half+4): o+=e_cvt(5,dt,tag)
        for dt in range(4*half,4*half+4): o.append(e_wr(5,dt,off,sl,tag))
    rd=epi_rd(5,off,sl,tag); o+=rd
    st=epi_st(5,cfg.st2,sSt,tag)
    for j in range(4): o+=[WL(rd[j]), st[j]]
    return o

def tailK():
    o=[I("; ==== head B blocks 8,9 (parked output drained) and last two key blocks, epilogue streamed")]
    E=Epi(vQ+2,sSt)
    idx={u:k for k,u in enumerate(LB)}
    for s_ in range(5):
        sl=3+(s_%2)
        E.add(s_,132+idx[(11,s_)]+2,(sl-2)*SLOT,sl,sBad2,f"P{s_}",True,cfg.st2)
    k0=3*cfg.dl; dq=list(range(k0,16)); pend=[]
    o_sub0,o_j0=dunit(k0)
    f11=frag_reads(1,11)
    for i in range(121,145):
        ex={}; post={}; lo=0; hi=16; rs=[]
        if i<133:
            b,r=divmod(i-73,6); lead=(b%2==0)
            if r==0:
                reads=frag_reads(1,b+1); rp=sPo if lead else sPe; rx=sXo if lead else sXe
                put(ex,0,[WV(f"h1KV{b+1}",True)]); put(ex,1,BAR())
                put(ex,2,[I(f"s_xor_b32 s{rp}, s{rp}, s{rx}")]); put(post,4,setrd(rp)); lo=5
            rs=reads[4*r:4*r+4]
            if r==5: hi=11
            if r==3: put(ex,17,[WL(reads[7])])
        if i==133:
            put(ex,0,[WV("h1KV11",True)]); put(ex,1,BAR())
            put(ex,2,[I(f"s_xor_b32 s{sPo}, s{sPo}, s{sXo}")]); put(post,2,setrd(sPo)); lo=3; hi=12
            rs=f11[:8]; put(ex,17,[WL(f11[7])])
        if i==134: rs=f11[8:14]
        if i==135: rs=f11[14:20]
        if i==136: rs=f11[20:24]; hi=5; put(ex,7,[WL(f11[19])]+TL()); put(ex,13,[WL(f11[23])])
        g=[]
        for rdx,k in pend:
            sub,j=dunit(k); jj=(k-k0)%4
            g.append([WL(rdx),ostore(DR[k&1],jj,cfg.st,sSd,f"O{sub}")]+([I(f"s_add_u32 s{sSd}, s{sSd}, 4096")] if jj==3 else []))
        pend=[]
        place(ex,g,lo=3,hi=4)
        mem=E.mem(4, fast=True)
        ch=E.chunk(i,cfg.rho2)
        free=[g_ for g_ in FREE if not(g_==16 and ch)] if i<144 else list(range(8,16))
        place(ex,rs,lo=lo,hi=hi,free=free)
        if dq:
            k=dq.pop(0); sub,j=dunit(k)
            x=I(f"ds_read_b128 {vr(DR[k&1])}, v{vD[j&1]}{offs((sub-o_sub0)*SLOT+1024*(j-o_j0))}", src=f"O{sub}", slot=slotQ(sub), private=True)
            pend.append((x,k)); place(ex,[x],lo=6,hi=(16 if hi==16 else 12),free=free)
        place(ex,mem,lo=(0 if i<143 else 8),hi=(15 if i<144 else 16),free=free)
        put(post,16,ch)
        o+=step(i,ex,post)
    assert not E.tiles and not E.cv and not dq and not pend and not E.wr and not E.rd
    return o+final5(E,ex)

def tailQ():
    o=[I("; ==== head B blocks 8,9 (parked output drained) and last two key blocks q-major, epilogue right behind each sub-tile")]
    k0=3*cfg.dl; dq=list(range(k0,16)); pend=[]
    o_sub0,o_j0=dunit(k0)
    f9=frag_reads(1,9); f10=frag_reads(1,10); f11=frag_reads(1,11,base=slotKV(1,11)*SLOT,rk=vQ,rv=vQ+1)
    R={121+r:f9[4*r:4*r+4] for r in range(6)}
    R.update({127:f10[:5],128:f10[5:11],129:f10[11:17],130:f10[17:21]+f11[:2],131:f11[2:8],132:f10[21:24],133:f11[8:18],134:f11[18:24]})
    stq=[]; nxt=[]
    nd2=max(0,len(dq)-cfg.nd1)
    for i in range(121,145):
        ex={}; post={}; lo=0; hi=16; rs=list(R.get(i,[]))
        p=unit(i-1); fin=(p[1]==11)
        if i==121:
            put(ex,0,[WV("h1KV9",True)]); put(ex,1,BAR())
            put(ex,2,[I(f"s_xor_b32 s{sPo}, s{sPo}, s{sXo}")]); put(post,4,setrd(sPo)); lo=5
        if i==124: put(ex,17,[WL(f9[7])])
        if i==126: hi=11
        if i==127:
            put(ex,0,[WV("h1KV10" if cfg.bar11 else "h1KV11",True)]); put(ex,1,BAR())
            put(ex,2,[I(f"s_xor_b32 s{sPe}, s{sPe}, s{sXe}")]); put(post,4,setrd(sPe)); lo=5
        if i==128: put(post,4,setrd(sW4,vQ,vQ+1))
        if i==130:
            put(ex,17,[WL(f10[7])])
            if cfg.bar11: put(ex,6,[WV("h1KV11")]); put(ex,7,[I("s_barrier")])
        if i==131: hi=12; put(ex,17,[WL(f11[7])])
        if i==133: put(ex,7,[WL(f10[23])]+TL())
        if i==134: hi=5; put(ex,8,[WL(f11[17])]); put(ex,13,[WL(f11[23])])
        free=[g_ for g_ in FREE if not(g_==16 and fin)] if i<144 else list(range(8,16))
        g=[]
        for rdx,k in pend:
            sub,j=dunit(k); jj=(k-k0)%4
            g.append([WL(rdx),ostore(DR[k&1],jj,cfg.st,sSd,f"O{sub}")]+([I(f"s_add_u32 s{sSd}, s{sSd}, 4096")] if jj==3 else []))
        if g: place(ex,g[:1],lo=3,hi=4)
        if len(g)>1: place(ex,g[1:],lo=9,hi=10)
        two=len(pend)>1; pend=[]
        if i==130:
            place(ex,rs[:4],lo=0,hi=11,free=free); place(ex,rs[4:],lo=8,hi=16,free=free)
        else: place(ex,rs,lo=lo,hi=hi,free=free)
        n=0
        if dq: n=1
        if dq and nd2>0 and (i%2==0 or nd2>6): n=2; nd2-=1
        xs=[]
        for _ in range(min(n,len(dq))):
            k=dq.pop(0); sub,j=dunit(k)
            x=I(f"ds_read_b128 {vr(DR[k&1])}, v{vD[j&1]}{offs((sub-o_sub0)*SLOT+1024*(j-o_j0))}", src=f"O{sub}", slot=slotQ(sub), private=True)
            pend.append((x,k)); xs.append(x)
        place(ex,xs,lo=11,hi=(16 if hi==16 else 12),free=free)
        mlo=0 if i<143 else 8
        if nxt:
            place(ex,nxt,lo=mlo,hi=16,free=free); nxt=[]
        elif stq:
            place(ex,stq,lo=mlo,hi=15,free=free); stq=[]
        if fin and p[2]<5:
            s_=p[2]; tag=f"P{s_}"; sl=3+(s_%2); off=(sl-2)*SLOT
            ch=e_head(s_,sBad2,tag,T1)
            for dt in range(8): ch+=e_pk(s_,dt,tag,T1)
            for dt in range(8): ch+=e_cvt(s_,dt,tag)
            put(post,13,ch[:1]); put(post,14,ch[1:2]); put(post,16,ch[2:])
            rd=epi_rd(s_,off,sl,tag); st=epi_st(s_,cfg.st2,sSt,tag)
            nxt=[[e_wr(s_,dt,off,sl,tag)] for dt in range(8)]+[[x] for x in rd]
            stq=[[WL(rd[1]),st[0]],[st[1]],[WL(rd[3]),st[2]],[st[3],I(f"s_add_u32 s{sSt}, s{sSt}, 4096")]]
        o+=step(i,ex,post,(cfg.profT if i<133 else 0),sumfirst=fin)
    assert not dq and not pend and not nxt and not stq
    tag="P5"; sl=5; off=3*SLOT
    o+=e_head(5,sBad2,tag,T1)
    for half in (0,1):
        for dt in range(4*half,4*half+4): o+=e_pk(5,dt,tag,T1)
        for dt in range(4*half,4*half+4): o+=e_cvt(5,dt,tag)
        for dt in range(4*half,4*half+4): o.append(e_wr(5,dt,off,sl,tag))
    rd=epi_rd(5,off,sl,tag); o+=rd
    st=epi_st(5,cfg.st2,sSt,tag)
    for j in range(4): o+=[WL(rd[j]), st[j]]
    return o

def stamp(k):
    if not cfg.stamps: return []
    op="s_memrealtime" if (cfg.echo>=0 or cfg.rt) else "s_memtime"
    return [I(f"{op} s[{sStamp+4+2*k}:{sStamp+5+2*k}]", skip=True)]

def lane_consts(A,base):
    A("v_and_b32 v4, 3, v0")
    A("v_bfe_u32 v3, v0, 2, 1"); A("v_mul_u32_u24 v9, 2080, v3")
    A("v_bfe_u32 v3, v0, 3, 1"); A("v_lshl_add_u32 v9, v3, 10, v9")
    A("v_lshl_add_u32 v9, v4, 8, v9"); A("v_lshl_add_u32 v9, v2, 4, v9"); A(f"v_add_u32 v9, s{base}, v9")
    for ks in range(4):
        A(f"v_xor_b32 v3, {ks}, v4"); A(f"v_lshl_add_u32 v{vQ+ks}, v3, 6, v9")
    A("v_and_b32 v8, 15, v0"); A("v_xor_b32 v9, v8, v2"); A("v_lshlrev_b32 v10, 8, v2"); A(f"v_add_u32 v10, s{base}, v10")
    A(f"v_lshl_add_u32 v{vR[0]}, v9, 4, v10"); A("v_xor_b32 v9, 4, v9"); A(f"v_lshl_add_u32 v{vR[1]}, v9, 4, v10")
    A("v_lshlrev_b32 v10, 8, v8"); A("v_and_b32 v9, 1, v2"); A("v_lshl_add_u32 v10, v9, 3, v10"); A(f"v_add_u32 v10, s{base}, v10")
    A("v_lshrrev_b32 v9, 1, v2"); A("v_and_b32 v8, 7, v0"); A("v_xor_b32 v9, v9, v8")
    for k in range(4):
        A(f"v_xor_b32 v8, {2*k}, v9"); A(f"v_lshl_add_u32 v{vW[k]}, v8, 4, v10")

CPF_LINES=11
def prologue():
    o=[]
    A=lambda t,**k: o.append(I(t,**k))
    A(f"s_load_dwordx2 s[{sKA}:{sKA+1}], s[0:1], 8"); A(f"s_load_dwordx2 s[{sVB}:{sVB+1}], s[0:1], 16")
    A(f"s_load_dwordx2 s[{sQA}:{sQA+1}], s[0:1], 0"); A(f"s_load_dwordx2 s[{sO}:{sO+1}], s[0:1], 24")
    if cfg.stamps:
        A(f"s_load_dwordx2 s[{sDbg}:{sDbg+1}], s[0:1], 32")
        A(f"s_memtime s[{sStamp}:{sStamp+1}]"); A(f"s_memrealtime s[{sStamp+2}:{sStamp+3}]")
    if cfg.tl:
        A("s_mov_b64 s[90:91], 1"); A("s_memtime s[98:99]"); A("s_memrealtime s[100:101]")
    A("s_cmp_ge_u32 s2, 256"); A("s_cbranch_scc1 Lend")
    A("v_lshrrev_b32 v1, 6, v0"); A("v_and_b32 v0, 63, v0"); A("v_readfirstlane_b32 s3, v1")
    if cfg.pro:
        A("s_getpc_b64 s[62:63]"); A("Lpc:")
        A("v_min_u32 v2, 3, v0"); A("v_lshlrev_b32 v2, 7, v2")
        A("global_load_dword v61, v2, s[62:63] offset:64")
        A("s_lshr_b32 s4, s2, 3"); A(f"s_mul_i32 s4, s4, {128*CPF_LINES}"); A("s_add_u32 s4, s4, Lmain-Lpc")
        A(f"v_min_u32 v1, {CPF_LINES-1}, v0"); A("v_lshl_add_u32 v1, v1, 7, s4")
        A("global_load_dword v15, v1, s[62:63]")
    A(f"v_lshlrev_b32 v{vKVB}, 4, v0"); A(f"v_add_u32 v{vKVA}, 1056, v{vKVB}")
    if cfg.diag=='l2only': A("s_and_b32 s62, s2, 7"); A(f"s_mul_i32 s{sH}, s62, {2*HEADB}")
    else: A(f"s_mul_i32 s{sH}, s2, {2*HEADB}")
    A(f"s_mov_b32 s{sKA+2}, {TOTB+1056}"); A(f"s_mov_b32 s{sKA+3}, 0x20000"); A(f"s_mov_b32 s{sVB+2}, {TOTB+2080}"); A(f"s_mov_b32 s{sVB+3}, s{sKA+3}")
    A(f"s_mul_i32 s{sW4}, s3, {WREG}"); A(f"s_lshl_b32 s{sKVw}, s3, 11")
    A(f"s_add_u32 s{sOff}, s{sH}, s{sKVw}")
    o.append(setm0(0))
    A("s_waitcnt lgkmcnt(0)")
    A(f"s_sub_u32 s{sKA}, s{sKA}, 1056"); A(f"s_subb_u32 s{sKA+1}, s{sKA+1}, 0")
    o+=[kvdma(0,0,0),kvdma(0,0,2)]
    A(f"s_sub_u32 s{sVB}, s{sVB}, 2080"); A(f"s_subb_u32 s{sVB+1}, s{sVB+1}, 0")
    if not cfg.su&1: o+=[kvdma(0,0,1),kvdma(0,0,3)]
    if cfg.cpf and not cfg.pro:
        A("s_getpc_b64 s[62:63]")
        if cfg.pads: A("Lpc:"); A("s_add_u32 s62, s62, Lmain-Lpc"); A("s_addc_u32 s63, s63, 0")
        A("s_lshr_b32 s4, s2, 3"); A(f"s_mul_i32 s4, s4, {128*CPF_LINES}")
        A(f"v_min_u32 v1, {CPF_LINES-1}, v0"); A("v_lshl_add_u32 v1, v1, 7, s4")
        A("global_load_dword v61, v1, s[62:63]")
    A("v_lshrrev_b32 v2, 4, v0"); A("v_lshlrev_b32 v4, 6, v2"); A(f"v_xor_b32 v{vQB}, v{vKVB}, v4"); A(f"v_add_u32 v{vQA}, 1056, v{vQB}")
    A(f"s_mul_i32 s{sQw}, s3, 24576"); A(f"s_add_u32 s{sTmp}, s{sH}, s{sQw}")
    A(f"s_sub_u32 s{sQB}, s{sQA}, 32"); A(f"s_subb_u32 s{sQB+1}, s{sQA+1}, 0")
    A(f"s_sub_u32 s{sQA}, s{sQA}, 1056"); A(f"s_subb_u32 s{sQA+1}, s{sQA+1}, 0")
    o.append(setm0(slotQ(0)))
    A(f"s_mov_b64 s[{sQA+2}:{sQA+3}], s[{sKA+2}:{sKA+3}]"); A(f"s_mov_b32 s{sQB+2}, {TOTB+32}"); A(f"s_mov_b32 s{sQB+3}, s{sKA+3}")
    o+=[qdma(0,0,j,sTmp) for j in range(4)]
    if cfg.su&1:
        o.append(setm0(1)); A(f"s_add_u32 s4, s{sOff}, 8192")
        o+=[kvdma(0,1,j,4) for j in (0,2)]
        o+=[setm0(0),I("s_nop 0"),kvdma(0,0,1),kvdma(0,0,3)]
    o.append(setm0(1)); A(f"s_add_u32 s{sOff}, s{sOff}, 8192")
    o+=[kvdma(0,1,j) for j in ((1,3) if cfg.su&1 else (0,2,1,3))]
    if cfg.pro: o+=[I("s_branch Lmain"), I(".p2align 12"), I("Lmain:")]
    A(f"s_mov_b32 s{sO+2}, {0 if cfg.diag else TOTB}"); A(f"s_mov_b32 s{sO+3}, 0x20000")
    A(f"s_add_u32 s{sHn}, s{sH}, {HEADB}")
    A(f"s_mov_b32 s{sC}, 0x3e0293ee"); A(f"s_mov_b32 s{sNC}, 0xbe0293ee"); A(f"s_mov_b32 s{sThr}, 0x4e800000")
    if cfg.pkf: A(f"s_mov_b32 s{sC2}, 0x3e0293ee"); A(f"s_mov_b32 s{sC2+1}, 0x3e0293ee")
    A(f"s_add_u32 s{sEnd}, s{sW4}, {NSLOT*SLOT}")
    A(f"s_mov_b32 s{sT}, 0")
    if cfg.profO or cfg.oddB: A("s_getreg_b32 s95, hwreg(HW_REG_XCC_ID)")
    A(f"s_mov_b64 s[{sBad}:{sBad+1}], 0"); A(f"s_mov_b64 s[{sBad2}:{sBad2+1}], 0")
    if cfg.tw&2:
        A(f"s_add_u32 s{sXe}, s{sW4}, {8*SLOT}"); A(f"s_xor_b32 s{sXe}, s{sXe}, s{sW4}")
        A(f"s_add_u32 s{sXo}, s{sW4}, {SLOT}"); A(f"s_add_u32 s4, s{sW4}, {2*SLOT}"); A(f"s_xor_b32 s{sXo}, s{sXo}, s4")
    else:
        A(f"s_add_u32 s{sXe}, s{sW4}, {8*SLOT}"); A(f"s_add_u32 s4, s{sW4}, {SLOT}"); A(f"s_xor_b32 s{sXe}, s{sXe}, s4")
        A(f"s_add_u32 s4, s{sW4}, {2*SLOT}"); A(f"s_xor_b32 s{sXo}, s4, s{sW4}")
    A("v_and_b32 v3, 7, v0"); A(f"v_mul_u32_u24 v{vKl}, 2080, v3")
    A("v_bfe_u32 v3, v0, 3, 1"); A(f"v_lshl_add_u32 v{vKl}, v3, 8, v{vKl}")
    A(f"v_lshl_add_u32 v{vKl}, v2, 4, v{vKl}"); A(f"v_subrev_u32 v{vKl}, s{sW4}, v{vKl}")
    A("v_bfe_u32 v3, v0, 2, 3"); A(f"v_mul_u32_u24 v{vVl}, 2080, v3")
    A("v_lshrrev_b32 v3, 5, v0"); A(f"v_lshl_add_u32 v{vVl}, v3, 8, v{vVl}")
    A("v_and_b32 v4, 3, v0"); A(f"v_lshl_add_u32 v{vVl}, v4, 3, v{vVl}")
    A(f"v_add_u32 v{vVl}, 1024, v{vVl}"); A(f"v_subrev_u32 v{vVl}, s{sW4}, v{vVl}")
    A("v_mov_b32 v11, 0x3f803f80"); A("v_cmp_eq_u32 vcc, 0, v4")
    lane_consts(A,4)
    A("v_cndmask_b32 v11, 0, v11, vcc")
    for k in range(4): A(f"v_accvgpr_write_b32 a{ONES+k}, v11")
    for s in (1,2):
        o.append(setm0(slotQ(s))); A(f"s_add_u32 s{sTmp}, s{sTmp}, 4096")
        o+=[qdma(0,s,j,sTmp) for j in range(4)]
    return o

def slow_path():
    o=[]
    A=lambda t,**k: o.append(I(t,**k))
    sP=sCur
    A("; ==== fallback: exact two-pass softmax with the true row max for this wave's 96 rows of the head at byte offset s44")
    A("Lslow:")
    A("s_waitcnt vmcnt(0) lgkmcnt(0)")
    A(f"s_mul_i32 s{sP}, s3, {SLOT}")
    A(f"s_add_u32 s{sTmp}, s{sP}, s{sW4}")
    o+=setrd(sTmp)
    A(f"v_lshrrev_b32 v0, 4, v{vKVB}"); A("v_lshrrev_b32 v2, 4, v0")
    lane_consts(A,sTmp)
    A(f"s_mov_b32 m0, s{sTmp}")
    A(f"s_add_u32 s{sOff}, s{sH}, s{sQw}")
    for s in range(6):
        o+=[qdma(0,s,j) for j in range(4)]
        A("s_waitcnt vmcnt(0)")
        for ks in range(4): A(f"ds_read_b128 {ar(Qr(s,ks))}, v{vQ+ks}")
        A(f"s_add_u32 s{sOff}, s{sOff}, 4096")
        A("s_waitcnt lgkmcnt(0)")
    for s in range(6): A(f"v_mov_b32 v{MN+s}, 0xff800000")
    def loadkv():
        for j in range(4):
            A(f"s_add_u32 m0, s{sP}, {j*WREG}"); A("s_nop 0")
            o.extend(kvdma(0,0,jj) for jj in range(4))
            A(f"s_add_u32 s{sOff}, s{sOff}, 2048")
        A("s_waitcnt vmcnt(0)")
    A(f"s_mov_b32 s{sOff}, s{sH}"); A(f"s_mov_b32 s{sT}, 0")
    A("Lslow1:")
    loadkv()
    o+=frag_reads(0,0,tags=False)[:8]
    A("s_waitcnt lgkmcnt(0)")
    for s in range(6):
        o+=qk_mfmas(s,0,0)
        A("s_nop 7")
        for e in range(0,8,2): A(f"v_max3_f32 v{MN+s}, v{MN+s}, v{SB[0]+e}, v{SB[0]+e+1}")
    A(f"s_add_u32 s{sT}, s{sT}, 1"); A(f"s_cmp_lt_u32 s{sT}, 12"); A("s_cbranch_scc1 Lslow1")
    for s in range(6):
        m=MN+s
        A(f"v_mov_b32 v{T1}, v{m}"); A("s_nop 1"); A(f"v_permlane16_swap_b32 v{m}, v{T1}"); A(f"v_max_f32 v{m}, v{m}, v{T1}")
        A(f"v_mov_b32 v{T1}, v{m}"); A("s_nop 1"); A(f"v_permlane32_swap_b32 v{m}, v{T1}"); A(f"v_max_f32 v{m}, v{m}, v{T1}")
        A(f"v_mul_f32 v{m}, s{sNC}, v{m}")
    for r in range(64,256): A(f"v_mov_b32 v{r}, 0")
    for r in range(224,248): A(f"v_accvgpr_write_b32 a{r}, 0")
    A(f"s_mov_b32 s{sOff}, s{sH}"); A(f"s_mov_b32 s{sT}, 0")
    A("Lslow2:")
    loadkv()
    fr=frag_reads(0,0,tags=False)
    for k in range(3):
        o+=fr[8*k:8*k+8]; A("s_waitcnt lgkmcnt(0)")
    for s in range(6):
        o+=qk_mfmas(s,0,0)
        A("s_nop 7")
        for gp in sm_gaps(s,0,0): o+=gp
        A("s_nop 1")
        o+=pv_mfmas(s,0,0,False)
    A(f"s_add_u32 s{sT}, s{sT}, 1"); A(f"s_cmp_lt_u32 s{sT}, 12"); A("s_cbranch_scc1 Lslow2")
    A("s_nop 7")
    A(f"s_add_u32 s{sSt}, s{sH}, s{sQw}")
    for s in range(6):
        o+=e_head(s,None,None,T1)
        for dt in range(8): o+=e_pk(s,dt,None,T1)
        for dt in range(8): o+=e_cvt(s,dt,None)
        for dt in range(8): o.append(e_wr(s,dt,0,None,None))
        o+=epi_rd(s,0,None)+[I("s_waitcnt lgkmcnt(0)")]+epi_st(s,"",sSt)
        A(f"s_add_u32 s{sSt}, s{sSt}, 4096")
    A("s_branch Lslow_ret")
    for x in o:
        for k in ('tag','slot','wslot','wtag'): x.meta.pop(k,None)
    return o

def resolve(trace):
    vm=[]; lg=[]
    for x in trace:
        if x.label or x.meta.get('skip'): continue
        if 'auto_vm' in x.meta:
            idx=[k for k,y in enumerate(vm) if y.meta.get('tag')==x.meta['auto_vm'] and x.meta.get('wpart') in (None,y.meta.get('part'))]
            n=min(63,len(vm)-1-max(idx)); x.text=x.text.replace("vmcnt(AUTO)",f"vmcnt({n})"); x.meta['loose_ok']=True
        if 'auto_lg' in x.meta:
            k=[i for i,y in enumerate(lg) if y is x.meta['auto_lg']]
            assert k, "WL target not issued before wait: "+x.meta['auto_lg'].text
            n=min(15,len(lg)-1-k[0]); x.text=x.text.replace("lgkmcnt(AUTO)",f"lgkmcnt({n})")
        if x.kind=='vmem': vm.append(x)
        if x.kind=='ds': lg.append(x)

def build():
    set_units()
    P=prologue(); SA=startA(); TR=trans(); TB=[tailK,tailB,tailQ][cfg.G]()
    txt=lambda L:[x.text for x in L if not x.text.startswith(';')]
    assert txt(loopA2(0))==txt(loopA2(1))
    tb=range(1,3) if cfg.profB0 else range(3)
    for t in tb: assert txt(loopB(t))==txt(loopB(tb[0]))
    if cfg.loopR:
        assert txt(rampA(0))==txt(rampA(1)); RAt=rampA(0)+rampA(1); RA=[I(".p2align 3"),I("LloopA1:")]+rampA(0)
    else: RA=RAt=rampA()
    PB_=peelB() if cfg.profB0 else []
    extra=[]
    if cfg.profO:
        RO=rampA(prof=cfg.profO)
        t2=prologue()+startA()+RO+midA()+loopA2(0); resolve(t2)
        for p in check_trace([x for x in t2 if not x.meta.get('skip')]): print("ODD:",p)
        RA=[I("s_bitcmp1_b32 s95, 0"), I("s_cbranch_scc1 LrampO")]+RA+[I("s_branch LrampJ"), I("LrampO:")]+RO+[I("LrampJ:")]
    if cfg.midprof:
        MA=staticA(); trace=P+SA+MA+TR+PB_
    else: trace=P+SA+RAt+midA()+loopA2(0)+loopA2(1)+TR+PB_
    if not cfg.profBs:
        for t in tb: trace+=loopB(t)
    trace+=TB
    resolve(trace)
    probs=check_trace([x for x in trace if not x.meta.get('skip')])
    sp=slow_path()
    probs+=check_trace(sp+slow_path())
    seen=set()
    for p in probs:
        if p not in seen: print(p); seen.add(p)
    nd=(lambda L:[x for x in L if not getattr(x,'dma',False)]) if cfg.diag=='nodma' else (lambda L:L)
    if cfg.pads and not cfg.pro: P=P+[I("s_branch Lmain"), I(".p2align 12"), I("Lmain:")]
    if cfg.midprof: S=list(P)+stamp(0)+SA+stamp(1)+nd(MA)
    else: S=list(P)+stamp(0)+SA+stamp(1)+nd(RA)+midA()+[I(".p2align 3"),I("LloopA2:")]+nd(loopA2(0))
    if cfg.oddB: PB_=[I("s_bitcmp1_b32 s95, 0"), I(f"s_cselect_b32 s{sT}, -1, 0"), I("s_cbranch_scc1 LloopB")]+PB_
    S+=stamp(2)+nd(TR)+stamp(3)+nd(PB_)+([I(".p2align 3"),I("LloopB:")]+nd(loopB(tb[0])) if not cfg.profBs else [])
    S+=stamp(4)+TB+stamp(5)
    if cfg.slow:
        S+=[I(f"s_or_b64 s[62:63], s[{sBad}:{sBad+1}], s[{sBad2}:{sBad2+1}]"), I("s_barrier"), I("s_cbranch_scc1 Lslow_entry")]
    S+=[I("Lfin:")]
    if cfg.stamps:
        S+=[I("s_waitcnt vmcnt(0)"), I(f"s_memtime s[{sStamp+16}:{sStamp+17}]"), I(f"s_memrealtime s[{sStamp+18}:{sStamp+19}]"), I("s_waitcnt lgkmcnt(0)")]
        if cfg.echo>=0:
            esrc=[sStamp+2]+[sStamp+4+2*k for k in range(6)]+[sStamp+18]
            if cfg.echox>=0: S+=[I("s_getreg_b32 s62, hwreg(HW_REG_XCC_ID)"), I("s_and_b32 s62, s62, 7"), I(f"s_cmp_lg_u32 s62, {cfg.echox}"), I("s_cbranch_scc1 Lend")]
            S+=[I(f"s_add_u32 s62, s{esrc[cfg.echo]}, 10000"), I("Lspin:"), I("s_sleep 2"), I("s_memrealtime s[88:89]"), I("s_waitcnt lgkmcnt(0)"),
                I("s_sub_u32 s63, s88, s62"), I("s_cmp_lt_i32 s63, 0"), I("s_cbranch_scc1 Lspin")]
        S+=[I(f"v_mov_b32 v8, s{sStamp+2}"), I(f"v_mov_b32 v9, s{sStamp+18}")]
        srcs=[sStamp+4+2*k for k in range(6)]+[sStamp+(18 if cfg.rt else 16)]
        for k,r in enumerate(srcs):
            S+=[I(f"s_sub_u32 s{sTmp}, s{r}, s{sStamp+(2 if cfg.rt else 0)}"), I(f"v_mov_b32 v{10+k}, s{sTmp}")]
        S+=[I("v_mov_b32 v17, 0"), I("v_mov_b32 v18, 0"), I("s_getreg_b32 s62, hwreg(HW_REG_XCC_ID)"), I("v_mov_b32 v19, s62")]
        S+=[I(f"s_mov_b32 s28, s{sDbg}"), I(f"s_mov_b32 s29, s{sDbg+1}"), I(f"s_mov_b32 s30, {cfg.dbgsz}"), I("s_mov_b32 s31, 0x20000"),
            I("s_lshl_b32 s62, s2, 8"), I("s_lshl_b32 s63, s3, 6"), I("s_add_u32 s62, s62, s63"), I("v_mov_b32 v1, 0")]
        if cfg.tl:
            S+=TL()+[I("s_waitcnt lgkmcnt(0)")]+TL()+[I("s_lshl_b32 s61, s62, 3"), I("s_add_u32 s61, s61, 65536"), I(f"v_lshrrev_b32 v5, 2, v{vKVB}"),
                I("buffer_store_dword v0, v5, s[28:31], s61 offen"), I("buffer_store_dword v61, v5, s[28:31], s61 offen offset:256")]
        S+=[I("s_mov_b64 exec, 1"),
            I("buffer_store_dwordx4 v[8:11], v1, s[28:31], s62 offen"), I("buffer_store_dwordx4 v[12:15], v1, s[28:31], s62 offen offset:16"), I("buffer_store_dwordx4 v[16:19], v1, s[28:31], s62 offen offset:32")]
    S+=[I("Lend:"), I("s_endpgm")]
    if cfg.slow:
        S+=[I("Lslow_entry:"), I(f"s_cmp_lg_u64 s[{sBad}:{sBad+1}], 0"), I("s_cbranch_scc1 Lslow"),
            I("Lslow_ret:"), I(f"s_cmp_eq_u64 s[{sBad2}:{sBad2+1}], 0"), I("s_cbranch_scc1 Lfin"),
            I(f"s_mov_b64 s[{sBad2}:{sBad2+1}], 0"), I(f"s_mov_b32 s{sH}, s{sHn}")]
        S+=sp
    else: S+=[I(".fill 2048, 4, 0xbf810000")]
    return S, bool([p for p in probs if not p.startswith("NOTE")])

from gen import FTR
HDR="""; Kernarg layout for this problem (48 bytes, ptrs only, base s[0:1]):
;   offset   0: d_in[0] q  shape=(16, 32, 384, 128) dtype=bfloat16 strides=(3145728, 98304, 256, 2) contiguous=True
;   offset   8: d_in[1] k  shape=(16, 32, 384, 128) dtype=bfloat16 strides=(3145728, 98304, 256, 2) contiguous=True
;   offset  16: d_in[2] v  shape=(16, 32, 384, 128) dtype=bfloat16 strides=(3145728, 98304, 256, 2) contiguous=True
; @launch grid=(256,1,1) block=(256,1,1) lds=%d
;
; softmax(Q K^T / sqrt(128)) V for 512 heads of 384 x 128.   (emitted by my own generator script)
; -------------------------------------------------------------------------------------------------
; * One workgroup (4 waves, one per SIMD, 512 registers each) per CU handles heads 2*wg (A) and 2*wg+1 (B).
; * v_mfma_f32_16x16x32_bf16 throughout:  S^T = K Q^T (8 MFMA),  O^T += V^T P^T (8 MFMA),  row sums l += 1^T P^T (1 MFMA).
; * Q/K/V stream global -> LDS with buffer_load ... lds through nine 16640-byte slots (padded so that the K b128 reads and the
;   transposing V reads are bank-conflict free); K/V fragments are double buffered in AGPRs, O lives in v64..v255.
; * Softmax guard: p = exp2(c*s - c*m) with m = the row's true max over its first key block (so l >= 1, nothing underflows that the
;   two-pass softmax that subtracts the true max over all 384 keys.
;   part of head A's output is parked in LDS and written while head B no longer loads.
; * Lpad<k>/Lret<k>: while waiting for the first loads each wave touches the first line of every 4 KiB page of the kernel once
;   (branch there with EXEC=0 and straight back, no memory instruction runs) because instruction prefetch stops at page ends.
.amdgcn_target "amdgcn-amd-amdhsa--gfx950"
.text
.globl %s
.p2align 8
.type %s,@function
%s:
"""
def isize(x):
    return SZ[x.text]
def write(fn):
    S,bad=build()
    if cfg.pads and SZ:
        out=[]; addr=None; k=1
        for n,x in enumerate(S):
            out.append(x)
            if x.text=="Lmain:": addr=0; continue
            if addr is None: continue
            if x.text==".p2align 3": addr=(addr+7)&~7; continue
            if x.label: continue
            a0=addr; addr+=SZ.get(x.text,4)
            if k<=NPADS and addr>=k*cfg.pads+cfg.padoff and (x.kind=='mfma' or addr>=k*cfg.pads+cfg.padoff+24) and not x.op.startswith('s_cbranch') and not x.op.startswith('s_branch') and x.text!='s_mov_b64 exec, 0':
                out+=[I(f"Lpad{k}:"), I(f"s_cbranch_execz Lret{k}")]; addr+=4; k+=1
        assert k==NPADS+1,(k,NPADS)
        S=out
    with open(fn,"w") as f:
        f.write(HDR%(LDSB,NAME,NAME,NAME))
        jn=0
        for x in S:
            t=x.text
            if x.meta.get('jit'):
                jn+=1
                f.write(f"    s_cmp_eq_u32 s3, {(jn*cfg.jit)%4}\n    s_cbranch_scc0 Ljit{jn}\n    s_sleep {20+10*(jn%5)}\nLjit{jn}:\n"); continue
            if cfg.drop=='exp' and t.startswith('v_exp'): t=t.replace('v_exp_f32','v_mov_b32')
            if cfg.drop=='exp0' and t.startswith('v_exp'): continue
            if cfg.drop=='fma' and t.startswith('v_fma'): continue
            if cfg.drop=='sum' and t.startswith(MF+' a['): continue
            f.write((t if (t.endswith(':') or t.startswith('.')) else "    "+t)+"\n")
        f.write(FTR%NAME)
    return bad
SZ={}
def sizes(co):
    import subprocess
    out=subprocess.run(["llvm-objdump","-d","--mcpu=gfx950",co],capture_output=True,text=True).stdout
    sym={m.group(2):int(m.group(1),16) for m in re.finditer(r"^([0-9a-f]+) <(\w+)>:",out,re.M)}
    last=int(re.findall(r"// ([0-9A-F]{12}):",out)[-1],16)
    st=sym.get('Lmain',sym[NAME])
    return sym.get('Lfin',sym.get('Lend'))-st, last+4-st
if __name__=="__main__":
    ap=argparse.ArgumentParser()
    ap.add_argument("out"); ap.add_argument("opts",nargs="*")
    a=ap.parse_args()
    for kv in a.opts:
        k,v=kv.split("=",1)
        cur=getattr(cfg,k)
        setattr(cfg,k, (v in("1","True","true")) if isinstance(cur,bool) else (int(v) if isinstance(cur,int) else v.replace("+"," ")))
    from mkco import build as mk
    for it in range(4):
        bad=write(a.out); co=mk(a.out); hot,tot=sizes(co)
        need=-(-hot//(32*128))
        done=(need==CPF_LINES)
        CPF_LINES=need
        if cfg.pads:
            import subprocess
            lst=subprocess.run(["llvm-objdump","-d","--mcpu=gfx950",co],capture_output=True,text=True).stdout
            lst=lst[lst.index("<Lmain>:"):]
            enc=[len(m.group(1).split())*4 for m in re.finditer(r"// [0-9A-F]{12}: ([0-9A-F ]+)",lst)]
            src=open(a.out).read(); src=src[src.index("Lmain:\n"):].split("\n")[1:]
            j=0; addr=0
            for ln in src:
                t=ln.strip()
                if t.startswith(".section"): break
                if t==".p2align 3":
                    if addr%8: j+=1; addr+=4
                    continue
                if not t or t.startswith(";") or t.endswith(":") or t.startswith("."): continue
                SZ[t]=enc[j]; addr+=enc[j]; j+=1
            np_=(hot-64-cfg.padoff)//cfg.pads
            if np_!=NPADS: done=False
            NPADS=np_
        if done and it>0: break
    assert 32*128*CPF_LINES+256<=tot, (hot,tot)
    print(co, "PROBLEMS" if bad else "clean", "hot",hot,"total",tot,"cpf lines",CPF_LINES)
```

```python
import sys, argparse, re, functools
sys.path.insert(0,'work')
from asmlib import I, check_trace
NAME="standalone__gqa_softmax__near_ridge_kernel"
SLOT=16640; WREG=4160; NSLOT=9
LDSB=NSLOT*SLOT
HEADB=98304
TOTB=50331648

class Cfg:
    ld="nt"; st="sc1"; st2="nt"
    stamps=False; rt=False; tl=False; dbgsz=0x400000; echo=-1; diag=''
    slow=True; cpf=True
    rho=3; rhoG=3; rhoE=8
    prof='47,47,44,40'
    loopR=False
    profB='00,00'
    profB0='40,20'
    profO=''
    oddB=False
    midprof=''
    profS=0
    G=1
    rho2=8; nd1=13
    tls=False
    profBs=''
    profT=0
    pro=0
    jit=0
    su=0
    bar11=0
    pads=0
    padoff=0
    st3=''; n3=3
    pkf=0
    drop=''
    dl=0
cfg=Cfg()

def O(s,dt): return 64+32*s+4*dt
SB=[16,24]; PB=[32,36]
MN=40
vK,vV,vKl,vVl=46,47,48,49
vD=[50,51]
vQ=52
vR=[56,63]
vKVA,vKVB,vQA,vQB=57,58,59,60
vW=[5,6,7,62]
T0,T1,T2,T3=1,2,3,4
DR=[8,12]
QREGS=[vQ+k for k in range(4)]
def Qr(s,ks): return 16*s+4*ks
def Kf(par,i): return 96+32*par+4*i
def Vf(par,dt): return 160+32*par+4*dt
def Lr(s): return 224+4*s
ONES=248
sKA,sVB,sQA,sQB,sO=8,12,16,20,24
sOff,sCur,sC,sH,sW4,sT,sPe,sEnd,sKVw,sQw,sThr=40,42,43,44,45,46,47,48,49,50,51
sBad=52; sBad2=96
sTmp,sSt,sNC,sHn,sDbg=55,57,58,59,60
sSd,sDi=41,54
sStamp=64
sPo,sXe,sXo=92,93,94
sC2=38

def vr(a,n=4): return f"v[{a}:{a+n-1}]"
def ar(a,n=4): return f"a[{a}:{a+n-1}]"
def sr(a,n=4): return f"s[{a}:{a+n-1}]"
def offs(o): return f" offset:{o}" if o else ""

def slotKV(h,b):
    if b<2: return b
    if h==0: return (6+b)%9
    return [8,0,1,2][(b-2)%4]
def slotQ(s): return 2+s
UOFF=[0,1024,2080,3104]
def dma(j,tag,slot,q,off=sOff):
    A,B,va,vb=(sQA,sQB,vQA,vQB) if q else (sKA,sVB,vKVA,vKVB)
    p=f" {cfg.ld}" if cfg.ld else ""
    return I(f"buffer_load_dwordx4 v{[va,va,vb,vb][j]}, {sr([A,B,A,B][j])}, s{off} offen{offs(UOFF[j])}{p} lds", tag=tag, slot=slot, part=(None if q else 'KV'[j&1]))
def kvdma(h,b,j,off=sOff): return dma(j,f"h{h}KV{b}",slotKV(h,b),False,off)
def qdma(h,s,j,off=sOff): return dma(j,f"h{h}Q{s}",slotQ(s),True,off)
def pdma(n,j):
    if n<18: return kvdma(0,n-6,j)
    if n<20: return kvdma(1,n-18,j)
    return qdma(1,n-20,j)
def setm0(slot): return I(f"s_add_u32 m0, s{sW4}, {slot*SLOT}") if slot else I(f"s_mov_b32 m0, s{sW4}")
def frag_reads(h,b,base=0,rk=vK,rv=vV,tags=True):
    m=dict(src=f"h{h}KV{b}",slot=slotKV(h,b)) if tags else {}
    par=b&1
    return [I(f"ds_read_b128 {ar(Kf(par,i))}, v{rk}{offs(base+(i//4)*512+(i%4)*64)}",part='K',**m) for i in range(8)]+\
           [I(f"ds_read_b64_tr_b16 {ar(Vf(par,i//2)+2*(i%2),2)}, v{rv}{offs(base+(i%2)*512+(i//2)*32)}",part='V',**m) for i in range(16)]
def qreads(h,s): return [I(f"ds_read_b128 {ar(Qr(s,ks))}, v{vQ+ks}{offs((s%4)*SLOT)}", src=f"h{h}Q{s}", slot=slotQ(s), private=True) for ks in range(4)]
def bias(regs,up): return [I(f"{'v_add_u32' if up else 'v_subrev_u32'} v{r}, {4*SLOT}, v{r}") for r in regs]
def setrd(reg,rk=vK,rv=vV): return [I(f"v_add_u32 v{rk}, s{reg}, v{vKl}"), I(f"v_add_u32 v{rv}, s{reg}, v{vVl}")]

FA=[(b,s) for s in range(6) for b in (0,1)]
LA=[(10,0),(10,1),(10,2),(11,0),(11,1),(10,3),(11,2),(10,4),(11,3),(10,5),(11,4),(11,5)]
FB=[(0,0),(0,1),(1,0),(0,2),(1,1),(0,3),(1,2),(0,4),(1,3),(0,5),(1,4),(1,5)]
MID=[(b,s) for b in range(2,10) for s in range(6)]
GB=[(b,s) for b in (8,9,10,11) for s in (0,1,2)]+[(8,3),(8,4),(8,5),(9,3),(9,4),(9,5),(10,3),(11,3),(10,4),(11,4),(10,5),(11,5)]
LB=[(10,0),(10,1),(10,2),(11,0),(11,1),(11,2),(10,3),(11,3),(10,4),(11,4),(10,5),(11,5)]
LQ=[(b,s) for s in range(6) for b in (10,11)]
UNITS=[]
def set_units():
    UNITS[:]=[(0,)+u for u in FA+MID+LA]+[(1,)+u for u in (FB+MID[:36]+GB if cfg.G==1 else FB+MID+(LB if cfg.G==0 else LQ))]
def unit(i): return UNITS[i] if 0<=i<len(UNITS) else None

MF="v_mfma_f32_16x16x32_bf16"
def qk_mfmas(s,kpar,sb,u=None):
    o=[]
    for i in range(8):
        kt,ks=divmod(i,4); d=SB[sb]+4*kt
        x=I(f"{MF} {vr(d)}, {ar(Kf(kpar,i))}, {ar(Qr(s,ks))}, {'0' if ks==0 else vr(d)}")
        if u:
            x.meta['expect']={**{r:f"h{u[0]}KV{u[1]}" for r in x.A}, **{r:f"h{u[0]}Q{u[2]}" for r in x.B}}
            x.meta['set']={r:f"S{u}" for r in x.wr}
        o.append(x)
    return o
def pv_mfmas(s,vpar,pb,first,u=None):
    o=[I(f"{MF} {vr(O(s,dt))}, {ar(Vf(vpar,dt))}, {vr(PB[pb])}, {'0' if first else vr(O(s,dt))}") for dt in range(8)]
    o.append(I(f"{MF} {ar(Lr(s))}, {ar(ONES)}, {vr(PB[pb])}, {'0' if first else ar(Lr(s))}"))
    if u:
        cnt=sum(1 for y in UNITS[:UNITS.index(u)] if y[0]==u[0] and y[2]==u[2])
        for k,x in enumerate(o):
            e={r:f"P{u}" for r in x.B}
            if k<8: e.update({r:f"h{u[0]}KV{u[1]}" for r in x.A})
            if not first: e.update({r:f"O{u[0]}n{cnt}" for r in x.wr})
            x.meta['expect']=e; x.meta['set']={r:f"O{u[0]}n{cnt+1}" for r in x.wr}
    return o
FREE=(5,11,16)
def sm_gaps(s,sb,pb,u=None):
    S=SB[sb]; P=PB[pb]
    T=(lambda **k:k) if u else (lambda **k:{})
    f=lambda e: I(f"v_fma_f32 v{S+e}, v{S+e}, s{sC}, v{MN+s}", **T(expect={('v',S+e):f"S{u}",('v',MN+s):f"M{u and u[0]}"}))
    x=lambda e: I(f"v_exp_f32 v{S+e}, v{S+e}", **T(expect={('v',S+e):f"S{u}"}))
    c=lambda e: I(f"v_cvt_pk_bf16_f32 v{P+e//2}, v{S+e}, v{S+e+1}", **T(expect={('v',S+e):f"S{u}",('v',S+e+1):f"S{u}"}, set={('v',P+e//2):f"P{u}"}))
    if cfg.pkf:
        mb=MN+(s&~1); sel="op_sel:[0,0,1] op_sel_hi:[1,0,1]" if s&1 else "op_sel_hi:[1,0,0]"
        pf=lambda e: I(f"v_pk_fma_f32 v[{S+e}:{S+e+1}], v[{S+e}:{S+e+1}], s[{sC2}:{sC2+1}], v[{mb}:{mb+1}] {sel}", **T(expect={('v',S+e):f"S{u}",('v',MN+s):f"M{u and u[0]}"}))
        if cfg.pkf==1: return [[pf(0)],[x(0)],[x(1)],[pf(2)],[x(2)],[],[x(3)],[pf(4)],[x(4)],[x(5)],[pf(6)],[],[x(6)],[x(7)],[c(0),c(2)],[c(4),c(6)],[]]
        return [[pf(0),pf(2),pf(4),pf(6)],[x(0)],[x(1)],[],[x(2)],[],[x(3)],[],[x(4)],[x(5)],[],[],[x(6)],[x(7)],[c(0),c(2)],[c(4),c(6)],[]]
    return [[f(0),f(1)],[x(0)],[x(1)],[f(2),f(3)],[x(2)],[],[x(3)],[f(4),f(5)],[x(4)],[x(5)],[f(6),f(7)],[],[x(6)],[x(7)],[c(0),c(2)],[c(4),c(6)],[]]
def max_seq(s,sb,h):
    S=SB[sb]
    return [I(f"v_max3_f32 v{T0}, v{S}, v{S+1}, v{S+2}"), I(f"v_max3_f32 v{T3}, v{S+3}, v{S+4}, v{S+5}"),
            I(f"v_max3_f32 v{T0}, v{T0}, v{S+6}, v{S+7}"), I(f"v_max_f32 v{T0}, v{T0}, v{T3}"),
            I(f"v_mov_b32 v{T3}, v{T0}"), I(f"v_permlane16_swap_b32 v{T0}, v{T3}"),
            I(f"v_max_f32 v{T0}, v{T0}, v{T3}"), I(f"v_mov_b32 v{T3}, v{T0}"),
            I(f"v_permlane32_swap_b32 v{T0}, v{T3}"), I(f"v_max_f32 v{T0}, v{T0}, v{T3}"),
            I(f"v_mul_f32 v{MN+s}, s{sNC}, v{T0}", set={('v',MN+s):f"M{h}"})]
MAXG=[11,11,12,12,12,13,14,14,15,16,16]
def put(ex,g,items): ex.setdefault(g,[]).extend(items)

def step(i, ex=None, post=None, clump=0, sumfirst=False):
    ex=ex or {}; post=post or {}
    q,m,p=unit(i+1),unit(i),unit(i-1)
    mf=(qk_mfmas(q[2],q[1]&1,(i+1)&1,q) if q else [None]*8)+(pv_mfmas(p[2],p[1]&1,(i-1)&1,p[1]==0,p) if p else [None]*9)
    if sumfirst: mf=mf[:8]+[mf[16]]+mf[8:16]
    g=sm_gaps(m[2],i&1,i&1,m) if m else [[] for _ in range(17)]
    for src,dst in [(2,1),(9,8),(13,12),(15,14),(4,3),(7,6),(1,0)][:clump]:
        g[dst]=g[dst]+g[src]; g[src]=[]
    tailmax=[]
    if q and q[1]==0:
        ms=max_seq(q[2],(i+1)&1,q[0])
        if p and m:
            for gg,x in zip(MAXG,ms): g[gg]=g[gg]+[x]
        else:
            for x in ms:
                if x.op.startswith('v_permlane'): tailmax.append(I("s_nop 1"))
                tailmax.append(x)
    out=[I(f"; ---- step {i}: QK{q} softmax{m} PV{p}")]
    if cfg.tls and i<=30:
        w=I("s_waitcnt lgkmcnt(0)"); w.meta['skip']=True
        out+=[w]+TL()
    out+=ex.get(-1,[])
    for k in range(17):
        if mf[k] is not None: out.append(mf[k])
        out+=ex.get(k,[])+g[k]+post.get(k,[])
    return out+tailmax+ex.get(17,[])

def free_gaps(ex,lo,n,avoid=()):
    return [x for x in range(lo,17) if x not in FREE and x not in ex and x not in avoid][:n]
def spread(ex,lo,items,avoid=()):
    gs=free_gaps(ex,lo,len(items),avoid)
    while len(gs)<len(items): gs.append(gs[-1])
    for x,i in zip(gs,items): put(ex,x,[i])
def TL():
    if not cfg.tl: return []
    r=[I("s_mov_b64 exec, s[90:91]"), I("v_mov_b32 v0, s98"), I("v_mov_b32 v61, s100"), I("s_mov_b64 exec, -1"), I("s_lshl_b64 s[90:91], s[90:91], 1"), I("s_memtime s[98:99]"), I("s_memrealtime s[100:101]")]
    for x in r: x.meta['skip']=True
    return r
JN=[0]
def BAR():
    r=[I("s_barrier")]+([] if cfg.tls else TL())
    if cfg.jit:
        x=I("JITTER_PLACEHOLDER:"); x.meta['jit']=True; r.append(x)
    return r
def WV(tag,lg0=False,part=None): return I("s_waitcnt vmcnt(AUTO)"+(" lgkmcnt(0)" if lg0 else ""), auto_vm=tag, need=tag, wpart=part)
def WL(x): return I("s_waitcnt lgkmcnt(AUTO)", auto_lg=x)

def kind(x):
    if x.op.startswith('ds_read'): return 'r'
    if x.op.startswith('ds_write'): return 'w'
    if getattr(x,'dma',False): return 'd'
    if getattr(x,'store',False): return 's'
    return 'a'
def gapcost(ks,free):
    if not ks: return 0
    U={'r':4,'d':6,'w':12,'s':12,'a':4}
    c=sum(U[k] for k in ks)
    if ks[0]=='a': c-=4
    if len(ks)==1 and ks[0]=='d': c=4 if not free else 8
    for p,q in zip(ks,ks[1:]):
        if p=='w' and q=='r': c+=12
    st=12*ks.count('s')
    if free: return st+max(0,c-st-8)
    return c+4*max(0,len([k for k in ks if k!='a'])-1)
def place(ex,groups,lo=0,hi=16,free=FREE):
    groups=[g if isinstance(g,list) else [g] for g in groups]
    n=len(groups)
    if not n: return
    base={g:[kind(x) for x in ex.get(g,[]) if not x.label and not x.meta.get('skip')] for g in range(17)}
    @functools.lru_cache(None)
    def f(g,i):
        if i==n: return (0,())
        if g>hi: return (1e9,())
        best=(1e9,())
        for m in range(0,min(4,n-i)+1):
            ks=base[g]+[kind(x) for gr in groups[i:i+m] for x in gr]
            c=gapcost(ks,g in free)-gapcost(base[g],g in free)
            c+=0.01*sum(abs(g-(lo+(hi-lo)*(j+0.5)/n)) for j in range(i,i+m))
            r=f(g+1,i+m)
            if c+r[0]<best[0]: best=(c+r[0],(g,)*m+r[1])
        return best
    c,gs=f(lo,0)
    assert len(gs)==n
    for g,gr in zip(gs,groups): put(ex,g,gr)

def put_reads(ex,post,reads,r,late):
    rs=reads[4*r:4*r+4]
    nw=max(0,late-4); late=min(late,4)
    if late:
        gs=[6,8,12,13] if r<5 else [2,6,8,9]
        for k in range(late): put(post,gs[k],[rs[k]]+([I("s_waitcnt lgkmcnt(0)")] if k in [3,1,2,0][:nw] else []))
        if rs[late:]: put(ex,16 if r<5 else 11,rs[late:])
    else:
        rg=(5,16) if r<5 else (5,11)
        put(ex,rg[0],rs[:2]); put(ex,rg[1],rs[2:])
def loop_end(ex,lab,n):
    put(ex,13,[I(f"s_add_u32 s{sT}, s{sT}, 1")]); put(ex,15,[I(f"s_cmp_lt_u32 s{sT}, {n}")]); put(ex,16,[I(f"s_cbranch_scc1 {lab}")])

def blockA(b,pairs,pf,nv=None,lab=None,n=0):
    late,clump=int(pf[0]),int(pf[1])
    reads=frag_reads(0,b+1); tag=f"h0KV{b+1}"
    out=[]
    inc=4096 if pairs[0]>=20 else 8192
    if len(pairs)==2: dpos={0:[(0,0,11)],1:[(0,1,3),(0,2,11)],2:[(0,3,11)],3:[(1,0,11)],4:[(1,1,3),(1,2,11)],5:[(1,3,14)]}; advr=(0,3)
    else: dpos={0:[(0,0,11)],2:[(0,1,11)],3:[(0,2,11)],4:[(0,3,11)]}; advr=(0,)
    for r in range(6):
        ex={}; post={}
        if r==0:
            put(ex,0,[I(f"s_waitcnt vmcnt({nv}) lgkmcnt(0)", need=tag, loose_ok=True) if nv is not None else WV(tag,True)])
            put(ex,1,BAR()); put(post,4,setrd(sCur))
        put_reads(ex,post,reads,r,late)
        for (p,j,g) in dpos.get(r,[]): put(ex,g,[pdma(pairs[p],j)])
        if r in advr: spread(ex,2,[I(f"s_add_u32 m0, m0, {SLOT}"), I(f"s_cmp_ge_u32 m0, s{sEnd}"), I(f"s_cselect_b32 m0, s{sW4}, m0"), I(f"s_add_u32 s{sOff}, s{sOff}, {inc}")])
        if r==3: put(ex,15,[I(f"s_waitcnt lgkmcnt({4+late if late else 6})")])
        if r==5:
            spread(ex,0,[I(f"s_add_u32 s{sCur}, s{sCur}, {SLOT}"), I(f"s_cmp_ge_u32 s{sCur}, s{sEnd}"), I(f"s_cselect_b32 s{sCur}, s{sW4}, s{sCur}")])
            if lab: loop_end(ex,lab,n)
        out+=step(6*b+1+r,ex,post,clump)
    return out
def rampA(t=None,prof=None):
    pf=(prof or cfg.prof).split(',')
    if t is not None:
        n=12+4*t
        return blockA(2*t+2,[n,n+1],pf[0],nv=8)+blockA(2*t+3,[n+2,n+3],pf[1],nv=12,lab="LloopA1",n=2)
    o=[]
    for k,b in enumerate(range(2,6)): o+=blockA(b,[12+2*k,13+2*k],pf[k])
    return o
def staticA():
    out=[I("; ==== head A key blocks 2..9")]
    seq=[(n,j) for n in range(12,24) for j in range(4)]
    pos={4:[(0,11),(2,11),(3,11),(4,11)], 5:[(0,11),(1,11),(2,11),(3,11),(4,11)], 6:[(0,11),(1,11),(2,11),(3,11),(4,11),(5,14)],
         7:[(0,11),(1,11),(2,3),(2,11),(3,11),(4,11),(5,14)], 8:[(0,11),(1,3),(1,11),(2,11),(3,11),(4,3),(4,11),(5,14)]}
    pf=cfg.midprof.split(',')
    assert sum(int(p[2]) for p in pf)==48
    for b,p in zip(range(2,10),pf):
        late,clump,nd=int(p[0]),int(p[1]),int(p[2])
        sl=slotKV(0,b+1); base=(sl%4)*SLOT
        reads=frag_reads(0,b+1,base=base); tag=f"h0KV{b+1}"
        for r in range(6):
            ex={}; post={}
            lb=2 if (b==2 and cfg.su&4) else 0
            if r==0 and lb: put(ex,7,[I("s_waitcnt lgkmcnt(0)")])
            if r==lb:
                put(ex,0,[WV(tag,True)]); put(ex,1,BAR())
                if sl%4==0:
                    put(ex,2,[I(f"s_add_u32 s{sCur}, s{sW4}, {sl*SLOT}")]); put(post,4,setrd(sCur))
            if lb:
                if r>=2:
                    rr=reads[6*(r-2):6*(r-2)+6]
                    gs=[6,8,12,13] if r<5 else [2,6,8,9]
                    put(ex,5,rr[:2])
                    for k in range(4): put(post,gs[k] if r<5 else [6,8,9,10][k],[rr[2+k]]+([I("s_waitcnt lgkmcnt(0)")] if k in [3,1,2,0][:max(0,late-4)] else []))
            else: put_reads(ex,post,reads,r,late)
            for (rr,g) in pos[nd]:
                if rr==r:
                    n,j=seq.pop(0)
                    if j==0:
                        pre=[setm0(n%9), I(f"s_add_u32 s{sOff}, s{sOff}, {4096 if n>20 else 8192}") if n!=20 else I(f"s_add_u32 s{sOff}, s{sHn}, s{sQw}")]
                        gs=[x for x in range(g-1,-1,-1) if x not in ex and x not in FREE][:2]
                        while len(gs)<2: gs.append(g)
                        put(ex,gs[1],[pre[0]]); put(ex,gs[0],[pre[1]])
                    put(ex,g,[pdma(n,j)])
            if r==3: put(ex,15,[WL(reads[7])])
            if b==9 and r==5: put(ex,12,[I(f"s_add_u32 s{sCur}, s{sW4}, {8*SLOT}")])
            out+=step(6*b+1+r,ex,post,clump)
    assert not seq
    return out
def midA(): return [I(f"s_add_u32 s{sOff}, s{sHn}, s{sQw}"), I(f"s_sub_u32 s{sOff}, s{sOff}, 4096"), I(f"s_mov_b32 s{sT}, 0")]
def loopA2(t): return blockA(2*t+6,[20+2*t],'00',nv=24)+blockA(2*t+7,[21+2*t],'00',nv=24,lab="LloopA2",n=2)

def ostore(reg,j,pol,so,tag=None):
    x=I(f"buffer_store_dwordx4 {vr(reg)}, v{vKVB}, {sr(sO)}, s{so} offen{offs(1024*j)}"+(f" {pol}" if pol else ""))
    if tag: x.meta['expect']={r:tag for r in x.data}
    return x
DIRECT=2
def dunit(k): return (DIRECT+k//4, k%4)
def blockB(b,pf,lab=None,n=0):
    late,clump=int(pf[0]),int(pf[1])
    t=(b-2)//2
    reads=frag_reads(1,b+1); tag=f"h1KV{b+1}"
    out=[]; lead=(b%2==0)
    rp,wp=(sPo,sPe) if lead else (sPe,sPo)
    rx=sXo if lead else sXe
    nb=cfg.dl//2; loc0=(0 if lead else nb)
    dr=[]; sts=[]
    for k in range(nb):
        sub,j=dunit(cfg.dl*t+loc0+k); jj=loc0+k
        dr.append(I(f"ds_read_b128 {vr(DR[jj&1])}, v{vD[jj&1]}{offs(1024*jj)}", src=f"O{sub}", slot=slotQ(sub), private=True))
        sts.append(ostore(DR[jj&1],jj,cfg.st,sSd,f"O{sub}"))
    for r in range(6):
        ex={}; post={}
        if r==0:
            put(ex,0,[I(f"s_waitcnt vmcnt({8+nb}) lgkmcnt(0)", need=tag, loose_ok=True)])
            put(ex,1,BAR())
            put(ex,2,[I(f"s_mov_b32 m0, s{wp}")]); put(ex,3,[I(f"s_xor_b32 s{rp}, s{rp}, s{rx}")])
            put(ex,4,[I(f"s_add_u32 s{sOff}, s{sOff}, 8192")]); put(post,4,setrd(rp))
        put_reads(ex,post,reads,r,late)
        if r<4: put(ex,11,[kvdma(1,b+4,r)])
        if r==3: put(ex,15,[I(f"s_waitcnt lgkmcnt({4+late if late else 6})")])
        if r==4 and nb: put(ex,11,dr)
        if r==5 and nb:
            put(ex,1,[I("s_waitcnt lgkmcnt(2)")]); put(ex,3,[sts[0]])
            if nb==2: put(ex,10,[sts[1]])
        if r==5 and not lead:
            if nb:
                put(ex,12,[I(f"s_add_u32 s{sSd}, s{sSd}, {1024*cfg.dl}")])
                inc=f"{SLOT}" if cfg.dl==4 else f"s{sDi}"
                put(post,16 if not lab else 7,[I(f"v_add_u32 v{vD[k]}, {inc}, v{vD[k]}") for k in range(2)])
                if cfg.dl==2: put(ex,0,[I(f"s_xor_b32 s{sDi}, s{sDi}, {2048^(SLOT-2048)}")])
            if lab: loop_end(ex,lab,n)
        out+=step(72+6*b+1+r,ex,post,clump)
    return out
def loopB(t):
    pf=cfg.profB.split(',')
    return blockB(2*t+2,pf[0])+blockB(2*t+3,pf[1],lab="LloopB",n=(2 if cfg.profB0 else 3))
def peelB():
    if cfg.profBs:
        o=[]
        for b,p in zip(range(2,8),cfg.profBs.split(',')): o+=blockB(b,p)
        return o
    pf=cfg.profB0.split(',')
    return blockB(2,pf[0])+blockB(3,pf[1])

def tagexp(o,tag):
    if tag:
        h=0 if tag[0]=='O' else 1
        for x in o:
            x.meta['expect']={r:f"O{h}n12" for r in x.rd if (r[0]=='v' and r[1]>=64) or (r[0]=='a' and 224<=r[1]<248)}
    return o
def e_head(s,bad,tag,rc):
    o=[I(f"v_accvgpr_read_b32 v{T2}, a{Lr(s)}"), I(f"v_rcp_f32 v{rc}, v{T2}")]
    o.append(I(f"v_cmp_nge_f32 vcc, s{sThr}, v{T2}") if bad is not None else I("s_nop 0"))
    if bad is not None: o.append(I(f"s_or_b64 s[{bad}:{bad+1}], s[{bad}:{bad+1}], vcc"))
    return tagexp(o,tag)
def e_pk(s,dt,tag,rc):
    a=O(s,dt)
    return tagexp([I(f"v_pk_mul_f32 {vr(a+k,2)}, {vr(a+k,2)}, v[{rc}:{rc+1}] op_sel_hi:[1,0]") for k in (0,2)],tag)
def e_cvt(s,dt,tag):
    a=O(s,dt)
    return tagexp([I(f"v_cvt_pk_bf16_f32 v{a}, v{a}, v{a+1}"), I(f"v_cvt_pk_bf16_f32 v{a+1}, v{a+2}, v{a+3}")],tag)
def e_wr(s,dt,off,slot,tag,regs=vW):
    return tagexp([I(f"ds_write_b64 v{regs[dt&3]}, {vr(O(s,dt),2)}{offs(off+(dt>>2)*128)}", wslot=slot, wtag=tag)],tag)[0]
def epi_rd(s,off,slot,tag=None,regs=vR):
    m=dict(src=tag,slot=slot,private=True) if tag else {}
    return [I(f"ds_read_b128 {vr(O(s,2*j))}, v{regs[j&1]}{offs(off+1024*j)}", **m) for j in range(4)]
def epi_st(s,pol,so,tag=None): return [ostore(O(s,2*j),j,pol,so,tag) for j in range(4)]

class Epi:
    def __init__(s,rc2,so): s.rc2=rc2; s.so=so; s.tiles=[]; s.cv=[]; s.wr=[]; s.rd=[]; s.st=[]; s.info={}
    def add(s,sub,avail,off,slot,bad,tag,direct,pol,pre=()):
        s.info[sub]=dict(off=off,slot=slot,bad=bad,tag=tag,direct=direct,pol=pol,pre=list(pre))
        s.tiles+=[(avail,sub,dt) for dt in range(8)]
    def _rd(s,g):
        rd=s.rd; s.rd=[]
        for sub in rd:
            I_=s.info[sub]; r=epi_rd(sub,I_['off'],I_['slot'],I_['tag']); g+=[[x] for x in r]
            st=epi_st(sub,I_['pol'],s.so,I_['tag'])
            s.st+=[[WL(r[1]),st[0]],[st[1]],[WL(r[3]),st[2]],[st[3],I(f"s_add_u32 s{s.so}, s{s.so}, 4096")]]
    def mem(s,nst,fast=False):
        g=[]
        for _ in range(nst):
            if s.st: g.append(s.st.pop(0))
        s._rd(g)
        for sub,dt in s.wr:
            I_=s.info[sub]
            g.append(([I_['pre'][dt]] if (I_['pre'] and dt<4) else [])+[e_wr(sub,dt,I_['off'],I_['slot'],I_['tag'])])
            if dt==7 and I_['direct']: s.rd.append(sub)
        s.wr=[]
        if fast: s._rd(g)
        return g
    def chunk(s,i,n):
        take=[]
        while s.tiles and len(take)<n and s.tiles[0][0]<=i: take.append(s.tiles.pop(0)[1:])
        o=[]
        for sub,dt in s.cv: o+=e_cvt(sub,dt,s.info[sub]['tag']); s.wr.append((sub,dt))
        s.cv=[]
        heads=[]
        for sub,dt in take:
            I_=s.info[sub]; rc=T1 if sub%2==0 else s.rc2
            if dt==0: heads+=e_head(sub,I_['bad'],I_['tag'],rc)
        o=heads+o
        for sub,dt in take:
            o+=e_pk(sub,dt,s.info[sub]['tag'],T1 if sub%2==0 else s.rc2)
        k=max(1,len(take)-2) if s.tiles and s.tiles[0][0]<=i+1 else len(take)
        for sub,dt in take[:k]: o+=e_cvt(sub,dt,s.info[sub]['tag']); s.wr.append((sub,dt))
        s.cv=take[k:]
        return o
    def done(s): return not(s.tiles or s.cv or s.wr or s.rd or s.st)

NPADS=0
PADAT={}
def SITE(k): return min(9,(k-1)*10//max(NPADS,1)-1+0)
def startA():
    o=[I("; ==== head A, first two key blocks (q-major, as Q arrives)")]
    f0=frag_reads(0,0); f1=frag_reads(0,1,base=SLOT); f2=frag_reads(0,2)
    o+=setrd(sW4)
    o.append(WV("h0Q0")); o+=BAR()
    o+=qreads(0,0)+f0[:8]
    seq=[('q',s,j) for s in (3,4,5) for j in range(4)]+[('k',b,j) for b in (2,3,4,5) for j in (0,2,1,3)]
    def dm():
        k,x,j=seq.pop(0); it=[]
        if j==0:
            it+=[setm0(slotQ(x) if k=='q' else slotKV(0,x)), I(f"s_add_u32 s{sTmp}, s{sTmp}, 4096") if k=='q' else I(f"s_add_u32 s{sOff}, s{sOff}, 8192")]
        return it+[qdma(0,x,j,sTmp) if k=='q' else kvdma(0,x,j)]
    for i in range(-1,13):
        ex={}; post={}
        if i==-1:
            put(ex,-1,[WL(f0[0])])
            if cfg.su&1:
                for k in range(7): put(ex,k,[WL(f0[k+1])])
                put(ex,7,dm()+dm()+[WV("h0KV1",part='K')]+BAR()+f1[:8])
            else:
                for k in range(8): put(ex,k,f0[8+2*k:10+2*k]+([WL(f0[k+1])] if k<7 else []))
                put(ex,7,dm()+dm()+[WV("h0KV1")]+BAR()+f1[:8])
            put(ex,17,[WL(f1[7])])
        else:
            if i==0 and cfg.su&1:
                put(ex,9,[WV("h0KV1")]+BAR()+f0[8:])
            if i==1 and cfg.su&1:
                for k in range(8): put(ex,k,f1[8+2*k:10+2*k])
            if i==2 and cfg.su&1: put(ex,7,[WL(f1[23])])
            if i==0 and not cfg.su&1:
                for k in range(8): put(ex,k,f1[8+2*k:10+2*k])
            if i==3: put(ex,0,[I("s_waitcnt lgkmcnt(0)")]); put(ex,1,BAR())
            if i%2==0 and i<=8:
                s=i//2+1; qs=qreads(0,s)
                put(ex,2 if i else 8,dm()); put(ex,5 if i else 8,dm())
                if s==4: put(post,9,bias(QREGS,True))
                put(ex,10,[WV(f"h0Q{s}")]); put(ex,11,qs[:2]); put(ex,12,[qs[2]]); put(ex,13,[qs[3]])
                if s==5: put(post,16,bias(QREGS,False))
                put(ex,17,[WL(qs[3])])
            elif i==10:
                put(ex,0,[WV("h0KV2",True,part=('K' if cfg.su&2 else None))]); put(ex,1,BAR())
                put(ex,2,[I(f"s_add_u32 s{sCur}, s{sW4}, {8*SLOT}")]); put(post,3,setrd(sCur))
                place(ex,f2[:8],lo=4,hi=12)
                put(ex,14,dm()); put(ex,16,dm())
                put(ex,17,[WL(f2[7])])
            elif i==12:
                place(ex,f2[8:],lo=0,hi=13)
                put(ex,14,dm()); put(ex,16,dm())
                put(ex,15,[I(f"s_mov_b32 s{sCur}, s{sW4}")])
            else:
                put(ex,5,dm()); put(ex,10,dm())
                if i==11 and cfg.su&2: put(ex,15,[WV("h0KV2")]); put(ex,16,BAR())
        ks=[k for k in range(1,NPADS+1) if SITE(k)==i]
        for k in ks:
            site=[I("s_mov_b64 exec, 0"), I(f"s_branch Lpad{k}"), I(f"Lret{k}:"), I("s_mov_b64 exec, -1")]
            if i%2==0 and 0<=i<=8: ex[10]=site+ex[10]
            else: put(ex,17,site)
        o+=step(i,ex,post,cfg.profS if (i>=6 and i%2==0) or i>9 else 0)
    assert not seq
    return o

def trans():
    o=[I("; ==== head A last two key blocks + head B first two, epilogue of head A streamed")]
    f11=frag_reads(0,11); g0=frag_reads(1,0); g1=frag_reads(1,1,base=SLOT); g2=frag_reads(1,2)
    E=Epi(14,sSd)
    idxA={u:k for k,u in enumerate(LA)}
    for s in range(6):
        E.add(s,60+idxA[(11,s)]+2,(s%4)*SLOT,slotQ(s),sBad,f"O{s}",s<DIRECT,cfg.st,pre=(bias(vW,True) if s==4 else ()))
    Q=lambda s:qreads(1,s)
    q5=Q(5)
    R={61:f11[:8], 62:f11[8:16], 63:f11[16:24], 64:Q(0), 65:Q(1), 67:Q(2), 68:Q(3), 69:g0[:4], 70:g0[4:8], 71:g0[8:16], 72:g1[:8], 73:g0[16:24],
       74:g1[8:18], 75:g1[18:24], 76:Q(4), 78:q5, 81:g2[:4], 82:g2[4:8], 83:g2[8:16], 84:g2[16:24]}
    D={}
    for (k,x),steps in zip([('q',4),('q',5),('k',2),('k',3),('k',4),('k',5)],
                           [[61,62,63,64],[65,66,66,67],[69,70,71,72],[76,77,77,78],[79,79,80,80],[81,82,83,84]]):
        for j,i in enumerate(steps): D.setdefault(i,[]).append((k,x,j))
    for i in range(61,85):
        ex={}; post={}
        rs=R.get(i,[]); lo=0; hi=16
        mx=(unit(i+1)[1]==0)
        if i==61:
            put(ex,0,[WV("h0KV11",True)]); put(ex,1,BAR()); put(post,2,setrd(sCur)); lo=3; hi=12
            put(ex,17,[WL(f11[7])])
            put(ex,2,[I(f"s_add_u32 s{sSd}, s{sH}, s{sQw}")])
        if i==64: put(ex,0,[WV("h1Q3")]); put(ex,7,[WL(f11[23])]); lo=1
        if i==69:
            put(ex,0,[WV("h1KV1",True)]); put(ex,1,BAR()); put(post,2,setrd(sW4)); lo=3
            put(ex,2,[I(f"s_add_u32 s{sOff}, s{sHn}, s{sKVw}")]); put(ex,3,[I(f"s_add_u32 s{sOff}, s{sOff}, 8192")])
        if i==70: hi=12; put(ex,17,[WL(g0[7])])
        if i==72: hi=12; put(ex,17,[WL(g1[7])])
        if i==73: hi=5; put(ex,7,[WL(g0[17])]); put(ex,11,[WL(g0[23])])
        if i==75: hi=6; put(ex,7,[WL(g1[17])]); put(ex,12,[WL(g1[23])]); put(post,9,bias(QREGS,True))
        if i==76: put(ex,0,[WV("h1Q4",True)]); put(ex,1,BAR()); lo=2
        if i==77: put(ex,15,[WL(R[76][3])])
        if i==78: put(ex,0,[WV("h1Q5")]); lo=1
        if i==79: put(ex,15,[WL(q5[3])])
        if i==81:
            put(ex,0,[WV("h1KV2",True)]); put(ex,1,BAR())
            put(ex,2,[I(f"s_add_u32 s{sPe}, s{sW4}, {8*SLOT}")]); put(post,2,setrd(sPe)); lo=4
            put(ex,3,[I(f"s_add_u32 s{sPo}, s{sW4}, {2*SLOT}")])
        if i==82: hi=12; put(ex,17,[WL(g2[7])])
        if i==84: hi=12
        mem=E.mem(2)
        ch=E.chunk(i,cfg.rho)
        free=[g for g in FREE if not(g==16 and (ch or mx)) and not (g==11 and mx)]
        place(ex,rs,lo=lo,hi=hi,free=free)
        dg=[]
        for (k,x,j) in D.get(i,[]):
            pre=[setm0(slotQ(x) if k=='q' else slotKV(1,x)), I(f"s_add_u32 s{sOff}, s{sOff}, {4096 if k=='q' else 8192}")] if j==0 else []
            dg.append(pre+[qdma(1,x,j) if k=='q' else kvdma(1,x,j)])
        place(ex,dg,lo=max(lo,4),hi=16,free=free)
        qlast=max([g for g,v in ex.items() if any(x.meta.get('src','').startswith('h1Q') for x in v)]+[-1])
        need_after=any(kind(gr[-1])=='w' and any(x.meta.get('slot')==gr[-1].meta['wslot'] for x in rs) for gr in mem)
        place(ex,mem,lo=(qlast+1 if need_after else (2 if i in (69,76,81) else 0)),hi=15,free=free)
        put(post,16,ch)
        if i==83:
            put(post,16,bias(vW,False)+[I(f"v_add_u32 v{vD[k]}, {DIRECT*SLOT}, v{vR[k]}") for k in range(2)])
        if i==84:
            spread(ex,0,[I(f"s_mov_b32 s{sT}, 0"), I(f"s_movk_i32 s{sDi}, {SLOT-2048}"), I(f"s_add_u32 s{sSt}, s{sHn}, s{sQw}")])
            put(ex,17,[WV("h1KV3")])
        o+=step(i,ex,post)
    assert E.done()
    return o

def tailB():
    o=[I("; ==== head B last four key blocks: q sub-tiles 0-2 first, then 3-5; epilogue streamed")]
    base=120
    vK2,vV2=vQ,vQ+1
    def fr(b): return frag_reads(1,b,base=slotKV(1,b)*SLOT) if b!=10 else frag_reads(1,b,rk=vK2,rv=vV2)
    F=[fr(b) for b in [9,10,11,8,9,10,11]]
    R={}
    def addR(i,L): R.setdefault(i,[]).extend(L)
    for m in range(7):
        K,V=F[m][:8],F[m][8:]
        if m==0: addR(base+1,K)
        elif m<6: addR(base+3*m-1,K[:3]); addR(base+3*m,K[3:6]); addR(base+3*m+1,K[6:])
        else: addR(base+17,K)
        if m<6:
            addR(base+3*m+1,V[:(0 if m==0 else 5)]); addR(base+3*m+2,V[(0 if m==0 else 5):(8 if m==0 else 10)]); addR(base+3*m+3,V[(8 if m==0 else 10):(16 if m in (0,5) else 15)])
            if m not in (0,5): R.setdefault(base+3*m+4,[]).insert(0,V[15])
        else: addR(base+19,V[:12]); addR(base+20,V[12:])
    E=Epi(vQ+2,sSt)
    idx={u:k for k,u in enumerate(GB)}
    for s_ in range(5):
        sl=3+(s_%2)
        E.add(s_,base+idx[(11,s_)]+2,(sl-2)*SLOT,sl,sBad2,f"P{s_}",True,(cfg.st3 if (cfg.st3 and s_<cfg.n3) else cfg.st2))
    k0=3*cfg.dl; dq=list(range(k0,16)); pend=[]
    o_sub0,o_j0=dunit(k0)
    for i in range(base+1,base+25):
        ex={}; post={}; rel=i-base; lo=0; hi=16
        rs=list(R.get(i,[]))
        if rel==1:
            put(ex,0,[WV("h1KV10",True)]); put(ex,1,BAR())
            put(ex,2,[I(f"s_add_u32 s{sTmp}, s{sW4}, {8*SLOT}")])
            put(post,2,setrd(sW4)); lo=3; hi=12
            put(post,13,setrd(sTmp,vK2,vV2))
        if rel==5: put(ex,0,[WV("h1KV11")]); put(ex,1,BAR()); lo=2
        if rel==12: put(ex,3,TL())
        g=[]
        for rdx,k in pend:
            sub,j=dunit(k); jj=(k-k0)%4
            g.append([WL(rdx),ostore(DR[k&1],jj,cfg.st,sSd,f"O{sub}")]+([I(f"s_add_u32 s{sSd}, s{sSd}, 4096")] if jj==3 else []))
        pend=[]
        place(ex,g,lo=max(lo,3),hi=4)
        if dq:
            k=dq.pop(0); sub,j=dunit(k)
            x=I(f"ds_read_b128 {vr(DR[k&1])}, v{vD[j&1]}{offs((sub-o_sub0)*SLOT+1024*(j-o_j0))}", src=f"O{sub}", slot=slotQ(sub), private=True)
            pend.append((x,k)); place(ex,[x],lo=13,hi=15)
        mem=E.mem(2 if rel<21 else 4, fast=(rel>=21))
        ch=E.chunk(i,cfg.rhoG if rel<20 else cfg.rhoE)
        free=[g_ for g_ in FREE if not(g_==16 and ch)] if rel<24 else list(range(8,16))
        for m in range(7):
            K,V=F[m][:8],F[m][8:]
            needK = base+3*m+2 if m<6 else base+18
            needV = base+3*m+4 if m<6 else base+20
            if i==needK-1:
                put(ex,17,[WL(K[7])])
                if rs and rs[-1] is K[7]: hi=min(hi,13)
            if i==needV:
                late=[x for x in V if x in rs]
                if late:
                    place(ex,late,lo=0,hi=5,free=free); rs=[x for x in rs if x not in late]; lo=max(lo,6)
                    put(ex,7,[WL(V[15-len(late)])]); put(ex,8+(16-len(late))//2-1,[WL(V[15])])
                else: put(ex,7,[WL(V[15])])
        place(ex,rs,lo=lo,hi=hi,free=free)
        place(ex,mem,lo=(0 if rel<23 else 8),hi=(15 if rel<24 else 16),free=free)
        put(post,16,ch)
        o+=step(i,ex,post)
    assert not E.tiles and not E.cv and not dq and not pend and not E.wr and not E.rd
    return o+final5(E,ex)

def final5(E,ex):
    o=[]
    tag="P5"; sl=5; off=3*SLOT
    rest=[x for g in E.mem(8) for x in g]
    assert E.done()
    pad=max(0,8-len(rest)-len([x for x in ex.get(16,[])]))
    o+=rest+([I(f"s_nop {pad-1}")] if pad else [])+e_head(5,sBad2,tag,T1)
    for half in (0,1):
        for dt in range(4*half,4*half+4): o+=e_pk(5,dt,tag,T1)
        for dt in range(4*half,4*half+4): o+=e_cvt(5,dt,tag)
        for dt in range(4*half,4*half+4): o.append(e_wr(5,dt,off,sl,tag))
    rd=epi_rd(5,off,sl,tag); o+=rd
    st=epi_st(5,cfg.st2,sSt,tag)
    for j in range(4): o+=[WL(rd[j]), st[j]]
    return o

def tailK():
    o=[I("; ==== head B blocks 8,9 (parked output drained) and last two key blocks, epilogue streamed")]
    E=Epi(vQ+2,sSt)
    idx={u:k for k,u in enumerate(LB)}
    for s_ in range(5):
        sl=3+(s_%2)
        E.add(s_,132+idx[(11,s_)]+2,(sl-2)*SLOT,sl,sBad2,f"P{s_}",True,cfg.st2)
    k0=3*cfg.dl; dq=list(range(k0,16)); pend=[]
    o_sub0,o_j0=dunit(k0)
    f11=frag_reads(1,11)
    for i in range(121,145):
        ex={}; post={}; lo=0; hi=16; rs=[]
        if i<133:
            b,r=divmod(i-73,6); lead=(b%2==0)
            if r==0:
                reads=frag_reads(1,b+1); rp=sPo if lead else sPe; rx=sXo if lead else sXe
                put(ex,0,[WV(f"h1KV{b+1}",True)]); put(ex,1,BAR())
                put(ex,2,[I(f"s_xor_b32 s{rp}, s{rp}, s{rx}")]); put(post,4,setrd(rp)); lo=5
            rs=reads[4*r:4*r+4]
            if r==5: hi=11
            if r==3: put(ex,17,[WL(reads[7])])
        if i==133:
            put(ex,0,[WV("h1KV11",True)]); put(ex,1,BAR())
            put(ex,2,[I(f"s_xor_b32 s{sPo}, s{sPo}, s{sXo}")]); put(post,2,setrd(sPo)); lo=3; hi=12
            rs=f11[:8]; put(ex,17,[WL(f11[7])])
        if i==134: rs=f11[8:14]
        if i==135: rs=f11[14:20]
        if i==136: rs=f11[20:24]; hi=5; put(ex,7,[WL(f11[19])]+TL()); put(ex,13,[WL(f11[23])])
        g=[]
        for rdx,k in pend:
            sub,j=dunit(k); jj=(k-k0)%4
            g.append([WL(rdx),ostore(DR[k&1],jj,cfg.st,sSd,f"O{sub}")]+([I(f"s_add_u32 s{sSd}, s{sSd}, 4096")] if jj==3 else []))
        pend=[]
        place(ex,g,lo=3,hi=4)
        mem=E.mem(4, fast=True)
        ch=E.chunk(i,cfg.rho2)
        free=[g_ for g_ in FREE if not(g_==16 and ch)] if i<144 else list(range(8,16))
        place(ex,rs,lo=lo,hi=hi,free=free)
        if dq:
            k=dq.pop(0); sub,j=dunit(k)
            x=I(f"ds_read_b128 {vr(DR[k&1])}, v{vD[j&1]}{offs((sub-o_sub0)*SLOT+1024*(j-o_j0))}", src=f"O{sub}", slot=slotQ(sub), private=True)
            pend.append((x,k)); place(ex,[x],lo=6,hi=(16 if hi==16 else 12),free=free)
        place(ex,mem,lo=(0 if i<143 else 8),hi=(15 if i<144 else 16),free=free)
        put(post,16,ch)
        o+=step(i,ex,post)
    assert not E.tiles and not E.cv and not dq and not pend and not E.wr and not E.rd
    return o+final5(E,ex)

def tailQ():
    o=[I("; ==== head B blocks 8,9 (parked output drained) and last two key blocks q-major, epilogue right behind each sub-tile")]
    k0=3*cfg.dl; dq=list(range(k0,16)); pend=[]
    o_sub0,o_j0=dunit(k0)
    f9=frag_reads(1,9); f10=frag_reads(1,10); f11=frag_reads(1,11,rk=vQ,rv=vQ+1)
    R={121+r:f9[4*r:4*r+4] for r in range(6)}
    R.update({127:f10[:5],128:f10[5:11],129:f10[11:17],130:f10[17:21]+f11[:2],131:f11[2:8],132:f10[21:24],133:f11[8:18],134:f11[18:24]})
    stq=[]; nxt=[]
    nd2=max(0,len(dq)-cfg.nd1)
    for i in range(121,145):
        ex={}; post={}; lo=0; hi=16; rs=list(R.get(i,[]))
        p=unit(i-1); fin=(p[1]==11)
        if i==121:
            put(ex,0,[WV("h1KV9",True)]); put(ex,1,BAR())
            put(ex,2,[I(f"s_xor_b32 s{sPo}, s{sPo}, s{sXo}")]); put(post,4,setrd(sPo)); lo=5
        if i==124: put(ex,17,[WL(f9[7])])
        if i==126: hi=11
        if i==127:
            put(ex,0,[WV("h1KV10" if cfg.bar11 else "h1KV11",True)]); put(ex,1,BAR())
            put(ex,2,[I(f"s_xor_b32 s{sPe}, s{sPe}, s{sXe}")]); put(post,4,setrd(sPe)); lo=5
        if i==128: put(post,4,setrd(sW4,vQ,vQ+1))
        if i==130:
            put(ex,17,[WL(f10[7])])
            if cfg.bar11: put(ex,6,[WV("h1KV11")]); put(ex,7,[I("s_barrier")])
        if i==131: hi=12; put(ex,17,[WL(f11[7])])
        if i==133: put(ex,7,[WL(f10[23])]+TL())
        if i==134: hi=5; put(ex,8,[WL(f11[17])]); put(ex,13,[WL(f11[23])])
        free=[g_ for g_ in FREE if not(g_==16 and fin)] if i<144 else list(range(8,16))
        g=[]
        for rdx,k in pend:
            sub,j=dunit(k); jj=(k-k0)%4
            g.append([WL(rdx),ostore(DR[k&1],jj,cfg.st,sSd,f"O{sub}")]+([I(f"s_add_u32 s{sSd}, s{sSd}, 4096")] if jj==3 else []))
        if g: place(ex,g[:1],lo=3,hi=4)
        if len(g)>1: place(ex,g[1:],lo=9,hi=10)
        two=len(pend)>1; pend=[]
        if i==130:
            place(ex,rs[:4],lo=0,hi=11,free=free); place(ex,rs[4:],lo=8,hi=16,free=free)
        else: place(ex,rs,lo=lo,hi=hi,free=free)
        n=0
        if dq: n=1
        if dq and nd2>0 and (i%2==0 or nd2>6): n=2; nd2-=1
        xs=[]
        for _ in range(min(n,len(dq))):
            k=dq.pop(0); sub,j=dunit(k)
            x=I(f"ds_read_b128 {vr(DR[k&1])}, v{vD[j&1]}{offs((sub-o_sub0)*SLOT+1024*(j-o_j0))}", src=f"O{sub}", slot=slotQ(sub), private=True)
            pend.append((x,k)); xs.append(x)
        place(ex,xs,lo=11,hi=(16 if hi==16 else 12),free=free)
        mlo=0 if i<143 else 8
        if nxt:
            place(ex,nxt,lo=mlo,hi=16,free=free); nxt=[]
        elif stq:
            place(ex,stq,lo=mlo,hi=15,free=free); stq=[]
        if fin and p[2]<5:
            s_=p[2]; tag=f"P{s_}"; sl=3+(s_%2); off=(sl-2)*SLOT
            ch=e_head(s_,sBad2,tag,T1)
            for dt in range(8): ch+=e_pk(s_,dt,tag,T1)
            for dt in range(8): ch+=e_cvt(s_,dt,tag)
            put(post,13,ch[:1]); put(post,14,ch[1:2]); put(post,16,ch[2:])
            rd=epi_rd(s_,off,sl,tag); st=epi_st(s_,cfg.st2,sSt,tag)
            nxt=[[e_wr(s_,dt,off,sl,tag)] for dt in range(8)]+[[x] for x in rd]
            stq=[[WL(rd[1]),st[0]],[st[1]],[WL(rd[3]),st[2]],[st[3],I(f"s_add_u32 s{sSt}, s{sSt}, 4096")]]
        o+=step(i,ex,post,(cfg.profT if i<133 else 0),sumfirst=fin)
    assert not dq and not pend and not nxt and not stq
    tag="P5"; sl=5; off=3*SLOT
    o+=e_head(5,sBad2,tag,T1)
    for half in (0,1):
        for dt in range(4*half,4*half+4): o+=e_pk(5,dt,tag,T1)
        for dt in range(4*half,4*half+4): o+=e_cvt(5,dt,tag)
        for dt in range(4*half,4*half+4): o.append(e_wr(5,dt,off,sl,tag))
    rd=epi_rd(5,off,sl,tag); o+=rd
    st=epi_st(5,cfg.st2,sSt,tag)
    for j in range(4): o+=[WL(rd[j]), st[j]]
    return o

def stamp(k):
    if not cfg.stamps: return []
    op="s_memrealtime" if (cfg.echo>=0 or cfg.rt) else "s_memtime"
    return [I(f"{op} s[{sStamp+4+2*k}:{sStamp+5+2*k}]", skip=True)]

def lane_consts(A,base):
    A("v_and_b32 v4, 3, v0")
    A("v_bfe_u32 v3, v0, 2, 1"); A("v_mul_u32_u24 v9, 2080, v3")
    A("v_bfe_u32 v3, v0, 3, 1"); A("v_lshl_add_u32 v9, v3, 10, v9")
    A("v_lshl_add_u32 v9, v4, 8, v9"); A("v_lshl_add_u32 v9, v2, 4, v9"); A(f"v_add_u32 v9, s{base}, v9")
    for ks in range(4):
        A(f"v_xor_b32 v3, {ks}, v4"); A(f"v_lshl_add_u32 v{vQ+ks}, v3, 6, v9")
    A("v_and_b32 v8, 15, v0"); A("v_xor_b32 v9, v8, v2"); A("v_lshlrev_b32 v10, 8, v2"); A(f"v_add_u32 v10, s{base}, v10")
    A(f"v_lshl_add_u32 v{vR[0]}, v9, 4, v10"); A("v_xor_b32 v9, 4, v9"); A(f"v_lshl_add_u32 v{vR[1]}, v9, 4, v10")
    A("v_lshlrev_b32 v10, 8, v8"); A("v_and_b32 v9, 1, v2"); A("v_lshl_add_u32 v10, v9, 3, v10"); A(f"v_add_u32 v10, s{base}, v10")
    A("v_lshrrev_b32 v9, 1, v2"); A("v_and_b32 v8, 7, v0"); A("v_xor_b32 v9, v9, v8")
    for k in range(4):
        A(f"v_xor_b32 v8, {2*k}, v9"); A(f"v_lshl_add_u32 v{vW[k]}, v8, 4, v10")

CPF_LINES=11
def prologue():
    o=[]
    A=lambda t,**k: o.append(I(t,**k))
    A(f"s_load_dwordx2 s[{sKA}:{sKA+1}], s[0:1], 8"); A(f"s_load_dwordx2 s[{sVB}:{sVB+1}], s[0:1], 16")
    A(f"s_load_dwordx2 s[{sQA}:{sQA+1}], s[0:1], 0"); A(f"s_load_dwordx2 s[{sO}:{sO+1}], s[0:1], 24")
    if cfg.stamps:
        A(f"s_load_dwordx2 s[{sDbg}:{sDbg+1}], s[0:1], 32")
        A(f"s_memtime s[{sStamp}:{sStamp+1}]"); A(f"s_memrealtime s[{sStamp+2}:{sStamp+3}]")
    if cfg.tl:
        A("s_mov_b64 s[90:91], 1"); A("s_memtime s[98:99]"); A("s_memrealtime s[100:101]")
    A("s_cmp_ge_u32 s2, 256"); A("s_cbranch_scc1 Lend")
    A("v_lshrrev_b32 v1, 6, v0"); A("v_and_b32 v0, 63, v0"); A("v_readfirstlane_b32 s3, v1")
    if cfg.pro:
        A("s_getpc_b64 s[62:63]"); A("Lpc:")
        A("v_min_u32 v2, 3, v0"); A("v_lshlrev_b32 v2, 7, v2")
        A("global_load_dword v61, v2, s[62:63] offset:64")
        A("s_lshr_b32 s4, s2, 3"); A(f"s_mul_i32 s4, s4, {128*CPF_LINES}"); A("s_add_u32 s4, s4, Lmain-Lpc")
        A(f"v_min_u32 v1, {CPF_LINES-1}, v0"); A("v_lshl_add_u32 v1, v1, 7, s4")
        A("global_load_dword v15, v1, s[62:63]")
    A(f"v_lshlrev_b32 v{vKVB}, 4, v0"); A(f"v_add_u32 v{vKVA}, 1056, v{vKVB}")
    if cfg.diag=='l2only': A("s_and_b32 s62, s2, 7"); A(f"s_mul_i32 s{sH}, s62, {2*HEADB}")
    else: A(f"s_mul_i32 s{sH}, s2, {2*HEADB}")
    A(f"s_mov_b32 s{sKA+2}, {TOTB+1056}"); A(f"s_mov_b32 s{sKA+3}, 0x20000"); A(f"s_mov_b32 s{sVB+2}, {TOTB+2080}"); A(f"s_mov_b32 s{sVB+3}, s{sKA+3}")
    A(f"s_mul_i32 s{sW4}, s3, {WREG}"); A(f"s_lshl_b32 s{sKVw}, s3, 11")
    A(f"s_add_u32 s{sOff}, s{sH}, s{sKVw}")
    o.append(setm0(0))
    A("s_waitcnt lgkmcnt(0)")
    A(f"s_sub_u32 s{sKA}, s{sKA}, 1056"); A(f"s_subb_u32 s{sKA+1}, s{sKA+1}, 0")
    o+=[kvdma(0,0,0),kvdma(0,0,2)]
    A(f"s_sub_u32 s{sVB}, s{sVB}, 2080"); A(f"s_subb_u32 s{sVB+1}, s{sVB+1}, 0")
    if not cfg.su&1: o+=[kvdma(0,0,1),kvdma(0,0,3)]
    if cfg.cpf and not cfg.pro:
        A("s_getpc_b64 s[62:63]")
        if cfg.pads: A("Lpc:"); A("s_add_u32 s62, s62, Lmain-Lpc"); A("s_addc_u32 s63, s63, 0")
        A("s_lshr_b32 s4, s2, 3"); A(f"s_mul_i32 s4, s4, {128*CPF_LINES}")
        A(f"v_min_u32 v1, {CPF_LINES-1}, v0"); A("v_lshl_add_u32 v1, v1, 7, s4")
        A("global_load_dword v61, v1, s[62:63]")
    A("v_lshrrev_b32 v2, 4, v0"); A("v_lshlrev_b32 v4, 6, v2"); A(f"v_xor_b32 v{vQB}, v{vKVB}, v4"); A(f"v_add_u32 v{vQA}, 1056, v{vQB}")
    A(f"s_mul_i32 s{sQw}, s3, 24576"); A(f"s_add_u32 s{sTmp}, s{sH}, s{sQw}")
    A(f"s_sub_u32 s{sQB}, s{sQA}, 32"); A(f"s_subb_u32 s{sQB+1}, s{sQA+1}, 0")
    A(f"s_sub_u32 s{sQA}, s{sQA}, 1056"); A(f"s_subb_u32 s{sQA+1}, s{sQA+1}, 0")
    o.append(setm0(slotQ(0)))
    A(f"s_mov_b64 s[{sQA+2}:{sQA+3}], s[{sKA+2}:{sKA+3}]"); A(f"s_mov_b32 s{sQB+2}, {TOTB+32}"); A(f"s_mov_b32 s{sQB+3}, s{sKA+3}")
    o+=[qdma(0,0,j,sTmp) for j in range(4)]
    if cfg.su&1:
        o.append(setm0(1)); A(f"s_add_u32 s4, s{sOff}, 8192")
        o+=[kvdma(0,1,j,4) for j in (0,2)]
        o+=[setm0(0),I("s_nop 0"),kvdma(0,0,1),kvdma(0,0,3)]
    o.append(setm0(1)); A(f"s_add_u32 s{sOff}, s{sOff}, 8192")
    o+=[kvdma(0,1,j) for j in ((1,3) if cfg.su&1 else (0,2,1,3))]
    if cfg.pro: o+=[I("s_branch Lmain"), I(".p2align 12"), I("Lmain:")]
    A(f"s_mov_b32 s{sO+2}, {0 if cfg.diag else TOTB}"); A(f"s_mov_b32 s{sO+3}, 0x20000")
    A(f"s_add_u32 s{sHn}, s{sH}, {HEADB}")
    A(f"s_mov_b32 s{sC}, 0x3e0293ee"); A(f"s_mov_b32 s{sNC}, 0xbe0293ee"); A(f"s_mov_b32 s{sThr}, 0x4e800000")
    if cfg.pkf: A(f"s_mov_b32 s{sC2}, 0x3e0293ee"); A(f"s_mov_b32 s{sC2+1}, 0x3e0293ee")
    A(f"s_add_u32 s{sEnd}, s{sW4}, {NSLOT*SLOT}")
    A(f"s_mov_b32 s{sT}, 0")
    if cfg.profO or cfg.oddB: A("s_getreg_b32 s95, hwreg(HW_REG_XCC_ID)")
    A(f"s_mov_b64 s[{sBad}:{sBad+1}], 0"); A(f"s_mov_b64 s[{sBad2}:{sBad2+1}], 0")
    A(f"s_add_u32 s{sXe}, s{sW4}, {8*SLOT}"); A(f"s_add_u32 s4, s{sW4}, {SLOT}"); A(f"s_xor_b32 s{sXe}, s{sXe}, s4")
    A(f"s_add_u32 s4, s{sW4}, {2*SLOT}"); A(f"s_xor_b32 s{sXo}, s4, s{sW4}")
    A("v_and_b32 v3, 7, v0"); A(f"v_mul_u32_u24 v{vKl}, 2080, v3")
    A("v_bfe_u32 v3, v0, 3, 1"); A(f"v_lshl_add_u32 v{vKl}, v3, 8, v{vKl}")
    A(f"v_lshl_add_u32 v{vKl}, v2, 4, v{vKl}"); A(f"v_subrev_u32 v{vKl}, s{sW4}, v{vKl}")
    A("v_bfe_u32 v3, v0, 2, 3"); A(f"v_mul_u32_u24 v{vVl}, 2080, v3")
    A("v_lshrrev_b32 v3, 5, v0"); A(f"v_lshl_add_u32 v{vVl}, v3, 8, v{vVl}")
    A("v_and_b32 v4, 3, v0"); A(f"v_lshl_add_u32 v{vVl}, v4, 3, v{vVl}")
    A(f"v_add_u32 v{vVl}, 1024, v{vVl}"); A(f"v_subrev_u32 v{vVl}, s{sW4}, v{vVl}")
    A("v_mov_b32 v11, 0x3f803f80"); A("v_cmp_eq_u32 vcc, 0, v4")
    lane_consts(A,4)
    A("v_cndmask_b32 v11, 0, v11, vcc")
    for k in range(4): A(f"v_accvgpr_write_b32 a{ONES+k}, v11")
    for s in (1,2):
        o.append(setm0(slotQ(s))); A(f"s_add_u32 s{sTmp}, s{sTmp}, 4096")
        o+=[qdma(0,s,j,sTmp) for j in range(4)]
    return o

def slow_path():
    o=[]
    A=lambda t,**k: o.append(I(t,**k))
    sP=sCur
    A("; ==== fallback: exact two-pass softmax with the true row max for this wave's 96 rows of the head at byte offset s44")
    A("Lslow:")
    A("s_waitcnt vmcnt(0) lgkmcnt(0)")
    A(f"s_mul_i32 s{sP}, s3, {SLOT}")
    A(f"s_add_u32 s{sTmp}, s{sP}, s{sW4}")
    o+=setrd(sTmp)
    A(f"v_lshrrev_b32 v0, 4, v{vKVB}"); A("v_lshrrev_b32 v2, 4, v0")
    lane_consts(A,sTmp)
    A(f"s_mov_b32 m0, s{sTmp}")
    A(f"s_add_u32 s{sOff}, s{sH}, s{sQw}")
    for s in range(6):
        o+=[qdma(0,s,j) for j in range(4)]
        A("s_waitcnt vmcnt(0)")
        for ks in range(4): A(f"ds_read_b128 {ar(Qr(s,ks))}, v{vQ+ks}")
        A(f"s_add_u32 s{sOff}, s{sOff}, 4096")
        A("s_waitcnt lgkmcnt(0)")
    for s in range(6): A(f"v_mov_b32 v{MN+s}, 0xff800000")
    def loadkv():
        for j in range(4):
            A(f"s_add_u32 m0, s{sP}, {j*WREG}"); A("s_nop 0")
            o.extend(kvdma(0,0,jj) for jj in range(4))
            A(f"s_add_u32 s{sOff}, s{sOff}, 2048")
        A("s_waitcnt vmcnt(0)")
    A(f"s_mov_b32 s{sOff}, s{sH}"); A(f"s_mov_b32 s{sT}, 0")
    A("Lslow1:")
    loadkv()
    o+=frag_reads(0,0,tags=False)[:8]
    A("s_waitcnt lgkmcnt(0)")
    for s in range(6):
        o+=qk_mfmas(s,0,0)
        A("s_nop 7")
        for e in range(0,8,2): A(f"v_max3_f32 v{MN+s}, v{MN+s}, v{SB[0]+e}, v{SB[0]+e+1}")
    A(f"s_add_u32 s{sT}, s{sT}, 1"); A(f"s_cmp_lt_u32 s{sT}, 12"); A("s_cbranch_scc1 Lslow1")
    for s in range(6):
        m=MN+s
        A(f"v_mov_b32 v{T1}, v{m}"); A("s_nop 1"); A(f"v_permlane16_swap_b32 v{m}, v{T1}"); A(f"v_max_f32 v{m}, v{m}, v{T1}")
        A(f"v_mov_b32 v{T1}, v{m}"); A("s_nop 1"); A(f"v_permlane32_swap_b32 v{m}, v{T1}"); A(f"v_max_f32 v{m}, v{m}, v{T1}")
        A(f"v_mul_f32 v{m}, s{sNC}, v{m}")
    for r in range(64,256): A(f"v_mov_b32 v{r}, 0")
    for r in range(224,248): A(f"v_accvgpr_write_b32 a{r}, 0")
    A(f"s_mov_b32 s{sOff}, s{sH}"); A(f"s_mov_b32 s{sT}, 0")
    A("Lslow2:")
    loadkv()
    fr=frag_reads(0,0,tags=False)
    for k in range(3):
        o+=fr[8*k:8*k+8]; A("s_waitcnt lgkmcnt(0)")
    for s in range(6):
        o+=qk_mfmas(s,0,0)
        A("s_nop 7")
        for gp in sm_gaps(s,0,0): o+=gp
        A("s_nop 1")
        o+=pv_mfmas(s,0,0,False)
    A(f"s_add_u32 s{sT}, s{sT}, 1"); A(f"s_cmp_lt_u32 s{sT}, 12"); A("s_cbranch_scc1 Lslow2")
    A("s_nop 7")
    A(f"s_add_u32 s{sSt}, s{sH}, s{sQw}")
    for s in range(6):
        o+=e_head(s,None,None,T1)
        for dt in range(8): o+=e_pk(s,dt,None,T1)
        for dt in range(8): o+=e_cvt(s,dt,None)
        for dt in range(8): o.append(e_wr(s,dt,0,None,None))
        o+=epi_rd(s,0,None)+[I("s_waitcnt lgkmcnt(0)")]+epi_st(s,"",sSt)
        A(f"s_add_u32 s{sSt}, s{sSt}, 4096")
    A("s_branch Lslow_ret")
    for x in o:
        for k in ('tag','slot','wslot','wtag'): x.meta.pop(k,None)
    return o

def resolve(trace):
    vm=[]; lg=[]
    for x in trace:
        if x.label or x.meta.get('skip'): continue
        if 'auto_vm' in x.meta:
            idx=[k for k,y in enumerate(vm) if y.meta.get('tag')==x.meta['auto_vm'] and x.meta.get('wpart') in (None,y.meta.get('part'))]
            n=min(63,len(vm)-1-max(idx)); x.text=x.text.replace("vmcnt(AUTO)",f"vmcnt({n})"); x.meta['loose_ok']=True
        if 'auto_lg' in x.meta:
            k=[i for i,y in enumerate(lg) if y is x.meta['auto_lg']]
            assert k, "WL target not issued before wait: "+x.meta['auto_lg'].text
            n=min(15,len(lg)-1-k[0]); x.text=x.text.replace("lgkmcnt(AUTO)",f"lgkmcnt({n})")
        if x.kind=='vmem': vm.append(x)
        if x.kind=='ds': lg.append(x)

def build():
    set_units()
    P=prologue(); SA=startA(); TR=trans(); TB=[tailK,tailB,tailQ][cfg.G]()
    txt=lambda L:[x.text for x in L if not x.text.startswith(';')]
    assert txt(loopA2(0))==txt(loopA2(1))
    tb=range(1,3) if cfg.profB0 else range(3)
    for t in tb: assert txt(loopB(t))==txt(loopB(tb[0]))
    if cfg.loopR:
        assert txt(rampA(0))==txt(rampA(1)); RAt=rampA(0)+rampA(1); RA=[I(".p2align 3"),I("LloopA1:")]+rampA(0)
    else: RA=RAt=rampA()
    PB_=peelB() if cfg.profB0 else []
    extra=[]
    if cfg.profO:
        RO=rampA(prof=cfg.profO)
        t2=prologue()+startA()+RO+midA()+loopA2(0); resolve(t2)
        for p in check_trace([x for x in t2 if not x.meta.get('skip')]): print("ODD:",p)
        RA=[I("s_bitcmp1_b32 s95, 0"), I("s_cbranch_scc1 LrampO")]+RA+[I("s_branch LrampJ"), I("LrampO:")]+RO+[I("LrampJ:")]
    if cfg.midprof:
        MA=staticA(); trace=P+SA+MA+TR+PB_
    else: trace=P+SA+RAt+midA()+loopA2(0)+loopA2(1)+TR+PB_
    if not cfg.profBs:
        for t in tb: trace+=loopB(t)
    trace+=TB
    resolve(trace)
    probs=check_trace([x for x in trace if not x.meta.get('skip')])
    sp=slow_path()
    probs+=check_trace(sp+slow_path())
    seen=set()
    for p in probs:
        if p not in seen: print(p); seen.add(p)
    nd=(lambda L:[x for x in L if not getattr(x,'dma',False)]) if cfg.diag=='nodma' else (lambda L:L)
    if cfg.pads and not cfg.pro: P=P+[I("s_branch Lmain"), I(".p2align 12"), I("Lmain:")]
    if cfg.midprof: S=list(P)+stamp(0)+SA+stamp(1)+nd(MA)
    else: S=list(P)+stamp(0)+SA+stamp(1)+nd(RA)+midA()+[I(".p2align 3"),I("LloopA2:")]+nd(loopA2(0))
    if cfg.oddB: PB_=[I("s_bitcmp1_b32 s95, 0"), I(f"s_cselect_b32 s{sT}, -1, 0"), I("s_cbranch_scc1 LloopB")]+PB_
    S+=stamp(2)+nd(TR)+stamp(3)+nd(PB_)+([I(".p2align 3"),I("LloopB:")]+nd(loopB(tb[0])) if not cfg.profBs else [])
    S+=stamp(4)+TB+stamp(5)
    if cfg.slow:
        S+=[I(f"s_or_b64 s[62:63], s[{sBad}:{sBad+1}], s[{sBad2}:{sBad2+1}]"), I("s_barrier"), I("s_cbranch_scc1 Lslow_entry")]
    S+=[I("Lfin:")]
    if cfg.stamps:
        S+=[I("s_waitcnt vmcnt(0)"), I(f"s_memtime s[{sStamp+16}:{sStamp+17}]"), I(f"s_memrealtime s[{sStamp+18}:{sStamp+19}]"), I("s_waitcnt lgkmcnt(0)")]
        if cfg.echo>=0:
            esrc=[sStamp+2]+[sStamp+4+2*k for k in range(6)]+[sStamp+18]
            S+=[I(f"s_add_u32 s62, s{esrc[cfg.echo]}, 10000"), I("Lspin:"), I("s_sleep 2"), I("s_memrealtime s[88:89]"), I("s_waitcnt lgkmcnt(0)"),
                I("s_sub_u32 s63, s88, s62"), I("s_cmp_lt_i32 s63, 0"), I("s_cbranch_scc1 Lspin")]
        S+=[I(f"v_mov_b32 v8, s{sStamp+2}"), I(f"v_mov_b32 v9, s{sStamp+18}")]
        srcs=[sStamp+4+2*k for k in range(6)]+[sStamp+(18 if cfg.rt else 16)]
        for k,r in enumerate(srcs):
            S+=[I(f"s_sub_u32 s{sTmp}, s{r}, s{sStamp+(2 if cfg.rt else 0)}"), I(f"v_mov_b32 v{10+k}, s{sTmp}")]
        S+=[I("v_mov_b32 v17, 0"), I("v_mov_b32 v18, 0"), I("s_getreg_b32 s62, hwreg(HW_REG_XCC_ID)"), I("v_mov_b32 v19, s62")]
        S+=[I(f"s_mov_b32 s28, s{sDbg}"), I(f"s_mov_b32 s29, s{sDbg+1}"), I(f"s_mov_b32 s30, {cfg.dbgsz}"), I("s_mov_b32 s31, 0x20000"),
            I("s_lshl_b32 s62, s2, 8"), I("s_lshl_b32 s63, s3, 6"), I("s_add_u32 s62, s62, s63"), I("v_mov_b32 v1, 0")]
        if cfg.tl:
            S+=TL()+[I("s_waitcnt lgkmcnt(0)")]+TL()+[I("s_lshl_b32 s61, s62, 3"), I("s_add_u32 s61, s61, 65536"), I(f"v_lshrrev_b32 v5, 2, v{vKVB}"),
                I("buffer_store_dword v0, v5, s[28:31], s61 offen"), I("buffer_store_dword v61, v5, s[28:31], s61 offen offset:256")]
        S+=[I("s_mov_b64 exec, 1"),
            I("buffer_store_dwordx4 v[8:11], v1, s[28:31], s62 offen"), I("buffer_store_dwordx4 v[12:15], v1, s[28:31], s62 offen offset:16"), I("buffer_store_dwordx4 v[16:19], v1, s[28:31], s62 offen offset:32")]
    S+=[I("Lend:"), I("s_endpgm")]
    if cfg.slow:
        S+=[I("Lslow_entry:"), I(f"s_cmp_lg_u64 s[{sBad}:{sBad+1}], 0"), I("s_cbranch_scc1 Lslow"),
            I("Lslow_ret:"), I(f"s_cmp_eq_u64 s[{sBad2}:{sBad2+1}], 0"), I("s_cbranch_scc1 Lfin"),
            I(f"s_mov_b64 s[{sBad2}:{sBad2+1}], 0"), I(f"s_mov_b32 s{sH}, s{sHn}")]
        S+=sp
    else: S+=[I(".fill 2048, 4, 0xbf810000")]
    return S, bool([p for p in probs if not p.startswith("NOTE")])

from gen import FTR
HDR="""; Kernarg layout for this problem (48 bytes, ptrs only, base s[0:1]):
;   offset   0: d_in[0] q  shape=(16, 32, 384, 128) dtype=bfloat16 strides=(3145728, 98304, 256, 2) contiguous=True
;   offset   8: d_in[1] k  shape=(16, 32, 384, 128) dtype=bfloat16 strides=(3145728, 98304, 256, 2) contiguous=True
;   offset  16: d_in[2] v  shape=(16, 32, 384, 128) dtype=bfloat16 strides=(3145728, 98304, 256, 2) contiguous=True
; @launch grid=(256,1,1) block=(256,1,1) lds=%d
;
; softmax(Q K^T / sqrt(128)) V for 512 heads of 384 x 128.   (emitted by my own generator script)
; -------------------------------------------------------------------------------------------------
; * One workgroup (4 waves, one per SIMD, 512 registers each) per CU handles heads 2*wg (A) and 2*wg+1 (B).
; * v_mfma_f32_16x16x32_bf16 throughout:  S^T = K Q^T (8 MFMA),  O^T += V^T P^T (8 MFMA),  row sums l += 1^T P^T (1 MFMA).
; * Q/K/V stream global -> LDS with buffer_load ... lds through nine 16640-byte slots (padded so that the K b128 reads and the
;   transposing V reads are bank-conflict free); K/V fragments are double buffered in AGPRs, O lives in v64..v255.
; * Softmax guard: p = exp2(c*s - c*m) with m = the row's true max over its first key block (so l >= 1, nothing underflows that the
;   two-pass softmax that subtracts the true max over all 384 keys.
;   part of head A's output is parked in LDS and written while head B no longer loads.
; * Lpad<k>/Lret<k>: while waiting for the first loads each wave touches the first line of every 4 KiB page of the kernel once
;   (branch there with EXEC=0 and straight back, no memory instruction runs) because instruction prefetch stops at page ends.
.amdgcn_target "amdgcn-amd-amdhsa--gfx950"
.text
.globl %s
.p2align 8
.type %s,@function
%s:
"""
def isize(x):
    return SZ[x.text]
def write(fn):
    S,bad=build()
    if cfg.pads and SZ:
        out=[]; addr=None; k=1
        for n,x in enumerate(S):
            out.append(x)
            if x.text=="Lmain:": addr=0; continue
            if addr is None: continue
            if x.text==".p2align 3": addr=(addr+7)&~7; continue
            if x.label: continue
            a0=addr; addr+=SZ.get(x.text,4)
            if k<=NPADS and addr>=k*cfg.pads+cfg.padoff and (x.kind=='mfma' or addr>=k*cfg.pads+cfg.padoff+24) and not x.op.startswith('s_cbranch') and not x.op.startswith('s_branch') and x.text!='s_mov_b64 exec, 0':
                out+=[I(f"Lpad{k}:"), I(f"s_cbranch_execz Lret{k}")]; addr+=4; k+=1
        assert k==NPADS+1,(k,NPADS)
        S=out
    with open(fn,"w") as f:
        f.write(HDR%(LDSB,NAME,NAME,NAME))
        jn=0
        for x in S:
            t=x.text
            if x.meta.get('jit'):
                jn+=1
                f.write(f"    s_cmp_eq_u32 s3, {(jn*cfg.jit)%4}\n    s_cbranch_scc0 Ljit{jn}\n    s_sleep {20+10*(jn%5)}\nLjit{jn}:\n"); continue
            if cfg.drop=='exp' and t.startswith('v_exp'): t=t.replace('v_exp_f32','v_mov_b32')
            if cfg.drop=='exp0' and t.startswith('v_exp'): continue
            if cfg.drop=='fma' and t.startswith('v_fma'): continue
            if cfg.drop=='sum' and t.startswith(MF+' a['): continue
            f.write((t if (t.endswith(':') or t.startswith('.')) else "    "+t)+"\n")
        f.write(FTR%NAME)
    return bad
SZ={}
def sizes(co):
    import subprocess
    out=subprocess.run(["llvm-objdump","-d","--mcpu=gfx950",co],capture_output=True,text=True).stdout
    sym={m.group(2):int(m.group(1),16) for m in re.finditer(r"^([0-9a-f]+) <(\w+)>:",out,re.M)}
    last=int(re.findall(r"// ([0-9A-F]{12}):",out)[-1],16)
    st=sym.get('Lmain',sym[NAME])
    return sym.get('Lfin',sym.get('Lend'))-st, last+4-st
if __name__=="__main__":
    ap=argparse.ArgumentParser()
    ap.add_argument("out"); ap.add_argument("opts",nargs="*")
    a=ap.parse_args()
    for kv in a.opts:
        k,v=kv.split("=",1)
        cur=getattr(cfg,k)
        setattr(cfg,k, (v in("1","True","true")) if isinstance(cur,bool) else (int(v) if isinstance(cur,int) else v.replace("+"," ")))
    from mkco import build as mk
    for it in range(4):
        bad=write(a.out); co=mk(a.out); hot,tot=sizes(co)
        need=-(-hot//(32*128))
        done=(need==CPF_LINES)
        CPF_LINES=need
        if cfg.pads:
            import subprocess
            lst=subprocess.run(["llvm-objdump","-d","--mcpu=gfx950",co],capture_output=True,text=True).stdout
            lst=lst[lst.index("<Lmain>:"):]
            enc=[len(m.group(1).split())*4 for m in re.finditer(r"// [0-9A-F]{12}: ([0-9A-F ]+)",lst)]
            src=open(a.out).read(); src=src[src.index("Lmain:\n"):].split("\n")[1:]
            j=0; addr=0
            for ln in src:
                t=ln.strip()
                if t.startswith(".section"): break
                if t==".p2align 3":
                    if addr%8: j+=1; addr+=4
                    continue
                if not t or t.startswith(";") or t.endswith(":") or t.startswith("."): continue
                SZ[t]=enc[j]; addr+=enc[j]; j+=1
            np_=(hot-64-cfg.padoff)//cfg.pads
            if np_!=NPADS: done=False
            NPADS=np_
        if done and it>0: break
    assert 32*128*CPF_LINES+256<=tot, (hot,tot)
    print(co, "PROBLEMS" if bad else "clean", "hot",hot,"total",tot,"cpf lines",CPF_LINES)
```

```python
import sys, argparse, re, functools
sys.path.insert(0,'work')
from asmlib import I, check_trace
NAME="standalone__gqa_softmax__near_ridge_kernel"
SLOT=16640; WREG=4160; NSLOT=9
LDSB=NSLOT*SLOT
HEADB=98304
TOTB=50331648

class Cfg:
    ld="nt"; st="sc1"; st2="nt"
    stamps=False; rt=False; tl=False; dbgsz=0x400000; echo=-1; diag=''
    slow=True; cpf=True
    rho=3; rhoG=3; rhoE=8
    prof='47,47,44,40'
    loopR=False
    profB='00,00'
    profB0='40,20'
    profO=''
    oddB=False
    midprof=''
    profS=0
    G=1
    rho2=8; nd1=13
    tls=False
    profBs=''
    profT=0
    pro=0
    jit=0
    tsched=''
    echox=-1
    tw=0
    sdm='22222222222222'
    slz=0
    su=0
    bar11=0
    pads=0
    padoff=0
    st3=''; n3=3
    pkf=0
    drop=''
    dl=0
cfg=Cfg()

def O(s,dt): return 64+32*s+4*dt
SB=[16,24]; PB=[32,36]
MN=40
vK,vV,vKl,vVl=46,47,48,49
vD=[50,51]
vQ=52
vR=[56,63]
vKVA,vKVB,vQA,vQB=57,58,59,60
vW=[5,6,7,62]
T0,T1,T2,T3=1,2,3,4
DR=[8,12]
QREGS=[vQ+k for k in range(4)]
def Qr(s,ks): return 16*s+4*ks
def Kf(par,i): return 96+32*par+4*i
def Vf(par,dt): return 160+32*par+4*dt
def Lr(s): return 224+4*s
ONES=248
sKA,sVB,sQA,sQB,sO=8,12,16,20,24
sOff,sCur,sC,sH,sW4,sT,sPe,sEnd,sKVw,sQw,sThr=40,42,43,44,45,46,47,48,49,50,51
sBad=52; sBad2=96
sTmp,sSt,sNC,sHn,sDbg=55,57,58,59,60
sSd,sDi=41,54
sStamp=64
sPo,sXe,sXo=92,93,94
sC2=38

def vr(a,n=4): return f"v[{a}:{a+n-1}]"
def ar(a,n=4): return f"a[{a}:{a+n-1}]"
def sr(a,n=4): return f"s[{a}:{a+n-1}]"
def offs(o): return f" offset:{o}" if o else ""

def slotKV(h,b):
    if b<2: return b
    if h==0: return (6+b)%9
    return ([8,2,0,1] if cfg.tw&2 else [8,0,1,2])[(b-2)%4]
def slotQ(s): return 2+s
UOFF=[0,1024,2080,3104]
def dma(j,tag,slot,q,off=sOff):
    A,B,va,vb=(sQA,sQB,vQA,vQB) if q else (sKA,sVB,vKVA,vKVB)
    p=f" {cfg.ld}" if cfg.ld else ""
    return I(f"buffer_load_dwordx4 v{[va,va,vb,vb][j]}, {sr([A,B,A,B][j])}, s{off} offen{offs(UOFF[j])}{p} lds", tag=tag, slot=slot, part=(None if q else 'KV'[j&1]))
def kvdma(h,b,j,off=sOff): return dma(j,f"h{h}KV{b}",slotKV(h,b),False,off)
def qdma(h,s,j,off=sOff): return dma(j,f"h{h}Q{s}",slotQ(s),True,off)
def pdma(n,j):
    if n<18: return kvdma(0,n-6,j)
    if n<20: return kvdma(1,n-18,j)
    return qdma(1,n-20,j)
def setm0(slot): return I(f"s_add_u32 m0, s{sW4}, {slot*SLOT}") if slot else I(f"s_mov_b32 m0, s{sW4}")
def frag_reads(h,b,base=0,rk=vK,rv=vV,tags=True):
    m=dict(src=f"h{h}KV{b}",slot=slotKV(h,b)) if tags else {}
    par=b&1
    return [I(f"ds_read_b128 {ar(Kf(par,i))}, v{rk}{offs(base+(i//4)*512+(i%4)*64)}",part='K',**m) for i in range(8)]+\
           [I(f"ds_read_b64_tr_b16 {ar(Vf(par,i//2)+2*(i%2),2)}, v{rv}{offs(base+(i%2)*512+(i//2)*32)}",part='V',**m) for i in range(16)]
def qreads(h,s): return [I(f"ds_read_b128 {ar(Qr(s,ks))}, v{vQ+ks}{offs((s%4)*SLOT)}", src=f"h{h}Q{s}", slot=slotQ(s), private=True) for ks in range(4)]
def bias(regs,up): return [I(f"{'v_add_u32' if up else 'v_subrev_u32'} v{r}, {4*SLOT}, v{r}") for r in regs]
def setrd(reg,rk=vK,rv=vV): return [I(f"v_add_u32 v{rk}, s{reg}, v{vKl}"), I(f"v_add_u32 v{rv}, s{reg}, v{vVl}")]

FA=[(b,s) for s in range(6) for b in (0,1)]
LA=[(10,0),(10,1),(10,2),(11,0),(11,1),(10,3),(11,2),(10,4),(11,3),(10,5),(11,4),(11,5)]
FB=[(0,0),(0,1),(1,0),(0,2),(1,1),(0,3),(1,2),(0,4),(1,3),(0,5),(1,4),(1,5)]
MID=[(b,s) for b in range(2,10) for s in range(6)]
GB=[(b,s) for b in (8,9,10,11) for s in (0,1,2)]+[(8,3),(8,4),(8,5),(9,3),(9,4),(9,5),(10,3),(11,3),(10,4),(11,4),(10,5),(11,5)]
LB=[(10,0),(10,1),(10,2),(11,0),(11,1),(11,2),(10,3),(11,3),(10,4),(11,4),(10,5),(11,5)]
LQ=[(b,s) for s in range(6) for b in (10,11)]
UNITS=[]
def set_units():
    UNITS[:]=[(0,)+u for u in FA+MID+LA]+[(1,)+u for u in (FB+MID[:36]+GB if cfg.G==1 else FB+MID+(LB if cfg.G==0 else LQ))]
def unit(i): return UNITS[i] if 0<=i<len(UNITS) else None

MF="v_mfma_f32_16x16x32_bf16"
def qk_mfmas(s,kpar,sb,u=None):
    o=[]
    for i in range(8):
        kt,ks=divmod(i,4); d=SB[sb]+4*kt
        x=I(f"{MF} {vr(d)}, {ar(Kf(kpar,i))}, {ar(Qr(s,ks))}, {'0' if ks==0 else vr(d)}")
        if u:
            x.meta['expect']={**{r:f"h{u[0]}KV{u[1]}" for r in x.A}, **{r:f"h{u[0]}Q{u[2]}" for r in x.B}}
            x.meta['set']={r:f"S{u}" for r in x.wr}
        o.append(x)
    return o
def pv_mfmas(s,vpar,pb,first,u=None):
    o=[I(f"{MF} {vr(O(s,dt))}, {ar(Vf(vpar,dt))}, {vr(PB[pb])}, {'0' if first else vr(O(s,dt))}") for dt in range(8)]
    o.append(I(f"{MF} {ar(Lr(s))}, {ar(ONES)}, {vr(PB[pb])}, {'0' if first else ar(Lr(s))}"))
    if u:
        cnt=sum(1 for y in UNITS[:UNITS.index(u)] if y[0]==u[0] and y[2]==u[2])
        for k,x in enumerate(o):
            e={r:f"P{u}" for r in x.B}
            if k<8: e.update({r:f"h{u[0]}KV{u[1]}" for r in x.A})
            if not first: e.update({r:f"O{u[0]}n{cnt}" for r in x.wr})
            x.meta['expect']=e; x.meta['set']={r:f"O{u[0]}n{cnt+1}" for r in x.wr}
    return o
FREE=(5,11,16)
def sm_gaps(s,sb,pb,u=None):
    S=SB[sb]; P=PB[pb]
    T=(lambda **k:k) if u else (lambda **k:{})
    f=lambda e: I(f"v_fma_f32 v{S+e}, v{S+e}, s{sC}, v{MN+s}", **T(expect={('v',S+e):f"S{u}",('v',MN+s):f"M{u and u[0]}"}))
    x=lambda e: I(f"v_exp_f32 v{S+e}, v{S+e}", **T(expect={('v',S+e):f"S{u}"}))
    c=lambda e: I(f"v_cvt_pk_bf16_f32 v{P+e//2}, v{S+e}, v{S+e+1}", **T(expect={('v',S+e):f"S{u}",('v',S+e+1):f"S{u}"}, set={('v',P+e//2):f"P{u}"}))
    if cfg.pkf:
        mb=MN+(s&~1); sel="op_sel:[0,0,1] op_sel_hi:[1,0,1]" if s&1 else "op_sel_hi:[1,0,0]"
        pf=lambda e: I(f"v_pk_fma_f32 v[{S+e}:{S+e+1}], v[{S+e}:{S+e+1}], s[{sC2}:{sC2+1}], v[{mb}:{mb+1}] {sel}", **T(expect={('v',S+e):f"S{u}",('v',MN+s):f"M{u and u[0]}"}))
        if cfg.pkf==1: return [[pf(0)],[x(0)],[x(1)],[pf(2)],[x(2)],[],[x(3)],[pf(4)],[x(4)],[x(5)],[pf(6)],[],[x(6)],[x(7)],[c(0),c(2)],[c(4),c(6)],[]]
        return [[pf(0),pf(2),pf(4),pf(6)],[x(0)],[x(1)],[],[x(2)],[],[x(3)],[],[x(4)],[x(5)],[],[],[x(6)],[x(7)],[c(0),c(2)],[c(4),c(6)],[]]
    return [[f(0),f(1)],[x(0)],[x(1)],[f(2),f(3)],[x(2)],[],[x(3)],[f(4),f(5)],[x(4)],[x(5)],[f(6),f(7)],[],[x(6)],[x(7)],[c(0),c(2)],[c(4),c(6)],[]]
def max_seq(s,sb,h):
    S=SB[sb]
    return [I(f"v_max3_f32 v{T0}, v{S}, v{S+1}, v{S+2}"), I(f"v_max3_f32 v{T3}, v{S+3}, v{S+4}, v{S+5}"),
            I(f"v_max3_f32 v{T0}, v{T0}, v{S+6}, v{S+7}"), I(f"v_max_f32 v{T0}, v{T0}, v{T3}"),
            I(f"v_mov_b32 v{T3}, v{T0}"), I(f"v_permlane16_swap_b32 v{T0}, v{T3}"),
            I(f"v_max_f32 v{T0}, v{T0}, v{T3}"), I(f"v_mov_b32 v{T3}, v{T0}"),
            I(f"v_permlane32_swap_b32 v{T0}, v{T3}"), I(f"v_max_f32 v{T0}, v{T0}, v{T3}"),
            I(f"v_mul_f32 v{MN+s}, s{sNC}, v{T0}", set={('v',MN+s):f"M{h}"})]
MAXG=[11,11,12,12,12,13,14,14,15,16,16]
def put(ex,g,items): ex.setdefault(g,[]).extend(items)

def step(i, ex=None, post=None, clump=0, sumfirst=False):
    ex=ex or {}; post=post or {}
    q,m,p=unit(i+1),unit(i),unit(i-1)
    mf=(qk_mfmas(q[2],q[1]&1,(i+1)&1,q) if q else [None]*8)+(pv_mfmas(p[2],p[1]&1,(i-1)&1,p[1]==0,p) if p else [None]*9)
    if sumfirst: mf=mf[:8]+[mf[16]]+mf[8:16]
    g=sm_gaps(m[2],i&1,i&1,m) if m else [[] for _ in range(17)]
    for src,dst in [(2,1),(9,8),(13,12),(15,14),(4,3),(7,6),(1,0)][:clump]:
        g[dst]=g[dst]+g[src]; g[src]=[]
    tailmax=[]
    if q and q[1]==0:
        ms=max_seq(q[2],(i+1)&1,q[0])
        if p and m and not (cfg.slz&1 and i<13):
            for gg,x in zip(MAXG,ms): g[gg]=g[gg]+[x]
        else:
            for x in ms:
                if x.op.startswith('v_permlane'): tailmax.append(I("s_nop 1"))
                tailmax.append(x)
    out=[I(f"; ---- step {i}: QK{q} softmax{m} PV{p}")]
    if cfg.tls and i<=30:
        w=I("s_waitcnt lgkmcnt(0)"); w.meta['skip']=True
        out+=[w]+TL()
    out+=ex.get(-1,[])
    for k in range(17):
        if mf[k] is not None: out.append(mf[k])
        out+=ex.get(k,[])+g[k]+post.get(k,[])
    return out+tailmax+ex.get(17,[])

def free_gaps(ex,lo,n,avoid=()):
    return [x for x in range(lo,17) if x not in FREE and x not in ex and x not in avoid][:n]
def spread(ex,lo,items,avoid=()):
    gs=free_gaps(ex,lo,len(items),avoid)
    while len(gs)<len(items): gs.append(gs[-1])
    for x,i in zip(gs,items): put(ex,x,[i])
def TL():
    if not cfg.tl: return []
    r=[I("s_mov_b64 exec, s[90:91]"), I("v_mov_b32 v0, s98"), I("v_mov_b32 v61, s100"), I("s_mov_b64 exec, -1"), I("s_lshl_b64 s[90:91], s[90:91], 1"), I("s_memtime s[98:99]"), I("s_memrealtime s[100:101]")]
    for x in r: x.meta['skip']=True
    return r
JN=[0]
def BAR():
    r=[I("s_barrier")]+([] if cfg.tls else TL())
    if cfg.jit:
        x=I("JITTER_PLACEHOLDER:"); x.meta['jit']=True; r.append(x)
    return r
def WV(tag,lg0=False,part=None): return I("s_waitcnt vmcnt(AUTO)"+(" lgkmcnt(0)" if lg0 else ""), auto_vm=tag, need=tag, wpart=part)
def WL(x): return I("s_waitcnt lgkmcnt(AUTO)", auto_lg=x)

def kind(x):
    if x.op.startswith('ds_read'): return 'r'
    if x.op.startswith('ds_write'): return 'w'
    if getattr(x,'dma',False): return 'd'
    if getattr(x,'store',False): return 's'
    return 'a'
def gapcost(ks,free):
    if not ks: return 0
    U={'r':4,'d':6,'w':12,'s':12,'a':4}
    c=sum(U[k] for k in ks)
    if ks[0]=='a': c-=4
    if len(ks)==1 and ks[0]=='d': c=4 if not free else 8
    for p,q in zip(ks,ks[1:]):
        if p=='w' and q=='r': c+=12
    st=12*ks.count('s')
    if free: return st+max(0,c-st-8)
    return c+4*max(0,len([k for k in ks if k!='a'])-1)
def place(ex,groups,lo=0,hi=16,free=FREE):
    groups=[g if isinstance(g,list) else [g] for g in groups]
    n=len(groups)
    if not n: return
    base={g:[kind(x) for x in ex.get(g,[]) if not x.label and not x.meta.get('skip')] for g in range(17)}
    @functools.lru_cache(None)
    def f(g,i):
        if i==n: return (0,())
        if g>hi: return (1e9,())
        best=(1e9,())
        for m in range(0,min(4,n-i)+1):
            ks=base[g]+[kind(x) for gr in groups[i:i+m] for x in gr]
            c=gapcost(ks,g in free)-gapcost(base[g],g in free)
            c+=0.01*sum(abs(g-(lo+(hi-lo)*(j+0.5)/n)) for j in range(i,i+m))
            r=f(g+1,i+m)
            if c+r[0]<best[0]: best=(c+r[0],(g,)*m+r[1])
        return best
    c,gs=f(lo,0)
    assert len(gs)==n
    for g,gr in zip(gs,groups): put(ex,g,gr)

def put_reads(ex,post,reads,r,late):
    rs=reads[4*r:4*r+4]
    nw=max(0,late-4); late=min(late,4)
    if late:
        gs=[6,8,12,13] if r<5 else [2,6,8,9]
        for k in range(late): put(post,gs[k],[rs[k]]+([I("s_waitcnt lgkmcnt(0)")] if k in [3,1,2,0][:nw] else []))
        if rs[late:]: put(ex,16 if r<5 else 11,rs[late:])
    else:
        rg=(5,16) if r<5 else (5,11)
        put(ex,rg[0],rs[:2]); put(ex,rg[1],rs[2:])
def loop_end(ex,lab,n):
    put(ex,13,[I(f"s_add_u32 s{sT}, s{sT}, 1")]); put(ex,15,[I(f"s_cmp_lt_u32 s{sT}, {n}")]); put(ex,16,[I(f"s_cbranch_scc1 {lab}")])

def blockA(b,pairs,pf,nv=None,lab=None,n=0):
    late,clump=int(pf[0]),int(pf[1])
    reads=frag_reads(0,b+1); tag=f"h0KV{b+1}"
    out=[]
    inc=4096 if pairs[0]>=20 else 8192
    if len(pairs)==2: dpos={0:[(0,0,11)],1:[(0,1,3),(0,2,11)],2:[(0,3,11)],3:[(1,0,11)],4:[(1,1,3),(1,2,11)],5:[(1,3,14)]}; advr=(0,3)
    else: dpos={0:[(0,0,11)],2:[(0,1,11)],3:[(0,2,11)],4:[(0,3,11)]}; advr=(0,)
    for r in range(6):
        ex={}; post={}
        if r==0:
            put(ex,0,[I(f"s_waitcnt vmcnt({nv}) lgkmcnt(0)", need=tag, loose_ok=True) if nv is not None else WV(tag,True)])
            put(ex,1,BAR()); put(post,4,setrd(sCur))
        put_reads(ex,post,reads,r,late)
        for (p,j,g) in dpos.get(r,[]): put(ex,g,[pdma(pairs[p],j)])
        if r in advr: spread(ex,2,[I(f"s_add_u32 m0, m0, {SLOT}"), I(f"s_cmp_ge_u32 m0, s{sEnd}"), I(f"s_cselect_b32 m0, s{sW4}, m0"), I(f"s_add_u32 s{sOff}, s{sOff}, {inc}")])
        if r==3: put(ex,15,[I(f"s_waitcnt lgkmcnt({4+late if late else 6})")])
        if r==5:
            spread(ex,0,[I(f"s_add_u32 s{sCur}, s{sCur}, {SLOT}"), I(f"s_cmp_ge_u32 s{sCur}, s{sEnd}"), I(f"s_cselect_b32 s{sCur}, s{sW4}, s{sCur}")])
            if lab: loop_end(ex,lab,n)
        out+=step(6*b+1+r,ex,post,clump)
    return out
def rampA(t=None,prof=None):
    pf=(prof or cfg.prof).split(',')
    if t is not None:
        n=12+4*t
        return blockA(2*t+2,[n,n+1],pf[0],nv=8)+blockA(2*t+3,[n+2,n+3],pf[1],nv=12,lab="LloopA1",n=2)
    o=[]
    for k,b in enumerate(range(2,6)): o+=blockA(b,[12+2*k,13+2*k],pf[k])
    return o
def staticA():
    out=[I("; ==== head A key blocks 2..9")]
    seq=list(LEFT)+[(n,j) for n in range(12,24) for j in range(4)]
    pos={4:[(0,11),(2,11),(3,11),(4,11)], 5:[(0,11),(1,11),(2,11),(3,11),(4,11)], 6:[(0,11),(1,11),(2,11),(3,11),(4,11),(5,14)],
         7:[(0,11),(1,11),(2,3),(2,11),(3,11),(4,11),(5,14)], 8:[(0,11),(1,3),(1,11),(2,11),(3,11),(4,3),(4,11),(5,14)]}
    pf=cfg.midprof.split(',')
    assert sum(int(p[2]) for p in pf)==len(seq),len(seq)
    for b,p in zip(range(2,10),pf):
        late,clump,nd=int(p[0]),int(p[1]),int(p[2])
        sl=slotKV(0,b+1); base=(sl%4)*SLOT
        reads=frag_reads(0,b+1,base=base); tag=f"h0KV{b+1}"
        for r in range(6):
            ex={}; post={}
            lb=2 if (b==2 and cfg.su&4) else 0
            if r==0 and lb: put(ex,7,[I("s_waitcnt lgkmcnt(0)")])
            if r==lb:
                put(ex,0,[WV(tag,True)]); put(ex,1,BAR())
                if sl%4==0:
                    put(ex,2,[I(f"s_add_u32 s{sCur}, s{sW4}, {sl*SLOT}")]); put(post,4,setrd(sCur))
            if lb:
                if r>=2:
                    rr=reads[6*(r-2):6*(r-2)+6]
                    gs=[6,8,12,13] if r<5 else [2,6,8,9]
                    put(ex,5,rr[:2])
                    for k in range(4): put(post,gs[k] if r<5 else [6,8,9,10][k],[rr[2+k]]+([I("s_waitcnt lgkmcnt(0)")] if k in [3,1,2,0][:max(0,late-4)] else []))
            else: put_reads(ex,post,reads,r,late)
            for (rr,g) in pos[nd]:
                if rr==r:
                    n,j=seq.pop(0)
                    if j==0:
                        pre=[setm0(n%9), I(f"s_add_u32 s{sOff}, s{sOff}, {4096 if n>20 else 8192}") if n!=20 else I(f"s_add_u32 s{sOff}, s{sHn}, s{sQw}")]
                        gs=[x for x in range(g-1,-1,-1) if x not in ex and x not in FREE][:2]
                        while len(gs)<2: gs.append(g)
                        put(ex,gs[1],[pre[0]]); put(ex,gs[0],[pre[1]])
                    put(ex,g,[pdma(n,j)])
            if r==3: put(ex,15,[WL(reads[7])])
            if b==9 and r==5: put(ex,12,[I(f"s_add_u32 s{sCur}, s{sW4}, {8*SLOT}")])
            out+=step(6*b+1+r,ex,post,clump)
    assert not seq
    return out
def midA(): return [I(f"s_add_u32 s{sOff}, s{sHn}, s{sQw}"), I(f"s_sub_u32 s{sOff}, s{sOff}, 4096"), I(f"s_mov_b32 s{sT}, 0")]
def loopA2(t): return blockA(2*t+6,[20+2*t],'00',nv=24)+blockA(2*t+7,[21+2*t],'00',nv=24,lab="LloopA2",n=2)

def ostore(reg,j,pol,so,tag=None):
    x=I(f"buffer_store_dwordx4 {vr(reg)}, v{vKVB}, {sr(sO)}, s{so} offen{offs(1024*j)}"+(f" {pol}" if pol else ""))
    if tag: x.meta['expect']={r:tag for r in x.data}
    return x
DIRECT=2
def dunit(k): return (DIRECT+k//4, k%4)
def blockB(b,pf,lab=None,n=0):
    late,clump=int(pf[0]),int(pf[1])
    t=(b-2)//2
    reads=frag_reads(1,b+1); tag=f"h1KV{b+1}"
    out=[]; lead=(b%2==0)
    rp,wp=(sPo,sPe) if lead else (sPe,sPo)
    rx=sXo if lead else sXe
    nb=cfg.dl//2; loc0=(0 if lead else nb)
    dr=[]; sts=[]
    for k in range(nb):
        sub,j=dunit(cfg.dl*t+loc0+k); jj=loc0+k
        dr.append(I(f"ds_read_b128 {vr(DR[jj&1])}, v{vD[jj&1]}{offs(1024*jj)}", src=f"O{sub}", slot=slotQ(sub), private=True))
        sts.append(ostore(DR[jj&1],jj,cfg.st,sSd,f"O{sub}"))
    for r in range(6):
        ex={}; post={}
        if r==0:
            put(ex,0,[I(f"s_waitcnt vmcnt({8+nb}) lgkmcnt(0)", need=tag, loose_ok=True)])
            put(ex,1,BAR())
            put(ex,2,[I(f"s_mov_b32 m0, s{wp}")]); put(ex,3,[I(f"s_xor_b32 s{rp}, s{rp}, s{rx}")])
            put(ex,4,[I(f"s_add_u32 s{sOff}, s{sOff}, 8192")]); put(post,4,setrd(rp))
        put_reads(ex,post,reads,r,late)
        if r<4: put(ex,11,[kvdma(1,b+4,r)])
        if r==3: put(ex,15,[I(f"s_waitcnt lgkmcnt({4+late if late else 6})")])
        if r==4 and nb: put(ex,11,dr)
        if r==5 and nb:
            put(ex,1,[I("s_waitcnt lgkmcnt(2)")]); put(ex,3,[sts[0]])
            if nb==2: put(ex,10,[sts[1]])
        if r==5 and not lead:
            if nb:
                put(ex,12,[I(f"s_add_u32 s{sSd}, s{sSd}, {1024*cfg.dl}")])
                inc=f"{SLOT}" if cfg.dl==4 else f"s{sDi}"
                put(post,16 if not lab else 7,[I(f"v_add_u32 v{vD[k]}, {inc}, v{vD[k]}") for k in range(2)])
                if cfg.dl==2: put(ex,0,[I(f"s_xor_b32 s{sDi}, s{sDi}, {2048^(SLOT-2048)}")])
            if lab: loop_end(ex,lab,n)
        out+=step(72+6*b+1+r,ex,post,clump)
    return out
def loopB(t):
    pf=cfg.profB.split(',')
    return blockB(2*t+2,pf[0])+blockB(2*t+3,pf[1],lab="LloopB",n=(2 if cfg.profB0 else 3))
def peelB():
    if cfg.profBs:
        o=[]
        for b,p in zip(range(2,8),cfg.profBs.split(',')): o+=blockB(b,p)
        return o
    pf=cfg.profB0.split(',')
    return blockB(2,pf[0])+blockB(3,pf[1])

def tagexp(o,tag):
    if tag:
        h=0 if tag[0]=='O' else 1
        for x in o:
            x.meta['expect']={r:f"O{h}n12" for r in x.rd if (r[0]=='v' and r[1]>=64) or (r[0]=='a' and 224<=r[1]<248)}
    return o
def e_head(s,bad,tag,rc):
    o=[I(f"v_accvgpr_read_b32 v{T2}, a{Lr(s)}"), I(f"v_rcp_f32 v{rc}, v{T2}")]
    o.append(I(f"v_cmp_nge_f32 vcc, s{sThr}, v{T2}") if bad is not None else I("s_nop 0"))
    if bad is not None: o.append(I(f"s_or_b64 s[{bad}:{bad+1}], s[{bad}:{bad+1}], vcc"))
    return tagexp(o,tag)
def e_pk(s,dt,tag,rc):
    a=O(s,dt)
    return tagexp([I(f"v_pk_mul_f32 {vr(a+k,2)}, {vr(a+k,2)}, v[{rc}:{rc+1}] op_sel_hi:[1,0]") for k in (0,2)],tag)
def e_cvt(s,dt,tag):
    a=O(s,dt)
    return tagexp([I(f"v_cvt_pk_bf16_f32 v{a}, v{a}, v{a+1}"), I(f"v_cvt_pk_bf16_f32 v{a+1}, v{a+2}, v{a+3}")],tag)
def e_wr(s,dt,off,slot,tag,regs=vW):
    return tagexp([I(f"ds_write_b64 v{regs[dt&3]}, {vr(O(s,dt),2)}{offs(off+(dt>>2)*128)}", wslot=slot, wtag=tag)],tag)[0]
def epi_rd(s,off,slot,tag=None,regs=vR):
    m=dict(src=tag,slot=slot,private=True) if tag else {}
    return [I(f"ds_read_b128 {vr(O(s,2*j))}, v{regs[j&1]}{offs(off+1024*j)}", **m) for j in range(4)]
def epi_st(s,pol,so,tag=None): return [ostore(O(s,2*j),j,pol,so,tag) for j in range(4)]

class Epi:
    def __init__(s,rc2,so): s.rc2=rc2; s.so=so; s.tiles=[]; s.cv=[]; s.wr=[]; s.rd=[]; s.st=[]; s.info={}
    def add(s,sub,avail,off,slot,bad,tag,direct,pol,pre=()):
        s.info[sub]=dict(off=off,slot=slot,bad=bad,tag=tag,direct=direct,pol=pol,pre=list(pre))
        s.tiles+=[(avail,sub,dt) for dt in range(8)]
    def _rd(s,g):
        rd=s.rd; s.rd=[]
        for sub in rd:
            I_=s.info[sub]; r=epi_rd(sub,I_['off'],I_['slot'],I_['tag']); g+=[[x] for x in r]
            st=epi_st(sub,I_['pol'],s.so,I_['tag'])
            s.st+=[[WL(r[1]),st[0]],[st[1]],[WL(r[3]),st[2]],[st[3],I(f"s_add_u32 s{s.so}, s{s.so}, 4096")]]
    def mem(s,nst,fast=False):
        g=[]
        for _ in range(nst):
            if s.st: g.append(s.st.pop(0))
        s._rd(g)
        for sub,dt in s.wr:
            I_=s.info[sub]
            g.append(([I_['pre'][dt]] if (I_['pre'] and dt<4) else [])+[e_wr(sub,dt,I_['off'],I_['slot'],I_['tag'])])
            if dt==7 and I_['direct']: s.rd.append(sub)
        s.wr=[]
        if fast: s._rd(g)
        return g
    def chunk(s,i,n,full=False):
        take=[]
        while s.tiles and len(take)<n and s.tiles[0][0]<=i: take.append(s.tiles.pop(0)[1:])
        o=[]
        for sub,dt in s.cv: o+=e_cvt(sub,dt,s.info[sub]['tag']); s.wr.append((sub,dt))
        s.cv=[]
        heads=[]
        for sub,dt in take:
            I_=s.info[sub]; rc=T1 if sub%2==0 else s.rc2
            if dt==0: heads+=e_head(sub,I_['bad'],I_['tag'],rc)
        o=heads+o
        for sub,dt in take:
            o+=e_pk(sub,dt,s.info[sub]['tag'],T1 if sub%2==0 else s.rc2)
        k=max(1,len(take)-2) if (s.tiles and s.tiles[0][0]<=i+1 and not full) else len(take)
        for sub,dt in take[:k]: o+=e_cvt(sub,dt,s.info[sub]['tag']); s.wr.append((sub,dt))
        s.cv=take[k:]
        return o
    def done(s): return not(s.tiles or s.cv or s.wr or s.rd or s.st)

NPADS=0
PADAT={}
def SITE(k): return min(9,(k-1)*10//max(NPADS,1)-1+0)
def startA():
    o=[I("; ==== head A, first two key blocks (q-major, as Q arrives)")]
    f0=frag_reads(0,0); f1=frag_reads(0,1,base=SLOT); f2=frag_reads(0,2)
    o+=setrd(sW4)
    o.append(WV("h0Q0")); o+=BAR()
    o+=qreads(0,0)+f0[:8]
    seq=[('q',s,j) for s in (3,4,5) for j in range(4)]+[('k',b,j) for b in (2,3,4,5) for j in (0,2,1,3)]
    quota=[int(c) for c in cfg.sdm]; cur=[0]
    def dm():
        if quota[cur[0]]==0: return []
        quota[cur[0]]-=1
        k,x,j=seq.pop(0); it=[]
        if j==0:
            it+=[setm0(slotQ(x) if k=='q' else slotKV(0,x)), I(f"s_add_u32 s{sTmp}, s{sTmp}, 4096") if k=='q' else I(f"s_add_u32 s{sOff}, s{sOff}, 8192")]
        return it+[qdma(0,x,j,sTmp) if k=='q' else kvdma(0,x,j)]
    for i in range(-1,13):
        ex={}; post={}; cur[0]=i+1
        if i==-1:
            put(ex,-1,[WL(f0[0])])
            if cfg.su&1:
                for k in range(7): put(ex,k,[WL(f0[k+1])])
                put(ex,7,dm()+dm()+[WV("h0KV1",part='K')]+BAR()+f1[:8])
            else:
                for k in range(8): put(ex,k,f0[8+2*k:10+2*k]+([WL(f0[k+1])] if k<7 else []))
                put(ex,7,dm()+dm()+[WV("h0KV1")]+BAR()+f1[:8])
            put(ex,17,[WL(f1[7])])
        else:
            if i==0 and cfg.su&1:
                put(ex,9,[WV("h0KV1")]+BAR()+f0[8:])
            if i==1 and cfg.su&1:
                for k in range(8): put(ex,k,f1[8+2*k:10+2*k])
            if i==2 and cfg.su&1: put(ex,7,[WL(f1[23])])
            if i==0 and not cfg.su&1:
                for k in range(8): put(ex,k,f1[8+2*k:10+2*k])
            if i==3: put(ex,0,[I("s_waitcnt lgkmcnt(0)")]); put(ex,1,BAR())
            if i%2==0 and i<=8:
                s=i//2+1; qs=qreads(0,s)
                put(ex,2 if i else 8,dm()); put(ex,5 if i else 8,dm())
                if s==4: put(post,9,bias(QREGS,True))
                put(ex,10,[WV(f"h0Q{s}")]); put(ex,11,qs[:2]); put(ex,12,[qs[2]]); put(ex,13,[qs[3]])
                if s==5: put(post,16,bias(QREGS,False))
                put(ex,17,[WL(qs[3])])
            elif i==10:
                put(ex,0,[WV("h0KV2",True,part=('K' if cfg.su&2 else None))]); put(ex,1,BAR())
                put(ex,2,[I(f"s_add_u32 s{sCur}, s{sW4}, {8*SLOT}")]); put(post,3,setrd(sCur))
                if cfg.slz&2:
                    for k,g in enumerate([3,6,6,8,8,10,12,12]): put(post,g,[f2[k]]+([I('s_waitcnt lgkmcnt(0)')] if (cfg.slz&4 and k in (2,7)) else []))
                else: place(ex,f2[:8],lo=4,hi=12)
                put(ex,14,dm()); put(ex,16,dm())
                put(ex,17,[WL(f2[7])])
            elif i==12:
                if cfg.slz&2:
                    for k,g in enumerate([0,0,0,3,3,3,6,6,6,8,8,10,10,12,12,14]): put(post,g,[f2[8+k]]+([I('s_waitcnt lgkmcnt(0)')] if (cfg.slz&4 and k in (8,15)) else []))
                else: place(ex,f2[8:],lo=0,hi=13)
                put(ex,14,dm()); put(ex,16,dm())
                put(ex,15,[I(f"s_mov_b32 s{sCur}, s{sW4}")])
            else:
                put(ex,5,dm()); put(ex,10,dm())
                if i==11 and cfg.su&2: put(ex,15,[WV("h0KV2")]); put(ex,16,BAR())
        ks=[k for k in range(1,NPADS+1) if SITE(k)==i]
        for k in ks:
            site=[I("s_mov_b64 exec, 0"), I(f"s_branch Lpad{k}"), I(f"Lret{k}:"), I("s_mov_b64 exec, -1")]
            if i%2==0 and 0<=i<=8: ex[10]=site+ex[10]
            else: put(ex,17,site)
        o+=step(i,ex,post,cfg.profS if (i>=6 and i%2==0) or i>9 or (cfg.slz&1 and i>=5) else 0)
    LEFT[:]=[(6+x,j) for (k,x,j) in seq]
    return o
LEFT=[]

def trans():
    o=[I("; ==== head A last two key blocks + head B first two, epilogue of head A streamed")]
    f11=frag_reads(0,11); g0=frag_reads(1,0); g1=frag_reads(1,1,base=SLOT); g2=frag_reads(1,2)
    E=Epi(14,sSd)
    idxA={u:k for k,u in enumerate(LA)}
    for s in range(6):
        E.add(s,60+idxA[(11,s)]+2,(s%4)*SLOT,slotQ(s),sBad,f"O{s}",s<DIRECT,cfg.st,pre=(bias(vW,True) if s==4 else ()))
    Q=lambda s:qreads(1,s)
    q5=Q(5)
    R={61:f11[:8], 62:f11[8:16], 63:f11[16:24], 64:Q(0), 65:Q(1), 67:Q(2), 68:Q(3), 69:g0[:4], 70:g0[4:8], 71:g0[8:16], 72:g1[:8], 73:g0[16:24],
       74:g1[8:18], 75:g1[18:24], 76:Q(4), 78:q5, 81:g2[:4], 82:g2[4:8], 83:g2[8:16], 84:g2[16:24]}
    D={}
    for (k,x),steps in zip([('q',4),('q',5),('k',2),('k',3),('k',4),('k',5)],
                           ([[61,62,63,64],[65,66,67,68],[69,70,70,71],[73,74,75,76],[77,78,79,80],[81,82,83,84]] if cfg.tw&2 else
                            [[61,62,63,64],[65,66,66,67],[69,70,71,72],[76,77,77,78],[79,79,80,80],[81,82,83,84]])):
        for j,i in enumerate(steps): D.setdefault(i,[]).append((k,x,j))
    for i in range(61,85):
        ex={}; post={}
        rs=R.get(i,[]); lo=0; hi=16
        mx=(unit(i+1)[1]==0)
        if i==61:
            put(ex,0,[WV("h0KV11",True)]); put(ex,1,BAR()); put(post,2,setrd(sCur)); lo=3; hi=12
            put(ex,17,[WL(f11[7])])
            put(ex,2,[I(f"s_add_u32 s{sSd}, s{sH}, s{sQw}")])
        if i==64: put(ex,0,[WV("h1Q1" if cfg.tw&1 else "h1Q3")]); put(ex,7,[WL(f11[23])]); lo=1
        if i==67 and cfg.tw&1: put(ex,0,[WV("h1Q2")]); lo=1
        if i==68 and cfg.tw&1: put(ex,0,[WV("h1Q3")]); lo=1
        if i==69:
            put(ex,0,[WV("h1KV1",True)]); put(ex,1,BAR()); put(post,2,setrd(sW4)); lo=3
            put(ex,2,[I(f"s_add_u32 s{sOff}, s{sHn}, s{sKVw}")]); put(ex,3,[I(f"s_add_u32 s{sOff}, s{sOff}, 8192")])
        if i==70: hi=12; put(ex,17,[WL(g0[7])])
        if i==72: hi=12; put(ex,17,[WL(g1[7])])
        if i==73: hi=5; put(ex,7,[WL(g0[17])]); put(ex,11,[WL(g0[23])])
        if i==75: hi=6; put(ex,7,[WL(g1[17])]); put(ex,12,[WL(g1[23])]); put(post,9,bias(QREGS,True))
        if i==76: put(ex,0,[WV("h1Q4",True)]); put(ex,1,BAR()); lo=2
        if i==77: put(ex,15,[WL(R[76][3])])
        if i==78: put(ex,0,[WV("h1Q5")]); lo=1
        if i==79: put(ex,15,[WL(q5[3])])
        if i==81:
            put(ex,0,[WV("h1KV2",True)]); put(ex,1,BAR())
            put(ex,2,[I(f"s_add_u32 s{sPe}, s{sW4}, {8*SLOT}")]); put(post,2,setrd(sPe)); lo=4
            put(ex,3,[I(f"s_add_u32 s{sPo}, s{sW4}, {slotKV(1,5)*SLOT}")])
        if i==82: hi=12; put(ex,17,[WL(g2[7])])
        if i==84: hi=12
        mem=E.mem(2)
        if cfg.tsched:
            sd=dict((int(a),int(b)) for a,b in (x.split(':') for x in cfg.tsched.split(',')))
            ch=E.chunk(i,sd.get(i,0),full=(i+1 not in sd))
        else: ch=E.chunk(i,cfg.rho)
        free=[g for g in FREE if not(g==16 and (ch or mx)) and not (g==11 and mx)]
        place(ex,rs,lo=lo,hi=hi,free=free)
        dg=[]
        for (k,x,j) in D.get(i,[]):
            pre=[setm0(slotQ(x) if k=='q' else slotKV(1,x)), I(f"s_add_u32 s{sOff}, s{sOff}, {4096 if k=='q' else 8192}")] if j==0 else []
            dg.append(pre+[qdma(1,x,j) if k=='q' else kvdma(1,x,j)])
        place(ex,dg,lo=max(lo,4),hi=16,free=free)
        qlast=max([g for g,v in ex.items() if any(x.meta.get('src','').startswith('h1Q') for x in v)]+[-1])
        need_after=any(kind(gr[-1])=='w' and any(x.meta.get('slot')==gr[-1].meta['wslot'] for x in rs) for gr in mem)
        place(ex,mem,lo=(qlast+1 if need_after else (2 if i in (69,76,81) else 0)),hi=15,free=free)
        put(post,16,ch)
        if i==83:
            put(post,16,bias(vW,False)+[I(f"v_add_u32 v{vD[k]}, {DIRECT*SLOT}, v{vR[k]}") for k in range(2)])
        if i==84:
            spread(ex,0,[I(f"s_mov_b32 s{sT}, 0"), I(f"s_movk_i32 s{sDi}, {SLOT-2048}"), I(f"s_add_u32 s{sSt}, s{sHn}, s{sQw}")])
            put(ex,17,[WV("h1KV3")])
        o+=step(i,ex,post)
    assert E.done()
    return o

def tailB():
    o=[I("; ==== head B last four key blocks: q sub-tiles 0-2 first, then 3-5; epilogue streamed")]
    base=120
    vK2,vV2=vQ,vQ+1
    def fr(b): return frag_reads(1,b,base=slotKV(1,b)*SLOT) if b!=10 else frag_reads(1,b,rk=vK2,rv=vV2)
    F=[fr(b) for b in [9,10,11,8,9,10,11]]
    R={}
    def addR(i,L): R.setdefault(i,[]).extend(L)
    for m in range(7):
        K,V=F[m][:8],F[m][8:]
        if m==0: addR(base+1,K)
        elif m<6: addR(base+3*m-1,K[:3]); addR(base+3*m,K[3:6]); addR(base+3*m+1,K[6:])
        else: addR(base+17,K)
        if m<6:
            addR(base+3*m+1,V[:(0 if m==0 else 5)]); addR(base+3*m+2,V[(0 if m==0 else 5):(8 if m==0 else 10)]); addR(base+3*m+3,V[(8 if m==0 else 10):(16 if m in (0,5) else 15)])
            if m not in (0,5): R.setdefault(base+3*m+4,[]).insert(0,V[15])
        else: addR(base+19,V[:12]); addR(base+20,V[12:])
    E=Epi(vQ+2,sSt)
    idx={u:k for k,u in enumerate(GB)}
    for s_ in range(5):
        sl=3+(s_%2)
        E.add(s_,base+idx[(11,s_)]+2,(sl-2)*SLOT,sl,sBad2,f"P{s_}",True,(cfg.st3 if (cfg.st3 and s_<cfg.n3) else cfg.st2))
    k0=3*cfg.dl; dq=list(range(k0,16)); pend=[]
    o_sub0,o_j0=dunit(k0)
    for i in range(base+1,base+25):
        ex={}; post={}; rel=i-base; lo=0; hi=16
        rs=list(R.get(i,[]))
        if rel==1:
            put(ex,0,[WV("h1KV10",True)]); put(ex,1,BAR())
            put(ex,2,[I(f"s_add_u32 s{sTmp}, s{sW4}, {8*SLOT}")])
            put(post,2,setrd(sW4)); lo=3; hi=12
            put(post,13,setrd(sTmp,vK2,vV2))
        if rel==5: put(ex,0,[WV("h1KV11")]); put(ex,1,BAR()); lo=2
        if rel==12: put(ex,3,TL())
        g=[]
        for rdx,k in pend:
            sub,j=dunit(k); jj=(k-k0)%4
            g.append([WL(rdx),ostore(DR[k&1],jj,cfg.st,sSd,f"O{sub}")]+([I(f"s_add_u32 s{sSd}, s{sSd}, 4096")] if jj==3 else []))
        pend=[]
        place(ex,g,lo=max(lo,3),hi=4)
        if dq:
            k=dq.pop(0); sub,j=dunit(k)
            x=I(f"ds_read_b128 {vr(DR[k&1])}, v{vD[j&1]}{offs((sub-o_sub0)*SLOT+1024*(j-o_j0))}", src=f"O{sub}", slot=slotQ(sub), private=True)
            pend.append((x,k)); place(ex,[x],lo=13,hi=15)
        mem=E.mem(2 if rel<21 else 4, fast=(rel>=21))
        ch=E.chunk(i,cfg.rhoG if rel<20 else cfg.rhoE)
        free=[g_ for g_ in FREE if not(g_==16 and ch)] if rel<24 else list(range(8,16))
        for m in range(7):
            K,V=F[m][:8],F[m][8:]
            needK = base+3*m+2 if m<6 else base+18
            needV = base+3*m+4 if m<6 else base+20
            if i==needK-1:
                put(ex,17,[WL(K[7])])
                if rs and rs[-1] is K[7]: hi=min(hi,13)
            if i==needV:
                late=[x for x in V if x in rs]
                if late:
                    place(ex,late,lo=0,hi=5,free=free); rs=[x for x in rs if x not in late]; lo=max(lo,6)
                    put(ex,7,[WL(V[15-len(late)])]); put(ex,8+(16-len(late))//2-1,[WL(V[15])])
                else: put(ex,7,[WL(V[15])])
        place(ex,rs,lo=lo,hi=hi,free=free)
        place(ex,mem,lo=(0 if rel<23 else 8),hi=(15 if rel<24 else 16),free=free)
        put(post,16,ch)
        o+=step(i,ex,post)
    assert not E.tiles and not E.cv and not dq and not pend and not E.wr and not E.rd
    return o+final5(E,ex)

def final5(E,ex):
    o=[]
    tag="P5"; sl=5; off=3*SLOT
    rest=[x for g in E.mem(8) for x in g]
    assert E.done()
    pad=max(0,8-len(rest)-len([x for x in ex.get(16,[])]))
    o+=rest+([I(f"s_nop {pad-1}")] if pad else [])+e_head(5,sBad2,tag,T1)
    for half in (0,1):
        for dt in range(4*half,4*half+4): o+=e_pk(5,dt,tag,T1)
        for dt in range(4*half,4*half+4): o+=e_cvt(5,dt,tag)
        for dt in range(4*half,4*half+4): o.append(e_wr(5,dt,off,sl,tag))
    rd=epi_rd(5,off,sl,tag); o+=rd
    st=epi_st(5,cfg.st2,sSt,tag)
    for j in range(4): o+=[WL(rd[j]), st[j]]
    return o

def tailK():
    o=[I("; ==== head B blocks 8,9 (parked output drained) and last two key blocks, epilogue streamed")]
    E=Epi(vQ+2,sSt)
    idx={u:k for k,u in enumerate(LB)}
    for s_ in range(5):
        sl=3+(s_%2)
        E.add(s_,132+idx[(11,s_)]+2,(sl-2)*SLOT,sl,sBad2,f"P{s_}",True,cfg.st2)
    k0=3*cfg.dl; dq=list(range(k0,16)); pend=[]
    o_sub0,o_j0=dunit(k0)
    f11=frag_reads(1,11)
    for i in range(121,145):
        ex={}; post={}; lo=0; hi=16; rs=[]
        if i<133:
            b,r=divmod(i-73,6); lead=(b%2==0)
            if r==0:
                reads=frag_reads(1,b+1); rp=sPo if lead else sPe; rx=sXo if lead else sXe
                put(ex,0,[WV(f"h1KV{b+1}",True)]); put(ex,1,BAR())
                put(ex,2,[I(f"s_xor_b32 s{rp}, s{rp}, s{rx}")]); put(post,4,setrd(rp)); lo=5
            rs=reads[4*r:4*r+4]
            if r==5: hi=11
            if r==3: put(ex,17,[WL(reads[7])])
        if i==133:
            put(ex,0,[WV("h1KV11",True)]); put(ex,1,BAR())
            put(ex,2,[I(f"s_xor_b32 s{sPo}, s{sPo}, s{sXo}")]); put(post,2,setrd(sPo)); lo=3; hi=12
            rs=f11[:8]; put(ex,17,[WL(f11[7])])
        if i==134: rs=f11[8:14]
        if i==135: rs=f11[14:20]
        if i==136: rs=f11[20:24]; hi=5; put(ex,7,[WL(f11[19])]+TL()); put(ex,13,[WL(f11[23])])
        g=[]
        for rdx,k in pend:
            sub,j=dunit(k); jj=(k-k0)%4
            g.append([WL(rdx),ostore(DR[k&1],jj,cfg.st,sSd,f"O{sub}")]+([I(f"s_add_u32 s{sSd}, s{sSd}, 4096")] if jj==3 else []))
        pend=[]
        place(ex,g,lo=3,hi=4)
        mem=E.mem(4, fast=True)
        ch=E.chunk(i,cfg.rho2)
        free=[g_ for g_ in FREE if not(g_==16 and ch)] if i<144 else list(range(8,16))
        place(ex,rs,lo=lo,hi=hi,free=free)
        if dq:
            k=dq.pop(0); sub,j=dunit(k)
            x=I(f"ds_read_b128 {vr(DR[k&1])}, v{vD[j&1]}{offs((sub-o_sub0)*SLOT+1024*(j-o_j0))}", src=f"O{sub}", slot=slotQ(sub), private=True)
            pend.append((x,k)); place(ex,[x],lo=6,hi=(16 if hi==16 else 12),free=free)
        place(ex,mem,lo=(0 if i<143 else 8),hi=(15 if i<144 else 16),free=free)
        put(post,16,ch)
        o+=step(i,ex,post)
    assert not E.tiles and not E.cv and not dq and not pend and not E.wr and not E.rd
    return o+final5(E,ex)

def tailQ():
    o=[I("; ==== head B blocks 8,9 (parked output drained) and last two key blocks q-major, epilogue right behind each sub-tile")]
    k0=3*cfg.dl; dq=list(range(k0,16)); pend=[]
    o_sub0,o_j0=dunit(k0)
    f9=frag_reads(1,9); f10=frag_reads(1,10); f11=frag_reads(1,11,base=slotKV(1,11)*SLOT,rk=vQ,rv=vQ+1)
    R={121+r:f9[4*r:4*r+4] for r in range(6)}
    R.update({127:f10[:5],128:f10[5:11],129:f10[11:17],130:f10[17:21]+f11[:2],131:f11[2:8],132:f10[21:24],133:f11[8:18],134:f11[18:24]})
    stq=[]; nxt=[]
    nd2=max(0,len(dq)-cfg.nd1)
    for i in range(121,145):
        ex={}; post={}; lo=0; hi=16; rs=list(R.get(i,[]))
        p=unit(i-1); fin=(p[1]==11)
        if i==121:
            put(ex,0,[WV("h1KV9",True)]); put(ex,1,BAR())
            put(ex,2,[I(f"s_xor_b32 s{sPo}, s{sPo}, s{sXo}")]); put(post,4,setrd(sPo)); lo=5
        if i==124: put(ex,17,[WL(f9[7])])
        if i==126: hi=11
        if i==127:
            put(ex,0,[WV("h1KV10" if cfg.bar11 else "h1KV11",True)]); put(ex,1,BAR())
            put(ex,2,[I(f"s_xor_b32 s{sPe}, s{sPe}, s{sXe}")]); put(post,4,setrd(sPe)); lo=5
        if i==128: put(post,4,setrd(sW4,vQ,vQ+1))
        if i==130:
            put(ex,17,[WL(f10[7])])
            if cfg.bar11: put(ex,6,[WV("h1KV11")]); put(ex,7,[I("s_barrier")])
        if i==131: hi=12; put(ex,17,[WL(f11[7])])
        if i==133: put(ex,7,[WL(f10[23])]+TL())
        if i==134: hi=5; put(ex,8,[WL(f11[17])]); put(ex,13,[WL(f11[23])])
        free=[g_ for g_ in FREE if not(g_==16 and fin)] if i<144 else list(range(8,16))
        g=[]
        for rdx,k in pend:
            sub,j=dunit(k); jj=(k-k0)%4
            g.append([WL(rdx),ostore(DR[k&1],jj,cfg.st,sSd,f"O{sub}")]+([I(f"s_add_u32 s{sSd}, s{sSd}, 4096")] if jj==3 else []))
        if g: place(ex,g[:1],lo=3,hi=4)
        if len(g)>1: place(ex,g[1:],lo=9,hi=10)
        two=len(pend)>1; pend=[]
        if i==130:
            place(ex,rs[:4],lo=0,hi=11,free=free); place(ex,rs[4:],lo=8,hi=16,free=free)
        else: place(ex,rs,lo=lo,hi=hi,free=free)
        n=0
        if dq: n=1
        if dq and nd2>0 and (i%2==0 or nd2>6): n=2; nd2-=1
        xs=[]
        for _ in range(min(n,len(dq))):
            k=dq.pop(0); sub,j=dunit(k)
            x=I(f"ds_read_b128 {vr(DR[k&1])}, v{vD[j&1]}{offs((sub-o_sub0)*SLOT+1024*(j-o_j0))}", src=f"O{sub}", slot=slotQ(sub), private=True)
            pend.append((x,k)); xs.append(x)
        place(ex,xs,lo=11,hi=(16 if hi==16 else 12),free=free)
        mlo=0 if i<143 else 8
        if nxt:
            place(ex,nxt,lo=mlo,hi=16,free=free); nxt=[]
        elif stq:
            place(ex,stq,lo=mlo,hi=15,free=free); stq=[]
        if fin and p[2]<5:
            s_=p[2]; tag=f"P{s_}"; sl=3+(s_%2); off=(sl-2)*SLOT
            ch=e_head(s_,sBad2,tag,T1)
            for dt in range(8): ch+=e_pk(s_,dt,tag,T1)
            for dt in range(8): ch+=e_cvt(s_,dt,tag)
            put(post,13,ch[:1]); put(post,14,ch[1:2]); put(post,16,ch[2:])
            rd=epi_rd(s_,off,sl,tag); st=epi_st(s_,cfg.st2,sSt,tag)
            nxt=[[e_wr(s_,dt,off,sl,tag)] for dt in range(8)]+[[x] for x in rd]
            stq=[[WL(rd[1]),st[0]],[st[1]],[WL(rd[3]),st[2]],[st[3],I(f"s_add_u32 s{sSt}, s{sSt}, 4096")]]
        o+=step(i,ex,post,(cfg.profT if i<133 else 0),sumfirst=fin)
    assert not dq and not pend and not nxt and not stq
    tag="P5"; sl=5; off=3*SLOT
    o+=e_head(5,sBad2,tag,T1)
    for half in (0,1):
        for dt in range(4*half,4*half+4): o+=e_pk(5,dt,tag,T1)
        for dt in range(4*half,4*half+4): o+=e_cvt(5,dt,tag)
        for dt in range(4*half,4*half+4): o.append(e_wr(5,dt,off,sl,tag))
    rd=epi_rd(5,off,sl,tag); o+=rd
    st=epi_st(5,cfg.st2,sSt,tag)
    for j in range(4): o+=[WL(rd[j]), st[j]]
    return o

def stamp(k):
    if not cfg.stamps: return []
    op="s_memrealtime" if (cfg.echo>=0 or cfg.rt) else "s_memtime"
    return [I(f"{op} s[{sStamp+4+2*k}:{sStamp+5+2*k}]", skip=True)]

def lane_consts(A,base):
    A("v_and_b32 v4, 3, v0")
    A("v_bfe_u32 v3, v0, 2, 1"); A("v_mul_u32_u24 v9, 2080, v3")
    A("v_bfe_u32 v3, v0, 3, 1"); A("v_lshl_add_u32 v9, v3, 10, v9")
    A("v_lshl_add_u32 v9, v4, 8, v9"); A("v_lshl_add_u32 v9, v2, 4, v9"); A(f"v_add_u32 v9, s{base}, v9")
    for ks in range(4):
        A(f"v_xor_b32 v3, {ks}, v4"); A(f"v_lshl_add_u32 v{vQ+ks}, v3, 6, v9")
    A("v_and_b32 v8, 15, v0"); A("v_xor_b32 v9, v8, v2"); A("v_lshlrev_b32 v10, 8, v2"); A(f"v_add_u32 v10, s{base}, v10")
    A(f"v_lshl_add_u32 v{vR[0]}, v9, 4, v10"); A("v_xor_b32 v9, 4, v9"); A(f"v_lshl_add_u32 v{vR[1]}, v9, 4, v10")
    A("v_lshlrev_b32 v10, 8, v8"); A("v_and_b32 v9, 1, v2"); A("v_lshl_add_u32 v10, v9, 3, v10"); A(f"v_add_u32 v10, s{base}, v10")
    A("v_lshrrev_b32 v9, 1, v2"); A("v_and_b32 v8, 7, v0"); A("v_xor_b32 v9, v9, v8")
    for k in range(4):
        A(f"v_xor_b32 v8, {2*k}, v9"); A(f"v_lshl_add_u32 v{vW[k]}, v8, 4, v10")

CPF_LINES=11
def prologue():
    o=[]
    A=lambda t,**k: o.append(I(t,**k))
    A(f"s_load_dwordx2 s[{sKA}:{sKA+1}], s[0:1], 8"); A(f"s_load_dwordx2 s[{sVB}:{sVB+1}], s[0:1], 16")
    A(f"s_load_dwordx2 s[{sQA}:{sQA+1}], s[0:1], 0"); A(f"s_load_dwordx2 s[{sO}:{sO+1}], s[0:1], 24")
    if cfg.stamps:
        A(f"s_load_dwordx2 s[{sDbg}:{sDbg+1}], s[0:1], 32")
        A(f"s_memtime s[{sStamp}:{sStamp+1}]"); A(f"s_memrealtime s[{sStamp+2}:{sStamp+3}]")
    if cfg.tl:
        A("s_mov_b64 s[90:91], 1"); A("s_memtime s[98:99]"); A("s_memrealtime s[100:101]")
    A("s_cmp_ge_u32 s2, 256"); A("s_cbranch_scc1 Lend")
    A("v_lshrrev_b32 v1, 6, v0"); A("v_and_b32 v0, 63, v0"); A("v_readfirstlane_b32 s3, v1")
    if cfg.pro:
        A("s_getpc_b64 s[62:63]"); A("Lpc:")
        A("v_min_u32 v2, 3, v0"); A("v_lshlrev_b32 v2, 7, v2")
        A("global_load_dword v61, v2, s[62:63] offset:64")
        A("s_lshr_b32 s4, s2, 3"); A(f"s_mul_i32 s4, s4, {128*CPF_LINES}"); A("s_add_u32 s4, s4, Lmain-Lpc")
        A(f"v_min_u32 v1, {CPF_LINES-1}, v0"); A("v_lshl_add_u32 v1, v1, 7, s4")
        A("global_load_dword v15, v1, s[62:63]")
    A(f"v_lshlrev_b32 v{vKVB}, 4, v0"); A(f"v_add_u32 v{vKVA}, 1056, v{vKVB}")
    if cfg.diag=='l2only': A("s_and_b32 s62, s2, 7"); A(f"s_mul_i32 s{sH}, s62, {2*HEADB}")
    else: A(f"s_mul_i32 s{sH}, s2, {2*HEADB}")
    A(f"s_mov_b32 s{sKA+2}, {TOTB+1056}"); A(f"s_mov_b32 s{sKA+3}, 0x20000"); A(f"s_mov_b32 s{sVB+2}, {TOTB+2080}"); A(f"s_mov_b32 s{sVB+3}, s{sKA+3}")
    A(f"s_mul_i32 s{sW4}, s3, {WREG}"); A(f"s_lshl_b32 s{sKVw}, s3, 11")
    A(f"s_add_u32 s{sOff}, s{sH}, s{sKVw}")
    o.append(setm0(0))
    A("s_waitcnt lgkmcnt(0)")
    A(f"s_sub_u32 s{sKA}, s{sKA}, 1056"); A(f"s_subb_u32 s{sKA+1}, s{sKA+1}, 0")
    o+=[kvdma(0,0,0),kvdma(0,0,2)]
    A(f"s_sub_u32 s{sVB}, s{sVB}, 2080"); A(f"s_subb_u32 s{sVB+1}, s{sVB+1}, 0")
    if not cfg.su&1: o+=[kvdma(0,0,1),kvdma(0,0,3)]
    if cfg.cpf and not cfg.pro:
        A("s_getpc_b64 s[62:63]")
        if cfg.pads: A("Lpc:"); A("s_add_u32 s62, s62, Lmain-Lpc"); A("s_addc_u32 s63, s63, 0")
        A("s_lshr_b32 s4, s2, 3"); A(f"s_mul_i32 s4, s4, {128*CPF_LINES}")
        A(f"v_min_u32 v1, {CPF_LINES-1}, v0"); A("v_lshl_add_u32 v1, v1, 7, s4")
        A("global_load_dword v61, v1, s[62:63]")
    A("v_lshrrev_b32 v2, 4, v0"); A("v_lshlrev_b32 v4, 6, v2"); A(f"v_xor_b32 v{vQB}, v{vKVB}, v4"); A(f"v_add_u32 v{vQA}, 1056, v{vQB}")
    A(f"s_mul_i32 s{sQw}, s3, 24576"); A(f"s_add_u32 s{sTmp}, s{sH}, s{sQw}")
    A(f"s_sub_u32 s{sQB}, s{sQA}, 32"); A(f"s_subb_u32 s{sQB+1}, s{sQA+1}, 0")
    A(f"s_sub_u32 s{sQA}, s{sQA}, 1056"); A(f"s_subb_u32 s{sQA+1}, s{sQA+1}, 0")
    o.append(setm0(slotQ(0)))
    A(f"s_mov_b64 s[{sQA+2}:{sQA+3}], s[{sKA+2}:{sKA+3}]"); A(f"s_mov_b32 s{sQB+2}, {TOTB+32}"); A(f"s_mov_b32 s{sQB+3}, s{sKA+3}")
    o+=[qdma(0,0,j,sTmp) for j in range(4)]
    if cfg.su&1:
        o.append(setm0(1)); A(f"s_add_u32 s4, s{sOff}, 8192")
        o+=[kvdma(0,1,j,4) for j in (0,2)]
        o+=[setm0(0),I("s_nop 0"),kvdma(0,0,1),kvdma(0,0,3)]
    o.append(setm0(1)); A(f"s_add_u32 s{sOff}, s{sOff}, 8192")
    o+=[kvdma(0,1,j) for j in ((1,3) if cfg.su&1 else (0,2,1,3))]
    if cfg.pro: o+=[I("s_branch Lmain"), I(".p2align 12"), I("Lmain:")]
    A(f"s_mov_b32 s{sO+2}, {0 if cfg.diag else TOTB}"); A(f"s_mov_b32 s{sO+3}, 0x20000")
    A(f"s_add_u32 s{sHn}, s{sH}, {HEADB}")
    A(f"s_mov_b32 s{sC}, 0x3e0293ee"); A(f"s_mov_b32 s{sNC}, 0xbe0293ee"); A(f"s_mov_b32 s{sThr}, 0x4e800000")
    if cfg.pkf: A(f"s_mov_b32 s{sC2}, 0x3e0293ee"); A(f"s_mov_b32 s{sC2+1}, 0x3e0293ee")
    A(f"s_add_u32 s{sEnd}, s{sW4}, {NSLOT*SLOT}")
    A(f"s_mov_b32 s{sT}, 0")
    if cfg.profO or cfg.oddB: A("s_getreg_b32 s95, hwreg(HW_REG_XCC_ID)")
    A(f"s_mov_b64 s[{sBad}:{sBad+1}], 0"); A(f"s_mov_b64 s[{sBad2}:{sBad2+1}], 0")
    if cfg.tw&2:
        A(f"s_add_u32 s{sXe}, s{sW4}, {8*SLOT}"); A(f"s_xor_b32 s{sXe}, s{sXe}, s{sW4}")
        A(f"s_add_u32 s{sXo}, s{sW4}, {SLOT}"); A(f"s_add_u32 s4, s{sW4}, {2*SLOT}"); A(f"s_xor_b32 s{sXo}, s{sXo}, s4")
    else:
        A(f"s_add_u32 s{sXe}, s{sW4}, {8*SLOT}"); A(f"s_add_u32 s4, s{sW4}, {SLOT}"); A(f"s_xor_b32 s{sXe}, s{sXe}, s4")
        A(f"s_add_u32 s4, s{sW4}, {2*SLOT}"); A(f"s_xor_b32 s{sXo}, s4, s{sW4}")
    A("v_and_b32 v3, 7, v0"); A(f"v_mul_u32_u24 v{vKl}, 2080, v3")
    A("v_bfe_u32 v3, v0, 3, 1"); A(f"v_lshl_add_u32 v{vKl}, v3, 8, v{vKl}")
    A(f"v_lshl_add_u32 v{vKl}, v2, 4, v{vKl}"); A(f"v_subrev_u32 v{vKl}, s{sW4}, v{vKl}")
    A("v_bfe_u32 v3, v0, 2, 3"); A(f"v_mul_u32_u24 v{vVl}, 2080, v3")
    A("v_lshrrev_b32 v3, 5, v0"); A(f"v_lshl_add_u32 v{vVl}, v3, 8, v{vVl}")
    A("v_and_b32 v4, 3, v0"); A(f"v_lshl_add_u32 v{vVl}, v4, 3, v{vVl}")
    A(f"v_add_u32 v{vVl}, 1024, v{vVl}"); A(f"v_subrev_u32 v{vVl}, s{sW4}, v{vVl}")
    A("v_mov_b32 v11, 0x3f803f80"); A("v_cmp_eq_u32 vcc, 0, v4")
    lane_consts(A,4)
    A("v_cndmask_b32 v11, 0, v11, vcc")
    for k in range(4): A(f"v_accvgpr_write_b32 a{ONES+k}, v11")
    for s in (1,2):
        o.append(setm0(slotQ(s))); A(f"s_add_u32 s{sTmp}, s{sTmp}, 4096")
        o+=[qdma(0,s,j,sTmp) for j in range(4)]
    return o

def slow_path():
    o=[]
    A=lambda t,**k: o.append(I(t,**k))
    sP=sCur
    A("; ==== fallback: exact two-pass softmax with the true row max for this wave's 96 rows of the head at byte offset s44")
    A("Lslow:")
    A("s_waitcnt vmcnt(0) lgkmcnt(0)")
    A(f"s_mul_i32 s{sP}, s3, {SLOT}")
    A(f"s_add_u32 s{sTmp}, s{sP}, s{sW4}")
    o+=setrd(sTmp)
    A(f"v_lshrrev_b32 v0, 4, v{vKVB}"); A("v_lshrrev_b32 v2, 4, v0")
    lane_consts(A,sTmp)
    A(f"s_mov_b32 m0, s{sTmp}")
    A(f"s_add_u32 s{sOff}, s{sH}, s{sQw}")
    for s in range(6):
        o+=[qdma(0,s,j) for j in range(4)]
        A("s_waitcnt vmcnt(0)")
        for ks in range(4): A(f"ds_read_b128 {ar(Qr(s,ks))}, v{vQ+ks}")
        A(f"s_add_u32 s{sOff}, s{sOff}, 4096")
        A("s_waitcnt lgkmcnt(0)")
    for s in range(6): A(f"v_mov_b32 v{MN+s}, 0xff800000")
    def loadkv():
        for j in range(4):
            A(f"s_add_u32 m0, s{sP}, {j*WREG}"); A("s_nop 0")
            o.extend(kvdma(0,0,jj) for jj in range(4))
            A(f"s_add_u32 s{sOff}, s{sOff}, 2048")
        A("s_waitcnt vmcnt(0)")
    A(f"s_mov_b32 s{sOff}, s{sH}"); A(f"s_mov_b32 s{sT}, 0")
    A("Lslow1:")
    loadkv()
    o+=frag_reads(0,0,tags=False)[:8]
    A("s_waitcnt lgkmcnt(0)")
    for s in range(6):
        o+=qk_mfmas(s,0,0)
        A("s_nop 7")
        for e in range(0,8,2): A(f"v_max3_f32 v{MN+s}, v{MN+s}, v{SB[0]+e}, v{SB[0]+e+1}")
    A(f"s_add_u32 s{sT}, s{sT}, 1"); A(f"s_cmp_lt_u32 s{sT}, 12"); A("s_cbranch_scc1 Lslow1")
    for s in range(6):
        m=MN+s
        A(f"v_mov_b32 v{T1}, v{m}"); A("s_nop 1"); A(f"v_permlane16_swap_b32 v{m}, v{T1}"); A(f"v_max_f32 v{m}, v{m}, v{T1}")
        A(f"v_mov_b32 v{T1}, v{m}"); A("s_nop 1"); A(f"v_permlane32_swap_b32 v{m}, v{T1}"); A(f"v_max_f32 v{m}, v{m}, v{T1}")
        A(f"v_mul_f32 v{m}, s{sNC}, v{m}")
    for r in range(64,256): A(f"v_mov_b32 v{r}, 0")
    for r in range(224,248): A(f"v_accvgpr_write_b32 a{r}, 0")
    A(f"s_mov_b32 s{sOff}, s{sH}"); A(f"s_mov_b32 s{sT}, 0")
    A("Lslow2:")
    loadkv()
    fr=frag_reads(0,0,tags=False)
    for k in range(3):
        o+=fr[8*k:8*k+8]; A("s_waitcnt lgkmcnt(0)")
    for s in range(6):
        o+=qk_mfmas(s,0,0)
        A("s_nop 7")
        for gp in sm_gaps(s,0,0): o+=gp
        A("s_nop 1")
        o+=pv_mfmas(s,0,0,False)
    A(f"s_add_u32 s{sT}, s{sT}, 1"); A(f"s_cmp_lt_u32 s{sT}, 12"); A("s_cbranch_scc1 Lslow2")
    A("s_nop 7")
    A(f"s_add_u32 s{sSt}, s{sH}, s{sQw}")
    for s in range(6):
        o+=e_head(s,None,None,T1)
        for dt in range(8): o+=e_pk(s,dt,None,T1)
        for dt in range(8): o+=e_cvt(s,dt,None)
        for dt in range(8): o.append(e_wr(s,dt,0,None,None))
        o+=epi_rd(s,0,None)+[I("s_waitcnt lgkmcnt(0)")]+epi_st(s,"",sSt)
        A(f"s_add_u32 s{sSt}, s{sSt}, 4096")
    A("s_branch Lslow_ret")
    for x in o:
        for k in ('tag','slot','wslot','wtag'): x.meta.pop(k,None)
    return o

def resolve(trace):
    vm=[]; lg=[]
    for x in trace:
        if x.label or x.meta.get('skip'): continue
        if 'auto_vm' in x.meta:
            idx=[k for k,y in enumerate(vm) if y.meta.get('tag')==x.meta['auto_vm'] and x.meta.get('wpart') in (None,y.meta.get('part'))]
            n=min(63,len(vm)-1-max(idx)); x.text=x.text.replace("vmcnt(AUTO)",f"vmcnt({n})"); x.meta['loose_ok']=True
        if 'auto_lg' in x.meta:
            k=[i for i,y in enumerate(lg) if y is x.meta['auto_lg']]
            assert k, "WL target not issued before wait: "+x.meta['auto_lg'].text
            n=min(15,len(lg)-1-k[0]); x.text=x.text.replace("lgkmcnt(AUTO)",f"lgkmcnt({n})")
        if x.kind=='vmem': vm.append(x)
        if x.kind=='ds': lg.append(x)

def build():
    set_units()
    P=prologue(); SA=startA(); TR=trans(); TB=[tailK,tailB,tailQ][cfg.G]()
    txt=lambda L:[x.text for x in L if not x.text.startswith(';')]
    assert txt(loopA2(0))==txt(loopA2(1))
    tb=range(1,3) if cfg.profB0 else range(3)
    for t in tb: assert txt(loopB(t))==txt(loopB(tb[0]))
    if cfg.loopR:
        assert txt(rampA(0))==txt(rampA(1)); RAt=rampA(0)+rampA(1); RA=[I(".p2align 3"),I("LloopA1:")]+rampA(0)
    else: RA=RAt=rampA()
    PB_=peelB() if cfg.profB0 else []
    extra=[]
    if cfg.profO:
        RO=rampA(prof=cfg.profO)
        t2=prologue()+startA()+RO+midA()+loopA2(0); resolve(t2)
        for p in check_trace([x for x in t2 if not x.meta.get('skip')]): print("ODD:",p)
        RA=[I("s_bitcmp1_b32 s95, 0"), I("s_cbranch_scc1 LrampO")]+RA+[I("s_branch LrampJ"), I("LrampO:")]+RO+[I("LrampJ:")]
    if cfg.midprof:
        MA=staticA(); trace=P+SA+MA+TR+PB_
    else: trace=P+SA+RAt+midA()+loopA2(0)+loopA2(1)+TR+PB_
    if not cfg.profBs:
        for t in tb: trace+=loopB(t)
    trace+=TB
    resolve(trace)
    probs=check_trace([x for x in trace if not x.meta.get('skip')])
    sp=slow_path()
    probs+=check_trace(sp+slow_path())
    seen=set()
    for p in probs:
        if p not in seen: print(p); seen.add(p)
    nd=(lambda L:[x for x in L if not getattr(x,'dma',False)]) if cfg.diag=='nodma' else (lambda L:L)
    if cfg.pads and not cfg.pro: P=P+[I("s_branch Lmain"), I(".p2align 12"), I("Lmain:")]
    if cfg.midprof: S=list(P)+stamp(0)+SA+stamp(1)+nd(MA)
    else: S=list(P)+stamp(0)+SA+stamp(1)+nd(RA)+midA()+[I(".p2align 3"),I("LloopA2:")]+nd(loopA2(0))
    if cfg.oddB: PB_=[I("s_bitcmp1_b32 s95, 0"), I(f"s_cselect_b32 s{sT}, -1, 0"), I("s_cbranch_scc1 LloopB")]+PB_
    S+=stamp(2)+nd(TR)+stamp(3)+nd(PB_)+([I(".p2align 3"),I("LloopB:")]+nd(loopB(tb[0])) if not cfg.profBs else [])
    S+=stamp(4)+TB+stamp(5)
    if cfg.slow:
        S+=[I(f"s_or_b64 s[62:63], s[{sBad}:{sBad+1}], s[{sBad2}:{sBad2+1}]"), I("s_barrier"), I("s_cbranch_scc1 Lslow_entry")]
    S+=[I("Lfin:")]
    if cfg.stamps:
        S+=[I("s_waitcnt vmcnt(0)"), I(f"s_memtime s[{sStamp+16}:{sStamp+17}]"), I(f"s_memrealtime s[{sStamp+18}:{sStamp+19}]"), I("s_waitcnt lgkmcnt(0)")]
        if cfg.echo>=0:
            esrc=[sStamp+2]+[sStamp+4+2*k for k in range(6)]+[sStamp+18]
            if cfg.echox>=0: S+=[I("s_getreg_b32 s62, hwreg(HW_REG_XCC_ID)"), I("s_and_b32 s62, s62, 7"), I(f"s_cmp_lg_u32 s62, {cfg.echox}"), I("s_cbranch_scc1 Lend")]
            S+=[I(f"s_add_u32 s62, s{esrc[cfg.echo]}, 10000"), I("Lspin:"), I("s_sleep 2"), I("s_memrealtime s[88:89]"), I("s_waitcnt lgkmcnt(0)"),
                I("s_sub_u32 s63, s88, s62"), I("s_cmp_lt_i32 s63, 0"), I("s_cbranch_scc1 Lspin")]
        S+=[I(f"v_mov_b32 v8, s{sStamp+2}"), I(f"v_mov_b32 v9, s{sStamp+18}")]
        srcs=[sStamp+4+2*k for k in range(6)]+[sStamp+(18 if cfg.rt else 16)]
        for k,r in enumerate(srcs):
            S+=[I(f"s_sub_u32 s{sTmp}, s{r}, s{sStamp+(2 if cfg.rt else 0)}"), I(f"v_mov_b32 v{10+k}, s{sTmp}")]
        S+=[I("v_mov_b32 v17, 0"), I("v_mov_b32 v18, 0"), I("s_getreg_b32 s62, hwreg(HW_REG_XCC_ID)"), I("v_mov_b32 v19, s62")]
        S+=[I(f"s_mov_b32 s28, s{sDbg}"), I(f"s_mov_b32 s29, s{sDbg+1}"), I(f"s_mov_b32 s30, {cfg.dbgsz}"), I("s_mov_b32 s31, 0x20000"),
            I("s_lshl_b32 s62, s2, 8"), I("s_lshl_b32 s63, s3, 6"), I("s_add_u32 s62, s62, s63"), I("v_mov_b32 v1, 0")]
        if cfg.tl:
            S+=TL()+[I("s_waitcnt lgkmcnt(0)")]+TL()+[I("s_lshl_b32 s61, s62, 3"), I("s_add_u32 s61, s61, 65536"), I(f"v_lshrrev_b32 v5, 2, v{vKVB}"),
                I("buffer_store_dword v0, v5, s[28:31], s61 offen"), I("buffer_store_dword v61, v5, s[28:31], s61 offen offset:256")]
        S+=[I("s_mov_b64 exec, 1"),
            I("buffer_store_dwordx4 v[8:11], v1, s[28:31], s62 offen"), I("buffer_store_dwordx4 v[12:15], v1, s[28:31], s62 offen offset:16"), I("buffer_store_dwordx4 v[16:19], v1, s[28:31], s62 offen offset:32")]
    S+=[I("Lend:"), I("s_endpgm")]
    if cfg.slow:
        S+=[I("Lslow_entry:"), I(f"s_cmp_lg_u64 s[{sBad}:{sBad+1}], 0"), I("s_cbranch_scc1 Lslow"),
            I("Lslow_ret:"), I(f"s_cmp_eq_u64 s[{sBad2}:{sBad2+1}], 0"), I("s_cbranch_scc1 Lfin"),
            I(f"s_mov_b64 s[{sBad2}:{sBad2+1}], 0"), I(f"s_mov_b32 s{sH}, s{sHn}")]
        S+=sp
    else: S+=[I(".fill 2048, 4, 0xbf810000")]
    return S, bool([p for p in probs if not p.startswith("NOTE")])

from gen import FTR
HDR="""; Kernarg layout for this problem (48 bytes, ptrs only, base s[0:1]):
;   offset   0: d_in[0] q  shape=(16, 32, 384, 128) dtype=bfloat16 strides=(3145728, 98304, 256, 2) contiguous=True
;   offset   8: d_in[1] k  shape=(16, 32, 384, 128) dtype=bfloat16 strides=(3145728, 98304, 256, 2) contiguous=True
;   offset  16: d_in[2] v  shape=(16, 32, 384, 128) dtype=bfloat16 strides=(3145728, 98304, 256, 2) contiguous=True
; @launch grid=(256,1,1) block=(256,1,1) lds=%d
;
; softmax(Q K^T / sqrt(128)) V for 512 heads of 384 x 128.   (emitted by my own generator script)
; -------------------------------------------------------------------------------------------------
; * One workgroup (4 waves, one per SIMD, 512 registers each) per CU handles heads 2*wg (A) and 2*wg+1 (B).
; * v_mfma_f32_16x16x32_bf16 throughout:  S^T = K Q^T (8 MFMA),  O^T += V^T P^T (8 MFMA),  row sums l += 1^T P^T (1 MFMA).
; * Q/K/V stream global -> LDS with buffer_load ... lds through nine 16640-byte slots (padded so that the K b128 reads and the
;   transposing V reads are bank-conflict free); K/V fragments are double buffered in AGPRs, O lives in v64..v255.
; * Softmax guard: p = exp2(c*s - c*m) with m = the row's true max over its first key block (so l >= 1, nothing underflows that the
;   two-pass softmax that subtracts the true max over all 384 keys.
;   part of head A's output is parked in LDS and written while head B no longer loads.
; * Lpad<k>/Lret<k>: while waiting for the first loads each wave touches the first line of every 4 KiB page of the kernel once
;   (branch there with EXEC=0 and straight back, no memory instruction runs) because instruction prefetch stops at page ends.
.amdgcn_target "amdgcn-amd-amdhsa--gfx950"
.text
.globl %s
.p2align 8
.type %s,@function
%s:
"""
def isize(x):
    return SZ[x.text]
def write(fn):
    S,bad=build()
    if cfg.pads and SZ:
        out=[]; addr=None; k=1
        for n,x in enumerate(S):
            out.append(x)
            if x.text=="Lmain:": addr=0; continue
            if addr is None: continue
            if x.text==".p2align 3": addr=(addr+7)&~7; continue
            if x.label: continue
            a0=addr; addr+=SZ.get(x.text,4)
            if k<=NPADS and addr>=k*cfg.pads+cfg.padoff and (x.kind=='mfma' or addr>=k*cfg.pads+cfg.padoff+24) and not x.op.startswith('s_cbranch') and not x.op.startswith('s_branch') and x.text!='s_mov_b64 exec, 0':
                out+=[I(f"Lpad{k}:"), I(f"s_cbranch_execz Lret{k}")]; addr+=4; k+=1
        assert k==NPADS+1,(k,NPADS)
        S=out
    with open(fn,"w") as f:
        f.write(HDR%(LDSB,NAME,NAME,NAME))
        jn=0
        for x in S:
            t=x.text
            if x.meta.get('jit'):
                jn+=1
                f.write(f"    s_cmp_eq_u32 s3, {(jn*cfg.jit)%4}\n    s_cbranch_scc0 Ljit{jn}\n    s_sleep {20+10*(jn%5)}\nLjit{jn}:\n"); continue
            if cfg.drop=='exp' and t.startswith('v_exp'): t=t.replace('v_exp_f32','v_mov_b32')
            if cfg.drop=='exp0' and t.startswith('v_exp'): continue
            if cfg.drop=='fma' and t.startswith('v_fma'): continue
            if cfg.drop=='sum' and t.startswith(MF+' a['): continue
            f.write((t if (t.endswith(':') or t.startswith('.')) else "    "+t)+"\n")
        f.write(FTR%NAME)
    return bad
SZ={}
def sizes(co):
    import subprocess
    out=subprocess.run(["llvm-objdump","-d","--mcpu=gfx950",co],capture_output=True,text=True).stdout
    sym={m.group(2):int(m.group(1),16) for m in re.finditer(r"^([0-9a-f]+) <(\w+)>:",out,re.M)}
    last=int(re.findall(r"// ([0-9A-F]{12}):",out)[-1],16)
    st=sym.get('Lmain',sym[NAME])
    return sym.get('Lfin',sym.get('Lend'))-st, last+4-st
if __name__=="__main__":
    ap=argparse.ArgumentParser()
    ap.add_argument("out"); ap.add_argument("opts",nargs="*")
    a=ap.parse_args()
    for kv in a.opts:
        k,v=kv.split("=",1)
        cur=getattr(cfg,k)
        setattr(cfg,k, (v in("1","True","true")) if isinstance(cur,bool) else (int(v) if isinstance(cur,int) else v.replace("+"," ")))
    from mkco import build as mk
    for it in range(4):
        bad=write(a.out); co=mk(a.out); hot,tot=sizes(co)
        need=-(-hot//(32*128))
        done=(need==CPF_LINES)
        CPF_LINES=need
        if cfg.pads:
            import subprocess
            lst=subprocess.run(["llvm-objdump","-d","--mcpu=gfx950",co],capture_output=True,text=True).stdout
            lst=lst[lst.index("<Lmain>:"):]
            enc=[len(m.group(1).split())*4 for m in re.finditer(r"// [0-9A-F]{12}: ([0-9A-F ]+)",lst)]
            src=open(a.out).read(); src=src[src.index("Lmain:\n"):].split("\n")[1:]
            j=0; addr=0
            for ln in src:
                t=ln.strip()
                if t.startswith(".section"): break
                if t==".p2align 3":
                    if addr%8: j+=1; addr+=4
                    continue
                if not t or t.startswith(";") or t.endswith(":") or t.startswith("."): continue
                SZ[t]=enc[j]; addr+=enc[j]; j+=1
            np_=(hot-64-cfg.padoff)//cfg.pads
            if np_!=NPADS: done=False
            NPADS=np_
        if done and it>0: break
    assert 32*128*CPF_LINES+256<=tot, (hot,tot)
    print(co, "PROBLEMS" if bad else "clean", "hot",hot,"total",tot,"cpf lines",CPF_LINES)
```

```python
import sys, argparse, re, functools
sys.path.insert(0,'work')
from asmlib import I, check_trace
NAME="standalone__gqa_softmax__near_ridge_kernel"
SLOT=16640; WREG=4160; NSLOT=9
LDSB=NSLOT*SLOT
HEADB=98304
TOTB=50331648

class Cfg:
    ld="nt"; st="sc1"; st2="nt"
    stamps=False; rt=False; tl=False; dbgsz=0x400000; echo=-1; diag=''
    slow=True; cpf=True
    rho=3; rhoG=3; rhoE=8
    prof='47,47,44,40'
    loopR=False
    profB='00,00'
    profB0='40,20'
    profO=''
    oddB=False
    midprof=''
    profS=0
    G=1
    rho2=8; nd1=13
    tls=False
    profBs=''
    profT=0
    pro=0
    jit=0
    tsched=''
    echox=-1
    tw=0
    sdm='22222222222222'
    slz=0
    su=0
    bar11=0
    pads=0
    padoff=0
    st3=''; n3=3
    pkf=0
    drop=''
    dl=0
cfg=Cfg()

def O(s,dt): return 64+32*s+4*dt
SB=[16,24]; PB=[32,36]
MN=40
vK,vV,vKl,vVl=46,47,48,49
vD=[50,51]
vQ=52
vR=[56,63]
vKVA,vKVB,vQA,vQB=57,58,59,60
vW=[5,6,7,62]
T0,T1,T2,T3=1,2,3,4
DR=[8,12]
QREGS=[vQ+k for k in range(4)]
def Qr(s,ks): return 16*s+4*ks
def Kf(par,i): return 96+32*par+4*i
def Vf(par,dt): return 160+32*par+4*dt
def Lr(s): return 224+4*s
ONES=248
sKA,sVB,sQA,sQB,sO=8,12,16,20,24
sOff,sCur,sC,sH,sW4,sT,sPe,sEnd,sKVw,sQw,sThr=40,42,43,44,45,46,47,48,49,50,51
sBad=52; sBad2=96
sTmp,sSt,sNC,sHn,sDbg=55,57,58,59,60
sSd,sDi=41,54
sStamp=64
sPo,sXe,sXo=92,93,94
sC2=38

def vr(a,n=4): return f"v[{a}:{a+n-1}]"
def ar(a,n=4): return f"a[{a}:{a+n-1}]"
def sr(a,n=4): return f"s[{a}:{a+n-1}]"
def offs(o): return f" offset:{o}" if o else ""

def slotKV(h,b):
    if b<2: return b
    if h==0: return (6+b)%9
    return ([8,2,0,1] if cfg.tw&2 else [8,0,1,2])[(b-2)%4]
def slotQ(s): return 2+s
UOFF=[0,1024,2080,3104]
def dma(j,tag,slot,q,off=sOff):
    A,B,va,vb=(sQA,sQB,vQA,vQB) if q else (sKA,sVB,vKVA,vKVB)
    p=f" {cfg.ld}" if cfg.ld else ""
    return I(f"buffer_load_dwordx4 v{[va,va,vb,vb][j]}, {sr([A,B,A,B][j])}, s{off} offen{offs(UOFF[j])}{p} lds", tag=tag, slot=slot, part=(None if q else 'KV'[j&1]))
def kvdma(h,b,j,off=sOff): return dma(j,f"h{h}KV{b}",slotKV(h,b),False,off)
def qdma(h,s,j,off=sOff): return dma(j,f"h{h}Q{s}",slotQ(s),True,off)
def pdma(n,j):
    if n<18: return kvdma(0,n-6,j)
    if n<20: return kvdma(1,n-18,j)
    return qdma(1,n-20,j)
def setm0(slot): return I(f"s_add_u32 m0, s{sW4}, {slot*SLOT}") if slot else I(f"s_mov_b32 m0, s{sW4}")
def frag_reads(h,b,base=0,rk=vK,rv=vV,tags=True):
    m=dict(src=f"h{h}KV{b}",slot=slotKV(h,b)) if tags else {}
    par=b&1
    return [I(f"ds_read_b128 {ar(Kf(par,i))}, v{rk}{offs(base+(i//4)*512+(i%4)*64)}",part='K',**m) for i in range(8)]+\
           [I(f"ds_read_b64_tr_b16 {ar(Vf(par,i//2)+2*(i%2),2)}, v{rv}{offs(base+(i%2)*512+(i//2)*32)}",part='V',**m) for i in range(16)]
def qreads(h,s): return [I(f"ds_read_b128 {ar(Qr(s,ks))}, v{vQ+ks}{offs((s%4)*SLOT)}", src=f"h{h}Q{s}", slot=slotQ(s), private=True) for ks in range(4)]
def bias(regs,up): return [I(f"{'v_add_u32' if up else 'v_subrev_u32'} v{r}, {4*SLOT}, v{r}") for r in regs]
def setrd(reg,rk=vK,rv=vV): return [I(f"v_add_u32 v{rk}, s{reg}, v{vKl}"), I(f"v_add_u32 v{rv}, s{reg}, v{vVl}")]

FA=[(b,s) for s in range(6) for b in (0,1)]
LA=[(10,0),(10,1),(10,2),(11,0),(11,1),(10,3),(11,2),(10,4),(11,3),(10,5),(11,4),(11,5)]
FB=[(0,0),(0,1),(1,0),(0,2),(1,1),(0,3),(1,2),(0,4),(1,3),(0,5),(1,4),(1,5)]
MID=[(b,s) for b in range(2,10) for s in range(6)]
GB=[(b,s) for b in (8,9,10,11) for s in (0,1,2)]+[(8,3),(8,4),(8,5),(9,3),(9,4),(9,5),(10,3),(11,3),(10,4),(11,4),(10,5),(11,5)]
LB=[(10,0),(10,1),(10,2),(11,0),(11,1),(11,2),(10,3),(11,3),(10,4),(11,4),(10,5),(11,5)]
LQ=[(b,s) for s in range(6) for b in (10,11)]
UNITS=[]
def set_units():
    UNITS[:]=[(0,)+u for u in FA+MID+LA]+[(1,)+u for u in (FB+MID[:36]+GB if cfg.G==1 else FB+MID+(LB if cfg.G==0 else LQ))]
def unit(i): return UNITS[i] if 0<=i<len(UNITS) else None

MF="v_mfma_f32_16x16x32_bf16"
def qk_mfmas(s,kpar,sb,u=None):
    o=[]
    for i in range(8):
        kt,ks=divmod(i,4); d=SB[sb]+4*kt
        x=I(f"{MF} {vr(d)}, {ar(Kf(kpar,i))}, {ar(Qr(s,ks))}, {'0' if ks==0 else vr(d)}")
        if u:
            x.meta['expect']={**{r:f"h{u[0]}KV{u[1]}" for r in x.A}, **{r:f"h{u[0]}Q{u[2]}" for r in x.B}}
            x.meta['set']={r:f"S{u}" for r in x.wr}
        o.append(x)
    return o
def pv_mfmas(s,vpar,pb,first,u=None):
    o=[I(f"{MF} {vr(O(s,dt))}, {ar(Vf(vpar,dt))}, {vr(PB[pb])}, {'0' if first else vr(O(s,dt))}") for dt in range(8)]
    o.append(I(f"{MF} {ar(Lr(s))}, {ar(ONES)}, {vr(PB[pb])}, {'0' if first else ar(Lr(s))}"))
    if u:
        cnt=sum(1 for y in UNITS[:UNITS.index(u)] if y[0]==u[0] and y[2]==u[2])
        for k,x in enumerate(o):
            e={r:f"P{u}" for r in x.B}
            if k<8: e.update({r:f"h{u[0]}KV{u[1]}" for r in x.A})
            if not first: e.update({r:f"O{u[0]}n{cnt}" for r in x.wr})
            x.meta['expect']=e; x.meta['set']={r:f"O{u[0]}n{cnt+1}" for r in x.wr}
    return o
FREE=(5,11,16)
def sm_gaps(s,sb,pb,u=None):
    S=SB[sb]; P=PB[pb]
    T=(lambda **k:k) if u else (lambda **k:{})
    f=lambda e: I(f"v_fma_f32 v{S+e}, v{S+e}, s{sC}, v{MN+s}", **T(expect={('v',S+e):f"S{u}",('v',MN+s):f"M{u and u[0]}"}))
    x=lambda e: I(f"v_exp_f32 v{S+e}, v{S+e}", **T(expect={('v',S+e):f"S{u}"}))
    c=lambda e: I(f"v_cvt_pk_bf16_f32 v{P+e//2}, v{S+e}, v{S+e+1}", **T(expect={('v',S+e):f"S{u}",('v',S+e+1):f"S{u}"}, set={('v',P+e//2):f"P{u}"}))
    if cfg.pkf:
        mb=MN+(s&~1); sel="op_sel:[0,0,1] op_sel_hi:[1,0,1]" if s&1 else "op_sel_hi:[1,0,0]"
        pf=lambda e: I(f"v_pk_fma_f32 v[{S+e}:{S+e+1}], v[{S+e}:{S+e+1}], s[{sC2}:{sC2+1}], v[{mb}:{mb+1}] {sel}", **T(expect={('v',S+e):f"S{u}",('v',MN+s):f"M{u and u[0]}"}))
        if cfg.pkf==1: return [[pf(0)],[x(0)],[x(1)],[pf(2)],[x(2)],[],[x(3)],[pf(4)],[x(4)],[x(5)],[pf(6)],[],[x(6)],[x(7)],[c(0),c(2)],[c(4),c(6)],[]]
        return [[pf(0),pf(2),pf(4),pf(6)],[x(0)],[x(1)],[],[x(2)],[],[x(3)],[],[x(4)],[x(5)],[],[],[x(6)],[x(7)],[c(0),c(2)],[c(4),c(6)],[]]
    return [[f(0),f(1)],[x(0)],[x(1)],[f(2),f(3)],[x(2)],[],[x(3)],[f(4),f(5)],[x(4)],[x(5)],[f(6),f(7)],[],[x(6)],[x(7)],[c(0),c(2)],[c(4),c(6)],[]]
def max_seq(s,sb,h):
    S=SB[sb]
    return [I(f"v_max3_f32 v{T0}, v{S}, v{S+1}, v{S+2}"), I(f"v_max3_f32 v{T3}, v{S+3}, v{S+4}, v{S+5}"),
            I(f"v_max3_f32 v{T0}, v{T0}, v{S+6}, v{S+7}"), I(f"v_max_f32 v{T0}, v{T0}, v{T3}"),
            I(f"v_mov_b32 v{T3}, v{T0}"), I(f"v_permlane16_swap_b32 v{T0}, v{T3}"),
            I(f"v_max_f32 v{T0}, v{T0}, v{T3}"), I(f"v_mov_b32 v{T3}, v{T0}"),
            I(f"v_permlane32_swap_b32 v{T0}, v{T3}"), I(f"v_max_f32 v{T0}, v{T0}, v{T3}"),
            I(f"v_mul_f32 v{MN+s}, s{sNC}, v{T0}", set={('v',MN+s):f"M{h}"})]
MAXG=[11,11,12,12,12,13,14,14,15,16,16]
def put(ex,g,items): ex.setdefault(g,[]).extend(items)

def step(i, ex=None, post=None, clump=0, sumfirst=False):
    ex=ex or {}; post=post or {}
    q,m,p=unit(i+1),unit(i),unit(i-1)
    mf=(qk_mfmas(q[2],q[1]&1,(i+1)&1,q) if q else [None]*8)+(pv_mfmas(p[2],p[1]&1,(i-1)&1,p[1]==0,p) if p else [None]*9)
    if sumfirst: mf=mf[:8]+[mf[16]]+mf[8:16]
    g=sm_gaps(m[2],i&1,i&1,m) if m else [[] for _ in range(17)]
    for src,dst in [(2,1),(9,8),(13,12),(15,14),(4,3),(7,6),(1,0)][:clump]:
        g[dst]=g[dst]+g[src]; g[src]=[]
    tailmax=[]
    if q and q[1]==0:
        ms=max_seq(q[2],(i+1)&1,q[0])
        if p and m and not (cfg.slz&1 and i<13):
            for gg,x in zip(MAXG,ms): g[gg]=g[gg]+[x]
        else:
            for x in ms:
                if x.op.startswith('v_permlane'): tailmax.append(I("s_nop 1"))
                tailmax.append(x)
    out=[I(f"; ---- step {i}: QK{q} softmax{m} PV{p}")]
    if cfg.tls and i<=30:
        w=I("s_waitcnt lgkmcnt(0)"); w.meta['skip']=True
        out+=[w]+TL()
    out+=ex.get(-1,[])
    for k in range(17):
        if mf[k] is not None: out.append(mf[k])
        out+=ex.get(k,[])+g[k]+post.get(k,[])
    return out+tailmax+ex.get(17,[])

def free_gaps(ex,lo,n,avoid=()):
    return [x for x in range(lo,17) if x not in FREE and x not in ex and x not in avoid][:n]
def spread(ex,lo,items,avoid=()):
    gs=free_gaps(ex,lo,len(items),avoid)
    while len(gs)<len(items): gs.append(gs[-1])
    for x,i in zip(gs,items): put(ex,x,[i])
def TL():
    if not cfg.tl: return []
    r=[I("s_mov_b64 exec, s[90:91]"), I("v_mov_b32 v0, s98"), I("v_mov_b32 v61, s100"), I("s_mov_b64 exec, -1"), I("s_lshl_b64 s[90:91], s[90:91], 1"), I("s_memtime s[98:99]"), I("s_memrealtime s[100:101]")]
    for x in r: x.meta['skip']=True
    return r
JN=[0]
def BAR():
    r=[I("s_barrier")]+([] if cfg.tls else TL())
    if cfg.jit:
        x=I("JITTER_PLACEHOLDER:"); x.meta['jit']=True; r.append(x)
    return r
def WV(tag,lg0=False,part=None): return I("s_waitcnt vmcnt(AUTO)"+(" lgkmcnt(0)" if lg0 else ""), auto_vm=tag, need=tag, wpart=part)
def WL(x): return I("s_waitcnt lgkmcnt(AUTO)", auto_lg=x)

def kind(x):
    if x.op.startswith('ds_read'): return 'r'
    if x.op.startswith('ds_write'): return 'w'
    if getattr(x,'dma',False): return 'd'
    if getattr(x,'store',False): return 's'
    return 'a'
def gapcost(ks,free):
    if not ks: return 0
    U={'r':4,'d':6,'w':12,'s':12,'a':4}
    c=sum(U[k] for k in ks)
    if ks[0]=='a': c-=4
    if len(ks)==1 and ks[0]=='d': c=4 if not free else 8
    for p,q in zip(ks,ks[1:]):
        if p=='w' and q=='r': c+=12
    st=12*ks.count('s')
    if free: return st+max(0,c-st-8)
    return c+4*max(0,len([k for k in ks if k!='a'])-1)
def place(ex,groups,lo=0,hi=16,free=FREE):
    groups=[g if isinstance(g,list) else [g] for g in groups]
    n=len(groups)
    if not n: return
    base={g:[kind(x) for x in ex.get(g,[]) if not x.label and not x.meta.get('skip')] for g in range(17)}
    @functools.lru_cache(None)
    def f(g,i):
        if i==n: return (0,())
        if g>hi: return (1e9,())
        best=(1e9,())
        for m in range(0,min(4,n-i)+1):
            ks=base[g]+[kind(x) for gr in groups[i:i+m] for x in gr]
            c=gapcost(ks,g in free)-gapcost(base[g],g in free)
            c+=0.01*sum(abs(g-(lo+(hi-lo)*(j+0.5)/n)) for j in range(i,i+m))
            r=f(g+1,i+m)
            if c+r[0]<best[0]: best=(c+r[0],(g,)*m+r[1])
        return best
    c,gs=f(lo,0)
    assert len(gs)==n
    for g,gr in zip(gs,groups): put(ex,g,gr)

def put_reads(ex,post,reads,r,late):
    rs=reads[4*r:4*r+4]
    nw=max(0,late-4); late=min(late,4)
    if late:
        gs=[6,8,12,13] if r<5 else [2,6,8,9]
        for k in range(late): put(post,gs[k],[rs[k]]+([I("s_waitcnt lgkmcnt(0)")] if k in [3,1,2,0][:nw] else []))
        if rs[late:]: put(ex,16 if r<5 else 11,rs[late:])
    else:
        rg=(5,16) if r<5 else (5,11)
        put(ex,rg[0],rs[:2]); put(ex,rg[1],rs[2:])
def loop_end(ex,lab,n):
    put(ex,13,[I(f"s_add_u32 s{sT}, s{sT}, 1")]); put(ex,15,[I(f"s_cmp_lt_u32 s{sT}, {n}")]); put(ex,16,[I(f"s_cbranch_scc1 {lab}")])

def blockA(b,pairs,pf,nv=None,lab=None,n=0):
    late,clump=int(pf[0]),int(pf[1])
    reads=frag_reads(0,b+1); tag=f"h0KV{b+1}"
    out=[]
    inc=4096 if pairs[0]>=20 else 8192
    if len(pairs)==2: dpos={0:[(0,0,11)],1:[(0,1,3),(0,2,11)],2:[(0,3,11)],3:[(1,0,11)],4:[(1,1,3),(1,2,11)],5:[(1,3,14)]}; advr=(0,3)
    else: dpos={0:[(0,0,11)],2:[(0,1,11)],3:[(0,2,11)],4:[(0,3,11)]}; advr=(0,)
    for r in range(6):
        ex={}; post={}
        if r==0:
            put(ex,0,[I(f"s_waitcnt vmcnt({nv}) lgkmcnt(0)", need=tag, loose_ok=True) if nv is not None else WV(tag,True)])
            put(ex,1,BAR()); put(post,4,setrd(sCur))
        put_reads(ex,post,reads,r,late)
        for (p,j,g) in dpos.get(r,[]): put(ex,g,[pdma(pairs[p],j)])
        if r in advr: spread(ex,2,[I(f"s_add_u32 m0, m0, {SLOT}"), I(f"s_cmp_ge_u32 m0, s{sEnd}"), I(f"s_cselect_b32 m0, s{sW4}, m0"), I(f"s_add_u32 s{sOff}, s{sOff}, {inc}")])
        if r==3: put(ex,15,[I(f"s_waitcnt lgkmcnt({4+late if late else 6})")])
        if r==5:
            spread(ex,0,[I(f"s_add_u32 s{sCur}, s{sCur}, {SLOT}"), I(f"s_cmp_ge_u32 s{sCur}, s{sEnd}"), I(f"s_cselect_b32 s{sCur}, s{sW4}, s{sCur}")])
            if lab: loop_end(ex,lab,n)
        out+=step(6*b+1+r,ex,post,clump)
    return out
def rampA(t=None,prof=None):
    pf=(prof or cfg.prof).split(',')
    if t is not None:
        n=12+4*t
        return blockA(2*t+2,[n,n+1],pf[0],nv=8)+blockA(2*t+3,[n+2,n+3],pf[1],nv=12,lab="LloopA1",n=2)
    o=[]
    for k,b in enumerate(range(2,6)): o+=blockA(b,[12+2*k,13+2*k],pf[k])
    return o
def staticA():
    out=[I("; ==== head A key blocks 2..9")]
    seq=list(LEFT)+[(n,j) for n in range(12,24) for j in range(4)]
    pos={4:[(0,11),(2,11),(3,11),(4,11)], 5:[(0,11),(1,11),(2,11),(3,11),(4,11)], 6:[(0,11),(1,11),(2,11),(3,11),(4,11),(5,14)],
         7:[(0,11),(1,11),(2,3),(2,11),(3,11),(4,11),(5,14)], 8:[(0,11),(1,3),(1,11),(2,11),(3,11),(4,3),(4,11),(5,14)]}
    pf=cfg.midprof.split(',')
    assert sum(int(p[2]) for p in pf)==len(seq),len(seq)
    for b,p in zip(range(2,10),pf):
        late,clump,nd=int(p[0]),int(p[1]),int(p[2])
        sl=slotKV(0,b+1); base=(sl%4)*SLOT
        reads=frag_reads(0,b+1,base=base); tag=f"h0KV{b+1}"
        for r in range(6):
            ex={}; post={}
            lb=2 if (b==2 and cfg.su&4) else 0
            if r==0 and lb: put(ex,7,[I("s_waitcnt lgkmcnt(0)")])
            if r==lb:
                put(ex,0,[WV(tag,True)]); put(ex,1,BAR())
                if sl%4==0:
                    put(ex,2,[I(f"s_add_u32 s{sCur}, s{sW4}, {sl*SLOT}")]); put(post,4,setrd(sCur))
            if lb:
                if r>=2:
                    rr=reads[6*(r-2):6*(r-2)+6]
                    gs=[6,8,12,13] if r<5 else [2,6,8,9]
                    put(ex,5,rr[:2])
                    for k in range(4): put(post,gs[k] if r<5 else [6,8,9,10][k],[rr[2+k]]+([I("s_waitcnt lgkmcnt(0)")] if k in [3,1,2,0][:max(0,late-4)] else []))
            else: put_reads(ex,post,reads,r,late)
            for (rr,g) in pos[nd]:
                if rr==r:
                    n,j=seq.pop(0)
                    if j==0:
                        pre=[setm0(n%9), I(f"s_add_u32 s{sOff}, s{sOff}, {4096 if n>20 else 8192}") if n!=20 else I(f"s_add_u32 s{sOff}, s{sHn}, s{sQw}")]
                        gs=[x for x in range(g-1,-1,-1) if x not in ex and x not in FREE][:2]
                        while len(gs)<2: gs.append(g)
                        put(ex,gs[1],[pre[0]]); put(ex,gs[0],[pre[1]])
                    put(ex,g,[pdma(n,j)])
            if r==3: put(ex,15,[WL(reads[7])])
            if b==9 and r==5: put(ex,12,[I(f"s_add_u32 s{sCur}, s{sW4}, {8*SLOT}")])
            out+=step(6*b+1+r,ex,post,clump)
    assert not seq
    return out
def midA(): return [I(f"s_add_u32 s{sOff}, s{sHn}, s{sQw}"), I(f"s_sub_u32 s{sOff}, s{sOff}, 4096"), I(f"s_mov_b32 s{sT}, 0")]
def loopA2(t): return blockA(2*t+6,[20+2*t],'00',nv=24)+blockA(2*t+7,[21+2*t],'00',nv=24,lab="LloopA2",n=2)

def ostore(reg,j,pol,so,tag=None):
    x=I(f"buffer_store_dwordx4 {vr(reg)}, v{vKVB}, {sr(sO)}, s{so} offen{offs(1024*j)}"+(f" {pol}" if pol else ""))
    if tag: x.meta['expect']={r:tag for r in x.data}
    return x
DIRECT=2
def dunit(k): return (DIRECT+k//4, k%4)
def blockB(b,pf,lab=None,n=0):
    late,clump=int(pf[0]),int(pf[1])
    t=(b-2)//2
    reads=frag_reads(1,b+1); tag=f"h1KV{b+1}"
    out=[]; lead=(b%2==0)
    rp,wp=(sPo,sPe) if lead else (sPe,sPo)
    rx=sXo if lead else sXe
    nb=cfg.dl//2; loc0=(0 if lead else nb)
    dr=[]; sts=[]
    for k in range(nb):
        sub,j=dunit(cfg.dl*t+loc0+k); jj=loc0+k
        dr.append(I(f"ds_read_b128 {vr(DR[jj&1])}, v{vD[jj&1]}{offs(1024*jj)}", src=f"O{sub}", slot=slotQ(sub), private=True))
        sts.append(ostore(DR[jj&1],jj,cfg.st,sSd,f"O{sub}"))
    for r in range(6):
        ex={}; post={}
        if r==0:
            put(ex,0,[I(f"s_waitcnt vmcnt({8+nb}) lgkmcnt(0)", need=tag, loose_ok=True)])
            put(ex,1,BAR())
            put(ex,2,[I(f"s_mov_b32 m0, s{wp}")]); put(ex,3,[I(f"s_xor_b32 s{rp}, s{rp}, s{rx}")])
            put(ex,4,[I(f"s_add_u32 s{sOff}, s{sOff}, 8192")]); put(post,4,setrd(rp))
        put_reads(ex,post,reads,r,late)
        if r<4: put(ex,11,[kvdma(1,b+4,r)])
        if r==3: put(ex,15,[I(f"s_waitcnt lgkmcnt({4+late if late else 6})")])
        if r==4 and nb: put(ex,11,dr)
        if r==5 and nb:
            put(ex,1,[I("s_waitcnt lgkmcnt(2)")]); put(ex,3,[sts[0]])
            if nb==2: put(ex,10,[sts[1]])
        if r==5 and not lead:
            if nb:
                put(ex,12,[I(f"s_add_u32 s{sSd}, s{sSd}, {1024*cfg.dl}")])
                inc=f"{SLOT}" if cfg.dl==4 else f"s{sDi}"
                put(post,16 if not lab else 7,[I(f"v_add_u32 v{vD[k]}, {inc}, v{vD[k]}") for k in range(2)])
                if cfg.dl==2: put(ex,0,[I(f"s_xor_b32 s{sDi}, s{sDi}, {2048^(SLOT-2048)}")])
            if lab: loop_end(ex,lab,n)
        out+=step(72+6*b+1+r,ex,post,clump)
    return out
def loopB(t):
    pf=cfg.profB.split(',')
    return blockB(2*t+2,pf[0])+blockB(2*t+3,pf[1],lab="LloopB",n=(2 if cfg.profB0 else 3))
def peelB():
    if cfg.profBs:
        o=[]
        for b,p in zip(range(2,8),cfg.profBs.split(',')): o+=blockB(b,p)
        return o
    pf=cfg.profB0.split(',')
    return blockB(2,pf[0])+blockB(3,pf[1])

def tagexp(o,tag):
    if tag:
        h=0 if tag[0]=='O' else 1
        for x in o:
            x.meta['expect']={r:f"O{h}n12" for r in x.rd if (r[0]=='v' and r[1]>=64) or (r[0]=='a' and 224<=r[1]<248)}
    return o
def e_head(s,bad,tag,rc):
    o=[I(f"v_accvgpr_read_b32 v{T2}, a{Lr(s)}"), I(f"v_rcp_f32 v{rc}, v{T2}")]
    if bad is None: o.append(I("s_nop 0"))
    elif cfg.tl:
        o+=[I(f"v_subrev_u32 v{T2}, 0.5, v{T2}"), I(f"v_cmp_lt_u32 vcc, s{sThr}, v{T2}"), I(f"s_or_b64 s[{bad}:{bad+1}], s[{bad}:{bad+1}], vcc")]
    else:
        acc=vBadA if bad==sBad else vBadB
        o+=[I(f"v_subrev_u32 v{T2}, 0.5, v{T2}"), I(f"v_max_u32 v{acc}, v{acc}, v{T2}")]
    return tagexp(o,tag)
vBadA,vBadB=0,61
def e_pk(s,dt,tag,rc):
    a=O(s,dt)
    return tagexp([I(f"v_pk_mul_f32 {vr(a+k,2)}, {vr(a+k,2)}, v[{rc}:{rc+1}] op_sel_hi:[1,0]") for k in (0,2)],tag)
def e_cvt(s,dt,tag):
    a=O(s,dt)
    return tagexp([I(f"v_cvt_pk_bf16_f32 v{a}, v{a}, v{a+1}"), I(f"v_cvt_pk_bf16_f32 v{a+1}, v{a+2}, v{a+3}")],tag)
def e_wr(s,dt,off,slot,tag,regs=vW):
    return tagexp([I(f"ds_write_b64 v{regs[dt&3]}, {vr(O(s,dt),2)}{offs(off+(dt>>2)*128)}", wslot=slot, wtag=tag)],tag)[0]
def epi_rd(s,off,slot,tag=None,regs=vR):
    m=dict(src=tag,slot=slot,private=True) if tag else {}
    return [I(f"ds_read_b128 {vr(O(s,2*j))}, v{regs[j&1]}{offs(off+1024*j)}", **m) for j in range(4)]
def epi_st(s,pol,so,tag=None): return [ostore(O(s,2*j),j,pol,so,tag) for j in range(4)]

class Epi:
    def __init__(s,rc2,so): s.rc2=rc2; s.so=so; s.tiles=[]; s.cv=[]; s.wr=[]; s.rd=[]; s.st=[]; s.info={}
    def add(s,sub,avail,off,slot,bad,tag,direct,pol,pre=()):
        s.info[sub]=dict(off=off,slot=slot,bad=bad,tag=tag,direct=direct,pol=pol,pre=list(pre))
        s.tiles+=[(avail,sub,dt) for dt in range(8)]
    def _rd(s,g):
        rd=s.rd; s.rd=[]
        for sub in rd:
            I_=s.info[sub]; r=epi_rd(sub,I_['off'],I_['slot'],I_['tag']); g+=[[x] for x in r]
            st=epi_st(sub,I_['pol'],s.so,I_['tag'])
            s.st+=[[WL(r[1]),st[0]],[st[1]],[WL(r[3]),st[2]],[st[3],I(f"s_add_u32 s{s.so}, s{s.so}, 4096")]]
    def mem(s,nst,fast=False):
        g=[]
        for _ in range(nst):
            if s.st: g.append(s.st.pop(0))
        s._rd(g)
        for sub,dt in s.wr:
            I_=s.info[sub]
            g.append(([I_['pre'][dt]] if (I_['pre'] and dt<4) else [])+[e_wr(sub,dt,I_['off'],I_['slot'],I_['tag'])])
            if dt==7 and I_['direct']: s.rd.append(sub)
        s.wr=[]
        if fast: s._rd(g)
        return g
    def chunk(s,i,n,full=False):
        take=[]
        while s.tiles and len(take)<n and s.tiles[0][0]<=i: take.append(s.tiles.pop(0)[1:])
        o=[]
        for sub,dt in s.cv: o+=e_cvt(sub,dt,s.info[sub]['tag']); s.wr.append((sub,dt))
        s.cv=[]
        heads=[]
        for sub,dt in take:
            I_=s.info[sub]; rc=T1 if sub%2==0 else s.rc2
            if dt==0: heads+=e_head(sub,I_['bad'],I_['tag'],rc)
        o=heads+o
        for sub,dt in take:
            o+=e_pk(sub,dt,s.info[sub]['tag'],T1 if sub%2==0 else s.rc2)
        k=max(1,len(take)-2) if (s.tiles and s.tiles[0][0]<=i+1 and not full) else len(take)
        for sub,dt in take[:k]: o+=e_cvt(sub,dt,s.info[sub]['tag']); s.wr.append((sub,dt))
        s.cv=take[k:]
        return o
    def done(s): return not(s.tiles or s.cv or s.wr or s.rd or s.st)

NPADS=0
PADAT={}
def SITE(k): return min(9,(k-1)*10//max(NPADS,1)-1+0)
def startA():
    o=[I("; ==== head A, first two key blocks (q-major, as Q arrives)")]
    f0=frag_reads(0,0); f1=frag_reads(0,1,base=SLOT); f2=frag_reads(0,2)
    o+=setrd(sW4)
    o.append(WV("h0Q0")); o+=BAR()
    o+=qreads(0,0)+f0[:8]
    seq=[('q',s,j) for s in (3,4,5) for j in range(4)]+[('k',b,j) for b in (2,3,4,5) for j in (0,2,1,3)]
    quota=[int(c) for c in cfg.sdm]; cur=[0]
    def dm():
        if quota[cur[0]]==0: return []
        quota[cur[0]]-=1
        k,x,j=seq.pop(0); it=[]
        if j==0:
            it+=[setm0(slotQ(x) if k=='q' else slotKV(0,x)), I(f"s_add_u32 s{sTmp}, s{sTmp}, 4096") if k=='q' else I(f"s_add_u32 s{sOff}, s{sOff}, 8192")]
        return it+[qdma(0,x,j,sTmp) if k=='q' else kvdma(0,x,j)]
    for i in range(-1,13):
        ex={}; post={}; cur[0]=i+1
        if i==-1:
            put(ex,-1,[WL(f0[0])])
            if cfg.su&1:
                for k in range(7): put(ex,k,[WL(f0[k+1])])
                put(ex,7,dm()+dm()+[WV("h0KV1",part='K')]+BAR()+f1[:8])
            else:
                for k in range(8): put(ex,k,f0[8+2*k:10+2*k]+([WL(f0[k+1])] if k<7 else []))
                put(ex,7,dm()+dm()+[WV("h0KV1")]+BAR()+f1[:8])
            put(ex,17,[WL(f1[7])])
        else:
            if i==0 and cfg.su&1:
                put(ex,9,[WV("h0KV1")]+BAR()+f0[8:])
            if i==1 and cfg.su&1:
                for k in range(8): put(ex,k,f1[8+2*k:10+2*k])
            if i==2 and cfg.su&1: put(ex,7,[WL(f1[23])])
            if i==0 and not cfg.su&1:
                for k in range(8): put(ex,k,f1[8+2*k:10+2*k])
            if i==3: put(ex,0,[I("s_waitcnt lgkmcnt(0)")]); put(ex,1,BAR())
            if i%2==0 and i<=8:
                s=i//2+1; qs=qreads(0,s)
                put(ex,2 if i else 8,dm()); put(ex,5 if i else 8,dm())
                if s==4: put(post,9,bias(QREGS,True))
                put(ex,10,[WV(f"h0Q{s}")]); put(ex,11,qs[:2]); put(ex,12,[qs[2]]); put(ex,13,[qs[3]])
                if s==5: put(post,16,bias(QREGS,False))
                put(ex,17,[WL(qs[3])])
            elif i==10:
                put(ex,0,[WV("h0KV2",True,part=('K' if cfg.su&2 else None))]); put(ex,1,BAR())
                put(ex,2,[I(f"s_add_u32 s{sCur}, s{sW4}, {8*SLOT}")]); put(post,3,setrd(sCur))
                if cfg.slz&2:
                    for k,g in enumerate([3,6,6,8,8,10,12,12]): put(post,g,[f2[k]]+([I('s_waitcnt lgkmcnt(0)')] if (cfg.slz&4 and k in (2,7)) else []))
                else: place(ex,f2[:8],lo=4,hi=12)
                put(ex,14,dm()); put(ex,16,dm())
                put(ex,17,[WL(f2[7])])
            elif i==12:
                if cfg.slz&2:
                    for k,g in enumerate([0,0,0,3,3,3,6,6,6,8,8,10,10,12,12,14]): put(post,g,[f2[8+k]]+([I('s_waitcnt lgkmcnt(0)')] if (cfg.slz&4 and k in (8,15)) else []))
                else: place(ex,f2[8:],lo=0,hi=13)
                put(ex,14,dm()); put(ex,16,dm())
                put(ex,15,[I(f"s_mov_b32 s{sCur}, s{sW4}")])
            else:
                put(ex,5,dm()); put(ex,10,dm())
                if i==11 and cfg.su&2: put(ex,15,[WV("h0KV2")]); put(ex,16,BAR())
        ks=[k for k in range(1,NPADS+1) if SITE(k)==i]
        for k in ks:
            site=[I("s_mov_b64 exec, 0"), I(f"s_branch Lpad{k}"), I(f"Lret{k}:"), I("s_mov_b64 exec, -1")]
            if i%2==0 and 0<=i<=8: ex[10]=site+ex[10]
            else: put(ex,17,site)
        o+=step(i,ex,post,cfg.profS if (i>=6 and i%2==0) or i>9 or (cfg.slz&1 and i>=5) else 0)
    LEFT[:]=[(6+x,j) for (k,x,j) in seq]
    return o
LEFT=[]

def trans():
    o=[I("; ==== head A last two key blocks + head B first two, epilogue of head A streamed")]
    f11=frag_reads(0,11); g0=frag_reads(1,0); g1=frag_reads(1,1,base=SLOT); g2=frag_reads(1,2)
    E=Epi(14,sSd)
    idxA={u:k for k,u in enumerate(LA)}
    for s in range(6):
        E.add(s,60+idxA[(11,s)]+2,(s%4)*SLOT,slotQ(s),sBad,f"O{s}",s<DIRECT,cfg.st,pre=(bias(vW,True) if s==4 else ()))
    Q=lambda s:qreads(1,s)
    q5=Q(5)
    R={61:f11[:8], 62:f11[8:16], 63:f11[16:24], 64:Q(0), 65:Q(1), 67:Q(2), 68:Q(3), 69:g0[:4], 70:g0[4:8], 71:g0[8:16], 72:g1[:8], 73:g0[16:24],
       74:g1[8:18], 75:g1[18:24], 76:Q(4), 78:q5, 81:g2[:4], 82:g2[4:8], 83:g2[8:16], 84:g2[16:24]}
    D={}
    for (k,x),steps in zip([('q',4),('q',5),('k',2),('k',3),('k',4),('k',5)],
                           ([[61,62,63,64],[65,66,67,68],[69,70,70,71],[73,74,75,76],[77,78,79,80],[81,82,83,84]] if cfg.tw&2 else
                            [[61,62,63,64],[65,66,66,67],[69,70,71,72],[76,77,77,78],[79,79,80,80],[81,82,83,84]])):
        for j,i in enumerate(steps): D.setdefault(i,[]).append((k,x,j))
    for i in range(61,85):
        ex={}; post={}
        rs=R.get(i,[]); lo=0; hi=16
        mx=(unit(i+1)[1]==0)
        if i==61:
            put(ex,0,[WV("h0KV11",True)]); put(ex,1,BAR()); put(post,2,setrd(sCur)); lo=3; hi=12
            put(ex,17,[WL(f11[7])])
            put(ex,2,[I(f"s_add_u32 s{sSd}, s{sH}, s{sQw}")])
        if i==64: put(ex,0,[WV("h1Q1" if cfg.tw&1 else "h1Q3")]); put(ex,7,[WL(f11[23])]); lo=1
        if i==67 and cfg.tw&1: put(ex,0,[WV("h1Q2")]); lo=1
        if i==68 and cfg.tw&1: put(ex,0,[WV("h1Q3")]); lo=1
        if i==69:
            put(ex,0,[WV("h1KV1",True)]); put(ex,1,BAR()); put(post,2,setrd(sW4)); lo=3
            put(ex,2,[I(f"s_add_u32 s{sOff}, s{sHn}, s{sKVw}")]); put(ex,3,[I(f"s_add_u32 s{sOff}, s{sOff}, 8192")])
        if i==70: hi=12; put(ex,17,[WL(g0[7])])
        if i==72: hi=12; put(ex,17,[WL(g1[7])])
        if i==73: hi=5; put(ex,7,[WL(g0[17])]); put(ex,11,[WL(g0[23])])
        if i==75: hi=6; put(ex,7,[WL(g1[17])]); put(ex,12,[WL(g1[23])]); put(post,9,bias(QREGS,True))
        if i==76: put(ex,0,[WV("h1Q4",True)]); put(ex,1,BAR()); lo=2
        if i==77: put(ex,15,[WL(R[76][3])])
        if i==78: put(ex,0,[WV("h1Q5")]); lo=1
        if i==79: put(ex,15,[WL(q5[3])])
        if i==81:
            put(ex,0,[WV("h1KV2",True)]); put(ex,1,BAR())
            put(ex,2,[I(f"s_add_u32 s{sPe}, s{sW4}, {8*SLOT}")]); put(post,2,setrd(sPe)); lo=4
            put(ex,3,[I(f"s_add_u32 s{sPo}, s{sW4}, {slotKV(1,5)*SLOT}")])
        if i==82: hi=12; put(ex,17,[WL(g2[7])])
        if i==84: hi=12
        mem=E.mem(2)
        if cfg.tsched:
            sd=dict((int(a),int(b)) for a,b in (x.split(':') for x in cfg.tsched.split(',')))
            ch=E.chunk(i,sd.get(i,0),full=(i+1 not in sd))
        else: ch=E.chunk(i,cfg.rho)
        free=[g for g in FREE if not(g==16 and (ch or mx)) and not (g==11 and mx)]
        place(ex,rs,lo=lo,hi=hi,free=free)
        dg=[]
        for (k,x,j) in D.get(i,[]):
            pre=[setm0(slotQ(x) if k=='q' else slotKV(1,x)), I(f"s_add_u32 s{sOff}, s{sOff}, {4096 if k=='q' else 8192}")] if j==0 else []
            dg.append(pre+[qdma(1,x,j) if k=='q' else kvdma(1,x,j)])
        place(ex,dg,lo=max(lo,4),hi=16,free=free)
        qlast=max([g for g,v in ex.items() if any(x.meta.get('src','').startswith('h1Q') for x in v)]+[-1])
        need_after=any(kind(gr[-1])=='w' and any(x.meta.get('slot')==gr[-1].meta['wslot'] for x in rs) for gr in mem)
        place(ex,mem,lo=(qlast+1 if need_after else (2 if i in (69,76,81) else 0)),hi=15,free=free)
        put(post,16,ch)
        if i==83:
            put(post,16,bias(vW,False)+[I(f"v_add_u32 v{vD[k]}, {DIRECT*SLOT}, v{vR[k]}") for k in range(2)])
        if i==84:
            spread(ex,0,[I(f"s_mov_b32 s{sT}, 0"), I(f"s_movk_i32 s{sDi}, {SLOT-2048}"), I(f"s_add_u32 s{sSt}, s{sHn}, s{sQw}")])
            put(ex,17,[WV("h1KV3")])
        o+=step(i,ex,post)
    assert E.done()
    return o

def tailB():
    o=[I("; ==== head B last four key blocks: q sub-tiles 0-2 first, then 3-5; epilogue streamed")]
    base=120
    vK2,vV2=vQ,vQ+1
    def fr(b): return frag_reads(1,b,base=slotKV(1,b)*SLOT) if b!=10 else frag_reads(1,b,rk=vK2,rv=vV2)
    F=[fr(b) for b in [9,10,11,8,9,10,11]]
    R={}
    def addR(i,L): R.setdefault(i,[]).extend(L)
    for m in range(7):
        K,V=F[m][:8],F[m][8:]
        if m==0: addR(base+1,K)
        elif m<6: addR(base+3*m-1,K[:3]); addR(base+3*m,K[3:6]); addR(base+3*m+1,K[6:])
        else: addR(base+17,K)
        if m<6:
            addR(base+3*m+1,V[:(0 if m==0 else 5)]); addR(base+3*m+2,V[(0 if m==0 else 5):(8 if m==0 else 10)]); addR(base+3*m+3,V[(8 if m==0 else 10):(16 if m in (0,5) else 15)])
            if m not in (0,5): R.setdefault(base+3*m+4,[]).insert(0,V[15])
        else: addR(base+19,V[:12]); addR(base+20,V[12:])
    E=Epi(vQ+2,sSt)
    idx={u:k for k,u in enumerate(GB)}
    for s_ in range(5):
        sl=3+(s_%2)
        E.add(s_,base+idx[(11,s_)]+2,(sl-2)*SLOT,sl,sBad2,f"P{s_}",True,(cfg.st3 if (cfg.st3 and s_<cfg.n3) else cfg.st2))
    k0=3*cfg.dl; dq=list(range(k0,16)); pend=[]
    o_sub0,o_j0=dunit(k0)
    for i in range(base+1,base+25):
        ex={}; post={}; rel=i-base; lo=0; hi=16
        rs=list(R.get(i,[]))
        if rel==1:
            put(ex,0,[WV("h1KV10",True)]); put(ex,1,BAR())
            put(ex,2,[I(f"s_add_u32 s{sTmp}, s{sW4}, {8*SLOT}")])
            put(post,2,setrd(sW4)); lo=3; hi=12
            put(post,13,setrd(sTmp,vK2,vV2))
        if rel==5: put(ex,0,[WV("h1KV11")]); put(ex,1,BAR()); lo=2
        if rel==12: put(ex,3,TL())
        g=[]
        for rdx,k in pend:
            sub,j=dunit(k); jj=(k-k0)%4
            g.append([WL(rdx),ostore(DR[k&1],jj,cfg.st,sSd,f"O{sub}")]+([I(f"s_add_u32 s{sSd}, s{sSd}, 4096")] if jj==3 else []))
        pend=[]
        place(ex,g,lo=max(lo,3),hi=4)
        if dq:
            k=dq.pop(0); sub,j=dunit(k)
            x=I(f"ds_read_b128 {vr(DR[k&1])}, v{vD[j&1]}{offs((sub-o_sub0)*SLOT+1024*(j-o_j0))}", src=f"O{sub}", slot=slotQ(sub), private=True)
            pend.append((x,k)); place(ex,[x],lo=13,hi=15)
        mem=E.mem(2 if rel<21 else 4, fast=(rel>=21))
        ch=E.chunk(i,cfg.rhoG if rel<20 else cfg.rhoE)
        free=[g_ for g_ in FREE if not(g_==16 and ch)] if rel<24 else list(range(8,16))
        for m in range(7):
            K,V=F[m][:8],F[m][8:]
            needK = base+3*m+2 if m<6 else base+18
            needV = base+3*m+4 if m<6 else base+20
            if i==needK-1:
                put(ex,17,[WL(K[7])])
                if rs and rs[-1] is K[7]: hi=min(hi,13)
            if i==needV:
                late=[x for x in V if x in rs]
                if late:
                    place(ex,late,lo=0,hi=5,free=free); rs=[x for x in rs if x not in late]; lo=max(lo,6)
                    put(ex,7,[WL(V[15-len(late)])]); put(ex,8+(16-len(late))//2-1,[WL(V[15])])
                else: put(ex,7,[WL(V[15])])
        place(ex,rs,lo=lo,hi=hi,free=free)
        place(ex,mem,lo=(0 if rel<23 else 8),hi=(15 if rel<24 else 16),free=free)
        put(post,16,ch)
        o+=step(i,ex,post)
    assert not E.tiles and not E.cv and not dq and not pend and not E.wr and not E.rd
    return o+final5(E,ex)

def final5(E,ex):
    o=[]
    tag="P5"; sl=5; off=3*SLOT
    rest=[x for g in E.mem(8) for x in g]
    assert E.done()
    pad=max(0,8-len(rest)-len([x for x in ex.get(16,[])]))
    o+=rest+([I(f"s_nop {pad-1}")] if pad else [])+e_head(5,sBad2,tag,T1)
    for half in (0,1):
        for dt in range(4*half,4*half+4): o+=e_pk(5,dt,tag,T1)
        for dt in range(4*half,4*half+4): o+=e_cvt(5,dt,tag)
        for dt in range(4*half,4*half+4): o.append(e_wr(5,dt,off,sl,tag))
    rd=epi_rd(5,off,sl,tag); o+=rd
    st=epi_st(5,cfg.st2,sSt,tag)
    for j in range(4): o+=[WL(rd[j]), st[j]]
    return o

def tailK():
    o=[I("; ==== head B blocks 8,9 (parked output drained) and last two key blocks, epilogue streamed")]
    E=Epi(vQ+2,sSt)
    idx={u:k for k,u in enumerate(LB)}
    for s_ in range(5):
        sl=3+(s_%2)
        E.add(s_,132+idx[(11,s_)]+2,(sl-2)*SLOT,sl,sBad2,f"P{s_}",True,cfg.st2)
    k0=3*cfg.dl; dq=list(range(k0,16)); pend=[]
    o_sub0,o_j0=dunit(k0)
    f11=frag_reads(1,11)
    for i in range(121,145):
        ex={}; post={}; lo=0; hi=16; rs=[]
        if i<133:
            b,r=divmod(i-73,6); lead=(b%2==0)
            if r==0:
                reads=frag_reads(1,b+1); rp=sPo if lead else sPe; rx=sXo if lead else sXe
                put(ex,0,[WV(f"h1KV{b+1}",True)]); put(ex,1,BAR())
                put(ex,2,[I(f"s_xor_b32 s{rp}, s{rp}, s{rx}")]); put(post,4,setrd(rp)); lo=5
            rs=reads[4*r:4*r+4]
            if r==5: hi=11
            if r==3: put(ex,17,[WL(reads[7])])
        if i==133:
            put(ex,0,[WV("h1KV11",True)]); put(ex,1,BAR())
            put(ex,2,[I(f"s_xor_b32 s{sPo}, s{sPo}, s{sXo}")]); put(post,2,setrd(sPo)); lo=3; hi=12
            rs=f11[:8]; put(ex,17,[WL(f11[7])])
        if i==134: rs=f11[8:14]
        if i==135: rs=f11[14:20]
        if i==136: rs=f11[20:24]; hi=5; put(ex,7,[WL(f11[19])]+TL()); put(ex,13,[WL(f11[23])])
        g=[]
        for rdx,k in pend:
            sub,j=dunit(k); jj=(k-k0)%4
            g.append([WL(rdx),ostore(DR[k&1],jj,cfg.st,sSd,f"O{sub}")]+([I(f"s_add_u32 s{sSd}, s{sSd}, 4096")] if jj==3 else []))
        pend=[]
        place(ex,g,lo=3,hi=4)
        mem=E.mem(4, fast=True)
        ch=E.chunk(i,cfg.rho2)
        free=[g_ for g_ in FREE if not(g_==16 and ch)] if i<144 else list(range(8,16))
        place(ex,rs,lo=lo,hi=hi,free=free)
        if dq:
            k=dq.pop(0); sub,j=dunit(k)
            x=I(f"ds_read_b128 {vr(DR[k&1])}, v{vD[j&1]}{offs((sub-o_sub0)*SLOT+1024*(j-o_j0))}", src=f"O{sub}", slot=slotQ(sub), private=True)
            pend.append((x,k)); place(ex,[x],lo=6,hi=(16 if hi==16 else 12),free=free)
        place(ex,mem,lo=(0 if i<143 else 8),hi=(15 if i<144 else 16),free=free)
        put(post,16,ch)
        o+=step(i,ex,post)
    assert not E.tiles and not E.cv and not dq and not pend and not E.wr and not E.rd
    return o+final5(E,ex)

def tailQ():
    o=[I("; ==== head B blocks 8,9 (parked output drained) and last two key blocks q-major, epilogue right behind each sub-tile")]
    k0=3*cfg.dl; dq=list(range(k0,16)); pend=[]
    o_sub0,o_j0=dunit(k0)
    f9=frag_reads(1,9); f10=frag_reads(1,10); f11=frag_reads(1,11,base=slotKV(1,11)*SLOT,rk=vQ,rv=vQ+1)
    R={121+r:f9[4*r:4*r+4] for r in range(6)}
    R.update({127:f10[:5],128:f10[5:11],129:f10[11:17],130:f10[17:21]+f11[:2],131:f11[2:8],132:f10[21:24],133:f11[8:18],134:f11[18:24]})
    stq=[]; nxt=[]
    nd2=max(0,len(dq)-cfg.nd1)
    for i in range(121,145):
        ex={}; post={}; lo=0; hi=16; rs=list(R.get(i,[]))
        p=unit(i-1); fin=(p[1]==11)
        if i==121:
            put(ex,0,[WV("h1KV9",True)]); put(ex,1,BAR())
            put(ex,2,[I(f"s_xor_b32 s{sPo}, s{sPo}, s{sXo}")]); put(post,4,setrd(sPo)); lo=5
        if i==124: put(ex,17,[WL(f9[7])])
        if i==126: hi=11
        if i==127:
            put(ex,0,[WV("h1KV10" if cfg.bar11 else "h1KV11",True)]); put(ex,1,BAR())
            put(ex,2,[I(f"s_xor_b32 s{sPe}, s{sPe}, s{sXe}")]); put(post,4,setrd(sPe)); lo=5
        if i==128: put(post,4,setrd(sW4,vQ,vQ+1))
        if i==130:
            put(ex,17,[WL(f10[7])])
            if cfg.bar11: put(ex,6,[WV("h1KV11")]); put(ex,7,[I("s_barrier")])
        if i==131: hi=12; put(ex,17,[WL(f11[7])])
        if i==133: put(ex,7,[WL(f10[23])]+TL())
        if i==134: hi=5; put(ex,8,[WL(f11[17])]); put(ex,13,[WL(f11[23])])
        free=[g_ for g_ in FREE if not(g_==16 and fin)] if i<144 else list(range(8,16))
        g=[]
        for rdx,k in pend:
            sub,j=dunit(k); jj=(k-k0)%4
            g.append([WL(rdx),ostore(DR[k&1],jj,cfg.st,sSd,f"O{sub}")]+([I(f"s_add_u32 s{sSd}, s{sSd}, 4096")] if jj==3 else []))
        if g: place(ex,g[:1],lo=3,hi=4)
        if len(g)>1: place(ex,g[1:],lo=9,hi=10)
        two=len(pend)>1; pend=[]
        if i==130:
            place(ex,rs[:4],lo=0,hi=11,free=free); place(ex,rs[4:],lo=8,hi=16,free=free)
        else: place(ex,rs,lo=lo,hi=hi,free=free)
        n=0
        if dq: n=1
        if dq and nd2>0 and (i%2==0 or nd2>6): n=2; nd2-=1
        xs=[]
        for _ in range(min(n,len(dq))):
            k=dq.pop(0); sub,j=dunit(k)
            x=I(f"ds_read_b128 {vr(DR[k&1])}, v{vD[j&1]}{offs((sub-o_sub0)*SLOT+1024*(j-o_j0))}", src=f"O{sub}", slot=slotQ(sub), private=True)
            pend.append((x,k)); xs.append(x)
        place(ex,xs,lo=11,hi=(16 if hi==16 else 12),free=free)
        mlo=0 if i<143 else 8
        if nxt:
            place(ex,nxt,lo=mlo,hi=16,free=free); nxt=[]
        elif stq:
            place(ex,stq,lo=mlo,hi=15,free=free); stq=[]
        if fin and p[2]<5:
            s_=p[2]; tag=f"P{s_}"; sl=3+(s_%2); off=(sl-2)*SLOT
            ch=e_head(s_,sBad2,tag,T1)
            for dt in range(8): ch+=e_pk(s_,dt,tag,T1)
            for dt in range(8): ch+=e_cvt(s_,dt,tag)
            put(post,13,ch[:1]); put(post,14,ch[1:2]); put(post,16,ch[2:])
            rd=epi_rd(s_,off,sl,tag); st=epi_st(s_,cfg.st2,sSt,tag)
            nxt=[[e_wr(s_,dt,off,sl,tag)] for dt in range(8)]+[[x] for x in rd]
            stq=[[WL(rd[1]),st[0]],[st[1]],[WL(rd[3]),st[2]],[st[3],I(f"s_add_u32 s{sSt}, s{sSt}, 4096")]]
        o+=step(i,ex,post,(cfg.profT if i<133 else 0),sumfirst=fin)
    assert not dq and not pend and not nxt and not stq
    tag="P5"; sl=5; off=3*SLOT
    o+=e_head(5,sBad2,tag,T1)
    for half in (0,1):
        for dt in range(4*half,4*half+4): o+=e_pk(5,dt,tag,T1)
        for dt in range(4*half,4*half+4): o+=e_cvt(5,dt,tag)
        for dt in range(4*half,4*half+4): o.append(e_wr(5,dt,off,sl,tag))
    rd=epi_rd(5,off,sl,tag); o+=rd
    st=epi_st(5,cfg.st2,sSt,tag)
    for j in range(4): o+=[WL(rd[j]), st[j]]
    return o

def stamp(k):
    if not cfg.stamps: return []
    op="s_memrealtime" if (cfg.echo>=0 or cfg.rt) else "s_memtime"
    return [I(f"{op} s[{sStamp+4+2*k}:{sStamp+5+2*k}]", skip=True)]

def lane_consts(A,base):
    A("v_and_b32 v4, 3, v0")
    A("v_bfe_u32 v3, v0, 2, 1"); A("v_mul_u32_u24 v9, 2080, v3")
    A("v_bfe_u32 v3, v0, 3, 1"); A("v_lshl_add_u32 v9, v3, 10, v9")
    A("v_lshl_add_u32 v9, v4, 8, v9"); A("v_lshl_add_u32 v9, v2, 4, v9"); A(f"v_add_u32 v9, s{base}, v9")
    for ks in range(4):
        A(f"v_xor_b32 v3, {ks}, v4"); A(f"v_lshl_add_u32 v{vQ+ks}, v3, 6, v9")
    A("v_and_b32 v8, 15, v0"); A("v_xor_b32 v9, v8, v2"); A("v_lshlrev_b32 v10, 8, v2"); A(f"v_add_u32 v10, s{base}, v10")
    A(f"v_lshl_add_u32 v{vR[0]}, v9, 4, v10"); A("v_xor_b32 v9, 4, v9"); A(f"v_lshl_add_u32 v{vR[1]}, v9, 4, v10")
    A("v_lshlrev_b32 v10, 8, v8"); A("v_and_b32 v9, 1, v2"); A("v_lshl_add_u32 v10, v9, 3, v10"); A(f"v_add_u32 v10, s{base}, v10")
    A("v_lshrrev_b32 v9, 1, v2"); A("v_and_b32 v8, 7, v0"); A("v_xor_b32 v9, v9, v8")
    for k in range(4):
        A(f"v_xor_b32 v8, {2*k}, v9"); A(f"v_lshl_add_u32 v{vW[k]}, v8, 4, v10")

CPF_LINES=11
def prologue():
    o=[]
    A=lambda t,**k: o.append(I(t,**k))
    A(f"s_load_dwordx2 s[{sKA}:{sKA+1}], s[0:1], 8"); A(f"s_load_dwordx2 s[{sVB}:{sVB+1}], s[0:1], 16")
    A(f"s_load_dwordx2 s[{sQA}:{sQA+1}], s[0:1], 0"); A(f"s_load_dwordx2 s[{sO}:{sO+1}], s[0:1], 24")
    if cfg.stamps:
        A(f"s_load_dwordx2 s[{sDbg}:{sDbg+1}], s[0:1], 32")
        A(f"s_memtime s[{sStamp}:{sStamp+1}]"); A(f"s_memrealtime s[{sStamp+2}:{sStamp+3}]")
    if cfg.tl:
        A("s_mov_b64 s[90:91], 1"); A("s_memtime s[98:99]"); A("s_memrealtime s[100:101]")
    A("s_cmp_ge_u32 s2, 256"); A("s_cbranch_scc1 Lend")
    A("v_lshrrev_b32 v1, 6, v0"); A("v_and_b32 v0, 63, v0"); A("v_readfirstlane_b32 s3, v1")
    if cfg.pro:
        A("s_getpc_b64 s[62:63]"); A("Lpc:")
        A("v_min_u32 v2, 3, v0"); A("v_lshlrev_b32 v2, 7, v2")
        A("global_load_dword v14, v2, s[62:63] offset:64")
        A("s_lshr_b32 s4, s2, 3"); A(f"s_mul_i32 s4, s4, {128*CPF_LINES}"); A("s_add_u32 s4, s4, Lmain-Lpc")
        A(f"v_min_u32 v1, {CPF_LINES-1}, v0"); A("v_lshl_add_u32 v1, v1, 7, s4")
        A("global_load_dword v15, v1, s[62:63]")
    A(f"v_lshlrev_b32 v{vKVB}, 4, v0"); A(f"v_add_u32 v{vKVA}, 1056, v{vKVB}")
    if cfg.diag=='l2only': A("s_and_b32 s62, s2, 7"); A(f"s_mul_i32 s{sH}, s62, {2*HEADB}")
    else: A(f"s_mul_i32 s{sH}, s2, {2*HEADB}")
    A(f"s_mov_b32 s{sKA+2}, {TOTB+1056}"); A(f"s_mov_b32 s{sKA+3}, 0x20000"); A(f"s_mov_b32 s{sVB+2}, {TOTB+2080}"); A(f"s_mov_b32 s{sVB+3}, s{sKA+3}")
    A(f"s_mul_i32 s{sW4}, s3, {WREG}"); A(f"s_lshl_b32 s{sKVw}, s3, 11")
    A(f"s_add_u32 s{sOff}, s{sH}, s{sKVw}")
    o.append(setm0(0))
    A("s_waitcnt lgkmcnt(0)")
    A(f"s_sub_u32 s{sKA}, s{sKA}, 1056"); A(f"s_subb_u32 s{sKA+1}, s{sKA+1}, 0")
    o+=[kvdma(0,0,0),kvdma(0,0,2)]
    A(f"s_sub_u32 s{sVB}, s{sVB}, 2080"); A(f"s_subb_u32 s{sVB+1}, s{sVB+1}, 0")
    if not cfg.su&1: o+=[kvdma(0,0,1),kvdma(0,0,3)]
    if cfg.cpf and not cfg.pro:
        A("s_getpc_b64 s[62:63]")
        if cfg.pads: A("Lpc:"); A("s_add_u32 s62, s62, Lmain-Lpc"); A("s_addc_u32 s63, s63, 0")
        A("s_lshr_b32 s4, s2, 3"); A(f"s_mul_i32 s4, s4, {128*CPF_LINES}")
        A(f"v_min_u32 v1, {CPF_LINES-1}, v0"); A("v_lshl_add_u32 v1, v1, 7, s4")
        A("global_load_dword v15, v1, s[62:63]")
    A("v_lshrrev_b32 v2, 4, v0"); A("v_lshlrev_b32 v4, 6, v2"); A(f"v_xor_b32 v{vQB}, v{vKVB}, v4"); A(f"v_add_u32 v{vQA}, 1056, v{vQB}")
    A(f"s_mul_i32 s{sQw}, s3, 24576"); A(f"s_add_u32 s{sTmp}, s{sH}, s{sQw}")
    A(f"s_sub_u32 s{sQB}, s{sQA}, 32"); A(f"s_subb_u32 s{sQB+1}, s{sQA+1}, 0")
    A(f"s_sub_u32 s{sQA}, s{sQA}, 1056"); A(f"s_subb_u32 s{sQA+1}, s{sQA+1}, 0")
    o.append(setm0(slotQ(0)))
    A(f"s_mov_b64 s[{sQA+2}:{sQA+3}], s[{sKA+2}:{sKA+3}]"); A(f"s_mov_b32 s{sQB+2}, {TOTB+32}"); A(f"s_mov_b32 s{sQB+3}, s{sKA+3}")
    o+=[qdma(0,0,j,sTmp) for j in range(4)]
    if cfg.su&1:
        o.append(setm0(1)); A(f"s_add_u32 s4, s{sOff}, 8192")
        o+=[kvdma(0,1,j,4) for j in (0,2)]
        o+=[setm0(0),I("s_nop 0"),kvdma(0,0,1),kvdma(0,0,3)]
    o.append(setm0(1)); A(f"s_add_u32 s{sOff}, s{sOff}, 8192")
    o+=[kvdma(0,1,j) for j in ((1,3) if cfg.su&1 else (0,2,1,3))]
    if cfg.pro: o+=[I("s_branch Lmain"), I(".p2align 12"), I("Lmain:")]
    A(f"s_mov_b32 s{sO+2}, {0 if cfg.diag else TOTB}"); A(f"s_mov_b32 s{sO+3}, 0x20000")
    A(f"s_add_u32 s{sHn}, s{sH}, {HEADB}")
    A(f"s_mov_b32 s{sC}, 0x3e0293ee"); A(f"s_mov_b32 s{sNC}, 0xbe0293ee"); A(f"s_mov_b32 s{sThr}, {0x4e800000-0x3f000000:#x}")
    if cfg.pkf: A(f"s_mov_b32 s{sC2}, 0x3e0293ee"); A(f"s_mov_b32 s{sC2+1}, 0x3e0293ee")
    A(f"s_add_u32 s{sEnd}, s{sW4}, {NSLOT*SLOT}")
    A(f"s_mov_b32 s{sT}, 0")
    if cfg.profO or cfg.oddB: A("s_getreg_b32 s95, hwreg(HW_REG_XCC_ID)")
    A(f"s_mov_b64 s[{sBad}:{sBad+1}], 0"); A(f"s_mov_b64 s[{sBad2}:{sBad2+1}], 0")
    if cfg.tw&2:
        A(f"s_add_u32 s{sXe}, s{sW4}, {8*SLOT}"); A(f"s_xor_b32 s{sXe}, s{sXe}, s{sW4}")
        A(f"s_add_u32 s{sXo}, s{sW4}, {SLOT}"); A(f"s_add_u32 s4, s{sW4}, {2*SLOT}"); A(f"s_xor_b32 s{sXo}, s{sXo}, s4")
    else:
        A(f"s_add_u32 s{sXe}, s{sW4}, {8*SLOT}"); A(f"s_add_u32 s4, s{sW4}, {SLOT}"); A(f"s_xor_b32 s{sXe}, s{sXe}, s4")
        A(f"s_add_u32 s4, s{sW4}, {2*SLOT}"); A(f"s_xor_b32 s{sXo}, s4, s{sW4}")
    A("v_and_b32 v3, 7, v0"); A(f"v_mul_u32_u24 v{vKl}, 2080, v3")
    A("v_bfe_u32 v3, v0, 3, 1"); A(f"v_lshl_add_u32 v{vKl}, v3, 8, v{vKl}")
    A(f"v_lshl_add_u32 v{vKl}, v2, 4, v{vKl}"); A(f"v_subrev_u32 v{vKl}, s{sW4}, v{vKl}")
    A("v_bfe_u32 v3, v0, 2, 3"); A(f"v_mul_u32_u24 v{vVl}, 2080, v3")
    A("v_lshrrev_b32 v3, 5, v0"); A(f"v_lshl_add_u32 v{vVl}, v3, 8, v{vVl}")
    A("v_and_b32 v4, 3, v0"); A(f"v_lshl_add_u32 v{vVl}, v4, 3, v{vVl}")
    A(f"v_add_u32 v{vVl}, 1024, v{vVl}"); A(f"v_subrev_u32 v{vVl}, s{sW4}, v{vVl}")
    A("v_mov_b32 v11, 0x3f803f80"); A("v_cmp_eq_u32 vcc, 0, v4")
    lane_consts(A,4)
    A("v_cndmask_b32 v11, 0, v11, vcc")
    for k in range(4): A(f"v_accvgpr_write_b32 a{ONES+k}, v11")
    if not cfg.tl: A(f"v_mov_b32 v{vBadA}, 0"); A(f"v_mov_b32 v{vBadB}, 0")
    for s in (1,2):
        o.append(setm0(slotQ(s))); A(f"s_add_u32 s{sTmp}, s{sTmp}, 4096")
        o+=[qdma(0,s,j,sTmp) for j in range(4)]
    return o

def slow_path():
    o=[]
    A=lambda t,**k: o.append(I(t,**k))
    sP=sCur
    A("; ==== fallback: exact two-pass softmax with the true row max for this wave's 96 rows of the head at byte offset s44")
    A("Lslow:")
    A("s_waitcnt vmcnt(0) lgkmcnt(0)")
    A(f"s_mul_i32 s{sP}, s3, {SLOT}")
    A(f"s_add_u32 s{sTmp}, s{sP}, s{sW4}")
    o+=setrd(sTmp)
    A(f"v_lshrrev_b32 v0, 4, v{vKVB}"); A("v_lshrrev_b32 v2, 4, v0")
    lane_consts(A,sTmp)
    A(f"s_mov_b32 m0, s{sTmp}")
    A(f"s_add_u32 s{sOff}, s{sH}, s{sQw}")
    for s in range(6):
        o+=[qdma(0,s,j) for j in range(4)]
        A("s_waitcnt vmcnt(0)")
        for ks in range(4): A(f"ds_read_b128 {ar(Qr(s,ks))}, v{vQ+ks}")
        A(f"s_add_u32 s{sOff}, s{sOff}, 4096")
        A("s_waitcnt lgkmcnt(0)")
    for s in range(6): A(f"v_mov_b32 v{MN+s}, 0xff800000")
    def loadkv():
        for j in range(4):
            A(f"s_add_u32 m0, s{sP}, {j*WREG}"); A("s_nop 0")
            o.extend(kvdma(0,0,jj) for jj in range(4))
            A(f"s_add_u32 s{sOff}, s{sOff}, 2048")
        A("s_waitcnt vmcnt(0)")
    A(f"s_mov_b32 s{sOff}, s{sH}"); A(f"s_mov_b32 s{sT}, 0")
    A("Lslow1:")
    loadkv()
    o+=frag_reads(0,0,tags=False)[:8]
    A("s_waitcnt lgkmcnt(0)")
    for s in range(6):
        o+=qk_mfmas(s,0,0)
        A("s_nop 7")
        for e in range(0,8,2): A(f"v_max3_f32 v{MN+s}, v{MN+s}, v{SB[0]+e}, v{SB[0]+e+1}")
    A(f"s_add_u32 s{sT}, s{sT}, 1"); A(f"s_cmp_lt_u32 s{sT}, 12"); A("s_cbranch_scc1 Lslow1")
    for s in range(6):
        m=MN+s
        A(f"v_mov_b32 v{T1}, v{m}"); A("s_nop 1"); A(f"v_permlane16_swap_b32 v{m}, v{T1}"); A(f"v_max_f32 v{m}, v{m}, v{T1}")
        A(f"v_mov_b32 v{T1}, v{m}"); A("s_nop 1"); A(f"v_permlane32_swap_b32 v{m}, v{T1}"); A(f"v_max_f32 v{m}, v{m}, v{T1}")
    for r in range(64,256): A(f"v_mov_b32 v{r}, 0")
    for r in range(224,248): A(f"v_accvgpr_write_b32 a{r}, 0")
    A(f"s_mov_b32 s{sOff}, s{sH}"); A(f"s_mov_b32 s{sT}, 0")
    A("Lslow2:")
    loadkv()
    fr=frag_reads(0,0,tags=False)
    for k in range(3):
        o+=fr[8*k:8*k+8]; A("s_waitcnt lgkmcnt(0)")
    for s in range(6):
        o+=qk_mfmas(s,0,0)
        A("s_nop 7")
        for e in range(8): A(f"v_sub_f32 v{SB[0]+e}, v{SB[0]+e}, v{MN+s}")
        for e in range(8): A(f"v_mul_f32 v{SB[0]+e}, s{sC}, v{SB[0]+e}")
        for e in range(8): A(f"v_exp_f32 v{SB[0]+e}, v{SB[0]+e}")
        for e in range(0,8,2): A(f"v_cvt_pk_bf16_f32 v{PB[0]+e//2}, v{SB[0]+e}, v{SB[0]+e+1}")
        A("s_nop 1")
        o+=pv_mfmas(s,0,0,False)
    A(f"s_add_u32 s{sT}, s{sT}, 1"); A(f"s_cmp_lt_u32 s{sT}, 12"); A("s_cbranch_scc1 Lslow2")
    A("s_nop 7")
    A(f"s_add_u32 s{sSt}, s{sH}, s{sQw}")
    for s in range(6):
        o+=e_head(s,None,None,T1)
        for dt in range(8): o+=e_pk(s,dt,None,T1)
        for dt in range(8): o+=e_cvt(s,dt,None)
        for dt in range(8): o.append(e_wr(s,dt,0,None,None))
        o+=epi_rd(s,0,None)+[I("s_waitcnt lgkmcnt(0)")]+epi_st(s,"",sSt)
        A(f"s_add_u32 s{sSt}, s{sSt}, 4096")
    A("s_branch Lslow_ret")
    for x in o:
        for k in ('tag','slot','wslot','wtag'): x.meta.pop(k,None)
    return o

def resolve(trace):
    vm=[]; lg=[]
    for x in trace:
        if x.label or x.meta.get('skip'): continue
        if 'auto_vm' in x.meta:
            idx=[k for k,y in enumerate(vm) if y.meta.get('tag')==x.meta['auto_vm'] and x.meta.get('wpart') in (None,y.meta.get('part'))]
            n=min(63,len(vm)-1-max(idx)); x.text=x.text.replace("vmcnt(AUTO)",f"vmcnt({n})"); x.meta['loose_ok']=True
        if 'auto_lg' in x.meta:
            k=[i for i,y in enumerate(lg) if y is x.meta['auto_lg']]
            assert k, "WL target not issued before wait: "+x.meta['auto_lg'].text
            n=min(15,len(lg)-1-k[0]); x.text=x.text.replace("lgkmcnt(AUTO)",f"lgkmcnt({n})")
        if x.kind=='vmem': vm.append(x)
        if x.kind=='ds': lg.append(x)

def build():
    set_units()
    P=prologue(); SA=startA(); TR=trans(); TB=[tailK,tailB,tailQ][cfg.G]()
    txt=lambda L:[x.text for x in L if not x.text.startswith(';')]
    assert txt(loopA2(0))==txt(loopA2(1))
    tb=range(1,3) if cfg.profB0 else range(3)
    for t in tb: assert txt(loopB(t))==txt(loopB(tb[0]))
    if cfg.loopR:
        assert txt(rampA(0))==txt(rampA(1)); RAt=rampA(0)+rampA(1); RA=[I(".p2align 3"),I("LloopA1:")]+rampA(0)
    else: RA=RAt=rampA()
    PB_=peelB() if cfg.profB0 else []
    extra=[]
    if cfg.profO:
        RO=rampA(prof=cfg.profO)
        t2=prologue()+startA()+RO+midA()+loopA2(0); resolve(t2)
        for p in check_trace([x for x in t2 if not x.meta.get('skip')]): print("ODD:",p)
        RA=[I("s_bitcmp1_b32 s95, 0"), I("s_cbranch_scc1 LrampO")]+RA+[I("s_branch LrampJ"), I("LrampO:")]+RO+[I("LrampJ:")]
    if cfg.midprof:
        MA=staticA(); trace=P+SA+MA+TR+PB_
    else: trace=P+SA+RAt+midA()+loopA2(0)+loopA2(1)+TR+PB_
    if not cfg.profBs:
        for t in tb: trace+=loopB(t)
    trace+=TB
    resolve(trace)
    probs=check_trace([x for x in trace if not x.meta.get('skip')])
    sp=slow_path()
    probs+=check_trace(sp+slow_path())
    seen=set()
    for p in probs:
        if p not in seen: print(p); seen.add(p)
    nd=(lambda L:[x for x in L if not getattr(x,'dma',False)]) if cfg.diag=='nodma' else (lambda L:L)
    if cfg.pads and not cfg.pro: P=P+[I("s_branch Lmain"), I(".p2align 12"), I("Lmain:")]
    if cfg.midprof: S=list(P)+stamp(0)+SA+stamp(1)+nd(MA)
    else: S=list(P)+stamp(0)+SA+stamp(1)+nd(RA)+midA()+[I(".p2align 3"),I("LloopA2:")]+nd(loopA2(0))
    if cfg.oddB: PB_=[I("s_bitcmp1_b32 s95, 0"), I(f"s_cselect_b32 s{sT}, -1, 0"), I("s_cbranch_scc1 LloopB")]+PB_
    S+=stamp(2)+nd(TR)+stamp(3)+nd(PB_)+([I(".p2align 3"),I("LloopB:")]+nd(loopB(tb[0])) if not cfg.profBs else [])
    S+=stamp(4)+TB+stamp(5)
    if cfg.slow:
        if not cfg.tl:
            S+=[I("; l bits - bits(0.5) above bits(2^30) - bits(0.5) (unsigned) <=> l outside [0.5, 2^30], inf or NaN"),
                I(f"v_cmp_lt_u32 s[{sBad}:{sBad+1}], s{sThr}, v{vBadA}"), I(f"v_cmp_lt_u32 s[{sBad2}:{sBad2+1}], s{sThr}, v{vBadB}")]
        S+=[I(f"s_or_b64 s[62:63], s[{sBad}:{sBad+1}], s[{sBad2}:{sBad2+1}]"), I("s_barrier"), I("s_cbranch_scc1 Lslow_entry")]
    S+=[I("Lfin:")]
    if cfg.stamps:
        S+=[I("s_waitcnt vmcnt(0)"), I(f"s_memtime s[{sStamp+16}:{sStamp+17}]"), I(f"s_memrealtime s[{sStamp+18}:{sStamp+19}]"), I("s_waitcnt lgkmcnt(0)")]
        if cfg.echo>=0:
            esrc=[sStamp+2]+[sStamp+4+2*k for k in range(6)]+[sStamp+18]
            if cfg.echox>=0: S+=[I("s_getreg_b32 s62, hwreg(HW_REG_XCC_ID)"), I("s_and_b32 s62, s62, 7"), I(f"s_cmp_lg_u32 s62, {cfg.echox}"), I("s_cbranch_scc1 Lend")]
            S+=[I(f"s_add_u32 s62, s{esrc[cfg.echo]}, 10000"), I("Lspin:"), I("s_sleep 2"), I("s_memrealtime s[88:89]"), I("s_waitcnt lgkmcnt(0)"),
                I("s_sub_u32 s63, s88, s62"), I("s_cmp_lt_i32 s63, 0"), I("s_cbranch_scc1 Lspin")]
        S+=[I(f"v_mov_b32 v8, s{sStamp+2}"), I(f"v_mov_b32 v9, s{sStamp+18}")]
        srcs=[sStamp+4+2*k for k in range(6)]+[sStamp+(18 if cfg.rt else 16)]
        for k,r in enumerate(srcs):
            S+=[I(f"s_sub_u32 s{sTmp}, s{r}, s{sStamp+(2 if cfg.rt else 0)}"), I(f"v_mov_b32 v{10+k}, s{sTmp}")]
        S+=[I("v_mov_b32 v17, 0"), I("v_mov_b32 v18, 0"), I("s_getreg_b32 s62, hwreg(HW_REG_XCC_ID)"), I("v_mov_b32 v19, s62")]
        S+=[I(f"s_mov_b32 s28, s{sDbg}"), I(f"s_mov_b32 s29, s{sDbg+1}"), I(f"s_mov_b32 s30, {cfg.dbgsz}"), I("s_mov_b32 s31, 0x20000"),
            I("s_lshl_b32 s62, s2, 8"), I("s_lshl_b32 s63, s3, 6"), I("s_add_u32 s62, s62, s63"), I("v_mov_b32 v1, 0")]
        if cfg.tl:
            S+=TL()+[I("s_waitcnt lgkmcnt(0)")]+TL()+[I("s_lshl_b32 s61, s62, 3"), I("s_add_u32 s61, s61, 65536"), I(f"v_lshrrev_b32 v5, 2, v{vKVB}"),
                I("buffer_store_dword v0, v5, s[28:31], s61 offen"), I("buffer_store_dword v61, v5, s[28:31], s61 offen offset:256")]
        S+=[I("s_mov_b64 exec, 1"),
            I("buffer_store_dwordx4 v[8:11], v1, s[28:31], s62 offen"), I("buffer_store_dwordx4 v[12:15], v1, s[28:31], s62 offen offset:16"), I("buffer_store_dwordx4 v[16:19], v1, s[28:31], s62 offen offset:32")]
    S+=[I("Lend:"), I("s_endpgm")]
    if cfg.slow:
        S+=[I("Lslow_entry:"), I(f"s_cmp_lg_u64 s[{sBad}:{sBad+1}], 0"), I("s_cbranch_scc1 Lslow"),
            I("Lslow_ret:"), I(f"s_cmp_eq_u64 s[{sBad2}:{sBad2+1}], 0"), I("s_cbranch_scc1 Lfin"),
            I(f"s_mov_b64 s[{sBad2}:{sBad2+1}], 0"), I(f"s_mov_b32 s{sH}, s{sHn}")]
        S+=sp
    else: S+=[I(".fill 2048, 4, 0xbf810000")]
    return S, bool([p for p in probs if not p.startswith("NOTE")])

from gen import FTR
HDR="""; Kernarg layout for this problem (48 bytes, ptrs only, base s[0:1]):
;   offset   0: d_in[0] q  shape=(16, 32, 384, 128) dtype=bfloat16 strides=(3145728, 98304, 256, 2) contiguous=True
;   offset   8: d_in[1] k  shape=(16, 32, 384, 128) dtype=bfloat16 strides=(3145728, 98304, 256, 2) contiguous=True
;   offset  16: d_in[2] v  shape=(16, 32, 384, 128) dtype=bfloat16 strides=(3145728, 98304, 256, 2) contiguous=True
; @launch grid=(256,1,1) block=(256,1,1) lds=%d
;
; softmax(Q K^T / sqrt(128)) V for 512 heads of 384 x 128.   (emitted by my own generator script)
; -------------------------------------------------------------------------------------------------
; * One workgroup (4 waves, one per SIMD, 512 registers each) per CU handles heads 2*wg (A) and 2*wg+1 (B).
; * v_mfma_f32_16x16x32_bf16 throughout:  S^T = K Q^T (8 MFMA),  O^T += V^T P^T (8 MFMA),  row sums l += 1^T P^T (1 MFMA).
; * Q/K/V stream global -> LDS with buffer_load ... lds through nine 16640-byte slots (padded so that the K b128 reads and the
;   transposing V reads are bank-conflict free); K/V fragments are double buffered in AGPRs, O lives in v64..v255.
; * Softmax guard: p = exp2(c*s - c*m) with m = the row's true max over its first key block (so l >= 1, nothing underflows that the
;   two-pass softmax that subtracts the true max over all 384 keys.
;   part of head A's output is parked in LDS and written while head B no longer loads.
; * Lpad<k>/Lret<k>: while waiting for the first loads each wave touches the first line of every 4 KiB page of the kernel once
;   (branch there with EXEC=0 and straight back, no memory instruction runs) because instruction prefetch stops at page ends.
.amdgcn_target "amdgcn-amd-amdhsa--gfx950"
.text
.globl %s
.p2align 8
.type %s,@function
%s:
"""
def isize(x):
    return SZ[x.text]
def write(fn):
    S,bad=build()
    if cfg.pads and SZ:
        out=[]; addr=None; k=1
        for n,x in enumerate(S):
            out.append(x)
            if x.text=="Lmain:": addr=0; continue
            if addr is None: continue
            if x.text==".p2align 3": addr=(addr+7)&~7; continue
            if x.label: continue
            a0=addr; addr+=SZ.get(x.text,4)
            if k<=NPADS and addr>=k*cfg.pads+cfg.padoff and (x.kind=='mfma' or addr>=k*cfg.pads+cfg.padoff+24) and not x.op.startswith('s_cbranch') and not x.op.startswith('s_branch') and x.text!='s_mov_b64 exec, 0':
                out+=[I(f"Lpad{k}:"), I(f"s_cbranch_execz Lret{k}")]; addr+=4; k+=1
        assert k==NPADS+1,(k,NPADS)
        S=out
    with open(fn,"w") as f:
        f.write(HDR%(LDSB,NAME,NAME,NAME))
        jn=0
        for x in S:
            t=x.text
            if x.meta.get('jit'):
                jn+=1
                f.write(f"    s_cmp_eq_u32 s3, {(jn*cfg.jit)%4}\n    s_cbranch_scc0 Ljit{jn}\n    s_sleep {20+10*(jn%5)}\nLjit{jn}:\n"); continue
            if cfg.drop=='exp' and t.startswith('v_exp'): t=t.replace('v_exp_f32','v_mov_b32')
            if cfg.drop=='exp0' and t.startswith('v_exp'): continue
            if cfg.drop=='fma' and t.startswith('v_fma'): continue
            if cfg.drop=='sum' and t.startswith(MF+' a['): continue
            f.write((t if (t.endswith(':') or t.startswith('.')) else "    "+t)+"\n")
        f.write(FTR%NAME)
    return bad
SZ={}
def sizes(co):
    import subprocess
    out=subprocess.run(["llvm-objdump","-d","--mcpu=gfx950",co],capture_output=True,text=True).stdout
    sym={m.group(2):int(m.group(1),16) for m in re.finditer(r"^([0-9a-f]+) <(\w+)>:",out,re.M)}
    last=int(re.findall(r"// ([0-9A-F]{12}):",out)[-1],16)
    st=sym.get('Lmain',sym[NAME])
    return sym.get('Lfin',sym.get('Lend'))-st, last+4-st
if __name__=="__main__":
    ap=argparse.ArgumentParser()
    ap.add_argument("out"); ap.add_argument("opts",nargs="*")
    a=ap.parse_args()
    for kv in a.opts:
        k,v=kv.split("=",1)
        cur=getattr(cfg,k)
        setattr(cfg,k, (v in("1","True","true")) if isinstance(cur,bool) else (int(v) if isinstance(cur,int) else v.replace("+"," ")))
    from mkco import build as mk
    for it in range(4):
        bad=write(a.out); co=mk(a.out); hot,tot=sizes(co)
        need=-(-hot//(32*128))
        done=(need==CPF_LINES)
        CPF_LINES=need
        if cfg.pads:
            import subprocess
            lst=subprocess.run(["llvm-objdump","-d","--mcpu=gfx950",co],capture_output=True,text=True).stdout
            lst=lst[lst.index("<Lmain>:"):]
            enc=[len(m.group(1).split())*4 for m in re.finditer(r"// [0-9A-F]{12}: ([0-9A-F ]+)",lst)]
            src=open(a.out).read(); src=src[src.index("Lmain:\n"):].split("\n")[1:]
            j=0; addr=0
            for ln in src:
                t=ln.strip()
                if t.startswith(".section"): break
                if t==".p2align 3":
                    if addr%8: j+=1; addr+=4
                    continue
                if not t or t.startswith(";") or t.endswith(":") or t.startswith("."): continue
                SZ[t]=enc[j]; addr+=enc[j]; j+=1
            np_=(hot-64-cfg.padoff)//cfg.pads
            if np_!=NPADS: done=False
            NPADS=np_
        if done and it>0: break
    assert 32*128*CPF_LINES+256<=tot, (hot,tot)
    print(co, "PROBLEMS" if bad else "clean", "hot",hot,"total",tot,"cpf lines",CPF_LINES)
```

```python
import sys, argparse, re, functools
sys.path.insert(0,'work')
from asmlib import I, check_trace
NAME="standalone__gqa_softmax__near_ridge_kernel"
SLOT=16640; WREG=4160; NSLOT=9
LDSB=NSLOT*SLOT
HEADB=98304
TOTB=50331648

class Cfg:
    ld="nt"; st="sc1"; st2="nt"
    stamps=False; rt=False; tl=False; dbgsz=0x400000; echo=-1; diag=''
    slow=True; cpf=True
    rho=3; rhoG=3; rhoE=8
    prof='47,47,44,40'
    loopR=False
    profB='00,00'
    profB0='40,20'
    profO=''
    oddB=False
    midprof=''
    profS=0
    G=1
    rho2=8; nd1=13
    tls=False
    profBs=''
    profT=0
    pro=0
    jit=0
    tsched=''
    echox=-1
    tw=0
    sdm='22222222222222'
    slz=0
    hm=0
    su=0
    bar11=0
    pads=0
    padoff=0
    st3=''; n3=3
    pkf=0
    drop=''
    dl=0
cfg=Cfg()

def O(s,dt): return 64+32*s+4*dt
SB=[16,24]; PB=[32,36]
MN=40
vK,vV,vKl,vVl=46,47,48,49
vD=[50,51]
vQ=52
vR=[56,63]
vKVA,vKVB,vQA,vQB=57,58,59,60
vW=[5,6,7,62]
T0,T1,T2,T3=1,2,3,4
DR=[8,12]
QREGS=[vQ+k for k in range(4)]
def Qr(s,ks): return 16*s+4*ks
def Kf(par,i): return 96+32*par+4*i
def Vf(par,dt): return 160+32*par+4*dt
def Lr(s): return 224+4*s
ONES=248
sKA,sVB,sQA,sQB,sO=8,12,16,20,24
sOff,sCur,sC,sH,sW4,sT,sPe,sEnd,sKVw,sQw,sThr=40,42,43,44,45,46,47,48,49,50,51
sBad=52; sBad2=96
sTmp,sSt,sNC,sHn,sDbg=55,57,58,59,60
sSd,sDi=41,54
sStamp=64
sPo,sXe,sXo=92,93,94
sC2=38

def vr(a,n=4): return f"v[{a}:{a+n-1}]"
def ar(a,n=4): return f"a[{a}:{a+n-1}]"
def sr(a,n=4): return f"s[{a}:{a+n-1}]"
def offs(o): return f" offset:{o}" if o else ""

def slotKV(h,b):
    if b<2: return b
    if h==0: return (6+b)%9
    return ([8,2,0,1] if cfg.tw&2 else [8,0,1,2])[(b-2)%4]
def slotQ(s): return 2+s
UOFF=[0,1024,2080,3104]
def dma(j,tag,slot,q,off=sOff):
    A,B,va,vb=(sQA,sQB,vQA,vQB) if q else (sKA,sVB,vKVA,vKVB)
    p=f" {cfg.ld}" if cfg.ld else ""
    return I(f"buffer_load_dwordx4 v{[va,va,vb,vb][j]}, {sr([A,B,A,B][j])}, s{off} offen{offs(UOFF[j])}{p} lds", tag=tag, slot=slot, part=(None if q else 'KV'[j&1]))
def kvdma(h,b,j,off=sOff): return dma(j,f"h{h}KV{b}",slotKV(h,b),False,off)
def qdma(h,s,j,off=sOff): return dma(j,f"h{h}Q{s}",slotQ(s),True,off)
def pdma(n,j):
    if n<18: return kvdma(0,n-6,j)
    if n<20: return kvdma(1,n-18,j)
    return qdma(1,n-20,j)
def setm0(slot): return I(f"s_add_u32 m0, s{sW4}, {slot*SLOT}") if slot else I(f"s_mov_b32 m0, s{sW4}")
def frag_reads(h,b,base=0,rk=vK,rv=vV,tags=True):
    m=dict(src=f"h{h}KV{b}",slot=slotKV(h,b)) if tags else {}
    par=b&1
    return [I(f"ds_read_b128 {ar(Kf(par,i))}, v{rk}{offs(base+(i//4)*512+(i%4)*64)}",part='K',**m) for i in range(8)]+\
           [I(f"ds_read_b64_tr_b16 {ar(Vf(par,i//2)+2*(i%2),2)}, v{rv}{offs(base+(i%2)*512+(i//2)*32)}",part='V',**m) for i in range(16)]
def qreads(h,s): return [I(f"ds_read_b128 {ar(Qr(s,ks))}, v{vQ+ks}{offs((s%4)*SLOT)}", src=f"h{h}Q{s}", slot=slotQ(s), private=True) for ks in range(4)]
def bias(regs,up): return [I(f"{'v_add_u32' if up else 'v_subrev_u32'} v{r}, {4*SLOT}, v{r}") for r in regs]
def setrd(reg,rk=vK,rv=vV): return [I(f"v_add_u32 v{rk}, s{reg}, v{vKl}"), I(f"v_add_u32 v{rv}, s{reg}, v{vVl}")]

FA=[(b,s) for s in range(6) for b in (0,1)]
LA=[(10,0),(10,1),(10,2),(11,0),(11,1),(10,3),(11,2),(10,4),(11,3),(10,5),(11,4),(11,5)]
FB=[(0,0),(0,1),(1,0),(0,2),(1,1),(0,3),(1,2),(0,4),(1,3),(0,5),(1,4),(1,5)]
MID=[(b,s) for b in range(2,10) for s in range(6)]
GB=[(b,s) for b in (8,9,10,11) for s in (0,1,2)]+[(8,3),(8,4),(8,5),(9,3),(9,4),(9,5),(10,3),(11,3),(10,4),(11,4),(10,5),(11,5)]
LB=[(10,0),(10,1),(10,2),(11,0),(11,1),(11,2),(10,3),(11,3),(10,4),(11,4),(10,5),(11,5)]
LQ=[(b,s) for s in range(6) for b in (10,11)]
UNITS=[]
def set_units():
    UNITS[:]=[(0,)+u for u in FA+MID+LA]+[(1,)+u for u in (FB+MID[:36]+GB if cfg.G==1 else FB+MID+(LB if cfg.G==0 else LQ))]
def unit(i): return UNITS[i] if 0<=i<len(UNITS) else None

MF="v_mfma_f32_16x16x32_bf16"
def qk_mfmas(s,kpar,sb,u=None):
    o=[]
    for i in range(8):
        kt,ks=divmod(i,4); d=SB[sb]+4*kt
        x=I(f"{MF} {vr(d)}, {ar(Kf(kpar,i))}, {ar(Qr(s,ks))}, {'0' if ks==0 else vr(d)}")
        if u:
            x.meta['expect']={**{r:f"h{u[0]}KV{u[1]}" for r in x.A}, **{r:f"h{u[0]}Q{u[2]}" for r in x.B}}
            x.meta['set']={r:f"S{u}" for r in x.wr}
        o.append(x)
    return o
def pv_mfmas(s,vpar,pb,first,u=None):
    o=[I(f"{MF} {vr(O(s,dt))}, {ar(Vf(vpar,dt))}, {vr(PB[pb])}, {'0' if first else vr(O(s,dt))}") for dt in range(8)]
    o.append(I(f"{MF} {ar(Lr(s))}, {ar(ONES)}, {vr(PB[pb])}, {'0' if first else ar(Lr(s))}"))
    if u:
        cnt=sum(1 for y in UNITS[:UNITS.index(u)] if y[0]==u[0] and y[2]==u[2])
        for k,x in enumerate(o):
            e={r:f"P{u}" for r in x.B}
            if k<8: e.update({r:f"h{u[0]}KV{u[1]}" for r in x.A})
            if not first: e.update({r:f"O{u[0]}n{cnt}" for r in x.wr})
            x.meta['expect']=e; x.meta['set']={r:f"O{u[0]}n{cnt+1}" for r in x.wr}
    return o
FREE=(5,11,16)
def sm_gaps(s,sb,pb,u=None):
    S=SB[sb]; P=PB[pb]
    T=(lambda **k:k) if u else (lambda **k:{})
    f=lambda e: I(f"v_fma_f32 v{S+e}, v{S+e}, s{sC}, v{MN+s}", **T(expect={('v',S+e):f"S{u}",('v',MN+s):f"M{u and u[0]}"}))
    x=lambda e: I(f"v_exp_f32 v{S+e}, v{S+e}", **T(expect={('v',S+e):f"S{u}"}))
    c=lambda e: I(f"v_cvt_pk_bf16_f32 v{P+e//2}, v{S+e}, v{S+e+1}", **T(expect={('v',S+e):f"S{u}",('v',S+e+1):f"S{u}"}, set={('v',P+e//2):f"P{u}"}))
    if cfg.pkf:
        mb=MN+(s&~1); sel="op_sel:[0,0,1] op_sel_hi:[1,0,1]" if s&1 else "op_sel_hi:[1,0,0]"
        pf=lambda e: I(f"v_pk_fma_f32 v[{S+e}:{S+e+1}], v[{S+e}:{S+e+1}], s[{sC2}:{sC2+1}], v[{mb}:{mb+1}] {sel}", **T(expect={('v',S+e):f"S{u}",('v',MN+s):f"M{u and u[0]}"}))
        if cfg.pkf==1: return [[pf(0)],[x(0)],[x(1)],[pf(2)],[x(2)],[],[x(3)],[pf(4)],[x(4)],[x(5)],[pf(6)],[],[x(6)],[x(7)],[c(0),c(2)],[c(4),c(6)],[]]
        return [[pf(0),pf(2),pf(4),pf(6)],[x(0)],[x(1)],[],[x(2)],[],[x(3)],[],[x(4)],[x(5)],[],[],[x(6)],[x(7)],[c(0),c(2)],[c(4),c(6)],[]]
    return [[f(0),f(1)],[x(0)],[x(1)],[f(2),f(3)],[x(2)],[],[x(3)],[f(4),f(5)],[x(4)],[x(5)],[f(6),f(7)],[],[x(6)],[x(7)],[c(0),c(2)],[c(4),c(6)],[]]
def max_seq(s,sb,h):
    S=SB[sb]
    return [I(f"v_max3_f32 v{T0}, v{S}, v{S+1}, v{S+2}"), I(f"v_max3_f32 v{T3}, v{S+3}, v{S+4}, v{S+5}"),
            I(f"v_max3_f32 v{T0}, v{T0}, v{S+6}, v{S+7}"), I(f"v_max_f32 v{T0}, v{T0}, v{T3}"),
            I(f"v_mov_b32 v{T3}, v{T0}"), I(f"v_permlane16_swap_b32 v{T0}, v{T3}"),
            I(f"v_max_f32 v{T0}, v{T0}, v{T3}"), I(f"v_mov_b32 v{T3}, v{T0}"),
            I(f"v_permlane32_swap_b32 v{T0}, v{T3}"), I(f"v_max_f32 v{T0}, v{T0}, v{T3}"),
            I(f"v_mul_f32 v{MN+s}, s{sNC}, v{T0}", set={('v',MN+s):f"M{h}"})]
MAXG=[11,11,12,12,12,13,14,14,15,16,16]
def put(ex,g,items): ex.setdefault(g,[]).extend(items)

def step(i, ex=None, post=None, clump=0, sumfirst=False):
    ex=ex or {}; post=post or {}
    q,m,p=unit(i+1),unit(i),unit(i-1)
    mf=(qk_mfmas(q[2],q[1]&1,(i+1)&1,q) if q else [None]*8)+(pv_mfmas(p[2],p[1]&1,(i-1)&1,p[1]==0,p) if p else [None]*9)
    if sumfirst: mf=mf[:8]+[mf[16]]+mf[8:16]
    g=sm_gaps(m[2],i&1,i&1,m) if m else [[] for _ in range(17)]
    for src,dst in [(2,1),(9,8),(13,12),(15,14),(4,3),(7,6),(1,0)][:clump]:
        g[dst]=g[dst]+g[src]; g[src]=[]
    tailmax=[]
    if q and q[1]==0:
        ms=max_seq(q[2],(i+1)&1,q[0])
        if p and m and not (cfg.slz&1 and i<13):
            for gg,x in zip(MAXG,ms): g[gg]=g[gg]+[x]
        else:
            for x in ms:
                if x.op.startswith('v_permlane'): tailmax.append(I("s_nop 1"))
                tailmax.append(x)
    out=[I(f"; ---- step {i}: QK{q} softmax{m} PV{p}")]
    if cfg.tls and i<=30:
        w=I("s_waitcnt lgkmcnt(0)"); w.meta['skip']=True
        out+=[w]+TL()
    out+=ex.get(-1,[])
    for k in range(17):
        if mf[k] is not None: out.append(mf[k])
        out+=ex.get(k,[])+g[k]+post.get(k,[])
    return out+tailmax+ex.get(17,[])

def free_gaps(ex,lo,n,avoid=()):
    return [x for x in range(lo,17) if x not in FREE and x not in ex and x not in avoid][:n]
def spread(ex,lo,items,avoid=()):
    gs=free_gaps(ex,lo,len(items),avoid)
    while len(gs)<len(items): gs.append(gs[-1])
    for x,i in zip(gs,items): put(ex,x,[i])
def TL():
    if not cfg.tl: return []
    r=[I("s_mov_b64 exec, s[90:91]"), I("v_mov_b32 v0, s98"), I("v_mov_b32 v61, s100"), I("s_mov_b64 exec, -1"), I("s_lshl_b64 s[90:91], s[90:91], 1"), I("s_memtime s[98:99]"), I("s_memrealtime s[100:101]")]
    for x in r: x.meta['skip']=True
    return r
JN=[0]
def BAR():
    r=[I("s_barrier")]+([] if cfg.tls else TL())
    if cfg.jit:
        x=I("JITTER_PLACEHOLDER:"); x.meta['jit']=True; r.append(x)
    return r
def WV(tag,lg0=False,part=None): return I("s_waitcnt vmcnt(AUTO)"+(" lgkmcnt(0)" if lg0 else ""), auto_vm=tag, need=tag, wpart=part)
def WL(x): return I("s_waitcnt lgkmcnt(AUTO)", auto_lg=x)

def kind(x):
    if x.op.startswith('ds_read'): return 'r'
    if x.op.startswith('ds_write'): return 'w'
    if getattr(x,'dma',False): return 'd'
    if getattr(x,'store',False): return 's'
    return 'a'
def gapcost(ks,free):
    if not ks: return 0
    U={'r':4,'d':6,'w':12,'s':12,'a':4}
    c=sum(U[k] for k in ks)
    if ks[0]=='a': c-=4
    if len(ks)==1 and ks[0]=='d': c=4 if not free else 8
    for p,q in zip(ks,ks[1:]):
        if p=='w' and q=='r': c+=12
    st=12*ks.count('s')
    if free: return st+max(0,c-st-8)
    return c+4*max(0,len([k for k in ks if k!='a'])-1)
def place(ex,groups,lo=0,hi=16,free=FREE):
    groups=[g if isinstance(g,list) else [g] for g in groups]
    n=len(groups)
    if not n: return
    base={g:[kind(x) for x in ex.get(g,[]) if not x.label and not x.meta.get('skip')] for g in range(17)}
    @functools.lru_cache(None)
    def f(g,i):
        if i==n: return (0,())
        if g>hi: return (1e9,())
        best=(1e9,())
        for m in range(0,min(4,n-i)+1):
            ks=base[g]+[kind(x) for gr in groups[i:i+m] for x in gr]
            c=gapcost(ks,g in free)-gapcost(base[g],g in free)
            c+=0.01*sum(abs(g-(lo+(hi-lo)*(j+0.5)/n)) for j in range(i,i+m))
            r=f(g+1,i+m)
            if c+r[0]<best[0]: best=(c+r[0],(g,)*m+r[1])
        return best
    c,gs=f(lo,0)
    assert len(gs)==n
    for g,gr in zip(gs,groups): put(ex,g,gr)

def put_reads(ex,post,reads,r,late):
    rs=reads[4*r:4*r+4]
    nw=max(0,late-4); late=min(late,4)
    if late:
        gs=[6,8,12,13] if r<5 else [2,6,8,9]
        for k in range(late): put(post,gs[k],[rs[k]]+([I("s_waitcnt lgkmcnt(0)")] if k in [3,1,2,0][:nw] else []))
        if rs[late:]: put(ex,16 if r<5 else 11,rs[late:])
    else:
        rg=(5,16) if r<5 else (5,11)
        put(ex,rg[0],rs[:2]); put(ex,rg[1],rs[2:])
def loop_end(ex,lab,n):
    put(ex,13,[I(f"s_add_u32 s{sT}, s{sT}, 1")]); put(ex,15,[I(f"s_cmp_lt_u32 s{sT}, {n}")]); put(ex,16,[I(f"s_cbranch_scc1 {lab}")])

def blockA(b,pairs,pf,nv=None,lab=None,n=0):
    late,clump=int(pf[0]),int(pf[1])
    reads=frag_reads(0,b+1); tag=f"h0KV{b+1}"
    out=[]
    inc=4096 if pairs[0]>=20 else 8192
    if len(pairs)==2: dpos={0:[(0,0,11)],1:[(0,1,3),(0,2,11)],2:[(0,3,11)],3:[(1,0,11)],4:[(1,1,3),(1,2,11)],5:[(1,3,14)]}; advr=(0,3)
    else: dpos={0:[(0,0,11)],2:[(0,1,11)],3:[(0,2,11)],4:[(0,3,11)]}; advr=(0,)
    for r in range(6):
        ex={}; post={}
        if r==0:
            put(ex,0,[I(f"s_waitcnt vmcnt({nv}) lgkmcnt(0)", need=tag, loose_ok=True) if nv is not None else WV(tag,True)])
            put(ex,1,BAR()); put(post,4,setrd(sCur))
        put_reads(ex,post,reads,r,late)
        for (p,j,g) in dpos.get(r,[]): put(ex,g,[pdma(pairs[p],j)])
        if r in advr: spread(ex,2,[I(f"s_add_u32 m0, m0, {SLOT}"), I(f"s_cmp_ge_u32 m0, s{sEnd}"), I(f"s_cselect_b32 m0, s{sW4}, m0"), I(f"s_add_u32 s{sOff}, s{sOff}, {inc}")])
        if r==3: put(ex,15,[I(f"s_waitcnt lgkmcnt({4+late if late else 6})")])
        if r==5:
            spread(ex,0,[I(f"s_add_u32 s{sCur}, s{sCur}, {SLOT}"), I(f"s_cmp_ge_u32 s{sCur}, s{sEnd}"), I(f"s_cselect_b32 s{sCur}, s{sW4}, s{sCur}")])
            if lab: loop_end(ex,lab,n)
        out+=step(6*b+1+r,ex,post,clump)
    return out
def rampA(t=None,prof=None):
    pf=(prof or cfg.prof).split(',')
    if t is not None:
        n=12+4*t
        return blockA(2*t+2,[n,n+1],pf[0],nv=8)+blockA(2*t+3,[n+2,n+3],pf[1],nv=12,lab="LloopA1",n=2)
    o=[]
    for k,b in enumerate(range(2,6)): o+=blockA(b,[12+2*k,13+2*k],pf[k])
    return o
def staticA():
    out=[I("; ==== head A key blocks 2..9")]
    seq=list(LEFT)+[(n,j) for n in range(12,24) for j in range(4)]
    pos={4:[(0,11),(2,11),(3,11),(4,11)], 5:[(0,11),(1,11),(2,11),(3,11),(4,11)], 6:[(0,11),(1,11),(2,11),(3,11),(4,11),(5,14)],
         7:[(0,11),(1,11),(2,3),(2,11),(3,11),(4,11),(5,14)], 8:[(0,11),(1,3),(1,11),(2,11),(3,11),(4,3),(4,11),(5,14)]}
    pf=cfg.midprof.split(',')
    assert sum(int(p[2]) for p in pf)==len(seq),len(seq)
    for b,p in zip(range(2,10),pf):
        late,clump,nd=int(p[0]),int(p[1]),int(p[2])
        sl=slotKV(0,b+1); base=(sl%4)*SLOT
        reads=frag_reads(0,b+1,base=base); tag=f"h0KV{b+1}"
        for r in range(6):
            ex={}; post={}
            lb=2 if (b==2 and cfg.su&4) else 0
            if r==0 and lb: put(ex,7,[I("s_waitcnt lgkmcnt(0)")])
            if r==lb:
                put(ex,0,[WV(tag,True)]); put(ex,1,BAR())
                if sl%4==0:
                    put(ex,2,[I(f"s_add_u32 s{sCur}, s{sW4}, {sl*SLOT}")]); put(post,4,setrd(sCur))
            if lb:
                if r>=2:
                    rr=reads[6*(r-2):6*(r-2)+6]
                    gs=[6,8,12,13] if r<5 else [2,6,8,9]
                    put(ex,5,rr[:2])
                    for k in range(4): put(post,gs[k] if r<5 else [6,8,9,10][k],[rr[2+k]]+([I("s_waitcnt lgkmcnt(0)")] if k in [3,1,2,0][:max(0,late-4)] else []))
            else: put_reads(ex,post,reads,r,late)
            for (rr,g) in pos[nd]:
                if rr==r:
                    n,j=seq.pop(0)
                    if j==0:
                        pre=[setm0(n%9), I(f"s_add_u32 s{sOff}, s{sOff}, {4096 if n>20 else 8192}") if n not in (18,20) else I(f"s_add_u32 s{sOff}, s{sHn}, s{sQw if n==20 else sKVw}")]
                        gs=[x for x in range(g-1,-1,-1) if x not in ex and x not in FREE][:2]
                        while len(gs)<2: gs.append(g)
                        put(ex,gs[1],[pre[0]]); put(ex,gs[0],[pre[1]])
                    put(ex,g,[pdma(n,j)])
            if r==3: put(ex,15,[WL(reads[7])])
            if b==9 and r==5: put(ex,12,[I(f"s_add_u32 s{sCur}, s{sW4}, {8*SLOT}")])
            out+=step(6*b+1+r,ex,post,clump)
    assert not seq
    return out
def midA(): return [I(f"s_add_u32 s{sOff}, s{sHn}, s{sQw}"), I(f"s_sub_u32 s{sOff}, s{sOff}, 4096"), I(f"s_mov_b32 s{sT}, 0")]
def loopA2(t): return blockA(2*t+6,[20+2*t],'00',nv=24)+blockA(2*t+7,[21+2*t],'00',nv=24,lab="LloopA2",n=2)

def ostore(reg,j,pol,so,tag=None):
    x=I(f"buffer_store_dwordx4 {vr(reg)}, v{vKVB}, {sr(sO)}, s{so} offen{offs(1024*j)}"+(f" {pol}" if pol else ""))
    if tag: x.meta['expect']={r:tag for r in x.data}
    return x
DIRECT=2
def dunit(k): return (DIRECT+k//4, k%4)
def blockB(b,pf,lab=None,n=0):
    late,clump=int(pf[0]),int(pf[1])
    t=(b-2)//2
    reads=frag_reads(1,b+1); tag=f"h1KV{b+1}"
    out=[]; lead=(b%2==0)
    rp,wp=(sPo,sPe) if lead else (sPe,sPo)
    rx=sXo if lead else sXe
    nb=cfg.dl//2; loc0=(0 if lead else nb)
    dr=[]; sts=[]
    for k in range(nb):
        sub,j=dunit(cfg.dl*t+loc0+k); jj=loc0+k
        dr.append(I(f"ds_read_b128 {vr(DR[jj&1])}, v{vD[jj&1]}{offs(1024*jj)}", src=f"O{sub}", slot=slotQ(sub), private=True))
        sts.append(ostore(DR[jj&1],jj,cfg.st,sSd,f"O{sub}"))
    for r in range(6):
        ex={}; post={}
        if r==0:
            put(ex,0,[I(f"s_waitcnt vmcnt({8+nb}) lgkmcnt(0)", need=tag, loose_ok=True)])
            put(ex,1,BAR())
            put(ex,2,[I(f"s_mov_b32 m0, s{wp}")]); put(ex,3,[I(f"s_xor_b32 s{rp}, s{rp}, s{rx}")])
            put(ex,4,[I(f"s_add_u32 s{sOff}, s{sOff}, 8192")]); put(post,4,setrd(rp))
        put_reads(ex,post,reads,r,late)
        if r<4: put(ex,11,[kvdma(1,b+4,r)])
        if r==3: put(ex,15,[I(f"s_waitcnt lgkmcnt({4+late if late else 6})")])
        if r==4 and nb: put(ex,11,dr)
        if r==5 and nb:
            put(ex,1,[I("s_waitcnt lgkmcnt(2)")]); put(ex,3,[sts[0]])
            if nb==2: put(ex,10,[sts[1]])
        if r==5 and not lead:
            if nb:
                put(ex,12,[I(f"s_add_u32 s{sSd}, s{sSd}, {1024*cfg.dl}")])
                inc=f"{SLOT}" if cfg.dl==4 else f"s{sDi}"
                put(post,16 if not lab else 7,[I(f"v_add_u32 v{vD[k]}, {inc}, v{vD[k]}") for k in range(2)])
                if cfg.dl==2: put(ex,0,[I(f"s_xor_b32 s{sDi}, s{sDi}, {2048^(SLOT-2048)}")])
            if lab: loop_end(ex,lab,n)
        out+=step(72+6*b+1+r,ex,post,clump)
    return out
def loopB(t):
    pf=cfg.profB.split(',')
    return blockB(2*t+2,pf[0])+blockB(2*t+3,pf[1],lab="LloopB",n=(2 if cfg.profB0 else 3))
def peelB():
    if cfg.profBs:
        o=[]
        for b,p in zip(range(2,8),cfg.profBs.split(',')): o+=blockB(b,p)
        return o
    pf=cfg.profB0.split(',')
    return blockB(2,pf[0])+blockB(3,pf[1])

def tagexp(o,tag):
    if tag:
        h=0 if tag[0]=='O' else 1
        for x in o:
            x.meta['expect']={r:f"O{h}n12" for r in x.rd if (r[0]=='v' and r[1]>=64) or (r[0]=='a' and 224<=r[1]<248)}
    return o
def e_head(s,bad,tag,rc):
    o=[I(f"v_accvgpr_read_b32 v{T2}, a{Lr(s)}"), I(f"v_rcp_f32 v{rc}, v{T2}")]
    if bad is None: o.append(I("s_nop 0"))
    elif cfg.tl:
        o+=[I(f"v_subrev_u32 v{T2}, 0.5, v{T2}"), I(f"v_cmp_lt_u32 vcc, s{sThr}, v{T2}"), I(f"s_or_b64 s[{bad}:{bad+1}], s[{bad}:{bad+1}], vcc")]
    else:
        acc=vBadA if bad==sBad else vBadB
        o+=[I(f"v_subrev_u32 v{T2}, 0.5, v{T2}"), I(f"v_max_u32 v{acc}, v{acc}, v{T2}")]
    return tagexp(o,tag)
vBadA,vBadB=0,61
def e_pk(s,dt,tag,rc):
    a=O(s,dt)
    return tagexp([I(f"v_pk_mul_f32 {vr(a+k,2)}, {vr(a+k,2)}, v[{rc}:{rc+1}] op_sel_hi:[1,0]") for k in (0,2)],tag)
def e_cvt(s,dt,tag):
    a=O(s,dt)
    return tagexp([I(f"v_cvt_pk_bf16_f32 v{a}, v{a}, v{a+1}"), I(f"v_cvt_pk_bf16_f32 v{a+1}, v{a+2}, v{a+3}")],tag)
def e_wr(s,dt,off,slot,tag,regs=vW):
    return tagexp([I(f"ds_write_b64 v{regs[dt&3]}, {vr(O(s,dt),2)}{offs(off+(dt>>2)*128)}", wslot=slot, wtag=tag)],tag)[0]
def epi_rd(s,off,slot,tag=None,regs=vR):
    m=dict(src=tag,slot=slot,private=True) if tag else {}
    return [I(f"ds_read_b128 {vr(O(s,2*j))}, v{regs[j&1]}{offs(off+1024*j)}", **m) for j in range(4)]
def epi_st(s,pol,so,tag=None): return [ostore(O(s,2*j),j,pol,so,tag) for j in range(4)]

class Epi:
    def __init__(s,rc2,so): s.rc2=rc2; s.so=so; s.tiles=[]; s.cv=[]; s.wr=[]; s.rd=[]; s.st=[]; s.info={}
    def add(s,sub,avail,off,slot,bad,tag,direct,pol,pre=()):
        s.info[sub]=dict(off=off,slot=slot,bad=bad,tag=tag,direct=direct,pol=pol,pre=list(pre))
        s.tiles+=[(avail,sub,dt) for dt in range(8)]
    def _rd(s,g):
        rd=s.rd; s.rd=[]
        for sub in rd:
            I_=s.info[sub]; r=epi_rd(sub,I_['off'],I_['slot'],I_['tag']); g+=[[x] for x in r]
            st=epi_st(sub,I_['pol'],s.so,I_['tag'])
            s.st+=[[WL(r[1]),st[0]],[st[1]],[WL(r[3]),st[2]],[st[3],I(f"s_add_u32 s{s.so}, s{s.so}, 4096")]]
    def mem(s,nst,fast=False):
        g=[]
        for _ in range(nst):
            if s.st: g.append(s.st.pop(0))
        s._rd(g)
        for sub,dt in s.wr:
            I_=s.info[sub]
            g.append(([I_['pre'][dt]] if (I_['pre'] and dt<4) else [])+[e_wr(sub,dt,I_['off'],I_['slot'],I_['tag'])])
            if dt==7 and I_['direct']: s.rd.append(sub)
        s.wr=[]
        if fast: s._rd(g)
        return g
    def chunk(s,i,n,full=False):
        take=[]
        while s.tiles and len(take)<n and s.tiles[0][0]<=i: take.append(s.tiles.pop(0)[1:])
        o=[]
        for sub,dt in s.cv: o+=e_cvt(sub,dt,s.info[sub]['tag']); s.wr.append((sub,dt))
        s.cv=[]
        heads=[]
        for sub,dt in take:
            I_=s.info[sub]; rc=T1 if sub%2==0 else s.rc2
            if dt==0: heads+=e_head(sub,I_['bad'],I_['tag'],rc)
        o=heads+o
        for sub,dt in take:
            o+=e_pk(sub,dt,s.info[sub]['tag'],T1 if sub%2==0 else s.rc2)
        k=max(1,len(take)-2) if (s.tiles and s.tiles[0][0]<=i+1 and not full) else len(take)
        for sub,dt in take[:k]: o+=e_cvt(sub,dt,s.info[sub]['tag']); s.wr.append((sub,dt))
        s.cv=take[k:]
        return o
    def done(s): return not(s.tiles or s.cv or s.wr or s.rd or s.st)

NPADS=0
PADAT={}
def SITE(k): return min(9,(k-1)*10//max(NPADS,1)-1+0)
def startA():
    o=[I("; ==== head A, first two key blocks (q-major, as Q arrives)")]
    f0=frag_reads(0,0); f1=frag_reads(0,1,base=SLOT); f2=frag_reads(0,2)
    o+=setrd(sW4)
    o.append(WV("h0Q0")); o+=BAR()
    o+=qreads(0,0)+f0[:8]
    seq=[('q',s,j) for s in (3,4,5) for j in range(4)]+[('k',b,j) for b in (2,3,4,5) for j in (0,2,1,3)]
    quota=[int(c) for c in cfg.sdm]; cur=[0]
    def dm():
        if quota[cur[0]]==0: return []
        quota[cur[0]]-=1
        k,x,j=seq.pop(0); it=[]
        if j==0:
            it+=[setm0(slotQ(x) if k=='q' else slotKV(0,x)), I(f"s_add_u32 s{sTmp}, s{sTmp}, 4096") if k=='q' else I(f"s_add_u32 s{sOff}, s{sOff}, 8192")]
        return it+[qdma(0,x,j,sTmp) if k=='q' else kvdma(0,x,j)]
    for i in range(-1,13):
        ex={}; post={}; cur[0]=i+1
        if i==-1:
            put(ex,-1,[WL(f0[0])])
            if cfg.su&1:
                for k in range(7): put(ex,k,[WL(f0[k+1])])
                put(ex,7,dm()+dm()+[WV("h0KV1",part='K')]+BAR()+f1[:8])
            else:
                for k in range(8): put(ex,k,f0[8+2*k:10+2*k]+([WL(f0[k+1])] if k<7 else []))
                put(ex,7,dm()+dm()+[WV("h0KV1")]+BAR()+f1[:8])
            put(ex,17,[WL(f1[7])])
        else:
            if i==0 and cfg.su&1:
                put(ex,9,[WV("h0KV1")]+BAR()+f0[8:])
            if i==1 and cfg.su&1:
                for k in range(8): put(ex,k,f1[8+2*k:10+2*k])
            if i==2 and cfg.su&1: put(ex,7,[WL(f1[23])])
            if i==0 and not cfg.su&1:
                for k in range(8): put(ex,k,f1[8+2*k:10+2*k])
            if i==3: put(ex,0,[I("s_waitcnt lgkmcnt(0)")]); put(ex,1,BAR())
            if i%2==0 and i<=8:
                s=i//2+1; qs=qreads(0,s)
                put(ex,2 if i else 8,dm()); put(ex,5 if i else 8,dm())
                if s==4: put(post,9,bias(QREGS,True))
                put(ex,10,[WV(f"h0Q{s}")]); put(ex,11,qs[:2]); put(ex,12,[qs[2]]); put(ex,13,[qs[3]])
                if s==5: put(post,16,bias(QREGS,False))
                put(ex,17,[WL(qs[3])])
            elif i==10:
                put(ex,0,[WV("h0KV2",True,part=('K' if cfg.su&2 else None))]); put(ex,1,BAR())
                put(ex,2,[I(f"s_add_u32 s{sCur}, s{sW4}, {8*SLOT}")]); put(post,3,setrd(sCur))
                if cfg.slz&2:
                    for k,g in enumerate([3,6,6,8,8,10,12,12]): put(post,g,[f2[k]]+([I('s_waitcnt lgkmcnt(0)')] if (cfg.slz&4 and k in (2,7)) else []))
                else: place(ex,f2[:8],lo=4,hi=12)
                put(ex,14,dm()); put(ex,16,dm())
                put(ex,17,[WL(f2[7])])
            elif i==12:
                if cfg.slz&2:
                    for k,g in enumerate([0,0,0,3,3,3,6,6,6,8,8,10,10,12,12,14]): put(post,g,[f2[8+k]]+([I('s_waitcnt lgkmcnt(0)')] if (cfg.slz&4 and k in (8,15)) else []))
                else: place(ex,f2[8:],lo=0,hi=13)
                put(ex,14,dm()); put(ex,16,dm())
                put(ex,15,[I(f"s_mov_b32 s{sCur}, s{sW4}")])
            else:
                put(ex,5,dm()); put(ex,10,dm())
                if i==11 and cfg.su&2: put(ex,15,[WV("h0KV2")]); put(ex,16,BAR())
        ks=[k for k in range(1,NPADS+1) if SITE(k)==i]
        for k in ks:
            site=[I("s_mov_b64 exec, 0"), I(f"s_branch Lpad{k}"), I(f"Lret{k}:"), I("s_mov_b64 exec, -1")]
            if i%2==0 and 0<=i<=8: ex[10]=site+ex[10]
            else: put(ex,17,site)
        o+=step(i,ex,post,cfg.profS if (i>=6 and i%2==0) or i>9 or (cfg.slz&1 and i>=5) else 0)
    LEFT[:]=[(6+x,j) for (k,x,j) in seq]
    return o
LEFT=[]

def trans():
    o=[I("; ==== head A last two key blocks + head B first two, epilogue of head A streamed")]
    f11=frag_reads(0,11); g0=frag_reads(1,0); g1=frag_reads(1,1,base=SLOT); g2=frag_reads(1,2)
    E=Epi(14,sSd)
    idxA={u:k for k,u in enumerate(LA)}
    for s in range(6):
        E.add(s,60+idxA[(11,s)]+2,(s%4)*SLOT,slotQ(s),sBad,f"O{s}",s<DIRECT,cfg.st,pre=(bias(vW,True) if s==4 else ()))
    Q=lambda s:qreads(1,s)
    q5=Q(5)
    R={61:f11[:8], 62:f11[8:16], 63:f11[16:24], 64:Q(0), 65:Q(1), 67:Q(2), 68:Q(3), 69:g0[:4], 70:g0[4:8], 71:g0[8:16], 72:g1[:8], 73:g0[16:24],
       74:g1[8:18], 75:g1[18:24], 76:Q(4), 78:q5, 81:g2[:4], 82:g2[4:8], 83:g2[8:16], 84:g2[16:24]}
    D={}
    for (k,x),steps in zip([('q',4),('q',5),('k',2),('k',3),('k',4),('k',5)],
                           ([[61,62,63,64],[65,66,67,68],[69,70,70,71],[73,74,75,76],[77,78,79,80],[81,82,83,84]] if cfg.tw&2 else
                            [[61,62,63,64],[65,66,66,67],[69,70,71,72],[76,77,77,78],[79,79,80,80],[81,82,83,84]])):
        for j,i in enumerate(steps): D.setdefault(i,[]).append((k,x,j))
    for i in range(61,85):
        ex={}; post={}
        rs=R.get(i,[]); lo=0; hi=16
        mx=(unit(i+1)[1]==0)
        if i==61:
            put(ex,0,[WV("h0KV11",True)]); put(ex,1,BAR()); put(post,2,setrd(sCur)); lo=3; hi=12
            put(ex,17,[WL(f11[7])])
            put(ex,2,[I(f"s_add_u32 s{sSd}, s{sH}, s{sQw}")])
        if i==64: put(ex,0,[WV("h1Q1" if cfg.tw&1 else "h1Q3")]); put(ex,7,[WL(f11[23])]); lo=1
        if i==67 and cfg.tw&1: put(ex,0,[WV("h1Q2")]); lo=1
        if i==68 and cfg.tw&1: put(ex,0,[WV("h1Q3")]); lo=1
        if i==69:
            put(ex,0,[WV("h1KV1",True)]); put(ex,1,BAR()); put(post,2,setrd(sW4)); lo=3
            put(ex,2,[I(f"s_add_u32 s{sOff}, s{sHn}, s{sKVw}")]); put(ex,3,[I(f"s_add_u32 s{sOff}, s{sOff}, 8192")])
        if i==70: hi=12; put(ex,17,[WL(g0[7])])
        if i==72: hi=12; put(ex,17,[WL(g1[7])])
        if i==73: hi=5; put(ex,7,[WL(g0[17])]); put(ex,11,[WL(g0[23])])
        if i==75: hi=6; put(ex,7,[WL(g1[17])]); put(ex,12,[WL(g1[23])]); put(post,9,bias(QREGS,True))
        if i==76: put(ex,0,[WV("h1Q4",True)]); put(ex,1,BAR()); lo=2
        if i==77: put(ex,15,[WL(R[76][3])])
        if i==78: put(ex,0,[WV("h1Q5")]); lo=1
        if i==79: put(ex,15,[WL(q5[3])])
        if i==81:
            put(ex,0,[WV("h1KV2",True)]); put(ex,1,BAR())
            put(ex,2,[I(f"s_add_u32 s{sPe}, s{sW4}, {8*SLOT}")]); put(post,2,setrd(sPe)); lo=4
            put(ex,3,[I(f"s_add_u32 s{sPo}, s{sW4}, {slotKV(1,5)*SLOT}")])
        if i==82: hi=12; put(ex,17,[WL(g2[7])])
        if i==84: hi=12
        mem=E.mem(2)
        if cfg.tsched:
            sd=dict((int(a),int(b)) for a,b in (x.split(':') for x in cfg.tsched.split(',')))
            ch=E.chunk(i,sd.get(i,0),full=(i+1 not in sd))
        else: ch=E.chunk(i,cfg.rho)
        free=[g for g in FREE if not(g==16 and (ch or mx)) and not (g==11 and mx)]
        place(ex,rs,lo=lo,hi=hi,free=free)
        dg=[]
        for (k,x,j) in D.get(i,[]):
            pre=[setm0(slotQ(x) if k=='q' else slotKV(1,x)), I(f"s_add_u32 s{sOff}, s{sOff}, {4096 if k=='q' else 8192}")] if j==0 else []
            dg.append(pre+[qdma(1,x,j) if k=='q' else kvdma(1,x,j)])
        place(ex,dg,lo=max(lo,4),hi=16,free=free)
        qlast=max([g for g,v in ex.items() if any(x.meta.get('src','').startswith('h1Q') for x in v)]+[-1])
        need_after=any(kind(gr[-1])=='w' and any(x.meta.get('slot')==gr[-1].meta['wslot'] for x in rs) for gr in mem)
        place(ex,mem,lo=(qlast+1 if need_after else (2 if i in (69,76,81) else 0)),hi=15,free=free)
        put(post,16,ch)
        if i==83:
            put(post,16,bias(vW,False)+[I(f"v_add_u32 v{vD[k]}, {DIRECT*SLOT}, v{vR[k]}") for k in range(2)])
        if i==84:
            spread(ex,0,[I(f"s_mov_b32 s{sT}, 0"), I(f"s_movk_i32 s{sDi}, {SLOT-2048}"), I(f"s_add_u32 s{sSt}, s{sHn}, s{sQw}")])
            put(ex,17,[WV("h1KV3")])
        o+=step(i,ex,post)
    assert E.done()
    return o

def tailB():
    o=[I("; ==== head B last four key blocks: q sub-tiles 0-2 first, then 3-5; epilogue streamed")]
    base=120
    vK2,vV2=vQ,vQ+1
    def fr(b): return frag_reads(1,b,base=slotKV(1,b)*SLOT) if b!=10 else frag_reads(1,b,rk=vK2,rv=vV2)
    F=[fr(b) for b in [9,10,11,8,9,10,11]]
    R={}
    def addR(i,L): R.setdefault(i,[]).extend(L)
    for m in range(7):
        K,V=F[m][:8],F[m][8:]
        if m==0: addR(base+1,K)
        elif m<6: addR(base+3*m-1,K[:3]); addR(base+3*m,K[3:6]); addR(base+3*m+1,K[6:])
        else: addR(base+17,K)
        if m<6:
            addR(base+3*m+1,V[:(0 if m==0 else 5)]); addR(base+3*m+2,V[(0 if m==0 else 5):(8 if m==0 else 10)]); addR(base+3*m+3,V[(8 if m==0 else 10):(16 if m in (0,5) else 15)])
            if m not in (0,5): R.setdefault(base+3*m+4,[]).insert(0,V[15])
        else: addR(base+19,V[:12]); addR(base+20,V[12:])
    E=Epi(vQ+2,sSt)
    idx={u:k for k,u in enumerate(GB)}
    for s_ in range(5):
        sl=3+(s_%2)
        E.add(s_,base+idx[(11,s_)]+2,(sl-2)*SLOT,sl,sBad2,f"P{s_}",True,(cfg.st3 if (cfg.st3 and s_<cfg.n3) else cfg.st2))
    k0=3*cfg.dl; dq=list(range(k0,16)); pend=[]
    o_sub0,o_j0=dunit(k0)
    for i in range(base+1,base+25):
        ex={}; post={}; rel=i-base; lo=0; hi=16
        rs=list(R.get(i,[]))
        if rel==1:
            put(ex,0,[WV("h1KV10",True)]); put(ex,1,BAR())
            put(ex,2,[I(f"s_add_u32 s{sTmp}, s{sW4}, {8*SLOT}")])
            put(post,2,setrd(sW4)); lo=3; hi=12
            put(post,13,setrd(sTmp,vK2,vV2))
        if rel==5: put(ex,0,[WV("h1KV11")]); put(ex,1,BAR()); lo=2
        if rel==12: put(ex,3,TL())
        g=[]
        for rdx,k in pend:
            sub,j=dunit(k); jj=(k-k0)%4
            g.append([WL(rdx),ostore(DR[k&1],jj,cfg.st,sSd,f"O{sub}")]+([I(f"s_add_u32 s{sSd}, s{sSd}, 4096")] if jj==3 else []))
        pend=[]
        place(ex,g,lo=max(lo,3),hi=4)
        if dq:
            k=dq.pop(0); sub,j=dunit(k)
            x=I(f"ds_read_b128 {vr(DR[k&1])}, v{vD[j&1]}{offs((sub-o_sub0)*SLOT+1024*(j-o_j0))}", src=f"O{sub}", slot=slotQ(sub), private=True)
            pend.append((x,k)); place(ex,[x],lo=13,hi=15)
        mem=E.mem(2 if rel<21 else 4, fast=(rel>=21))
        ch=E.chunk(i,cfg.rhoG if rel<20 else cfg.rhoE)
        free=[g_ for g_ in FREE if not(g_==16 and ch)] if rel<24 else list(range(8,16))
        for m in range(7):
            K,V=F[m][:8],F[m][8:]
            needK = base+3*m+2 if m<6 else base+18
            needV = base+3*m+4 if m<6 else base+20
            if i==needK-1:
                put(ex,17,[WL(K[7])])
                if rs and rs[-1] is K[7]: hi=min(hi,13)
            if i==needV:
                late=[x for x in V if x in rs]
                if late:
                    place(ex,late,lo=0,hi=5,free=free); rs=[x for x in rs if x not in late]; lo=max(lo,6)
                    put(ex,7,[WL(V[15-len(late)])]); put(ex,8+(16-len(late))//2-1,[WL(V[15])])
                else: put(ex,7,[WL(V[15])])
        place(ex,rs,lo=lo,hi=hi,free=free)
        place(ex,mem,lo=(0 if rel<23 else 8),hi=(15 if rel<24 else 16),free=free)
        put(post,16,ch)
        o+=step(i,ex,post)
    assert not E.tiles and not E.cv and not dq and not pend and not E.wr and not E.rd
    return o+final5(E,ex)

def final5(E,ex):
    o=[]
    tag="P5"; sl=5; off=3*SLOT
    rest=[x for g in E.mem(8) for x in g]
    assert E.done()
    pad=max(0,8-len(rest)-len([x for x in ex.get(16,[])]))
    o+=rest+([I(f"s_nop {pad-1}")] if pad else [])+e_head(5,sBad2,tag,T1)
    for half in (0,1):
        for dt in range(4*half,4*half+4): o+=e_pk(5,dt,tag,T1)
        for dt in range(4*half,4*half+4): o+=e_cvt(5,dt,tag)
        for dt in range(4*half,4*half+4): o.append(e_wr(5,dt,off,sl,tag))
    rd=epi_rd(5,off,sl,tag); o+=rd
    st=epi_st(5,cfg.st2,sSt,tag)
    for j in range(4): o+=[WL(rd[j]), st[j]]
    return o

def tailK():
    o=[I("; ==== head B blocks 8,9 (parked output drained) and last two key blocks, epilogue streamed")]
    E=Epi(vQ+2,sSt)
    idx={u:k for k,u in enumerate(LB)}
    for s_ in range(5):
        sl=3+(s_%2)
        E.add(s_,132+idx[(11,s_)]+2,(sl-2)*SLOT,sl,sBad2,f"P{s_}",True,cfg.st2)
    k0=3*cfg.dl; dq=list(range(k0,16)); pend=[]
    o_sub0,o_j0=dunit(k0)
    f11=frag_reads(1,11)
    for i in range(121,145):
        ex={}; post={}; lo=0; hi=16; rs=[]
        if i<133:
            b,r=divmod(i-73,6); lead=(b%2==0)
            if r==0:
                reads=frag_reads(1,b+1); rp=sPo if lead else sPe; rx=sXo if lead else sXe
                put(ex,0,[WV(f"h1KV{b+1}",True)]); put(ex,1,BAR())
                put(ex,2,[I(f"s_xor_b32 s{rp}, s{rp}, s{rx}")]); put(post,4,setrd(rp)); lo=5
            rs=reads[4*r:4*r+4]
            if r==5: hi=11
            if r==3: put(ex,17,[WL(reads[7])])
        if i==133:
            put(ex,0,[WV("h1KV11",True)]); put(ex,1,BAR())
            put(ex,2,[I(f"s_xor_b32 s{sPo}, s{sPo}, s{sXo}")]); put(post,2,setrd(sPo)); lo=3; hi=12
            rs=f11[:8]; put(ex,17,[WL(f11[7])])
        if i==134: rs=f11[8:14]
        if i==135: rs=f11[14:20]
        if i==136: rs=f11[20:24]; hi=5; put(ex,7,[WL(f11[19])]+TL()); put(ex,13,[WL(f11[23])])
        g=[]
        for rdx,k in pend:
            sub,j=dunit(k); jj=(k-k0)%4
            g.append([WL(rdx),ostore(DR[k&1],jj,cfg.st,sSd,f"O{sub}")]+([I(f"s_add_u32 s{sSd}, s{sSd}, 4096")] if jj==3 else []))
        pend=[]
        place(ex,g,lo=3,hi=4)
        mem=E.mem(4, fast=True)
        ch=E.chunk(i,cfg.rho2)
        free=[g_ for g_ in FREE if not(g_==16 and ch)] if i<144 else list(range(8,16))
        place(ex,rs,lo=lo,hi=hi,free=free)
        if dq:
            k=dq.pop(0); sub,j=dunit(k)
            x=I(f"ds_read_b128 {vr(DR[k&1])}, v{vD[j&1]}{offs((sub-o_sub0)*SLOT+1024*(j-o_j0))}", src=f"O{sub}", slot=slotQ(sub), private=True)
            pend.append((x,k)); place(ex,[x],lo=6,hi=(16 if hi==16 else 12),free=free)
        place(ex,mem,lo=(0 if i<143 else 8),hi=(15 if i<144 else 16),free=free)
        put(post,16,ch)
        o+=step(i,ex,post)
    assert not E.tiles and not E.cv and not dq and not pend and not E.wr and not E.rd
    return o+final5(E,ex)

def tailQ():
    o=[I("; ==== head B blocks 8,9 (parked output drained) and last two key blocks q-major, epilogue right behind each sub-tile")]
    k0=3*cfg.dl; dq=list(range(k0,16)); pend=[]
    o_sub0,o_j0=dunit(k0)
    f9=frag_reads(1,9); f10=frag_reads(1,10); f11=frag_reads(1,11,base=slotKV(1,11)*SLOT,rk=vQ,rv=vQ+1)
    R={121+r:f9[4*r:4*r+4] for r in range(6)}
    R.update({127:f10[:5],128:f10[5:11],129:f10[11:17],130:f10[17:21]+f11[:2],131:f11[2:8],132:f10[21:24],133:f11[8:18],134:f11[18:24]})
    stq=[]; nxt=[]
    nd2=max(0,len(dq)-cfg.nd1)
    for i in range(121,145):
        ex={}; post={}; lo=0; hi=16; rs=list(R.get(i,[]))
        p=unit(i-1); fin=(p[1]==11)
        if i==121:
            put(ex,0,[WV("h1KV9",True)]); put(ex,1,BAR())
            put(ex,2,[I(f"s_xor_b32 s{sPo}, s{sPo}, s{sXo}")]); put(post,4,setrd(sPo)); lo=5
        if i==124: put(ex,17,[WL(f9[7])])
        if i==126: hi=11
        if i==127:
            put(ex,0,[WV("h1KV10" if cfg.bar11 else "h1KV11",True)]); put(ex,1,BAR())
            put(ex,2,[I(f"s_xor_b32 s{sPe}, s{sPe}, s{sXe}")]); put(post,4,setrd(sPe)); lo=5
        if i==128: put(post,4,setrd(sW4,vQ,vQ+1))
        if i==130:
            put(ex,17,[WL(f10[7])])
            if cfg.bar11: put(ex,6,[WV("h1KV11")]); put(ex,7,[I("s_barrier")])
        if i==131: hi=12; put(ex,17,[WL(f11[7])])
        if i==133: put(ex,7,[WL(f10[23])]+TL())
        if i==134: hi=5; put(ex,8,[WL(f11[17])]); put(ex,13,[WL(f11[23])])
        free=[g_ for g_ in FREE if not(g_==16 and fin)] if i<144 else list(range(8,16))
        g=[]
        for rdx,k in pend:
            sub,j=dunit(k); jj=(k-k0)%4
            g.append([WL(rdx),ostore(DR[k&1],jj,cfg.st,sSd,f"O{sub}")]+([I(f"s_add_u32 s{sSd}, s{sSd}, 4096")] if jj==3 else []))
        if g: place(ex,g[:1],lo=3,hi=4)
        if len(g)>1: place(ex,g[1:],lo=9,hi=10)
        two=len(pend)>1; pend=[]
        if i==130:
            place(ex,rs[:4],lo=0,hi=11,free=free); place(ex,rs[4:],lo=8,hi=16,free=free)
        else: place(ex,rs,lo=lo,hi=hi,free=free)
        n=0
        if dq: n=1
        if dq and nd2>0 and (i%2==0 or nd2>6): n=2; nd2-=1
        xs=[]
        for _ in range(min(n,len(dq))):
            k=dq.pop(0); sub,j=dunit(k)
            x=I(f"ds_read_b128 {vr(DR[k&1])}, v{vD[j&1]}{offs((sub-o_sub0)*SLOT+1024*(j-o_j0))}", src=f"O{sub}", slot=slotQ(sub), private=True)
            pend.append((x,k)); xs.append(x)
        place(ex,xs,lo=11,hi=(16 if hi==16 else 12),free=free)
        mlo=0 if i<143 else 8
        if nxt:
            place(ex,nxt,lo=mlo,hi=16,free=free); nxt=[]
        elif stq:
            place(ex,stq,lo=mlo,hi=15,free=free); stq=[]
        if fin and p[2]<5:
            s_=p[2]; tag=f"P{s_}"; sl=3+(s_%2); off=(sl-2)*SLOT
            ch=e_head(s_,sBad2,tag,T1)
            for dt in range(8): ch+=e_pk(s_,dt,tag,T1)
            for dt in range(8): ch+=e_cvt(s_,dt,tag)
            put(post,13,ch[:1]); put(post,14,ch[1:2]); put(post,16,ch[2:])
            rd=epi_rd(s_,off,sl,tag); st=epi_st(s_,cfg.st2,sSt,tag)
            nxt=[[e_wr(s_,dt,off,sl,tag)] for dt in range(8)]+[[x] for x in rd]
            stq=[[WL(rd[1]),st[0]],[st[1]],[WL(rd[3]),st[2]],[st[3],I(f"s_add_u32 s{sSt}, s{sSt}, 4096")]]
        o+=step(i,ex,post,(cfg.profT if i<133 else 0),sumfirst=fin)
    assert not dq and not pend and not nxt and not stq
    tag="P5"; sl=5; off=3*SLOT
    o+=e_head(5,sBad2,tag,T1)
    for half in (0,1):
        for dt in range(4*half,4*half+4): o+=e_pk(5,dt,tag,T1)
        for dt in range(4*half,4*half+4): o+=e_cvt(5,dt,tag)
        for dt in range(4*half,4*half+4): o.append(e_wr(5,dt,off,sl,tag))
    rd=epi_rd(5,off,sl,tag); o+=rd
    st=epi_st(5,cfg.st2,sSt,tag)
    for j in range(4): o+=[WL(rd[j]), st[j]]
    return o

def stamp(k):
    if not cfg.stamps: return []
    op="s_memrealtime" if (cfg.echo>=0 or cfg.rt) else "s_memtime"
    return [I(f"{op} s[{sStamp+4+2*k}:{sStamp+5+2*k}]", skip=True)]

def lane_consts(A,base):
    A("v_and_b32 v4, 3, v0")
    A("v_bfe_u32 v3, v0, 2, 1"); A("v_mul_u32_u24 v9, 2080, v3")
    A("v_bfe_u32 v3, v0, 3, 1"); A("v_lshl_add_u32 v9, v3, 10, v9")
    A("v_lshl_add_u32 v9, v4, 8, v9"); A("v_lshl_add_u32 v9, v2, 4, v9"); A(f"v_add_u32 v9, s{base}, v9")
    for ks in range(4):
        A(f"v_xor_b32 v3, {ks}, v4"); A(f"v_lshl_add_u32 v{vQ+ks}, v3, 6, v9")
    A("v_and_b32 v8, 15, v0"); A("v_xor_b32 v9, v8, v2"); A("v_lshlrev_b32 v10, 8, v2"); A(f"v_add_u32 v10, s{base}, v10")
    A(f"v_lshl_add_u32 v{vR[0]}, v9, 4, v10"); A("v_xor_b32 v9, 4, v9"); A(f"v_lshl_add_u32 v{vR[1]}, v9, 4, v10")
    A("v_lshlrev_b32 v10, 8, v8"); A("v_and_b32 v9, 1, v2"); A("v_lshl_add_u32 v10, v9, 3, v10"); A(f"v_add_u32 v10, s{base}, v10")
    A("v_lshrrev_b32 v9, 1, v2"); A("v_and_b32 v8, 7, v0"); A("v_xor_b32 v9, v9, v8")
    for k in range(4):
        A(f"v_xor_b32 v8, {2*k}, v9"); A(f"v_lshl_add_u32 v{vW[k]}, v8, 4, v10")

CPF_LINES=11
def prologue():
    o=[]
    A=lambda t,**k: o.append(I(t,**k))
    A(f"s_load_dwordx2 s[{sKA}:{sKA+1}], s[0:1], 8"); A(f"s_load_dwordx2 s[{sVB}:{sVB+1}], s[0:1], 16")
    A(f"s_load_dwordx2 s[{sQA}:{sQA+1}], s[0:1], 0"); A(f"s_load_dwordx2 s[{sO}:{sO+1}], s[0:1], 24")
    if cfg.stamps:
        A(f"s_load_dwordx2 s[{sDbg}:{sDbg+1}], s[0:1], 32")
        A(f"s_memtime s[{sStamp}:{sStamp+1}]"); A(f"s_memrealtime s[{sStamp+2}:{sStamp+3}]")
    if cfg.tl:
        A("s_mov_b64 s[90:91], 1"); A("s_memtime s[98:99]"); A("s_memrealtime s[100:101]")
    A("s_cmp_ge_u32 s2, 256"); A("s_cbranch_scc1 Lend")
    A("v_lshrrev_b32 v1, 6, v0"); A("v_and_b32 v0, 63, v0"); A("v_readfirstlane_b32 s3, v1")
    if cfg.pro:
        A("s_getpc_b64 s[62:63]"); A("Lpc:")
        A("v_min_u32 v2, 3, v0"); A("v_lshlrev_b32 v2, 7, v2")
        A("global_load_dword v14, v2, s[62:63] offset:64")
        A("s_lshr_b32 s4, s2, 3"); A(f"s_mul_i32 s4, s4, {128*CPF_LINES}"); A("s_add_u32 s4, s4, Lmain-Lpc")
        A(f"v_min_u32 v1, {CPF_LINES-1}, v0"); A("v_lshl_add_u32 v1, v1, 7, s4")
        A("global_load_dword v15, v1, s[62:63]")
    A(f"v_lshlrev_b32 v{vKVB}, 4, v0"); A(f"v_add_u32 v{vKVA}, 1056, v{vKVB}")
    if cfg.diag=='l2only': A("s_and_b32 s62, s2, 7"); A(f"s_mul_i32 s{sH}, s62, {2*HEADB}")
    elif cfg.hm==1: A(f"s_mul_i32 s{sH}, s2, {HEADB}")
    elif cfg.hm==2:
        A("s_and_b32 s5, s2, 7"); A("s_lshl_b32 s5, s5, 5"); A("s_lshr_b32 s6, s2, 3"); A("s_or_b32 s5, s5, s6"); A(f"s_mul_i32 s{sH}, s5, {HEADB}")
    elif cfg.hm==3:
        A("s_and_b32 s5, s2, 7"); A("s_lshl_b32 s5, s5, 5"); A("s_lshr_b32 s6, s2, 3"); A("s_or_b32 s5, s5, s6"); A(f"s_mul_i32 s{sH}, s5, {2*HEADB}")
    else: A(f"s_mul_i32 s{sH}, s2, {2*HEADB}")
    A(f"s_mov_b32 s{sKA+2}, {TOTB+1056}"); A(f"s_mov_b32 s{sKA+3}, 0x20000"); A(f"s_mov_b32 s{sVB+2}, {TOTB+2080}"); A(f"s_mov_b32 s{sVB+3}, s{sKA+3}")
    A(f"s_mul_i32 s{sW4}, s3, {WREG}"); A(f"s_lshl_b32 s{sKVw}, s3, 11")
    A(f"s_add_u32 s{sOff}, s{sH}, s{sKVw}")
    o.append(setm0(0))
    A("s_waitcnt lgkmcnt(0)")
    A(f"s_sub_u32 s{sKA}, s{sKA}, 1056"); A(f"s_subb_u32 s{sKA+1}, s{sKA+1}, 0")
    o+=[kvdma(0,0,0),kvdma(0,0,2)]
    A(f"s_sub_u32 s{sVB}, s{sVB}, 2080"); A(f"s_subb_u32 s{sVB+1}, s{sVB+1}, 0")
    if not cfg.su&1: o+=[kvdma(0,0,1),kvdma(0,0,3)]
    if cfg.cpf and not cfg.pro:
        A("s_getpc_b64 s[62:63]")
        if cfg.pads: A("Lpc:"); A("s_add_u32 s62, s62, Lmain-Lpc"); A("s_addc_u32 s63, s63, 0")
        A("s_lshr_b32 s4, s2, 3"); A(f"s_mul_i32 s4, s4, {128*CPF_LINES}")
        A(f"v_min_u32 v1, {CPF_LINES-1}, v0"); A("v_lshl_add_u32 v1, v1, 7, s4")
        A("global_load_dword v15, v1, s[62:63]")
    A("v_lshrrev_b32 v2, 4, v0"); A("v_lshlrev_b32 v4, 6, v2"); A(f"v_xor_b32 v{vQB}, v{vKVB}, v4"); A(f"v_add_u32 v{vQA}, 1056, v{vQB}")
    A(f"s_mul_i32 s{sQw}, s3, 24576"); A(f"s_add_u32 s{sTmp}, s{sH}, s{sQw}")
    A(f"s_sub_u32 s{sQB}, s{sQA}, 32"); A(f"s_subb_u32 s{sQB+1}, s{sQA+1}, 0")
    A(f"s_sub_u32 s{sQA}, s{sQA}, 1056"); A(f"s_subb_u32 s{sQA+1}, s{sQA+1}, 0")
    o.append(setm0(slotQ(0)))
    A(f"s_mov_b64 s[{sQA+2}:{sQA+3}], s[{sKA+2}:{sKA+3}]"); A(f"s_mov_b32 s{sQB+2}, {TOTB+32}"); A(f"s_mov_b32 s{sQB+3}, s{sKA+3}")
    o+=[qdma(0,0,j,sTmp) for j in range(4)]
    if cfg.su&1:
        o.append(setm0(1)); A(f"s_add_u32 s4, s{sOff}, 8192")
        o+=[kvdma(0,1,j,4) for j in (0,2)]
        o+=[setm0(0),I("s_nop 0"),kvdma(0,0,1),kvdma(0,0,3)]
    o.append(setm0(1)); A(f"s_add_u32 s{sOff}, s{sOff}, 8192")
    o+=[kvdma(0,1,j) for j in ((1,3) if cfg.su&1 else (0,2,1,3))]
    if cfg.pro: o+=[I("s_branch Lmain"), I(".p2align 12"), I("Lmain:")]
    A(f"s_mov_b32 s{sO+2}, {0 if cfg.diag else TOTB}"); A(f"s_mov_b32 s{sO+3}, 0x20000")
    A(f"s_add_u32 s{sHn}, s{sH}, {HEADB*(256 if cfg.hm in (1,2) else 1)}")
    A(f"s_mov_b32 s{sC}, 0x3e0293ee"); A(f"s_mov_b32 s{sNC}, 0xbe0293ee"); A(f"s_mov_b32 s{sThr}, {0x4e800000-0x3f000000:#x}")
    if cfg.pkf: A(f"s_mov_b32 s{sC2}, 0x3e0293ee"); A(f"s_mov_b32 s{sC2+1}, 0x3e0293ee")
    A(f"s_add_u32 s{sEnd}, s{sW4}, {NSLOT*SLOT}")
    A(f"s_mov_b32 s{sT}, 0")
    if cfg.profO or cfg.oddB: A("s_getreg_b32 s95, hwreg(HW_REG_XCC_ID)")
    A(f"s_mov_b64 s[{sBad}:{sBad+1}], 0"); A(f"s_mov_b64 s[{sBad2}:{sBad2+1}], 0")
    if cfg.tw&2:
        A(f"s_add_u32 s{sXe}, s{sW4}, {8*SLOT}"); A(f"s_xor_b32 s{sXe}, s{sXe}, s{sW4}")
        A(f"s_add_u32 s{sXo}, s{sW4}, {SLOT}"); A(f"s_add_u32 s4, s{sW4}, {2*SLOT}"); A(f"s_xor_b32 s{sXo}, s{sXo}, s4")
    else:
        A(f"s_add_u32 s{sXe}, s{sW4}, {8*SLOT}"); A(f"s_add_u32 s4, s{sW4}, {SLOT}"); A(f"s_xor_b32 s{sXe}, s{sXe}, s4")
        A(f"s_add_u32 s4, s{sW4}, {2*SLOT}"); A(f"s_xor_b32 s{sXo}, s4, s{sW4}")
    A("v_and_b32 v3, 7, v0"); A(f"v_mul_u32_u24 v{vKl}, 2080, v3")
    A("v_bfe_u32 v3, v0, 3, 1"); A(f"v_lshl_add_u32 v{vKl}, v3, 8, v{vKl}")
    A(f"v_lshl_add_u32 v{vKl}, v2, 4, v{vKl}"); A(f"v_subrev_u32 v{vKl}, s{sW4}, v{vKl}")
    A("v_bfe_u32 v3, v0, 2, 3"); A(f"v_mul_u32_u24 v{vVl}, 2080, v3")
    A("v_lshrrev_b32 v3, 5, v0"); A(f"v_lshl_add_u32 v{vVl}, v3, 8, v{vVl}")
    A("v_and_b32 v4, 3, v0"); A(f"v_lshl_add_u32 v{vVl}, v4, 3, v{vVl}")
    A(f"v_add_u32 v{vVl}, 1024, v{vVl}"); A(f"v_subrev_u32 v{vVl}, s{sW4}, v{vVl}")
    A("v_mov_b32 v11, 0x3f803f80"); A("v_cmp_eq_u32 vcc, 0, v4")
    lane_consts(A,4)
    A("v_cndmask_b32 v11, 0, v11, vcc")
    for k in range(4): A(f"v_accvgpr_write_b32 a{ONES+k}, v11")
    if not cfg.tl: A(f"v_mov_b32 v{vBadA}, 0"); A(f"v_mov_b32 v{vBadB}, 0")
    for s in (1,2):
        o.append(setm0(slotQ(s))); A(f"s_add_u32 s{sTmp}, s{sTmp}, 4096")
        o+=[qdma(0,s,j,sTmp) for j in range(4)]
    return o

def slow_path():
    o=[]
    A=lambda t,**k: o.append(I(t,**k))
    sP=sCur
    A("; ==== fallback: exact two-pass softmax with the true row max for this wave's 96 rows of the head at byte offset s44")
    A("Lslow:")
    A("s_waitcnt vmcnt(0) lgkmcnt(0)")
    A(f"s_mul_i32 s{sP}, s3, {SLOT}")
    A(f"s_add_u32 s{sTmp}, s{sP}, s{sW4}")
    o+=setrd(sTmp)
    A(f"v_lshrrev_b32 v0, 4, v{vKVB}"); A("v_lshrrev_b32 v2, 4, v0")
    lane_consts(A,sTmp)
    A(f"s_mov_b32 m0, s{sTmp}")
    A(f"s_add_u32 s{sOff}, s{sH}, s{sQw}")
    for s in range(6):
        o+=[qdma(0,s,j) for j in range(4)]
        A("s_waitcnt vmcnt(0)")
        for ks in range(4): A(f"ds_read_b128 {ar(Qr(s,ks))}, v{vQ+ks}")
        A(f"s_add_u32 s{sOff}, s{sOff}, 4096")
        A("s_waitcnt lgkmcnt(0)")
    for s in range(6): A(f"v_mov_b32 v{MN+s}, 0xff800000")
    def loadkv():
        for j in range(4):
            A(f"s_add_u32 m0, s{sP}, {j*WREG}"); A("s_nop 0")
            o.extend(kvdma(0,0,jj) for jj in range(4))
            A(f"s_add_u32 s{sOff}, s{sOff}, 2048")
        A("s_waitcnt vmcnt(0)")
    A(f"s_mov_b32 s{sOff}, s{sH}"); A(f"s_mov_b32 s{sT}, 0")
    A("Lslow1:")
    loadkv()
    o+=frag_reads(0,0,tags=False)[:8]
    A("s_waitcnt lgkmcnt(0)")
    for s in range(6):
        o+=qk_mfmas(s,0,0)
        A("s_nop 7")
        for e in range(0,8,2): A(f"v_max3_f32 v{MN+s}, v{MN+s}, v{SB[0]+e}, v{SB[0]+e+1}")
    A(f"s_add_u32 s{sT}, s{sT}, 1"); A(f"s_cmp_lt_u32 s{sT}, 12"); A("s_cbranch_scc1 Lslow1")
    for s in range(6):
        m=MN+s
        A(f"v_mov_b32 v{T1}, v{m}"); A("s_nop 1"); A(f"v_permlane16_swap_b32 v{m}, v{T1}"); A(f"v_max_f32 v{m}, v{m}, v{T1}")
        A(f"v_mov_b32 v{T1}, v{m}"); A("s_nop 1"); A(f"v_permlane32_swap_b32 v{m}, v{T1}"); A(f"v_max_f32 v{m}, v{m}, v{T1}")
    for r in range(64,256): A(f"v_mov_b32 v{r}, 0")
    for r in range(224,248): A(f"v_accvgpr_write_b32 a{r}, 0")
    A(f"s_mov_b32 s{sOff}, s{sH}"); A(f"s_mov_b32 s{sT}, 0")
    A("Lslow2:")
    loadkv()
    fr=frag_reads(0,0,tags=False)
    for k in range(3):
        o+=fr[8*k:8*k+8]; A("s_waitcnt lgkmcnt(0)")
    for s in range(6):
        o+=qk_mfmas(s,0,0)
        A("s_nop 7")
        for e in range(8): A(f"v_sub_f32 v{SB[0]+e}, v{SB[0]+e}, v{MN+s}")
        for e in range(8): A(f"v_mul_f32 v{SB[0]+e}, s{sC}, v{SB[0]+e}")
        for e in range(8): A(f"v_exp_f32 v{SB[0]+e}, v{SB[0]+e}")
        for e in range(0,8,2): A(f"v_cvt_pk_bf16_f32 v{PB[0]+e//2}, v{SB[0]+e}, v{SB[0]+e+1}")
        A("s_nop 1")
        o+=pv_mfmas(s,0,0,False)
    A(f"s_add_u32 s{sT}, s{sT}, 1"); A(f"s_cmp_lt_u32 s{sT}, 12"); A("s_cbranch_scc1 Lslow2")
    A("s_nop 7")
    A(f"s_add_u32 s{sSt}, s{sH}, s{sQw}")
    for s in range(6):
        o+=e_head(s,None,None,T1)
        for dt in range(8): o+=e_pk(s,dt,None,T1)
        for dt in range(8): o+=e_cvt(s,dt,None)
        for dt in range(8): o.append(e_wr(s,dt,0,None,None))
        o+=epi_rd(s,0,None)+[I("s_waitcnt lgkmcnt(0)")]+epi_st(s,"",sSt)
        A(f"s_add_u32 s{sSt}, s{sSt}, 4096")
    A("s_branch Lslow_ret")
    for x in o:
        for k in ('tag','slot','wslot','wtag'): x.meta.pop(k,None)
    return o

def resolve(trace):
    vm=[]; lg=[]
    for x in trace:
        if x.label or x.meta.get('skip'): continue
        if 'auto_vm' in x.meta:
            idx=[k for k,y in enumerate(vm) if y.meta.get('tag')==x.meta['auto_vm'] and x.meta.get('wpart') in (None,y.meta.get('part'))]
            n=min(63,len(vm)-1-max(idx)); x.text=x.text.replace("vmcnt(AUTO)",f"vmcnt({n})"); x.meta['loose_ok']=True
        if 'auto_lg' in x.meta:
            k=[i for i,y in enumerate(lg) if y is x.meta['auto_lg']]
            assert k, "WL target not issued before wait: "+x.meta['auto_lg'].text
            n=min(15,len(lg)-1-k[0]); x.text=x.text.replace("lgkmcnt(AUTO)",f"lgkmcnt({n})")
        if x.kind=='vmem': vm.append(x)
        if x.kind=='ds': lg.append(x)

def build():
    set_units()
    P=prologue(); SA=startA(); TR=trans(); TB=[tailK,tailB,tailQ][cfg.G]()
    txt=lambda L:[x.text for x in L if not x.text.startswith(';')]
    assert txt(loopA2(0))==txt(loopA2(1))
    tb=range(1,3) if cfg.profB0 else range(3)
    for t in tb: assert txt(loopB(t))==txt(loopB(tb[0]))
    if cfg.loopR:
        assert txt(rampA(0))==txt(rampA(1)); RAt=rampA(0)+rampA(1); RA=[I(".p2align 3"),I("LloopA1:")]+rampA(0)
    else: RA=RAt=rampA()
    PB_=peelB() if cfg.profB0 else []
    extra=[]
    if cfg.profO:
        RO=rampA(prof=cfg.profO)
        t2=prologue()+startA()+RO+midA()+loopA2(0); resolve(t2)
        for p in check_trace([x for x in t2 if not x.meta.get('skip')]): print("ODD:",p)
        RA=[I("s_bitcmp1_b32 s95, 0"), I("s_cbranch_scc1 LrampO")]+RA+[I("s_branch LrampJ"), I("LrampO:")]+RO+[I("LrampJ:")]
    if cfg.midprof:
        MA=staticA(); trace=P+SA+MA+TR+PB_
    else: trace=P+SA+RAt+midA()+loopA2(0)+loopA2(1)+TR+PB_
    if not cfg.profBs:
        for t in tb: trace+=loopB(t)
    trace+=TB
    resolve(trace)
    probs=check_trace([x for x in trace if not x.meta.get('skip')])
    sp=slow_path()
    probs+=check_trace(sp+slow_path())
    seen=set()
    for p in probs:
        if p not in seen: print(p); seen.add(p)
    nd=(lambda L:[x for x in L if not getattr(x,'dma',False)]) if cfg.diag=='nodma' else (lambda L:L)
    if cfg.pads and not cfg.pro: P=P+[I("s_branch Lmain"), I(".p2align 12"), I("Lmain:")]
    if cfg.midprof: S=list(P)+stamp(0)+SA+stamp(1)+nd(MA)
    else: S=list(P)+stamp(0)+SA+stamp(1)+nd(RA)+midA()+[I(".p2align 3"),I("LloopA2:")]+nd(loopA2(0))
    if cfg.oddB: PB_=[I("s_bitcmp1_b32 s95, 0"), I(f"s_cselect_b32 s{sT}, -1, 0"), I("s_cbranch_scc1 LloopB")]+PB_
    S+=stamp(2)+nd(TR)+stamp(3)+nd(PB_)+([I(".p2align 3"),I("LloopB:")]+nd(loopB(tb[0])) if not cfg.profBs else [])
    S+=stamp(4)+TB+stamp(5)
    if cfg.slow:
        if not cfg.tl:
            S+=[I("; l bits - bits(0.5) above bits(2^30) - bits(0.5) (unsigned) <=> l outside [0.5, 2^30], inf or NaN"),
                I(f"v_cmp_lt_u32 s[{sBad}:{sBad+1}], s{sThr}, v{vBadA}"), I(f"v_cmp_lt_u32 s[{sBad2}:{sBad2+1}], s{sThr}, v{vBadB}")]
        S+=[I(f"s_or_b64 s[62:63], s[{sBad}:{sBad+1}], s[{sBad2}:{sBad2+1}]"), I("s_barrier"), I("s_cbranch_scc1 Lslow_entry")]
    S+=[I("Lfin:")]
    if cfg.stamps:
        S+=[I("s_waitcnt vmcnt(0)"), I(f"s_memtime s[{sStamp+16}:{sStamp+17}]"), I(f"s_memrealtime s[{sStamp+18}:{sStamp+19}]"), I("s_waitcnt lgkmcnt(0)")]
        if cfg.echo>=0:
            esrc=[sStamp+2]+[sStamp+4+2*k for k in range(6)]+[sStamp+18]
            if cfg.echox>=0: S+=[I("s_getreg_b32 s62, hwreg(HW_REG_XCC_ID)"), I("s_and_b32 s62, s62, 7"), I(f"s_cmp_lg_u32 s62, {cfg.echox}"), I("s_cbranch_scc1 Lend")]
            S+=[I(f"s_add_u32 s62, s{esrc[cfg.echo]}, 10000"), I("Lspin:"), I("s_sleep 2"), I("s_memrealtime s[88:89]"), I("s_waitcnt lgkmcnt(0)"),
                I("s_sub_u32 s63, s88, s62"), I("s_cmp_lt_i32 s63, 0"), I("s_cbranch_scc1 Lspin")]
        S+=[I(f"v_mov_b32 v8, s{sStamp+2}"), I(f"v_mov_b32 v9, s{sStamp+18}")]
        srcs=[sStamp+4+2*k for k in range(6)]+[sStamp+(18 if cfg.rt else 16)]
        for k,r in enumerate(srcs):
            S+=[I(f"s_sub_u32 s{sTmp}, s{r}, s{sStamp+(2 if cfg.rt else 0)}"), I(f"v_mov_b32 v{10+k}, s{sTmp}")]
        S+=[I("v_mov_b32 v17, 0"), I("v_mov_b32 v18, 0"), I("s_getreg_b32 s62, hwreg(HW_REG_XCC_ID)"), I("v_mov_b32 v19, s62")]
        S+=[I(f"s_mov_b32 s28, s{sDbg}"), I(f"s_mov_b32 s29, s{sDbg+1}"), I(f"s_mov_b32 s30, {cfg.dbgsz}"), I("s_mov_b32 s31, 0x20000"),
            I("s_lshl_b32 s62, s2, 8"), I("s_lshl_b32 s63, s3, 6"), I("s_add_u32 s62, s62, s63"), I("v_mov_b32 v1, 0")]
        if cfg.tl:
            S+=TL()+[I("s_waitcnt lgkmcnt(0)")]+TL()+[I("s_lshl_b32 s61, s62, 3"), I("s_add_u32 s61, s61, 65536"), I(f"v_lshrrev_b32 v5, 2, v{vKVB}"),
                I("buffer_store_dword v0, v5, s[28:31], s61 offen"), I("buffer_store_dword v61, v5, s[28:31], s61 offen offset:256")]
        S+=[I("s_mov_b64 exec, 1"),
            I("buffer_store_dwordx4 v[8:11], v1, s[28:31], s62 offen"), I("buffer_store_dwordx4 v[12:15], v1, s[28:31], s62 offen offset:16"), I("buffer_store_dwordx4 v[16:19], v1, s[28:31], s62 offen offset:32")]
    S+=[I("Lend:"), I("s_endpgm")]
    if cfg.slow:
        S+=[I("Lslow_entry:"), I(f"s_cmp_lg_u64 s[{sBad}:{sBad+1}], 0"), I("s_cbranch_scc1 Lslow"),
            I("Lslow_ret:"), I(f"s_cmp_eq_u64 s[{sBad2}:{sBad2+1}], 0"), I("s_cbranch_scc1 Lfin"),
            I(f"s_mov_b64 s[{sBad2}:{sBad2+1}], 0"), I(f"s_mov_b32 s{sH}, s{sHn}")]
        S+=sp
    else: S+=[I(".fill 2048, 4, 0xbf810000")]
    return S, bool([p for p in probs if not p.startswith("NOTE")])

from gen import FTR
HDR="""; Kernarg layout for this problem (48 bytes, ptrs only, base s[0:1]):
;   offset   0: d_in[0] q  shape=(16, 32, 384, 128) dtype=bfloat16 strides=(3145728, 98304, 256, 2) contiguous=True
;   offset   8: d_in[1] k  shape=(16, 32, 384, 128) dtype=bfloat16 strides=(3145728, 98304, 256, 2) contiguous=True
;   offset  16: d_in[2] v  shape=(16, 32, 384, 128) dtype=bfloat16 strides=(3145728, 98304, 256, 2) contiguous=True
; @launch grid=(256,1,1) block=(256,1,1) lds=%d
;
; softmax(Q K^T / sqrt(128)) V for 512 heads of 384 x 128.   (emitted by my own generator script)
; -------------------------------------------------------------------------------------------------
; * One workgroup (4 waves, one per SIMD, 512 registers each) per CU handles heads 2*wg (A) and 2*wg+1 (B).
; * v_mfma_f32_16x16x32_bf16 throughout:  S^T = K Q^T (8 MFMA),  O^T += V^T P^T (8 MFMA),  row sums l += 1^T P^T (1 MFMA).
; * Q/K/V stream global -> LDS with buffer_load ... lds through nine 16640-byte slots (padded so that the K b128 reads and the
;   transposing V reads are bank-conflict free); K/V fragments are double buffered in AGPRs, O lives in v64..v255.
; * Softmax guard: p = exp2(c*s - c*m) with m = the row's true max over its first key block (so l >= 1, nothing underflows that the
;   two-pass softmax that subtracts the true max over all 384 keys.
;   part of head A's output is parked in LDS and written while head B no longer loads.
; * Lpad<k>/Lret<k>: while waiting for the first loads each wave touches the first line of every 4 KiB page of the kernel once
;   (branch there with EXEC=0 and straight back, no memory instruction runs) because instruction prefetch stops at page ends.
.amdgcn_target "amdgcn-amd-amdhsa--gfx950"
.text
.globl %s
.p2align 8
.type %s,@function
%s:
"""
def isize(x):
    return SZ[x.text]
def write(fn):
    S,bad=build()
    if cfg.pads and SZ:
        out=[]; addr=None; k=1
        for n,x in enumerate(S):
            out.append(x)
            if x.text=="Lmain:": addr=0; continue
            if addr is None: continue
            if x.text==".p2align 3": addr=(addr+7)&~7; continue
            if x.label: continue
            a0=addr; addr+=SZ.get(x.text,4)
            if k<=NPADS and addr>=k*cfg.pads+cfg.padoff and (x.kind=='mfma' or addr>=k*cfg.pads+cfg.padoff+24) and not x.op.startswith('s_cbranch') and not x.op.startswith('s_branch') and x.text!='s_mov_b64 exec, 0':
                out+=[I(f"Lpad{k}:"), I(f"s_cbranch_execz Lret{k}")]; addr+=4; k+=1
        assert k==NPADS+1,(k,NPADS)
        S=out
    with open(fn,"w") as f:
        f.write(HDR%(LDSB,NAME,NAME,NAME))
        jn=0
        for x in S:
            t=x.text
            if x.meta.get('jit'):
                jn+=1
                f.write(f"    s_cmp_eq_u32 s3, {(jn*cfg.jit)%4}\n    s_cbranch_scc0 Ljit{jn}\n    s_sleep {20+10*(jn%5)}\nLjit{jn}:\n"); continue
            if cfg.drop=='exp' and t.startswith('v_exp'): t=t.replace('v_exp_f32','v_mov_b32')
            if cfg.drop=='exp0' and t.startswith('v_exp'): continue
            if cfg.drop=='fma' and t.startswith('v_fma'): continue
            if cfg.drop=='sum' and t.startswith(MF+' a['): continue
            f.write((t if (t.endswith(':') or t.startswith('.')) else "    "+t)+"\n")
        f.write(FTR%NAME)
    return bad
SZ={}
def sizes(co):
    import subprocess
    out=subprocess.run(["llvm-objdump","-d","--mcpu=gfx950",co],capture_output=True,text=True).stdout
    sym={m.group(2):int(m.group(1),16) for m in re.finditer(r"^([0-9a-f]+) <(\w+)>:",out,re.M)}
    last=int(re.findall(r"// ([0-9A-F]{12}):",out)[-1],16)
    st=sym.get('Lmain',sym[NAME])
    return sym.get('Lfin',sym.get('Lend'))-st, last+4-st
if __name__=="__main__":
    ap=argparse.ArgumentParser()
    ap.add_argument("out"); ap.add_argument("opts",nargs="*")
    a=ap.parse_args()
    for kv in a.opts:
        k,v=kv.split("=",1)
        cur=getattr(cfg,k)
        setattr(cfg,k, (v in("1","True","true")) if isinstance(cur,bool) else (int(v) if isinstance(cur,int) else v.replace("+"," ")))
    from mkco import build as mk
    for it in range(4):
        bad=write(a.out); co=mk(a.out); hot,tot=sizes(co)
        need=-(-hot//(32*128))
        done=(need==CPF_LINES)
        CPF_LINES=need
        if cfg.pads:
            import subprocess
            lst=subprocess.run(["llvm-objdump","-d","--mcpu=gfx950",co],capture_output=True,text=True).stdout
            lst=lst[lst.index("<Lmain>:"):]
            enc=[len(m.group(1).split())*4 for m in re.finditer(r"// [0-9A-F]{12}: ([0-9A-F ]+)",lst)]
            src=open(a.out).read(); src=src[src.index("Lmain:\n"):].split("\n")[1:]
            j=0; addr=0
            for ln in src:
                t=ln.strip()
                if t.startswith(".section"): break
                if t==".p2align 3":
                    if addr%8: j+=1; addr+=4
                    continue
                if not t or t.startswith(";") or t.endswith(":") or t.startswith("."): continue
                SZ[t]=enc[j]; addr+=enc[j]; j+=1
            np_=(hot-64-cfg.padoff)//cfg.pads
            if np_!=NPADS: done=False
            NPADS=np_
        if done and it>0: break
    assert 32*128*CPF_LINES+256<=tot, (hot,tot)
    print(co, "PROBLEMS" if bad else "clean", "hot",hot,"total",tot,"cpf lines",CPF_LINES)
```

```python
import sys, argparse, re, functools
sys.path.insert(0,'work')
from asmlib import I, check_trace
NAME="standalone__gqa_softmax__near_ridge_kernel"
SLOT=16640; WREG=4160; NSLOT=9
LDSB=NSLOT*SLOT
HEADB=98304
TOTB=50331648

class Cfg:
    ld="nt"; st="sc1"; st2="nt"
    stamps=False; rt=False; tl=False; dbgsz=0x400000; echo=-1; diag=''
    slow=True; cpf=True
    rho=3; rhoG=3; rhoE=8
    prof='47,47,44,40'
    loopR=False
    profB='00,00'
    profB0='40,20'
    profO=''
    oddB=False
    midprof=''
    profS=0
    G=1
    rho2=8; nd1=13
    tls=False
    profBs=''
    profT=0
    pro=0
    jit=0
    tsched=''
    echox=-1
    tw=0
    sdm='22222222222222'
    slz=0
    hm=0
    es=0
    site0=-1
    endo=0
    su=0
    bar11=0
    pads=0
    padoff=0
    st3=''; n3=3
    pkf=0
    drop=''
    dl=0
cfg=Cfg()

def O(s,dt): return 64+32*s+4*dt
SB=[16,24]; PB=[32,36]
MN=40
vK,vV,vKl,vVl=46,47,48,49
vD=[50,51]
vQ=52
vR=[56,63]
vKVA,vKVB,vQA,vQB=57,58,59,60
vW=[5,6,7,62]
T0,T1,T2,T3=1,2,3,4
DR=[8,12]
QREGS=[vQ+k for k in range(4)]
def Qr(s,ks): return 16*s+4*ks
def Kf(par,i): return 96+32*par+4*i
def Vf(par,dt): return 160+32*par+4*dt
def Lr(s): return 224+4*s
ONES=248
sKA,sVB,sQA,sQB,sO=8,12,16,20,24
sOff,sCur,sC,sH,sW4,sT,sPe,sEnd,sKVw,sQw,sThr=40,42,43,44,45,46,47,48,49,50,51
sBad=52; sBad2=96
sTmp,sSt,sNC,sHn,sDbg=55,57,58,59,60
sSd,sDi=41,54
sStamp=64
sPo,sXe,sXo=92,93,94
sC2=38

def vr(a,n=4): return f"v[{a}:{a+n-1}]"
def ar(a,n=4): return f"a[{a}:{a+n-1}]"
def sr(a,n=4): return f"s[{a}:{a+n-1}]"
def offs(o): return f" offset:{o}" if o else ""

def slotKV(h,b):
    if b<2: return b
    if h==0: return (6+b)%9
    return ([8,2,0,1] if cfg.tw&2 else [8,0,1,2])[(b-2)%4]
def slotQ(s): return 2+s
UOFF=[0,1024,2080,3104]
def dma(j,tag,slot,q,off=sOff):
    A,B,va,vb=(sQA,sQB,vQA,vQB) if q else (sKA,sVB,vKVA,vKVB)
    p=f" {cfg.ld}" if cfg.ld else ""
    return I(f"buffer_load_dwordx4 v{[va,va,vb,vb][j]}, {sr([A,B,A,B][j])}, s{off} offen{offs(UOFF[j])}{p} lds", tag=tag, slot=slot, part=(None if q else 'KV'[j&1]))
def kvdma(h,b,j,off=sOff): return dma(j,f"h{h}KV{b}",slotKV(h,b),False,off)
def qdma(h,s,j,off=sOff): return dma(j,f"h{h}Q{s}",slotQ(s),True,off)
def pdma(n,j):
    if n<18: return kvdma(0,n-6,j)
    if n<20: return kvdma(1,n-18,j)
    return qdma(1,n-20,j)
def setm0(slot): return I(f"s_add_u32 m0, s{sW4}, {slot*SLOT}") if slot else I(f"s_mov_b32 m0, s{sW4}")
def frag_reads(h,b,base=0,rk=vK,rv=vV,tags=True):
    m=dict(src=f"h{h}KV{b}",slot=slotKV(h,b)) if tags else {}
    par=b&1
    return [I(f"ds_read_b128 {ar(Kf(par,i))}, v{rk}{offs(base+(i//4)*512+(i%4)*64)}",part='K',**m) for i in range(8)]+\
           [I(f"ds_read_b64_tr_b16 {ar(Vf(par,i//2)+2*(i%2),2)}, v{rv}{offs(base+(i%2)*512+(i//2)*32)}",part='V',**m) for i in range(16)]
def qreads(h,s): return [I(f"ds_read_b128 {ar(Qr(s,ks))}, v{vQ+ks}{offs((s%4)*SLOT)}", src=f"h{h}Q{s}", slot=slotQ(s), private=True) for ks in range(4)]
def bias(regs,up): return [I(f"{'v_add_u32' if up else 'v_subrev_u32'} v{r}, {4*SLOT}, v{r}") for r in regs]
def setrd(reg,rk=vK,rv=vV): return [I(f"v_add_u32 v{rk}, s{reg}, v{vKl}"), I(f"v_add_u32 v{rv}, s{reg}, v{vVl}")]

FA=[(b,s) for s in range(6) for b in (0,1)]
LA=[(10,0),(10,1),(10,2),(11,0),(11,1),(10,3),(11,2),(10,4),(11,3),(10,5),(11,4),(11,5)]
FB=[(0,0),(0,1),(1,0),(0,2),(1,1),(0,3),(1,2),(0,4),(1,3),(0,5),(1,4),(1,5)]
MID=[(b,s) for b in range(2,10) for s in range(6)]
GB=[(b,s) for b in (8,9,10,11) for s in (0,1,2)]+[(8,3),(8,4),(8,5),(9,3),(9,4),(9,5),(10,3),(11,3),(10,4),(11,4),(10,5),(11,5)]
LB=[(10,0),(10,1),(10,2),(11,0),(11,1),(11,2),(10,3),(11,3),(10,4),(11,4),(10,5),(11,5)]
LQ=[(b,s) for s in range(6) for b in (10,11)]
UNITS=[]
def set_units():
    UNITS[:]=[(0,)+u for u in FA+MID+LA]+[(1,)+u for u in (FB+MID[:36]+GB if cfg.G==1 else FB+MID+(LB if cfg.G==0 else LQ))]
def unit(i): return UNITS[i] if 0<=i<len(UNITS) else None

MF="v_mfma_f32_16x16x32_bf16"
def qk_mfmas(s,kpar,sb,u=None):
    o=[]
    for i in range(8):
        kt,ks=divmod(i,4); d=SB[sb]+4*kt
        x=I(f"{MF} {vr(d)}, {ar(Kf(kpar,i))}, {ar(Qr(s,ks))}, {'0' if ks==0 else vr(d)}")
        if u:
            x.meta['expect']={**{r:f"h{u[0]}KV{u[1]}" for r in x.A}, **{r:f"h{u[0]}Q{u[2]}" for r in x.B}}
            x.meta['set']={r:f"S{u}" for r in x.wr}
        o.append(x)
    return o
def pv_mfmas(s,vpar,pb,first,u=None):
    o=[I(f"{MF} {vr(O(s,dt))}, {ar(Vf(vpar,dt))}, {vr(PB[pb])}, {'0' if first else vr(O(s,dt))}") for dt in range(8)]
    o.append(I(f"{MF} {ar(Lr(s))}, {ar(ONES)}, {vr(PB[pb])}, {'0' if first else ar(Lr(s))}"))
    if u:
        cnt=sum(1 for y in UNITS[:UNITS.index(u)] if y[0]==u[0] and y[2]==u[2])
        for k,x in enumerate(o):
            e={r:f"P{u}" for r in x.B}
            if k<8: e.update({r:f"h{u[0]}KV{u[1]}" for r in x.A})
            if not first: e.update({r:f"O{u[0]}n{cnt}" for r in x.wr})
            x.meta['expect']=e; x.meta['set']={r:f"O{u[0]}n{cnt+1}" for r in x.wr}
    return o
FREE=(5,11,16)
def sm_gaps(s,sb,pb,u=None):
    S=SB[sb]; P=PB[pb]
    T=(lambda **k:k) if u else (lambda **k:{})
    f=lambda e: I(f"v_fma_f32 v{S+e}, v{S+e}, s{sC}, v{MN+s}", **T(expect={('v',S+e):f"S{u}",('v',MN+s):f"M{u and u[0]}"}))
    x=lambda e: I(f"v_exp_f32 v{S+e}, v{S+e}", **T(expect={('v',S+e):f"S{u}"}))
    c=lambda e: I(f"v_cvt_pk_bf16_f32 v{P+e//2}, v{S+e}, v{S+e+1}", **T(expect={('v',S+e):f"S{u}",('v',S+e+1):f"S{u}"}, set={('v',P+e//2):f"P{u}"}))
    if cfg.pkf:
        mb=MN+(s&~1); sel="op_sel:[0,0,1] op_sel_hi:[1,0,1]" if s&1 else "op_sel_hi:[1,0,0]"
        pf=lambda e: I(f"v_pk_fma_f32 v[{S+e}:{S+e+1}], v[{S+e}:{S+e+1}], s[{sC2}:{sC2+1}], v[{mb}:{mb+1}] {sel}", **T(expect={('v',S+e):f"S{u}",('v',MN+s):f"M{u and u[0]}"}))
        if cfg.pkf==1: return [[pf(0)],[x(0)],[x(1)],[pf(2)],[x(2)],[],[x(3)],[pf(4)],[x(4)],[x(5)],[pf(6)],[],[x(6)],[x(7)],[c(0),c(2)],[c(4),c(6)],[]]
        return [[pf(0),pf(2),pf(4),pf(6)],[x(0)],[x(1)],[],[x(2)],[],[x(3)],[],[x(4)],[x(5)],[],[],[x(6)],[x(7)],[c(0),c(2)],[c(4),c(6)],[]]
    return [[f(0),f(1)],[x(0)],[x(1)],[f(2),f(3)],[x(2)],[],[x(3)],[f(4),f(5)],[x(4)],[x(5)],[f(6),f(7)],[],[x(6)],[x(7)],[c(0),c(2)],[c(4),c(6)],[]]
def max_seq(s,sb,h):
    S=SB[sb]
    return [I(f"v_max3_f32 v{T0}, v{S}, v{S+1}, v{S+2}"), I(f"v_max3_f32 v{T3}, v{S+3}, v{S+4}, v{S+5}"),
            I(f"v_max3_f32 v{T0}, v{T0}, v{S+6}, v{S+7}"), I(f"v_max_f32 v{T0}, v{T0}, v{T3}"),
            I(f"v_mov_b32 v{T3}, v{T0}"), I(f"v_permlane16_swap_b32 v{T0}, v{T3}"),
            I(f"v_max_f32 v{T0}, v{T0}, v{T3}"), I(f"v_mov_b32 v{T3}, v{T0}"),
            I(f"v_permlane32_swap_b32 v{T0}, v{T3}"), I(f"v_max_f32 v{T0}, v{T0}, v{T3}"),
            I(f"v_mul_f32 v{MN+s}, s{sNC}, v{T0}", set={('v',MN+s):f"M{h}"})]
MAXG=[11,11,12,12,12,13,14,14,15,16,16]
def put(ex,g,items): ex.setdefault(g,[]).extend(items)

def step(i, ex=None, post=None, clump=0, sumfirst=False):
    ex=ex or {}; post=post or {}
    q,m,p=unit(i+1),unit(i),unit(i-1)
    mf=(qk_mfmas(q[2],q[1]&1,(i+1)&1,q) if q else [None]*8)+(pv_mfmas(p[2],p[1]&1,(i-1)&1,p[1]==0,p) if p else [None]*9)
    if sumfirst: mf=mf[:8]+[mf[16]]+mf[8:16]
    g=sm_gaps(m[2],i&1,i&1,m) if m else [[] for _ in range(17)]
    for src,dst in [(2,1),(9,8),(13,12),(15,14),(4,3),(7,6),(1,0)][:clump]:
        g[dst]=g[dst]+g[src]; g[src]=[]
    if cfg.endo and (not q) and m and p:
        gr=[x for x in g if x]; g=[[] for _ in range(17)]
        for k,dst in enumerate([8,8,9,9,10,10,11,11,12,13,13,14,15,16]): g[dst]=g[dst]+gr[k]
    tailmax=[]
    if q and q[1]==0:
        ms=max_seq(q[2],(i+1)&1,q[0])
        if p and m and not (cfg.slz&1 and i<13):
            for gg,x in zip(MAXG,ms): g[gg]=g[gg]+[x]
        else:
            for x in ms:
                if x.op.startswith('v_permlane'): tailmax.append(I("s_nop 1"))
                tailmax.append(x)
    out=[I(f"; ---- step {i}: QK{q} softmax{m} PV{p}")]
    if cfg.tls and i<=30:
        w=I("s_waitcnt lgkmcnt(0)"); w.meta['skip']=True
        out+=[w]+TL()
    out+=ex.get(-1,[])
    for k in range(17):
        if mf[k] is not None: out.append(mf[k])
        out+=ex.get(k,[])+g[k]+post.get(k,[])
    return out+tailmax+ex.get(17,[])

def free_gaps(ex,lo,n,avoid=()):
    return [x for x in range(lo,17) if x not in FREE and x not in ex and x not in avoid][:n]
def spread(ex,lo,items,avoid=()):
    gs=free_gaps(ex,lo,len(items),avoid)
    while len(gs)<len(items): gs.append(gs[-1])
    for x,i in zip(gs,items): put(ex,x,[i])
def TL():
    if not cfg.tl: return []
    r=[I("s_mov_b64 exec, s[90:91]"), I("v_mov_b32 v0, s98"), I("v_mov_b32 v61, s100"), I("s_mov_b64 exec, -1"), I("s_lshl_b64 s[90:91], s[90:91], 1"), I("s_memtime s[98:99]"), I("s_memrealtime s[100:101]")]
    for x in r: x.meta['skip']=True
    return r
JN=[0]
def BAR():
    r=[I("s_barrier")]+([] if cfg.tls else TL())
    if cfg.jit:
        x=I("JITTER_PLACEHOLDER:"); x.meta['jit']=True; r.append(x)
    return r
def WV(tag,lg0=False,part=None): return I("s_waitcnt vmcnt(AUTO)"+(" lgkmcnt(0)" if lg0 else ""), auto_vm=tag, need=tag, wpart=part)
def WL(x): return I("s_waitcnt lgkmcnt(AUTO)", auto_lg=x)

def kind(x):
    if x.op.startswith('ds_read'): return 'r'
    if x.op.startswith('ds_write'): return 'w'
    if getattr(x,'dma',False): return 'd'
    if getattr(x,'store',False): return 's'
    return 'a'
def gapcost(ks,free):
    if not ks: return 0
    U={'r':4,'d':6,'w':12,'s':12,'a':4}
    c=sum(U[k] for k in ks)
    if ks[0]=='a': c-=4
    if len(ks)==1 and ks[0]=='d': c=4 if not free else 8
    for p,q in zip(ks,ks[1:]):
        if p=='w' and q=='r': c+=12
    st=12*ks.count('s')
    if free: return st+max(0,c-st-8)
    return c+4*max(0,len([k for k in ks if k!='a'])-1)
def place(ex,groups,lo=0,hi=16,free=FREE):
    groups=[g if isinstance(g,list) else [g] for g in groups]
    n=len(groups)
    if not n: return
    base={g:[kind(x) for x in ex.get(g,[]) if not x.label and not x.meta.get('skip')] for g in range(17)}
    @functools.lru_cache(None)
    def f(g,i):
        if i==n: return (0,())
        if g>hi: return (1e9,())
        best=(1e9,())
        for m in range(0,min(4,n-i)+1):
            ks=base[g]+[kind(x) for gr in groups[i:i+m] for x in gr]
            c=gapcost(ks,g in free)-gapcost(base[g],g in free)
            c+=0.01*sum(abs(g-(lo+(hi-lo)*(j+0.5)/n)) for j in range(i,i+m))
            r=f(g+1,i+m)
            if c+r[0]<best[0]: best=(c+r[0],(g,)*m+r[1])
        return best
    c,gs=f(lo,0)
    assert len(gs)==n
    for g,gr in zip(gs,groups): put(ex,g,gr)

def put_reads(ex,post,reads,r,late):
    rs=reads[4*r:4*r+4]
    nw=max(0,late-4); late=min(late,4)
    if late:
        gs=[6,8,12,13] if r<5 else [2,6,8,9]
        for k in range(late): put(post,gs[k],[rs[k]]+([I("s_waitcnt lgkmcnt(0)")] if k in [3,1,2,0][:nw] else []))
        if rs[late:]: put(ex,16 if r<5 else 11,rs[late:])
    else:
        rg=(5,16) if r<5 else (5,11)
        put(ex,rg[0],rs[:2]); put(ex,rg[1],rs[2:])
def loop_end(ex,lab,n):
    put(ex,13,[I(f"s_add_u32 s{sT}, s{sT}, 1")]); put(ex,15,[I(f"s_cmp_lt_u32 s{sT}, {n}")]); put(ex,16,[I(f"s_cbranch_scc1 {lab}")])

def blockA(b,pairs,pf,nv=None,lab=None,n=0):
    late,clump=int(pf[0]),int(pf[1])
    reads=frag_reads(0,b+1); tag=f"h0KV{b+1}"
    out=[]
    inc=4096 if pairs[0]>=20 else 8192
    if len(pairs)==2: dpos={0:[(0,0,11)],1:[(0,1,3),(0,2,11)],2:[(0,3,11)],3:[(1,0,11)],4:[(1,1,3),(1,2,11)],5:[(1,3,14)]}; advr=(0,3)
    else: dpos={0:[(0,0,11)],2:[(0,1,11)],3:[(0,2,11)],4:[(0,3,11)]}; advr=(0,)
    for r in range(6):
        ex={}; post={}
        if r==0:
            put(ex,0,[I(f"s_waitcnt vmcnt({nv}) lgkmcnt(0)", need=tag, loose_ok=True) if nv is not None else WV(tag,True)])
            put(ex,1,BAR()); put(post,4,setrd(sCur))
        put_reads(ex,post,reads,r,late)
        for (p,j,g) in dpos.get(r,[]): put(ex,g,[pdma(pairs[p],j)])
        if r in advr: spread(ex,2,[I(f"s_add_u32 m0, m0, {SLOT}"), I(f"s_cmp_ge_u32 m0, s{sEnd}"), I(f"s_cselect_b32 m0, s{sW4}, m0"), I(f"s_add_u32 s{sOff}, s{sOff}, {inc}")])
        if r==3: put(ex,15,[I(f"s_waitcnt lgkmcnt({4+late if late else 6})")])
        if r==5:
            spread(ex,0,[I(f"s_add_u32 s{sCur}, s{sCur}, {SLOT}"), I(f"s_cmp_ge_u32 s{sCur}, s{sEnd}"), I(f"s_cselect_b32 s{sCur}, s{sW4}, s{sCur}")])
            if lab: loop_end(ex,lab,n)
        out+=step(6*b+1+r,ex,post,clump)
    return out
def rampA(t=None,prof=None):
    pf=(prof or cfg.prof).split(',')
    if t is not None:
        n=12+4*t
        return blockA(2*t+2,[n,n+1],pf[0],nv=8)+blockA(2*t+3,[n+2,n+3],pf[1],nv=12,lab="LloopA1",n=2)
    o=[]
    for k,b in enumerate(range(2,6)): o+=blockA(b,[12+2*k,13+2*k],pf[k])
    return o
def staticA():
    out=[I("; ==== head A key blocks 2..9")]
    seq=list(LEFT)+[(n,j) for n in range(12,24) for j in range(4)]
    pos={4:[(0,11),(2,11),(3,11),(4,11)], 5:[(0,11),(1,11),(2,11),(3,11),(4,11)], 6:[(0,11),(1,11),(2,11),(3,11),(4,11),(5,14)],
         7:[(0,11),(1,11),(2,3),(2,11),(3,11),(4,11),(5,14)], 8:[(0,11),(1,3),(1,11),(2,11),(3,11),(4,3),(4,11),(5,14)]}
    pf=cfg.midprof.split(',')
    assert sum(int(p[2]) for p in pf)==len(seq),len(seq)
    for b,p in zip(range(2,10),pf):
        late,clump,nd=int(p[0]),int(p[1]),int(p[2])
        sl=slotKV(0,b+1); base=(sl%4)*SLOT
        reads=frag_reads(0,b+1,base=base); tag=f"h0KV{b+1}"
        for r in range(6):
            ex={}; post={}
            lb=2 if (b==2 and cfg.su&4) else 0
            if r==0 and lb: put(ex,7,[I("s_waitcnt lgkmcnt(0)")])
            if r==lb:
                put(ex,0,[WV(tag,True)]); put(ex,1,BAR())
                if sl%4==0:
                    put(ex,2,[I(f"s_add_u32 s{sCur}, s{sW4}, {sl*SLOT}")]); put(post,4,setrd(sCur))
            if lb:
                if r>=2:
                    rr=reads[6*(r-2):6*(r-2)+6]
                    gs=[6,8,12,13] if r<5 else [2,6,8,9]
                    put(ex,5,rr[:2])
                    for k in range(4): put(post,gs[k] if r<5 else [6,8,9,10][k],[rr[2+k]]+([I("s_waitcnt lgkmcnt(0)")] if k in [3,1,2,0][:max(0,late-4)] else []))
            else: put_reads(ex,post,reads,r,late)
            for (rr,g) in pos[nd]:
                if rr==r:
                    n,j=seq.pop(0)
                    if j==0:
                        pre=[setm0(n%9), I(f"s_add_u32 s{sOff}, s{sOff}, {4096 if n>20 else 8192}") if n not in (18,20) else I(f"s_add_u32 s{sOff}, s{sHn}, s{sQw if n==20 else sKVw}")]
                        gs=[x for x in range(g-1,-1,-1) if x not in ex and x not in FREE][:2]
                        while len(gs)<2: gs.append(g)
                        put(ex,gs[1],[pre[0]]); put(ex,gs[0],[pre[1]])
                    put(ex,g,[pdma(n,j)])
            if r==3: put(ex,15,[WL(reads[7])])
            if b==9 and r==5: put(ex,12,[I(f"s_add_u32 s{sCur}, s{sW4}, {8*SLOT}")])
            out+=step(6*b+1+r,ex,post,clump)
    assert not seq
    return out
def midA(): return [I(f"s_add_u32 s{sOff}, s{sHn}, s{sQw}"), I(f"s_sub_u32 s{sOff}, s{sOff}, 4096"), I(f"s_mov_b32 s{sT}, 0")]
def loopA2(t): return blockA(2*t+6,[20+2*t],'00',nv=24)+blockA(2*t+7,[21+2*t],'00',nv=24,lab="LloopA2",n=2)

def ostore(reg,j,pol,so,tag=None):
    x=I(f"buffer_store_dwordx4 {vr(reg)}, v{vKVB}, {sr(sO)}, s{so} offen{offs(1024*j)}"+(f" {pol}" if pol else ""))
    if tag: x.meta['expect']={r:tag for r in x.data}
    return x
DIRECT=2
def dunit(k): return (DIRECT+k//4, k%4)
def blockB(b,pf,lab=None,n=0):
    late,clump=int(pf[0]),int(pf[1])
    t=(b-2)//2
    reads=frag_reads(1,b+1); tag=f"h1KV{b+1}"
    out=[]; lead=(b%2==0)
    rp,wp=(sPo,sPe) if lead else (sPe,sPo)
    rx=sXo if lead else sXe
    nb=cfg.dl//2; loc0=(0 if lead else nb)
    dr=[]; sts=[]
    for k in range(nb):
        sub,j=dunit(cfg.dl*t+loc0+k); jj=loc0+k
        dr.append(I(f"ds_read_b128 {vr(DR[jj&1])}, v{vD[jj&1]}{offs(1024*jj)}", src=f"O{sub}", slot=slotQ(sub), private=True))
        sts.append(ostore(DR[jj&1],jj,cfg.st,sSd,f"O{sub}"))
    for r in range(6):
        ex={}; post={}
        if r==0:
            put(ex,0,[I(f"s_waitcnt vmcnt({8+nb}) lgkmcnt(0)", need=tag, loose_ok=True)])
            put(ex,1,BAR())
            put(ex,2,[I(f"s_mov_b32 m0, s{wp}")]); put(ex,3,[I(f"s_xor_b32 s{rp}, s{rp}, s{rx}")])
            put(ex,4,[I(f"s_add_u32 s{sOff}, s{sOff}, 8192")]); put(post,4,setrd(rp))
        put_reads(ex,post,reads,r,late)
        if r<4: put(ex,11,[kvdma(1,b+4,r)])
        if r==3: put(ex,15,[I(f"s_waitcnt lgkmcnt({4+late if late else 6})")])
        if r==4 and nb: put(ex,11,dr)
        if r==5 and nb:
            put(ex,1,[I("s_waitcnt lgkmcnt(2)")]); put(ex,3,[sts[0]])
            if nb==2: put(ex,10,[sts[1]])
        if r==5 and not lead:
            if nb:
                put(ex,12,[I(f"s_add_u32 s{sSd}, s{sSd}, {1024*cfg.dl}")])
                inc=f"{SLOT}" if cfg.dl==4 else f"s{sDi}"
                put(post,16 if not lab else 7,[I(f"v_add_u32 v{vD[k]}, {inc}, v{vD[k]}") for k in range(2)])
                if cfg.dl==2: put(ex,0,[I(f"s_xor_b32 s{sDi}, s{sDi}, {2048^(SLOT-2048)}")])
            if lab: loop_end(ex,lab,n)
        out+=step(72+6*b+1+r,ex,post,clump)
    return out
def loopB(t):
    pf=cfg.profB.split(',')
    return blockB(2*t+2,pf[0])+blockB(2*t+3,pf[1],lab="LloopB",n=(2 if cfg.profB0 else 3))
def peelB():
    if cfg.profBs:
        o=[]
        for b,p in zip(range(2,8),cfg.profBs.split(',')): o+=blockB(b,p)
        return o
    pf=cfg.profB0.split(',')
    return blockB(2,pf[0])+blockB(3,pf[1])

def tagexp(o,tag):
    if tag:
        h=0 if tag[0]=='O' else 1
        for x in o:
            x.meta['expect']={r:f"O{h}n12" for r in x.rd if (r[0]=='v' and r[1]>=64) or (r[0]=='a' and 224<=r[1]<248)}
    return o
def e_head(s,bad,tag,rc):
    o=[I(f"v_accvgpr_read_b32 v{T2}, a{Lr(s)}"), I(f"v_rcp_f32 v{rc}, v{T2}")]
    if bad is None: o.append(I("s_nop 0"))
    elif cfg.tl:
        o+=[I(f"v_subrev_u32 v{T2}, 0.5, v{T2}"), I(f"v_cmp_lt_u32 vcc, s{sThr}, v{T2}"), I(f"s_or_b64 s[{bad}:{bad+1}], s[{bad}:{bad+1}], vcc")]
    else:
        acc=vBadA if bad==sBad else vBadB
        o+=[I(f"v_subrev_u32 v{T2}, 0.5, v{T2}"), I(f"v_max_u32 v{acc}, v{acc}, v{T2}")]
    return tagexp(o,tag)
vBadA,vBadB=0,61
def e_pk(s,dt,tag,rc):
    a=O(s,dt)
    return tagexp([I(f"v_pk_mul_f32 {vr(a+k,2)}, {vr(a+k,2)}, v[{rc}:{rc+1}] op_sel_hi:[1,0]") for k in (0,2)],tag)
def e_cvt(s,dt,tag):
    a=O(s,dt)
    return tagexp([I(f"v_cvt_pk_bf16_f32 v{a}, v{a}, v{a+1}"), I(f"v_cvt_pk_bf16_f32 v{a+1}, v{a+2}, v{a+3}")],tag)
def e_wr(s,dt,off,slot,tag,regs=vW):
    return tagexp([I(f"ds_write_b64 v{regs[dt&3]}, {vr(O(s,dt),2)}{offs(off+(dt>>2)*128)}", wslot=slot, wtag=tag)],tag)[0]
def epi_rd(s,off,slot,tag=None,regs=vR):
    m=dict(src=tag,slot=slot,private=True) if tag else {}
    return [I(f"ds_read_b128 {vr(O(s,2*j))}, v{regs[j&1]}{offs(off+1024*j)}", **m) for j in range(4)]
def epi_st(s,pol,so,tag=None): return [ostore(O(s,2*j),j,pol,so,tag) for j in range(4)]

class Epi:
    def __init__(s,rc2,so): s.rc2=rc2; s.so=so; s.tiles=[]; s.cv=[]; s.wr=[]; s.rd=[]; s.st=[]; s.info={}
    def add(s,sub,avail,off,slot,bad,tag,direct,pol,pre=()):
        s.info[sub]=dict(off=off,slot=slot,bad=bad,tag=tag,direct=direct,pol=pol,pre=list(pre))
        s.tiles+=[(avail,sub,dt) for dt in range(8)]
    def _rd(s,g):
        rd=s.rd; s.rd=[]
        for sub in rd:
            I_=s.info[sub]; r=epi_rd(sub,I_['off'],I_['slot'],I_['tag']); g+=[[x] for x in r]
            st=epi_st(sub,I_['pol'],s.so,I_['tag'])
            s.st+=[[WL(r[1]),st[0]],[st[1]],[WL(r[3]),st[2]],[st[3],I(f"s_add_u32 s{s.so}, s{s.so}, 4096")]]
    def mem(s,nst,fast=False):
        g=[]
        for _ in range(nst):
            if s.st: g.append(s.st.pop(0))
        s._rd(g)
        for sub,dt in s.wr:
            I_=s.info[sub]
            g.append(([I_['pre'][dt]] if (I_['pre'] and dt<4) else [])+[e_wr(sub,dt,I_['off'],I_['slot'],I_['tag'])])
            if dt==7 and I_['direct']: s.rd.append(sub)
        s.wr=[]
        if fast: s._rd(g)
        return g
    def chunk(s,i,n,full=False):
        take=[]
        while s.tiles and len(take)<n and s.tiles[0][0]<=i: take.append(s.tiles.pop(0)[1:])
        o=[]
        for sub,dt in s.cv: o+=e_cvt(sub,dt,s.info[sub]['tag']); s.wr.append((sub,dt))
        s.cv=[]
        heads=[]
        for sub,dt in take:
            I_=s.info[sub]; rc=T1 if sub%2==0 else s.rc2
            if dt==0: heads+=e_head(sub,I_['bad'],I_['tag'],rc)
        o=heads+o
        for sub,dt in take:
            o+=e_pk(sub,dt,s.info[sub]['tag'],T1 if sub%2==0 else s.rc2)
        k=max(1,len(take)-2) if (s.tiles and s.tiles[0][0]<=i+1 and not full) else len(take)
        for sub,dt in take[:k]: o+=e_cvt(sub,dt,s.info[sub]['tag']); s.wr.append((sub,dt))
        s.cv=take[k:]
        return o
    def done(s): return not(s.tiles or s.cv or s.wr or s.rd or s.st)

NPADS=0
PADAT={}
def SITE(k): return min(9,cfg.site0+(k-1)*(9-cfg.site0)//max(NPADS,1))
def startA():
    o=[I("; ==== head A, first two key blocks (q-major, as Q arrives)")]
    f0=frag_reads(0,0); f1=frag_reads(0,1,base=SLOT); f2=frag_reads(0,2)
    o+=setrd(sW4)
    o.append(WV("h0Q0")); o+=BAR()
    o+=qreads(0,0)+f0[:8]
    seq=[('q',s,j) for s in ((3,4,5) if not cfg.es else (2,3,4,5)) for j in range(4)]+[('k',b,j) for b in (2,3,4,5) for j in (0,2,1,3)]
    quota=[int(c) for c in cfg.sdm]; cur=[0]
    if cfg.es: quota[0]+=2; quota[1]+=2
    def dm():
        if quota[cur[0]]==0: return []
        quota[cur[0]]-=1
        k,x,j=seq.pop(0); it=[]
        if j==0:
            it+=[setm0(slotQ(x) if k=='q' else slotKV(0,x)), I(f"s_add_u32 s{sTmp}, s{sTmp}, 4096") if k=='q' else I(f"s_add_u32 s{sOff}, s{sOff}, 8192")]
        return it+[qdma(0,x,j,sTmp) if k=='q' else kvdma(0,x,j)]
    for i in range(-1,13):
        ex={}; post={}; cur[0]=i+1
        if i==-1:
            if cfg.es: put(ex,-1,dm()+dm())
            put(ex,-1,[WL(f0[0])])
            if cfg.su&1:
                for k in range(7): put(ex,k,[WL(f0[k+1])])
                put(ex,7,dm()+dm()+[WV("h0KV1",part='K')]+BAR()+f1[:8])
            else:
                for k in range(8): put(ex,k,f0[8+2*k:10+2*k]+([WL(f0[k+1])] if k<7 else []))
                put(ex,7,dm()+dm()+[WV("h0KV1")]+BAR()+f1[:8])
            put(ex,17,[WL(f1[7])])
        else:
            if i==0 and cfg.es: put(ex,3,dm()); put(ex,6,dm())
            if i==0 and cfg.su&1:
                put(ex,9,[WV("h0KV1")]+BAR()+f0[8:])
            if i==1 and cfg.su&1:
                for k in range(8): put(ex,k,f1[8+2*k:10+2*k])
            if i==2 and cfg.su&1: put(ex,7,[WL(f1[23])])
            if i==0 and not cfg.su&1:
                for k in range(8): put(ex,k,f1[8+2*k:10+2*k])
            if i==3: put(ex,0,[I("s_waitcnt lgkmcnt(0)")]); put(ex,1,BAR())
            if i%2==0 and i<=8:
                s=i//2+1; qs=qreads(0,s)
                put(ex,2 if i else 8,dm()); put(ex,5 if i else 8,dm())
                if s==4: put(post,9,bias(QREGS,True))
                put(ex,10,[WV(f"h0Q{s}")]); put(ex,11,qs[:2]); put(ex,12,[qs[2]]); put(ex,13,[qs[3]])
                if s==5: put(post,16,bias(QREGS,False))
                put(ex,17,[WL(qs[3])])
            elif i==10:
                put(ex,0,[WV("h0KV2",True,part=('K' if cfg.su&2 else None))]); put(ex,1,BAR())
                put(ex,2,[I(f"s_add_u32 s{sCur}, s{sW4}, {8*SLOT}")]); put(post,3,setrd(sCur))
                if cfg.slz&2:
                    for k,g in enumerate([3,6,6,8,8,10,12,12]): put(post,g,[f2[k]]+([I('s_waitcnt lgkmcnt(0)')] if (cfg.slz&4 and k in (2,7)) else []))
                else: place(ex,f2[:8],lo=4,hi=12)
                put(ex,14,dm()); put(ex,16,dm())
                put(ex,17,[WL(f2[7])])
            elif i==12:
                if cfg.slz&2:
                    for k,g in enumerate([0,0,0,3,3,3,6,6,6,8,8,10,10,12,12,14]): put(post,g,[f2[8+k]]+([I('s_waitcnt lgkmcnt(0)')] if (cfg.slz&4 and k in (8,15)) else []))
                else: place(ex,f2[8:],lo=0,hi=13)
                put(ex,14,dm()); put(ex,16,dm())
                put(ex,15,[I(f"s_mov_b32 s{sCur}, s{sW4}")])
            else:
                put(ex,5,dm()); put(ex,10,dm())
                if i==11 and cfg.su&2: put(ex,15,[WV("h0KV2")]); put(ex,16,BAR())
        ks=[k for k in range(1,NPADS+1) if SITE(k)==i]
        for k in ks:
            site=[I("s_mov_b64 exec, 0"), I(f"s_branch Lpad{k}"), I(f"Lret{k}:"), I("s_mov_b64 exec, -1")]
            if i%2==0 and 0<=i<=8: ex[10]=site+ex[10]
            else: put(ex,17,site)
        o+=step(i,ex,post,cfg.profS if (i>=6 and i%2==0) or i>9 or (cfg.slz&1 and i>=5) else 0)
    LEFT[:]=[(6+x,j) for (k,x,j) in seq]
    return o
LEFT=[]

def trans():
    o=[I("; ==== head A last two key blocks + head B first two, epilogue of head A streamed")]
    f11=frag_reads(0,11); g0=frag_reads(1,0); g1=frag_reads(1,1,base=SLOT); g2=frag_reads(1,2)
    E=Epi(14,sSd)
    idxA={u:k for k,u in enumerate(LA)}
    for s in range(6):
        E.add(s,60+idxA[(11,s)]+2,(s%4)*SLOT,slotQ(s),sBad,f"O{s}",s<DIRECT,cfg.st,pre=(bias(vW,True) if s==4 else ()))
    Q=lambda s:qreads(1,s)
    q5=Q(5)
    R={61:f11[:8], 62:f11[8:16], 63:f11[16:24], 64:Q(0), 65:Q(1), 67:Q(2), 68:Q(3), 69:g0[:4], 70:g0[4:8], 71:g0[8:16], 72:g1[:8], 73:g0[16:24],
       74:g1[8:18], 75:g1[18:24], 76:Q(4), 78:q5, 81:g2[:4], 82:g2[4:8], 83:g2[8:16], 84:g2[16:24]}
    D={}
    for (k,x),steps in zip([('q',4),('q',5),('k',2),('k',3),('k',4),('k',5)],
                           ([[61,62,63,64],[65,66,67,68],[69,70,70,71],[73,74,75,76],[77,78,79,80],[81,82,83,84]] if cfg.tw&2 else
                            [[61,62,63,64],[65,66,66,67],[69,70,71,72],[76,77,77,78],[79,79,80,80],[81,82,83,84]])):
        for j,i in enumerate(steps): D.setdefault(i,[]).append((k,x,j))
    for i in range(61,85):
        ex={}; post={}
        rs=R.get(i,[]); lo=0; hi=16
        mx=(unit(i+1)[1]==0)
        if i==61:
            put(ex,0,[WV("h0KV11",True)]); put(ex,1,BAR()); put(post,2,setrd(sCur)); lo=3; hi=12
            put(ex,17,[WL(f11[7])])
            put(ex,2,[I(f"s_add_u32 s{sSd}, s{sH}, s{sQw}")])
        if i==64: put(ex,0,[WV("h1Q1" if cfg.tw&1 else "h1Q3")]); put(ex,7,[WL(f11[23])]); lo=1
        if i==67 and cfg.tw&1: put(ex,0,[WV("h1Q2")]); lo=1
        if i==68 and cfg.tw&1: put(ex,0,[WV("h1Q3")]); lo=1
        if i==69:
            put(ex,0,[WV("h1KV1",True)]); put(ex,1,BAR()); put(post,2,setrd(sW4)); lo=3
            put(ex,2,[I(f"s_add_u32 s{sOff}, s{sHn}, s{sKVw}")]); put(ex,3,[I(f"s_add_u32 s{sOff}, s{sOff}, 8192")])
        if i==70: hi=12; put(ex,17,[WL(g0[7])])
        if i==72: hi=12; put(ex,17,[WL(g1[7])])
        if i==73: hi=5; put(ex,7,[WL(g0[17])]); put(ex,11,[WL(g0[23])])
        if i==75: hi=6; put(ex,7,[WL(g1[17])]); put(ex,12,[WL(g1[23])]); put(post,9,bias(QREGS,True))
        if i==76: put(ex,0,[WV("h1Q4",True)]); put(ex,1,BAR()); lo=2
        if i==77: put(ex,15,[WL(R[76][3])])
        if i==78: put(ex,0,[WV("h1Q5")]); lo=1
        if i==79: put(ex,15,[WL(q5[3])])
        if i==81:
            put(ex,0,[WV("h1KV2",True)]); put(ex,1,BAR())
            put(ex,2,[I(f"s_add_u32 s{sPe}, s{sW4}, {8*SLOT}")]); put(post,2,setrd(sPe)); lo=4
            put(ex,3,[I(f"s_add_u32 s{sPo}, s{sW4}, {slotKV(1,5)*SLOT}")])
        if i==82: hi=12; put(ex,17,[WL(g2[7])])
        if i==84: hi=12
        mem=E.mem(2)
        if cfg.tsched:
            sd=dict((int(a),int(b)) for a,b in (x.split(':') for x in cfg.tsched.split(',')))
            ch=E.chunk(i,sd.get(i,0),full=(i+1 not in sd))
        else: ch=E.chunk(i,cfg.rho)
        free=[g for g in FREE if not(g==16 and (ch or mx)) and not (g==11 and mx)]
        place(ex,rs,lo=lo,hi=hi,free=free)
        dg=[]
        for (k,x,j) in D.get(i,[]):
            pre=[setm0(slotQ(x) if k=='q' else slotKV(1,x)), I(f"s_add_u32 s{sOff}, s{sOff}, {4096 if k=='q' else 8192}")] if j==0 else []
            dg.append(pre+[qdma(1,x,j) if k=='q' else kvdma(1,x,j)])
        place(ex,dg,lo=max(lo,4),hi=16,free=free)
        qlast=max([g for g,v in ex.items() if any(x.meta.get('src','').startswith('h1Q') for x in v)]+[-1])
        need_after=any(kind(gr[-1])=='w' and any(x.meta.get('slot')==gr[-1].meta['wslot'] for x in rs) for gr in mem)
        place(ex,mem,lo=(qlast+1 if need_after else (2 if i in (69,76,81) else 0)),hi=15,free=free)
        put(post,16,ch)
        if i==83:
            put(post,16,bias(vW,False)+[I(f"v_add_u32 v{vD[k]}, {DIRECT*SLOT}, v{vR[k]}") for k in range(2)])
        if i==84:
            spread(ex,0,[I(f"s_mov_b32 s{sT}, 0"), I(f"s_movk_i32 s{sDi}, {SLOT-2048}"), I(f"s_add_u32 s{sSt}, s{sHn}, s{sQw}")])
            put(ex,17,[WV("h1KV3")])
        o+=step(i,ex,post)
    assert E.done()
    return o

def tailB():
    o=[I("; ==== head B last four key blocks: q sub-tiles 0-2 first, then 3-5; epilogue streamed")]
    base=120
    vK2,vV2=vQ,vQ+1
    def fr(b): return frag_reads(1,b,base=slotKV(1,b)*SLOT) if b!=10 else frag_reads(1,b,rk=vK2,rv=vV2)
    F=[fr(b) for b in [9,10,11,8,9,10,11]]
    R={}
    def addR(i,L): R.setdefault(i,[]).extend(L)
    for m in range(7):
        K,V=F[m][:8],F[m][8:]
        if m==0: addR(base+1,K)
        elif m<6: addR(base+3*m-1,K[:3]); addR(base+3*m,K[3:6]); addR(base+3*m+1,K[6:])
        else: addR(base+17,K)
        if m<6:
            addR(base+3*m+1,V[:(0 if m==0 else 5)]); addR(base+3*m+2,V[(0 if m==0 else 5):(8 if m==0 else 10)]); addR(base+3*m+3,V[(8 if m==0 else 10):(16 if m in (0,5) else 15)])
            if m not in (0,5): R.setdefault(base+3*m+4,[]).insert(0,V[15])
        else: addR(base+19,V[:12]); addR(base+20,V[12:])
    E=Epi(vQ+2,sSt)
    idx={u:k for k,u in enumerate(GB)}
    for s_ in range(5):
        sl=3+(s_%2)
        E.add(s_,base+idx[(11,s_)]+2,(sl-2)*SLOT,sl,sBad2,f"P{s_}",True,(cfg.st3 if (cfg.st3 and s_<cfg.n3) else cfg.st2))
    k0=3*cfg.dl; dq=list(range(k0,16)); pend=[]
    o_sub0,o_j0=dunit(k0)
    for i in range(base+1,base+25):
        ex={}; post={}; rel=i-base; lo=0; hi=16
        rs=list(R.get(i,[]))
        if rel==1:
            put(ex,0,[WV("h1KV10",True)]); put(ex,1,BAR())
            put(ex,2,[I(f"s_add_u32 s{sTmp}, s{sW4}, {8*SLOT}")])
            put(post,2,setrd(sW4)); lo=3; hi=12
            put(post,13,setrd(sTmp,vK2,vV2))
        if rel==5: put(ex,0,[WV("h1KV11")]); put(ex,1,BAR()); lo=2
        if rel==12: put(ex,3,TL())
        g=[]
        for rdx,k in pend:
            sub,j=dunit(k); jj=(k-k0)%4
            g.append([WL(rdx),ostore(DR[k&1],jj,cfg.st,sSd,f"O{sub}")]+([I(f"s_add_u32 s{sSd}, s{sSd}, 4096")] if jj==3 else []))
        pend=[]
        place(ex,g,lo=max(lo,3),hi=4)
        if dq:
            k=dq.pop(0); sub,j=dunit(k)
            x=I(f"ds_read_b128 {vr(DR[k&1])}, v{vD[j&1]}{offs((sub-o_sub0)*SLOT+1024*(j-o_j0))}", src=f"O{sub}", slot=slotQ(sub), private=True)
            pend.append((x,k)); place(ex,[x],lo=13,hi=15)
        mem=E.mem(2 if rel<21 else 4, fast=(rel>=21))
        ch=E.chunk(i,cfg.rhoG if rel<20 else cfg.rhoE)
        free=[g_ for g_ in FREE if not(g_==16 and ch)] if rel<24 else list(range(8,16))
        for m in range(7):
            K,V=F[m][:8],F[m][8:]
            needK = base+3*m+2 if m<6 else base+18
            needV = base+3*m+4 if m<6 else base+20
            if i==needK-1:
                put(ex,17,[WL(K[7])])
                if rs and rs[-1] is K[7]: hi=min(hi,13)
            if i==needV:
                late=[x for x in V if x in rs]
                if late:
                    place(ex,late,lo=0,hi=5,free=free); rs=[x for x in rs if x not in late]; lo=max(lo,6)
                    put(ex,7,[WL(V[15-len(late)])]); put(ex,8+(16-len(late))//2-1,[WL(V[15])])
                else: put(ex,7,[WL(V[15])])
        place(ex,rs,lo=lo,hi=hi,free=free)
        place(ex,mem,lo=(0 if rel<23 else 8),hi=(15 if rel<24 else 16),free=free)
        put(post,16,ch)
        o+=step(i,ex,post)
    assert not E.tiles and not E.cv and not dq and not pend and not E.wr and not E.rd
    return o+final5(E,ex)

def final5(E,ex):
    o=[]
    tag="P5"; sl=5; off=3*SLOT
    rest=[x for g in E.mem(8) for x in g]
    assert E.done()
    pad=max(0,8-len(rest)-len([x for x in ex.get(16,[])]))
    o+=rest+([I(f"s_nop {pad-1}")] if pad else [])+e_head(5,sBad2,tag,T1)
    for half in (0,1):
        for dt in range(4*half,4*half+4): o+=e_pk(5,dt,tag,T1)
        for dt in range(4*half,4*half+4): o+=e_cvt(5,dt,tag)
        for dt in range(4*half,4*half+4): o.append(e_wr(5,dt,off,sl,tag))
    rd=epi_rd(5,off,sl,tag); o+=rd
    st=epi_st(5,cfg.st2,sSt,tag)
    for j in range(4): o+=[WL(rd[j]), st[j]]
    return o

def tailK():
    o=[I("; ==== head B blocks 8,9 (parked output drained) and last two key blocks, epilogue streamed")]
    E=Epi(vQ+2,sSt)
    idx={u:k for k,u in enumerate(LB)}
    for s_ in range(5):
        sl=3+(s_%2)
        E.add(s_,132+idx[(11,s_)]+2,(sl-2)*SLOT,sl,sBad2,f"P{s_}",True,cfg.st2)
    k0=3*cfg.dl; dq=list(range(k0,16)); pend=[]
    o_sub0,o_j0=dunit(k0)
    f11=frag_reads(1,11)
    for i in range(121,145):
        ex={}; post={}; lo=0; hi=16; rs=[]
        if i<133:
            b,r=divmod(i-73,6); lead=(b%2==0)
            if r==0:
                reads=frag_reads(1,b+1); rp=sPo if lead else sPe; rx=sXo if lead else sXe
                put(ex,0,[WV(f"h1KV{b+1}",True)]); put(ex,1,BAR())
                put(ex,2,[I(f"s_xor_b32 s{rp}, s{rp}, s{rx}")]); put(post,4,setrd(rp)); lo=5
            rs=reads[4*r:4*r+4]
            if r==5: hi=11
            if r==3: put(ex,17,[WL(reads[7])])
        if i==133:
            put(ex,0,[WV("h1KV11",True)]); put(ex,1,BAR())
            put(ex,2,[I(f"s_xor_b32 s{sPo}, s{sPo}, s{sXo}")]); put(post,2,setrd(sPo)); lo=3; hi=12
            rs=f11[:8]; put(ex,17,[WL(f11[7])])
        if i==134: rs=f11[8:14]
        if i==135: rs=f11[14:20]
        if i==136: rs=f11[20:24]; hi=5; put(ex,7,[WL(f11[19])]+TL()); put(ex,13,[WL(f11[23])])
        g=[]
        for rdx,k in pend:
            sub,j=dunit(k); jj=(k-k0)%4
            g.append([WL(rdx),ostore(DR[k&1],jj,cfg.st,sSd,f"O{sub}")]+([I(f"s_add_u32 s{sSd}, s{sSd}, 4096")] if jj==3 else []))
        pend=[]
        place(ex,g,lo=3,hi=4)
        mem=E.mem(4, fast=True)
        ch=E.chunk(i,cfg.rho2)
        free=[g_ for g_ in FREE if not(g_==16 and ch)] if i<144 else list(range(8,16))
        place(ex,rs,lo=lo,hi=hi,free=free)
        if dq:
            k=dq.pop(0); sub,j=dunit(k)
            x=I(f"ds_read_b128 {vr(DR[k&1])}, v{vD[j&1]}{offs((sub-o_sub0)*SLOT+1024*(j-o_j0))}", src=f"O{sub}", slot=slotQ(sub), private=True)
            pend.append((x,k)); place(ex,[x],lo=6,hi=(16 if hi==16 else 12),free=free)
        place(ex,mem,lo=(0 if i<143 else 8),hi=(15 if i<144 else 16),free=free)
        put(post,16,ch)
        o+=step(i,ex,post)
    assert not E.tiles and not E.cv and not dq and not pend and not E.wr and not E.rd
    return o+final5(E,ex)

def tailQ():
    o=[I("; ==== head B blocks 8,9 (parked output drained) and last two key blocks q-major, epilogue right behind each sub-tile")]
    k0=3*cfg.dl; dq=list(range(k0,16)); pend=[]
    o_sub0,o_j0=dunit(k0)
    f9=frag_reads(1,9); f10=frag_reads(1,10); f11=frag_reads(1,11,base=slotKV(1,11)*SLOT,rk=vQ,rv=vQ+1)
    R={121+r:f9[4*r:4*r+4] for r in range(6)}
    R.update({127:f10[:5],128:f10[5:11],129:f10[11:17],130:f10[17:21]+f11[:2],131:f11[2:8],132:f10[21:24],133:f11[8:18],134:f11[18:24]})
    stq=[]; nxt=[]
    nd2=max(0,len(dq)-cfg.nd1)
    for i in range(121,145):
        ex={}; post={}; lo=0; hi=16; rs=list(R.get(i,[]))
        p=unit(i-1); fin=(p[1]==11)
        if i==121:
            put(ex,0,[WV("h1KV9",True)]); put(ex,1,BAR())
            put(ex,2,[I(f"s_xor_b32 s{sPo}, s{sPo}, s{sXo}")]); put(post,4,setrd(sPo)); lo=5
        if i==124: put(ex,17,[WL(f9[7])])
        if i==126: hi=11
        if i==127:
            put(ex,0,[WV("h1KV10" if cfg.bar11 else "h1KV11",True)]); put(ex,1,BAR())
            put(ex,2,[I(f"s_xor_b32 s{sPe}, s{sPe}, s{sXe}")]); put(post,4,setrd(sPe)); lo=5
        if i==128: put(post,4,setrd(sW4,vQ,vQ+1))
        if i==130:
            put(ex,17,[WL(f10[7])])
            if cfg.bar11: put(ex,6,[WV("h1KV11")]); put(ex,7,[I("s_barrier")])
        if i==131: hi=12; put(ex,17,[WL(f11[7])])
        if i==133: put(ex,7,[WL(f10[23])]+TL())
        if i==134: hi=5; put(ex,8,[WL(f11[17])]); put(ex,13,[WL(f11[23])])
        free=[g_ for g_ in FREE if not(g_==16 and fin)] if i<144 else list(range(8,16))
        if cfg.endo and i==143: free=[]
        g=[]
        for rdx,k in pend:
            sub,j=dunit(k); jj=(k-k0)%4
            g.append([WL(rdx),ostore(DR[k&1],jj,cfg.st,sSd,f"O{sub}")]+([I(f"s_add_u32 s{sSd}, s{sSd}, 4096")] if jj==3 else []))
        if g: place(ex,g[:1],lo=3,hi=4)
        if len(g)>1: place(ex,g[1:],lo=9,hi=10)
        two=len(pend)>1; pend=[]
        if i==130:
            place(ex,rs[:4],lo=0,hi=11,free=free); place(ex,rs[4:],lo=8,hi=16,free=free)
        else: place(ex,rs,lo=lo,hi=hi,free=free)
        n=0
        if dq: n=1
        if dq and nd2>0 and (i%2==0 or nd2>6): n=2; nd2-=1
        xs=[]
        for _ in range(min(n,len(dq))):
            k=dq.pop(0); sub,j=dunit(k)
            x=I(f"ds_read_b128 {vr(DR[k&1])}, v{vD[j&1]}{offs((sub-o_sub0)*SLOT+1024*(j-o_j0))}", src=f"O{sub}", slot=slotQ(sub), private=True)
            pend.append((x,k)); xs.append(x)
        place(ex,xs,lo=11,hi=(16 if hi==16 else 12),free=free)
        mlo=0 if i<143 else 8
        if nxt:
            place(ex,nxt,lo=mlo,hi=16,free=free); nxt=[]
        elif stq:
            place(ex,stq,lo=mlo,hi=15,free=free); stq=[]
        if fin and p[2]<5:
            s_=p[2]; tag=f"P{s_}"; sl=3+(s_%2); off=(sl-2)*SLOT
            ch=e_head(s_,sBad2,tag,T1)
            for dt in range(8): ch+=e_pk(s_,dt,tag,T1)
            for dt in range(8): ch+=e_cvt(s_,dt,tag)
            put(post,13,ch[:1]); put(post,14,ch[1:2]); put(post,16,ch[2:])
            rd=epi_rd(s_,off,sl,tag); st=epi_st(s_,cfg.st2,sSt,tag)
            nxt=[[e_wr(s_,dt,off,sl,tag)] for dt in range(8)]+[[x] for x in rd]
            stq=[[WL(rd[1]),st[0]],[st[1]],[WL(rd[3]),st[2]],[st[3],I(f"s_add_u32 s{sSt}, s{sSt}, 4096")]]
        if cfg.endo and i==144:
            hd=e_head(5,sBad2,"P5",T1); put(post,14,hd[:2]); put(post,15,hd[2:])
            put(ex,-1,[I("s_nop 0")])
        o+=step(i,ex,post,(cfg.profT if i<133 else 0),sumfirst=fin)
    assert not dq and not pend and not nxt and not stq
    tag="P5"; sl=5; off=3*SLOT
    if not cfg.endo: o+=e_head(5,sBad2,tag,T1)
    for half in (0,1):
        for dt in range(4*half,4*half+4): o+=e_pk(5,dt,tag,T1)
        for dt in range(4*half,4*half+4): o+=e_cvt(5,dt,tag)
        for dt in range(4*half,4*half+4): o.append(e_wr(5,dt,off,sl,tag))
    rd=epi_rd(5,off,sl,tag); o+=rd
    st=epi_st(5,cfg.st2,sSt,tag)
    for j in range(4): o+=[WL(rd[j]), st[j]]
    return o

def stamp(k):
    if not cfg.stamps: return []
    op="s_memrealtime" if (cfg.echo>=0 or cfg.rt) else "s_memtime"
    return [I(f"{op} s[{sStamp+4+2*k}:{sStamp+5+2*k}]", skip=True)]

def lane_consts(A,base):
    A("v_and_b32 v4, 3, v0")
    A("v_bfe_u32 v3, v0, 2, 1"); A("v_mul_u32_u24 v9, 2080, v3")
    A("v_bfe_u32 v3, v0, 3, 1"); A("v_lshl_add_u32 v9, v3, 10, v9")
    A("v_lshl_add_u32 v9, v4, 8, v9"); A("v_lshl_add_u32 v9, v2, 4, v9"); A(f"v_add_u32 v9, s{base}, v9")
    for ks in range(4):
        A(f"v_xor_b32 v3, {ks}, v4"); A(f"v_lshl_add_u32 v{vQ+ks}, v3, 6, v9")
    A("v_and_b32 v8, 15, v0"); A("v_xor_b32 v9, v8, v2"); A("v_lshlrev_b32 v10, 8, v2"); A(f"v_add_u32 v10, s{base}, v10")
    A(f"v_lshl_add_u32 v{vR[0]}, v9, 4, v10"); A("v_xor_b32 v9, 4, v9"); A(f"v_lshl_add_u32 v{vR[1]}, v9, 4, v10")
    A("v_lshlrev_b32 v10, 8, v8"); A("v_and_b32 v9, 1, v2"); A("v_lshl_add_u32 v10, v9, 3, v10"); A(f"v_add_u32 v10, s{base}, v10")
    A("v_lshrrev_b32 v9, 1, v2"); A("v_and_b32 v8, 7, v0"); A("v_xor_b32 v9, v9, v8")
    for k in range(4):
        A(f"v_xor_b32 v8, {2*k}, v9"); A(f"v_lshl_add_u32 v{vW[k]}, v8, 4, v10")

CPF_LINES=11
def prologue():
    o=[]
    A=lambda t,**k: o.append(I(t,**k))
    A(f"s_load_dwordx2 s[{sKA}:{sKA+1}], s[0:1], 8"); A(f"s_load_dwordx2 s[{sVB}:{sVB+1}], s[0:1], 16")
    A(f"s_load_dwordx2 s[{sQA}:{sQA+1}], s[0:1], 0"); A(f"s_load_dwordx2 s[{sO}:{sO+1}], s[0:1], 24")
    if cfg.stamps:
        A(f"s_load_dwordx2 s[{sDbg}:{sDbg+1}], s[0:1], 32")
        A(f"s_memtime s[{sStamp}:{sStamp+1}]"); A(f"s_memrealtime s[{sStamp+2}:{sStamp+3}]")
    if cfg.tl:
        A("s_mov_b64 s[90:91], 1"); A("s_memtime s[98:99]"); A("s_memrealtime s[100:101]")
    A("s_cmp_ge_u32 s2, 256"); A("s_cbranch_scc1 Lend")
    A("v_lshrrev_b32 v1, 6, v0"); A("v_and_b32 v0, 63, v0"); A("v_readfirstlane_b32 s3, v1")
    if cfg.pro:
        A("s_getpc_b64 s[62:63]"); A("Lpc:")
        A("v_min_u32 v2, 3, v0"); A("v_lshlrev_b32 v2, 7, v2")
        A("global_load_dword v14, v2, s[62:63] offset:64")
        A("s_lshr_b32 s4, s2, 3"); A(f"s_mul_i32 s4, s4, {128*CPF_LINES}"); A("s_add_u32 s4, s4, Lmain-Lpc")
        A(f"v_min_u32 v1, {CPF_LINES-1}, v0"); A("v_lshl_add_u32 v1, v1, 7, s4")
        A("global_load_dword v15, v1, s[62:63]")
    A(f"v_lshlrev_b32 v{vKVB}, 4, v0"); A(f"v_add_u32 v{vKVA}, 1056, v{vKVB}")
    if cfg.diag=='l2only': A("s_and_b32 s62, s2, 7"); A(f"s_mul_i32 s{sH}, s62, {2*HEADB}")
    elif cfg.hm==1: A(f"s_mul_i32 s{sH}, s2, {HEADB}")
    elif cfg.hm==2:
        A("s_and_b32 s5, s2, 7"); A("s_lshl_b32 s5, s5, 5"); A("s_lshr_b32 s6, s2, 3"); A("s_or_b32 s5, s5, s6"); A(f"s_mul_i32 s{sH}, s5, {HEADB}")
    elif cfg.hm==3:
        A("s_and_b32 s5, s2, 7"); A("s_lshl_b32 s5, s5, 5"); A("s_lshr_b32 s6, s2, 3"); A("s_or_b32 s5, s5, s6"); A(f"s_mul_i32 s{sH}, s5, {2*HEADB}")
    else: A(f"s_mul_i32 s{sH}, s2, {2*HEADB}")
    A(f"s_mov_b32 s{sKA+2}, {TOTB+1056}"); A(f"s_mov_b32 s{sKA+3}, 0x20000"); A(f"s_mov_b32 s{sVB+2}, {TOTB+2080}"); A(f"s_mov_b32 s{sVB+3}, s{sKA+3}")
    A(f"s_mul_i32 s{sW4}, s3, {WREG}"); A(f"s_lshl_b32 s{sKVw}, s3, 11")
    A(f"s_add_u32 s{sOff}, s{sH}, s{sKVw}")
    o.append(setm0(0))
    A("s_waitcnt lgkmcnt(0)")
    A(f"s_sub_u32 s{sKA}, s{sKA}, 1056"); A(f"s_subb_u32 s{sKA+1}, s{sKA+1}, 0")
    o+=[kvdma(0,0,0),kvdma(0,0,2)]
    A(f"s_sub_u32 s{sVB}, s{sVB}, 2080"); A(f"s_subb_u32 s{sVB+1}, s{sVB+1}, 0")
    if not cfg.su&1: o+=[kvdma(0,0,1),kvdma(0,0,3)]
    if cfg.cpf and not cfg.pro:
        A("s_getpc_b64 s[62:63]")
        if cfg.pads: A("Lpc:"); A("s_add_u32 s62, s62, Lmain-Lpc"); A("s_addc_u32 s63, s63, 0")
        A("s_lshr_b32 s4, s2, 3"); A(f"s_mul_i32 s4, s4, {128*CPF_LINES}")
        A(f"v_min_u32 v1, {CPF_LINES-1}, v0"); A("v_lshl_add_u32 v1, v1, 7, s4")
        A("global_load_dword v15, v1, s[62:63]")
    A("v_lshrrev_b32 v2, 4, v0"); A("v_lshlrev_b32 v4, 6, v2"); A(f"v_xor_b32 v{vQB}, v{vKVB}, v4"); A(f"v_add_u32 v{vQA}, 1056, v{vQB}")
    A(f"s_mul_i32 s{sQw}, s3, 24576"); A(f"s_add_u32 s{sTmp}, s{sH}, s{sQw}")
    A(f"s_sub_u32 s{sQB}, s{sQA}, 32"); A(f"s_subb_u32 s{sQB+1}, s{sQA+1}, 0")
    A(f"s_sub_u32 s{sQA}, s{sQA}, 1056"); A(f"s_subb_u32 s{sQA+1}, s{sQA+1}, 0")
    o.append(setm0(slotQ(0)))
    A(f"s_mov_b64 s[{sQA+2}:{sQA+3}], s[{sKA+2}:{sKA+3}]"); A(f"s_mov_b32 s{sQB+2}, {TOTB+32}"); A(f"s_mov_b32 s{sQB+3}, s{sKA+3}")
    o+=[qdma(0,0,j,sTmp) for j in range(4)]
    if cfg.su&1:
        o.append(setm0(1)); A(f"s_add_u32 s4, s{sOff}, 8192")
        o+=[kvdma(0,1,j,4) for j in (0,2)]
        o+=[setm0(0),I("s_nop 0"),kvdma(0,0,1),kvdma(0,0,3)]
    o.append(setm0(1)); A(f"s_add_u32 s{sOff}, s{sOff}, 8192")
    o+=[kvdma(0,1,j) for j in ((1,3) if cfg.su&1 else (0,2,1,3))]
    if cfg.pro: o+=[I("s_branch Lmain"), I(".p2align 12"), I("Lmain:")]
    A(f"s_mov_b32 s{sO+2}, {0 if cfg.diag else TOTB}"); A(f"s_mov_b32 s{sO+3}, 0x20000")
    A(f"s_add_u32 s{sHn}, s{sH}, {HEADB*(256 if cfg.hm in (1,2) else 1)}")
    A(f"s_mov_b32 s{sC}, 0x3e0293ee"); A(f"s_mov_b32 s{sNC}, 0xbe0293ee"); A(f"s_mov_b32 s{sThr}, {0x4e800000-0x3f000000:#x}")
    if cfg.pkf: A(f"s_mov_b32 s{sC2}, 0x3e0293ee"); A(f"s_mov_b32 s{sC2+1}, 0x3e0293ee")
    A(f"s_add_u32 s{sEnd}, s{sW4}, {NSLOT*SLOT}")
    A(f"s_mov_b32 s{sT}, 0")
    if cfg.profO or cfg.oddB: A("s_getreg_b32 s95, hwreg(HW_REG_XCC_ID)")
    A(f"s_mov_b64 s[{sBad}:{sBad+1}], 0"); A(f"s_mov_b64 s[{sBad2}:{sBad2+1}], 0")
    if cfg.tw&2:
        A(f"s_add_u32 s{sXe}, s{sW4}, {8*SLOT}"); A(f"s_xor_b32 s{sXe}, s{sXe}, s{sW4}")
        A(f"s_add_u32 s{sXo}, s{sW4}, {SLOT}"); A(f"s_add_u32 s4, s{sW4}, {2*SLOT}"); A(f"s_xor_b32 s{sXo}, s{sXo}, s4")
    else:
        A(f"s_add_u32 s{sXe}, s{sW4}, {8*SLOT}"); A(f"s_add_u32 s4, s{sW4}, {SLOT}"); A(f"s_xor_b32 s{sXe}, s{sXe}, s4")
        A(f"s_add_u32 s4, s{sW4}, {2*SLOT}"); A(f"s_xor_b32 s{sXo}, s4, s{sW4}")
    A("v_and_b32 v3, 7, v0"); A(f"v_mul_u32_u24 v{vKl}, 2080, v3")
    A("v_bfe_u32 v3, v0, 3, 1"); A(f"v_lshl_add_u32 v{vKl}, v3, 8, v{vKl}")
    A(f"v_lshl_add_u32 v{vKl}, v2, 4, v{vKl}"); A(f"v_subrev_u32 v{vKl}, s{sW4}, v{vKl}")
    A("v_bfe_u32 v3, v0, 2, 3"); A(f"v_mul_u32_u24 v{vVl}, 2080, v3")
    A("v_lshrrev_b32 v3, 5, v0"); A(f"v_lshl_add_u32 v{vVl}, v3, 8, v{vVl}")
    A("v_and_b32 v4, 3, v0"); A(f"v_lshl_add_u32 v{vVl}, v4, 3, v{vVl}")
    A(f"v_add_u32 v{vVl}, 1024, v{vVl}"); A(f"v_subrev_u32 v{vVl}, s{sW4}, v{vVl}")
    A("v_mov_b32 v11, 0x3f803f80"); A("v_cmp_eq_u32 vcc, 0, v4")
    lane_consts(A,4)
    A("v_cndmask_b32 v11, 0, v11, vcc")
    for k in range(4): A(f"v_accvgpr_write_b32 a{ONES+k}, v11")
    if not cfg.tl: A(f"v_mov_b32 v{vBadA}, 0"); A(f"v_mov_b32 v{vBadB}, 0")
    for s in ((1,2) if not cfg.es else (1,)):
        o.append(setm0(slotQ(s))); A(f"s_add_u32 s{sTmp}, s{sTmp}, 4096")
        o+=[qdma(0,s,j,sTmp) for j in range(4)]
    return o

def slow_path():
    o=[]
    A=lambda t,**k: o.append(I(t,**k))
    sP=sCur
    A("; ==== fallback: exact two-pass softmax with the true row max for this wave's 96 rows of the head at byte offset s44")
    A("Lslow:")
    A("s_waitcnt vmcnt(0) lgkmcnt(0)")
    A(f"s_mul_i32 s{sP}, s3, {SLOT}")
    A(f"s_add_u32 s{sTmp}, s{sP}, s{sW4}")
    o+=setrd(sTmp)
    A(f"v_lshrrev_b32 v0, 4, v{vKVB}"); A("v_lshrrev_b32 v2, 4, v0")
    lane_consts(A,sTmp)
    A(f"s_mov_b32 m0, s{sTmp}")
    A(f"s_add_u32 s{sOff}, s{sH}, s{sQw}")
    for s in range(6):
        o+=[qdma(0,s,j) for j in range(4)]
        A("s_waitcnt vmcnt(0)")
        for ks in range(4): A(f"ds_read_b128 {ar(Qr(s,ks))}, v{vQ+ks}")
        A(f"s_add_u32 s{sOff}, s{sOff}, 4096")
        A("s_waitcnt lgkmcnt(0)")
    for s in range(6): A(f"v_mov_b32 v{MN+s}, 0xff800000")
    def loadkv():
        for j in range(4):
            A(f"s_add_u32 m0, s{sP}, {j*WREG}"); A("s_nop 0")
            o.extend(kvdma(0,0,jj) for jj in range(4))
            A(f"s_add_u32 s{sOff}, s{sOff}, 2048")
        A("s_waitcnt vmcnt(0)")
    A(f"s_mov_b32 s{sOff}, s{sH}"); A(f"s_mov_b32 s{sT}, 0")
    A("Lslow1:")
    loadkv()
    o+=frag_reads(0,0,tags=False)[:8]
    A("s_waitcnt lgkmcnt(0)")
    for s in range(6):
        o+=qk_mfmas(s,0,0)
        A("s_nop 7")
        for e in range(0,8,2): A(f"v_max3_f32 v{MN+s}, v{MN+s}, v{SB[0]+e}, v{SB[0]+e+1}")
    A(f"s_add_u32 s{sT}, s{sT}, 1"); A(f"s_cmp_lt_u32 s{sT}, 12"); A("s_cbranch_scc1 Lslow1")
    for s in range(6):
        m=MN+s
        A(f"v_mov_b32 v{T1}, v{m}"); A("s_nop 1"); A(f"v_permlane16_swap_b32 v{m}, v{T1}"); A(f"v_max_f32 v{m}, v{m}, v{T1}")
        A(f"v_mov_b32 v{T1}, v{m}"); A("s_nop 1"); A(f"v_permlane32_swap_b32 v{m}, v{T1}"); A(f"v_max_f32 v{m}, v{m}, v{T1}")
    for r in range(64,256): A(f"v_mov_b32 v{r}, 0")
    for r in range(224,248): A(f"v_accvgpr_write_b32 a{r}, 0")
    A(f"s_mov_b32 s{sOff}, s{sH}"); A(f"s_mov_b32 s{sT}, 0")
    A("Lslow2:")
    loadkv()
    fr=frag_reads(0,0,tags=False)
    for k in range(3):
        o+=fr[8*k:8*k+8]; A("s_waitcnt lgkmcnt(0)")
    for s in range(6):
        o+=qk_mfmas(s,0,0)
        A("s_nop 7")
        for e in range(8): A(f"v_sub_f32 v{SB[0]+e}, v{SB[0]+e}, v{MN+s}")
        for e in range(8): A(f"v_mul_f32 v{SB[0]+e}, s{sC}, v{SB[0]+e}")
        for e in range(8): A(f"v_exp_f32 v{SB[0]+e}, v{SB[0]+e}")
        for e in range(0,8,2): A(f"v_cvt_pk_bf16_f32 v{PB[0]+e//2}, v{SB[0]+e}, v{SB[0]+e+1}")
        A("s_nop 1")
        o+=pv_mfmas(s,0,0,False)
    A(f"s_add_u32 s{sT}, s{sT}, 1"); A(f"s_cmp_lt_u32 s{sT}, 12"); A("s_cbranch_scc1 Lslow2")
    A("s_nop 7")
    A(f"s_add_u32 s{sSt}, s{sH}, s{sQw}")
    for s in range(6):
        o+=e_head(s,None,None,T1)
        for dt in range(8): o+=e_pk(s,dt,None,T1)
        for dt in range(8): o+=e_cvt(s,dt,None)
        for dt in range(8): o.append(e_wr(s,dt,0,None,None))
        o+=epi_rd(s,0,None)+[I("s_waitcnt lgkmcnt(0)")]+epi_st(s,"",sSt)
        A(f"s_add_u32 s{sSt}, s{sSt}, 4096")
    A("s_branch Lslow_ret")
    for x in o:
        for k in ('tag','slot','wslot','wtag'): x.meta.pop(k,None)
    return o

def resolve(trace):
    vm=[]; lg=[]
    for x in trace:
        if x.label or x.meta.get('skip'): continue
        if 'auto_vm' in x.meta:
            idx=[k for k,y in enumerate(vm) if y.meta.get('tag')==x.meta['auto_vm'] and x.meta.get('wpart') in (None,y.meta.get('part'))]
            n=min(63,len(vm)-1-max(idx)); x.text=x.text.replace("vmcnt(AUTO)",f"vmcnt({n})"); x.meta['loose_ok']=True
        if 'auto_lg' in x.meta:
            k=[i for i,y in enumerate(lg) if y is x.meta['auto_lg']]
            assert k, "WL target not issued before wait: "+x.meta['auto_lg'].text
            n=min(15,len(lg)-1-k[0]); x.text=x.text.replace("lgkmcnt(AUTO)",f"lgkmcnt({n})")
        if x.kind=='vmem': vm.append(x)
        if x.kind=='ds': lg.append(x)

def build():
    set_units()
    P=prologue(); SA=startA(); TR=trans(); TB=[tailK,tailB,tailQ][cfg.G]()
    txt=lambda L:[x.text for x in L if not x.text.startswith(';')]
    assert txt(loopA2(0))==txt(loopA2(1))
    tb=range(1,3) if cfg.profB0 else range(3)
    for t in tb: assert txt(loopB(t))==txt(loopB(tb[0]))
    if cfg.loopR:
        assert txt(rampA(0))==txt(rampA(1)); RAt=rampA(0)+rampA(1); RA=[I(".p2align 3"),I("LloopA1:")]+rampA(0)
    else: RA=RAt=rampA()
    PB_=peelB() if cfg.profB0 else []
    extra=[]
    if cfg.profO:
        RO=rampA(prof=cfg.profO)
        t2=prologue()+startA()+RO+midA()+loopA2(0); resolve(t2)
        for p in check_trace([x for x in t2 if not x.meta.get('skip')]): print("ODD:",p)
        RA=[I("s_bitcmp1_b32 s95, 0"), I("s_cbranch_scc1 LrampO")]+RA+[I("s_branch LrampJ"), I("LrampO:")]+RO+[I("LrampJ:")]
    if cfg.midprof:
        MA=staticA(); trace=P+SA+MA+TR+PB_
    else: trace=P+SA+RAt+midA()+loopA2(0)+loopA2(1)+TR+PB_
    if not cfg.profBs:
        for t in tb: trace+=loopB(t)
    trace+=TB
    resolve(trace)
    probs=check_trace([x for x in trace if not x.meta.get('skip')])
    sp=slow_path()
    probs+=check_trace(sp+slow_path())
    seen=set()
    for p in probs:
        if p not in seen: print(p); seen.add(p)
    nd=(lambda L:[x for x in L if not getattr(x,'dma',False)]) if cfg.diag=='nodma' else (lambda L:L)
    if cfg.pads and not cfg.pro: P=P+[I("s_branch Lmain"), I(".p2align 12"), I("Lmain:")]
    if cfg.midprof: S=list(P)+stamp(0)+SA+stamp(1)+nd(MA)
    else: S=list(P)+stamp(0)+SA+stamp(1)+nd(RA)+midA()+[I(".p2align 3"),I("LloopA2:")]+nd(loopA2(0))
    if cfg.oddB: PB_=[I("s_bitcmp1_b32 s95, 0"), I(f"s_cselect_b32 s{sT}, -1, 0"), I("s_cbranch_scc1 LloopB")]+PB_
    S+=stamp(2)+nd(TR)+stamp(3)+nd(PB_)+([I(".p2align 3"),I("LloopB:")]+nd(loopB(tb[0])) if not cfg.profBs else [])
    S+=stamp(4)+TB+stamp(5)
    if cfg.slow:
        if not cfg.tl:
            S+=[I("; l bits - bits(0.5) above bits(2^30) - bits(0.5) (unsigned) <=> l outside [0.5, 2^30], inf or NaN"),
                I(f"v_cmp_lt_u32 s[{sBad}:{sBad+1}], s{sThr}, v{vBadA}"), I(f"v_cmp_lt_u32 s[{sBad2}:{sBad2+1}], s{sThr}, v{vBadB}")]
        S+=[I(f"s_or_b64 s[62:63], s[{sBad}:{sBad+1}], s[{sBad2}:{sBad2+1}]"), I("s_barrier"), I("s_cbranch_scc1 Lslow_entry")]
    S+=[I("Lfin:")]
    if cfg.stamps:
        S+=[I("s_waitcnt vmcnt(0)"), I(f"s_memtime s[{sStamp+16}:{sStamp+17}]"), I(f"s_memrealtime s[{sStamp+18}:{sStamp+19}]"), I("s_waitcnt lgkmcnt(0)")]
        if cfg.echo>=0:
            esrc=[sStamp+2]+[sStamp+4+2*k for k in range(6)]+[sStamp+18]
            if cfg.echox>=0: S+=[I("s_getreg_b32 s62, hwreg(HW_REG_XCC_ID)"), I("s_and_b32 s62, s62, 7"), I(f"s_cmp_lg_u32 s62, {cfg.echox}"), I("s_cbranch_scc1 Lend")]
            S+=[I(f"s_add_u32 s62, s{esrc[cfg.echo]}, 10000"), I("Lspin:"), I("s_sleep 2"), I("s_memrealtime s[88:89]"), I("s_waitcnt lgkmcnt(0)"),
                I("s_sub_u32 s63, s88, s62"), I("s_cmp_lt_i32 s63, 0"), I("s_cbranch_scc1 Lspin")]
        S+=[I(f"v_mov_b32 v8, s{sStamp+2}"), I(f"v_mov_b32 v9, s{sStamp+18}")]
        srcs=[sStamp+4+2*k for k in range(6)]+[sStamp+(18 if cfg.rt else 16)]
        for k,r in enumerate(srcs):
            S+=[I(f"s_sub_u32 s{sTmp}, s{r}, s{sStamp+(2 if cfg.rt else 0)}"), I(f"v_mov_b32 v{10+k}, s{sTmp}")]
        S+=[I("v_mov_b32 v17, 0"), I("v_mov_b32 v18, 0"), I("s_getreg_b32 s62, hwreg(HW_REG_XCC_ID)"), I("v_mov_b32 v19, s62")]
        S+=[I(f"s_mov_b32 s28, s{sDbg}"), I(f"s_mov_b32 s29, s{sDbg+1}"), I(f"s_mov_b32 s30, {cfg.dbgsz}"), I("s_mov_b32 s31, 0x20000"),
            I("s_lshl_b32 s62, s2, 8"), I("s_lshl_b32 s63, s3, 6"), I("s_add_u32 s62, s62, s63"), I("v_mov_b32 v1, 0")]
        if cfg.tl:
            S+=TL()+[I("s_waitcnt lgkmcnt(0)")]+TL()+[I("s_lshl_b32 s61, s62, 3"), I("s_add_u32 s61, s61, 65536"), I(f"v_lshrrev_b32 v5, 2, v{vKVB}"),
                I("buffer_store_dword v0, v5, s[28:31], s61 offen"), I("buffer_store_dword v61, v5, s[28:31], s61 offen offset:256")]
        S+=[I("s_mov_b64 exec, 1"),
            I("buffer_store_dwordx4 v[8:11], v1, s[28:31], s62 offen"), I("buffer_store_dwordx4 v[12:15], v1, s[28:31], s62 offen offset:16"), I("buffer_store_dwordx4 v[16:19], v1, s[28:31], s62 offen offset:32")]
    S+=[I("Lend:"), I("s_endpgm")]
    if cfg.slow:
        S+=[I("Lslow_entry:"), I(f"s_cmp_lg_u64 s[{sBad}:{sBad+1}], 0"), I("s_cbranch_scc1 Lslow"),
            I("Lslow_ret:"), I(f"s_cmp_eq_u64 s[{sBad2}:{sBad2+1}], 0"), I("s_cbranch_scc1 Lfin"),
            I(f"s_mov_b64 s[{sBad2}:{sBad2+1}], 0"), I(f"s_mov_b32 s{sH}, s{sHn}")]
        S+=sp
    else: S+=[I(".fill 2048, 4, 0xbf810000")]
    return S, bool([p for p in probs if not p.startswith("NOTE")])

from gen import FTR
HDR="""; Kernarg layout for this problem (48 bytes, ptrs only, base s[0:1]):
;   offset   0: d_in[0] q  shape=(16, 32, 384, 128) dtype=bfloat16 strides=(3145728, 98304, 256, 2) contiguous=True
;   offset   8: d_in[1] k  shape=(16, 32, 384, 128) dtype=bfloat16 strides=(3145728, 98304, 256, 2) contiguous=True
;   offset  16: d_in[2] v  shape=(16, 32, 384, 128) dtype=bfloat16 strides=(3145728, 98304, 256, 2) contiguous=True
; @launch grid=(256,1,1) block=(256,1,1) lds=%d
;
; softmax(Q K^T / sqrt(128)) V for 512 heads of 384 x 128.   (emitted by my own generator script)
; -------------------------------------------------------------------------------------------------
; * One workgroup (4 waves, one per SIMD, 512 registers each) per CU handles heads 2*wg (A) and 2*wg+1 (B).
; * v_mfma_f32_16x16x32_bf16 throughout:  S^T = K Q^T (8 MFMA),  O^T += V^T P^T (8 MFMA),  row sums l += 1^T P^T (1 MFMA).
; * Q/K/V stream global -> LDS with buffer_load ... lds through nine 16640-byte slots (padded so that the K b128 reads and the
;   transposing V reads are bank-conflict free); K/V fragments are double buffered in AGPRs, O lives in v64..v255.
; * Softmax guard: p = exp2(c*s - c*m) with m = the row's true max over its first key block (so l >= 1, nothing underflows that the
;   two-pass softmax that subtracts the true max over all 384 keys.
;   part of head A's output is parked in LDS and written while head B no longer loads.
; * Lpad<k>/Lret<k>: while waiting for the first loads each wave touches the first line of every 4 KiB page of the kernel once
;   (branch there with EXEC=0 and straight back, no memory instruction runs) because instruction prefetch stops at page ends.
.amdgcn_target "amdgcn-amd-amdhsa--gfx950"
.text
.globl %s
.p2align 8
.type %s,@function
%s:
"""
def isize(x):
    return SZ[x.text]
def write(fn):
    S,bad=build()
    if cfg.pads and SZ:
        out=[]; addr=None; k=1
        for n,x in enumerate(S):
            out.append(x)
            if x.text=="Lmain:": addr=0; continue
            if addr is None: continue
            if x.text==".p2align 3": addr=(addr+7)&~7; continue
            if x.label: continue
            a0=addr; addr+=SZ.get(x.text,4)
            if k<=NPADS and addr>=k*cfg.pads+cfg.padoff and (x.kind=='mfma' or addr>=k*cfg.pads+cfg.padoff+24) and not x.op.startswith('s_cbranch') and not x.op.startswith('s_branch') and x.text!='s_mov_b64 exec, 0':
                out+=[I(f"Lpad{k}:"), I(f"s_cbranch_execz Lret{k}")]; addr+=4; k+=1
        assert k==NPADS+1,(k,NPADS)
        S=out
    with open(fn,"w") as f:
        f.write(HDR%(LDSB,NAME,NAME,NAME))
        jn=0
        for x in S:
            t=x.text
            if x.meta.get('jit'):
                jn+=1
                f.write(f"    s_cmp_eq_u32 s3, {(jn*cfg.jit)%4}\n    s_cbranch_scc0 Ljit{jn}\n    s_sleep {20+10*(jn%5)}\nLjit{jn}:\n"); continue
            if cfg.drop=='exp' and t.startswith('v_exp'): t=t.replace('v_exp_f32','v_mov_b32')
            if cfg.drop=='exp0' and t.startswith('v_exp'): continue
            if cfg.drop=='fma' and t.startswith('v_fma'): continue
            if cfg.drop=='sum' and t.startswith(MF+' a['): continue
            f.write((t if (t.endswith(':') or t.startswith('.')) else "    "+t)+"\n")
        f.write(FTR%NAME)
    return bad
SZ={}
def sizes(co):
    import subprocess
    out=subprocess.run(["llvm-objdump","-d","--mcpu=gfx950",co],capture_output=True,text=True).stdout
    sym={m.group(2):int(m.group(1),16) for m in re.finditer(r"^([0-9a-f]+) <(\w+)>:",out,re.M)}
    last=int(re.findall(r"// ([0-9A-F]{12}):",out)[-1],16)
    st=sym.get('Lmain',sym[NAME])
    return sym.get('Lfin',sym.get('Lend'))-st, last+4-st
if __name__=="__main__":
    ap=argparse.ArgumentParser()
    ap.add_argument("out"); ap.add_argument("opts",nargs="*")
    a=ap.parse_args()
    for kv in a.opts:
        k,v=kv.split("=",1)
        cur=getattr(cfg,k)
        setattr(cfg,k, (v in("1","True","true")) if isinstance(cur,bool) else (int(v) if isinstance(cur,int) else v.replace("+"," ")))
    from mkco import build as mk
    for it in range(4):
        bad=write(a.out); co=mk(a.out); hot,tot=sizes(co)
        need=-(-hot//(32*128))
        done=(need==CPF_LINES)
        CPF_LINES=need
        if cfg.pads:
            import subprocess
            lst=subprocess.run(["llvm-objdump","-d","--mcpu=gfx950",co],capture_output=True,text=True).stdout
            lst=lst[lst.index("<Lmain>:"):]
            enc=[len(m.group(1).split())*4 for m in re.finditer(r"// [0-9A-F]{12}: ([0-9A-F ]+)",lst)]
            src=open(a.out).read(); src=src[src.index("Lmain:\n"):].split("\n")[1:]
            j=0; addr=0
            for ln in src:
                t=ln.strip()
                if t.startswith(".section"): break
                if t==".p2align 3":
                    if addr%8: j+=1; addr+=4
                    continue
                if not t or t.startswith(";") or t.endswith(":") or t.startswith("."): continue
                SZ[t]=enc[j]; addr+=enc[j]; j+=1
            np_=(hot-64-cfg.padoff)//cfg.pads
            if np_!=NPADS: done=False
            NPADS=np_
        if done and it>0: break
    assert 32*128*CPF_LINES+256<=tot, (hot,tot)
    print(co, "PROBLEMS" if bad else "clean", "hot",hot,"total",tot,"cpf lines",CPF_LINES)
```
